```python
import torch

def _softmax(x, axis=-1):
    return torch.softmax(x, dim=axis)
def _gelu(x):
    return torch.nn.functional.gelu(x, approximate="tanh")
def _silu(x):
    return torch.nn.functional.silu(x)
def _sigmoid(x):
    return torch.sigmoid(x)
def _layernorm(x, axis=-1, eps=1e-5):
    m = x.mean(dim=axis, keepdim=True)
    v = x.var(dim=axis, keepdim=True, unbiased=False)
    return (x - m) / torch.sqrt(v + eps)
def _scatter_add(tgt, idx, src, axis=0):
    return tgt.clone().index_add_(axis, idx, src)
def _segment_sum(src, seg, n):
    out = torch.zeros((n,) + src.shape[1:], dtype=src.dtype)
    return out.index_add_(0, seg, src)
def _pad(x, pw):
    flat = tuple(v for pair in reversed(pw) for v in pair)
    return torch.nn.functional.pad(x, flat)

kernel_name = 'gated_mix__compressed_kv_cla__moe_arch_mod__prompt'

def setup_inputs():

    _w = (lambda a: (lambda t: t.to(torch.bfloat16) if t.is_floating_point() else t)(torch.as_tensor(a)))
    def _A_setup():
        B, H, Sq, Sk, D, M = 1, 16, 2048, 2048, 256, 448
        Dc = 4 * D
        return {
            "x": _w((lambda *s: torch.randn(*s, dtype=torch.bfloat16) * 0.05)(B, Sq, M)),
            "c_kv": _w((lambda *s: torch.randn(*s, dtype=torch.bfloat16) * 0.8)(B, Sk, Dc)),
            "w_q": _w((lambda *s: torch.randn(*s, dtype=torch.bfloat16) * 6.4)(M, H, D) * (M ** -0.5)),
            "w_uk": _w((lambda *s: torch.randn(*s, dtype=torch.bfloat16) * 6.4)(Dc, H, D) * (Dc ** -0.5)),
            "w_uv": _w((lambda *s: torch.randn(*s, dtype=torch.bfloat16) * 0.8)(Dc, H, D) * (Dc ** -0.5)),
            "w_o": _w((lambda *s: torch.randn(*s, dtype=torch.bfloat16) * 0.8)(H, D, M) * ((H * D) ** -0.5)),
        }
    _A_in = _A_setup()

    def _B_setup():
        B, S, D, F, C = 1, 2048, 448, 1792, 2
        return {
            "x": _w((lambda *s: torch.randn(*s, dtype=torch.bfloat16) * 0.05)(B, S, D)),
            "w_r": _w((lambda *s: torch.randn(*s, dtype=torch.bfloat16) * 3.2)(D)),
            "w_gate": _w((lambda *s: torch.randn(*s, dtype=torch.bfloat16) * 0.4)(D, F)),
            "w_up": _w((lambda *s: torch.randn(*s, dtype=torch.bfloat16) * 0.4)(D, F)),
            "w_down": _w((lambda *s: torch.randn(*s, dtype=torch.bfloat16) * 0.4)(F, D)),
        }
    _B_in = _B_setup()

    return {
        "A_x": _A_in["x"],
        "A_c_kv": _A_in["c_kv"],
        "A_w_q": _A_in["w_q"],
        "A_w_uk": _A_in["w_uk"],
        "A_w_uv": _A_in["w_uv"],
        "A_w_o": _A_in["w_o"],
        "B_x": _B_in["x"],
        "B_w_r": _B_in["w_r"],
        "B_w_gate": _B_in["w_gate"],
        "B_w_up": _B_in["w_up"],
        "B_w_down": _B_in["w_down"],
        "gate_w": _w((lambda *s: torch.randn(*s, dtype=torch.bfloat16) * 0.05)(448) * 16.0),
    }

def reference(A_x, A_c_kv, A_w_q, A_w_uk, A_w_uv, A_w_o, B_x, B_w_r, B_w_gate, B_w_up, B_w_down, gate_w):
    def _A_ref(x, c_kv, w_q, w_uk, w_uv, w_o):
        B, Sq, M = x.shape[0], x.shape[1], x.shape[2]
        Sk = c_kv.shape[1]
        H, D = w_q.shape[1], w_q.shape[2]
        q = torch.einsum("bqm,mhd->bhqd", x, w_q)
        k = torch.einsum("bkc,chd->bhkd", c_kv, w_uk)
        v = torch.einsum("bkc,chd->bhkd", c_kv, w_uv)
        scores = torch.einsum("bhqd,bhkd->bhqk", q, k) * (D ** -0.5)
        off = Sk - Sq
        qi = torch.arange(Sq)[:, None]
        kj = torch.arange(Sk)[None, :]
        cmask = kj <= (qi + off)
        scores = torch.where(cmask[None, None], scores, -1e9)
        p = _softmax(scores, axis=-1)
        ctx = torch.einsum("bhqk,bhkd->bhqd", p, v)
        return torch.einsum("bhqd,hdm->bqm", ctx, w_o)

    def _B_ref(x, w_r, w_gate, w_up, w_down):
        B, S, D = x.shape
        C = 2
        r = x @ w_r
        idx = torch.argsort(-r, axis=-1)[:, :C]
        idx_e = (lambda x, n, axis: torch.repeat_interleave(x, n, dim=axis))(idx.reshape(B, C, 1), D, axis=2)
        x_sel = (lambda x, i, axis: torch.take_along_dim(x, i, dim=axis))(x, idx_e, axis=1)
        g = _silu(x_sel @ w_gate)
        u = x_sel @ w_up
        y = (g * u) @ w_down
        r_sel = _sigmoid((lambda x, i, axis: torch.take_along_dim(x, i, dim=axis))(r, idx, axis=1))
        y = y * r_sel.reshape(B, C, 1)
        b_off = (torch.arange(B) * S).reshape(B, 1)
        flat_idx = (idx + b_off).reshape(B * C)
        zero = (x * 0.0).reshape(B * S, D)
        upd = _scatter_add(zero, flat_idx, y.reshape(B * C, D), axis=0)
        return x + upd.reshape(B, S, D)

    x = A_x
    g = _sigmoid((x * gate_w).sum(-1, keepdims=True))
    a = _A_ref(x, A_c_kv, A_w_q, A_w_uk, A_w_uv, A_w_o)
    b = _B_ref(x, B_w_r, B_w_gate, B_w_up, B_w_down)
    return g * a + (1 - g) * b
```

```python
import re

TRANS = ("v_exp_f32", "v_log_f32", "v_rcp_f32", "v_rsq_f32", "v_sqrt_f32", "v_sin_f32", "v_cos_f32")
_REG = re.compile(r"^(-?)(?:abs\()?([vas])(?:(\d+)|\[(\d+):(\d+)\])\)?$")


def regs_of(tok):
    tok = tok.strip()
    if tok in ("vcc", "exec", "m0", "scc"):
        return [tok]
    if tok in ("vcc_lo", "vcc_hi"):
        return ["vcc"]
    if tok in ("exec_lo", "exec_hi"):
        return ["exec"]
    m = _REG.match(tok.replace("|", ""))
    if not m:
        return []
    k = m.group(2)
    if m.group(3) is not None:
        return [k + m.group(3)]
    return [k + str(i) for i in range(int(m.group(4)), int(m.group(5)) + 1)]


def R(kind, lo, n=1):
    return f"{kind}{lo}" if n == 1 else f"{kind}[{lo}:{lo + n - 1}]"


BARX = True
VM2 = True


class Inst:
    __slots__ = ("text", "op", "kind", "reads", "writes", "tag", "srcc", "srcab", "extra")

    def __init__(self, text, tag=None, **extra):
        self.text = text.strip()
        self.tag = tag
        self.extra = extra
        self.srcc = []
        self.srcab = []
        self.parse()

    def parse(self):
        t = self.text.split(";")[0].strip()
        if t.endswith(":") or t.startswith("."):
            self.op, self.kind, self.reads, self.writes = t, "label", [], []
            return
        parts = t.split(None, 1)
        op = parts[0]
        self.op = op
        ops = []
        mods = ""
        if len(parts) > 1:
            depth = 0
            cur = ""
            for ch in parts[1]:
                if ch in "[(":
                    depth += 1
                if ch in "])":
                    depth -= 1
                if ch == "," and depth == 0:
                    ops.append(cur.strip())
                    cur = ""
                else:
                    cur += ch
            last = cur.strip().split(None, 1)
            if last:
                ops.append(last[0])
                mods = last[1] if len(last) > 1 else ""
        rd, wr = [], []
        allr = [regs_of(o) for o in ops]
        flat = lambda ls: [r for l in ls for r in l]
        if op.startswith("v_mfma"):
            kind = "mfma"
            wr = allr[0]
            self.srcab = allr[1] + allr[2]
            self.srcc = allr[3]
            rd = flat(allr[1:])
        elif op.startswith("ds_read") or op.startswith("ds_bpermute") or op.startswith("ds_swizzle") or op.startswith("ds_permute"):
            kind = "dsr"
            wr = allr[0]
            rd = flat(allr[1:])
        elif op.startswith("ds_"):
            kind = "dsw"
            rd = flat(allr)
        elif op.startswith("buffer_load") or op.startswith("global_load"):
            if " lds" in " " + mods or "_lds_" in op:
                kind = "dma"
                rd = flat(allr) + ["m0"]
            else:
                kind = "vld"
                wr = allr[0]
                rd = flat(allr[1:])
        elif op.startswith("buffer_store") or op.startswith("global_store"):
            kind = "vst"
            rd = flat(allr)
        elif op.startswith("buffer_atomic") or op.startswith("global_atomic"):
            if "sc0" in mods:
                kind = "vld"
                wr = allr[0]
                rd = flat(allr)
            else:
                kind = "vst"
                rd = flat(allr)
        elif op in ("buffer_inv", "buffer_wbl2"):
            kind = "vst"
        elif op.startswith("s_load") or op in ("s_memtime", "s_memrealtime"):
            kind = "smem"
            wr = allr[0]
            rd = flat(allr[1:])
        elif op.startswith("v_"):
            base = op.replace("_e32", "").replace("_e64", "").replace("_dpp", "").replace("_sdwa", "")
            kind = "trans" if base in TRANS else "valu"
            wr = list(allr[0])
            rd = flat(allr[1:])
            if base.startswith("v_permlane") and "swap" in base:
                wr = allr[0] + allr[1]
                rd = allr[0] + allr[1]
            if base in ("v_fmac_f32", "v_dot2c_f32_bf16", "v_writelane_b32", "v_pk_fmac_f16") or "row_" in mods or "quad_perm" in mods:
                rd = rd + allr[0]
            if base in ("v_add_co_u32", "v_sub_co_u32", "v_addc_co_u32"):
                wr = allr[0] + allr[1]
                rd = flat(allr[2:])
            if base.startswith("v_cmpx"):
                wr = wr + ["exec"]
            self.extra["dpp"] = ("row_" in mods or "quad_perm" in mods)
        elif op in ("s_waitcnt", "s_nop", "s_barrier", "s_sleep", "s_setprio", "s_endpgm"):
            kind = "sctl"
        elif op.startswith("s_cbranch") or op in ("s_branch", "s_setpc_b64", "s_swappc_b64", "s_call_b64"):
            kind = "branch"
            rd = flat(allr)
            if "vcc" in op:
                rd = rd + ["vcc"]
            if op == "s_swappc_b64":
                wr = allr[0]
        elif op.startswith("s_cmp") or op.startswith("s_bitcmp"):
            kind = "salu"
            rd = flat(allr)
        elif op.startswith("s_"):
            kind = "salu"
            wr = allr[0] if allr else []
            rd = flat(allr[1:])
            if "saveexec" in op:
                wr = wr + ["exec"]
                rd = rd + ["exec"]
            if op in ("s_addk_i32", "s_mulk_i32"):
                rd = rd + wr
        elif op in ("NEED", "WAITV"):
            kind = "pseudo"
            rd = []
            self.extra["regs"] = flat(allr)
        else:
            raise ValueError("cannot parse: " + self.text)
        self.kind, self.reads, self.writes = kind, rd, wr

    def slots(self):
        if self.kind in ("label", "mfma"):
            return (0, 0)
        if self.kind == "trans" or (VM2 and self.kind in ("dma", "vld", "vst")):
            return (2, 0)
        if self.kind in ("valu", "dsr", "dsw", "dma", "vld", "vst"):
            return (1, 0)
        return (0, 1)

    def __repr__(self):
        return self.text


def I(text, **kw):
    return Inst(text, **kw)


def NEED(*regtexts):
    return Inst("NEED " + ", ".join(regtexts))


def WAITV(tag, lgkm0=False):
    i = Inst("WAITV")
    i.tag = tag
    i.extra["lgkm0"] = lgkm0
    return i


_NO_SCC = ("s_mov", "s_mul_i32", "s_cselect", "s_getpc", "s_movk", "s_getreg", "s_mul_hi", "s_cmov", "s_ff1", "s_bitset")
def writes_scc(i):
    return i.kind == "salu" and not i.op.startswith(_NO_SCC)
def reads_scc(i):
    return i.op.startswith(("s_cselect", "s_cbranch_scc", "s_addc", "s_subb", "s_cmov"))


def L(text):
    out = []
    last = None
    for line in text.split("\n"):
        line = line.strip()
        if line and not line.startswith(";"):
            i = Inst(line)
            if reads_scc(i) and last is not None:
                i.extra["scc"] = last
            if writes_scc(i):
                last = i
            out.append(i)
    return out


def link(ins):
    last = {}
    for i in ins:
        if not isinstance(i, Inst):
            continue
        for r in i.reads:
            if r in last:
                i.extra.setdefault("raw", {})[r] = last[r]
        for r in i.writes:
            last[r] = i
    return ins


def check_raw(insts, name):
    last = {}
    for i in insts:
        for r, src in i.extra.get("raw", {}).items():
            assert last.get(r) is src, f"{name}: {i.text} reads {r} from {last.get(r)} instead of {src.text}"
        for r in i.writes:
            last[r] = i


def check_scc(insts, name):
    last = None
    for i in insts:
        if reads_scc(i):
            src = i.extra.get("scc")
            if src is not None:
                assert last is src, f"SCC clobbered in {name}: {i.text} expects {src.text}, got {last.text if last else None}"
            else:
                assert last is not None and last.op.startswith(("s_cmp", "s_bitcmp")), f"SCC source unclear in {name}: {i.text} after {last}"
        if writes_scc(i):
            last = i


class Gaps:
    def __init__(self, mfmas):
        self.m = list(mfmas)
        self.n = len(self.m)
        self.sc = [[] for _ in range(self.n)]
        self.ve = [[] for _ in range(self.n)]
        self.pre = []

    def used(self, k):
        if BARX and any(i.op == "s_barrier" for i in self.sc[k]):
            return 2
        v = sum(max(i.slots()) for i in self.ve[k])
        s = len([i for i in self.sc[k] if i.kind != 'label'])
        return v + max(0, s - 1)

    def vm_near(self, k, d=3):
        return any(i.kind in ("dma", "vld", "vst") and "x4" in i.op for j in range(max(0, k - d), min(self.n, k + d + 1)) for i in self.ve[j])

    def vm_slot(self, k, inst, reach=10):
        if inst.kind in ("dma", "vld", "vst") and "x4" in inst.op:
            for d in (3, 2, 1):
                for j in range(k, min(self.n, k + reach)):
                    if self.used(j) + max(inst.slots()) <= 2 and not self.vm_near(j, d):
                        return j
        return k

    def put_s(self, k, inst):
        self.sc[k].append(inst)

    def put(self, k, inst):
        self.ve[k].append(inst)

    def fit(self, k, inst, lim=None):
        need = max(inst.slots())
        j = k
        while j < self.n and self.used(j) + need > 2:
            j += 1
        if j >= self.n or (lim is not None and j > lim):
            j = min(self.n - 1, k if lim is None else lim)
        self.ve[j].append(inst)
        return j

    def fit_s(self, k, inst, lim=None):
        j = k
        while j < self.n and len(self.sc[j]) >= 1:
            j += 1
        if j >= self.n or (lim is not None and j > lim):
            j = min(self.n - 1, k if lim is None else lim)
        self.sc[j].append(inst)
        return j

    def spread(self, insts, lo, hi):
        n = len(insts)
        last = lo
        for x, ins in enumerate(insts):
            k = max(last, lo + (x * (hi - lo)) // max(n, 1))
            last = self.fit(k, ins)

    def flat(self):
        last = self.n - 1
        if self.ve[last] and self.sc[last] and self.sc[last][-1].kind == "branch":
            self.ve[last].append(self.sc[last].pop())
        assert not any(i.kind == "branch" for i in self.sc[last][:-1])
        out = list(self.pre)
        for k in range(self.n):
            out.append(self.m[k])
            out += self.sc[k]
            out += self.ve[k]
        return out


def est_cycles(insts):
    t = 0
    vfree = 0
    mfree = 0
    nm = 0
    ta = 0
    for i in insts:
        if i.kind in ("label", "pseudo"):
            continue
        if i.kind == "mfma":
            t = max(t, vfree, mfree)
            mfree = t + 16
            vfree = t + 8
            t += 4
            nm += 1
        elif i.kind in ("valu", "dsr", "dsw", "dma", "vld", "vst", "trans"):
            t = max(t, vfree)
            if i.kind in ("dma", "vld", "vst"):
                t = max(t, ta - 64)
                ta = max(ta, t) + (64 if "x4" in i.op else 16)
            t += 8 if i.kind in ("trans", "dma", "vld", "vst") else 4
            vfree = t
        elif i.op == "s_nop":
            t += 4 * (int(i.text.split()[1]) + 1)
        else:
            t += 4
    return max(t, mfree), nm


class State:
    def __init__(self):
        self.lg = []
        self.vm = []
        self.smem = set()

    def copy(self):
        s = State()
        s.lg = list(self.lg)
        s.vm = list(self.vm)
        s.smem = set(self.smem)
        return s

    def key(self):
        return (tuple(tuple(sorted(x)) for x in self.lg), tuple((tuple(sorted(w)), str(t)) for w, t in self.vm))


def _parse_wait(text):
    v = re.search(r"vmcnt\((\d+)\)", text)
    l = re.search(r"lgkmcnt\((\d+)\)", text)
    return (int(v.group(1)) if v else None, int(l.group(1)) if l else None)


def wait_text(v, l):
    p = []
    if v is not None:
        p.append(f"vmcnt({min(v, 63)})")
    if l is not None:
        p.append(f"lgkmcnt({min(l, 15)})")
    return "s_waitcnt " + " ".join(p)


def wait_pass(insts, st, forced=None, log=None):
    st = st.copy()
    waits = {}

    def apply(v, l):
        if v is not None:
            v = min(v, 63)
            st.vm = st.vm[len(st.vm) - v:] if v < len(st.vm) and v > 0 else ([] if v == 0 else st.vm)
        if l is not None:
            l = min(l, 15)
            st.lg = st.lg[len(st.lg) - l:] if l < len(st.lg) and l > 0 else ([] if l == 0 else st.lg)
            if l == 0:
                st.smem = set()

    for idx, ins in enumerate(insts):
        if "ignore" in ins.text:
            continue
        v = l = None
        if forced and idx in forced:
            v, l = forced[idx]
        touch = set(ins.reads) | set(ins.writes)
        if ins.op == "NEED":
            touch = set(ins.extra["regs"])
        if touch:
            for p in range(len(st.lg) - 1, -1, -1):
                if st.lg[p] & touch:
                    n = len(st.lg) - 1 - p
                    if st.smem:
                        n = 0
                    l = n if l is None else min(l, n)
                    break
            for p in range(len(st.vm) - 1, -1, -1):
                if st.vm[p][0] & touch:
                    n = len(st.vm) - 1 - p
                    v = n if v is None else min(v, n)
                    break
            if st.smem & touch:
                l = 0
        if ins.op == "WAITV":
            tags = ins.tag if isinstance(ins.tag, list) else [ins.tag]
            for p in range(len(st.vm) - 1, -1, -1):
                if st.vm[p][1] in tags:
                    n = len(st.vm) - 1 - p
                    v = n if v is None else min(v, n)
                    break
            if ins.extra.get("lgkm0") and (st.lg or st.smem):
                l = 0
        if v is not None or l is not None:
            waits[idx] = (v, l)
            if log is not None and ins.kind != "pseudo" and not (forced and idx in forced):
                log.append((idx, ins.text, v, l))
            apply(v, l)
        if ins.op == "s_waitcnt":
            apply(*_parse_wait(ins.text))
        elif ins.kind == "dsr":
            st.lg.append(set(ins.writes))
        elif ins.kind == "dsw":
            st.lg.append(set())
        elif ins.kind in ("vld",):
            st.vm.append((set() if ins.tag == "TOUCH" else set(ins.writes), ins.tag))
        elif ins.kind in ("dma", "vst"):
            if "nocount" not in ins.text:
                st.vm.append((set(), ins.tag))
        elif ins.kind == "smem":
            st.smem |= set(ins.writes)
    return waits, st


def materialize(insts, waits):
    out = []
    for idx, ins in enumerate(insts):
        if idx in waits:
            out.append(Inst(wait_text(*waits[idx])))
        if ins.kind != "pseudo":
            out.append(ins)
    return out


def is_v(r):
    return r[0] in "va" and r not in ("vcc",)


def hazard_need(prod, cons):
    need = 0
    pw, pr = set(prod.writes), set(prod.reads)
    cr, cw = set(cons.reads), set(cons.writes)
    pvalu = prod.kind in ("valu", "trans")
    cvalu = cons.kind in ("valu", "trans")
    cmem = cons.kind in ("dsr", "dsw", "vld", "vst", "dma")
    if prod.kind == "mfma":
        passes = 4 if "16x16" in prod.op else 8
        big = {4: 8, 8: 12}[passes]
        if cons.kind == "mfma":
            if pw & set(cons.srcab):
                need = max(need, big)
            if pw & set(cons.srcc):
                if not (list(prod.writes) == list(cons.srcc) and prod.op == cons.op):
                    need = max(need, {4: 6, 8: 10}[passes])
            if pw & cw and not (pw & set(cons.srcc)):
                need = max(need, {4: 6, 8: 10}[passes])
        elif cvalu:
            if pw & (cr | cw):
                need = max(need, big)
            if set(prod.srcc) & cw:
                need = max(need, {4: 3, 8: 7}[passes])
        elif cmem:
            if pw & (cr | cw):
                need = max(need, big)
    if pvalu:
        vw = {r for r in pw if is_v(r)}
        sw = pw - vw
        if cons.kind == "mfma":
            if vw & cr:
                need = max(need, 2)
            if "exec" in pw:
                need = max(need, 4)
        if cvalu:
            if prod.kind == "trans" and vw & cr:
                need = max(need, 1)
            if cons.op.startswith("v_permlane") and vw & cr:
                need = max(need, 2)
            if cons.extra.get("dpp") and vw & cr:
                need = max(need, 2)
            if cons.extra.get("dpp") and "exec" in pw:
                need = max(need, 5)
            if (cons.op.startswith("v_readlane") or cons.op.startswith("v_readfirstlane")) and vw & cr:
                need = max(need, 1)
            if (cons.op.startswith("v_readlane") or cons.op.startswith("v_writelane")) and sw & cr:
                need = max(need, 4)
            if (cons.op.startswith("v_readlane") or cons.op.startswith("v_writelane") or cons.op.startswith("v_readfirstlane") or cons.op.startswith("v_permlane")) and "exec" in pw:
                need = max(need, 4)
            if sw & cr:
                need = max(need, 2)
            if ("sdwa" in prod.text or "_sel:" in prod.text) and not prod.op.startswith("v_pk_") and vw & (cr | cw):
                need = max(need, 1)
            if prod.op.startswith("v_dot") and vw & (cr | cw) and prod.op != cons.op:
                need = max(need, 3)
        if prod.op.startswith("v_dot") and (cmem or cons.kind == "mfma") and vw & cr:
            need = max(need, 3)
        if cons.kind in ("vld", "vst", "dma") and sw & cr:
            need = max(need, 5)
        if prod.kind == "trans" and cmem and vw & cr:
            need = max(need, 1)
        if cons.kind in ("salu", "branch") and sw & cr:
            need = max(need, 1)
    if prod.kind == "vst" and ("x4" in prod.op or "x3" in prod.op):
        data = {r for r in pr if is_v(r)}
        if data & cw:
            need = max(need, 2)
    if prod.kind == "salu" and "m0" in pw and (cons.kind == "dma" or "m0" in cr):
        need = max(need, 1)
    return need


def states_of(ins):
    if ins.kind in ("label", "pseudo"):
        return 0
    if ins.op == "s_nop":
        return int(ins.text.split()[1]) + 1
    return 1


def hazard_pass(insts, history=None, log=None):
    hist = list(history or [])
    out = []
    for ins in insts:
        if ins.kind in ("label", "pseudo"):
            out.append(ins)
            continue
        dist = 0
        pad = 0
        for p in reversed(hist):
            if dist >= 12:
                break
            nd = hazard_need(p, ins)
            if nd > dist:
                pad = max(pad, nd - dist)
                if log is not None:
                    log.append((p.text, ins.text, nd, dist))
            dist += states_of(p)
        if pad:
            nop = Inst(f"s_nop {pad - 1}")
            out.append(nop)
            hist.append(nop)
        out.append(ins)
        hist.append(ins)
        hist = hist[-16:]
    return out


class Prog:
    def __init__(self, verbose=False):
        self.out = []
        self.st = State()
        self.verbose = verbose
        self.hist = []

    def _report(self, name, wl, hl, insts):
        if self.verbose:
            c, nm = est_cycles(insts)
            print(f"; [{name}] insts={len(insts)} mfma={nm} est_cycles={c} (ideal {nm * 16}) auto_waits={len(wl)} pads={len(hl)}")
            if self.verbose > 1:
                for w in wl:
                    print(";   auto wait before", w)
                for h in hl:
                    print(";   pad", h)

    def add(self, insts, name="seq"):
        if isinstance(insts, str):
            insts = L(insts)
        if isinstance(insts, Inst):
            insts = [insts]
        wl, hl = [], []
        waits, self.st = wait_pass(insts, self.st, log=wl)
        m = materialize(insts, waits)
        m = hazard_pass(m, self.hist, log=hl)
        self.hist = (self.hist + [i for i in m if i.kind != "label"])[-16:]
        self.out += m
        if any(i.kind == "mfma" for i in m):
            self._report(name, wl, hl, m)

    def loop(self, body, name="loop"):
        wl, hl = [], []
        w1, s1 = wait_pass(body, self.st, log=wl)
        forced = dict(w1)
        for _ in range(4):
            w2, s2 = wait_pass(body, s1, forced=forced, log=wl)
            same = (w2 == forced) and s2.key() == s1.key()
            forced = w2
            _, s1n = wait_pass(body, self.st, forced=forced)
            s1 = s2
            if same:
                break
        _, sa = wait_pass(body, self.st, forced=forced)
        if sa.key() != s1.key():
            if self.verbose:
                print(f"; note: loop {name}: first-trip exit state differs from steady state")
        m = materialize(body, forced)
        m = hazard_pass(m, self.hist, log=hl)
        m2 = hazard_pass(m, [i for i in m if i.kind != "label"][-16:], log=hl)
        self.hist = [i for i in m2 if i.kind != "label"][-16:]
        self.out += m2
        self.st = s1
        self._report(name, wl, hl, m2)

    def reset(self):
        self.st = State()
        self.hist = []

    def raw(self, text):
        self.out.append(Inst(".raw"))
        self.out[-1].text = text

    def text(self):
        return "\n".join(("" if i.kind == "label" else "  ") + i.text for i in self.out)


class CFG:
    def __init__(self, verbose=1):
        self.blocks = {}
        self.order = []
        self.paths = []
        self.verbose = verbose

    def block(self, name, *parts):
        ins = []
        for p in parts:
            if isinstance(p, str):
                ins += L(p)
            elif isinstance(p, Inst):
                ins.append(p)
            else:
                for q in p:
                    ins += L(q) if isinstance(q, str) else [q]
        assert name not in self.blocks, name
        self.blocks[name] = ins
        self.order.append(name)

    def path(self, *names):
        self.paths.append(list(names))

    def finalize(self):
        import sys
        forced = {n: {} for n in self.blocks}
        logs = {n: [] for n in self.blocks}
        seen = set()
        cache = {}
        ver = {n: 0 for n in self.blocks}
        for _ in range(10):
            changed = False
            for path in self.paths:
                st = State()
                for n in path:
                    seen.add(n)
                    key = (n, ver[n], st.key(), tuple(sorted(st.smem)))
                    if key in cache:
                        st = cache[key]
                        continue
                    w, st = wait_pass(self.blocks[n], st, forced=forced[n], log=logs[n])
                    if w != forced[n]:
                        forced[n] = w
                        ver[n] += 1
                        changed = True
                    else:
                        cache[key] = st
            if not changed:
                break
        else:
            raise RuntimeError("wait analysis did not converge")
        for n in self.blocks:
            assert n in seen, f"block {n} is on no path"
        mat = {n: materialize(self.blocks[n], forced[n]) for n in self.blocks}
        for n in mat: check_scc(mat[n], n); check_raw(mat[n], n)
        hl = {n: [] for n in self.blocks}
        for n in mat:
            mat[n] = hazard_pass(mat[n], [], log=hl[n])
        for _ in range(2):
            for path in self.paths:
                hist = []
                for n in path:
                    mat[n] = hazard_pass(mat[n][:24], hist, log=hl[n]) + mat[n][24:]
                    hist = (hist + [i for i in mat[n][-24:] if i.kind != "label"])[-16:]
        for n in self.order:
            if self.verbose:
                c, nm = est_cycles(mat[n])
                sys.stderr.write(f"; [{n}] insts={len(mat[n])} mfma={nm} est={c} ideal={nm * 16} auto_waits={len(logs[n])} pads={len(hl[n])}\n")
                if self.verbose > 1 and nm:
                    for w in logs[n]:
                        sys.stderr.write(f";    auto wait {w}\n")
                    for h in hl[n]:
                        sys.stderr.write(f";    pad {h}\n")
        self.mat = mat
        out = []
        for n in self.order:
            out.append(f"; ---- {n}")
            out += [("" if i.kind == "label" else "  ") + i.text for i in mat[n]]
        return "\n".join(out)
```

```python
from common import *

class AttRegs:
    S_WS = 8
    S_DBG = 12
    sWAVE = 20
    sK, sKcnt, sKn1, sKc1, sKn2 = 21, 22, 23, 24, 25
    sV, sIT, sM0, sT0, sT1 = 26, 27, 28, 29, 30
    sTHR, sQ, sOP, sPO, sDQ = 31, 32, 33, 34, 35
    sRET = 36
    sVn = 38
    sREQ, sCHK = 6, 7
    sTRI = (16, 18, 48, 50)
    vRD0, vRD1, vDM0, vDM1, vL16 = 7, 2, 3, 4, 7
    vF0 = 1
    vRL = 5
    vNEG = 8
    vX = 10
    vT = 18
    vSUM = 26
    vLS = 30
    vNM = 32
    vP0, vP1 = 40, 56
    vS, vO = 64, 128
    aQ, aF, aX = 0, 64, 128
A = AttRegs
KSLOT = {0: 3, 1: 1}
VSLOT = {0: 2, 1: 0}

def Sreg(b, kb, qb): return A.vS + 32 * b + (kb * 2 + qb) * 4
def Oreg(db, qb): return A.vO + (db * 2 + qb) * 4
def Preg(b, kp, qb): return (A.vP0 + 8 * b + 4 * qb) if kp == 0 else (A.vP1 + 4 * qb)
def Qreg(qb, ks): return A.aQ + (qb * 8 + ks) * 4
def Freg(batch, f): return A.aF + (batch & 1) * 32 + f * 4

WI = dict(nr=8, nd=8, noadd=0)
def rd_batch(slot, batch):
    va = A.vRD1 if slot >= 2 else A.vRD0
    return [I(f"ds_read_b128 a[{Freg(batch, f)}:{Freg(batch, f)+3}], v{va} offset:{(slot & 1) * 32768 + batch * 8192 + f * 1024}") for f in range(WI['nr'])]

DFL = "sc1"
def dma_tile(slot, soff, flags=None):
    flags = DFL
    out = []
    for j in range(WI['nd']):
        pre = I(f"s_add_u32 m0, s{A.sM0}, {slot * 32768 + (j >> 2) * 4096}") if j % 4 == 0 else None
        v = A.vDM0 if j < 4 else A.vDM1
        out.append((pre, I(f"buffer_load_dwordx4 v{v}, s[{A.S_WS}:{A.S_WS+3}], s{soff} offen offset:{(j & 3) * 1024} {flags} lds", tag=("T", slot))))
    return out
def dma_flat(slot, soff):
    out = []
    for pre, d in dma_tile(slot, soff):
        if pre: out.append(pre)
        out.append(d)
    return out
def adv_k():
    return L(f"""
    s_add_u32 s{A.sK}, s{A.sK}, 32768
    s_sub_u32 s{A.sKcnt}, s{A.sKcnt}, 1
    s_cmp_eq_u32 s{A.sKcnt}, 0
    s_cselect_b32 s{A.sK}, s{A.sKn1}, s{A.sK}
    s_cselect_b32 s{A.sKcnt}, s{A.sKc1}, s{A.sKcnt}
    s_cselect_b32 s{A.sKn1}, s{A.sKn2}, s{A.sKn1}
    s_cselect_b32 s{A.sKc1}, 0x7fff, s{A.sKc1}
    """)
def adv_v(): return L(f"s_add_u32 s{A.sV}, s{A.sV}, 32768")

X = dict(nodma=0, nobar=0, rp=0, dp=0, wide=1, ls=1, r3=1, r3x='-')
RPAT = {0: [0, 1, 3, 4, 6, 7, 9, 10], 1: [0, 1, 2, 4, 5, 6, 8, 9], 2: [0, 1, 4, 5, 8, 9, 12, 13], 3: [0, 0, 2, 2, 4, 4, 6, 6], 4: [0, 2, 4, 6, 8, 10, 12, 14], 5: [0, 0, 3, 3, 6, 6, 9, 9], 6: [0, 1, 2, 3, 5, 6, 7, 8]}
def weave_dma(g, slot, soff, post, lo=1, hi=45):
    t = dma_tile(slot, soff)
    link([i for p in t for i in p if i] + list(post))
    step = (hi - lo) / 8.0
    kk = lo
    for j, (pre, d) in enumerate(t):
        k = max(kk, int(lo + j * step))
        if pre:
            k = g.fit_s(max(k - 1, kk if j else 0), pre) + 1
        if X["dp"] == 1:
            while g.used(k) != 1: k += 1
        if X["dp"] == 2:
            while g.used(k) != 0: k += 1
        kk = k if X["nodma"] else g.fit(k, d)
    k = kk + 1
    for ins in post:
        k = g.fit_s(k, ins) + 1
    return k

def weave_reads(g, slot, nslot, wait_tags, base=0):
    pat = RPAT[X["rp"]]; late = pat[-1] > 10
    if late: g.put_s(base + 3, NEED(R("a", Freg(0, 4), 16)))
    for b in range(1, 4):
        rs = rd_batch(slot, b)
        p = pat if (b < 3 or not late) else RPAT[X['r3']]
        if b == 3 and X['r3x'] != '-': p = RPAT[int(X['r3x'])]
        for f, r in enumerate(rs):
            g.put(base + (b - 1) * 16 + p[f], r)
        if b < 3:
            g.put_s(base + b * 16 - 1, NEED(R("a", Freg(b, 0), 16 if late else 32)))
            if late: g.put_s(base + b * 16 + 3, NEED(R("a", Freg(b, 4), 16)))
    g.put_s(base + 46, WAITV(wait_tags, lgkm0=True))
    if not X["nobar"]: g.put_s(base + 47, I("s_barrier"))
    if nslot is not None:
        for f, r in enumerate(rd_batch(nslot, 0)):
            g.put(base + 48 + pat[f], r)
        g.put_s(base + 62, NEED(R("a", Freg(0, 0), 16 if late else 32)))

def qk_mfmas(b, cmode, breg=None, kbs=range(4)):
    ms = []
    for kb in kbs:
        for qb in range(2):
            d = R("v", Sreg(b, kb, qb), 4)
            order = range(8) if qb == 0 else range(7, -1, -1)
            for n, ks in enumerate(order):
                c = d if n else {"nm": R("v", A.vNM + 4 * qb, 4), "self": d, "zero": "0", "mask": R("v", A.vNM + 4, 4) if (kb, qb) == (0, 1) else d}[cmode]
                bq = breg(qb, ks) if breg else R("a", Qreg(qb, ks), 4)
                ms.append(mfma(d, R("a", Freg(kb, ks), 4), bq, c))
    return ms
def pv_mfmas(b):
    ms = []
    for db in range(16):
        for qb in range(2):
            d = R("v", Oreg(db, qb), 4)
            for kp in ((0, 1) if qb == 0 else (1, 0)):
                ms.append(mfma(d, R("a", Freg(db >> 2, (db & 3) * 2 + kp), 4), R("v", Preg(b, kp, qb), 4), d))
    return ms

def softmax_groups(b, kp):
    groups = []
    n = 0
    for qb in range(2):
        for kk in range(2):
            for pr in range(2):
                s = Sreg(b, 2 * kp + kk, qb) + 2 * pr
                t0, t1 = A.vT + (n % 4) * 2, A.vT + (n % 4) * 2 + 1
                sm = A.vSUM + 2 * b + qb
                ex = [I(f"v_exp_f32 v{t0}, v{s}"), I(f"v_exp_f32 v{t1}, v{s+1}")]
                if kp == 0 and kk == 0 and pr == 0:
                    post = [I(f"v_add_f32 v{sm}, v{t0}, v{t1}")]
                else:
                    post = [I(f"v_add_f32 v{sm}, v{t0}, v{sm}"), I(f"v_add_f32 v{sm}, v{t1}, v{sm}")]
                if WI['noadd']: post = post[:0]
                post.insert(1, I(f"v_cvt_pk_bf16_f32 v{Preg(b, kp, qb) + 2 * kk + pr}, v{t0}, v{t1}"))
                groups.append((ex, post))
                n += 1
    return groups
def softmax_half(b, kp):
    out = []
    prev = []
    for ex, post in softmax_groups(b, kp):
        out.append(ex[0]); out += prev[:2]; out.append(ex[1]); out += prev[2:]
        prev = post
    out += prev
    return out
def sched_softmax(g, b, kp, lo, hi, pre=()):
    grp = softmax_groups(b, kp)
    link(list(pre) + [i for e, p in grp for i in e + p])
    ex = [(n, i) for n, (e, p) in enumerate(grp) for i in e]
    po = [(-1, i) for i in pre] + [(n, i) for n, (e, p) in enumerate(grp) for i in p]
    done_e = {}; last = lo; ne = 0
    for k in range(lo, g.n):
        empty_left = sum(1 for q in range(k, hi) if g.used(q) == 0)
        if ex and g.used(k) == 0:
            n = ex[0][0]
            free = not any(m <= n - 4 for m, _ in po)
            due = k >= lo + ne * (hi - lo) // 16 or empty_left <= len(ex)
            if free and due:
                g.put(k, ex.pop(0)[1]); done_e[n] = (done_e.get(n, (0, 0))[0] + 1, k); ne += 1; last = k
                continue
        keep = ex and g.used(k) == 0 and empty_left <= len(ex) and not any(m <= ex[0][0] - 4 for m, _ in po)
        while po and g.used(k) < 2 and not keep:
            n = po[0][0]
            if n >= 0 and not (done_e.get(n, (0, 0))[0] == 2 and done_e[n][1] < k): break
            g.put(k, po.pop(0)[1]); last = k
    if ex or po:
        last = g.n - 1
        for n in range(-1, 8):
            for m, i in ex:
                if m == n: g.put(last, i)
            for m, i in po:
                if m == n: g.put(last, i)
    return last

def check(b, label):
    return [I(f"v_max_f32 v{A.vX}, v{A.vSUM + 2*b}, v{A.vSUM + 2*b + 1}"),
            I(f"v_cmp_lt_f32 vcc, s{A.sTHR}, v{A.vX}"),
            I(f"s_cbranch_vccnz {label}")]
def add_l(b):
    return [I(f"v_add_f32 v{A.vLS + q}, v{A.vSUM + 2*b + q}, v{A.vLS + q}") for q in range(2)]

def xlane(op, r, t):
    return L(f"""
    v_mov_b32 v{t}, v{r}
    v_permlane16_swap_b32 v{t}, v{r}
    {op} v{r}, v{t}, v{r}
    v_mov_b32 v{t}, v{r}
    v_permlane32_swap_b32 v{t}, v{r}
    {op} v{r}, v{t}, v{r}
    """)
def rowmax(b):
    ins = []
    for qb in range(2):
        vals = [Sreg(b, kb, qb) + e for kb in range(4) for e in range(4)]
        m = A.vX + qb
        ins.append(I(f"v_max3_f32 v{m}, v{vals[0]}, v{vals[1]}, v{vals[2]}"))
        for x in range(3, 15, 2):
            ins.append(I(f"v_max3_f32 v{m}, v{vals[x]}, v{vals[x+1]}, v{m}"))
        ins.append(I(f"v_max_f32 v{m}, v{vals[15]}, v{m}"))
    a, c = xlane("v_max_f32", A.vX, A.vX + 2), xlane("v_max_f32", A.vX + 1, A.vX + 3)
    for x, y in zip(a, c): ins += [x, y]
    ins += [I(f"v_ceil_f32 v{A.vX + q}, v{A.vX + q}") for q in range(2)]
    return ins
def sub_S(b):
    return [I(f"v_sub_f32 v{Sreg(b, kb, qb) + e}, v{Sreg(b, kb, qb) + e}, v{A.vX + qb}") for kb in range(4) for qb in range(2) for e in range(4)]
def init_softmax(b):
    ins = rowmax(b)
    ins += [I(f"v_sub_f32 v{A.vNM + 4*q + e}, 0, v{A.vX + q}") for q in range(2) for e in range(4)]
    ins += sub_S(b)
    ins += [I(f"v_mov_b32 v{A.vLS + q}, 0") for q in range(2)]
    ins += softmax_half(b, 0)
    return ins
def rescale_state():
    ins = [I(f"v_sub_f32 v{A.vNM + 4*q + e}, v{A.vNM + 4*q + e}, v{A.vX + q}") for q in range(2) for e in range(4)]
    ins += [I(f"v_exp_f32 v{A.vX + 2 + q}, -v{A.vX + q}") for q in range(2)]
    ins += [I(f"v_mul_f32 v{A.vLS + q}, v{A.vX + 2 + q}, v{A.vLS + q}") for q in range(2)]
    ins += [I(f"v_mul_f32 v{Oreg(db, q) + e}, v{A.vX + 2 + q}, v{Oreg(db, q) + e}") for db in range(16) for q in range(2) for e in range(4)]
    return ins
def slow_sub(b, other=True):
    ins = [I(f"L_slow{b}{'' if other else 'n'}:"), I("s_nop 7"), I("s_nop 3")]
    ins += rowmax(b)
    ins += [I(f"v_max_f32 v{A.vX + q}, 0, v{A.vX + q}") for q in range(2)]
    ins += sub_S(b) + (sub_S(1 - b) if other else [])
    ins += rescale_state()
    ins += softmax_half(b, 0) + softmax_half(b, 1)
    ins += [I("s_nop 3"), I(f"s_setpc_b64 s[{A.sRET}:{A.sRET+1}]")]
    return ins

def fill_valu(g, ins, lo, hi):
    tot = sum(max(i.slots()) for i in link(ins))
    k = lo; acc = 0
    for i in ins:
        tgt = lo + int(acc * (hi - lo) / max(tot, 1))
        k = g.fit(g.vm_slot(max(k, tgt), i, 4), i)
        acc += max(i.slots())
    return k

def mask_regs(wa):
    out = f"""
    s_cmp_eq_u32 s{A.sWAVE}, {wa}
    s_cselect_b64 s[64:65], -1, 0
    s_cmp_eq_u32 s{A.sWAVE}, {wa + 1}
    s_cselect_b64 s[84:85], -1, 0
    s_or_b64 s[66:67], s[64:65], s[84:85]
    """
    for e in range(4):
        t = A.sTRI[e]
        out += f"""s_and_b64 s[{68+2*e}:{69+2*e}], s[{t}:{t+1}], s[64:65]
        s_and_b64 s[{76+2*e}:{77+2*e}], s[{t}:{t+1}], s[84:85]
        s_or_b64 s[{76+2*e}:{77+2*e}], s[{76+2*e}:{77+2*e}], s[64:65]
        """
    return L(out)
def mask_blk(b, kb, qb, inplace=False):
    kind = {(0, 0): 1, (1, 0): 2, (1, 1): 1, (2, 0): 3, (2, 1): 2, (3, 0): 4, (3, 1): 3}.get((kb, qb))
    if kind is None: return []
    out = []
    for e in range(4):
        m = {1: 68 + 2 * e, 2: 64, 3: 76 + 2 * e, 4: 66}[kind]
        d = Sreg(b, kb, qb) + e
        out.append(I(f"v_cndmask_b32 v{d}, v{d if inplace else A.vNM + 4 * qb}, v{A.vNEG}, s[{m}:{m+1}]"))
    return out

def put_groups(g, groups, lo, hi):
    k = lo
    link([i for grp in groups for i in grp])
    for n, grp in enumerate(groups):
        k = max(k, lo + n * (hi - lo) // len(groups))
        for i in grp:
            if i.slots()[0] == 0:
                q = k + 1
                while q < g.n - 1 and (not g.room_s(q) or q in getattr(g, "nos", ())): q += 1
                if q < g.n - 1: g.put_s(q, i); k = q
                else: k = g.n - 1; g.put(k, i)
            else: k = g.fit(g.vm_slot(k, i, 5), i)
    return k
def win_qk(b, slowlabel, retlabel, extra=(), masked=False, cmode="nm", breg=None, spare=(), groups=(), head=(), pre_done=False, ghi=58, scal=()):
    g = Gaps(qk_mfmas(1 - b, "mask" if masked else cmode, breg))
    weave_reads(g, KSLOT[1 - b], VSLOT[b], [("T", VSLOT[b])])
    for e in extra: g.fit(0, e)
    hk = -1
    for e in head:
        if e.kind != 'label': hk += 1
        g.put_s(hk, e)
    if masked:
        if not pre_done: g.pre = mask_blk(1 - b, 0, 0)
        for blk in range(2, 8):
            k = max(0, 8 * blk - 16)
            for i in mask_blk(1 - b, blk >> 1, blk & 1):
                while g.used(k) != 1 and k < 8 * blk - 5: k += 1
                k = g.fit(k, i)
            assert k <= 8 * blk - 2, (blk, k)
    weave_dma(g, VSLOT[1 - b], A.sV, adv_v(), lo=hk + 2, hi=64 if (len(groups) >= 4 and X['wide']) else 45)
    k = 2
    for i in scal: k = g.fit_s(k, i) + 1
    if groups: put_groups(g, groups, 2, ghi)
    k = sched_softmax(g, b, 1, 0, 56) if X['ls'] else fill_valu(g, softmax_half(b, 1), 0, 50 if masked or groups else 53)
    c = check(b, slowlabel)
    if k <= 59:
        k = g.fit(max(k + 1, 58), c[0], lim=61); k = g.fit(k + 1, c[1], lim=62)
        g.put_s(63, c[2])
    else:
        for i in c: g.put(63, i)
    spare = list(spare)
    for k in range(63):
        while spare and g.used(k) < 2: g.put(k, spare.pop(0))
    return g.flat() + [I(retlabel + ":")], spare
def win_pv(b, tail=(), chk=None, post=(), valu=None, spare=(), lo=0, groups=(), tags=(), scal=(), ghi=32, glo=2, nowide=False):
    g = Gaps(pv_mfmas(b))
    weave_reads(g, VSLOT[b], KSLOT[b], [("T", KSLOT[b])] + list(tags))
    wide = len(groups) >= 4 and X["wide"] and not nowide
    k = weave_dma(g, KSLOT[1 - b], A.sK, adv_k(), hi=58 if wide else 38)
    if wide:
        glo = 4; g.nos = set(range(k - 9, k))
    if groups: put_groups(g, groups, glo, ghi)
    if scal:
        import kvq
        g.lock = set(range(k - 9, k))
        assert not kvq.seq_fit(g, list(scal), 1)[1]
    assert k <= (61 if wide else 53), k
    if chk:
        g.put(50, chk[0]); g.put_s(53, chk[1]); g.put_s(53, chk[2])
        ck = 53
        for i in chk[3:]:
            if i.kind != 'label': ck += 1
            g.put_s(ck, i)
        assert ck < 60
    k = 49
    for i in post: k = g.fit(k, i)
    if valu is None and X['ls']: sched_softmax(g, 1 - b, 0, 0, 59, add_l(b))
    elif valu is None: fill_valu(g, add_l(b) + softmax_half(1 - b, 0), 0, 60)
    else: valu(g)
    k = lo; left = []
    for i in link(list(spare)):
        if left: left.append(i); continue
        if i.slots()[0] == 0:
            k += 1
            while k < 60 and not g.room_s(k): k += 1
            if k >= 60: left.append(i)
            else: g.put_s(k, i)
            continue
        while k < 63 and g.used(k) + max(i.slots()) > 2: k += 1
        if k >= 63: left.append(i)
        else: g.put(k, i)
    for n, ins in enumerate(tail):
        g.put_s(64 - len(tail) + n - (1 if n < len(tail) - 1 else 0), ins)
    assert not (tail and left)
    return g.flat() + left

def zero_O_mfma(ins, z):
    out = []; step = max(len(ins) // 9, 1); n = 0
    for k, i in enumerate(ins):
        out.append(i)
        if k % step == step - 1 and n < 8:
            out.append(I(f"v_mfma_f32_32x32x16_bf16 v[{A.vO + 16*n}:{A.vO + 16*n + 15}], v[{z}:{z+3}], v[{z}:{z+3}], 0")); n += 1
    assert n == 8
    return out
def q_from_lds(dst, flip=0):
    pre = L(f"""
    s_lshr_b32 s64, s{A.sWAVE}, 1
    s_add_u32 s64, s64, {flip}
    s_lshl_b32 s64, s64, {17 - flip}
    s_and_b32 s65, s{A.sWAVE}, 1
    s_lshl_b32 s65, s65, 14
    s_add_u32 s64, s64, s65
    v_add_u32 v{A.vX}, s64, v{A.vL16}
    """)
    return pre + [I(f"ds_read_b128 a[{dst + 4*n}:{dst + 4*n + 3}], v{A.vX} offset:{n * 1024}") for n in range(16)]
def zero_O(): return [I(f"v_mov_b32 v{A.vO + r}, 0") for r in range(128)]
def load_Q():
    out = []
    for j in range(16):
        if j % 4 == 0: out.append(I(f"s_add_u32 s{A.sT1}, s{A.sQ}, {j * 1024}"))
        out.append(I(f"buffer_load_dwordx4 a[{A.aQ + 4*j}:{A.aQ + 4*j + 3}], v{A.vL16}, s[{A.S_WS}:{A.S_WS+3}], s{A.sT1} offen offset:{(j & 3) * 1024} sc1"))
    return out
def cvt_ctx(ks, qb):
    a, c = Oreg(2 * ks, qb), Oreg(2 * ks + 1, qb)
    return L(f"""v_cvt_pk_bf16_f32 v{a}, v{a}, v{a+1}
    v_cvt_pk_bf16_f32 v{a+1}, v{a+2}, v{a+3}
    v_cvt_pk_bf16_f32 v{a+2}, v{c}, v{c+1}
    v_cvt_pk_bf16_f32 v{a+3}, v{c+2}, v{c+3}""")

def mix(valu, mem, lo=0, hi=None):
    hi = len(valu) if hi is None else hi
    link(valu); link(mem)
    groups = []; cur = []
    for i in mem:
        cur.append(i)
        if i.slots()[0]: groups.append(cur); cur = []
    tail = cur
    out = []; n = 0
    for k, i in enumerate(valu):
        while n < len(groups) and k >= lo + n * (hi - lo) // len(groups):
            g_ = groups[n]; n += 1
            if len(g_) > 1 and out and out[-1].kind in ("valu", "trans"):
                last = out.pop(); out += g_[:-1] + [last, g_[-1]]
            else: out += g_
            if n == len(groups): out += tail
        out.append(i)
    assert n == len(groups)
    return out
```

```python
from asmlib import *
NAME = "gated_mix__compressed_kv_cla__moe_arch_mod__prompt"
A_X, A_CKV, A_WQ, A_WUK, A_WUV, A_WO, A_BX, A_WR, A_WG, A_WU, A_WD, A_GW, A_OUT, A_DBG, A_WS = [8 * i for i in range(15)]
WS_K = 0
WS_V = 16 << 20
WS_Q = 32 << 20
WS_PO = 48 << 20
WS_OP = 64 << 20
WS_R = 100 << 20
WS_STAMP = 120 << 20

def srd(s, base_lo, nbytes):
    return (f"s_mov_b32 s{s}, s{base_lo}\ns_and_b32 s{s+1}, s{base_lo+1}, 0xffff\n"
            f"s_mov_b32 s{s+2}, {nbytes}\ns_mov_b32 s{s+3}, 0x20000")

def mfma(d, a, b, c):
    return I(f"v_mfma_f32_16x16x32_bf16 {d}, {a}, {b}, {c}")

def kernel_header(name):
    return f".globl {name}\n.p2align 8\n.type {name},@function\n{name}:"

def kernel_desc(name, vgpr=512, accum=256, sgpr=96):
    return f""".amdhsa_kernel {name}
  .amdhsa_next_free_vgpr {vgpr}
  .amdhsa_next_free_sgpr {sgpr}
  .amdhsa_accum_offset {accum}
  .amdhsa_group_segment_fixed_size 0
  .amdhsa_kernarg_size 120
  .amdhsa_user_sgpr_count 2
  .amdhsa_user_sgpr_kernarg_segment_ptr 1
  .amdhsa_system_sgpr_workgroup_id_x 1
  .amdhsa_float_denorm_mode_32 3
.end_amdhsa_kernel"""

WS_WO = 96 << 20
PO_STRIDE = 73728
OP_HEAD = 114688
LOG2E_16 = 1.4426950408889634 / 16.0
import struct
def f2u(x): return struct.unpack("<I", struct.pack("<f", x))[0]

WS_Y = WS_R + (1 << 20)
WS_SEL = WS_R + 32768
WS_FKV = WS_R + 65536
WS_FPO = WS_FKV + 4096
WS_FOP = WS_FPO + 4096
WS_FH = WS_FOP + 4096
SPIN_MAX = 1 << 16
WS_DUMMY = 110 << 20
LDS_R = 163840 - 256

WS_RG = WS_R
WS_KEY = WS_FKV - 8192
NZERO = 21

FSTR = 4352
WS_FL = WS_FKV
WS_FOP = WS_FL + 16 * FSTR
WS_FH = WS_FL + 32 * FSTR
WS_YF = WS_R + 40960
NZERO = 41
```

```python
from common import *
from side import sWAVE, sH, sJ, WS, OOB, sigmoid, lane0_wave0, flag_store
LB = 131072
LX = LB + 28672
sFS, sLD, sMK = 86, 87, 88

HNT = "nt"
MAP = "0"
def unit(m0off, n, srdreg, soff, tag, adv, v=28, fl="nt"):
    return ([I(f"s_add_u32 m0, s{sLD}, {m0off}")] +
            [I(f"buffer_load_dwordx4 v{v+j}, s[{srdreg}:{srdreg+3}], s{soff} offen offset:{1024*j} {fl} lds", tag=tag) for j in range(n)] +
            [I(f"s_add_u32 s{soff}, s{soff}, {adv}")])
def s1_weights():
    pre = L(f"""
    {f's_mul_i32 s{sFS}, s{sH}, 7' if MAP != '0' else f'''
    s_and_b32 s{sFS}, s{sH}, 7
    s_mul_i32 s{sFS}, s{sFS}, 14
    s_lshr_b32 s64, s{sH}, 3
    s_mul_i32 s64, s64, 7
    s_add_u32 s{sFS}, s{sFS}, s64'''}
    s_min_u32 s64, s{sJ}, 6
    s_add_u32 s{sFS}, s{sFS}, s64
    s_sub_u32 s64, 6, s{sJ}
    s_and_b32 s{sMK}, s64, {OOB}
    s_mul_i32 s{sLD}, s{sWAVE}, 7168
    s_add_u32 s{sLD}, s{sLD}, {LB}
    s_cmp_lt_u32 s{sWAVE}, 2
    s_cselect_b64 s[72:73], s[80:81], s[82:83]
    {srd(60, 72, 448*3584)}
    {srd(68, 84, 1792*896)}
    s_lshl_b32 s89, s{sFS}, 5
    s_and_b32 s64, s{sWAVE}, 1
    s_mul_i32 s64, s64, {224 * 3584}
    s_add_u32 s89, s89, s64
    v_lshrrev_b32 v28, 1, v0
    v_mul_u32_u24 v28, 3584, v28
    v_and_b32 v29, 1, v0
    v_lshl_add_u32 v25, v29, 4, v28
    v_or_b32 v25, s{sMK}, v25
    """)
    return pre, [unit(1024 * n, 1, 60, 89, "HW", 32 * 3584, 25, HNT) for n in range(7)]
KEYS = [f"buffer_load_dwordx4 v[{16+4*n}:{19+4*n}], v7, {WS}, s67 offen offset:{1024*n} sc1" for n in range(2)]
KMIN = """v_min3_u32 v28, v16, v17, v18
    v_min3_u32 v28, v28, v19, v20
    v_min3_u32 v28, v28, v21, v22
    v_min_u32 v28, v28, v23
    v_cmp_eq_u32 vcc, 0, v28"""
def s2_keys():
    return L(f"s_lshl_b32 s67, s{sWAVE}, 11\ns_add_u32 s67, s67, {WS_KEY}\n" + "\n".join(KEYS))
def key_stub():
    return L(f"L_hs:\ns_mov_b32 s91, {SPIN_MAX}\nL_hs_l:\n" + "\n".join(KEYS) + f"\ns_waitcnt vmcnt(0)\ns_sub_u32 s91, s91, 1\ns_cbranch_scc1 L_hr\n{KMIN}\ns_cbranch_vccnz L_hs_l\ns_branch L_hr")
def merge(a1, a2, b1, b2, t):
    return L(f"v_min_u32 v{t}, v{a1}, v{b1}\nv_max_u32 v{a1}, v{a1}, v{b1}\nv_max3_u32 v{a2}, v{a2}, v{b2}, v{t}")
def s3_top2():
    out = L(KMIN + "\ns_nop 0\ns_cbranch_vccnz L_hs\nL_hr:\nv_max_u32 v28, v16, v17\nv_min_u32 v29, v16, v17")
    for n in range(18, 24): out += L(f"v_med3_u32 v29, v28, v29, v{n}\nv_max_u32 v28, v28, v{n}")
    for sh in ("row_ror:8", "row_ror:4", "row_ror:2", "row_ror:1"):
        out += L(f"v_mov_b32 v30, v28 {sh} row_mask:0xf bank_mask:0xf\nv_mov_b32 v31, v29 {sh} row_mask:0xf bank_mask:0xf") + merge(28, 29, 30, 31, 16)
    for sw in ("v_permlane16_swap_b32", "v_permlane32_swap_b32"):
        out += L(f"v_mov_b32 v30, v28\nv_mov_b32 v31, v29\n{sw} v30, v28\n{sw} v31, v29") + merge(28, 29, 30, 31, 16)
    out += L(f"s_lshl_b32 s64, s{sWAVE}, 3\ns_add_u32 s64, s64, {LX}\nv_mov_b32 v16, s64\nds_write_b64 v16, v[28:29]")
    return out
def s4_sel():
    out = L(f"v_mov_b32 v28, {LX}\nds_read_b128 v[16:19], v28\nds_read_b128 v[20:23], v28 offset:16") + [8]
    out += merge(16, 17, 18, 19, 28) + merge(20, 21, 22, 23, 29) + merge(16, 17, 20, 21, 28)
    out += L(f"""
    v_and_b32 v28, 1, v0
    v_cmp_eq_u32 vcc, 0, v28
    s_and_b32 s64, s{sWAVE}, 1
    s_mul_i32 s64, s64, 448
    v_cndmask_b32 v24, v17, v16, vcc
    v_and_b32 v24, 0x7ff, v24
    v_sub_u32 v24, 2047, v24
    v_mul_u32_u24 v28, 896, v24
    v_lshrrev_b32 v29, 4, v0
    v_lshl_add_u32 v28, v29, 4, v28
    v_bfe_u32 v30, v0, 1, 3
    v_lshl_or_b32 v28, v30, 26, v28
    """) + [I(f"buffer_load_dwordx4 a[{208+4*k}:{211+4*k}], v28, s[56:59], s64 offen offset:{64*k}") for k in range(7)] + L(f"""
    v_lshrrev_b32 v28, 4, v24
    v_lshlrev_b32 v28, 5, v28
    v_and_b32 v30, 15, v24
    v_add_lshl_u32 v28, v28, v30, 2
    v_lshrrev_b32 v30, 1, v0
    v_min_u32 v30, 1, v30
    v_lshl_or_b32 v28, v30, 29, v28
    s_mov_b32 s64, {WS_RG}
    buffer_load_dword v23, v28, {WS}, s64 offen sc1
    v_bfe_u32 v28, v0, 2, 2
    v_lshl_add_u32 v28, v29, 3, v28
    v_lshlrev_b32 v28, 5, v28
    v_and_b32 v30, 3, v0
    v_lshl_add_u32 v28, v30, 3, v28
    v_add_u32 v22, s{sLD}, v28
    """)
    return out
def s5_gemm():
    rounds = []
    for ks0, n in ((0, 4), (4, 3)):
        rd = [I(f"ds_read_b64_tr_b16 a[{176+4*k+2*j}:{177+4*k+2*j}], v22 offset:{(ks0+k)*1024 + j*128}") for k in range(n) for j in range(2)]
        mm = [mfma("v[16:19]", R("a", 176 + 4 * k, 4), R("a", 208 + 4 * (ks0 + k), 4), "v[16:19]" if ks0 + k else "0") for k in range(n)]
        rounds.append((rd, mm))
    return rounds
def s6_down_dma():
    pre = L(f"""
    s_lshl_b32 s64, s{sWAVE}, 10
    s_add_u32 s64, s64, {LX}
    v_add_u32 v21, s64, v7
    ds_write_b128 v21, v[16:19]
    s_mul_i32 s67, s{sFS}, {16 * 896}
    s_mul_i32 s64, s{sWAVE}, 224
    s_add_u32 s67, s67, s64
    v_lshrrev_b32 v28, 4, v0
    v_mul_u32_u24 v28, 896, v28
    v_and_b32 v29, 15, v0
    v_lshl_add_u32 v28, v29, 4, v28
    v_mov_b32 v30, {OOB}
    v_cmp_gt_u32 vcc, 14, v29
    s_nop 0
    s_nop 0
    v_cndmask_b32 v28, v30, v28, vcc
    v_add_u32 v29, {4 * 896 - 1024}, v28
    v_add_u32 v30, {2 * (4 * 896 - 1024)}, v28
    v_add_u32 v31, {3 * (4 * 896 - 1024)}, v28
    """)
    return pre, unit(0, 4, 68, 67, "HD", 0)
def rnd2(a, b, t):
    return L(f"v_cvt_pk_bf16_f32 v{t}, v{a}, v{b}\nv_lshlrev_b32 v{a}, 16, v{t}\nv_and_b32 v{b}, 0xffff0000, v{t}")
def s7_act():
    out = L(f"""
    v_cvt_pk_bf16_f32 v23, v23, v23
    v_and_b32 v23, 0xffff0000, v23
    """) + sigmoid(23, 22) + L(f"""
    s_or_b32 s64, s{sFS}, s{sWAVE}
    s_min_u32 s64, s64, 1
    s_lshl_b32 s64, s64, 29
    v_lshrrev_b32 v22, 1, v0
    v_min_u32 v22, 1, v22
    v_lshlrev_b32 v22, 29, v22
    v_lshl_or_b32 v22, v0, 2, v22
    v_or_b32 v22, s64, v22
    v_cvt_pk_bf16_f32 v23, v23, v23
    v_and_b32 v23, 0xffff0000, v23
    s_mov_b32 s64, {WS_SEL}
    buffer_store_dword v24, v22, {WS}, s64 offen sc1
    buffer_store_dword v23, v22, {WS}, s64 offen offset:8 sc1
    v_add_u32 v25, {LX}, v7
    ds_read_b128 v[16:19], v25
    ds_read_b128 v[28:31], v25 offset:1024
    ds_read_b128 v[20:23], v25 offset:2048
    """) + [7]
    out += [I(f"v_add_f32 v{16+e}, v{28+e}, v{16+e}") for e in range(4)]
    out += L("ds_read_b128 v[28:31], v25 offset:3072")
    out += rnd2(16, 17, 25) + rnd2(18, 19, 25)
    out += [I(f"v_add_f32 v{20+e}, v{28+e}, v{20+e}") for e in range(4)]
    out += [I(f"v_mul_f32 v{28+e}, 0xbfb8aa3b, v{16+e}") for e in range(4)]
    out += [I(f"v_exp_f32 v{28+e}, v{28+e}") for e in range(4)]
    out += rnd2(20, 21, 25) + rnd2(22, 23, 25)
    out += [I(f"v_add_f32 v{28+e}, 1.0, v{28+e}") for e in range(4)]
    out += [I(f"v_rcp_f32 v{28+e}, v{28+e}") for e in range(4)]
    out += [I(f"v_mul_f32 v{16+e}, v{28+e}, v{16+e}") for e in range(4)]
    out += rnd2(16, 17, 25) + rnd2(18, 19, 25)
    out += [I(f"v_mul_f32 v{16+e}, v{20+e}, v{16+e}") for e in range(4)]
    out += L("v_cvt_pk_bf16_f32 v16, v16, v17\nv_cvt_pk_bf16_f32 v17, v18, v19")
    return out
def s8_down():
    pre = L(f"""
    v_lshrrev_b32 v28, 2, v0
    v_lshlrev_b32 v28, 8, v28
    v_and_b32 v29, 3, v0
    v_lshl_add_u32 v28, v29, 3, v28
    v_add_u32 v28, s{sLD}, v28
    """) + [WAITV("HD")] + [I(f"ds_read_b64_tr_b16 a[{176+2*m}:{177+2*m}], v28 offset:{32*m}") for m in range(7)] + L(f"""
    """)
    adr = L(f"""
    v_and_b32 v29, 15, v0
    v_mul_u32_u24 v30, 1792, v29
    v_lshrrev_b32 v31, 4, v0
    v_lshl_add_u32 v30, v31, 4, v30
    v_lshrrev_b32 v29, 1, v29
    v_min_u32 v29, 1, v29
    v_lshl_or_b32 v30, v29, 29, v30
    v_or_b32 v30, s{sMK}, v30
    s_mul_i32 s89, s{sFS}, 3584
    s_mul_i32 s64, s{sWAVE}, 448
    s_add_u32 s89, s89, s64
    s_add_u32 s89, s89, {WS_Y}
    """)
    mm = [I(f"v_mfma_f32_16x16x16_bf16 a[{208+4*m}:{211+4*m}], a[{176+2*m}:{177+2*m}], v[16:17], 0") for m in range(7)]
    st = [I(f"buffer_store_dwordx4 a[{208+4*m}:{211+4*m}], v30, {WS}, s89 offen offset:{64*m} sc1", tag="KVST") for m in range(7)]
    return pre, mm, adr, st
def s9_flag():
    return L(f"s_lshl_b32 s89, s{sFS}, 2\ns_add_u32 s89, s89, {WS_FH}\nv_mov_b32 v29, 1\nv_or_b32 v28, s{sMK}, v1") + [flag_store(89, 28, 29)]
```

```python
from common import *

class KR:
    S_WS, S_DBG, S_W, S_C, S_WQ, S_X = 8, 12, 16, 48, 52, 56
    sWAVE = 20
    sWOFF, sCOFF, sM0W, sM0C, sT, sOOFF, sQOFF, sWQOFF, sXOFF, sLOOP, sSC = 21, 22, 23, 24, 3, 93, 4, 28, 29, 30, 5
    vWR, vCR, vST, vWD, vCD, vXD, vWR2, vT = 1, 5, 7, 8, 12, 16, 20, 24
K = KR
WSLOT = [0, 16384, 32768, 49152, 131072, 147456]

def kacc(y, x):
    return ("a", 4 * x) if y == 0 else ("v", 32 + 4 * ((y - 1) * 8 + x))
def rr(t): return R(t[0], t[1], 4)
def wfrag(buf, x, ks): return 32 + buf * 64 + (x * 2 + ks) * 4
def cfrag(buf, ks): return 160 + buf * 8 + ks * 4

NTW = 'nt'
NTC = 99
CFL = ''
def unit(m0base, ldsoff, vreg, srdreg, soff, adv, tag, fl=''):
    return ([I(f"s_add_u32 m0, s{m0base}, {ldsoff}")] +
            [I(f"buffer_load_dwordx4 v{vreg+j}, s[{srdreg}:{srdreg+3}], s{soff} offen offset:{1024*j} {CFL} {NTW if srdreg == K.S_W else fl} lds", tag=tag) for j in range(4)] +
            [I(f"s_add_u32 s{soff}, s{soff}, {adv}") if adv >= 0 else I(f"s_sub_u32 s{soff}, s{soff}, {-adv}")])
def unit_w(u): return unit(K.sM0W, WSLOT[u & 3], K.vWD, K.S_W, K.sWOFF, 128 if u % 2 == 0 else 64 * 8192 - 128, ("W", u & 3))
def unit_c(u): return unit(K.sM0C, (u & 3) * 16384, K.vCD, K.S_C, K.sCOFF, 1024 * 2048 if u % 2 == 0 else -(1024 * 2048 - 128), ("C", u & 3), 'nt' if (u >= NTC if NTC > 0 else u < -NTC) else '')
WQ_SCHED = {27: [0], 28: [1, 4], 29: [2, 5], 30: [3], 31: [6]}
def unit_wq(v):
    order = [x for u in sorted(WQ_SCHED) for x in WQ_SCHED[u]] + list(range(7, 15))
    off = lambda x: (x >> 1) * 64 * 8192 + (x & 1) * 128
    return unit(K.sM0W, WSLOT[v % 6], K.vWD, K.S_WQ, K.sWQOFF, off(order[order.index(v) + 1]) - off(v), ("W", v % 6))
X6LOW = True
def unit_x(t): return unit(K.sM0C, (t & 3) * 16384, K.vXD, K.S_X, K.sXOFF, 128, ("C", t & 3)) if (t < 6 or not X6LOW) else unit(K.sM0W, 32768, K.vXD, K.S_X, K.sXOFF, 128, ("C", 2))

def rd_w(buf, slot, x, ks, j):
    r = wfrag(buf, x, ks) + 2 * j
    va, base = (K.vWR, WSLOT[slot]) if slot < 4 else (K.vWR2, WSLOT[slot] - 131072)
    return I(f"ds_read_b64_tr_b16 a[{r}:{r+1}], v{va + (x & 3)} offset:{base + (32 * ks + 4 * j) * 256}")
def rd_w_unit(buf, slot, hx):
    return [rd_w(buf, slot, x, ks, j) for x in range(4 * hx, 4 * hx + 4) for ks in range(2) for j in range(2)]
def rd_c(buf, slot, y4, ks):
    r = cfrag(buf, ks)
    return I(f"ds_read_b128 a[{r}:{r+3}], v{K.vCR + ks} offset:{slot * 16384 + y4 * 2048}")

def weave_units(g, units, lo, hi):
    n = sum(len(u) - 2 for u in units)
    if not n: return
    step = (hi - lo) / float(n)
    x = 0; kk = lo - 1
    link([i for u in units for i in u])
    for un in units:
        k = max(int(lo + x * step), kk + 1)
        k = g.fit_s(max(k - 1, kk + 1 if x else 0), un[0]) + 1
        for j in range(len(un) - 2):
            kk = g.fit(max(k, int(lo + x * step)), un[1 + j]); k = kk; x += 1
        kk = g.fit_s(kk + 1, un[-1])

def row_mfmas(accf, y, wbuf, cbuf, vtype, first):
    ms = []
    for x in range(8):
        for n, ks in enumerate((0, 1) if x % 2 == 0 else (1, 0)):
            w = R("a", wfrag(wbuf, x, ks), 4); c = R("a", cfrag(cbuf, ks), 4)
            d = rr(accf(y, x))
            cin = "0" if (first and n == 0) else d
            ms.append(mfma(d, c, w, cin) if vtype else mfma(d, w, c, cin))
    return ms

def spread2(g, ins, lo, hi):
    if not PAIR: return g.spread(ins, lo, hi)
    n = len(ins) // 2; k = lo
    for x in range(n):
        k = max(k, lo + x * (hi - lo) // n)
        while g.used(k): k += 1
        g.put(k, ins[2 * x]); g.put(k, ins[2 * x + 1])
PAIR = True
FAST0 = True
def kv_tile(t, vtype, dma, first=False):
    ms = []
    for y in range(8): ms += row_mfmas(kacc, y, t & 1, y & 1, vtype, first)
    g = Gaps(ms)
    for h in (1, 2):
        u = 2 * t + h
        k0 = (4 * h - 1) * 16 - 1
        g.put_s(k0 - 1, WAITV([("C", u & 3), ("W", (u + 2) & 3)], lgkm0=True))
        g.put_s(k0, I("s_barrier"))
    for y in range(8):
        ny = y + 1
        u = 2 * t + (ny >> 2)
        for ks in range(2): g.put(y * 16 + (0 if PAIR else ks), rd_c(ny & 1, u & 3, ny & 3, ks))
        g.put_s(y * 16 + 13, NEED(R("a", cfrag(ny & 1, 0), 8)))
    if first and FAST0:
        for x in range(1, 8, 2): g.put_s(2 * x - 1, NEED(R("a", wfrag(0, x, 0), 16 if x < 7 else 8)))
        g.put_s(14, WAITV([("W", 2)], lgkm0=True)); g.put_s(15, I("s_barrier"))
        spread2(g, rd_w_unit(1, 2, 0), 17, 42)
        spread2(g, rd_w_unit(1, 3, 1), 50, 106)
        a_, b_, c_ = [unit_w(3)], [unit_c(2), unit_w(4)], dma[0] + dma[1]
        link([i for u_ in a_ + b_ + c_ for i in u_])
        weave_units(g, a_, 1, 14); weave_units(g, b_, 17, 46); weave_units(g, c_, 49, 110 if len(c_) > 3 else 90)
        return g
    spread2(g, rd_w_unit((t + 1) & 1, (2 * t + 2) & 3, 0), 1, 42)
    spread2(g, rd_w_unit((t + 1) & 1, (2 * t + 3) & 3, 1), 50, 106)
    short = 2 * t < max(CU)
    weave_units(g, dma[0], 1 if short else 3, 36 if short and len(dma[0]) < 3 else 44)
    weave_units(g, dma[1], 49 if short else 51, 90 if short and len(dma[1]) < 3 else 108)
    return g
CU = (0, 0)
def kv_dma(t):
    out = []
    for u in (2 * t, 2 * t + 1):
        l = []
        if 0 < u <= CU[0]: l.append(unit_c(u + 2))
        if 0 < u <= CU[1]: l.append(unit_w(u + 4))
        if u >= CU[0]: l.append(unit_c(u + 3) if u + 3 < 32 else unit_x(u + 3 - 32))
        if u >= CU[1]:
            if u + 5 < 32: l.append(unit_w(u + 5))
            else: l += [unit_wq(v) for v in WQ_SCHED[u]]
        out.append(l)
    return out

def pack(ta, tb, tmp):
    ins = []
    ra, rb = ta[1], tb[1]
    if ta[0] == "a":
        ins += [I(f"v_accvgpr_read_b32 v{tmp+e}, a{ta[1]+e}") for e in range(4)]; ra = tmp
    if tb[0] == "a":
        ins += [I(f"v_accvgpr_read_b32 v{tmp+4+e}, a{tb[1]+e}") for e in range(4)]; rb = tmp + 4
    ins += L(f"""v_cvt_pk_bf16_f32 v{ra}, v{ra}, v{ra+1}
    v_cvt_pk_bf16_f32 v{ra+1}, v{ra+2}, v{ra+3}
    v_cvt_pk_bf16_f32 v{ra+2}, v{rb}, v{rb+1}
    v_cvt_pk_bf16_f32 v{ra+3}, v{rb+2}, v{rb+3}""")
    return ins, ra
NOST = False
STF = 'sc1'
QSF = 'sc1'
class Storer:
    def __init__(self, sbase, tag, va=None): self.sbase, self.cur, self.tag, self.va = sbase, None, tag, va or K.vST
    def st(self, reg, off):
        ins = []
        if NOST and self.tag == 'KVST': return ins
        if self.cur != off >> 12:
            self.cur = off >> 12
            ins.append(I(f"s_add_u32 s{K.sT}, s{self.sbase}, {off & ~0xfff}")); self.base = ins[-1]
        ins.append(I(f"buffer_store_dwordx4 {reg}, v{self.va}, s[{K.S_WS}:{K.S_WS+3}], s{K.sT} offen offset:{off & 0xfff} {QSF if self.tag == 'QST' else STF}", tag=self.tag))
        link([self.base, ins[-1]])
        return ins
def kv_pairs(vtype):
    if not vtype:
        return [((y, 2 * xp), (y, 2 * xp + 1), (y >> 1) * 262144 + (y & 1) * 8192 + xp * 1024) for y in range(8) for xp in range(4)]
    return [((2 * yp, x), (2 * yp + 1, x), yp * 262144 + x * 2048) for yp in range(4) for x in range(8)]
def qacc_map(vtype):
    if not vtype:
        free = [kacc(1, x) for x in range(8)] + [kacc(y, x) for y in range(2, 8) for x in (1, 3, 5, 7)]
    else:
        free = [kacc(y, x) for y in (1, 3, 5, 7) for x in range(8)]
    return lambda y, x: free[y * 8 + x]

VMR = 6
def seq_fit(g, ins, k, pace=0):
    fresh = False
    link(ins)
    lock = g.__dict__.setdefault("lock", set())
    n = -1
    while n + 1 < len(ins):
        n += 1
        i = ins[n]
        if isinstance(i, int):
            if k + i >= g.n: return g.n, ins[n + 1:]
            k += i; fresh = True
            continue
        need = max(i.slots())
        if i.kind == "label":
            (g.ve[k] if (g.ve[k] and g.ve[k][-1] is ins[n - 1]) else g.sc[k]).append(i)
            continue
        m = 0
        while n + m + 1 < len(ins) and not isinstance(ins[n + m + 1], int) and ins[n + m + 1].extra.get("scc") is i: m += 1
        if m:
            j = k if fresh else k + 1
            while True:
                slots = []; q = j
                while q < g.n and len(slots) < m + 1 and not any(writes_scc(x) for x in g.sc[q] + g.ve[q]) and q not in lock:
                    if not g.sc[q]: slots.append(q)
                    q += 1
                if len(slots) == m + 1: break
                if q >= g.n: return g.n, ins[n:]
                j = q + 1
            for x, q in enumerate(slots): g.put_s(q, ins[n + x])
            lock.update(range(slots[0], slots[-1]))
            k = slots[-1]; fresh = False; n += m
            continue
        w = writes_scc(i)
        if i.slots()[0] == 0:
            j = k if fresh else k + 1
            if j < g.n and not g.sc[j] and not (w and j in lock):
                g.put_s(j, i); k = j; fresh = False
                continue
        j = g.vm_slot(k, i, VMR) if VMR else k
        while j < g.n and (g.used(j) + need > 2 or (w and j in lock)): j += 1
        if j >= g.n: return g.n, ins[n:]
        g.put(j, i); k = j; fresh = False
        if pace and i.slots()[0]:
            k = min(j + pace, g.n - 1); fresh = k > j
    return k, []

def q_tile(tau, qacc, last=6):
    ms = []
    for y in range(4): ms += row_mfmas(qacc, y, tau & 1, y & 1, 0, tau == 0)
    g = Gaps(ms)
    if tau < last:
        v0 = 2 * tau + 2
        g.put_s(30, WAITV([("W", (v0 + 1) % 6), ("C", (tau + 1) & 3)], lgkm0=True)); g.put_s(31, I("s_barrier"))
        if tau + 1 < last:
            g.put_s(62, WAITV([("W", (v0 + 2) % 6)], lgkm0=True)); g.put_s(63, I("s_barrier"))
        else:
            g.put_s(62, WAITV([], lgkm0=True)); g.put_s(63, I("s_barrier"))
    for y in range(4):
        if y == 3 and tau == last: continue
        ny = y + 1
        for ks in range(2): g.put(y * 16 + (0 if PAIR else ks), rd_c(ny & 1, (tau + (ny >> 2)) & 3, ny & 3, ks))
        g.put_s(y * 16 + 13, NEED(R("a", cfrag(ny & 1, 0), 8)))
    if tau < last:
        spread2(g, rd_w_unit((tau + 1) & 1, (2 * tau + 2) % 6, 0), 1, 26)
        spread2(g, rd_w_unit((tau + 1) & 1, (2 * tau + 3) % 6, 1), 33, 58)
    u0 = [unit_wq(2 * tau + 7)] if 2 * tau + 7 < 14 else []
    u1 = [unit_wq(2 * tau + 8)] if 2 * tau + 8 < 14 else []
    if tau + 3 < last: u0.append(unit_x(tau + 3))
    if tau == 4: u0.append(unit_x(6))
    if tau == 5 and X6LOW:
        for ks in range(2): g.fit(40, I(f"v_subrev_u32 v{K.vCR + ks}, 0x10000, v{K.vCR + ks}"))
    if len(u0) == 2 and u1: weave_units(g, u0 + u1, 1, 60)
    else: weave_units(g, u0, 1, 28 if tau != 4 else 17); weave_units(g, u1, 34, 58)
    return g

def kv_to_q(vtype, n15, nst, flag_at, flag, stamp, weave, head6, dma6, extra=(), extra_at=8, mid6=()):
    g = kv_tile(15, vtype, kv_dma(15))
    st = Storer(K.sOOFF, "KVST")
    def store(n, reg, off):
        st.tag = "KV1" if n < 8 else ("KVM" if n < 24 and not vtype else "KVST")
        return st.st(reg, off)
    pend = []
    k = 0; carry = []
    prs = kv_pairs(vtype)
    done_at = lambda ta, tb: max(ta[0] * 16 + ta[1] * 2 + 1, tb[0] * 16 + tb[1] * 2 + 1) + 4
    lo = 8 if not vtype else 22
    for n, (ta, tb, off) in enumerate(prs[:n15]):
        ins, reg = pack(kacc(*ta), kacc(*tb), K.vT)
        k, left = seq_fit(g, ins + store(n, R("v", reg, 4), off), max(k, done_at(ta, tb), lo + (n * (118 - lo) // n15 if n15 >= 8 else n * 6))); assert not left
    for grp in (0, 1):
        if grp: k = 0
        for n, (ta, tb, off) in enumerate(prs):
            if n < n15 or (n >= 8) != grp: continue
            ins, reg = pack(kacc(*ta), kacc(*tb), K.vT)
            if n < 8:
                park = 4 * n if vtype else (8 * n if n < 4 else 8 * (n - 4) + 4)
                ins += [I(f"v_accvgpr_write_b32 a{park + e}, v{reg + e}") for e in range(4)]
                pend.append((n, R("a", park, 4), off))
            else:
                pend.append((n, R("v", reg, 4), off))
            if carry: carry += ins; continue
            k, carry = seq_fit(g, ins, max(k, done_at(ta, tb)))
        assert grp or not carry
    pend = pend[:extra_at - n15] + [(None, e, None) for e in extra] + pend[extra_at - n15:]
    def reset(e):
        st.cur = None; return e
    nxt = lambda: (lambda p: reset(p[1]) if p[0] is None else store(*p))(pend.pop(0))
    out = g.flat() + stamp()
    qacc = qacc_map(vtype)
    for tau in range(7):
        g = q_tile(tau, qacc)
        k = 3
        if flag_at == tau - 1: seq_fit(g, list(flag), 0)
        if carry:
            cs = set(map(id, carry))
            k, carry = seq_fit(g, carry, 3 if len(carry) <= 16 else 0); assert not carry
            for q in range(g.n):
                for i in g.ve[q]:
                    if id(i) in cs: assert not any(set(i.reads) & set(g.m[x].writes) for x in range(q + 1)), (q, i.text)
        if tau < 6:
            if tau in weave:
                k2, left = seq_fit(g, list(weave[tau]), 1 if tau != 4 else 17); assert not left, (tau, len(left))
            for n in range(nst[tau]):
                k, left = seq_fit(g, nxt(), max(k, 3 + (58 // nst[tau]) * n)); assert not left
            if flag_at == tau:
                g.sc[62][0].tag = g.sc[62][0].tag + ["KV1"]; assert all(p[0] is None or p[0] >= 8 for p in pend)
            out += g.flat() + stamp()
        else:
            qs = Storer(K.sQOFF, "QST", 13); rest = []
            g.put_s(39, WAITV(["KVM"] if mid6 else [], lgkm0=True)); g.put_s(40, I("s_barrier"))
            assert not mid6 or all(p[0] is None or p[0] >= 24 for p in pend)
            dma6 = list(mid6) + list(dma6)
            k, left = seq_fit(g, list(head6), 0); assert not left and k < 39, k
            k, left2 = seq_fit(g, list(dma6), 41); k = 0
            n6 = nst[6]
            for y in range(4):
                for xp in range(4):
                    ta, tb = qacc(y, 2 * xp), qacc(y, 2 * xp + 1)
                    if rest: ins = [I(f"v_pk_mul_f32 v[{r[1]+e}:{r[1]+e+1}], v[{r[1]+e}:{r[1]+e+1}], s[{K.sSC - 1}:{K.sSC}] op_sel:[0,1] op_sel_hi:[1,1]") for r in (ta, tb) for e in (0, 2)]
                    else: ins = [I(f"v_mul_f32 v{r[1]+e}, s{K.sSC}, v{r[1]+e}") for r in (ta, tb) for e in range(4)]
                    p, reg = pack(ta, tb, K.vT)
                    ins += p + [I(f"ds_write_b128 v14, v[{reg}:{reg+3}] offset:{y * 8192 + xp * 1024}")]
                    if n6: ins += nxt(); n6 -= 1
                    if rest: rest += ins; continue
                    k0 = max(k, y * 16 + 4 * xp + 3 + 4)
                    k, rest = seq_fit(g, ins, k0)
            from att import mix
            out += g.flat() + (mix(rest, left2, 0, len(rest) // 2) if any(i.slots()[0] for i in left2) else left2 + rest)
    return out, [(p[1], p[2]) for p in pend]

def addr_wd():
    out = ""
    for jn in range(4):
        out += f"""
        v_or_b32 v28, {(jn >> 1) << 2}, v25
        v_lshlrev_b32 v28, 1, v28
        v_xor_b32 v28, v28, v24
        v_lshrrev_b32 v29, 3, v28
        v_lshlrev_b32 v29, 8, v29
        v_and_b32 v28, 7, v28
        v_lshl_add_u32 v28, v28, 4, v29
        v_lshl_add_u32 v28, v25, 13, v28
        s_lshl_b32 s64, s{K.sWAVE}, 17
        s_add_u32 s64, s64, {4*jn*8192 - 1024*jn}
        v_add_u32 v{K.vWD+jn}, s64, v28
        """ if jn % 2 == 0 else f"""
        v_add_u32 v{K.vWD+jn}, {4*8192 - 1024}, v{K.vWD+jn-1}
        """
    return out
def addr_cd():
    out = ""
    for jn in range(2):
        out += f"""
        v_add_u32 v28, {4*jn}, v25
        v_and_b32 v29, 7, v0
        v_xor_b32 v28, v28, v29
        v_lshlrev_b32 v28, 4, v28
        v_lshrrev_b32 v29, 3, v0
        v_lshl_add_u32 v30, v29, 11, v28
        s_lshl_b32 s64, s66, 19
        s_lshl_b32 s67, s65, 20
        s_add_u32 s64, s64, s67
        s_add_u32 s64, s64, {8*jn*2048 - 1024*jn}
        v_add_u32 v{K.vCD+jn}, s64, v30
        v_add_u32 v{K.vCD+jn+2}, {16*2048 - 2048}, v{K.vCD+jn}
        """
    return out
def addr_rd():
    out = """
    v_lshrrev_b32 v26, 2, v24
    v_and_b32 v28, 1, v25
    v_lshl_or_b32 v28, v28, 2, v26
    v_lshl_add_u32 v29, v25, 3, v26
    v_lshlrev_b32 v29, 8, v29
    v_and_b32 v30, 3, v0
    v_lshl_add_u32 v29, v30, 3, v29
    """
    for b in range(4):
        out += f"""
        s_lshl_b32 s64, s65, 2
        s_add_u32 s64, s64, {b}
        v_xor_b32 v30, s64, v28
        v_lshl_add_u32 v{K.vWR+b}, v30, 5, v29
        """
    for ks in range(2):
        out += f"""
        v_add_u32 v28, {4*ks}, v25
        v_lshrrev_b32 v29, 1, v24
        v_xor_b32 v28, v28, v29
        v_lshlrev_b32 v28, 4, v28
        v_lshl_add_u32 v28, v24, 7, v28
        s_lshl_b32 s64, s66, 13
        s_add_u32 s64, s64, 65536
        v_add_u32 v{K.vCR+ks}, s64, v28
        """
    return out

def addr_q():
    out = ""
    for jn in range(2):
        out += f"""
        v_lshrrev_b32 v28, 4, v0
        v_add_u32 v28, {4*jn}, v28
        v_and_b32 v29, 7, v0
        v_xor_b32 v28, v28, v29
        v_lshlrev_b32 v28, 4, v28
        v_lshrrev_b32 v29, 3, v0
        v_mul_u32_u24 v29, 896, v29
        s_mul_i32 s64, s{K.sWAVE}, {32*896}
        s_add_u32 s64, s64, {8*jn*896 - 1024*jn}
        v_add3_u32 v{K.vXD+jn}, v29, v28, s64
        v_add_u32 v{K.vXD+jn+2}, {16*896 - 2048}, v{K.vXD+jn}
        """
    for b in range(4): out += f"v_add_u32 v{K.vWR2+b}, 0x20000, v{K.vWR+b}\n"
    return L(out)
```

```python
from common import *
S_WS, S_DBG = 8, 12
sWAVE, sH, sJ = 20, 41, 42
WS = f"s[{S_WS}:{S_WS+3}]"
OOB = 0x20000000

def wave_sum(regs, tmps):
    out = []
    for sh in ("row_ror:8", "row_ror:4", "row_ror:2", "row_ror:1"):
        for r in regs: out.append(I(f"v_add_f32 v{r}, v{r}, v{r} {sh} row_mask:0xf bank_mask:0xf"))
    for sw in ("v_permlane16_swap_b32", "v_permlane32_swap_b32"):
        for r, t in zip(regs, tmps): out.append(I(f"v_mov_b32 v{t}, v{r}"))
        for r, t in zip(regs, tmps): out.append(I(f"{sw} v{t}, v{r}"))
        for r, t in zip(regs, tmps): out.append(I(f"v_add_f32 v{r}, v{t}, v{r}"))
    return out

def sigmoid(r, t):
    return L(f"""v_mul_f32 v{t}, 0xbfb8aa3b, v{r}
    v_exp_f32 v{t}, v{t}
    v_add_f32 v{t}, 1.0, v{t}
    v_rcp_f32 v{r}, v{t}""")

RNT = 'nt'
def r_loads(zero=True):
    return L(f"""
    s_lshl_b32 s64, s2, 2
    s_add_u32 s64, s64, s{sWAVE}
    s_mul_i32 s72, s64, 1792
    """) + [I(f"v_mov_b32 v{40+r}, 0") for r in range(16 if zero else 0)] + L(f"""
    s_mov_b32 exec_hi, 0x00ffffff
    buffer_load_dwordx4 v[40:43], v7, s[56:59], s72 offen {RNT}
    buffer_load_dwordx4 v[44:47], v7, s[56:59], s72 offen offset:896 {RNT}
    buffer_load_dwordx4 v[48:51], v7, s[60:63], 0 offen
    buffer_load_dwordx4 v[52:55], v7, s[68:71], 0 offen
    s_mov_b64 exec, -1
    """)
def r_compute():
    out = [I(f"v_mov_b32 v{56+r}, 0") for r in range(4)]
    for w in range(4):
        for n, (xr, wr) in enumerate(((40, 48), (44, 48), (40, 52), (44, 52))):
            out.append(I(f"v_dot2c_f32_bf16 v{56+n}, v{xr+w}, v{wr+w}"))
    out += wave_sum([56, 57, 58, 59], [60, 61, 62, 63])
    out += L(f"""
    v_cmp_eq_u32 vcc, 0, v0
    v_cndmask_b32 v56, v57, v56, vcc
    v_cndmask_b32 v58, v59, v58, vcc
    s_lshl_b32 s64, s2, 3
    s_lshl_b32 s72, s{sWAVE}, 1
    s_add_u32 s64, s64, s72
    v_add_u32 v60, s64, v0
    v_ashrrev_i32 v61, 31, v56
    v_or_b32 v61, 0x80000000, v61
    v_xor_b32 v61, v61, v56
    v_and_b32 v61, 0xfffff800, v61
    v_sub_u32 v62, 2047, v60
    v_or_b32 v61, v61, v62
    v_max_u32 v61, 1, v61
    """) + sigmoid(58, 59) + L(f"""
    s_lshl_b32 s72, s{sWAVE}, 3
    s_add_u32 s72, s72, {LDS_R}
    v_lshl_add_u32 v60, v0, 2, s72
    s_mov_b64 exec, 3
    ds_write_b32 v60, v61
    ds_write_b32 v60, v56 offset:32
    ds_write_b32 v60, v58 offset:64
    s_mov_b64 exec, -1
    """)
    return out
def r_store(skip):
    return L(f"""
    s_cmp_lg_u32 s{sWAVE}, 0
    s_cbranch_scc1 {skip}
    v_lshlrev_b32 v28, 2, v0
    v_add_u32 v29, {LDS_R}, v28
    s_mov_b32 exec_hi, 0
    ds_read_b32 v29, v29 ; ignore
    s_lshl_b32 s72, s2, 7
    s_add_u32 s72, s72, {WS_R}
    s_waitcnt lgkmcnt(0) ; ignore
    buffer_store_dword v29, v28, {WS}, s72 offen sc1 ; nocount
    s_mov_b64 exec, -1
    s_cmp_ge_u32 s2, 13
    s_cbranch_scc1 {skip}
    v_mov_b32 v32, 0
    v_mov_b32 v33, 0
    v_mov_b32 v34, 0
    v_mov_b32 v35, 0
    s_lshl_b32 s72, s2, 10
    s_add_u32 s72, s72, {WS_FKV}
    buffer_store_dwordx4 v[32:35], v7, {WS}, s72 offen sc1 ; nocount
    {skip}:
    """)
def r_signal(skip):
    return L(f"""
    s_cmp_lg_u32 s{sWAVE}, 0
    s_cbranch_scc1 {skip}
    v_mov_b32 v28, 1
    s_mov_b64 exec, 1
    buffer_atomic_add v28, off, s[{S_DBG}:{S_DBG+3}], 0 sc1 ; nocount
    s_mov_b64 exec, -1
    {skip}:
    """)

def wo_dma():
    out = L(f"""
    v_lshrrev_b32 v28, 5, v0
    v_mul_u32_u24 v28, 896, v28
    v_and_b32 v29, 31, v0
    v_lshl_add_u32 v28, v29, 4, v28
    s_lshr_b32 s64, s{sJ}, 1
    s_lshl_b32 s64, s64, 5
    s_lshl_b32 s72, s{sH}, 8
    s_add_u32 s64, s64, s72
    s_lshl_b32 s72, s{sWAVE}, 3
    s_add_u32 s64, s64, s72
    s_mul_i32 s64, s64, 896
    s_and_b32 s72, s{sJ}, 1
    s_mul_i32 s72, s72, 448
    s_add_u32 s64, s64, s72
    s_lshl_b32 s72, s{sWAVE}, 12
    s_add_u32 m0, s72, 131072
    s_mov_b32 exec_lo, 0x0fffffff
    s_mov_b32 exec_hi, 0x0fffffff
    """)
    for j in range(4):
        out.append(I(f"buffer_load_dwordx4 v28, s[60:63], s64 offen offset:{1024*j} lds", tag="WO"))
        if j < 3: out.append(I(f"s_add_u32 s64, s64, {2*896 - 1024}"))
    out.append(I("s_mov_b64 exec, -1"))
    return out
def wo_setup():
    out = L(f"""
    v_and_b32 v28, 15, v0
    v_lshrrev_b32 v29, 4, v0
    v_lshrrev_b32 v30, 2, v28
    v_lshl_add_u32 v29, v29, 2, v30
    v_lshlrev_b32 v29, 9, v29
    v_and_b32 v28, 3, v28
    v_lshl_add_u32 v29, v28, 4, v29
    s_lshr_b32 s64, s{sWAVE}, 1
    s_lshl_b32 s64, s64, 6
    s_and_b32 s72, s{sWAVE}, 1
    s_lshl_b32 s72, s72, 3
    s_add_u32 s64, s64, s72
    s_add_u32 s64, s64, 131072
    v_add_u32 v31, s64, v29
    s_lshl_b32 s73, s{sH}, 18
    s_lshr_b32 s64, s{sJ}, 1
    s_lshl_b32 s64, s64, 10
    s_add_u32 s73, s73, s64
    s_add_u32 s73, s73, {WS_WO}
    s_and_b32 s74, s{sJ}, 1
    s_mul_i32 s74, s74, 14
    s_add_u32 s74, s74, s{sWAVE}
    """)
    for n in range(4):
        out += L(f"""
        s_add_u32 s64, s74, {4*n}
        s_lshr_b32 s72, s64, 2
        s_lshl_b32 s72, s72, 15
        s_and_b32 s64, s64, 3
        s_lshl_b32 s64, s64, 13
        s_add_u32 s72, s73, s72
        s_add_u32 s{76+n}, s72, s64
        """)
    out += L(f"""
    s_cmp_lt_u32 s{sWAVE}, 2
    s_cselect_b64 s[74:75], -1, 0
    """)
    return out
def wo_reads():
    return [I(f"ds_read_b64_tr_b16 a[{192+4*n+2*j}:{193+4*n+2*j}], v31 offset:{n*128 + j*8192}") for n in range(4) for j in range(2)]
def wo_stores():
    st = [[I(f"buffer_store_dwordx4 a[{176+4*n}:{179+4*n}], v7, {WS}, s{76+n} offen sc1" + (" ; nocount" if n == 3 else ""))] for n in range(4)]
    st[3] = [I("s_mov_b64 exec, s[74:75]")] + st[3] + [I("s_mov_b64 exec, -1")]
    return st

def set_flag(addr_sreg, skip, vt):
    return L(f"""
    s_cmp_lg_u32 s{sWAVE}, 0
    s_cbranch_scc1 {skip}
    v_mov_b32 v{vt}, 1
    s_mov_b64 exec, 1
    buffer_store_dword v{vt}, off, {WS}, s{addr_sreg} sc1 ; nocount
    s_mov_b64 exec, -1
    {skip}:
    """)
def poll_flags(addr_sreg, nl, label, vt, va, sc):
    return L(f"""
    s_mov_b32 s{sc}, {SPIN_MAX}
    s_mov_b32 exec_lo, {hex(((1 << nl) - 1) & 0xffffffff)}
    s_mov_b32 exec_hi, {hex(((1 << nl) - 1) >> 32)}
    {label}:
    buffer_load_dword v{vt}, v{va}, {WS}, s{addr_sreg} offen sc1
    s_sub_u32 s{sc}, s{sc}, 1
    s_cbranch_scc1 {label}_x
    s_waitcnt vmcnt(0)
    v_cmp_ne_u32 vcc, 1, v{vt}
    s_cbranch_vccz {label}_x
    s_sleep 2
    s_branch {label}
    {label}_x:
    s_waitcnt vmcnt(0)
    s_mov_b64 exec, -1
    """)
def poll_count(label, vt, sc, n):
    return L(f"""
    s_mov_b32 s{sc}, {SPIN_MAX}
    {label}:
    buffer_load_dword v{vt}, off, s[{S_DBG}:{S_DBG+3}], 0 sc1
    s_sub_u32 s{sc}, s{sc}, 1
    s_cbranch_scc1 {label}_x
    s_waitcnt vmcnt(0)
    v_cmp_gt_u32 vcc, {n}, v{vt}
    s_cbranch_vccnz {label}
    {label}_x:
    s_waitcnt vmcnt(0)
    """)

def h_keys(vl16):
    return [I(f"buffer_load_dwordx4 v[{64+4*n}:{67+4*n}], v{vl16}, {WS}, s{90 + n // 4} offen offset:{(n & 3) * 1024} sc1") for n in range(8)]
def h_keymin():
    out = L("v_min3_u32 v14, v64, v65, v66")
    for n in range(3, 31, 2): out += L(f"v_min3_u32 v14, v14, v{64+n}, v{65+n}")
    return out + L("v_min_u32 v14, v14, v95\nv_cmp_eq_u32 vcc, 0, v14")
def h_stub(vl16):
    return (L(f"L_hs:\ns_mov_b32 s64, {SPIN_MAX}\nL_hs_l:") + h_keys(vl16) + L("s_waitcnt vmcnt(0)\ns_sub_u32 s64, s64, 1\ns_cbranch_scc1 L_hr") +
            h_keymin() + L("s_cbranch_vccnz L_hs_l\ns_branch L_hr"))
def h_block(vl16, lds=65536, after=()):
    out = L(f"""
    s_load_dwordx4 s[64:67], s[0:1], {A_WG}
    s_load_dwordx2 s[72:73], s[0:1], {A_WD}
    s_load_dwordx2 s[74:75], s[0:1], {A_X}
    s_and_b32 s76, s{sH}, 7
    s_mul_i32 s76, s76, 14
    s_lshr_b32 s77, s{sH}, 3
    s_mul_i32 s77, s77, 7
    s_add_u32 s76, s76, s77
    s_add_u32 s76, s76, s{sJ}
    s_mov_b32 s90, {WS_KEY}
    s_mov_b32 s91, {WS_KEY + 4096}
    """)
    out += h_keys(vl16)
    out += L(f"""
    {srd(52, 64, 448*3584)}
    {srd(56, 66, 448*3584)}
    {srd(60, 72, 1792*896)}
    {srd(68, 74, 2048*896)}
    v_lshrrev_b32 v10, 1, v0
    v_mul_u32_u24 v10, 3584, v10
    v_and_b32 v11, 1, v0
    v_lshl_add_u32 v10, v11, 4, v10
    s_lshl_b32 s77, s76, 5
    s_and_b32 s78, s{sWAVE}, 1
    s_mul_i32 s79, s78, {7 * 32 * 3584}
    s_add_u32 s77, s77, s79
    s_mul_i32 s79, s{sWAVE}, 7168
    s_add_u32 s79, s79, {lds}
    s_cmp_lt_u32 s{sWAVE}, 2
    s_cselect_b32 s52, s52, s56
    s_cselect_b32 s53, s53, s57
    """)
    for n in range(7):
        out += L(f"""s_add_u32 m0, s79, {n * 1024}
        s_nop 0""") + [I(f"buffer_load_dwordx4 v10, s[52:55], s77 offen lds", tag="HW")] + L(f"s_add_u32 s77, s77, {32 * 3584}")
    out += L(f"""
    v_lshlrev_b32 v11, 2, v0
    s_mul_i32 s77, s76, {16 * 896}
    s_mul_i32 s78, s{sWAVE}, 224
    s_add_u32 s77, s77, s78
    s_mov_b32 exec_hi, 0x00ffffff
    """)
    for f in range(16):
        if f and f % 4 == 0: out.append(I(f"s_add_u32 s77, s77, {4 * 896}"))
        out.append(I(f"buffer_load_dword v{100+f}, v11, s[60:63], s77 offen offset:{(f & 3) * 896}"))
    out.append(I("s_mov_b64 exec, -1"))
    out += h_keymin() + L("s_cbranch_vccnz L_hs\nL_hr:")
    out += L("v_max_u32 v12, v64, v65\nv_min_u32 v13, v64, v65")
    for n in range(2, 32):
        out += L(f"v_med3_u32 v13, v12, v13, v{64+n}\nv_max_u32 v12, v12, v{64+n}")
    def merge():
        return L("""v_min_u32 v16, v12, v14
        v_max_u32 v12, v12, v14
        v_max3_u32 v13, v13, v15, v16""")
    for sh in ("row_ror:8", "row_ror:4", "row_ror:2", "row_ror:1"):
        out += L(f"""v_mov_b32 v14, v12 {sh} row_mask:0xf bank_mask:0xf
        v_mov_b32 v15, v13 {sh} row_mask:0xf bank_mask:0xf""") + merge()
    for sw in ("v_permlane16_swap_b32", "v_permlane32_swap_b32"):
        out += L(f"""v_mov_b32 v14, v12
        v_mov_b32 v15, v13
        {sw} v14, v12
        {sw} v15, v13""") + merge()
    out += L(f"""
    v_and_b32 v12, 0x7ff, v12
    v_and_b32 v13, 0x7ff, v13
    v_sub_u32 v12, 2047, v12
    v_sub_u32 v13, 2047, v13
    v_and_b32 v14, 1, v0
    v_cmp_eq_u32 vcc, 0, v14
    v_cndmask_b32 v14, v13, v12, vcc
    v_lshrrev_b32 v17, 3, v14
    v_lshlrev_b32 v17, 4, v17
    v_and_b32 v15, 7, v14
    v_add_lshl_u32 v17, v17, v15, 2
    s_mov_b32 s77, {WS_RG}
    buffer_load_dword v18, v17, {WS}, s77 offen sc1
    v_mul_u32_u24 v15, 896, v14
    v_lshrrev_b32 v16, 4, v0
    v_lshl_add_u32 v15, v16, 4, v15
    """)
    for ks in range(14):
        out.append(I(f"buffer_load_dwordx4 v[{128+4*ks}:{131+4*ks}], v15, s[68:71], 0 offen offset:{64*ks}"))
    out += L(f"""
    v_and_b32 v19, 15, v0
    v_lshrrev_b32 v19, 2, v19
    v_lshl_add_u32 v19, v16, 3, v19
    v_lshlrev_b32 v19, 5, v19
    v_and_b32 v20, 3, v0
    v_lshl_add_u32 v19, v20, 3, v19
    v_add_u32 v19, {lds}, v19
    """) + [WAITV(["HW", "KVST"]), I("s_barrier")] + list(after)
    for mt in range(2):
        for ks in range(14):
            for j in range(2):
                r = mt * 56 + ks * 4 + 2 * j
                out.append(I(f"ds_read_b64_tr_b16 a[{r}:{r+1}], v19 offset:{mt * 14336 + ks * 1024 + j * 128}"))
    for mt in range(2):
        for ks in range(14):
            d = R("v", 24 + 4 * mt, 4)
            out.append(mfma(d, R("v", 128 + 4 * ks, 4), R("a", mt * 56 + ks * 4, 4), d if ks else "0"))
    out += L("""
    v_cvt_pk_bf16_f32 v24, v24, v25
    v_cvt_pk_bf16_f32 v28, v28, v29
    v_lshlrev_b32 v20, 16, v24
    v_and_b32 v21, 0xffff0000, v24
    v_mov_b32 v22, v20
    v_mov_b32 v23, v21
    """) + sigmoid(22, 26) + sigmoid(23, 27) + L("""
    v_mul_f32 v20, v20, v22
    v_mul_f32 v21, v21, v23
    v_cvt_pk_bf16_f32 v24, v20, v21
    v_lshlrev_b32 v20, 16, v24
    v_and_b32 v21, 0xffff0000, v24
    v_lshlrev_b32 v22, 16, v28
    v_and_b32 v23, 0xffff0000, v28
    v_mul_f32 v20, v20, v22
    v_mul_f32 v21, v21, v23
    v_cvt_pk_bf16_f32 v24, v20, v21
    v_lshlrev_b32 v20, 16, v24
    v_and_b32 v21, 0xffff0000, v24
    """)
    out += [I(f"v_mov_b32 v{32+n}, 0") for n in range(4)]
    for f in range(16):
        out += L(f"""v_readlane_b32 s80, v20, {f}
        v_readlane_b32 s81, v21, {f}
        v_lshlrev_b32 v22, 16, v{100+f}
        v_and_b32 v23, 0xffff0000, v{100+f}
        v_fmac_f32 v32, s80, v22
        v_fmac_f32 v33, s80, v23
        v_fmac_f32 v34, s81, v22
        v_fmac_f32 v35, s81, v23""")
    out += L(f"""
    s_mul_i32 s77, s{sWAVE}, 448
    s_mul_i32 s78, s76, 3584
    s_add_u32 s77, s77, s78
    s_add_u32 s77, s77, {WS_Y}
    v_lshlrev_b32 v22, 3, v0
    s_mov_b32 exec_hi, 0x00ffffff
    buffer_store_dwordx2 v[32:33], v22, {WS}, s77 offen sc1
    buffer_store_dwordx2 v[34:35], v22, {WS}, s77 offen offset:1792 sc1
    s_mov_b64 exec, -1
    v_cvt_pk_bf16_f32 v18, v18, v18
    v_and_b32 v18, 0xffff0000, v18
    """) + sigmoid(18, 22) + L(f"""
    v_cvt_pk_bf16_f32 v18, v18, v18
    v_and_b32 v18, 0xffff0000, v18
    s_mov_b32 s77, {WS_SEL}
    s_or_b32 s78, s76, s{sWAVE}
    s_cmp_eq_u32 s78, 0
    s_cselect_b64 exec, 3, 0
    buffer_store_dword v14, v11, {WS}, s77 offen sc1 ; nocount
    buffer_store_dword v18, v11, {WS}, s77 offen offset:8 sc1 ; nocount
    s_mov_b64 exec, -1
    s_lshl_b32 s39, s76, 2
    s_add_u32 s39, s39, {WS_FH}
    """)
    return out

FH0_LOAD = f"buffer_load_dword v24, off, {WS}, s79 sc1"
FOP_LOAD = f"buffer_load_dword v9, v14, {WS}, s46 offen sc1"
EPAR, NE = 0, 7
def sel_a(vl16):
    return L(f"""
    s_mov_b32 s79, {WS_FL}
    {FH0_LOAD}
    v_lshrrev_b32 v0, 4, v{vl16}
    v_and_b32 v14, 15, v0
    v_lshlrev_b32 v14, 2, v14
    v_lshrrev_b32 v11, 4, v0
    {srd(52, 96, 2048*896)}
    {f's_and_b32 s74, s{sH}, 1' if EPAR < 2 else f's_lshr_b32 s74, s{sH}, 3'}
    s_xor_b32 s74, s74, {EPAR & 1}
    s_mul_i32 s67, s74, {14 - 2 * NE}
    s_mul_i32 s74, s74, {NE}
    s_add_u32 s74, s74, s{sWAVE}
    s_lshl_b32 s75, s74, 6
    s_add_u32 s76, s75, 256
    s_add_u32 s67, s67, {NE - 5}
    s_sub_u32 s67, s67, s{sWAVE}
    s_and_b32 s67, s67, {OOB}
    s_or_b32 s76, s76, s67
    v_or_b32 v27, s67, v{vl16}
    v_add_u32 v27, 4096, v27
    """)
def sel_b(tag):
    return L(f"""
    v_cmp_gt_u32 vcc, 4, v24
    s_mov_b32 s65, {WS_SEL}
    s_cbranch_vccnz L_fhs{tag}
    L_fhr{tag}:
    buffer_load_dword v25, v14, {WS}, s65 offen sc1
    """)
def sel_c():
    return L("""
    v_readlane_b32 s84, v25, 0
    v_readlane_b32 s85, v25, 1
    v_mov_b32 v24, 0x3f80
    v_mov_b32 v25, 0x3f800000
    """)
RS = [dict(row=10, off=12, g=15, x=16, b=32, acc=48), dict(row=29, off=28, g=26, x=96, b=80, acc=64)]
OSF = ''
def red_a(vl16):
    out = L(f"""
    s_lshl_b32 s64, s{sJ}, 1
    s_lshr_b32 s65, s{sH}, 3
    s_add_u32 s46, s64, s65
    s_mul_i32 s46, s46, {FSTR}
    s_and_b32 s65, s{sH}, 7
    s_lshl_b32 s65, s65, 7
    s_add_u32 s46, s46, s65
    s_add_u32 s46, s46, {WS_FOP}
    v_and_b32 v14, 31, v0
    v_lshlrev_b32 v14, 2, v14
    {FOP_LOAD}
    s_sub_u32 s64, 15, s64
    {f's_lshr_b32 s72, s{sH}, 1' if EPAR < 2 else f's_and_b32 s72, s{sH}, 7'}
    s_mul_i32 s77, s{sJ}, {16 * OP_HEAD}
    s_mul_i32 s78, s72, 14336
    s_add_u32 s77, s77, s78
    s_lshl_b32 s78, s74, 10
    s_add_u32 s77, s77, s78
    s_add_u32 s77, s77, {WS_OP}
    s_sub_u32 s78, s64, 1
    s_mul_i32 s78, s78, {16 * OP_HEAD}
    s_add_u32 s78, s78, s77
    s_lshl_b32 s73, s72, 4
    s_lshl_b32 s65, s{sJ}, 7
    s_add_u32 s73, s73, s65
    s_lshl_b32 s64, s64, 7
    v_and_b32 v10, 15, v0
    v_add_u32 v10, s73, v10
    v_add_u32 v29, s64, v10
    s_mov_b32 s64, {WS_RG + 64}
    """)
    for r in RS:
        out += L(f"""
        v_mul_u32_u24 v{r['off']}, 896, v{r['row']}
        v_lshl_add_u32 v{r['off']}, v11, 4, v{r['off']}
        v_lshrrev_b32 v13, 4, v{r['row']}
        v_lshlrev_b32 v13, 5, v13
        v_and_b32 v104, 15, v{r['row']}
        v_add_lshl_u32 v13, v13, v104, 2
        buffer_load_dword v{r['g']}, v13, {WS}, s64 offen sc1
        buffer_load_dwordx4 v[{r['x']}:{r['x']+3}], v{r['off']}, s[56:59], s75 offen
        buffer_load_dwordx4 v[{r['x']+4}:{r['x']+7}], v{r['off']}, s[56:59], s76 offen
        """)
    return out + [I(f"v_mov_b32 v{48+n}, 0") for n in range(32)]
def red_b(t):
    r = RS[t]
    return [i for w in range(8) for i in L(f"v_lshlrev_b32 v{r['b']+2*w}, 16, v{r['x']+w}\nv_and_b32 v{r['b']+1+2*w}, 0xffff0000, v{r['x']+w}")] + L(f"""
    v_sub_f32 v13, 1.0, v{r['g']}
    v_cmp_eq_u32 s[80:81], s84, v{r['row']}
    v_cmp_eq_u32 s[82:83], s85, v{r['row']}
    s_or_b64 vcc, s[80:81], s[82:83]
    s_cbranch_vccnz L_moe{t}
    L_moe_ret{t}:
    """) + [I(f"v_mul_f32 v{r['b']+e}, v13, v{r['b']+e}") for e in range(16)]
def red_main(vl16, st=lambda: [], lag=6, early=True, sent=True):
    out = L(f"""
    v_cmp_eq_u32 vcc, 1, v9
    s_mov_b32 s91, {SPIN_MAX}
    s_mov_b32 s69, 0
    s_mov_b32 s70, vcc_lo
    s_mov_b32 s68, vcc_lo
    """)
    ring = [16, 17, 18, 19, 48, 49, 50, 51]; assert lag < 8
    def acc(k):
        d = lambda t: [i for w in range(8) for i in L(f"v_dot2c_f32_bf16 v{RS[t]['acc']+2*w}, v{128+8*(k%16)+w}, v24\nv_dot2c_f32_bf16 v{RS[t]['acc']+1+2*w}, v{128+8*(k%16)+w}, v25")]
        if sent:
            r = 128 + 8 * (k % 16); d0 = d
            tst = f"v_max3_u32 v13, v{r}, v{r+1}, v{r+2}\nv_max3_u32 v104, v{r+3}, v{r+4}, v{r+5}\nv_max3_u32 v13, v13, v{r+6}, v{r+7}\nv_max_u32 v13, v13, v104\nv_cmp_eq_u32 vcc, -1, v13"
            d = lambda t: d0(0) if t == 0 else L(tst + f"\ns_cbranch_vccnz L_rz{k}\nL_rw{k}:") + d0(1)
            far.extend(L(f"""L_rz{k}:
            buffer_load_dwordx4 v[{r}:{r+3}], v{vl16}, {WS}, s{ring[k % 8]} offen sc1
            buffer_load_dwordx4 v[{r+4}:{r+7}], v27, {WS}, s{ring[k % 8]} offen sc1
            s_waitcnt vmcnt(0)
            {tst}
            s_sub_u32 s91, s91, 1
            s_cbranch_scc1 L_rw{k}
            s_cbranch_vccnz L_rz{k}
            s_branch L_rw{k}"""))
        f = 0 if k < 16 else 1
        return ([NEED(R("v", 128 + 8 * (k % 16), 8))] + L(f"s_bitcmp{1 - f}_b32 s69, {k}\ns_cbranch_scc1 L_rx{k}") + d(f) + L(f"L_ry{k}:"),
                L(f"L_rx{k}:") + d(1 - f) + L(f"s_branch L_ry{k}"))
    def fin(t, note=""):
        r = RS[t]; o = []
        for u in range(2):
            o += [I(f"v_fmac_f32 v{r['b']+8*u+e}, v{r['g']}, v{r['acc']+8*u+e}") for e in range(8)]
            o += [I(f"v_cvt_pk_bf16_f32 v{r['x']+4*u+w}, v{r['b']+8*u+2*w}, v{r['b']+1+8*u+2*w}") for w in range(4)]
            o.append(I(f"buffer_store_dwordx4 v[{r['x']+4*u}:{r['x']+3+4*u}], v{r['off']}, s[52:55], s{75+u} offen {OSF}{note}"))
        return o
    far = []
    for k in range(32 + lag):
        if k < 32:
            out += L(f"""s_cmp_lg_u32 s70, 0
            s_cbranch_scc1 L_rk{k}
            s_call_b64 s[36:37], L_rpoll
            L_rk{k}:
            s_ff1_i32_b32 s71, s70
            s_bitset0_b32 s70, s71
            s_cmp_ge_u32 s71, 16
            s_cselect_b32 s72, s78, s77
            s_cselect_b32 s73, {hex(1 << k)}, 0
            s_mul_i32 s71, s71, {OP_HEAD}
            s_add_u32 s{ring[k % 8]}, s71, s72
            buffer_load_dwordx4 v[{128+8*(k%16)}:{131+8*(k%16)}], v{vl16}, {WS}, s{ring[k % 8]} offen sc1
            s_or_b32 s69, s69, s73
            buffer_load_dwordx4 v[{132+8*(k%16)}:{135+8*(k%16)}], v27, {WS}, s{ring[k % 8]} offen sc1""")
        if k in (1, 2): out += red_b(k - 1)
        if k == 31: out += st()
        if k >= lag:
            a_, f_ = acc(k - lag); out += a_; far += f_
        if early and k == 27:
            out += L(f"""s_and_b32 s71, s69, {hex((1 << (k - lag + 1)) - 1)}
            s_bcnt1_i32_b32 s71, s71
            s_cmp_eq_u32 s71, {k - lag + 1 - 16}
            s_cselect_b32 s66, 1, 0
            s_cbranch_scc0 L_rne""") + fin(0, " ; nocount") + L("L_rne:")
    out += st() + L("s_nop 1") + fin(1)
    if early: out += L("s_cmp_eq_u32 s66, 1\ns_cbranch_scc1 L_rdone")
    out += fin(0) + L("L_rdone:")
    return out, far
def red_poll():
    return L(f"""
    L_rpoll0:
    s_sleep 1
    L_rpoll:
    {FOP_LOAD}
    s_waitcnt vmcnt(0)
    v_cmp_eq_u32 vcc, 1, v9
    s_sub_u32 s91, s91, 1
    s_cselect_b32 s70, -1, 0
    s_or_b32 s70, s70, vcc_lo
    s_andn2_b32 s70, s70, s68
    s_cbranch_scc0 L_rpoll0
    s_or_b32 s68, s68, s70
    s_setpc_b64 s[36:37]
    """)
def red_moe():
    out = []
    for t in range(2):
        out += L(f"L_moe{t}:\ns_call_b64 s[36:37], L_moe") + [I(f"v_add_f32 v{RS[t]['b']+e}, v{108+e}, v{RS[t]['b']+e}") for e in range(16)] + L(f"s_mov_b64 exec, -1\ns_branch L_moe_ret{t}")
    out += L(f"""
    L_moe:
    v_min_u32 v104, 27, v0
    v_lshlrev_b32 v104, 2, v104
    s_mov_b32 s64, {WS_FH + 512}
    """) + poll_flags(64, 64, "L_pfy", 105, 104, 65) + L(f"""
    s_or_b64 exec, s[80:81], s[82:83]
    v_mov_b32 v104, 1792
    v_cndmask_b32 v104, v104, 0, s[80:81]
    v_lshl_add_u32 v104, v11, 5, v104
    s_lshl_b32 s88, s75, 1
    s_add_u32 s88, s88, {WS_YF}
    buffer_load_dwordx4 v[108:111], v104, {WS}, s88 offen sc1
    buffer_load_dwordx4 v[112:115], v104, {WS}, s88 offen offset:16 sc1
    buffer_load_dwordx4 v[116:119], v104, {WS}, s88 offen offset:512 sc1
    buffer_load_dwordx4 v[120:123], v104, {WS}, s88 offen offset:528 sc1
    s_waitcnt vmcnt(0)
    s_setpc_b64 s[36:37]
    """)
    return out
def y_reduce():
    out = L(f"""
    L_yred:
    s_lshl_b32 s89, s{sH}, 1
    s_add_u32 s89, s89, s{sWAVE}
    s_cmp_ge_u32 s89, 28
    s_cbranch_scc1 L_yred_ret
    v_lshrrev_b32 v20, 4, v7
    v_lshrrev_b32 v21, 3, v20
    v_mul_u32_u24 v21, {FSTR}, v21
    v_and_b32 v22, 7, v20
    v_lshl_add_u32 v21, v22, 7, v21
    s_mov_b32 s64, {WS_FL}
    s_mov_b32 s88, {WS_FL + 8 * FSTR}
    s_mov_b32 s91, {SPIN_MAX}
    L_yp:
    buffer_load_dword v22, v21, {WS}, s64 offen sc1
    buffer_load_dword v23, v21, {WS}, s88 offen sc1
    s_waitcnt vmcnt(0)
    v_min_u32 v22, v22, v23
    v_cmp_gt_u32 vcc, 4, v22
    s_sub_u32 s91, s91, 1
    s_cbranch_scc1 L_ypx
    s_cbranch_vccnz L_yp
    L_ypx:
    s_cmp_lt_u32 s89, 14
    s_cselect_b32 s64, 8, 12
    s_add_u32 s64, s64, {WS_SEL}
    buffer_load_dword v23, off, {WS}, s64 sc1
    v_lshrrev_b32 v21, 3, v20
    v_mul_u32_u24 v21, 3584, v21
    v_and_b32 v22, 7, v20
    v_lshl_add_u32 v21, v22, 4, v21
    s_lshl_b32 s88, s89, 7
    s_add_u32 s90, s88, {WS_YF}
    s_add_u32 s88, s88, {WS_Y}
    """)
    for n in range(14):
        out += L(f"buffer_load_dwordx4 v[{64+4*n}:{67+4*n}], v21, {WS}, s88 offen sc1\ns_add_u32 s88, s88, {8 * 3584}")
    out += L("s_branch L_yred_ret\nL_yred2:\ns_cmp_ge_u32 s89, 28\ns_cbranch_scc1 L_yred2_ret\nv_mov_b32 v22, 1\ns_waitcnt vmcnt(0)")
    acc = [64 + e for e in range(4)]
    for n in range(1, 14): out += [I(f"v_add_f32 v{a}, v{a + 4 * n}, v{a}") for a in acc]
    out += [I(f"v_add_f32 v{a}, v{a}, v{a} row_ror:8 row_mask:0xf bank_mask:0xf") for a in acc]
    for sw in ("v_permlane16_swap_b32", "v_permlane32_swap_b32"):
        out += [I(f"v_mov_b32 v{a + 4}, v{a}") for a in acc]
        out += [I(f"{sw} v{a + 4}, v{a}") for a in acc]
        out += [I(f"v_add_f32 v{a}, v{a + 4}, v{a}") for a in acc]
    for rep in range(2):
        for p in (64, 66):
            out += L(f"v_cvt_pk_bf16_f32 v21, v{p}, v{p+1}\nv_lshlrev_b32 v{p}, 16, v21\nv_and_b32 v{p+1}, 0xffff0000, v21")
        if rep == 0: out += [I(f"v_mul_f32 v{a}, v23, v{a}") for a in acc]
    out += L(f"""
    s_mov_b64 exec, 0xff
    buffer_store_dwordx4 v[64:67], v7, {WS}, s90 offen sc1
    s_lshl_b32 s89, s89, 2
    s_add_u32 s89, s89, {WS_FH + 512}
    s_mov_b64 exec, 1
    s_waitcnt vmcnt(0)
    buffer_store_dword v22, off, {WS}, s89 sc1
    s_mov_b64 exec, -1
    s_branch L_yred2_ret
    """)
    return out


JUNK = 240
NTT = "nt"
def touch(vaddr, srdreg, soff, imm=0, nt=True):
    return I(f"buffer_load_dword a{JUNK}, v{vaddr}, s[{srdreg}:{srdreg+3}], {soff} offen offset:{imm} {NTT if nt else ('sc1' if srdreg == S_WS else '')}", tag="TOUCH")
def code_addr(v, t):
    return L(f"""
    v_lshl_add_u32 v{t}, v0, 7, s95
    v_and_b32 v{v}, 48, v0
    v_lshl_add_u32 v{v}, v{v}, 24, v{t}
    """)
def code_touch():
    return L(f"""
    s_getpc_b64 s[76:77]
    L_pc0:
    s_and_b32 s77, s77, 0xffff
    s_mov_b32 s78, L_code_end-L_pc0
    s_mov_b32 s79, 0x20000
    s_lshr_b32 s64, s2, 3
    s_lshl_b32 s64, s64, 2
    s_add_u32 s64, s64, s{sWAVE}
    s_lshl_b32 s95, s64, 11
    """) + code_addr(28, 29) + [touch(28, 76, 0, nt=False)]
def kv_touch_setup(sKV):
    return L(f"""
    s_lshr_b32 s64, s{sH}, 3
    s_lshl_b32 s64, s64, 1
    s_add_u32 s64, s64, s{sKV}
    s_lshl_b32 s64, s64, 2
    s_add_u32 s64, s64, s{sWAVE}
    s_lshl_b32 s64, s64, 15
    v_lshrrev_b32 v28, 1, v0
    v_and_b32 v29, 1, v0
    v_lshlrev_b32 v29, 7, v29
    v_lshl_add_u32 v28, v28, 11, v29
    v_add_u32 v24, s64, v28
    v_and_b32 v28, 32, v0
    v_lshl_add_u32 v24, v28, 24, v24
    s_lshr_b32 s64, s{sJ}, 1
    s_lshl_b32 s64, s64, 2
    s_add_u32 s64, s64, s{sWAVE}
    s_lshl_b32 s64, s64, 15
    v_lshrrev_b32 v28, 2, v0
    v_and_b32 v29, 3, v0
    v_lshlrev_b32 v29, 7, v29
    v_lshl_add_u32 v28, v28, 13, v29
    v_add_u32 v25, s64, v28
    v_and_b32 v28, 48, v0
    v_lshl_add_u32 v25, v28, 24, v25
    """)
def kv_touch(sc, sw):
    return [touch(24, sc, 0), touch(25, sw, 0), I("v_add_u32 v24, 256, v24"), I(f"v_add_u32 v25, {128 * 8192}, v25")]
def q_touch(swq, sx, px):
    pre = L(f"""
    s_lshl_b32 s64, s{sJ}, 2
    s_add_u32 s64, s64, s{sWAVE}
    s_mul_i32 s64, s64, {7 * 8192}
    v_lshrrev_b32 v28, 2, v0
    v_and_b32 v29, 3, v0
    v_lshlrev_b32 v29, 7, v29
    v_lshl_add_u32 v28, v28, 13, v29
    v_add_u32 v16, s64, v28
    v_mov_b32 v29, 0x20000000
    v_cmp_gt_u32 vcc, 28, v0
    s_lshl_b32 s64, s{sJ}, 1
    s_lshr_b32 s72, s{sH}, 3
    v_cndmask_b32 v16, v29, v16, vcc
    s_add_u32 s64, s64, s72
    s_lshl_b32 s64, s64, 2
    s_add_u32 s64, s64, s{sWAVE}
    s_mul_i32 s64, s64, 14336
    v_lshl_add_u32 v17, v0, 7, s64
    v_cmp_gt_u32 vcc, 56, v0
    s_nop 1
    v_cndmask_b32 v17, v29, v17, vcc
    s_mov_b32 s67, 7168
    """)
    return pre, [touch(16, swq, 0)] + ([touch(17, sx, 0), touch(17, sx, "s67")] if px else [])
def h_touch_srd():
    return L(f"""
    s_load_dwordx4 s[80:83], s[0:1], {A_WG}
    s_load_dwordx2 s[84:85], s[0:1], {A_WD}
    """)
def h_touch():
    return L(f"""
    s_lshr_b32 s64, s2, 3
    s_lshl_b32 s64, s64, 2
    s_add_u32 s64, s64, s{sWAVE}
    s_cmp_lt_u32 s64, 64
    s_cselect_b32 s72, s80, s82
    s_cselect_b32 s73, s81, s83
    {srd(60, 72, 448*3584)}
    {srd(68, 84, 1792*896)}
    s_and_b32 s72, s64, 63
    s_mul_i32 s72, s72, {7 * 3584}
    s_and_b32 s73, s{sH}, 7
    s_mul_i32 s74, s73, 448
    s_add_u32 s72, s72, s74
    s_and_b32 s72, s72, 0xffffff80
    v_lshrrev_b32 v28, 2, v0
    v_mul_u32_u24 v28, 3584, v28
    v_and_b32 v29, 3, v0
    v_lshl_add_u32 v28, v29, 7, v28
    v_add_u32 v28, s72, v28
    v_mov_b32 v29, 0x20000000
    v_cmp_gt_u32 vcc, 28, v0
    s_mul_i32 s73, s73, {224 * 896}
    s_mul_i32 s64, s64, 1664
    v_cndmask_b32 v30, v29, v28, vcc
    s_add_u32 s64, s64, s73
    v_lshl_add_u32 v28, v0, 7, s64
    v_cmp_gt_u32 vcc, 13, v0
    s_nop 1
    v_cndmask_b32 v31, v29, v28, vcc
    """), [touch(30, 60, 0), touch(31, 68, 0)]


def bg_r_loads():
    return L(f"""
    s_lshl_b32 s64, s2, 2
    s_add_u32 s64, s64, s{sWAVE}
    s_mul_i32 s72, s64, 1792
    v_mov_b32 v28, {OOB}
    v_cmp_gt_u32 vcc, 56, v0
    s_nop 0
    v_cndmask_b32 v28, v28, v7, vcc
    buffer_load_dwordx4 v[16:19], v28, s[56:59], s72 offen
    buffer_load_dwordx4 v[20:23], v28, s[56:59], s72 offen offset:896
    buffer_load_dwordx4 a[176:179], v28, s[60:63], 0 offen
    buffer_load_dwordx4 a[180:183], v28, s[68:71], 0 offen
    """)
def bg_r_compute():
    out = [I(f"v_mov_b32 v{28+r}, 0") for r in range(4)]
    for w in range(4):
        out += L(f"""v_accvgpr_read_b32 v26, a{176+w}
        v_accvgpr_read_b32 v27, a{180+w}
        v_dot2c_f32_bf16 v28, v{16+w}, v26
        v_dot2c_f32_bf16 v29, v{20+w}, v26
        v_dot2c_f32_bf16 v30, v{16+w}, v27
        v_dot2c_f32_bf16 v31, v{20+w}, v27""")
    out += wave_sum([28, 29, 30, 31], [16, 17, 18, 19])
    out += L(f"""
    v_cmp_eq_u32 vcc, 0, v0
    s_lshl_b32 s64, s2, 3
    s_lshl_b32 s72, s{sWAVE}, 1
    v_cndmask_b32 v28, v29, v28, vcc
    v_cndmask_b32 v30, v31, v30, vcc
    s_add_u32 s64, s64, s72
    v_add_u32 v16, s64, v0
    v_ashrrev_i32 v17, 31, v28
    v_or_b32 v17, 0x80000000, v17
    v_xor_b32 v17, v17, v28
    v_and_b32 v17, 0xfffff800, v17
    v_sub_u32 v18, 2047, v16
    v_or_b32 v17, v17, v18
    """) + sigmoid(30, 31) + L(f"""
    s_lshl_b32 s72, s{sWAVE}, 3
    s_add_u32 s72, s72, {LDS_R}
    v_lshl_add_u32 v16, v0, 2, s72
    v_mov_b32 v18, {LDS_R + 128}
    v_cmp_gt_u32 vcc, 2, v0
    s_nop 0
    v_cndmask_b32 v16, v18, v16, vcc
    ds_write_b32 v16, v17
    ds_write_b32 v16, v28 offset:32
    ds_write_b32 v16, v30 offset:64
    """)
    return out
def bg_r_store():
    return L(f"""
    v_and_b32 v16, 31, v0
    v_lshlrev_b32 v16, 2, v16
    v_add_u32 v17, {LDS_R}, v16
    ds_read_b32 v17, v17
    s_cmp_eq_u32 s{sWAVE}, 0
    s_cselect_b32 s64, 0, {OOB}
    v_and_b32 v18, 32, v0
    v_lshl_add_u32 v16, v18, 24, v16
    v_or_b32 v16, s64, v16
    s_lshl_b32 s72, s2, 7
    s_add_u32 s72, s72, {WS_R}
    s_cmp_lt_u32 s2, 14
    s_cselect_b32 s64, s64, {OOB}
    v_or_b32 v18, s64, v7
    v_mov_b32 v20, 0
    v_mov_b32 v21, 0
    v_mov_b32 v22, 0
    v_mov_b32 v23, 0
    s_and_b32 s73, s2, 15
    s_lshl_b32 s73, s73, 10
    s_add_u32 s73, s73, {WS_FKV}
    buffer_store_dword v17, v16, {WS}, s72 offen sc1
    """) + [I(f"buffer_store_dwordx4 v[20:23], v18, {WS}, s73 offen sc1", tag="RST")]
def lane0_wave0(v):
    return L(f"""
    v_or_b32 v{v}, s{sWAVE}, v0
    v_min_u32 v{v}, 1, v{v}
    v_lshlrev_b32 v{v}, 29, v{v}
    """)
def bg_r_signal():
    return lane0_wave0(16) + L("v_mov_b32 v17, 1") + [WAITV("RST"), I(f"buffer_atomic_add v17, v16, s[{S_DBG}:{S_DBG+3}], 0 offen sc1")]
def bg_wo_dma():
    pre = L(f"""
    v_lshrrev_b32 v28, 5, v0
    v_mul_u32_u24 v28, 896, v28
    v_and_b32 v29, 31, v0
    v_lshl_add_u32 v28, v29, 4, v28
    v_mov_b32 v30, {OOB}
    v_cmp_gt_u32 vcc, 28, v29
    s_lshr_b32 s64, s{sJ}, 1
    s_lshl_b32 s64, s64, 5
    v_cndmask_b32 v28, v30, v28, vcc
    s_lshl_b32 s72, s{sH}, 8
    s_add_u32 s64, s64, s72
    s_lshl_b32 s72, s{sWAVE}, 3
    s_add_u32 s64, s64, s72
    s_mul_i32 s64, s64, 896
    s_and_b32 s72, s{sJ}, 1
    s_mul_i32 s72, s72, 448
    s_add_u32 s67, s64, s72
    v_add_u32 v29, {2*896 - 1024}, v28
    v_add_u32 v30, {2*(2*896 - 1024)}, v28
    v_add_u32 v31, {3*(2*896 - 1024)}, v28
    """)
    un = [I("s_add_u32 m0, s23, 131072")] + [I(f"buffer_load_dwordx4 v{28+j}, s[60:63], s67 offen offset:{1024*j} nt lds", tag="WO") for j in range(4)] + [I("s_nop 0")]
    return pre, un
def bg_wo_finish():
    out = wo_setup()[:-2] + L(f"""
    s_cmp_lt_u32 s{sWAVE}, 2
    s_cselect_b32 s75, 0, {OOB}
    """) + wo_reads()
    st = [I(f"buffer_store_dwordx4 a[{192+4*n}:{195+4*n}], v{24 if n == 3 else 7}, {WS}, s{76+n} offen sc1", tag="KVST") for n in range(4)]
    return out, [I('v_or_b32 v24, s75, v7')] + st
def c_touch_setup():
    return L(f"""
    s_lshl_b32 s64, s2, 2
    s_add_u32 s64, s64, s{sWAVE}
    s_lshl_b32 s64, s64, 12
    v_lshrrev_b32 v28, 2, v0
    v_and_b32 v29, 3, v0
    v_lshlrev_b32 v29, 7, v29
    v_lshl_add_u32 v28, v28, 11, v29
    v_add_u32 v24, s64, v28
    v_and_b32 v28, 56, v0
    v_lshl_add_u32 v24, v28, 24, v24
    """)
def w_touch_setup(t0, t1):
    return L(f"""
    s_and_b32 s64, s{sJ}, 7
    s_lshl_b32 s64, s64, 2
    s_add_u32 s64, s64, s{sWAVE}
    s_lshl_b32 s64, s64, 14
    v_lshrrev_b32 v{t0}, 2, v0
    v_and_b32 v{t1}, 3, v0
    v_lshlrev_b32 v{t1}, 7, v{t1}
    v_lshl_add_u32 v{t0}, v{t0}, 13, v{t1}
    v_add_u32 v25, s64, v{t0}
    v_and_b32 v{t0}, 56, v0
    v_lshl_add_u32 v25, v{t0}, 24, v25
    """)
def w_touch(sw, t):
    return [I(f"s_mov_b32 s65, {t * 64 * 8192}"), touch(25, sw, "s65")]
def c_touch(sc, quarter):
    return [touch(24, sc, 0, quarter * 512, nt=False)]


def z_store():
    return L(f"""
    s_lshl_b32 s64, s{sJ}, 4
    s_add_u32 s64, s64, s{sH}
    s_lshl_b32 s64, s64, 2
    s_add_u32 s64, s64, s{sWAVE}
    s_cmp_lt_u32 s64, {NZERO}
    s_cselect_b32 s39, 0, {OOB}
    s_min_u32 s64, s64, {NZERO}
    s_lshl_b32 s38, s64, 2
    s_max_u32 s67, s64, 8
    s_sub_u32 s67, s67, 8
    s_mul_i32 s67, s67, {FSTR - 1024}
    s_lshl_b32 s64, s64, 10
    s_add_u32 s64, s64, s67
    s_add_u32 s73, s64, {WS_KEY}
    v_or_b32 v64, s39, v7
    v_mov_b32 v68, 0
    v_mov_b32 v69, 0
    v_mov_b32 v70, 0
    v_mov_b32 v71, 0
    """) + [I(f"buffer_store_dwordx4 v[68:71], v64, {WS}, s73 offen offset:{1024 * n} sc1", tag="ZST") for n in range(3)]
def z_signal():
    return L(f"""
    v_min_u32 v16, 1, v0
    v_lshlrev_b32 v16, 29, v16
    v_or_b32 v16, s39, v16
    v_mov_b32 v17, 1
    """) + [WAITV("ZST"), I(f"buffer_store_dword v17, v16, s[{S_DBG}:{S_DBG+3}], s38 offen offset:64 sc1")]
def z_load():
    return L(f"""
    v_min_u32 v16, {NZERO - 1}, v0
    v_lshlrev_b32 v16, 2, v16
    buffer_load_dword v17, v16, s[{S_DBG}:{S_DBG+3}], 0 offen offset:64 sc1
    """)
def z_check(tag):
    return L(f"""
    v_cmp_ne_u32 vcc, 1, v17
    s_nop 0
    s_cbranch_vccnz L_zs{tag}
    L_zr{tag}:
    """)
def spin_stub(label, ret, load, vt, sc=64, cmp_="v_cmp_ne_u32 vcc, 1, v{vt}"):
    return L(f"""
    {label}:
    s_mov_b32 s{sc}, {SPIN_MAX}
    {label}_l:
    s_sleep 2
    {load}
    s_sub_u32 s{sc}, s{sc}, 1
    s_cbranch_scc1 {label}_x
    s_waitcnt vmcnt(0)
    {cmp_.format(vt=vt)}
    s_cbranch_vccnz {label}_l
    {label}_x:
    s_waitcnt vmcnt(0)
    s_branch {ret}
    """)
def z_stub(tag):
    return spin_stub(f"L_zs{tag}", f"L_zr{tag}", f"buffer_load_dword v17, v16, s[{S_DBG}:{S_DBG+3}], 0 offen offset:64 sc1", 17)
def rg_store():
    return L(f"""
    v_and_b32 v20, 31, v0
    v_lshlrev_b32 v20, 2, v20
    v_add_u32 v21, {LDS_R}, v20
    ds_read_b32 v19, v21
    ds_read_b32 v21, v21 offset:32
    s_cmp_eq_u32 s{sWAVE}, 0
    s_cselect_b32 s64, 0, {OOB}
    v_mov_b32 v22, {OOB}
    v_or_b32 v20, s64, v20
    v_cmp_gt_u32 vcc, 8, v0
    s_lshl_b32 s72, s2, 6
    s_add_u32 s72, s72, {WS_RG}
    v_cndmask_b32 v18, v22, v20, vcc
    v_cmp_gt_u32 vcc, 16, v0
    s_nop 0
    s_nop 0
    v_cndmask_b32 v20, v22, v20, vcc
    """) + [I(f"buffer_store_dword v21, v20, {WS}, s72 offen sc1", tag="RST")]
def key_store():
    return L(f"""
    s_lshl_b32 s72, s2, 5
    s_add_u32 s72, s72, {WS_KEY}
    """) + [WAITV("RST"), I(f"buffer_store_dword v19, v18, {WS}, s72 offen sc1")]
def lanes8(v):
    return f"v_and_b32 v28, 56, v0\nv_lshl_add_u32 v{v}, v28, 24, v{v}"
def wo_touch():
    pre = L(f"""
    s_lshr_b32 s64, s{sJ}, 1
    s_lshl_b32 s64, s64, 5
    s_lshl_b32 s72, s{sH}, 8
    s_add_u32 s64, s64, s72
    s_lshl_b32 s72, s{sWAVE}, 3
    s_add_u32 s64, s64, s72
    s_mul_i32 s64, s64, 896
    s_and_b32 s72, s{sJ}, 1
    s_mul_i32 s72, s72, 384
    s_add_u32 s64, s64, s72
    v_bfe_u32 v28, v0, 2, 2
    v_mul_u32_u24 v28, 896, v28
    v_and_b32 v29, 3, v0
    v_lshl_add_u32 v28, v29, 7, v28
    v_add_u32 v23, s64, v28
    v_and_b32 v28, 48, v0
    v_lshl_add_u32 v23, v28, 24, v23
    """)
    return pre, [[touch(23, 60, 0, n * 3584)] for n in range(2)]
def q_touch2(swq):
    pre = L(f"""
    s_lshl_b32 s64, s{sJ}, 2
    s_add_u32 s64, s64, s{sWAVE}
    s_mul_i32 s64, s64, {7 * 8192}
    v_bfe_u32 v28, v0, 2, 2
    v_and_b32 v29, 3, v0
    v_lshlrev_b32 v29, 7, v29
    v_lshl_add_u32 v28, v28, 13, v29
    v_add_u32 v23, s64, v28
    v_and_b32 v28, 48, v0
    v_lshl_add_u32 v23, v28, 24, v23
    """)
    return pre, [[touch(23, swq, 0), I(f"v_add_u32 v23, {4 * 8192}, v23")], [touch(23, swq, 0)]]
def h_touch2():
    pre = L(f"""
    s_lshr_b32 s64, s2, 3
    s_lshl_b32 s64, s64, 2
    s_add_u32 s64, s64, s{sWAVE}
    s_cmp_lt_u32 s64, 64
    s_cselect_b32 s72, s80, s82
    s_cselect_b32 s73, s81, s83
    {srd(60, 72, 448*3584)}
    {srd(68, 84, 1792*896)}
    s_and_b32 s72, s64, 63
    s_mul_i32 s72, s72, {7 * 3584}
    s_and_b32 s73, s{sH}, 7
    s_mul_i32 s74, s73, 448
    s_add_u32 s72, s72, s74
    s_and_b32 s72, s72, 0xffffff80
    v_bfe_u32 v28, v0, 2, 2
    v_mul_u32_u24 v28, 3584, v28
    v_and_b32 v29, 3, v0
    v_lshl_add_u32 v28, v29, 7, v28
    v_add_u32 v21, s72, v28
    v_and_b32 v28, 48, v0
    v_lshl_add_u32 v21, v28, 24, v21
    s_mul_i32 s73, s73, {224 * 896}
    s_mul_i32 s64, s64, 1664
    s_add_u32 s64, s64, s73
    v_lshl_add_u32 v22, v0, 7, s64
    v_lshl_add_u32 v22, v28, 24, v22
    """)
    return pre, [[touch(21, 60, 0), I(f"v_add_u32 v21, {4 * 3584}, v21")], [touch(21, 60, 0)], [touch(22, 68, 0)]]

def x_touch():
    pre = L(f"""
    s_xor_b32 s64, s2, 1
    s_lshl_b32 s64, s64, 2
    s_add_u32 s64, s64, s{sWAVE}
    s_mul_i32 s64, s64, 1792
    v_lshl_add_u32 v23, v0, 7, s64
    v_mov_b32 v28, {OOB}
    v_cmp_gt_u32 vcc, 14, v0
    s_nop 0
    s_nop 0
    v_cndmask_b32 v23, v28, v23, vcc
    """)
    return pre, [[touch(23, 56, 0, nt=False)]]

def x_touch2():
    pre = L(f"""
    s_lshl_b32 s64, s{sJ}, 1
    s_lshr_b32 s72, s{sH}, 3
    s_add_u32 s64, s64, s72
    s_lshl_b32 s64, s64, 2
    s_add_u32 s64, s64, s{sWAVE}
    s_mul_i32 s64, s64, 14336
    v_lshl_add_u32 v25, v0, 7, s64
    v_mov_b32 v28, {OOB}
    v_cmp_gt_u32 vcc, 28, v0
    s_nop 0
    s_nop 0
    v_cndmask_b32 v25, v28, v25, vcc
    """)
    return pre, [[touch(25, 56, 0, nt=False), I("v_add_u32 v25, 3584, v25")] for n in range(4)]
def flag_store(addr_sreg, va, vt, tag=None):
    return I(f"buffer_store_dword v{vt}, v{va}, {WS}, s{addr_sreg} offen sc1", tag=tag)

def q_touch3(swq):
    pre = L(f"""
    s_and_b32 s64, s{sJ}, 7
    s_lshl_b32 s64, s64, 2
    s_add_u32 s64, s64, s{sWAVE}
    s_mul_i32 s64, s64, {14 * 8192}
    v_bfe_u32 v28, v0, 2, 2
    v_and_b32 v29, 3, v0
    v_lshlrev_b32 v29, 7, v29
    v_lshl_add_u32 v28, v28, 13, v29
    v_add_u32 v23, s64, v28
    v_and_b32 v28, 48, v0
    v_lshl_add_u32 v23, v28, 24, v23
    """)
    return pre, [[touch(23, swq, 0, nt=False), I(f"v_add_u32 v23, {(4 if n < 2 else 2) * 8192}, v23")] for n in range(4)]


def wo2_dma():
    pre = L(f"""
    s_and_b32 s64, s{sJ}, 7
    s_lshl_b32 s72, s{sH}, 3
    s_add_u32 s64, s64, s72
    s_lshl_b32 s64, s64, 2
    s_add_u32 s64, s64, s{sWAVE}
    s_mul_i32 s67, s64, 7168
    s_mul_i32 s86, s{sWAVE}, 7168
    s_add_u32 s86, s86, 131072
    """)
    un = lambda o, n: [I(f"s_add_u32 m0, s86, {o}")] + [I(f"buffer_load_dwordx4 v7, s[60:63], s67 offen offset:{1024*j} nt lds", tag="WO") for j in range(n)] + [I("s_add_u32 s67, s67, 4096")]
    return pre, [un(0, 4), un(4096, 3)]
def wo2_reads():
    return L(f"""
    v_lshrrev_b32 v28, 2, v0
    v_mul_u32_u24 v28, 896, v28
    v_and_b32 v29, 3, v0
    v_lshl_add_u32 v28, v29, 4, v28
    s_lshr_b32 s64, s{sWAVE}, 1
    s_lshl_b32 s64, s64, 6
    s_and_b32 s72, s{sWAVE}, 1
    s_lshl_b32 s72, s72, 3
    s_add_u32 s64, s64, s72
    s_add_u32 s64, s64, 131072
    v_add_u32 v28, s64, v28
    s_lshl_b32 s94, s{sH}, 18
    s_and_b32 s64, s{sJ}, 7
    s_lshl_b32 s64, s64, 10
    s_add_u32 s94, s94, s64
    s_lshl_b32 s64, s{sWAVE}, 13
    s_add_u32 s94, s94, s64
    s_add_u32 s94, s94, {WS_WO}
    """) + [I(f"ds_read_b64_tr_b16 a[{192+4*n+2*j}:{193+4*n+2*j}], v28 offset:{n*128 + j*14336}") for n in range(7) for j in range(2)]
def wo2_stores():
    return [[I(f"s_add_u32 s3, s94, {n * 32768}"), I(f"buffer_store_dwordx4 a[{192+4*n}:{195+4*n}], v7, {WS}, s3 offen sc1", tag="KVST")] for n in range(7)]

def tlb_touch(srds, sel):
    out = L(f"""
    s_lshr_b32 s64, s2, 3
    s_lshl_b32 s64, s64, 2
    s_add_u32 s64, s64, s{sWAVE}
    s_and_b32 s64, s64, {sel}
    s_min_u32 s64, s64, 1
    s_lshl_b32 s64, s64, 29
    v_lshlrev_b32 v28, 21, v0
    v_or_b32 v28, s64, v28
    """)
    return out + [touch(28, r, 0, nt=False) for r in srds]


def r4_loads():
    return L(f"""
    s_lshl_b32 s30, s{sH}, 3
    s_add_u32 s30, s30, s{sJ}
    s_lshl_b32 s64, s30, 2
    s_add_u32 s64, s64, s{sWAVE}
    s_mul_i32 s72, s64, 3584
    v_mov_b32 v32, {OOB}
    v_cmp_gt_u32 vcc, 56, v0
    s_lshl_b32 s67, s64, 2
    s_nop 0
    v_cndmask_b32 v32, v32, v7, vcc
    """) + [I(f"buffer_load_dwordx4 v[{40+4*r}:{43+4*r}], v32, s[56:59], s72 offen offset:{896*r}") for r in range(4)] + L("""
    buffer_load_dwordx4 v[56:59], v32, s[60:63], 0 offen
    buffer_load_dwordx4 v[60:63], v32, s[68:71], 0 offen
    """)
def r4_compute():
    out = [I(f"v_mov_b32 v{72+r}, 0") for r in range(8)]
    for w in range(4):
        for m in range(2):
            for r in range(4): out.append(I(f"v_dot2c_f32_bf16 v{72+4*m+r}, v{40+4*r+w}, v{56+4*m+w}"))
    prs = [(72, 74), (73, 75), (76, 78), (77, 79)]
    out += [I(f"v_permlane32_swap_b32 v{a}, v{b}") for a, b in prs] + [I(f"v_add_f32 v{a}, v{a}, v{b}") for a, b in prs]
    out += L("v_lshrrev_b32 v80, 4, v0\nv_permlane16_swap_b32 v72, v73\nv_permlane16_swap_b32 v76, v77\nv_add_f32 v72, v72, v73\nv_add_f32 v76, v76, v77\nv_add_u32 v81, s67, v80")
    for sh in ("row_ror:8", "row_ror:4", "row_ror:2", "row_ror:1"):
        out += L(f"v_add_f32 v72, v72, v72 {sh} row_mask:0xf bank_mask:0xf\nv_add_f32 v76, v76, v76 {sh} row_mask:0xf bank_mask:0xf")
    out += L(f"""
    v_ashrrev_i32 v82, 31, v72
    v_or_b32 v82, 0x80000000, v82
    v_xor_b32 v82, v82, v72
    v_and_b32 v82, 0xfffff800, v82
    v_sub_u32 v81, 2047, v81
    v_or_b32 v82, v82, v81
    v_max_u32 v82, 1, v82
    """) + sigmoid(76, 77) + L(f"""
    s_lshl_b32 s72, s{sWAVE}, 4
    s_add_u32 s72, s72, {LDS_R}
    v_lshl_add_u32 v80, v80, 2, s72
    ds_write_b32 v80, v82
    ds_write_b32 v80, v72 offset:64
    ds_write_b32 v80, v76 offset:128
    """)
    return out
def rg4_store():
    return L(f"""
    v_and_b32 v20, 31, v0
    v_lshlrev_b32 v20, 2, v20
    v_add_u32 v21, {LDS_R}, v20
    ds_read_b32 v19, v21
    ds_read_b32 v21, v21 offset:64
    s_min_u32 s64, s{sWAVE}, 1
    s_lshl_b32 s64, s64, 29
    v_and_b32 v22, 32, v0
    v_lshl_or_b32 v20, v22, 24, v20
    v_or_b32 v20, s64, v20
    v_and_b32 v22, 16, v0
    v_lshl_or_b32 v18, v22, 25, v20
    s_lshl_b32 s72, s30, 7
    s_add_u32 s72, s72, {WS_RG}
    """) + [6, I(f"buffer_store_dword v21, v20, {WS}, s72 offen sc1", tag="RST")]
def key4_store():
    return L(f"""
    s_lshl_b32 s72, s30, 6
    s_add_u32 s72, s72, {WS_KEY}
    """) + [WAITV("RST"), I(f"buffer_store_dword v19, v18, {WS}, s72 offen sc1")]
```

```python
import sys
from att import *
import kvq, side, hw, asmlib, att
from kvq import K
opt = dict(dbgst="0", stamp="0", v="1", thr=str(2.0 ** 24), nost="0", pc="2", pk="1", pq="1", ph="1", px="0", fine="0", pw="0", pcq="4", tR="3", tW="5", tQ="9", tH="7", p0="0", ntw="nt", ntt="", two="0", rpos="1", xs_="20", vmr="6", odh="45", n1="8", late="0", sent="0", nl="5", ls="1", r3="0", vm2="1", cu="0,0", pwe="1", tg="113", fsh="7", sg="30", ovr="0", epar="2", ne="8", map="0", dn="9087", l3="0", wi="880", dfl="sc1", cfl="", fast0="1", barx="1", r3x="-", pair="1", wide="1", lhi="48", c2h="30", early="1", lag="6", jy="6", nq="8", qhi="40", fpg="24", f4g="26", nd="8", w0h="30", w0l="30", k15="8", kst="2224a56", v15="4", vst="2204444", kf="0", vf="2", fvg="30", bq="12", ntc="99", hnt="nt", t04="0", osf="sc1", rfp="1", tlb="0", tlbt="1", psf="sc1", qsf="sc1", xs="", xl="0000", xa="50", f1="4", tc="6,13", tl="1", tX="99", rnt="", stf="sc1")
for a in sys.argv[1:]:
    k, v = a.split("="); opt[k] = v
STAMP = opt["stamp"] == "1"
kvq.NOST = opt["nost"] == "1"
kvq.NTW = opt["ntw"]; side.NTT = opt["ntt"]; side.RNT = opt["rnt"]; kvq.STF = opt["stf"]; att.DFL = opt["dfl"].replace("+", " "); kvq.CFL = opt["cfl"].replace("+", " "); hw.MAP = opt["map"]; side.EPAR = int(opt["epar"]); side.NE = int(opt["ne"]); kvq.CU = tuple(int(x) for x in opt["cu"].split(",")); asmlib.VM2 = opt["vm2"] == "1"; asmlib.BARX = opt["barx"] == "1"; kvq.PAIR = opt["pair"] == "1"; kvq.FAST0 = opt["fast0"] == "1"; kvq.VMR = int(opt["vmr"]); kvq.QSF = opt["qsf"]; side.OSF = opt["osf"].replace("+", " "); kvq.NTC = int(opt["ntc"]); hw.HNT = opt["hnt"]
sMODE, sH, sJ, sHS, sSTK, sKV = 40, 41, 42, 43, 44, 45
sMLD, sMPB, sPBV = 39, 92, 4
XS = int(opt['xs_'])
ODD = XS & 1
assert opt['fsh'] == '7'
FSH = int(opt['fsh'])
OVR = opt['ovr'] == '1'
JC = XS // 2
sFL, sVD, sNC = 45, 43, 35
aST = 250
def stamp(t=16):
    if not STAMP: return []
    return L(f"""s_memrealtime s[36:37]
    s_memtime s[98:99]
    v_accvgpr_read_b32 v{t}, a{aST}
    v_accvgpr_read_b32 v{t+1}, a{aST+1}
    s_mov_b32 s100, m0
    s_mov_b32 m0, s{sSTK}
    s_waitcnt lgkmcnt(0)
    v_writelane_b32 v{t}, s98, m0
    v_writelane_b32 v{t+1}, s36, m0
    s_add_u32 s{sSTK}, s{sSTK}, 1
    s_mov_b32 m0, s100
    v_accvgpr_write_b32 a{aST}, v{t}
    v_accvgpr_write_b32 a{aST+1}, v{t+1}""")

def PK(): return side.kv_touch(K.S_C, K.S_W) if opt['pk'] == '1' else []
MAPS = {"0": f"""
    s_and_b32 s{sH}, s2, 7
    s_lshr_b32 s{sJ}, s2, 3
    s_lshr_b32 s64, s{sJ}, 4
    s_lshl_b32 s64, s64, 3
    s_add_u32 s{sH}, s{sH}, s64
    s_and_b32 s{sJ}, s{sJ}, 15"""}
for par in (0, 1):
    MAPS[str(par + 1)] = f"""
    s_and_b32 s{sH}, s2, 6
    s_lshl_b32 s{sH}, s{sH}, 1
    s_lshr_b32 s64, s2, 6
    s_add_u32 s{sH}, s{sH}, s64
    s_bfe_u32 s{sJ}, s2, 0x30003
    s_and_b32 s64, s2, 1
    s_xor_b32 s64, s64, {1 - par}
    s_lshl_b32 s64, s64, 3
    s_add_u32 s{sJ}, s{sJ}, s64"""
def build_front(c):
    X.update(wide=int(opt['wide']), ls=int(opt['ls']), r3=int(opt['r3']), r3x=opt['r3x'])
    X.update(rp=int(opt['xa'][0]), dp=int(opt['xa'][1]))
    c.block("entry", f"""
    s_cmp_lt_u32 s2, 256
    s_cbranch_scc1 L_go
    s_endpgm
    L_go:
    s_load_dwordx8 s[80:87], s[0:1], {A_X}
    s_load_dwordx4 s[88:91], s[0:1], {A_WUV}
    s_load_dwordx2 s[92:93], s[0:1], {A_WR}
    s_load_dwordx2 s[94:95], s[0:1], {A_GW}
    s_load_dwordx4 s[4:7], s[0:1], {A_DBG}
    v_lshrrev_b32 v24, 6, v0
    v_and_b32 v0, 63, v0
    v_readfirstlane_b32 s{K.sWAVE}, v24
    {MAPS[opt['map']]}
    s_lshr_b32 s{sKV}, s{sJ}, 3
    s_mov_b32 s{sSTK}, 0
    v_accvgpr_write_b32 a{aST}, 0
    v_accvgpr_write_b32 a{aST+1}, 0
    v_and_b32 v24, 15, v0
    v_lshrrev_b32 v25, 4, v0
    v_lshlrev_b32 v{K.vST}, 4, v0
    s_and_b32 s65, s{K.sWAVE}, 1
    s_lshr_b32 s66, s{K.sWAVE}, 1
    {kvq.addr_wd()}
    {kvq.addr_cd()}
    s_mov_b32 s{K.sWOFF}, 0
    s_mov_b32 s{K.sCOFF}, 0
    s_mov_b32 s{K.sWQOFF}, 0
    s_lshl_b32 s{K.sM0W}, s{K.sWAVE}, 12
    s_add_u32 s{K.sM0C}, s{K.sM0W}, 65536
    """, kvq.addr_rd(), side.c_touch_setup(), stamp(26), f"""
    s_cmp_eq_u32 s{sKV}, 0
    s_cselect_b32 s72, s86, s88
    s_cselect_b32 s73, s87, s89
    s_lshl_b32 s74, s{sH}, 9
    s_add_u32 s72, s72, s74
    s_addc_u32 s73, s73, 0
    s_sub_u32 s75, {1024*8192}, s74
    {srd(K.S_W, 72, "s75")}
    s_and_b32 s64, s{sJ}, 7
    s_lshl_b32 s64, s64, 16
    s_add_u32 s72, s82, s64
    s_addc_u32 s73, s83, 0
    s_sub_u32 s75, {2048*2048}, s64
    {srd(K.S_C, 72, "s75")}
    {srd(32, 82, 2048*2048)}
    """, side.c_touch(32, 0) if opt['p0'] == '1' else [], kvq.unit_w(0), kvq.unit_c(0), side.c_touch(32, 0) if opt['p0'] == '2' else [], kvq.unit_w(1),
        side.c_touch(32, 0) if opt['p0'] == '3' else [], stamp(26), f"""
    {srd(K.S_X, 80, 2048*896)}
    {srd(60, 92, 896)}
    {srd(68, 94, 896)}
    """, side.code_touch()[:-1], f"""
    {srd(K.S_WS, 6, 1 << 28)}
    {srd(K.S_DBG, 4, 256)}
    s_add_u32 s72, s84, s74
    s_addc_u32 s73, s85, 0
    s_sub_u32 s75, {448*8192}, s74
    {srd(K.S_WQ, 72, "s75")}
    s_mul_i32 s{K.sXOFF}, s{sJ}, {128*896}
    s_mov_b32 s{K.sSC}, {hex(f2u(LOG2E_16))}
    s_lshl_b32 s72, s{sKV}, 24
    s_lshl_b32 s73, s{sH}, 20
    s_add_u32 s72, s72, s73
    s_bfe_u32 s64, s{sJ}, 0x20001
    s_lshl_b32 s64, s64, 15
    s_add_u32 s72, s72, s64
    s_lshl_b32 s64, s66, 17
    s_add_u32 s72, s72, s64
    s_and_b32 s67, s{sJ}, 1
    s_cmp_eq_u32 s{sKV}, 0
    s_cselect_b32 s64, 12, 14
    s_cselect_b32 s75, 14, 10
    s_lshl_b32 s67, s67, s75
    s_add_u32 s72, s72, s67
    s_lshl_b32 s64, s65, s64
    s_add_u32 s{K.sOOFF}, s72, s64
    """, side.h_touch_srd(), f"s_load_dwordx2 s[96:97], s[0:1], {A_OUT}", f"s_cmp_eq_u32 s{sKV}, 0\ns_cbranch_scc0 L_kv1")
    pw, pcq = int(opt["pw"]), int(opt["pcq"])
    tR, tW, tQ, tH = int(opt["tR"]), int(opt["tW"]), int(opt["tQ"]), int(opt["tH"])
    for vt in (0, 1):
        frags = [kvq.rd_c(0, 0, 0, 0), kvq.rd_c(0, 0, 0, 1)] + kvq.rd_w_unit(0, 0, 0) + kvq.rd_w_unit(0, 1, 1)
        ct = side.code_touch()[-1:]
        out = (side.z_store()[:-3] + (side.r4_loads() + side.z_store()[-3:] if opt['rpos'] == '1' else []) if vt == 0 else L(srd(60, 90, 4096*896)) + side.w_touch_setup(30, 29)) + (ct if opt['pc'] == '1' else []) + kvq.unit_w(2) + kvq.unit_c(1)
        out += [WAITV([("W", 1), ("C", 0), ("W", 0)], lgkm0=True), I("s_barrier")] + stamp(26) + frags + (ct if opt['pc'] == '2' else []) + (side.r4_loads() + side.z_store()[-3:] if opt['rpos'] == '3' and vt == 0 else [])
        if not kvq.FAST0: out += kvq.unit_w(3) + kvq.unit_c(2)
        if vt == 0: out += side.r4_compute()
        if not kvq.FAST0: out += [WAITV([("W", 2)], lgkm0=True), I("s_barrier")] + kvq.unit_w(4)
        else: out += [NEED(R("a", kvq.wfrag(0, 0, 0), 8), R("a", 160, 8))]
        out += stamp(26) if opt['fine'] == '9' else []
        for t in range(15):
            dma = kvq.kv_dma(t)
            if vt == 1 and t == tW:
                pre, uns = side.wo2_dma(); dma[1] = dma[1] + [uns[0]]
            if vt == 1 and t == tW + 1: dma[1] = dma[1] + [uns[1]]
            if vt == 0 and t == 2:
                pre, uns = hw.s1_weights()
            if vt == 0 and 2 <= t <= 8: dma[1] = dma[1] + [uns[t - 2]]
            if vt == 0 and t == 11:
                pre, un = hw.s6_down_dma(); dma[1] = dma[1] + [un]
            g = kvq.kv_tile(t, vt, dma, first=(t == 0))
            def fit(ins, k, pace=0):
                k, left = kvq.seq_fit(g, ins, k, pace); assert not left, (t, len(left)); return k
            def mm(ms, k):
                k |= 1
                for m in ms: g.put(k, m)
                return k
            tch = []
            if pw and vt and t + pw < 16 and t % int(opt['pwe']) == 0:
                for q in range(int(opt['pwe'])): tch += side.w_touch(K.S_W, t + pw + q)
            if pcq and (t + pcq) % 4 == 0 and t + pcq < 16: tch += side.c_touch(32, (t + pcq) // 4)
            if t == 1 and vt == 0: fit(side.z_signal(), 112)
            if t == int(opt['tlbt']) and opt['tlb'] != '0':
                fit(L(srd(68, 96, 2048*896)) + side.tlb_touch([K.S_WS, K.S_W, K.S_WQ, 60, 68], int(opt['tlb'])), 4)
            if t == 2 and vt == 0: assert fit(side.rg4_store(), 4, 1) < 42
            if t == 3: fit(side.z_load(), 50)
            if t == 4:
                k = fit(side.z_check(vt), 112)
                if vt == 0: fit(side.key4_store(), k + 1)
            if vt == 1:
                pre_, tl = side.q_touch3(K.S_WQ)
                if t == tQ: fit(pre_, 60)
                if 0 <= t - tQ < len(tl): tch += tl[t - tQ]
            if vt == 1:
                if t == tW: assert fit(pre, 42) < 80
                if t == tW + 2: g.sc[110][0].tag = g.sc[110][0].tag + ["WO"]
                if t == tW + 3: assert fit(side.wo2_reads(), 2, 2) < 108
            if vt == 0:
                if t == 2: assert fit(pre, 42) < 90
                if t == 7: fit(hw.s2_keys(), 4)
                if t == 8: assert fit(hw.s3_top2(), 10, 1) < 108
                if t == 9: fit(hw.s4_sel(), 4, 1)
                if t == 10:
                    (r0, m0), (r1, m1) = hw.s5_gemm()
                    k = fit([WAITV("HW")] + r0, 50); k = mm(m0, max(k + 6, 78)); k = fit(r1, k + 1); mm(m1, max(k + 6, 110))
                if t == 11: assert fit(pre, 4) < 44
                if t == 12: fit(hw.s7_act(), 2, 1)
                if t == 13:
                    pre, ms, yadr, yst = hw.s8_down(); link(yadr + yst)
                    k = fit(pre, 2); k = mm(ms, max(k + 2, 46))
            if t == 14: assert fit(kvq.addr_q(), 2) < 46
            if str(t) in opt['tc'].split(','): tch += side.code_addr(26, 27) + [side.touch(26, 76, 0, nt=False)]
            fit(tch, int(opt['tg']))
            out += g.flat()
            if t in (0, 1, 11, 14) or opt['fine'] == '1': out += stamp(26)
        pre1 = L(f"""
        s_mul_i32 s72, s{sH}, {FSTR}
        s_add_u32 s46, s72, {WS_FL}
        s_lshl_b32 s{sFL}, s{sJ}, {FSH}
        s_add_u32 s{sFL}, s{sFL}, s46
        v_mov_b32 v12, 1
        """) + side.lane0_wave0(15)
        setupA = L(f"""
        s_mov_b32 s{A.sTHR}, {hex(f2u(float(opt['thr'])))}
        s_sub_u32 s66, 15, s{sJ}
        s_min_u32 s66, s66, s{sJ}
        s_lshl_b32 s47, s66, {FSH}
        s_add_u32 s47, s47, s46
        s_add_u32 s47, s47, 2048
        s_lshl_b32 s65, s{sH}, 3
        s_add_u32 s65, s65, s66
        s_mul_i32 s{A.sPO}, s65, {PO_STRIDE}
        s_add_u32 s{A.sPO}, s{A.sPO}, {WS_PO}
        s_lshl_b32 s65, s{sJ}, 4
        s_add_u32 s65, s65, s{sH}
        s_mul_i32 s{A.sOP}, s65, {OP_HEAD}
        s_mul_i32 s65, s{A.sWAVE}, {OP_HEAD // 4}
        s_add_u32 s{A.sOP}, s{A.sOP}, s65
        s_add_u32 s{A.sOP}, s{A.sOP}, {WS_OP}
        s_lshl_b32 s{A.sKn2}, s{sH}, 18
        s_add_u32 s{A.sKn2}, s{A.sKn2}, {WS_WO}
        s_add_u32 s{A.sVn}, s{A.sKn2}, 65536
        s_mov_b32 s{A.sREQ}, 0
        s_mov_b32 s{A.sCHK}, {vt}
        s_cmp_eq_u32 s{A.sWAVE}, 0
        s_cselect_b32 s{sMLD}, 0x12, 0
        s_cselect_b32 s{sMPB}, {2 * vt}, 0
        s_mov_b32 s{sPBV}, 4
        s_mov_b32 s{sMODE}, 1
        """)
        setup = L(f"""
        s_lshl_b32 s{A.sM0}, s{A.sWAVE}, 13
        s_lshl_b32 s{A.sK}, s{sH}, 20
        s_lshl_b32 s{A.sT1}, s{sJ}, 16
        s_add_u32 s{A.sKn1}, s{A.sK}, s{A.sT1}
        s_add_u32 s{sVD}, s{A.sKn1}, {WS_V - WS_K}
        s_min_u32 s{A.sIT}, s{sJ}, {JC - 1}
        s_lshl_b32 s{A.sKcnt}, s{A.sIT}, 1
        s_sub_u32 s{A.sT1}, 15, s66
        s_lshl_b32 s{A.sT1}, s{A.sT1}, 16
        s_add_u32 s{A.sQ}, s{A.sK}, s{A.sT1}
        s_lshl_b32 s{A.sT1}, s{A.sWAVE}, 14
        s_add_u32 s{A.sQ}, s{A.sQ}, s{A.sT1}
        s_add_u32 s{A.sQ}, s{A.sQ}, {WS_Q}
        """) + L((f"""
        s_mov_b32 s{A.sIT}, {(XS - 3) // 2}
        s_cmp_ge_u32 s{sJ}, {JC}
        s_cselect_b32 s{A.sKcnt}, {XS - 2}, 1
        s_cselect_b32 s{A.sKc1}, 2, {XS - 1}
        s_cselect_b32 s{A.sKn1}, s{A.sKn1}, s{A.sK}
        """ if ODD else f"s_mov_b32 s{A.sKc1}, 2") if vt else f"""
        s_add_u32 s{A.sKcnt}, s{A.sKcnt}, 2
        s_mov_b32 s{A.sKc1}, 0x7fff
        {f'''s_cmp_le_u32 s{sJ}, {15 - JC}
        s_cselect_b32 s{A.sKn1}, {side.OOB}, s{A.sKn2}''' if not OVR else f'''
        s_add_u32 s64, s{A.sK}, {(XS - 2) * 32768}
        s_sub_u32 s65, {34 - XS}, s{A.sKcnt}
        s_cmp_le_u32 s{sJ}, {15 - JC}
        s_cselect_b32 s{A.sKn1}, s64, s{A.sKn2}
        s_cselect_b32 s{A.sKc1}, s65, s{A.sKc1}''' if not ODD else f'''
        s_add_u32 s64, s{A.sK}, {(XS - 2) * 32768}
        s_add_u32 s65, s64, 32768
        s_cmp_lt_u32 s{sJ}, {15 - JC}
        s_cselect_b32 s{A.sKn1}, s65, s{A.sKn2}
        s_cmp_le_u32 s{sJ}, {15 - JC}
        s_cselect_b32 s{A.sKc1}, 1, s{A.sKc1}
        s_cselect_b32 s{A.sKn2}, s64, s{A.sKn2}'''}
        """)
        pre3 = L(f"""
        v_min_u32 v25, 15, v0
        v_lshlrev_b32 v25, {FSH}, v25
        """)
        if opt['f1'] == '3': pre3 += [52] + L(F1_LOAD)
        else: setup = setup[:13] + L(F1_LOAD) + setup[13:]
        pre5 = L(f"""
        v_add_u32 v10, s{A.sM0}, v{A.vL16}
        v_add_u32 v11, 0x1000, v10
        v_cmp_eq_u32 vcc, 0, v24
        s_add_u32 s{A.sV}, s{A.sK}, {WS_V - WS_K}
        s_cbranch_vccnz L_f1s{vt}
        L_f1r{vt}:
        """)
        fl = ODD & vt
        kvq.X6LOW = not fl
        k0 = dma_flat(KSLOT[fl], A.sK)
        for i in k0:
            i.text = i.text.replace(f"dwordx4 v{A.vDM0},", "dwordx4 v10,").replace(f"dwordx4 v{A.vDM1},", "dwordx4 v11,"); i.parse()
            pre5 += [i]
        pre5 += adv_k() + L(f"""
        v_mov_b32 v9, v25
        v_lshrrev_b32 v24, 4, v0
        v_lshlrev_b32 v24, 2, v24
        v_and_b32 v25, 15, v0
        v_sub_u32 v24, v24, v25
        s_lshr_b32 s64, s{K.sWAVE}, 1
        s_add_u32 s64, s64, {fl}
        s_lshl_b32 s64, s64, {17 - fl}
        s_and_b32 s65, s{K.sWAVE}, 1
        s_lshl_b32 s65, s65, 12
        s_add_u32 s64, s64, s65
        v_add_u32 v14, s64, v7
        s_sub_u32 s64, s{sJ}, {JC}
        s_and_b32 s{sNC}, s64, {side.OOB}
        v_mov_b32 v{A.vNEG}, 0xff800000
        """) + [I(f"v_cmp_lt_i32 s[{A.sTRI[e]}:{A.sTRI[e]+1}], {-e}, v24") for e in range(4)]
        head6 = L(f"""
        v_mov_b32 v{A.vF0}, v15
        v_add_u32 v{A.vRD1}, 0x10000, v{A.vL16}
        v_mov_b32 v{A.vDM0}, v10
        v_mov_b32 v{A.vDM1}, v11
        s_mov_b64 s[60:61], s[76:77]
        s_mov_b32 s62, s78
        s_mov_b32 s63, 0x20000
        """) + side.code_addr(0, 10)
        dma6 = dma_flat(KSLOT[1 - fl], A.sK) + adv_k()
        o = "k" if vt == 0 else "v"
        body, left = kvq.kv_to_q(vt, int(opt[o + "15"]), [int(x, 16) for x in opt[o + "st"]], int(opt[o + "f"]), [side.flag_store(sFL, 15, 12)],
                                 (lambda: stamp(26)) if opt['fine'] == '2' else (lambda: []),
                                 {0: pre1, 1: setupA, 2: yadr if vt == 0 else [], 3: pre3, 4: setup, 5: pre5}, head6, dma6,
                                 [] if vt else [[i] for i in yst], 24 if OVR else 16,
                                 L("v_mov_b32 v12, 3") + [side.flag_store(sFL, 15, 12)] if OVR and not vt else [])
        assert len(left) <= (16 if vt else 8), len(left)
        st = kvq.Storer(K.sOOFF, "KV4")
        def grp(reg, off):
            st.cur = None; return st.st(reg, off)
        nd = len(left) - 8 if vt else len(left)
        direct = [grp(r, off) for r, off in left[:nd]]
        park = [I(f"v_accvgpr_write_b32 a{128 + 4*n + e}, v{int(r[2:r.index(':')]) + e}") for n, (r, off) in enumerate(left[nd:]) for e in range(4)]
        later = [grp(R("a", 128 + 4 * n, 4), off) for n, (r, off) in enumerate(left[nd:])]
        consts = L(f"v_mov_b32 v{A.vX + 5}, {2 if direct or vt else 4}\nv_or_b32 v{A.vRL + 1}, s{sNC}, v{A.vL16}") + ZZ()
        qst = [[I(f"s_add_u32 s3, s{A.sQ}, {(n >> 2) * 4096}"),
                I(f"buffer_store_dwordx4 a[{4*n}:{4*n+3}], v{A.vRL + 1}, {WSR}, s3 offen offset:{(n & 3) * 1024} sc1", tag="KV3")] for n in range(16)] if vt else []
        nq = int(opt['nq'])
        g = Gaps(qk_mfmas(fl, "zero"))
        weave_reads(g, KSLOT[fl], KSLOT[1 - fl], [("T", KSLOT[1 - fl]), "KVST", "KVM"])
        g.fit(48, side.flag_store(sFL, A.vF0, A.vX + 5))
        weave_dma(g, VSLOT[fl], A.sV, adv_v(), hi=int(opt['w0h']))
        if vt == 0 and OVR:
            consts += L(f"v_min_u32 v{A.vX + 6}, {7 << FSH}, v9"); g.fit(4, I(F2_LOAD))
        if direct + qst[:nq]: put_groups(g, direct + qst[:nq], int(opt['w0l']), 60)
        assert not kvq.seq_fit(g, mask_regs(0), 2 if vt else 0)[1]
        fill_valu(g, park + (SELM() if vt else []), 0, 60)
        xch = [WAITV([("T", KSLOT[fl])], lgkm0=True), I("s_barrier")] + stamp() + rd_batch(KSLOT[fl], 0) + q_from_lds(A.aQ, fl) + consts + [NEED(R("a", 0, 96))] + stamp(26)
        if vt == 1:
            wo = side.wo2_stores()
            for s_ in wo: s_[-1].tag = "KV4"
            later += wo
            mpub = [L(f"s_lshl_b32 s3, s{A.sWAVE}, 10\ns_add_u32 s3, s3, s{A.sPO}\ns_add_u32 s3, s3, {65536 + 4096}") +
                    [I(f"buffer_store_dwordx4 v[{A.vNM + 2}:{A.vNM + 5}], v{A.vRL + 1}, {WSR}, s3 offen sc1", tag="KV3")]]
            null = L(f"s_cmp_lt_u32 s{sJ}, {JC}\ns_cbranch_scc1 L_null\nL_nullr:") if fl else []
            al = mpub + qst[nq:] + later
            dn = [int(x, 36) for x in opt['dn']]; assert sum(dn) == len(al), len(al)
            ws = [al[sum(dn[:n]):sum(dn[:n + 1])] for n in range(4)]
            l3 = dict(tags=["KV3"], post=L(f"v_mov_b32 v{A.vX + 7}, 3") + [side.flag_store(sFL, A.vF0, A.vX + 7)])
            at0 = opt['l3'] == '0'
            assert all(i[-1].tag != "KV3" for w_ in ws[1 if at0 else 3:] for i in w_)
            c.block("kv1", "L_kv1:", out, body, xch, g.flat(), INIT(fl), null, stamp(),
                    win_qk(fl, "L_st8", "L_rt8", groups=ws[0], ghi=int(opt['qhi']))[0],
                    win_pv(fl, groups=ws[1], ghi=int(opt['lhi']), **(l3 if at0 else {})), stamp() if opt['fine'] == '3' else [],
                    win_qk(1 - fl, "L_st9", "L_rt9", groups=ws[2])[0],
                    win_pv(1 - fl, groups=ws[3], ghi=int(opt['lhi']), **({} if at0 else l3),
                           tail=L(f"s_sub_u32 s{A.sIT}, s{A.sIT}, 1\ns_branch {'L_loop_top' if fl else 'L_loop_mid'}")))
        else:
            assert not direct
            c.block("kv0", "L_kv0:", out, body, xch, g.flat(),
                    f"v_cmp_gt_u32 vcc, 3, v{A.vRL}\ns_cbranch_vccnz L_f2s\nL_f2r:" if OVR else "", f"s_cmp_lg_u32 s{sJ}, 0\ns_cbranch_scc1 L_init")
            c.block("mask0", [i for kb in range(4) for qb in range(2) for i in mask_blk(0, kb, qb, inplace=True)], mask_regs(2), PBASE())
            c.block("init", "L_init:", INIT(), stamp(), f"s_cmp_lg_u32 s{A.sIT}, 0\ns_cbranch_scc1 L_loop_mid\ns_branch L_p2")

F1_LOAD = f"buffer_load_dword v24, v25, s[{A.S_WS}:{A.S_WS+3}], s46 offen sc1"
F2_LOAD = f"buffer_load_dword v{A.vRL}, v{A.vX + 6}, s[{A.S_WS}:{A.S_WS+3}], s46 offen sc1"
FL_LOAD = f"buffer_load_dword v{A.vRL}, v9, s[{A.S_WS}:{A.S_WS+3}], s46 offen sc1"
F4_LOAD = f"buffer_load_dword v{A.vX}, v9, s[{A.S_WS}:{A.S_WS+3}], s46 offen sc1"
FP_LOAD = f"buffer_load_dword v{A.vRL}, off, s[{A.S_WS}:{A.S_WS+3}], s47 sc1"
F3_LOAD = f"buffer_load_dword v{A.vRL + 1}, v9, s[{A.S_WS}:{A.S_WS+3}], s46 offen sc1"
WSR = f"s[{A.S_WS}:{A.S_WS+3}]"
ZZ = lambda: [I(f"v_mov_b32 v{A.vP1 + e}, 0") for e in range(4)]
INIT = lambda b=0: zero_O_mfma(mix(init_softmax(b), dma_flat(KSLOT[b], A.sK) + adv_k(), 1, 100), A.vP1)
SELM = lambda: L(f"""
    v_lshrrev_b32 v{A.vT+4}, 8, v{A.vL16}
    v_bfe_u32 v{A.vT+5}, v{A.vL16}, 6, 2
    v_and_b32 v{A.vT+6}, 16, v{A.vL16}
    v_lshlrev_b32 v{A.vT+6}, v{A.vT+6}, v{A.vT+3}
    v_cmp_eq_u32 vcc, v{A.vT+4}, v{A.vT+5}
    v_and_b32 v{A.vT+7}, 32, v{A.vL16}
    v_accvgpr_write_b32 a224, 0
    v_accvgpr_write_b32 a232, -1
    v_accvgpr_write_b32 a233, -1
    v_accvgpr_write_b32 a234, -1
    v_accvgpr_write_b32 a235, -1
    v_cndmask_b32 v{A.vT+6}, 0, v{A.vT+6}, vcc
    v_cmp_eq_u32 vcc, 0, v{A.vT+7}
    v_accvgpr_write_b32 a225, 0
    v_accvgpr_write_b32 a228, 0
    v_cndmask_b32 v{A.vT+4}, 0, v{A.vT+6}, vcc
    v_sub_u32 v{A.vT+5}, v{A.vT+6}, v{A.vT+4}
    v_accvgpr_write_b32 a229, 0
    v_accvgpr_write_b32 a226, v{A.vT+4}
    v_accvgpr_write_b32 a227, v{A.vT+5}
    """.replace("    v_lshrrev_b32", f"    v_mov_b32 v{A.vT+3}, 0x3f80\n    v_lshrrev_b32", 1))
MPRE = lambda: L(f"""
    s_sub_u32 s94, s{sJ}, 8
    s_and_b32 s94, s94, {side.OOB}
    s_add_u32 s94, s94, s{A.sOP}
    s_add_u32 s94, s94, 10240
    s_add_u32 s95, s94, 14336
    """)
PBASE = lambda: L(f"""
    s_lshl_b32 s86, s{A.sWAVE}, 14
    s_add_u32 s86, s86, s{A.sPO}
    s_add_u32 s87, s86, 4096
    s_add_u32 s88, s86, 8192
    s_add_u32 s89, s86, 12288
    s_lshl_b32 s90, s{A.sWAVE}, 10
    s_add_u32 s90, s90, s{A.sPO}
    s_add_u32 s90, s90, 65536
    """)

def build_att(c):
    fs = (lambda: stamp()) if opt['fine'] == '3' else (lambda: [])
    WI.update(nr=int(opt['wi'][0]), nd=int(opt['wi'][1]), noadd=int(opt['wi'][2]))
    X.update(nodma=int(opt['xl'][0]), nobar=int(opt['xl'][1]), rp=int(opt['xl'][2]), dp=int(opt['xl'][3]))
    c.block("loop_top", ".p2align 6\nL_loop_top:", fs(), win_qk(1, "L_st1", "L_rt1", extra=[side.touch(0, 60, 0, nt=False)] if opt['tl'] == '1' else [])[0], win_pv(1))
    c.block("loop_mid", "L_loop_mid:", fs(), win_qk(0, "L_st0", "L_rt0", head=L(f"s_bitcmp1_b32 s{sMLD}, s{A.sCHK}\ns_cbranch_scc1 L_fll\nL_fllr:"))[0],
            win_pv(0, tail=L(f"s_sub_u32 s{A.sIT}, s{A.sIT}, 1\ns_cmp_lg_u32 s{A.sIT}, 0\ns_cbranch_scc1 L_loop_top"), tags=["KV4"],
                   chk=L(f"""v_cmp_gt_u32 vcc, s{A.sREQ}, v{A.vRL}
                   s_cbranch_vccnz L_fls0
                   L_flr0:
                   s_mov_b32 s{A.sREQ}, 0
                   s_bitcmp1_b32 s{sMPB}, s{A.sCHK}
                   s_cbranch_scc1 L_fl4
                   L_fl4r:
                   s_add_u32 s{A.sCHK}, s{A.sCHK}, 1""")))
    X.update(nodma=0, nobar=0, rp=int(opt['xa'][0]), dp=int(opt['xa'][1]))
    pbase = PBASE
    pchk = lambda n: L(f"v_cmp_ne_u32 vcc, 1, v{A.vRL}\ns_cbranch_vccnz L_fps{n}\nL_fpr{n}:")
    ploads = lambda: [I(f"buffer_load_dwordx4 v[{A.vX+4}:{A.vX+7}], v{A.vL16}, {WSR}, s90 offen sc1")] + [
        I(f"buffer_load_dwordx4 a[{A.aX + 4*j}:{A.aX + 4*j + 3}], v{A.vL16}, {WSR}, s{86 + j // 4} offen offset:{(j & 3) * 1024} sc1") for j in range(16)]
    SENT = opt['sent'] == '1'
    n1 = int(opt['n1']); LATE = opt['late'] == '1'
    c.block("p1", "L_p1:", stamp(), f"s_cmp_eq_u32 s{sMODE}, 0\ns_cbranch_scc1 L_final_h\ns_mov_b32 s{A.sV}, s{sVD}", "" if LATE else FP_LOAD,
            win_qk(1, "L_st5", "L_rt5", masked=True, scal=pbase())[0], fs(), "" if LATE else f"s_cmp_ge_u32 s{sJ}, {JC}\ns_cbranch_scc1 L_p1c")
    mark = [[I(f"buffer_store_dwordx4 a[232:235], v{A.vL16}, {WSR}, s{94 + (n >> 2)} offen offset:{(n & 3) * 1024} sc1")] for n in range(8)] if False else []
    c.block("p1n", win_pv(1, scal=mask_regs(2), groups=mark, ghi=60), fs())
    c.block("p2", "L_p2:", f"s_cmp_lt_u32 s{A.sWAVE}, 2\ns_cbranch_scc1 L_e")
    fbar = lambda: stamp(26) + [WAITV([("T", 0)], lgkm0=True), I("s_barrier")] + rd_batch(0, 0)
    c.block("p2b", win_qk(0, "L_st6", "L_rt6", masked=True)[0], fs(), "" if LATE else f"s_cmp_ge_u32 s{sJ}, {JC}\ns_cbranch_scc1 L_p2c")
    c.block("p2n", win_pv(0, groups=[L(F3_LOAD)] + ([L(FP_LOAD)] if LATE else []), glo=int(opt['fpg'])), fbar(), f"s_cmp_le_u32 s{sJ}, {15 - JC}\ns_cbranch_scc1 L_final_k",
            f"s_cmp_ge_u32 s{sJ}, {JC}\ns_cbranch_scc1 L_final_c" if LATE else "")
    lfin = lambda: xlane("v_add_f32", A.vLS, A.vX) + xlane("v_add_f32", A.vLS + 1, A.vX + 1) + L(f"v_rcp_f32 v{A.vRL}, v{A.vLS}\nv_rcp_f32 v{A.vRL+1}, v{A.vLS+1}")
    w2a = lambda: L(f"s_add_u32 s{A.sVn}, s{A.sVn}, 32768")
    w2 = lambda: dma_flat(2, A.sVn) + w2a()
    def cvt_weave(g, extra=None, pre=()):
        k = 0; rest = []
        if pre: k, rest = kvq.seq_fit(g, list(pre), 0, 1)
        for ks in range(8):
            for qb in range(2):
                ins = cvt_ctx(ks, qb) + (extra(ks, qb) if extra else [])
                if rest: rest += ins; continue
                k, rest = kvq.seq_fit(g, ins, max(k, 8 * ks + 5 + 2 * qb + 4))
        return rest
    g = Gaps(pv_mfmas(1))
    weave_reads(g, 0, 3, [("T", 3)])
    weave_dma(g, 2, A.sVn, w2a())
    rest = cvt_weave(g, pre=add_l(1) + lfin())
    c.block("final_o", softmax_half(1, 1))
    c.block("final_o2", "L_final_o2:", check(1, "L_st2"), "L_rt2:", NEED(R("a", Freg(0, 0), 32), R("v", A.vRL, 2)), stamp(), g.flat(), rest, stamp(), "s_branch L_op1")
    def cmf():
        return [mfma(R("v", Oreg(2 * ks + hf, qb), 4), R("a", 226 - 2 * hf, 4), R("a", A.aX + (qb * 8 + ks) * 4, 4), R("v", Oreg(2 * ks + hf, qb), 4))
                for qb in range(2) for ks in range(8) for hf in range(2)]
    ctest = lambda n: [NEED(R("a", A.aX, 64), R("v", A.vX + 4, 4))] + L(f"""
    v_cmp_neq_f32 vcc, v{A.vNM}, v{A.vX+4}
    v_cmp_neq_f32 s[64:65], v{A.vNM+4}, v{A.vX+5}
    s_or_b64 vcc, vcc, s[64:65]
    s_cbranch_vccnz L_cg{n}
    v_add_f32 v{A.vLS}, v{A.vX+6}, v{A.vLS}
    v_add_f32 v{A.vLS+1}, v{A.vX+7}, v{A.vLS+1}
    """)
    cvall = lambda: [i for qb in range(2) for ks in range(8) for i in cvt_ctx(ks, qb)]
    if not LATE:
        g = Gaps(cmf())
        k, left = kvq.seq_fit(g, softmax_half(1, 1), 0)
        pl = ploads(); pl = pl[1:] + pl[:1]
        c.block("p1c", "L_p1c:", pchk(0), win_pv(1, scal=mask_regs(2), groups=[[i] for i in pl[:n1]], ghi=60), fs(), "s_branch L_p2")
        c.block("p2c", "L_p2c:", win_pv(0, groups=[[i] for i in pl[n1:]], ghi=int(opt['c2h'])), fbar(), ctest(0), g.flat(), left, "s_branch L_final_o2")
    else:
        nl = int(opt['nl']); pl = ploads()
        g = Gaps(pv_mfmas(1))
        weave_reads(g, 0, 3, [("T", 3)])
        k = put_groups(g, [[i] for i in pl[nl:]], 0, 36)
        weave_dma(g, 2, A.sVn, w2a(), lo=k + 3, hi=62)
        fill_valu(g, add_l(1), 0, 4)
        c.block("final_c", "L_final_c:", pchk(0), mix(softmax_half(1, 1), pl[:nl], 0), check(1, "L_st10"), "L_rt10:", NEED(R("a", Freg(0, 0), 32)), stamp(26), g.flat())
        g = Gaps(cmf())
        ct = ctest(0); ct[0] = NEED(R("v", A.vX + 4, 4), R("a", A.aX, 32))
        g.put_s(15, NEED(R("a", A.aX + 32, 16))); g.put_s(23, NEED(R("a", A.aX + 48, 16)))
        k, left = kvq.seq_fit(g, lfin(), 0)
        cv = cvall()
        for n in range(16):
            if left: left += cv[4 * n:4 * n + 4]
            else: k, left = kvq.seq_fit(g, cv[4 * n:4 * n + 4], max(k, 2 * n + 5))
        c.block("lc", "L_lc:", ct, g.flat(), left, stamp())
    comb = L(f"""
    L_comb:
    v_sub_f32 v{A.vX}, v{A.vNM}, v{A.vX+4}
    v_sub_f32 v{A.vX+1}, v{A.vNM+4}, v{A.vX+5}
    v_max_f32 v{A.vX}, 0, v{A.vX}
    v_max_f32 v{A.vX+1}, 0, v{A.vX+1}
    """) + sub_S(1) + rescale_state() + softmax_half(1, 0) + softmax_half(1, 1) + L(f"""
    v_sub_f32 v{A.vX}, v{A.vNM}, v{A.vX+4}
    v_sub_f32 v{A.vX+1}, v{A.vNM+4}, v{A.vX+5}
    v_cvt_i32_f32 v{A.vX}, v{A.vX}
    v_cvt_i32_f32 v{A.vX+1}, v{A.vX+1}
    v_ldexp_f32 v{A.vX}, 1.0, v{A.vX}
    v_ldexp_f32 v{A.vX+1}, 1.0, v{A.vX+1}
    v_and_b32 v{A.vX}, 0xffff0000, v{A.vX}
    v_and_b32 v{A.vX+1}, 0xffff0000, v{A.vX+1}
    v_fmac_f32 v{A.vLS}, v{A.vX}, v{A.vX+6}
    v_fmac_f32 v{A.vLS+1}, v{A.vX+1}, v{A.vX+7}
    v_lshrrev_b32 v{A.vX+2}, 16, v{A.vX}
    v_lshrrev_b32 v{A.vX+3}, 16, v{A.vX+1}
    """)
    n = 0
    for qb in range(2):
        for ks in range(8):
            for w in range(4):
                t = A.vT + (n % 8); n += 1
                o = Oreg(2 * ks + (w >> 1), qb) + 2 * (w & 1)
                comb += L(f"""v_accvgpr_read_b32 v{t}, a{A.aX + (qb * 8 + ks) * 4 + w}
                v_dot2c_f32_bf16 v{o}, v{t}, v{A.vX + 2 + qb}
                v_dot2c_f32_bf16 v{o+1}, v{t}, v{A.vX + qb}""")
    comb += L(f"""s_nop 2
    s_setpc_b64 s[{A.sRET}:{A.sRET+1}]
""") + (L(f"""
    L_cg0:
    s_call_b64 s[{A.sRET}:{A.sRET+1}], L_comb
    s_branch L_final_o2
    L_cg1:
    s_call_b64 s[{A.sRET}:{A.sRET+1}], L_comb
    s_branch L_e_o""") if not LATE else L(f"L_cg0:\ns_waitcnt vmcnt(0)\ns_nop 7\ns_call_b64 s[{A.sRET}:{A.sRET+1}], L_comb") + lfin() + cvall() + L("s_nop 1\ns_branch L_op1"))
    slots = [3, 1, 2, 0, 3, 1, 2]
    def op_out(j, split=False):
        b = j & 1
        ins = L(f"s_add_u32 s{A.sT0}, s{A.sOP}, {2 * j * 1024}\ns_add_u32 s{A.sT1}, s{A.sOP}, {14336 + 2 * j * 1024}")
        for pp in range(2):
            if split and pp == 1: ins.append(64)
            for qb in range(2):
                a, d = Sreg(b, 2 * pp, qb), Sreg(b, 2 * pp + 1, qb)
                ins += [I(f"v_mul_f32 v{r + e}, v{A.vRL + qb}, v{r + e}") for r in (a, d) for e in range(4)]
                ins += L(f"""v_cvt_pk_bf16_f32 v{a}, v{a}, v{a+1}
                v_cvt_pk_bf16_f32 v{a+1}, v{a+2}, v{a+3}
                v_cvt_pk_bf16_f32 v{a+2}, v{d}, v{d+1}
                v_cvt_pk_bf16_f32 v{a+3}, v{d+2}, v{d+3}""")
                ins.append(I(f"buffer_store_dwordx4 v[{a}:{a+3}], v{A.vL16}, {WSR}, s{A.sT0 + qb} offen offset:{pp * 1024} sc1", tag=("OP", j)))
        return ins
    fop = lambda: L(f"""
    s_sub_u32 s64, 15, s{sJ}
    s_min_u32 s64, s64, s{sJ}
    s_mul_i32 s{sFL}, s64, {2 * FSTR}
    s_and_b32 s64, s{sJ}, 8
    s_lshl_b32 s64, s64, 1
    s_add_u32 s64, s64, s{sH}
    s_lshl_b32 s64, s64, 2
    s_add_u32 s{sFL}, s{sFL}, s64
    s_add_u32 s{sFL}, s{sFL}, {WS_FOP}
    {f'''s_lshr_b32 s64, s{A.sWAVE}, 1
    s_mul_i32 s64, s64, {FSTR}
    s_add_u32 s{sFL}, s{sFL}, s64
    s_and_b32 s64, s{A.sWAVE}, 1
    s_lshl_b32 s64, s64, 9''' if side.EPAR < 2 else f"s_lshl_b32 s64, s{A.sWAVE}, 8"}
    s_add_u32 s{sFL}, s{sFL}, s64
    s_add_u32 s3, s{sFL}, {128 if side.EPAR < 2 else FSTR}
    v_lshrrev_b32 v{A.vX + 7}, 5, v{A.vL16}
    v_min_u32 v{A.vX + 7}, 1, v{A.vX + 7}
    v_lshlrev_b32 v{A.vX + 6}, {4 if side.EPAR < 2 else 3}, v{A.vL16}
    v_lshl_or_b32 v{A.vX + 6}, v{A.vX + 7}, 29, v{A.vX + 6}
    v_mov_b32 v{A.vX + 5}, 1
    """)
    def dbgst():
        if opt['dbgst'] != '1': return []
        o = f"""
        s_load_dwordx2 s[72:73], s[0:1], {A_DBG}
        v_accvgpr_read_b32 v11, a{aST+1}
        v_lshrrev_b32 v12, 4, v{A.vL16}
        v_mov_b32 v13, {side.OOB}
        s_waitcnt lgkmcnt(0)
        {srd(68, 72, 256)}
        s_cmp_eq_u32 s{sJ}, 0
        s_cselect_b32 s64, 0, {side.OOB}
        s_cmp_eq_u32 s{sJ}, 15
        s_cselect_b32 s65, 0, {side.OOB}
        """
        for n, ln in enumerate((3, 5, 6, 7, 14, 18)):
            o += f"s_add_u32 s66, s64, {4 * (2 + n)}\nv_cmp_eq_u32 vcc, {ln}, v12\nv_mov_b32 v14, s66\ns_nop 1\nv_cndmask_b32 v13, v13, v14, vcc\n"
        o += f"buffer_atomic_umax v11, v13, s[68:71], 0 offen\nv_mov_b32 v13, {side.OOB}\n"
        for n, ln in enumerate((3, 5, 6, 7, 10, 14)):
            o += f"s_add_u32 s66, s65, {4 * (8 + n)}\nv_cmp_eq_u32 vcc, {ln}, v12\nv_mov_b32 v14, s66\ns_nop 1\nv_cndmask_b32 v13, v13, v14, vcc\n"
        o += f"""buffer_atomic_umax v11, v13, s[68:71], 0 offen
        s_sub_u32 s66, s{sSTK}, 1
        v_mov_b32 v13, {side.OOB}
        v_cmp_eq_u32 vcc, s66, v12
        v_mov_b32 v14, 4
        s_nop 1
        v_cndmask_b32 v13, v13, v14, vcc
        buffer_atomic_umax v11, v13, s[68:71], 0 offen
        v_not_b32 v11, v11
        v_min_u32 v13, 1, v12
        v_lshlrev_b32 v13, 29, v13
        s_nop 1
        buffer_atomic_umax v11, v13, s[68:71], 0 offen
        s_waitcnt vmcnt(0)
        """
        return L(o)
    fin = lambda: (L("s_mov_b64 exec, -1\ns_waitcnt vmcnt(0)") + stamp(30) + L(f"""
        s_lshl_b32 s{A.sT0}, s2, 2
        s_add_u32 s{A.sT0}, s{A.sT0}, s{A.sWAVE}
        s_lshl_b32 s{A.sT0}, s{A.sT0}, 9
        s_add_u32 s{A.sT0}, s{A.sT0}, {WS_STAMP}
        v_lshrrev_b32 v10, 1, v{A.vL16}
        buffer_store_dwordx2 a[{aST}:{aST+1}], v10, {WSR}, s{A.sT0} offen
        """) + dbgst()) if STAMP else []
    def last_reads(g, slot):
        for b in range(1, 4):
            for f, r in enumerate(rd_batch(slot, b)): g.put((b - 1) * 16 + RPAT[0][f], r)
            g.put_s(b * 16 - 1, NEED(R("a", Freg(b, 0), 32)))
    ctx_v = lambda qb, ks: R("v", Oreg(2 * ks, qb), 4)
    ctx_a = lambda qb, ks: R("a", A.aX + (qb * 8 + ks) * 4, 4)
    os_ = lambda: stamp(30) if opt['fine'] == '4' else []
    pub = lambda: L(f"s_waitcnt vmcnt(0)\nbuffer_store_dword v{A.vX + 5}, v{A.vX + 6}, {WSR}, s{sFL if side.EPAR & 1 else 3} offen sc1") + stamp(30)
    def outproj(tag, ctx, first=(), tags0=(), post0=()):
        ow = []
        for j in range(7):
            g = Gaps(qk_mfmas(j & 1, "zero", breg=ctx))
            if j < 6: weave_reads(g, slots[j], slots[j + 1], [("T", slots[j + 1])] + (list(tags0) if j == 0 else []))
            else: last_reads(g, slots[j])
            if j == 0:
                for i in post0: g.fit(48, i)
            if j == 0 and tag == 0 and OVR:
                k = weave_dma(g, 2, A.sVn, w2a(), 1, 30); weave_dma(g, 0, A.sVn, w2a(), k + 1, 62)
            elif j + 3 < 7: weave_dma(g, slots[j + 3], A.sVn, w2a(), 1, int(opt['odh']))
            if j == 0: assert not kvq.seq_fit(g, fop() + list(first) + side.sel_a(A.vL16), 2)[1]
            if j in (4, 5): assert not kvq.seq_fit(g, {4: side.sel_b(tag), 5: side.sel_c()}[j], 40 if j == 5 else 2)[1]
            if j == (side.NE - 1) // 2 + 2:
                assert not kvq.seq_fit(g, [WAITV([("OP", j - 2)]), I(f"buffer_store_dword v{A.vX + 5}, v{A.vX + 6}, {WSR}, s{3 if side.EPAR & 1 else sFL} offen sc1")], 52)[1]
            if j == 6 and tag == 1 and SENT:
                assert not kvq.seq_fit(g, L(f"s_or_b32 s64, s{sNC}, s{sFL if side.EPAR & 1 else 3}") +
                                       [WAITV([("OP", 4)]), I(f"buffer_store_dword v{A.vX + 5}, v{A.vX + 6}, {WSR}, s64 offen sc1")], int(opt['sg']))[1]
            if j > 0: k = fill_valu(g, op_out(j - 1), 3, 58 if j < 6 else 36)
            if j == 6: k, last = kvq.seq_fit(g, op_out(6, True), max(k, 38))
            ow += g.flat() + os_()
        end = pub()
        if tag == 1 and SENT:
            end = L(f"s_cmp_ge_u32 s{sJ}, {JC}\ns_cbranch_scc1 L_pv") + end[:2] + L("L_pv:") + end[2:]
            for i in end[2:4]: i.text += " ; ignore"
        return ow + stamp(30) + [i for i in last if not isinstance(i, int)] + end
    c.block("op1", "L_op1:", outproj(1, ctx_v), f"s_cmp_lt_u32 s{sJ}, 8\ns_cbranch_scc1 L_red")
    c.block("end1", fin(), "s_endpgm")
    qld = lambda: L(f"s_add_u32 s76, s90, 4096\nbuffer_load_dwordx4 v[{A.vX+4}:{A.vX+7}], v{A.vL16}, {WSR}, s76 offen sc1") + [I(f"buffer_load_dwordx4 a[{4*n}:{4*n+3}], v{A.vL16}, {WSR}, s{72 + n // 4} offen offset:{(n & 3) * 1024} sc1") for n in range(16)]
    hset = lambda n: L(f"""
    v_cmp_gt_u32 vcc, 3, v{A.vRL + 1}
    s_sub_u32 s{A.sIT}, {16 - JC - ODD}, s{sJ}
    s_cbranch_vccnz L_f3s{n}
    L_f3r{n}:
    {f'''s_lshl_b32 s{A.sK}, s{sH}, 20
    s_add_u32 s{A.sK}, s{A.sK}, {(XS - 2) * 32768}
    s_add_u32 s{A.sV}, s{A.sK}, {WS_V - WS_K}
    s_lshl_b32 s{A.sKcnt}, s{A.sIT}, 1
    s_add_u32 s{A.sKcnt}, s{A.sKcnt}, {ODD}
    s_mov_b32 s{A.sKn1}, s{A.sKn2}''' if not OVR else f'''
    s_lshl_b32 s{A.sV}, s{sH}, 20
    s_add_u32 s{A.sV}, s{A.sV}, {WS_V + (XS - 2) * 32768}''' if not ODD else f'''
    s_add_u32 s{A.sV}, s{A.sKn2}, {WS_V - WS_K}
    s_add_u32 s{A.sK}, s{A.sKn2}, 65536
    s_sub_u32 s{A.sKn1}, s{A.sVn}, 65536
    s_sub_u32 s64, s{A.sVn}, 32768
    s_lshl_b32 s{A.sKcnt}, s{A.sIT}, 1
    s_sub_u32 s{A.sKcnt}, s{A.sKcnt}, 1
    s_cselect_b32 s{A.sK}, s64, s{A.sK}'''}
    s_mov_b32 s{sMODE}, 0
    s_max_u32 s{A.sCHK}, s{A.sCHK}, 3
    s_mov_b32 s72, s{A.sQ}
    s_add_u32 s73, s72, 4096
    s_add_u32 s74, s72, 8192
    s_add_u32 s75, s72, 12288
    """)
    g = Gaps(pv_mfmas(1))
    k0s, k1s = KSLOT[ODD], KSLOT[1 - ODD]
    weave_reads(g, 0, k0s, [("T", k0s)])
    q_ = qld()
    kd = lambda s_: [] if OVR else dma_flat(s_, A.sK) + adv_k()
    put_groups(g, [[i] for i in q_[6:]], 0, 40)
    rest = cvt_weave(g, pre=add_l(1) + lfin())
    c.block("final_k", "L_final_k:", hset(0), mix(softmax_half(1, 1), kd(k0s) + q_[:6], 0), check(1, "L_st11"), "L_rt11:",
            NEED(R("a", Freg(0, 0), 32), R("v", A.vRL, 2)), stamp(26), g.flat(), rest if OVR else mix(rest, kd(k1s), 1), stamp(26))
    parkc = [I(f"v_accvgpr_write_b32 a{A.aX + (qb * 8 + ks) * 4 + e}, v{Oreg(2 * ks, qb) + e}") for qb in range(2) for ks in range(8) for e in range(4)]
    parkc += L(f"v_accvgpr_write_b32 a192, v{A.vRL}\nv_accvgpr_write_b32 a193, v{A.vRL + 1}")
    g = Gaps(qk_mfmas(ODD, "nm"))
    weave_reads(g, k0s, k1s, [("T", k1s)])
    weave_dma(g, VSLOT[ODD], A.sV, adv_v(), *((1, 30) if SENT else ()))
    if SENT:
        mk = L(f"""s_lshl_b32 s94, s{sJ}, 1
        s_sub_u32 s94, 15, s94
        s_mul_i32 s94, s94, {16 * OP_HEAD}
        s_add_u32 s94, s94, s{A.sOP}
        s_add_u32 s94, s94, 10240
        s_add_u32 s95, s94, 14336""") + [I(f"v_mov_b32 v{A.vT + e}, -1") for e in range(4)]
        ms = [I(f"buffer_store_dwordx4 v[{A.vT}:{A.vT + 3}], v{A.vL16}, {WSR}, s{94 + (n >> 2)} offen offset:{(n & 3) * 1024} sc1") for n in range(8)]
        link(mk + ms); assert not kvq.seq_fit(g, mk, 2)[1]
        put_groups(g, [[i] for i in ms], 31, 62)
    fill_valu(g, parkc + ZZ(), 0, 62)
    inith = L(f"v_mov_b32 v{A.vLS}, 0\nv_mov_b32 v{A.vLS + 1}, 0") + softmax_half(ODD, 0)
    c.block("w0h", "L_w0h:", [I(f"v_mov_b32 v{A.vNM + r}, v{A.vX + 4 + 2 * (r >> 2)}") for r in range(8)], NEED(R("a", 0, 64)), g.flat(),
            zero_O_mfma(mix(inith, dma_flat(KSLOT[ODD], A.sK) + adv_k(), 1), A.vP1), stamp(),
            f"s_cmp_lg_u32 s{A.sIT}, 0\ns_cbranch_scc1 L_loop_top" if ODD else "s_branch L_loop_mid")
    pst = lambda ks, qb: [I(f"buffer_store_dwordx4 v[{Oreg(2*ks, qb)}:{Oreg(2*ks, qb)+3}], v{A.vL16}, {WSR}, s{86 + (qb*8+ks) // 4} offen offset:{(ks & 3) * 1024} sc1", tag="PST")]
    g = Gaps(pv_mfmas(1))
    weave_reads(g, 0, 3, [("T", 3)])
    rest = cvt_weave(g, pst)
    c.block("final_h", "L_final_h:", WAITV([("T", 0)], lgkm0=True), "s_barrier", rd_batch(0, 0), softmax_half(1, 1) if OVR else mix(softmax_half(1, 1), w2(), 1), check(1, "L_st4"), "L_rt4:", add_l(1), f"""
    v_mov_b32 v{A.vX+2}, v{A.vNM}
    v_mov_b32 v{A.vX+3}, v{A.vNM+4}
    v_mov_b32 v{A.vX+4}, v{A.vLS}
    v_mov_b32 v{A.vX+5}, v{A.vLS+1}
    buffer_store_dwordx4 v[{A.vX+2}:{A.vX+5}], v{A.vL16}, {WSR}, s90 offen sc1
    """, NEED(R("a", Freg(0, 0), 32)), stamp(), g.flat(), rest, stamp())
    c.block("op0", outproj(0, ctx_a, L(f"v_accvgpr_read_b32 v{A.vRL}, a192\nv_accvgpr_read_b32 v{A.vRL + 1}, a193"), ["PST"], [side.flag_store(47, A.vF0, A.vX + 5)]))
    rm, far = side.red_main(A.vL16, lambda: stamp(30), int(opt['lag']), opt['early'] == '1', SENT)
    c.block("red", "L_red:", side.red_a(A.vL16), rm, fin(), "s_endpgm")
    c.block("redfar", far)
    c.block("rpoll", side.red_poll())
    g = Gaps(pv_mfmas(0))
    weave_reads(g, 2, None, [("T", 3)])
    weave_dma(g, 1, A.sK, adv_k(), hi=38)
    g.fit(int(opt['fpg']), I(F3_LOAD))
    if LATE: g.fit(int(opt['fpg']), I(FP_LOAD))
    c.block("e", "L_e:", mix(softmax_half(0, 1), dma_flat(0, A.sV), 1), check(0, "L_st7"), "L_rt7:", add_l(0),
            f"s_cmp_eq_u32 s{sJ}, {opt['jy']}\ns_cbranch_scc1 L_yred\nL_yred_ret:", "" if LATE else f"s_cmp_lt_u32 s{sJ}, {JC}\ns_cbranch_scc1 L_e2")
    pl = ploads(); pl = pl[1:] + pl[:1]
    if not LATE: c.block("e_l", pl[n1:])
    c.block("e2", "L_e2:", WAITV([("T", 2)], lgkm0=True), "s_barrier",
            rd_batch(2, 0), NEED(R("a", Freg(0, 0), 32)), g.flat(), stamp(26), WAITV([("T", 0)], lgkm0=True), "s_barrier",
            f"s_cmp_le_u32 s{sJ}, {15 - JC}\ns_cbranch_scc1 L_e_k\ns_cmp_lt_u32 s{sJ}, {JC}\ns_cbranch_scc1 L_e_o")
    eb = lambda s=3: [WAITV([("T", s)]), I("s_barrier")] + rd_batch(s, 0) + [NEED(R("a", Freg(0, 0), 32))]
    if LATE: c.block("e_c", pchk(1), ploads(), stamp(26), eb(), w2(), "s_branch L_lc")
    else: c.block("e_c", ctest(1), cmf())
    c.block("e_o", "L_e_o:", stamp(), f"s_cmp_eq_u32 s{sJ}, {opt['jy']}\ns_cbranch_scc1 L_yred2\nL_yred2_ret:", mix(cvall(), w2(), 1), lfin(), eb(), stamp(), "s_branch L_op1")
    c.block("e_k", "L_e_k:", hset(1), stamp(), mix(cvall(), kd(k0s) + qld() + kd(k1s), 1),
            lfin(), eb(k0s), stamp(26), "s_branch L_w0h")
    c.block("comb", comb)
    stubs = ""
    for n, b in ((0, "0"), (1, "1"), (2, "1n"), (4, "1n"), (5, "1"), (6, "0"), (7, "0"), (8, str(ODD)), (9, str(1 - ODD)), (11, "1n")) + (((10, "1n"),) if LATE else ()):
        stubs += f"L_st{n}:\ns_call_b64 s[{A.sRET}:{A.sRET+1}], L_slow{b}\ns_branch L_rt{n}\n"
    c.block("stubs", stubs)
    c.block("slow0", slow_sub(0)); c.block("slow1", slow_sub(1)); c.block("slow1n", slow_sub(1, False))
    c.block("moe", side.red_moe(), side.y_reduce())
    c.block("spins", f"""
    L_fll:
    {FL_LOAD}
    s_cmp_eq_u32 s{A.sCHK}, 1
    s_cselect_b32 s{A.sREQ}, 2, 4
    s_branch L_fllr
    L_fl4:
    v_mov_b32 v{A.vX + 7}, s{sPBV}
    """, side.flag_store(sFL, A.vF0, A.vX + 7), "s_branch L_fl4r\ns_waitcnt vmcnt(0)",
            *[side.spin_stub(f"L_fhs{n}", f"L_fhr{n}", side.FH0_LOAD, 24, 91, "v_cmp_gt_u32 vcc, 4, v{vt}") for n in range(2)],
            *[side.spin_stub(f"L_fps{n}", f"L_fpr{n}", FP_LOAD, A.vRL, 91) for n in range(1 + LATE)],
            *[side.spin_stub(f"L_f3s{n}", f"L_f3r{n}", F3_LOAD, A.vRL + 1, 91, "v_cmp_gt_u32 vcc, 3, v{vt}") for n in range(2)],
            side.spin_stub("L_fls0", "L_flr0", FL_LOAD, A.vRL, 91, f"v_cmp_gt_u32 vcc, s{A.sREQ}, v{{vt}}"))

def early_stubs(c):
    c.block("spins0", "L_null:", [I(f"v_mov_b32 v{r}, 0") for r in list(range(Preg(1, 0, 0), Preg(1, 0, 0) + 8)) + [A.vSUM + 2, A.vSUM + 3]],
            [I(f"v_mov_b32 v{Sreg(1, 2, 0) + r}, v{A.vNEG}") for r in range(16)], f"s_sub_u32 s{A.sV}, s{A.sV}, 32768\ns_branch {'L_nullr' if ODD else 'L_null'}", side.z_stub(0), side.z_stub(1), hw.key_stub(),
            side.spin_stub("L_f2s", "L_f2r", F2_LOAD, A.vRL, 91, "v_cmp_gt_u32 vcc, 3, v{vt}") if OVR else [],
            *[side.spin_stub(f"L_f1s{n}", f"L_f1r{n}", F1_LOAD, 24, 91, "v_cmp_eq_u32 vcc, 0, v{vt}") for n in range(2)])

def paths(c):
    lp = ["loop_top", "loop_mid"]
    red = ["red"]
    cp = (["p1n", "p2", "p2b", "p2n", "final_c", "lc"], ["p1n", "p2", "e", "e2", "e_c", "lc"]) if opt['late'] == '1' else (["p1c", "p2", "p2b", "p2c", "final_o2"], ["p1c", "p2", "e", "e_l", "e2", "e_c", "e_o"])
    for end in (*cp, ["p1n", "p2", "p2b", "p2n", "final_o", "final_o2"], ["p1n", "p2", "e", "e2", "e_o"]):
        c.path("entry", "kv1", *([] if ODD else ["loop_mid"]), *lp, *lp, "p1", *end, "op1", "end1")
    for end in (["p2", "p2b", "p2n", "final_o", "final_o2"], ["p2", "e", "e2", "e_o"]):
        c.path("entry", "kv0", "init", "loop_mid", *lp, *lp, "p1", "p1n", *end, "op1", *red)
    for end in (["p2", "p2b", "p2n", "final_k"], ["p2", "e", "e2", "e_k"]):
        for own in (["mask0", "init"], ["init", "loop_mid", "p1", "p1n"], ["init", "loop_mid", *lp, "p1", "p1n"], ["init", "loop_mid", *lp, *lp, "p1", "p1n"]):
            for nh in (0, 1, 2):
                c.path("entry", "kv0", *own, *end, "w0h", *([] if ODD else ["loop_mid"]), *(lp * nh), "final_h", "op0", *red)
    for b in ("redfar", "rpoll", "stubs", "slow0", "slow1", "slow1n", "comb", "moe", "spins", "spins0"): c.path(b)

if __name__ == "__main__":
    c = CFG(verbose=int(opt["v"]))
    build_front(c); early_stubs(c); build_att(c); paths(c)
    body = c.finalize()
    kn = NAME + "_kernel"
    print("; @launch grid=(256,1,1) block=(256,1,1) lds=163840")
    print('.amdgcn_target "amdgcn-amd-amdhsa--gfx950"\n.text')
    print(".macro M d, a, b, c\nv_mfma_f32_16x16x32_bf16 \\d, \\a, \\b, \\c\n.endm")
    print(kernel_header(kn))
    print(body.replace("  v_mfma_f32_16x16x32_bf16 ", "M ").replace("\n  ", "\n "))
    print("L_code_end:")
    print('.section .rodata,"a"\n.p2align 6')
    print(kernel_desc(kn, sgpr=102))
```

```python
import re

TRANS = ("v_exp_f32", "v_log_f32", "v_rcp_f32", "v_rsq_f32", "v_sqrt_f32", "v_sin_f32", "v_cos_f32")
_REG = re.compile(r"^(-?)(?:abs\()?([vas])(?:(\d+)|\[(\d+):(\d+)\])\)?$")


def regs_of(tok):
    tok = tok.strip()
    if tok in ("vcc", "exec", "m0", "scc"):
        return [tok]
    if tok in ("vcc_lo", "vcc_hi"):
        return ["vcc"]
    if tok in ("exec_lo", "exec_hi"):
        return ["exec"]
    m = _REG.match(tok.replace("|", ""))
    if not m:
        return []
    k = m.group(2)
    if m.group(3) is not None:
        return [k + m.group(3)]
    return [k + str(i) for i in range(int(m.group(4)), int(m.group(5)) + 1)]


def R(kind, lo, n=1):
    return f"{kind}{lo}" if n == 1 else f"{kind}[{lo}:{lo + n - 1}]"


BARX = True
VM2 = True
VMX = True


class Inst:
    __slots__ = ("text", "op", "kind", "reads", "writes", "tag", "srcc", "srcab", "extra")

    def __init__(self, text, tag=None, **extra):
        self.text = text.strip()
        self.tag = tag
        self.extra = extra
        self.srcc = []
        self.srcab = []
        self.parse()

    def parse(self):
        t = self.text.split(";")[0].strip()
        if t.endswith(":") or t.startswith("."):
            self.op, self.kind, self.reads, self.writes = t, "label", [], []
            return
        parts = t.split(None, 1)
        op = parts[0]
        self.op = op
        ops = []
        mods = ""
        if len(parts) > 1:
            depth = 0
            cur = ""
            for ch in parts[1]:
                if ch in "[(":
                    depth += 1
                if ch in "])":
                    depth -= 1
                if ch == "," and depth == 0:
                    ops.append(cur.strip())
                    cur = ""
                else:
                    cur += ch
            last = cur.strip().split(None, 1)
            if last:
                ops.append(last[0])
                mods = last[1] if len(last) > 1 else ""
        rd, wr = [], []
        allr = [regs_of(o) for o in ops]
        flat = lambda ls: [r for l in ls for r in l]
        if op.startswith("v_mfma"):
            kind = "mfma"
            wr = allr[0]
            self.srcab = allr[1] + allr[2]
            self.srcc = allr[3]
            rd = flat(allr[1:])
        elif op.startswith("ds_read") or op.startswith("ds_bpermute") or op.startswith("ds_swizzle") or op.startswith("ds_permute"):
            kind = "dsr"
            wr = allr[0]
            rd = flat(allr[1:])
        elif op.startswith("ds_"):
            kind = "dsw"
            rd = flat(allr)
        elif op.startswith("buffer_load") or op.startswith("global_load"):
            if " lds" in " " + mods or "_lds_" in op:
                kind = "dma"
                rd = flat(allr) + ["m0"]
            else:
                kind = "vld"
                wr = allr[0]
                rd = flat(allr[1:])
        elif op.startswith("buffer_store") or op.startswith("global_store"):
            kind = "vst"
            rd = flat(allr)
        elif op.startswith("buffer_atomic") or op.startswith("global_atomic"):
            if "sc0" in mods:
                kind = "vld"
                wr = allr[0]
                rd = flat(allr)
            else:
                kind = "vst"
                rd = flat(allr)
        elif op in ("buffer_inv", "buffer_wbl2"):
            kind = "vst"
        elif op.startswith("s_load") or op in ("s_memtime", "s_memrealtime"):
            kind = "smem"
            wr = allr[0]
            rd = flat(allr[1:])
        elif op.startswith("v_"):
            base = op.replace("_e32", "").replace("_e64", "").replace("_dpp", "").replace("_sdwa", "")
            kind = "trans" if base in TRANS else "valu"
            wr = list(allr[0])
            rd = flat(allr[1:])
            if base.startswith("v_permlane") and "swap" in base:
                wr = allr[0] + allr[1]
                rd = allr[0] + allr[1]
            if base in ("v_fmac_f32", "v_dot2c_f32_bf16", "v_writelane_b32", "v_pk_fmac_f16") or "row_" in mods or "quad_perm" in mods:
                rd = rd + allr[0]
            if base in ("v_add_co_u32", "v_sub_co_u32", "v_addc_co_u32"):
                wr = allr[0] + allr[1]
                rd = flat(allr[2:])
            if base.startswith("v_cmpx"):
                wr = wr + ["exec"]
            self.extra["dpp"] = ("row_" in mods or "quad_perm" in mods)
        elif op in ("s_waitcnt", "s_nop", "s_barrier", "s_sleep", "s_setprio", "s_endpgm"):
            kind = "sctl"
        elif op.startswith("s_cbranch") or op in ("s_branch", "s_setpc_b64", "s_swappc_b64", "s_call_b64"):
            kind = "branch"
            rd = flat(allr)
            if "vcc" in op:
                rd = rd + ["vcc"]
            if op == "s_swappc_b64":
                wr = allr[0]
        elif op.startswith("s_cmp") or op.startswith("s_bitcmp"):
            kind = "salu"
            rd = flat(allr)
        elif op.startswith("s_"):
            kind = "salu"
            wr = allr[0] if allr else []
            rd = flat(allr[1:])
            if "saveexec" in op:
                wr = wr + ["exec"]
                rd = rd + ["exec"]
            if op in ("s_addk_i32", "s_mulk_i32"):
                rd = rd + wr
        elif op in ("NEED", "WAITV"):
            kind = "pseudo"
            rd = []
            self.extra["regs"] = flat(allr)
        else:
            raise ValueError("cannot parse: " + self.text)
        self.kind, self.reads, self.writes = kind, rd, wr

    def slots(self):
        if self.kind in ("label", "mfma"):
            return (0, 0)
        if self.kind == "trans" or (VM2 and self.kind in ("dma", "vld", "vst")):
            return (2, 0)
        if self.kind in ("valu", "dsr", "dsw", "dma", "vld", "vst"):
            return (1, 0)
        return (0, 1)

    def __repr__(self):
        return self.text


def I(text, **kw):
    return Inst(text, **kw)


def NEED(*regtexts):
    return Inst("NEED " + ", ".join(regtexts))


def WAITV(tag, lgkm0=False):
    i = Inst("WAITV")
    i.tag = tag
    i.extra["lgkm0"] = lgkm0
    return i


_NO_SCC = ("s_mov", "s_mul_i32", "s_cselect", "s_getpc", "s_movk", "s_getreg", "s_mul_hi", "s_cmov", "s_ff1", "s_bitset")
def writes_scc(i):
    return i.kind == "salu" and not i.op.startswith(_NO_SCC)
def reads_scc(i):
    return i.op.startswith(("s_cselect", "s_cbranch_scc", "s_addc", "s_subb", "s_cmov"))


def L(text):
    out = []
    last = None
    for line in text.split("\n"):
        line = line.strip()
        if line and not line.startswith(";"):
            i = Inst(line)
            if reads_scc(i) and last is not None:
                i.extra["scc"] = last
            if writes_scc(i):
                last = i
            out.append(i)
    return out


def link(ins):
    last = {}
    for i in ins:
        if not isinstance(i, Inst):
            continue
        for r in i.reads:
            if r in last:
                i.extra.setdefault("raw", {})[r] = last[r]
        for r in i.writes:
            last[r] = i
    return ins


def check_raw(insts, name):
    last = {}
    here = set(map(id, insts))
    for i in insts:
        for r, src in i.extra.get("raw", {}).items():
            ok = last.get(r) is src or (id(src) not in here and r not in last)
            assert ok, f"{name}: {i.text} reads {r} from {last.get(r)} instead of {src.text}"
        for r in i.writes:
            last[r] = i


def check_scc(insts, name):
    last = None
    for i in insts:
        if reads_scc(i):
            src = i.extra.get("scc")
            if src is not None:
                assert last is src, f"SCC clobbered in {name}: {i.text} expects {src.text}, got {last.text if last else None}"
            else:
                assert last is not None and last.op.startswith(("s_cmp", "s_bitcmp")), f"SCC source unclear in {name}: {i.text} after {last}"
        if writes_scc(i):
            last = i


class Gaps:
    def __init__(self, mfmas):
        self.m = list(mfmas)
        self.n = len(self.m)
        self.sc = [[] for _ in range(self.n)]
        self.ve = [[] for _ in range(self.n)]
        self.pre = []

    def used(self, k):
        if BARX and any(i.op == "s_barrier" for i in self.sc[k]):
            return 2
        v = sum(max(i.slots()) for i in self.ve[k])
        s = len([i for i in self.sc[k] if i.kind != 'label'])
        return v + max(0, s - 1)

    def has_vm(self, k):
        return any(i.kind in ("dma", "vld", "vst") for i in self.ve[k])

    def has_s(self, k):
        return any(i.kind != 'label' for i in self.sc[k])

    def nrd(self, k):
        return sum(1 for i in self.ve[k] if i.kind == "dsr") if 0 <= k < self.n else 0

    def room(self, k, inst):
        if self.used(k) + max(inst.slots()) > 2:
            return False
        if VMX and inst.kind in ("dma", "vld", "vst") and self.has_s(k):
            return False
        if VMX and inst.kind == "dsr" and self.nrd(k) == 1 and (self.nrd(k - 1) > 1 or self.nrd(k + 1) > 1):
            return False
        return True

    def room_s(self, k):
        return not self.sc[k] and not (VMX and self.has_vm(k))

    def vm_near(self, k, d=3):
        return any(i.kind in ("dma", "vld", "vst") and "x4" in i.op for j in range(max(0, k - d), min(self.n, k + d + 1)) for i in self.ve[j])

    def vm_slot(self, k, inst, reach=10):
        if inst.kind in ("dma", "vld", "vst") and "x4" in inst.op:
            for d in (3, 2, 1):
                for j in range(k, min(self.n, k + reach)):
                    if self.room(j, inst) and not self.vm_near(j, d):
                        return j
        return k

    def put_s(self, k, inst):
        self.sc[k].append(inst)

    def put(self, k, inst):
        self.ve[k].append(inst)

    def fit(self, k, inst, lim=None):
        need = max(inst.slots())
        j = k
        while j < self.n and not self.room(j, inst):
            j += 1
        if j >= self.n or (lim is not None and j > lim):
            j = min(self.n - 1, k if lim is None else lim)
        self.ve[j].append(inst)
        return j

    def fit_s(self, k, inst, lim=None):
        j = k
        lock = self.__dict__.get("lock", ()) if VMX and writes_scc(inst) else ()
        while j < self.n and (not self.room_s(j) or j in lock):
            j += 1
        if j >= self.n or (lim is not None and j > lim):
            j = min(self.n - 1, k if lim is None else lim)
        self.sc[j].append(inst)
        return j

    def spread(self, insts, lo, hi):
        n = len(insts)
        last = lo
        for x, ins in enumerate(insts):
            k = max(last, lo + (x * (hi - lo)) // max(n, 1))
            last = self.fit(k, ins)

    def flat(self):
        last = self.n - 1
        if self.ve[last] and self.sc[last] and self.sc[last][-1].kind == "branch":
            self.ve[last].append(self.sc[last].pop())
        assert not any(i.kind == "branch" for i in self.sc[last][:-1])
        out = list(self.pre)
        for k in range(self.n):
            out.append(self.m[k])
            out += self.sc[k]
            out += self.ve[k]
        return out


def est_cycles(insts):
    t = 0
    vfree = 0
    mfree = 0
    nm = 0
    ta = 0
    for i in insts:
        if i.kind in ("label", "pseudo"):
            continue
        if i.kind == "mfma":
            t = max(t, vfree, mfree)
            mfree = t + 16
            vfree = t + 8
            t += 4
            nm += 1
        elif i.kind in ("valu", "dsr", "dsw", "dma", "vld", "vst", "trans"):
            t = max(t, vfree)
            if i.kind in ("dma", "vld", "vst"):
                t = max(t, ta - 64)
                ta = max(ta, t) + (64 if "x4" in i.op else 16)
            t += 8 if i.kind in ("trans", "dma", "vld", "vst") else 4
            vfree = t
        elif i.op == "s_nop":
            t += 4 * (int(i.text.split()[1]) + 1)
        else:
            t += 4
    return max(t, mfree), nm


class State:
    def __init__(self):
        self.lg = []
        self.vm = []
        self.smem = set()

    def copy(self):
        s = State()
        s.lg = list(self.lg)
        s.vm = list(self.vm)
        s.smem = set(self.smem)
        return s

    def key(self):
        return (tuple(tuple(sorted(x)) for x in self.lg), tuple((tuple(sorted(w)), str(t)) for w, t in self.vm))


def _parse_wait(text):
    v = re.search(r"vmcnt\((\d+)\)", text)
    l = re.search(r"lgkmcnt\((\d+)\)", text)
    return (int(v.group(1)) if v else None, int(l.group(1)) if l else None)


def wait_text(v, l):
    p = []
    if v is not None:
        p.append(f"vmcnt({min(v, 63)})")
    if l is not None:
        p.append(f"lgkmcnt({min(l, 15)})")
    return "s_waitcnt " + " ".join(p)


def wait_pass(insts, st, forced=None, log=None):
    st = st.copy()
    waits = {}

    def apply(v, l):
        if v is not None:
            v = min(v, 63)
            st.vm = st.vm[len(st.vm) - v:] if v < len(st.vm) and v > 0 else ([] if v == 0 else st.vm)
        if l is not None:
            l = min(l, 15)
            st.lg = st.lg[len(st.lg) - l:] if l < len(st.lg) and l > 0 else ([] if l == 0 else st.lg)
            if l == 0:
                st.smem = set()

    for idx, ins in enumerate(insts):
        if "ignore" in ins.text:
            continue
        v = l = None
        if forced and idx in forced:
            v, l = forced[idx]
        touch = set(ins.reads) | set(ins.writes)
        if ins.op == "NEED":
            touch = set(ins.extra["regs"])
        if touch:
            for p in range(len(st.lg) - 1, -1, -1):
                if st.lg[p] & touch:
                    n = len(st.lg) - 1 - p
                    if st.smem:
                        n = 0
                    l = n if l is None else min(l, n)
                    break
            for p in range(len(st.vm) - 1, -1, -1):
                if st.vm[p][0] & touch:
                    n = len(st.vm) - 1 - p
                    v = n if v is None else min(v, n)
                    break
            if st.smem & touch:
                l = 0
        if ins.op == "WAITV":
            tags = ins.tag if isinstance(ins.tag, list) else [ins.tag]
            for p in range(len(st.vm) - 1, -1, -1):
                if st.vm[p][1] in tags:
                    n = len(st.vm) - 1 - p
                    v = n if v is None else min(v, n)
                    break
            if ins.extra.get("lgkm0") and (st.lg or st.smem):
                l = 0
        if v is not None or l is not None:
            waits[idx] = (v, l)
            if log is not None and ins.kind != "pseudo" and not (forced and idx in forced):
                log.append((idx, ins.text, v, l))
            apply(v, l)
        if ins.op == "s_waitcnt":
            apply(*_parse_wait(ins.text))
        elif ins.kind == "dsr":
            st.lg.append(set(ins.writes))
        elif ins.kind == "dsw":
            st.lg.append(set())
        elif ins.kind in ("vld",):
            st.vm.append((set() if ins.tag == "TOUCH" else set(ins.writes), ins.tag))
        elif ins.kind in ("dma", "vst"):
            if "nocount" not in ins.text:
                st.vm.append((set(), ins.tag))
        elif ins.kind == "smem":
            st.smem |= set(ins.writes)
    return waits, st


def materialize(insts, waits):
    out = []
    for idx, ins in enumerate(insts):
        if idx in waits:
            out.append(Inst(wait_text(*waits[idx])))
        if ins.kind != "pseudo":
            out.append(ins)
    return out


def is_v(r):
    return r[0] in "va" and r not in ("vcc",)


def hazard_need(prod, cons):
    need = 0
    pw, pr = set(prod.writes), set(prod.reads)
    cr, cw = set(cons.reads), set(cons.writes)
    pvalu = prod.kind in ("valu", "trans")
    cvalu = cons.kind in ("valu", "trans")
    cmem = cons.kind in ("dsr", "dsw", "vld", "vst", "dma")
    if prod.kind == "mfma":
        passes = 4 if "16x16" in prod.op else 8
        big = {4: 8, 8: 12}[passes]
        if cons.kind == "mfma":
            if pw & set(cons.srcab):
                need = max(need, big)
            if pw & set(cons.srcc):
                if not (list(prod.writes) == list(cons.srcc) and prod.op == cons.op):
                    need = max(need, {4: 6, 8: 10}[passes])
            if pw & cw and not (pw & set(cons.srcc)):
                need = max(need, {4: 6, 8: 10}[passes])
        elif cvalu:
            if pw & (cr | cw):
                need = max(need, big)
            if set(prod.srcc) & cw:
                need = max(need, {4: 3, 8: 7}[passes])
        elif cmem:
            if pw & (cr | cw):
                need = max(need, big)
    if pvalu:
        vw = {r for r in pw if is_v(r)}
        sw = pw - vw
        if cons.kind == "mfma":
            if vw & cr:
                need = max(need, 2)
            if "exec" in pw:
                need = max(need, 4)
        if cvalu:
            if prod.kind == "trans" and vw & cr:
                need = max(need, 1)
            if cons.op.startswith("v_permlane") and vw & cr:
                need = max(need, 2)
            if cons.extra.get("dpp") and vw & cr:
                need = max(need, 2)
            if cons.extra.get("dpp") and "exec" in pw:
                need = max(need, 5)
            if (cons.op.startswith("v_readlane") or cons.op.startswith("v_readfirstlane")) and vw & cr:
                need = max(need, 1)
            if (cons.op.startswith("v_readlane") or cons.op.startswith("v_writelane")) and sw & cr:
                need = max(need, 4)
            if (cons.op.startswith("v_readlane") or cons.op.startswith("v_writelane") or cons.op.startswith("v_readfirstlane") or cons.op.startswith("v_permlane")) and "exec" in pw:
                need = max(need, 4)
            if sw & cr:
                need = max(need, 2)
            if ("sdwa" in prod.text or "_sel:" in prod.text) and not prod.op.startswith("v_pk_") and vw & (cr | cw):
                need = max(need, 1)
            if prod.op.startswith("v_dot") and vw & (cr | cw) and prod.op != cons.op:
                need = max(need, 3)
        if prod.op.startswith("v_dot") and (cmem or cons.kind == "mfma") and vw & cr:
            need = max(need, 3)
        if cons.kind in ("vld", "vst", "dma") and sw & cr:
            need = max(need, 5)
        if prod.kind == "trans" and cmem and vw & cr:
            need = max(need, 1)
        if cons.kind in ("salu", "branch") and sw & cr:
            need = max(need, 1)
    if prod.kind == "vst" and ("x4" in prod.op or "x3" in prod.op):
        data = {r for r in pr if is_v(r)}
        if data & cw:
            need = max(need, 2)
    if prod.kind == "salu" and "m0" in pw and (cons.kind == "dma" or "m0" in cr):
        need = max(need, 1)
    return need


def states_of(ins):
    if ins.kind in ("label", "pseudo"):
        return 0
    if ins.op == "s_nop":
        return int(ins.text.split()[1]) + 1
    return 1


def hazard_pass(insts, history=None, log=None):
    hist = list(history or [])
    out = []
    for ins in insts:
        if ins.kind in ("label", "pseudo"):
            out.append(ins)
            continue
        dist = 0
        pad = 0
        for p in reversed(hist):
            if dist >= 12:
                break
            nd = hazard_need(p, ins)
            if nd > dist:
                pad = max(pad, nd - dist)
                if log is not None:
                    log.append((p.text, ins.text, nd, dist))
            dist += states_of(p)
        if pad:
            nop = Inst(f"s_nop {pad - 1}")
            out.append(nop)
            hist.append(nop)
        out.append(ins)
        hist.append(ins)
        hist = hist[-16:]
    return out


class Prog:
    def __init__(self, verbose=False):
        self.out = []
        self.st = State()
        self.verbose = verbose
        self.hist = []

    def _report(self, name, wl, hl, insts):
        if self.verbose:
            c, nm = est_cycles(insts)
            print(f"; [{name}] insts={len(insts)} mfma={nm} est_cycles={c} (ideal {nm * 16}) auto_waits={len(wl)} pads={len(hl)}")
            if self.verbose > 1:
                for w in wl:
                    print(";   auto wait before", w)
                for h in hl:
                    print(";   pad", h)

    def add(self, insts, name="seq"):
        if isinstance(insts, str):
            insts = L(insts)
        if isinstance(insts, Inst):
            insts = [insts]
        wl, hl = [], []
        waits, self.st = wait_pass(insts, self.st, log=wl)
        m = materialize(insts, waits)
        m = hazard_pass(m, self.hist, log=hl)
        self.hist = (self.hist + [i for i in m if i.kind != "label"])[-16:]
        self.out += m
        if any(i.kind == "mfma" for i in m):
            self._report(name, wl, hl, m)

    def loop(self, body, name="loop"):
        wl, hl = [], []
        w1, s1 = wait_pass(body, self.st, log=wl)
        forced = dict(w1)
        for _ in range(4):
            w2, s2 = wait_pass(body, s1, forced=forced, log=wl)
            same = (w2 == forced) and s2.key() == s1.key()
            forced = w2
            _, s1n = wait_pass(body, self.st, forced=forced)
            s1 = s2
            if same:
                break
        _, sa = wait_pass(body, self.st, forced=forced)
        if sa.key() != s1.key():
            if self.verbose:
                print(f"; note: loop {name}: first-trip exit state differs from steady state")
        m = materialize(body, forced)
        m = hazard_pass(m, self.hist, log=hl)
        m2 = hazard_pass(m, [i for i in m if i.kind != "label"][-16:], log=hl)
        self.hist = [i for i in m2 if i.kind != "label"][-16:]
        self.out += m2
        self.st = s1
        self._report(name, wl, hl, m2)

    def reset(self):
        self.st = State()
        self.hist = []

    def raw(self, text):
        self.out.append(Inst(".raw"))
        self.out[-1].text = text

    def text(self):
        return "\n".join(("" if i.kind == "label" else "  ") + i.text for i in self.out)


class CFG:
    def __init__(self, verbose=1):
        self.blocks = {}
        self.order = []
        self.paths = []
        self.verbose = verbose

    def block(self, name, *parts):
        ins = []
        for p in parts:
            if isinstance(p, str):
                ins += L(p)
            elif isinstance(p, Inst):
                ins.append(p)
            else:
                for q in p:
                    ins += L(q) if isinstance(q, str) else [q]
        assert name not in self.blocks, name
        self.blocks[name] = ins
        self.order.append(name)

    def path(self, *names):
        self.paths.append(list(names))

    def finalize(self):
        import sys
        forced = {n: {} for n in self.blocks}
        logs = {n: [] for n in self.blocks}
        seen = set()
        cache = {}
        ver = {n: 0 for n in self.blocks}
        for _ in range(10):
            changed = False
            for path in self.paths:
                st = State()
                for n in path:
                    seen.add(n)
                    key = (n, ver[n], st.key(), tuple(sorted(st.smem)))
                    if key in cache:
                        st = cache[key]
                        continue
                    w, st = wait_pass(self.blocks[n], st, forced=forced[n], log=logs[n])
                    if w != forced[n]:
                        forced[n] = w
                        ver[n] += 1
                        changed = True
                    else:
                        cache[key] = st
            if not changed:
                break
        else:
            raise RuntimeError("wait analysis did not converge")
        for n in self.blocks:
            assert n in seen, f"block {n} is on no path"
        mat = {n: materialize(self.blocks[n], forced[n]) for n in self.blocks}
        for n in mat: check_scc(mat[n], n); check_raw(mat[n], n)
        hl = {n: [] for n in self.blocks}
        for n in mat:
            mat[n] = hazard_pass(mat[n], [], log=hl[n])
        for _ in range(2):
            for path in self.paths:
                hist = []
                for n in path:
                    mat[n] = hazard_pass(mat[n][:24], hist, log=hl[n]) + mat[n][24:]
                    hist = (hist + [i for i in mat[n][-24:] if i.kind != "label"])[-16:]
        for n in self.order:
            if self.verbose:
                c, nm = est_cycles(mat[n])
                sys.stderr.write(f"; [{n}] insts={len(mat[n])} mfma={nm} est={c} ideal={nm * 16} auto_waits={len(logs[n])} pads={len(hl[n])}\n")
                if self.verbose > 1 and nm:
                    for w in logs[n]:
                        sys.stderr.write(f";    auto wait {w}\n")
                    for h in hl[n]:
                        sys.stderr.write(f";    pad {h}\n")
        self.mat = mat
        out = []
        for n in self.order:
            out.append(f"; ---- {n}")
            out += [("" if i.kind == "label" else "  ") + i.text for i in mat[n]]
        return "\n".join(out)
```

```python
from common import *

class AttRegs:
    S_WS = 8
    sWAVE = 20
    sK, sCNT, sKP, sV = 21, 22, 23, 24
    sJ = ((25, 26), (43, 4), (6, 7))
    sIT, sM0, sT0, sT1 = 27, 28, 29, 30
    sTHR, sQ, sOP, sPO, sNC = 31, 32, 33, 14, 35
    S_KS, sHALF, sK2 = 56, 35, 101
    sRET, sVn, sREQ, sMODE = 36, 38, 39, 40
    sRT, sPT = 54, 5
    sPB, sPS, sSPIN, sLO = 12, 52, 53, 55
    sTRI = (16, 18, 48, 50)
    sMK = 64
    vRD0, vRD1, vDM0, vDM1, vL16 = 7, 2, 3, 4, 7
    vRL, vNEG, vFL, vF0 = 5, 13, 12, 16
    vK = (0, 1, 8, 9)
    vOB = 40
    aNC, aCODE, aF0, aFL, aWD, aOB = 241, 243, 252, 253, 254, 255
    vX, vT, vSUM, vLS, vNM = 10, 18, 26, 30, 32
    vP0, vP1 = 40, 56
    vS, vO = 64, 128
    aQ, aF, aX = 0, 64, 128
A = AttRegs
KSLOT = {0: 3, 1: 1}
VSLOT = {0: 2, 1: 0}
WSR = f"s[{A.S_WS}:{A.S_WS+3}]"
DKV = WS_V - WS_K

def Sreg(b, kb, qb): return A.vS + 32 * b + (kb * 2 + qb) * 4
def Oreg(db, qb): return A.vO + (db * 2 + qb) * 4
def Preg(b, kp, qb): return (A.vP0 + 8 * b + 4 * qb) if kp == 0 else (A.vP1 + 4 * qb)
def PregB(kp): return Preg(1, 0, 1 - kp)
def Qreg(qb, ks): return A.aQ + (qb * 8 + ks) * 4
def Freg(batch, f): return A.aF + (batch & 1) * 32 + f * 4
def Freg4(batch, f): return A.aF + batch * 32 + f * 4

def rd_frag(slot, batch, f, dst):
    va = A.vRD1 if slot >= 2 else A.vRD0
    return I(f"ds_read_b128 a[{dst}:{dst+3}], v{va} offset:{(slot & 1) * 32768 + batch * 8192 + f * 1024}")
def rd_batch(slot, batch, reg=Freg): return [rd_frag(slot, batch, f, reg(batch, f)) for f in range(8)]

DFL = "sc1"
def dma_tile(slot, soff, v0=A.vDM0):
    out = []
    for j in range(8):
        pre = I(f"s_add_u32 m0, s{A.sM0}, {slot * 32768 + (j >> 2) * 4096}") if j % 4 == 0 else None
        out.append((pre, I(f"buffer_load_dwordx4 v{v0 + (j >> 2)}, {WSR}, s{soff} offen offset:{(j & 3) * 1024} {DFL} lds", tag=("T", slot))))
    return out
def dma_tileK(slot, soff):
    out = []
    for j in range(8):
        pre = I(f"s_add_u32 m0, s{A.sM0}, {slot * 32768 + (j >> 2) * 4096}") if j % 4 == 0 else None
        out.append((pre, I(f"buffer_load_dwordx4 v{A.vK[j & 3]}, s[{A.S_KS}:{A.S_KS + 3}], s{soff if j < 4 else A.sK2} offen offset:{(j & 3) * 1024} {DFL} lds", tag=("T", slot))))
    return out
def dma_flat(slot, soff, v0=A.vDM0): return [i for p in (dma_tileK(slot, soff) if v0 == "K" else dma_tile(slot, soff, v0)) for i in p if i]
def dma_wo(slot):
    return [I(f"s_add_u32 s{A.sK2}, s{A.sVn}, 28672")] + dma_flat(slot, A.sVn, "K") + [I(f"s_add_u32 s{A.sVn}, s{A.sVn}, 128")]
def f0_rd(src=A.aF0): return I(f"v_accvgpr_read_b32 v{A.vF0}, a{src}")
def adv_k(site=None):
    return L(f"""
    s_add_u32 s{A.sV}, s{A.sKP}, {DKV}
    s_mov_b32 s{A.sKP}, s{A.sK}
    s_add_u32 s{A.sK}, s{A.sK}, 32768
    s_add_u32 s{A.sCNT}, s{A.sCNT}, 1
    """ + "".join(f"s_cmp_eq_u32 s{A.sCNT}, s{c}\ns_cselect_b32 s{A.sK}, s{a}, s{A.sK}\n" for c, a in A.sJ[:2]) +
    f"s_add_u32 s{A.sK2}, s{A.sK}, s{A.sHALF}\n" + (f"s_cmp_eq_u32 s{A.sCNT}, s{A.sJ[2][0]}\ns_cbranch_scc1 L_w{site}\nL_w{site}r:" if site else ""))

RPAT = {0: [0, 1, 3, 4, 6, 7, 9, 10], 1: [0, 0, 3, 3, 6, 6, 9, 9]}
def weave_dma(g, slot, soff, post, lo=1, hi=45, kf=False):
    t = dma_tileK(slot, soff) if kf else dma_tile(slot, soff)
    link([i for p in t for i in p if i] + list(post))
    step = (hi - lo) / 8.0
    kk = lo - 1
    for j, (pre, d) in enumerate(t):
        k = max(kk + 1, int(lo + j * step))
        if pre: k = g.fit_s(max(k - 1, kk + 1 if j else 0), pre) + 1
        kk = g.fit(k, d)
    k = kk + 1
    lock = g.__dict__.setdefault("lock", set())
    for ins in post:
        if ins.kind == "label": g.put_s(k - 1, ins); continue
        k0 = k; k = g.fit_s(k, ins) + 1
        if reads_scc(ins): lock.update(range(k0 - 1, k - 1))
    return k

def weave_both(g, dma, lo, hi, groups, glo, ghi):
    import q2
    slot, soff, post = dma[:3]
    last = q2.place_vm(g, ([(dma_flat(slot, soff, *dma[3:]), lo, hi)] if slot is not None else []) + [([i for x in groups for i in x], glo, ghi)])
    if post: scal_fit(g, post, last[0])
def weave_reads(g, slot, nslot, wait_tags, pat=0):
    pat = RPAT[pat]
    for b in range(1, 4):
        for f, r in enumerate(rd_batch(slot, b)): g.put((b - 1) * 16 + pat[f], r)
        if b < 3: g.put_s(b * 16 - 1, NEED(R("a", Freg(b, 0), 32)))
    g.put_s(46, WAITV(wait_tags, lgkm0=True))
    g.put_s(47, I("s_barrier"))
    if nslot is not None:
        for f, r in enumerate(rd_batch(nslot, 0)): g.put(48 + pat[f], r)
        g.put_s(62, NEED(R("a", Freg(0, 0), 32)))
def op_reads(slot, mb):
    va = A.vOB + (4 if slot >= 2 else 0) + mb
    return [I(f"ds_read_b64_tr_b16 a[{Freg(mb, ks) + 2*j}:{Freg(mb, ks) + 2*j + 1}], v{va} offset:{(slot & 1) * 32768 + (32 * ks + 16 * j) * 128}") for ks in range(8) for j in range(2)]
def op_bases():
    return [I(f"v_accvgpr_read_b32 v{A.vOB}, a{A.aOB}"), I(f"v_add_u32 v{A.vOB + 4}, 0x10000, v{A.vOB}")] + [I(f"v_xor_b32 v{A.vOB + h + mb}, {32 * mb}, v{A.vOB + h}") for h in (4, 0) for mb in range(1, 4)]
def half_reads(g, slot, nslot, wait_tags, bar=22, wo=False):
    pos = [0, 0, 1, 2, 2, 3, 4, 4, 6, 6, 7, 8, 8, 10, 10, 11, 12, 12, 14, 14, 15, 16, 16, 17]
    for k, r in zip(pos, [r for b in range(1, 4) for r in rd_batch(slot, b, Freg4)]): g.put(k, r)
    g.put_s(7, NEED(R("a", Freg4(1, 0), 32))); g.put_s(15, NEED(R("a", Freg4(2, 0), 32)))
    g.put_s(bar - 1, WAITV(wait_tags, lgkm0=True)); g.put_s(bar, I("s_barrier"))
    if wo:
        for k, r in zip([1, 1, 2, 2, 3, 3, 4, 4, 5, 5, 6, 6, 7, 8, 9, 9], op_reads(nslot, 0)): g.put(bar + k, r)
        g.put_s(31, NEED(R("a", Freg(0, 0), 16)))
        return
    for k, r in zip([1, 1, 2, 3, 3, 4, 5, 5], rd_batch(nslot, 0)): g.put(bar + k, r)
    g.put_s(31, NEED(R("a", Freg(0, 0), 32)))
def half_dma(g, ins, wo=False):
    link(ins); pos = [5, 9, 13, 18, 20, 28, 29, 30] if not wo else [3, 5, 9, 11, 13, 17, 18, 20]; k = 0
    for i in ins:
        if i.slots()[0]: k = pos.pop(0); g.put(k, i)
        elif pos:
            q = pos[0] - 1
            while not g.room_s(q): q -= 1
            assert q > k or k == 0; g.put_s(q, i)
        else: g.put(g.n - 1, i)
    g.lock = {g.n - 1}
    if g.ve[-1] and g.ve[-1][-1].kind == "label": g.post = g.ve[-1][-3:]; g.ve[-1] = g.ve[-1][:-3]
def spread_any(g, ins, lo, hi):
    link(ins)
    ks = [k for k in range(lo, hi) if not g.has_vm(k) and not any(x.op == "s_barrier" for x in g.sc[k])]
    tot = sum(max(i.slots()) for i in ins) + sum(g.used(k) for k in ks)
    acc = 0; n = 0; ins = list(ins)
    for x, k in enumerate(ks):
        acc += g.used(k)
        while ins and (acc + max(ins[0].slots()) <= (x + 1) * tot / len(ks) + 0.5 or x == len(ks) - 1):
            i = ins.pop(0); acc += max(i.slots()); g.put(k, i)

def cin(cmode, b, kb, qb):
    d = R("v", Sreg(b, kb, qb), 4); nm = R("v", A.vNM + 4 * qb, 4)
    return {"nm": nm, "zero": "0", "mask": nm if qb else d, "self": d}[cmode]
def qk_mfmas(b, cmode, breg=None, order=None, fr=None):
    ms = []
    for kb, qb in order or [(kb, qb) for kb in range(4) for qb in range(2)]:
        d = R("v", Sreg(b, kb, qb), 4)
        for n, ks in enumerate(range(8) if (qb == 0 or order) else range(7, -1, -1)):
            bq = breg(qb, ks) if breg else R("a", Qreg(qb, ks), 4)
            ms.append(mfma(d, R("a", (fr or Freg)(kb, ks), 4), bq, d if n else cin(cmode, b, kb, qb)))
    return ms
def qkB_mfmas():
    return [mfma(R("v", Sreg(1, kb, 1), 4), R("a", Freg4(kb, ks), 4), R("a", Qreg(1, ks), 4), R("v", Sreg(1, kb, 1), 4)) for kb in range(4) for ks in (range(8) if kb % 2 == 0 else range(7, -1, -1))]
def pv_mfmas(b, cz=False):
    ms = []
    for db in range(16):
        for qb in range(2):
            d = R("v", Oreg(db, qb), 4)
            for n, kp in enumerate((0, 1) if qb == 0 else (1, 0)):
                ms.append(mfma(d, R("a", Freg(db >> 2, (db & 3) * 2 + kp), 4), R("v", Preg(b, kp, qb), 4), "0" if cz and n == 0 else d))
    return ms
def pvB_mfma(db, kp, reg): return mfma(R("v", Oreg(db, 1), 4), R("a", reg(db >> 2, (db & 3) * 2 + kp), 4), R("v", PregB(kp), 4), R("v", Oreg(db, 1), 4))
def pvB_mfmas(): return [pvB_mfma(db, kp, Freg4) for db in range(16) for kp in ((0, 1) if db % 2 == 0 else (1, 0))]

def blocks_of(kp): return [(2 * kp + kk, qb) for qb in range(2) for kk in range(2)]
BLK_B = [(kb, 1) for kb in range(4)]
def sm_groups(b, blocks, init, pd=None, n0=0):
    groups = []; init = set(init); n = n0
    for kb, qb in blocks:
        for pr in range(2):
            s = Sreg(b, kb, qb) + 2 * pr
            t0, t1 = A.vT + (n % 4) * 2, A.vT + (n % 4) * 2 + 1
            sm = A.vSUM + 2 * b + qb
            ex = [I(f"v_exp_f32 v{t0}, v{s}"), I(f"v_exp_f32 v{t1}, v{s+1}")]
            if qb in init: post = [I(f"v_add_f32 v{sm}, v{t0}, v{t1}")]; init.discard(qb)
            else: post = [I(f"v_add_f32 v{sm}, v{t0}, v{sm}"), I(f"v_add_f32 v{sm}, v{t1}, v{sm}")]
            p = (pd(kb >> 1) if pd else Preg(b, kb >> 1, qb)) + 2 * (kb & 1) + pr
            post.insert(1, I(f"v_cvt_pk_bf16_f32 v{p}, v{t0}, v{t1}"))
            groups.append((ex, post)); n += 1
    return groups
def half_groups(b, kp): return sm_groups(b, blocks_of(kp), (0, 1) if kp == 0 else ())
def groups_B(): return sm_groups(1, BLK_B, (1,), PregB)
def sm_flat(groups):
    out = []; prev = []
    for ex, post in groups:
        out.append(ex[0]); out += prev[:2]; out.append(ex[1]); out += prev[2:]
        prev = post
    return out + prev
def softmax_half(b, kp): return sm_flat(half_groups(b, kp))
class SM:
    def __init__(self, grp, pre=(), ready=None):
        link(list(pre) + [i for e, p in grp for i in e + p])
        self.ex = [(n, i) for n, (e, p) in enumerate(grp) for i in e]
        self.po = [(-1, i) for i in pre] + [(n, i) for n, (e, p) in enumerate(grp) for i in p]
        self.done = {}; self.ready = ready or {}; self.ng = len(grp)
    def run(self, g, lo, hi, final=True, upto=None):
        ex, po, done = self.ex, self.po, self.done
        for n in done: done[n] = (done[n][0], -1)
        last = lo; ne = 0; tot = max(len(ex), 1)
        for k in range(lo, g.n):
            empty_left = sum(1 for q in range(k, hi) if g.used(q) == 0)
            if ex and g.used(k) == 0 and (upto is None or ex[0][0] < upto):
                n = ex[0][0]
                free = not any(m <= n - 4 for m, _ in po)
                due = not final or k >= lo + ne * (hi - lo) // tot or empty_left <= len(ex)
                if free and due and k >= self.ready.get(n, 0):
                    g.put(k, ex.pop(0)[1]); done[n] = (done.get(n, (0, 0))[0] + 1, k); ne += 1; last = k
                    continue
            keep = final and ex and g.used(k) == 0 and empty_left <= len(ex) and not any(m <= ex[0][0] - 4 for m, _ in po)
            while po and g.used(k) < 2 and not keep:
                n = po[0][0]
                if n >= 0 and not (done.get(n, (0, 0))[0] == 2 and done[n][1] < k): break
                g.put(k, po.pop(0)[1]); last = k
        self.ready = {}
        if final and (ex or po):
            last = g.n - 1
            for i in self.rest(): g.put(last, i)
        return last
    def rest(self):
        out = []; prev = [i for m, i in self.po if m < (self.ex[0][0] if self.ex else self.ng)]
        for n in range(self.ex[0][0] if self.ex else self.ng, self.ng):
            e = [i for m, i in self.ex if m == n]
            if n % 4 == 0 or True: out += prev[:max(0, len(prev) - 3)]; prev = prev[max(0, len(prev) - 3):]
            out += e[:1] + prev[:2] + e[1:] + prev[2:]
            prev = [i for m, i in self.po if m == n]
        self.ex.clear(); self.po.clear()
        return out + prev

def check(b, label, lo=False, only=None):
    s0, s1 = A.vSUM + 2 * b, A.vSUM + 2 * b + 1
    if only is not None: return L(f"v_cmp_lt_f32 vcc, s{A.sTHR}, v{s0 + only}\ns_cbranch_vccnz {label}")
    if not lo: return L(f"v_max_f32 v{A.vX}, v{s0}, v{s1}\nv_cmp_lt_f32 vcc, s{A.sTHR}, v{A.vX}\ns_cbranch_vccnz {label}")
    return L(f"""v_max_f32 v{A.vX}, v{s0}, v{s1}
    v_min_f32 v{A.vX + 1}, v{s0}, v{s1}
    v_cmp_lt_f32 s[36:37], s{A.sTHR}, v{A.vX}
    v_cmp_gt_f32 vcc, s{A.sLO}, v{A.vX + 1}
    s_or_b64 vcc, vcc, s[36:37]
    s_cbranch_vccnz {label}""")
def add_l(b, qbs=(0, 1)): return [I(f"v_add_f32 v{A.vLS + q}, v{A.vSUM + 2*b + q}, v{A.vLS + q}") for q in qbs]

def xlane(op, r, t):
    return L(f"""
    v_mov_b32 v{t}, v{r}
    v_permlane16_swap_b32 v{t}, v{r}
    {op} v{r}, v{t}, v{r}
    v_mov_b32 v{t}, v{r}
    v_permlane32_swap_b32 v{t}, v{r}
    {op} v{r}, v{t}, v{r}
    """)
def zip2(a, c): return [i for p in zip(a, c) for i in p]
def rowmax(b, qbs=(0, 1)):
    ins = []
    for qb in qbs:
        vals = [Sreg(b, kb, qb) + e for kb in range(4) for e in range(4)]
        m = A.vX + qb
        ins.append(I(f"v_max3_f32 v{m}, v{vals[0]}, v{vals[1]}, v{vals[2]}"))
        for x in range(3, 15, 2): ins.append(I(f"v_max3_f32 v{m}, v{vals[x]}, v{vals[x+1]}, v{m}"))
        ins.append(I(f"v_max_f32 v{m}, v{vals[15]}, v{m}"))
    xs = [xlane("v_max_f32", A.vX + q, A.vX + 2 + q) for q in qbs]
    ins += zip2(*xs) if len(xs) == 2 else xs[0]
    return ins + [I(f"v_ceil_f32 v{A.vX + q}, v{A.vX + q}") for q in qbs]
def sub_S(b, qbs=(0, 1)): return [I(f"v_sub_f32 v{Sreg(b, kb, qb) + e}, v{Sreg(b, kb, qb) + e}, v{A.vX + qb}") for kb in range(4) for qb in qbs for e in range(4)]
def sub_NM(qbs=(0, 1)): return [I(f"v_sub_f32 v{A.vNM + 4*q + e}, v{A.vNM + 4*q + e}, v{A.vX + q}") for q in qbs for e in range(4)]
def init_softmax(b): return rowmax(b) + sub_NM() + sub_S(b) + softmax_half(b, 0)
def rescale_state(qbs=(0, 1)):
    ins = sub_NM(qbs) + [I(f"v_exp_f32 v{A.vX + 2 + q}, -v{A.vX + q}") for q in qbs]
    ins += [I(f"v_mul_f32 v{A.vLS + q}, v{A.vX + 2 + q}, v{A.vLS + q}") for q in qbs]
    return ins + [I(f"v_mul_f32 v{Oreg(db, q) + e}, v{A.vX + 2 + q}, v{Oreg(db, q) + e}") for db in range(16) for q in qbs for e in range(4)]
def slow_sub(name, b, other):
    qbs = (1,) if name == "B" else (0, 1)
    ins = [I(f"L_slow{name}:"), I("s_nop 7"), I("s_nop 3")] + rowmax(b, qbs)
    if name != "f": ins += [I(f"v_max_f32 v{A.vX + q}, 0, v{A.vX + q}") for q in qbs]
    ins += sub_S(b, qbs) + sub_S(1 - b, other)
    ins += sub_NM() if name == "f" else rescale_state(qbs)
    ins += sm_flat(groups_B()) if name == "B" else softmax_half(b, 0) + softmax_half(b, 1)
    return ins + [I("s_nop 3"), I(f"s_setpc_b64 s[{A.sRET}:{A.sRET+1}]")]

def fill_valu(g, ins, lo, hi):
    tot = sum(max(i.slots()) for i in link(ins))
    k = lo; acc = 0
    for i in ins:
        tgt = lo + int(acc * (hi - lo) / max(tot, 1))
        k = g.fit(g.vm_slot(max(k, tgt), i, 4), i)
        acc += max(i.slots())
    return k

def mask_regs(second, kbs=range(4)):
    out = ""
    for kb in kbs:
        u = 3 - kb if second else kb
        m = A.sMK + 8 * kb
        oth = {0: "0", 3: "-1"}.get(kb, f"s[{m+6}:{m+7}]")
        if kb in (1, 2): out += f"s_cmp_{'gt' if second else 'lt'}_u32 s{A.sWAVE}, {u}\ns_cselect_b64 {oth}, -1, 0\n"
        out += f"s_cmp_eq_u32 s{A.sWAVE}, {u}\n"
        for e in range(4): out += f"s_cselect_b64 s[{m+2*e}:{m+2*e+1}], s[{A.sTRI[e]}:{A.sTRI[e]+1}], {oth}\n"
    return L(out)
def neg(): return I(f"v_mov_b32 v{A.vNEG}, 0xff800000")
def mask_blk(b, kb, qb, inplace=False):
    return [I(f"v_cndmask_b32 v{Sreg(b, kb, qb) + e}, v{Sreg(b, kb, qb) + e if inplace else A.vNM + 4 * qb}, v{A.vNEG}, s[{A.sMK + 8*kb + 2*e}:{A.sMK + 8*kb + 2*e + 1}]") for e in range(4)]

def put_groups(g, groups, lo, hi):
    k = lo - 1
    link([i for grp in groups for i in grp])
    lock = g.__dict__.setdefault("lock", set())
    for n, grp in enumerate(groups):
        k = max(k, lo + n * (hi - lo) // len(groups) - 1)
        for i in grp:
            if i.slots()[0] == 0:
                q = k + 1
                while q < g.n - 1 and (not g.room_s(q) or (writes_scc(i) and q in lock)): q += 1
                if q < g.n - 1: g.put_s(q, i); k = q
                else: k = g.n - 1; g.put(k, i)
            else: k = g.fit(g.vm_slot(min(k + 1, g.n - 1), i, 5), i)
    return k
def put_check(g, c, k):
    if k <= g.n - len(c) - 2:
        k = max(k + 1, g.n - len(c) - 3)
        for i in c[:-1]:
            k = g.fit(k, i, lim=g.n - 2) + (0 if i is c[0] and len(c) > 3 else 1) if i.slots()[0] else g.fit_s(k + 1, i, lim=g.n - 2)
        g.put_s(g.n - 1, c[-1])
    else:
        for i in c: g.put(g.n - 1, i)
def scal_fit(g, ins, k=1):
    import kvq
    k, left = kvq.seq_fit(g, list(ins), k); assert not left
    return k
def win_qk(b, slowlabel, retlabel, extra=(), masked=False, groups=(), head=(), glo=2, ghi=58, scal=(), dma=None, sm=None, lo_check=False, tags=(), vq=None, post=(), dhi=None):
    g = Gaps(qk_mfmas(1 - b, "mask" if masked else "nm"))
    wide = len(groups) >= 4
    weave_reads(g, KSLOT[1 - b], VSLOT[b], [("T", VSLOT[b])] + list(tags), int(wide))
    for e in extra: g.fit(0, e)
    hk = -1
    for e in head:
        if e.kind != 'label': hk += 1
        g.put_s(hk, e)
    if masked:
        g.pre = [neg()] + mask_blk(1 - b, 0, 0)
        for kb in range(1, 4):
            k = 16 * kb - 16
            for i in mask_blk(1 - b, kb, 0):
                while g.used(k) != 1 and k < 16 * kb - 5: k += 1
                k = g.fit(k, i)
            assert k <= 16 * kb - 2, (kb, k)
    if wide: weave_both(g, dma or (VSLOT[1 - b], A.sV, []), hk + 2, dhi or 50, groups, glo, ghi)
    else: weave_dma(g, *(dma or (VSLOT[1 - b], A.sV, []))[:3], lo=hk + 2, hi=dhi or 45, kf=bool(dma and len(dma) > 3))
    k = 49
    for i in post: k = g.fit(k, i)
    if scal: scal_fit(g, scal)
    if groups and not wide: put_groups(g, groups, glo, ghi)
    k = (sm or SM(half_groups(b, 1))).run(g, 0, 56)
    put_check(g, check(b, slowlabel, lo_check), k)
    if vq: vq.run(g, 0, 0, 62)
    return g.flat() + [I(retlabel + ":")]
def win_pv(b, tail=(), chk=None, post=(), groups=(), tags=(), scal=(), ghi=32, glo=2, cz=False, sm=None, nslot=None, nodma=False, pre_dma=None, dlo=1, kf=True, site=None, vq=None, vq_first=None, end=(), valu=(), vlo=0):
    g = Gaps(pv_mfmas(b, cz))
    nslot = KSLOT[b] if nslot is None else nslot
    wide = len(groups) >= 4 or pre_dma is not None
    weave_reads(g, VSLOT[b], nslot, [("T", nslot)] + list(tags), int(wide))
    if scal and len(scal) < 8: scal_fit(g, scal); scal = ()
    if wide:
        k = 49
        for i in post: k = g.fit(k, i)
        post = ()
        if pre_dma:
            import q2
            scal_fit(g, adv_k(site), q2.place_vm(g, [(dma_flat(*pre_dma) + dma_flat(KSLOT[1 - b], A.sK, "K"), 1, 46)])[0])
        else: weave_both(g, (None, 0, []) if nodma else (KSLOT[1 - b], A.sK, adv_k(site)), dlo, 44 if dlo == 1 else 45, groups, glo, ghi); groups = ()
    else: assert weave_dma(g, KSLOT[1 - b], A.sK, adv_k(site), hi=33 if site else 35, kf=kf) <= 53
    if chk:
        g.put(50, chk[0]); g.put_s(53, chk[1]); g.put_s(53, chk[2])
        ck = 53
        for i in chk[3:]:
            if i.kind != 'label': ck += 1
            g.put_s(ck, i)
        assert ck < 60
    k = 49
    for i in post: k = g.fit(k, i)
    if groups: put_groups(g, groups, glo, ghi)
    for q in range(g.n):
        for i in g.ve[q]:
            if i.kind == "vst": assert not any(set(i.reads) & set(g.m[x].writes) for x in range(q + 1)), (q, i.text)
    ks = scal_fit(g, scal) if scal else 0
    if vq_first: vq_first(g)
    if valu: fill_valu(g, list(valu), max(vlo, ks + 1), 62)
    k = (sm or SM(half_groups(1 - b, 0), add_l(b))).run(g, 0, 59 if not end else 56)
    if end: put_check(g, end, k)
    if vq: vq.run(g, 0, 0, 62)
    for n, ins in enumerate(tail): g.put_s(64 - len(tail) + n - (1 if n < len(tail) - 1 else 0), ins)
    return g.flat()

def zero_O_mfma(ins, z):
    out = []; step = max(len(ins) // 9, 1); n = 0
    for k, i in enumerate(ins):
        out.append(i)
        if k % step == step - 1 and n < 8:
            out.append(I(f"v_mfma_f32_32x32x16_bf16 v[{A.vO + 16*n}:{A.vO + 16*n + 15}], v[{z}:{z+3}], v[{z}:{z+3}], 0")); n += 1
    assert n == 8
    return out
def cvt_ctx(ks, qb):
    a, c = Oreg(2 * ks, qb), Oreg(2 * ks + 1, qb)
    return L(f"""v_cvt_pk_bf16_f32 v{a}, v{a}, v{a+1}
    v_cvt_pk_bf16_f32 v{a+1}, v{a+2}, v{a+3}
    v_cvt_pk_bf16_f32 v{a+2}, v{c}, v{c+1}
    v_cvt_pk_bf16_f32 v{a+3}, v{c+2}, v{c+3}""")

def mix(valu, mem, lo=0, hi=None):
    hi = len(valu) if hi is None else hi
    link(valu); link(mem)
    groups = []; cur = []
    for i in mem:
        cur.append(i)
        if i.slots()[0]: groups.append(cur); cur = []
    tail = cur
    out = []; n = 0
    for k, i in enumerate(valu):
        while n < len(groups) and k >= lo + n * (hi - lo) // len(groups):
            g_ = groups[n]; n += 1
            if len(g_) > 1 and out and out[-1].kind in ("valu", "trans"):
                last = out.pop(); out += g_[:-1] + [last, g_[-1]]
            else: out += g_
            if n == len(groups): out += tail
        out.append(i)
    assert n == len(groups)
    return out
```

```python
from common import *

class AttRegs:
    S_WS = 8
    sWAVE = 20
    sK, sCNT, sKP, sV = 21, 22, 23, 24
    sJ = ((25, 26), (43, 4), (6, 7))
    sIT, sM0, sT0, sT1 = 27, 28, 29, 30
    sTHR, sQ, sOP, sPO, sNC = 31, 32, 33, 34, 35
    sRET, sVn, sREQ, sMODE = 36, 38, 39, 40
    sRT, sPT, sEV = 54, 5, 34
    sPB, sPS, sSPIN, sLO = 12, 52, 53, 55
    sTRI = (16, 18, 48, 50)
    sMK = 64
    vRD0, vRD1, vDM0, vDM1, vL16 = 7, 2, 3, 4, 7
    vF0, vRL, vNEG, vFL = 1, 5, 8, 9
    vX, vT, vSUM, vLS, vNM = 10, 18, 26, 30, 32
    vP0, vP1 = 40, 56
    vS, vO = 64, 128
    aQ, aF, aX = 0, 64, 128
A = AttRegs
KSLOT = {0: 3, 1: 1}
VSLOT = {0: 2, 1: 0}
WSR = f"s[{A.S_WS}:{A.S_WS+3}]"
DKV = WS_V - WS_K

def Sreg(b, kb, qb): return A.vS + 32 * b + (kb * 2 + qb) * 4
def Oreg(db, qb): return A.vO + (db * 2 + qb) * 4
def Preg(b, kp, qb): return (A.vP0 + 8 * b + 4 * qb) if kp == 0 else (A.vP1 + 4 * qb)
def PregB(kp): return Preg(1, 0, 1 - kp)
def Qreg(qb, ks): return A.aQ + (qb * 8 + ks) * 4
def Freg(batch, f): return A.aF + (batch & 1) * 32 + f * 4
def Freg4(batch, f): return A.aF + batch * 32 + f * 4

def rd_frag(slot, batch, f, dst):
    va = A.vRD1 if slot >= 2 else A.vRD0
    return I(f"ds_read_b128 a[{dst}:{dst+3}], v{va} offset:{(slot & 1) * 32768 + batch * 8192 + f * 1024}")
def rd_batch(slot, batch, reg=Freg): return [rd_frag(slot, batch, f, reg(batch, f)) for f in range(8)]

DFL = "sc1"
def dma_tile(slot, soff, v0=A.vDM0):
    out = []
    for j in range(8):
        pre = I(f"s_add_u32 m0, s{A.sM0}, {slot * 32768 + (j >> 2) * 4096}") if j % 4 == 0 else None
        out.append((pre, I(f"buffer_load_dwordx4 v{v0 + (j >> 2)}, {WSR}, s{soff} offen offset:{(j & 3) * 1024} {DFL} lds", tag=("T", slot))))
    return out
def dma_flat(slot, soff, v0=A.vDM0): return [i for p in dma_tile(slot, soff, v0) for i in p if i]
def adv_k():
    return L(f"""
    s_add_u32 s{A.sV}, s{A.sKP}, {DKV}
    s_mov_b32 s{A.sKP}, s{A.sK}
    s_add_u32 s{A.sK}, s{A.sK}, 32768
    s_add_u32 s{A.sCNT}, s{A.sCNT}, 1
    """ + "".join(f"s_cmp_eq_u32 s{A.sCNT}, s{c}\ns_cselect_b32 s{A.sK}, s{a}, s{A.sK}\n" for c, a in A.sJ))

RPAT = {0: [0, 1, 3, 4, 6, 7, 9, 10], 1: [0, 0, 3, 3, 6, 6, 9, 9]}
def weave_dma(g, slot, soff, post, lo=1, hi=45):
    t = dma_tile(slot, soff)
    link([i for p in t for i in p if i] + list(post))
    step = (hi - lo) / 8.0
    kk = lo - 1
    for j, (pre, d) in enumerate(t):
        k = max(kk + 1, int(lo + j * step))
        if pre: k = g.fit_s(max(k - 1, kk + 1 if j else 0), pre) + 1
        kk = g.fit(k, d)
    k = kk + 1
    lock = g.__dict__.setdefault("lock", set())
    for ins in post:
        k0 = k; k = g.fit_s(k, ins) + 1
        if reads_scc(ins): lock.update(range(k0 - 1, k - 1))
    return k

def weave_both(g, dma, lo, hi, groups, glo, ghi):
    import q2
    slot, soff, post = dma
    last = q2.place_vm(g, ([(dma_flat(slot, soff), lo, hi)] if slot is not None else []) + [([i for x in groups for i in x], glo, ghi)])
    if post: scal_fit(g, post, last[0])
def weave_reads(g, slot, nslot, wait_tags, pat=0):
    pat = RPAT[pat]
    for b in range(1, 4):
        for f, r in enumerate(rd_batch(slot, b)): g.put((b - 1) * 16 + pat[f], r)
        if b < 3: g.put_s(b * 16 - 1, NEED(R("a", Freg(b, 0), 32)))
    g.put_s(46, WAITV(wait_tags, lgkm0=True))
    g.put_s(47, I("s_barrier"))
    if nslot is not None:
        for f, r in enumerate(rd_batch(nslot, 0)): g.put(48 + pat[f], r)
        g.put_s(62, NEED(R("a", Freg(0, 0), 32)))
def half_reads(g, slot, nslot, wait_tags, bar=22):
    pos = [0, 0, 1, 2, 2, 3, 4, 4, 6, 6, 7, 8, 8, 10, 10, 11, 12, 12, 14, 14, 15, 16, 16, 17]
    for k, r in zip(pos, [r for b in range(1, 4) for r in rd_batch(slot, b, Freg4)]): g.put(k, r)
    g.put_s(7, NEED(R("a", Freg4(1, 0), 32))); g.put_s(15, NEED(R("a", Freg4(2, 0), 32)))
    g.put_s(bar - 1, WAITV(wait_tags, lgkm0=True)); g.put_s(bar, I("s_barrier"))
    for k, r in zip([1, 1, 2, 3, 3, 4, 5, 5] if g.n == 32 else [1 + x for x in RPAT[0]], rd_batch(nslot, 0)): g.put(bar + k, r)
    g.put_s(g.n - 1 if g.n == 32 else 62, NEED(R("a", Freg(0, 0), 32)))
    if bar > 24: g.put_s(23, NEED(R("a", Freg4(3, 0), 32)))
def half_dma(g, ins):
    link(ins); pos = [5, 9, 13, 18, 20, 28, 29, 30]; k = 0
    for i in ins:
        if i.slots()[0]: k = pos.pop(0); g.put(k, i)
        elif pos:
            q = pos[0] - 1
            while not g.room_s(q): q -= 1
            assert q > k or k == 0; g.put_s(q, i)
        else: g.put(g.n - 1, i)
    g.lock = {g.n - 1}
def spread_any(g, ins, lo, hi):
    link(ins)
    ks = [k for k in range(lo, hi) if not g.has_vm(k) and not any(x.op == "s_barrier" for x in g.sc[k])]
    tot = sum(max(i.slots()) for i in ins) + sum(g.used(k) for k in ks)
    acc = 0; n = 0; ins = list(ins)
    for x, k in enumerate(ks):
        acc += g.used(k)
        while ins and (acc + max(ins[0].slots()) <= (x + 1) * tot / len(ks) + 0.5 or x == len(ks) - 1):
            i = ins.pop(0); acc += max(i.slots()); g.put(k, i)

def cin(cmode, b, kb, qb):
    d = R("v", Sreg(b, kb, qb), 4); nm = R("v", A.vNM + 4 * qb, 4)
    return {"nm": nm, "zero": "0", "mask": nm if qb else d, "self": d}[cmode]
def qk_mfmas(b, cmode, breg=None, order=None, fr=None):
    ms = []
    for kb, qb in order or [(kb, qb) for kb in range(4) for qb in range(2)]:
        d = R("v", Sreg(b, kb, qb), 4)
        for n, ks in enumerate(range(8) if (qb == 0 or order) else range(7, -1, -1)):
            bq = breg(qb, ks) if breg else R("a", Qreg(qb, ks), 4)
            ms.append(mfma(d, R("a", (fr or Freg)(kb, ks), 4), bq, d if n else cin(cmode, b, kb, qb)))
    return ms
def qkB_mfmas():
    return [mfma(R("v", Sreg(1, kb, 1), 4), R("a", Freg4(kb, ks), 4), R("a", Qreg(1, ks), 4), R("v", Sreg(1, kb, 1), 4)) for kb in range(4) for ks in (range(8) if kb % 2 == 0 else range(7, -1, -1))]
def pv_mfmas(b, cz=False):
    ms = []
    for db in range(16):
        for qb in range(2):
            d = R("v", Oreg(db, qb), 4)
            for n, kp in enumerate((0, 1) if qb == 0 else (1, 0)):
                ms.append(mfma(d, R("a", Freg(db >> 2, (db & 3) * 2 + kp), 4), R("v", Preg(b, kp, qb), 4), "0" if cz and n == 0 else d))
    return ms
def pvB_mfma(db, kp, reg): return mfma(R("v", Oreg(db, 1), 4), R("a", reg(db >> 2, (db & 3) * 2 + kp), 4), R("v", PregB(kp), 4), R("v", Oreg(db, 1), 4))
def pvB_mfmas(): return [pvB_mfma(db, kp, Freg4) for db in range(16) for kp in ((0, 1) if db % 2 == 0 else (1, 0))]

def blocks_of(kp): return [(2 * kp + kk, qb) for qb in range(2) for kk in range(2)]
BLK_B = [(kb, 1) for kb in range(4)]
def sm_groups(b, blocks, init, pd=None, n0=0):
    groups = []; init = set(init); n = n0
    for kb, qb in blocks:
        for pr in range(2):
            s = Sreg(b, kb, qb) + 2 * pr
            t0, t1 = A.vT + (n % 4) * 2, A.vT + (n % 4) * 2 + 1
            sm = A.vSUM + 2 * b + qb
            ex = [I(f"v_exp_f32 v{t0}, v{s}"), I(f"v_exp_f32 v{t1}, v{s+1}")]
            if qb in init: post = [I(f"v_add_f32 v{sm}, v{t0}, v{t1}")]; init.discard(qb)
            else: post = [I(f"v_add_f32 v{sm}, v{t0}, v{sm}"), I(f"v_add_f32 v{sm}, v{t1}, v{sm}")]
            p = (pd(kb >> 1) if pd else Preg(b, kb >> 1, qb)) + 2 * (kb & 1) + pr
            post.insert(1, I(f"v_cvt_pk_bf16_f32 v{p}, v{t0}, v{t1}"))
            groups.append((ex, post)); n += 1
    return groups
def half_groups(b, kp): return sm_groups(b, blocks_of(kp), (0, 1) if kp == 0 else ())
def groups_B(): return sm_groups(1, BLK_B, (1,), PregB)
def sm_flat(groups):
    out = []; prev = []
    for ex, post in groups:
        out.append(ex[0]); out += prev[:2]; out.append(ex[1]); out += prev[2:]
        prev = post
    return out + prev
def softmax_half(b, kp): return sm_flat(half_groups(b, kp))
class SM:
    def __init__(self, grp, pre=(), ready=None):
        link(list(pre) + [i for e, p in grp for i in e + p])
        self.ex = [(n, i) for n, (e, p) in enumerate(grp) for i in e]
        self.po = [(-1, i) for i in pre] + [(n, i) for n, (e, p) in enumerate(grp) for i in p]
        self.done = {}; self.ready = ready or {}; self.ng = len(grp)
    def run(self, g, lo, hi, final=True, upto=None):
        ex, po, done = self.ex, self.po, self.done
        for n in done: done[n] = (done[n][0], -1)
        last = lo; ne = 0; tot = max(len(ex), 1)
        for k in range(lo, g.n):
            empty_left = sum(1 for q in range(k, hi) if g.used(q) == 0)
            if ex and g.used(k) == 0 and (upto is None or ex[0][0] < upto):
                n = ex[0][0]
                free = not any(m <= n - 4 for m, _ in po)
                due = not final or k >= lo + ne * (hi - lo) // tot or empty_left <= len(ex)
                if free and due and k >= self.ready.get(n, 0):
                    g.put(k, ex.pop(0)[1]); done[n] = (done.get(n, (0, 0))[0] + 1, k); ne += 1; last = k
                    continue
            keep = final and ex and g.used(k) == 0 and empty_left <= len(ex) and not any(m <= ex[0][0] - 4 for m, _ in po)
            while po and g.used(k) < 2 and not keep:
                n = po[0][0]
                if n >= 0 and not (done.get(n, (0, 0))[0] == 2 and done[n][1] < k): break
                g.put(k, po.pop(0)[1]); last = k
        self.ready = {}
        if final and (ex or po):
            last = g.n - 1
            for i in self.rest(): g.put(last, i)
        return last
    def rest(self):
        out = []; prev = [i for m, i in self.po if m < (self.ex[0][0] if self.ex else self.ng)]
        for n in range(self.ex[0][0] if self.ex else self.ng, self.ng):
            e = [i for m, i in self.ex if m == n]
            if n % 4 == 0 or True: out += prev[:max(0, len(prev) - 3)]; prev = prev[max(0, len(prev) - 3):]
            out += e[:1] + prev[:2] + e[1:] + prev[2:]
            prev = [i for m, i in self.po if m == n]
        self.ex.clear(); self.po.clear()
        return out + prev

def check(b, label, lo=False, only=None):
    s0, s1 = A.vSUM + 2 * b, A.vSUM + 2 * b + 1
    if only is not None: return L(f"v_cmp_lt_f32 vcc, s{A.sTHR}, v{s0 + only}\ns_cbranch_vccnz {label}")
    if not lo: return L(f"v_max_f32 v{A.vX}, v{s0}, v{s1}\nv_cmp_lt_f32 vcc, s{A.sTHR}, v{A.vX}\ns_cbranch_vccnz {label}")
    return L(f"""v_max_f32 v{A.vX}, v{s0}, v{s1}
    v_min_f32 v{A.vX + 1}, v{s0}, v{s1}
    v_cmp_lt_f32 s[36:37], s{A.sTHR}, v{A.vX}
    v_cmp_gt_f32 vcc, s{A.sLO}, v{A.vX + 1}
    s_or_b64 vcc, vcc, s[36:37]
    s_cbranch_vccnz {label}""")
def add_l(b, qbs=(0, 1)): return [I(f"v_add_f32 v{A.vLS + q}, v{A.vSUM + 2*b + q}, v{A.vLS + q}") for q in qbs]

def xlane(op, r, t):
    return L(f"""
    v_mov_b32 v{t}, v{r}
    v_permlane16_swap_b32 v{t}, v{r}
    {op} v{r}, v{t}, v{r}
    v_mov_b32 v{t}, v{r}
    v_permlane32_swap_b32 v{t}, v{r}
    {op} v{r}, v{t}, v{r}
    """)
def zip2(a, c): return [i for p in zip(a, c) for i in p]
def rowmax(b, qbs=(0, 1)):
    ins = []
    for qb in qbs:
        vals = [Sreg(b, kb, qb) + e for kb in range(4) for e in range(4)]
        m = A.vX + qb
        ins.append(I(f"v_max3_f32 v{m}, v{vals[0]}, v{vals[1]}, v{vals[2]}"))
        for x in range(3, 15, 2): ins.append(I(f"v_max3_f32 v{m}, v{vals[x]}, v{vals[x+1]}, v{m}"))
        ins.append(I(f"v_max_f32 v{m}, v{vals[15]}, v{m}"))
    xs = [xlane("v_max_f32", A.vX + q, A.vX + 2 + q) for q in qbs]
    ins += zip2(*xs) if len(xs) == 2 else xs[0]
    return ins + [I(f"v_ceil_f32 v{A.vX + q}, v{A.vX + q}") for q in qbs]
def sub_S(b, qbs=(0, 1)): return [I(f"v_sub_f32 v{Sreg(b, kb, qb) + e}, v{Sreg(b, kb, qb) + e}, v{A.vX + qb}") for kb in range(4) for qb in qbs for e in range(4)]
def sub_NM(qbs=(0, 1)): return [I(f"v_sub_f32 v{A.vNM + 4*q + e}, v{A.vNM + 4*q + e}, v{A.vX + q}") for q in qbs for e in range(4)]
def init_softmax(b): return rowmax(b) + sub_NM() + sub_S(b) + softmax_half(b, 0)
def rescale_state(qbs=(0, 1)):
    ins = sub_NM(qbs) + [I(f"v_exp_f32 v{A.vX + 2 + q}, -v{A.vX + q}") for q in qbs]
    ins += [I(f"v_mul_f32 v{A.vLS + q}, v{A.vX + 2 + q}, v{A.vLS + q}") for q in qbs]
    return ins + [I(f"v_mul_f32 v{Oreg(db, q) + e}, v{A.vX + 2 + q}, v{Oreg(db, q) + e}") for db in range(16) for q in qbs for e in range(4)]
def slow_sub(name, b, other):
    qbs = (1,) if name == "B" else (0, 1)
    ins = [I(f"L_slow{name}:"), I("s_nop 7"), I("s_nop 3")] + rowmax(b, qbs)
    if name != "f": ins += [I(f"v_max_f32 v{A.vX + q}, 0, v{A.vX + q}") for q in qbs]
    ins += sub_S(b, qbs) + sub_S(1 - b, other)
    ins += sub_NM() if name == "f" else rescale_state(qbs)
    ins += sm_flat(groups_B()) if name == "B" else softmax_half(b, 0) + softmax_half(b, 1)
    return ins + [I("s_nop 3"), I(f"s_setpc_b64 s[{A.sRET}:{A.sRET+1}]")]

def fill_valu(g, ins, lo, hi):
    tot = sum(max(i.slots()) for i in link(ins))
    k = lo; acc = 0
    for i in ins:
        tgt = lo + int(acc * (hi - lo) / max(tot, 1))
        k = g.fit(g.vm_slot(max(k, tgt), i, 4), i)
        acc += max(i.slots())
    return k

def mask_regs(second, kbs=range(4)):
    out = ""
    for kb in kbs:
        u = 3 - kb if second else kb
        m = A.sMK + 8 * kb
        oth = {0: "0", 3: "-1"}.get(kb, f"s[{m+6}:{m+7}]")
        if kb in (1, 2): out += f"s_cmp_{'gt' if second else 'lt'}_u32 s{A.sWAVE}, {u}\ns_cselect_b64 {oth}, -1, 0\n"
        out += f"s_cmp_eq_u32 s{A.sWAVE}, {u}\n"
        for e in range(4): out += f"s_cselect_b64 s[{m+2*e}:{m+2*e+1}], s[{A.sTRI[e]}:{A.sTRI[e]+1}], {oth}\n"
    return L(out)
def mask_blk(b, kb, qb, inplace=False):
    return [I(f"v_cndmask_b32 v{Sreg(b, kb, qb) + e}, v{Sreg(b, kb, qb) + e if inplace else A.vNM + 4 * qb}, v{A.vNEG}, s[{A.sMK + 8*kb + 2*e}:{A.sMK + 8*kb + 2*e + 1}]") for e in range(4)]

def put_groups(g, groups, lo, hi):
    k = lo - 1
    link([i for grp in groups for i in grp])
    lock = g.__dict__.setdefault("lock", set())
    for n, grp in enumerate(groups):
        k = max(k, lo + n * (hi - lo) // len(groups) - 1)
        for i in grp:
            if i.slots()[0] == 0:
                q = k + 1
                while q < g.n - 1 and (not g.room_s(q) or (writes_scc(i) and q in lock)): q += 1
                if q < g.n - 1: g.put_s(q, i); k = q
                else: k = g.n - 1; g.put(k, i)
            else: k = g.fit(g.vm_slot(min(k + 1, g.n - 1), i, 5), i)
    return k
def put_check(g, c, k):
    if k <= g.n - len(c) - 2:
        k = max(k + 1, g.n - len(c) - 3)
        for i in c[:-1]:
            k = g.fit(k, i, lim=g.n - 2) + (0 if i is c[0] and len(c) > 3 else 1) if i.slots()[0] else g.fit_s(k + 1, i, lim=g.n - 2)
        g.put_s(g.n - 1, c[-1])
    else:
        for i in c: g.put(g.n - 1, i)
def scal_fit(g, ins, k=1):
    import kvq
    k, left = kvq.seq_fit(g, list(ins), k); assert not left
    return k
def win_qk(b, slowlabel, retlabel, extra=(), masked=False, groups=(), head=(), glo=2, ghi=58, scal=(), dma=None, sm=None, lo_check=False, tags=(), vq=None, post=(), dhi=None):
    g = Gaps(qk_mfmas(1 - b, "mask" if masked else "nm"))
    wide = len(groups) >= 4
    weave_reads(g, KSLOT[1 - b], VSLOT[b], [("T", VSLOT[b])] + list(tags), int(wide))
    for e in extra: g.fit(0, e)
    hk = -1
    for e in head:
        if e.kind != 'label': hk += 1
        g.put_s(hk, e)
    if masked:
        g.pre = mask_blk(1 - b, 0, 0)
        for kb in range(1, 4):
            k = 16 * kb - 16
            for i in mask_blk(1 - b, kb, 0):
                while g.used(k) != 1 and k < 16 * kb - 5: k += 1
                k = g.fit(k, i)
            assert k <= 16 * kb - 2, (kb, k)
    if wide: weave_both(g, dma or (VSLOT[1 - b], A.sV, []), hk + 2, dhi or 50, groups, glo, ghi)
    else: weave_dma(g, *(dma or (VSLOT[1 - b], A.sV, [])), lo=hk + 2, hi=dhi or 45)
    k = 49
    for i in post: k = g.fit(k, i)
    if scal: scal_fit(g, scal)
    if groups and not wide: put_groups(g, groups, glo, ghi)
    k = (sm or SM(half_groups(b, 1))).run(g, 0, 56)
    put_check(g, check(b, slowlabel, lo_check), k)
    if vq: vq.run(g, 0, 0, 62)
    return g.flat() + [I(retlabel + ":")]
def win_pv(b, tail=(), chk=None, post=(), groups=(), tags=(), scal=(), ghi=32, glo=2, cz=False, sm=None, nslot=None, nodma=False, pre_dma=None, dlo=1, post_dma=None, vq=None, vq_first=None, end=(), valu=(), vlo=0):
    g = Gaps(pv_mfmas(b, cz))
    nslot = KSLOT[b] if nslot is None else nslot
    wide = len(groups) >= 4 or pre_dma is not None or post_dma is not None
    weave_reads(g, VSLOT[b], nslot, [("T", nslot)] + list(tags), int(wide))
    if scal and len(scal) < 8: scal_fit(g, scal); scal = ()
    if wide:
        k = 49
        for i in post: k = g.fit(k, i)
        post = ()
        if post_dma:
            import q2
            kd = dma_flat(KSLOT[1 - b], A.sK)
            q2.place_vm(g, [(kd + list(post_dma), 1, 62)])
            scal_fit(g, adv_k(), max(q for q in range(g.n) if kd[-1] in g.ve[q]))
        elif pre_dma:
            import q2
            scal_fit(g, adv_k(), q2.place_vm(g, [(dma_flat(*pre_dma) + dma_flat(KSLOT[1 - b], A.sK), 1, 48)])[0])
        else: weave_both(g, (None, 0, []) if nodma else (KSLOT[1 - b], A.sK, adv_k()), dlo, 44 if dlo == 1 else 45, groups, glo, ghi); groups = ()
    else: assert weave_dma(g, KSLOT[1 - b], A.sK, adv_k(), hi=36) <= 53
    if chk:
        g.put(50, chk[0]); g.put_s(53, chk[1]); g.put_s(53, chk[2])
        ck = 53
        for i in chk[3:]:
            if i.kind != 'label': ck += 1
            g.put_s(ck, i)
        assert ck < 60
    k = 49
    for i in post: k = g.fit(k, i)
    if groups: put_groups(g, groups, glo, ghi)
    for q in range(g.n):
        for i in g.ve[q]:
            if i.kind == "vst": assert not any(set(i.reads) & set(g.m[x].writes) for x in range(q + 1)), (q, i.text)
    ks = scal_fit(g, scal) if scal else 0
    if vq_first: vq_first(g)
    if valu: fill_valu(g, list(valu), max(vlo, ks + 1), 62)
    k = (sm or SM(half_groups(1 - b, 0), add_l(b))).run(g, 0, 59 if not end else 56)
    if end: put_check(g, end, k)
    if vq: vq.run(g, 0, 0, 62)
    for n, ins in enumerate(tail): g.put_s(64 - len(tail) + n - (1 if n < len(tail) - 1 else 0), ins)
    return g.flat()

def zero_O_mfma(ins, z):
    out = []; step = max(len(ins) // 9, 1); n = 0
    for k, i in enumerate(ins):
        out.append(i)
        if k % step == step - 1 and n < 8:
            out.append(I(f"v_mfma_f32_32x32x16_bf16 v[{A.vO + 16*n}:{A.vO + 16*n + 15}], v[{z}:{z+3}], v[{z}:{z+3}], 0")); n += 1
    assert n == 8
    return out
def cvt_ctx(ks, qb):
    a, c = Oreg(2 * ks, qb), Oreg(2 * ks + 1, qb)
    return L(f"""v_cvt_pk_bf16_f32 v{a}, v{a}, v{a+1}
    v_cvt_pk_bf16_f32 v{a+1}, v{a+2}, v{a+3}
    v_cvt_pk_bf16_f32 v{a+2}, v{c}, v{c+1}
    v_cvt_pk_bf16_f32 v{a+3}, v{c+2}, v{c+3}""")

def mix(valu, mem, lo=0, hi=None):
    hi = len(valu) if hi is None else hi
    link(valu); link(mem)
    groups = []; cur = []
    for i in mem:
        cur.append(i)
        if i.slots()[0]: groups.append(cur); cur = []
    tail = cur
    out = []; n = 0
    for k, i in enumerate(valu):
        while n < len(groups) and k >= lo + n * (hi - lo) // len(groups):
            g_ = groups[n]; n += 1
            if len(g_) > 1 and out and out[-1].kind in ("valu", "trans"):
                last = out.pop(); out += g_[:-1] + [last, g_[-1]]
            else: out += g_
            if n == len(groups): out += tail
        out.append(i)
    assert n == len(groups)
    return out

def q_from_lds():
    pre = L(f"""
    s_lshl_b32 s64, s{A.sWAVE}, 13
    s_sub_u32 s65, {131072 + 3 * 8192}, s64
    v_add_u32 v{A.vX}, s64, v{A.vL16}
    v_add_u32 v{A.vX + 1}, s65, v{A.vL16}
    """)
    return pre + [I(f"ds_read_b128 a[{Qreg(qb, ks)}:{Qreg(qb, ks) + 3}], v{A.vX + qb} offset:{ks * 1024}") for qb in range(2) for ks in range(8)]
```

```python
from common import *
from side import sWAVE, sH, sJ, WS, OOB, sigmoid, lane0_wave0, flag_store
LB = 131072
LX = LB + 28672
LX2 = LX
sFS, sLD, sMK = 86, 87, 88

HNT = "nt"
MAP = "0"
def unit(m0off, n, srdreg, soff, tag, adv, v=28, fl="nt"):
    return ([I(f"s_add_u32 m0, s{sLD}, {m0off}")] +
            [I(f"buffer_load_dwordx4 v{v+j}, s[{srdreg}:{srdreg+3}], s{soff} offen offset:{1024*j} {fl} lds", tag=tag) for j in range(n)] +
            [I(f"s_add_u32 s{soff}, s{soff}, {adv}")])
def s1_weights():
    pre = L(f"""
    {f's_mul_i32 s{sFS}, s{sH}, 7' if MAP != '0' else f'''
    s_and_b32 s{sFS}, s{sH}, 7
    s_mul_i32 s{sFS}, s{sFS}, 14
    s_lshr_b32 s64, s{sH}, 3
    s_mul_i32 s64, s64, 7
    s_add_u32 s{sFS}, s{sFS}, s64'''}
    s_min_u32 s64, s{sJ}, 6
    s_add_u32 s{sFS}, s{sFS}, s64
    s_sub_u32 s64, 6, s{sJ}
    s_and_b32 s{sMK}, s64, {OOB}
    s_mul_i32 s{sLD}, s{sWAVE}, 7168
    s_add_u32 s{sLD}, s{sLD}, {LB}
    s_cmp_lt_u32 s{sWAVE}, 2
    s_cselect_b64 s[72:73], s[80:81], s[82:83]
    {srd(60, 72, 448*3584)}
    {srd(68, 84, 1792*896)}
    s_lshl_b32 s89, s{sFS}, 5
    s_and_b32 s64, s{sWAVE}, 1
    s_mul_i32 s64, s64, {224 * 3584}
    s_add_u32 s89, s89, s64
    v_lshrrev_b32 v28, 1, v0
    v_mul_u32_u24 v28, 3584, v28
    v_and_b32 v29, 1, v0
    v_lshl_add_u32 v25, v29, 4, v28
    v_or_b32 v25, s{sMK}, v25
    """)
    return pre, [unit(1024 * n, 1, 60, 89, "HW", 32 * 3584, 25, HNT) for n in range(7)]
KEYS = [f"buffer_load_dwordx4 v[{16+4*n}:{19+4*n}], v7, {WS}, s67 offen offset:{1024*n} sc1" for n in range(2)]
KMIN = """v_min3_u32 v28, v16, v17, v18
    v_min3_u32 v28, v28, v19, v20
    v_min3_u32 v28, v28, v21, v22
    v_min_u32 v28, v28, v23
    v_cmp_eq_u32 vcc, 0, v28"""
def s2_keys():
    return L(f"s_lshl_b32 s67, s{sWAVE}, 11\ns_add_u32 s67, s67, {WS_KEY}\n" + "\n".join(KEYS))
def key_stub():
    return L(f"L_hs:\ns_mov_b32 s91, {SPIN_MAX}\nL_hs_l:\n" + "\n".join(KEYS) + f"\ns_waitcnt vmcnt(0)\ns_sub_u32 s91, s91, 1\ns_cbranch_scc1 L_hr\n{KMIN}\ns_cbranch_vccnz L_hs_l\ns_branch L_hr")
def merge(a1, a2, b1, b2, t):
    return L(f"v_min_u32 v{t}, v{a1}, v{b1}\nv_max_u32 v{a1}, v{a1}, v{b1}\nv_max3_u32 v{a2}, v{a2}, v{b2}, v{t}")
def s3_top2():
    out = L(KMIN + "\ns_nop 0\ns_cbranch_vccnz L_hs\nL_hr:\nv_max_u32 v28, v16, v17\nv_min_u32 v29, v16, v17")
    for n in range(18, 24): out += L(f"v_med3_u32 v29, v28, v29, v{n}\nv_max_u32 v28, v28, v{n}")
    for sh in ("row_ror:8", "row_ror:4", "row_ror:2", "row_ror:1"):
        out += L(f"v_mov_b32 v30, v28 {sh} row_mask:0xf bank_mask:0xf\nv_mov_b32 v31, v29 {sh} row_mask:0xf bank_mask:0xf") + merge(28, 29, 30, 31, 16)
    for sw in ("v_permlane16_swap_b32", "v_permlane32_swap_b32"):
        out += L(f"v_mov_b32 v30, v28\nv_mov_b32 v31, v29\n{sw} v30, v28\n{sw} v31, v29") + merge(28, 29, 30, 31, 16)
    out += L(f"s_lshl_b32 s64, s{sWAVE}, 3\ns_add_u32 s64, s64, {LX}\nv_mov_b32 v16, s64\nds_write_b64 v16, v[28:29]")
    return out
def s4_sel():
    out = L(f"v_mov_b32 v28, {LX}\nds_read_b128 v[16:19], v28\nds_read_b128 v[20:23], v28 offset:16") + [8]
    out += merge(16, 17, 18, 19, 28) + merge(20, 21, 22, 23, 29) + merge(16, 17, 20, 21, 28)
    out += L(f"""
    v_and_b32 v28, 1, v0
    v_cmp_eq_u32 vcc, 0, v28
    s_and_b32 s64, s{sWAVE}, 1
    s_mul_i32 s64, s64, 448
    v_cndmask_b32 v24, v17, v16, vcc
    v_and_b32 v24, 0x7ff, v24
    v_sub_u32 v24, 2047, v24
    v_mul_u32_u24 v28, 896, v24
    v_lshrrev_b32 v29, 4, v0
    v_lshl_add_u32 v28, v29, 4, v28
    v_bfe_u32 v30, v0, 1, 3
    v_lshl_or_b32 v28, v30, 26, v28
    """) + [I(f"buffer_load_dwordx4 a[{208+4*k}:{211+4*k}], v28, s[56:59], s64 offen offset:{64*k}") for k in range(7)] + L(f"""
    v_lshrrev_b32 v28, 4, v24
    v_lshlrev_b32 v28, 5, v28
    v_and_b32 v30, 15, v24
    v_add_lshl_u32 v28, v28, v30, 2
    v_lshrrev_b32 v30, 1, v0
    v_min_u32 v30, 1, v30
    v_lshl_or_b32 v28, v30, 29, v28
    s_mov_b32 s64, {WS_RG}
    buffer_load_dword v23, v28, {WS}, s64 offen sc1
    v_bfe_u32 v28, v0, 2, 2
    v_lshl_add_u32 v28, v29, 3, v28
    v_lshlrev_b32 v28, 5, v28
    v_and_b32 v30, 3, v0
    v_lshl_add_u32 v28, v30, 3, v28
    v_add_u32 v22, s{sLD}, v28
    """)
    return out
def s5_gemm():
    rounds = []
    for ks0, n in ((0, 4), (4, 3)):
        rd = [I(f"ds_read_b64_tr_b16 a[{176+4*k+2*j}:{177+4*k+2*j}], v22 offset:{(ks0+k)*1024 + j*128}") for k in range(n) for j in range(2)]
        mm = [mfma("v[16:19]", R("a", 176 + 4 * k, 4), R("a", 208 + 4 * (ks0 + k), 4), "v[16:19]" if ks0 + k else "0") for k in range(n)]
        rounds.append((rd, mm))
    return rounds
def s6_down_dma():
    pre = L(f"""
    s_lshl_b32 s64, s{sWAVE}, 10
    s_add_u32 s64, s64, {LX2}
    v_add_u32 v21, s64, v7
    ds_write_b128 v21, v[16:19]
    {f's_lshl_b32 s{sLD}, s{sWAVE}, 12' + chr(10) + f's_add_u32 s{sLD}, s{sLD}, {LB + 16384}' if LX2 != LX else ''}
    s_mul_i32 s67, s{sFS}, {16 * 896}
    s_mul_i32 s64, s{sWAVE}, 224
    s_add_u32 s67, s67, s64
    v_lshrrev_b32 v28, 4, v0
    v_mul_u32_u24 v28, 896, v28
    v_and_b32 v29, 15, v0
    v_lshl_add_u32 v28, v29, 4, v28
    v_mov_b32 v30, {OOB}
    v_cmp_gt_u32 vcc, 14, v29
    s_nop 0
    s_nop 0
    v_cndmask_b32 v28, v30, v28, vcc
    v_add_u32 v29, {4 * 896 - 1024}, v28
    v_add_u32 v30, {2 * (4 * 896 - 1024)}, v28
    v_add_u32 v31, {3 * (4 * 896 - 1024)}, v28
    """)
    return pre, unit(0, 4, 68, 67, "HD", 0)
def rnd2(a, b, t):
    return L(f"v_cvt_pk_bf16_f32 v{t}, v{a}, v{b}\nv_lshlrev_b32 v{a}, 16, v{t}\nv_and_b32 v{b}, 0xffff0000, v{t}")
def s7_act():
    out = L(f"""
    v_cvt_pk_bf16_f32 v23, v23, v23
    v_and_b32 v23, 0xffff0000, v23
    """) + sigmoid(23, 22) + L(f"""
    s_or_b32 s64, s{sFS}, s{sWAVE}
    s_min_u32 s64, s64, 1
    s_lshl_b32 s64, s64, 29
    v_lshrrev_b32 v22, 1, v0
    v_min_u32 v22, 1, v22
    v_lshlrev_b32 v22, 29, v22
    v_lshl_or_b32 v22, v0, 2, v22
    v_or_b32 v22, s64, v22
    v_cvt_pk_bf16_f32 v23, v23, v23
    v_and_b32 v23, 0xffff0000, v23
    s_mov_b32 s64, {WS_SEL}
    buffer_store_dword v24, v22, {WS}, s64 offen sc1
    buffer_store_dword v23, v22, {WS}, s64 offen offset:8 sc1
    v_add_u32 v25, {LX2}, v7
    ds_read_b128 v[16:19], v25
    ds_read_b128 v[28:31], v25 offset:1024
    ds_read_b128 v[20:23], v25 offset:2048
    """) + [7]
    out += [I(f"v_add_f32 v{16+e}, v{28+e}, v{16+e}") for e in range(4)]
    out += L("ds_read_b128 v[28:31], v25 offset:3072")
    out += rnd2(16, 17, 25) + rnd2(18, 19, 25)
    out += [I(f"v_add_f32 v{20+e}, v{28+e}, v{20+e}") for e in range(4)]
    out += [I(f"v_mul_f32 v{28+e}, 0xbfb8aa3b, v{16+e}") for e in range(4)]
    out += [I(f"v_exp_f32 v{28+e}, v{28+e}") for e in range(4)]
    out += rnd2(20, 21, 25) + rnd2(22, 23, 25)
    out += [I(f"v_add_f32 v{28+e}, 1.0, v{28+e}") for e in range(4)]
    out += [I(f"v_rcp_f32 v{28+e}, v{28+e}") for e in range(4)]
    out += [I(f"v_mul_f32 v{16+e}, v{28+e}, v{16+e}") for e in range(4)]
    out += rnd2(16, 17, 25) + rnd2(18, 19, 25)
    out += [I(f"v_mul_f32 v{16+e}, v{20+e}, v{16+e}") for e in range(4)]
    out += L("v_cvt_pk_bf16_f32 v16, v16, v17\nv_cvt_pk_bf16_f32 v17, v18, v19")
    return out
def s8_down():
    pre = L(f"""
    v_lshrrev_b32 v28, 2, v0
    v_lshlrev_b32 v28, 8, v28
    v_and_b32 v29, 3, v0
    v_lshl_add_u32 v28, v29, 3, v28
    v_add_u32 v28, s{sLD}, v28
    """) + [WAITV("HD")] + [I(f"ds_read_b64_tr_b16 a[{176+2*m}:{177+2*m}], v28 offset:{32*m}") for m in range(7)] + L(f"""
    """)
    adr = L(f"""
    v_and_b32 v29, 15, v0
    v_mul_u32_u24 v30, 1792, v29
    v_lshrrev_b32 v31, 4, v0
    v_lshl_add_u32 v30, v31, 4, v30
    v_lshrrev_b32 v29, 1, v29
    v_min_u32 v29, 1, v29
    v_lshl_or_b32 v30, v29, 29, v30
    v_or_b32 v30, s{sMK}, v30
    s_mul_i32 s89, s{sFS}, 3584
    s_mul_i32 s64, s{sWAVE}, 448
    s_add_u32 s89, s89, s64
    s_add_u32 s89, s89, {WS_Y}
    """)
    mm = [I(f"v_mfma_f32_16x16x16_bf16 a[{208+4*m}:{211+4*m}], a[{176+2*m}:{177+2*m}], v[16:17], 0") for m in range(7)]
    st = [I(f"buffer_store_dwordx4 a[{208+4*m}:{211+4*m}], v30, {WS}, s89 offen offset:{64*m} sc1", tag="KVST") for m in range(7)]
    return pre, mm, adr, st
def s9_flag():
    return L(f"s_lshl_b32 s89, s{sFS}, 2\ns_add_u32 s89, s89, {WS_FH}\nv_mov_b32 v29, 1\nv_or_b32 v28, s{sMK}, v1") + [flag_store(89, 28, 29)]
```

```python
from common import *

class KR:
    S_WS, S_DBG, S_W, S_C, S_WQ, S_X = 8, 12, 16, 48, 52, 56
    sWAVE = 20
    sWOFF, sCOFF, sM0W, sM0C, sT, sOOFF, sQOFF, sWQOFF, sXOFF, sLOOP, sSC = 21, 22, 23, 24, 3, 93, 4, 28, 29, 30, 5
    vWR, vCR, vST, vWD, vCD, vXD, vWR2, vT = 1, 5, 7, 8, 12, 16, 20, 24
K = KR
WSLOT = [0, 16384, 32768, 49152, 131072, 147456]

def kacc(y, x):
    return ("a", 4 * x) if y == 0 else ("v", 32 + 4 * ((y - 1) * 8 + x))
def rr(t): return R(t[0], t[1], 4)
def wfrag(buf, x, ks): return 32 + buf * 64 + (x * 2 + ks) * 4
def cfrag(buf, ks): return 160 + buf * 8 + ks * 4

NTW = 'nt'
NTC = 99
CFL = ''
def unit(m0base, ldsoff, vreg, srdreg, soff, adv, tag, fl=''):
    return ([I(f"s_add_u32 m0, s{m0base}, {ldsoff}")] +
            [I(f"buffer_load_dwordx4 v{vreg+j}, s[{srdreg}:{srdreg+3}], s{soff} offen offset:{1024*j} {CFL} {NTW if srdreg == K.S_W else fl} lds", tag=tag) for j in range(4)] +
            [I(f"s_add_u32 s{soff}, s{soff}, {adv}") if adv >= 0 else I(f"s_sub_u32 s{soff}, s{soff}, {-adv}")])
HOT = '00'
def unit_w(u): return unit(K.sM0W, WSLOT[u & 3], K.vWD, K.S_W, K.sWOFF, 128 if u % 2 == 0 else (64 * 8192 - 128 if HOT[0] == '0' else -128), ("W", u & 3))
def unit_c(u): return unit(K.sM0C, (u & 3) * 16384, K.vCD, K.S_C, K.sCOFF, 1024 * 2048 if u % 2 == 0 else -(1024 * 2048 - (128 if HOT[1] == '0' else 0)), ("C", u & 3), 'nt' if (u >= NTC if NTC > 0 else u < -NTC) else '')
WQ_SCHED = {27: [0], 28: [1, 4], 29: [2, 5], 30: [3], 31: [6]}
def unit_wq(v):
    order = [x for u in sorted(WQ_SCHED) for x in WQ_SCHED[u]] + list(range(7, 15))
    off = lambda x: (x >> 1) * 64 * 8192 + (x & 1) * 128
    return unit(K.sM0W, WSLOT[v % 6], K.vWD, K.S_WQ, K.sWQOFF, off(order[order.index(v) + 1]) - off(v), ("W", v % 6))
X6LOW = True
def unit_x(t): return unit(K.sM0C, (t & 3) * 16384, K.vXD, K.S_X, K.sXOFF, 128, ("C", t & 3)) if (t < 6 or not X6LOW) else unit(K.sM0W, 32768, K.vXD, K.S_X, K.sXOFF, 128, ("C", 2))

def rd_w(buf, slot, x, ks, j):
    r = wfrag(buf, x, ks) + 2 * j
    va, base = (K.vWR, WSLOT[slot]) if slot < 4 else (K.vWR2, WSLOT[slot] - 131072)
    return I(f"ds_read_b64_tr_b16 a[{r}:{r+1}], v{va + (x & 3)} offset:{base + (32 * ks + 4 * j) * 256}")
def rd_w_unit(buf, slot, hx):
    return [rd_w(buf, slot, x, ks, j) for x in range(4 * hx, 4 * hx + 4) for ks in range(2) for j in range(2)]
def rd_c(buf, slot, y4, ks):
    r = cfrag(buf, ks)
    return I(f"ds_read_b128 a[{r}:{r+3}], v{K.vCR + ks} offset:{slot * 16384 + y4 * 2048}")

def weave_units(g, units, lo, hi):
    n = sum(len(u) - 2 for u in units)
    if not n: return
    step = (hi - lo) / float(n)
    x = 0; kk = lo - 1
    link([i for u in units for i in u])
    for un in units:
        k = max(int(lo + x * step), kk + 1)
        k = g.fit_s(max(k - 1, kk + 1 if x else 0), un[0]) + 1
        for j in range(len(un) - 2):
            kk = g.fit(max(k, int(lo + x * step)), un[1 + j]); k = kk; x += 1
        kk = g.fit_s(kk + 1, un[-1])

BIAS = dict(kv=None, q=None, rows=range(1, 8))
sKB, sQB = 101, 40
def row_mfmas(accf, y, wbuf, cbuf, vtype, first, c0="0"):
    ms = []
    for x in range(8):
        for n, ks in enumerate((0, 1) if x % 2 == 0 else (1, 0)):
            w = R("a", wfrag(wbuf, x, ks), 4); c = R("a", cfrag(cbuf, ks), 4)
            d = rr(accf(y, x))
            cin = (c0(y, x) if callable(c0) else c0) if (first and n == 0) else d
            ms.append(mfma(d, c, w, cin) if vtype else mfma(d, w, c, cin))
    return ms

def kv_c0(y, x): return BIAS['kv'] if BIAS['kv'] and (y >= 4 or (y >= 1 and x >= 4)) else "0"
def spread2(g, ins, lo, hi):
    if not PAIR: return g.spread(ins, lo, hi)
    n = len(ins) // 2; k = lo
    for x in range(n):
        k = max(k, lo + x * (hi - lo) // n)
        while g.used(k): k += 1
        g.put(k, ins[2 * x]); g.put(k, ins[2 * x + 1])
PAIR = True
FAST0 = True
def kv_tile(t, vtype, dma, first=False, lo1=51, hi1=108, hi0=44):
    ms = []
    for y in range(8): ms += row_mfmas(kacc, y, t & 1, y & 1, vtype, first)
    g = Gaps(ms)
    for h in (1, 2):
        u = 2 * t + h
        k0 = (4 * h - 1) * 16 - 1
        g.put_s(k0 - 1, WAITV([("C", u & 3), ("W", (u + 2) & 3)], lgkm0=True))
        g.put_s(k0, I("s_barrier"))
    for y in range(8):
        ny = y + 1
        u = 2 * t + (ny >> 2)
        for ks in range(2): g.put(y * 16 + (0 if PAIR else ks), rd_c(ny & 1, u & 3, ny & 3, ks))
        g.put_s(y * 16 + 13, NEED(R("a", cfrag(ny & 1, 0), 8)))
    if first and FAST0:
        for x in range(1, 8, 2): g.put_s(2 * x - 1, NEED(R("a", wfrag(0, x, 0), 16 if x < 7 else 8)))
        g.put_s(14, WAITV([("W", 2)], lgkm0=True)); g.put_s(15, I("s_barrier"))
        spread2(g, rd_w_unit(1, 2, 0), 17, 42)
        spread2(g, rd_w_unit(1, 3, 1), 50, 106)
        a_, b_, c_ = [unit_w(3)], [unit_c(2), unit_w(4)], dma[0] + dma[1]
        link([i for u_ in a_ + b_ + c_ for i in u_])
        weave_units(g, a_, 1, 14); weave_units(g, b_, 17, 46); weave_units(g, c_, 49, 110 if len(c_) > 3 else 90)
        return g
    spread2(g, rd_w_unit((t + 1) & 1, (2 * t + 2) & 3, 0), 1, 42)
    spread2(g, rd_w_unit((t + 1) & 1, (2 * t + 3) & 3, 1), 50, 106)
    short = 2 * t < max(CU)
    weave_units(g, dma[0], 1 if short else 3, 36 if short and len(dma[0]) < 3 else hi0)
    weave_units(g, dma[1], 49 if short else lo1, 90 if short and len(dma[1]) < 3 else hi1)
    return g
CU = (0, 0)
def kv_dma(t):
    out = []
    for u in (2 * t, 2 * t + 1):
        l = []
        if 0 < u <= CU[0]: l.append(unit_c(u + 2))
        if 0 < u <= CU[1]: l.append(unit_w(u + 4))
        if u >= CU[0]: l.append(unit_c(u + 3) if u + 3 < 32 else unit_x(u + 3 - 32))
        if u >= CU[1]:
            if u + 5 < 32: l.append(unit_w(u + 5))
            else: l += [unit_wq(v) for v in WQ_SCHED[u]]
        out.append(l)
    return out

def pack(ta, tb, tmp, yy=None):
    ins = []
    ra, rb = ta[1], tb[1]
    if ta[0] == "a":
        ins += [I(f"v_accvgpr_read_b32 v{tmp+e}, a{ta[1]+e}") for e in range(4)]; ra = tmp
    if tb[0] == "a":
        ins += [I(f"v_accvgpr_read_b32 v{tmp+4+e}, a{tb[1]+e}") for e in range(4)]; rb = tmp + 4
    ins += L(f"""v_cvt_pk_bf16_f32 v{ra}, v{ra}, v{ra+1}
    v_cvt_pk_bf16_f32 v{ra+1}, v{ra+2}, v{ra+3}
    v_cvt_pk_bf16_f32 v{ra+2}, v{rb}, v{rb+1}
    v_cvt_pk_bf16_f32 v{ra+3}, v{rb+2}, v{rb+3}""")
    return ins, ra
NOST = False
WIS = 0
STF = 'sc1'
QSF = 'sc1'
class Storer:
    def __init__(self, sbase, tag, va=None): self.sbase, self.cur, self.tag, self.va = sbase, None, tag, va or K.vST
    def st(self, reg, off):
        ins = []
        if NOST and self.tag == 'KVST': return ins
        if self.cur != off >> 12:
            self.cur = off >> 12
            ins.append(I(f"s_add_u32 s{K.sT}, s{self.sbase}, {(off & ~0xfff) + (0x20000000 if WIS and off >= WIS * 262144 else 0)}")); self.base = ins[-1]
        ins.append(I(f"buffer_store_dwordx4 {reg}, v{self.va}, s[{K.S_WS}:{K.S_WS+3}], s{K.sT} offen offset:{off & 0xfff} {QSF if self.tag == 'QST' else STF}", tag=self.tag))
        link([self.base, ins[-1]])
        return ins
def kv_pairs(vtype):
    if not vtype:
        return [((y, 2 * xp), (y, 2 * xp + 1), (y >> 1) * 262144 + (y & 1) * 8192 + xp * 1024) for y in range(8) for xp in range(4)]
    return [((2 * yp, x), (2 * yp + 1, x), yp * 262144 + x * 2048) for yp in range(4) for x in range(8)]
def qacc_map(vtype):
    if not vtype:
        free = [kacc(1, x) for x in range(8)] + [kacc(y, x) for y in range(2, 8) for x in (1, 3, 5, 7)]
    else:
        free = [kacc(y, x) for y in (1, 3, 5, 7) for x in range(8)]
    return lambda y, x: free[y * 8 + x]

VMR = 6
def seq_fit(g, ins, k, pace=0):
    fresh = False
    link(ins)
    lock = g.__dict__.setdefault("lock", set())
    n = -1
    while n + 1 < len(ins):
        n += 1
        i = ins[n]
        if isinstance(i, int):
            if k + i >= g.n: return g.n, ins[n + 1:]
            k += i; fresh = True
            continue
        need = max(i.slots())
        if i.kind == "label":
            (g.ve[k] if (g.ve[k] and g.ve[k][-1] is ins[n - 1]) else g.sc[k]).append(i)
            continue
        m = 0
        while n + m + 1 < len(ins) and not isinstance(ins[n + m + 1], int) and ins[n + m + 1].extra.get("scc") is i: m += 1
        if m:
            j = k if fresh else k + 1
            while True:
                slots = []; q = j
                while q < g.n and len(slots) < m + 1 and not any(writes_scc(x) for x in g.sc[q] + g.ve[q]) and q not in lock:
                    if g.room_s(q): slots.append(q)
                    q += 1
                if len(slots) == m + 1: break
                if q >= g.n: return g.n, ins[n:]
                j = q + 1
            for x, q in enumerate(slots): g.put_s(q, ins[n + x])
            lock.update(range(slots[0], slots[-1]))
            k = slots[-1]; fresh = False; n += m
            continue
        w = writes_scc(i)
        if i.slots()[0] == 0:
            j = k if fresh else k + 1
            if j < g.n and g.room_s(j) and not (w and j in lock):
                g.put_s(j, i); k = j; fresh = False
                continue
        j = g.vm_slot(k, i, VMR) if VMR else k
        while j < g.n and (not g.room(j, i) or (w and j in lock) or (i.slots()[0] == 0 and g.has_vm(j))): j += 1
        if j >= g.n: return g.n, ins[n:]
        g.put(j, i); k = j; fresh = False
        if pace and i.slots()[0]:
            k = min(j + pace, g.n - 1); fresh = k > j
    return k, []

def q_tile(tau, qacc, last=6):
    ms = []
    for y in range(4): ms += row_mfmas(qacc, y, tau & 1, y & 1, 0, tau == 0, BIAS['q'] or "0")
    g = Gaps(ms)
    if tau < last:
        v0 = 2 * tau + 2
        g.put_s(30, WAITV([("W", (v0 + 1) % 6), ("C", (tau + 1) & 3)], lgkm0=True)); g.put_s(31, I("s_barrier"))
        if tau + 1 < last:
            g.put_s(62, WAITV([("W", (v0 + 2) % 6)], lgkm0=True)); g.put_s(63, I("s_barrier"))
        else:
            g.put_s(62, WAITV([], lgkm0=True)); g.put_s(63, I("s_barrier"))
    for y in range(4):
        if y == 3 and tau == last: continue
        ny = y + 1
        for ks in range(2): g.put(y * 16 + (0 if PAIR else ks), rd_c(ny & 1, (tau + (ny >> 2)) & 3, ny & 3, ks))
        g.put_s(y * 16 + 13, NEED(R("a", cfrag(ny & 1, 0), 8)))
    if tau < last:
        spread2(g, rd_w_unit((tau + 1) & 1, (2 * tau + 2) % 6, 0), 1, 26)
        spread2(g, rd_w_unit((tau + 1) & 1, (2 * tau + 3) % 6, 1), 33, 58)
    u0 = [unit_wq(2 * tau + 7)] if 2 * tau + 7 < 14 else []
    u1 = [unit_wq(2 * tau + 8)] if 2 * tau + 8 < 14 else []
    if tau + 3 < last: u0.append(unit_x(tau + 3))
    if tau == 4: u0.append(unit_x(6))
    if tau == 5 and X6LOW:
        for ks in range(2): g.fit(40, I(f"v_subrev_u32 v{K.vCR + ks}, 0x10000, v{K.vCR + ks}"))
    if len(u0) == 2 and u1: weave_units(g, u0 + u1, 1, 60)
    else: weave_units(g, u0, 1, 28 if tau != 4 else 17); weave_units(g, u1, 34, 58)
    return g

def kv_to_q(vtype, n15, nst, flag_at, flag, stamp, weave, head6, dma6, extra=(), extra_at=8, mid6=()):
    g = kv_tile(15, vtype, kv_dma(15))
    st = Storer(K.sOOFF, "KVST")
    def store(n, reg, off):
        st.tag = "KV1" if n < 8 else ("KVM" if n < 24 and not vtype else "KVST")
        return st.st(reg, off)
    pend = []
    k = 0; carry = []
    prs = kv_pairs(vtype)
    done_at = lambda ta, tb: max(ta[0] * 16 + ta[1] * 2 + 1, tb[0] * 16 + tb[1] * 2 + 1) + 4
    lo = 8 if not vtype else 22
    for n, (ta, tb, off) in enumerate(prs[:n15]):
        ins, reg = pack(kacc(*ta), kacc(*tb), K.vT)
        k, left = seq_fit(g, ins + store(n, R("v", reg, 4), off), max(k, done_at(ta, tb), lo + (n * (118 - lo) // n15 if n15 >= 8 else n * 6))); assert not left
    for grp in (0, 1):
        if grp: k = 0
        for n, (ta, tb, off) in enumerate(prs):
            if n < n15 or (n >= 8) != grp: continue
            ins, reg = pack(kacc(*ta), kacc(*tb), K.vT)
            if n < 8:
                park = 4 * n if vtype else (8 * n if n < 4 else 8 * (n - 4) + 4)
                ins += [I(f"v_accvgpr_write_b32 a{park + e}, v{reg + e}") for e in range(4)]
                pend.append((n, R("a", park, 4), off))
            else:
                pend.append((n, R("v", reg, 4), off))
            if carry: carry += ins; continue
            k, carry = seq_fit(g, ins, max(k, done_at(ta, tb)))
        assert grp or not carry
    pend = pend[:extra_at - n15] + [(None, e, None) for e in extra] + pend[extra_at - n15:]
    def reset(e):
        st.cur = None; return e
    nxt = lambda: (lambda p: reset(p[1]) if p[0] is None else store(*p))(pend.pop(0))
    out = g.flat() + stamp()
    qacc = qacc_map(vtype)
    for tau in range(7):
        g = q_tile(tau, qacc)
        k = 3
        if flag_at == tau - 1: seq_fit(g, list(flag), 0)
        if carry:
            cs = set(map(id, carry))
            k, carry = seq_fit(g, carry, 3 if len(carry) <= 16 else 0); assert not carry
            for q in range(g.n):
                for i in g.ve[q]:
                    if id(i) in cs: assert not any(set(i.reads) & set(g.m[x].writes) for x in range(q + 1)), (q, i.text)
        if tau < 6:
            if tau in weave:
                k2, left = seq_fit(g, list(weave[tau]), 1 if tau != 4 else 17); assert not left, (tau, len(left))
            for n in range(nst[tau]):
                k, left = seq_fit(g, nxt(), max(k, 3 + (58 // nst[tau]) * n)); assert not left
            if flag_at == tau:
                g.sc[62][0].tag = g.sc[62][0].tag + ["KV1"]; assert all(p[0] is None or p[0] >= 8 for p in pend)
            out += g.flat() + stamp()
        else:
            qs = Storer(K.sQOFF, "QST", 13); rest = []
            g.put_s(39, WAITV(["KVM"] if mid6 else [], lgkm0=True)); g.put_s(40, I("s_barrier"))
            assert not mid6 or all(p[0] is None or p[0] >= 24 for p in pend)
            dma6 = list(mid6) + list(dma6)
            k, left = seq_fit(g, list(head6), 0); assert not left and k < 39, k
            k, left2 = seq_fit(g, list(dma6), 41); k = 0
            n6 = nst[6]
            for y in range(4):
                for xp in range(4):
                    ta, tb = qacc(y, 2 * xp), qacc(y, 2 * xp + 1)
                    if BIAS['q']: ins = [I(f"v_fma_f32 v{r[1]+e}, v{r[1]+e}, s{K.sSC}, v31") for r in (ta, tb) for e in range(4)]
                    elif rest: ins = [I(f"v_pk_mul_f32 v[{r[1]+e}:{r[1]+e+1}], v[{r[1]+e}:{r[1]+e+1}], s[{K.sSC - 1}:{K.sSC}] op_sel:[0,1] op_sel_hi:[1,1]") for r in (ta, tb) for e in (0, 2)]
                    else: ins = [I(f"v_mul_f32 v{r[1]+e}, s{K.sSC}, v{r[1]+e}") for r in (ta, tb) for e in range(4)]
                    p, reg = pack(ta, tb, K.vT)
                    ins += p + [I(f"ds_write_b128 v14, v[{reg}:{reg+3}] offset:{y * 8192 + xp * 1024}")]
                    if n6: ins += nxt(); n6 -= 1
                    if rest: rest += ins; continue
                    k0 = max(k, y * 16 + 4 * xp + 3 + 4)
                    k, rest = seq_fit(g, ins, k0)
            from att import mix
            out += g.flat() + (mix(rest, left2, 0, len(rest) // 2) if any(i.slots()[0] for i in left2) else left2 + rest)
    return out, [(p[1], p[2]) for p in pend]

def addr_wd():
    out = ""
    for jn in range(4):
        out += f"""
        v_or_b32 v28, {(jn >> 1) << 2}, v25
        v_lshlrev_b32 v28, 1, v28
        v_xor_b32 v28, v28, v24
        v_lshrrev_b32 v29, 3, v28
        v_lshlrev_b32 v29, 8, v29
        v_and_b32 v28, 7, v28
        v_lshl_add_u32 v28, v28, 4, v29
        v_lshl_add_u32 v28, v25, 13, v28
        s_lshl_b32 s64, s{K.sWAVE}, 17
        s_add_u32 s64, s64, {4*jn*8192 - 1024*jn}
        v_add_u32 v{K.vWD+jn}, s64, v28
        """ if jn % 2 == 0 else f"""
        v_add_u32 v{K.vWD+jn}, {4*8192 - 1024}, v{K.vWD+jn-1}
        """
    return out
def addr_cd():
    out = ""
    for jn in range(2):
        out += f"""
        v_add_u32 v28, {4*jn}, v25
        v_and_b32 v29, 7, v0
        v_xor_b32 v28, v28, v29
        v_lshlrev_b32 v28, 4, v28
        v_lshrrev_b32 v29, 3, v0
        v_lshl_add_u32 v30, v29, 11, v28
        s_lshl_b32 s64, s66, 19
        s_lshl_b32 s67, s65, 20
        s_add_u32 s64, s64, s67
        s_add_u32 s64, s64, {8*jn*2048 - 1024*jn}
        v_add_u32 v{K.vCD+jn}, s64, v30
        v_add_u32 v{K.vCD+jn+2}, {16*2048 - 2048}, v{K.vCD+jn}
        """
    return out
def addr_rd():
    out = """
    v_lshrrev_b32 v26, 2, v24
    v_and_b32 v28, 1, v25
    v_lshl_or_b32 v28, v28, 2, v26
    v_lshl_add_u32 v29, v25, 3, v26
    v_lshlrev_b32 v29, 8, v29
    v_and_b32 v30, 3, v0
    v_lshl_add_u32 v29, v30, 3, v29
    """
    for b in range(4):
        out += f"""
        s_lshl_b32 s64, s65, 2
        s_add_u32 s64, s64, {b}
        v_xor_b32 v30, s64, v28
        v_lshl_add_u32 v{K.vWR+b}, v30, 5, v29
        """
    for ks in range(2):
        out += f"""
        v_add_u32 v28, {4*ks}, v25
        v_lshrrev_b32 v29, 1, v24
        v_xor_b32 v28, v28, v29
        v_lshlrev_b32 v28, 4, v28
        v_lshl_add_u32 v28, v24, 7, v28
        s_lshl_b32 s64, s66, 13
        s_add_u32 s64, s64, 65536
        v_add_u32 v{K.vCR+ks}, s64, v28
        """
    return out

def addr_q():
    out = ""
    for jn in range(2):
        out += f"""
        v_lshrrev_b32 v28, 4, v0
        v_add_u32 v28, {4*jn}, v28
        v_and_b32 v29, 7, v0
        v_xor_b32 v28, v28, v29
        v_lshlrev_b32 v28, 4, v28
        v_lshrrev_b32 v29, 3, v0
        v_mul_u32_u24 v29, 896, v29
        s_mul_i32 s64, s{K.sWAVE}, {32*896}
        s_add_u32 s64, s64, {8*jn*896 - 1024*jn}
        v_add3_u32 v{K.vXD+jn}, v29, v28, s64
        v_add_u32 v{K.vXD+jn+2}, {16*896 - 2048}, v{K.vXD+jn}
        """
    for b in range(4): out += f"v_add_u32 v{K.vWR2+b}, 0x20000, v{K.vWR+b}\n"
    return L(out)
```

```python
from common import *
import kvq
from kvq import K, kacc, rr, pack, Storer, seq_fit, kv_pairs, rd_c, cfrag, row_mfmas, spread2, rd_w_unit, weave_units, unit_c, unit_w
from att2 import A, Freg, Qreg, rd_batch, RPAT

QSLOT = [0, 1, 2, 3, 0, 1, 2]
ORDERS = {"1": [(0, 0), (0, 1), (0, 2), (0, 3), (1, 0), (1, 1), (1, 2), (1, 3), (0, 4), (0, 5), (0, 6), (1, 4), (1, 5), (1, 6)] + [(s, k) for s in (2, 3) for k in range(7)],
          "3": [(0, 0), (0, 1), (0, 2), (0, 3), (0, 4), (0, 5), (1, 0), (0, 6)] + [(1, k) for k in range(1, 7)] + [(s, k) for s in (2, 3) for k in range(7)]}
ORDER = ORDERS["1"]
sM0Q, sQP = 101, 29
vQD = 8
vQL, vQH = 1, 12
vXA = 24
vPK = 16
def xreg(ks, qb): return (176 + (ks * 2 + qb) * 4) if ks < 8 else (128 + ((ks - 8) * 2 + qb) * 4)
def poff(p): return ORDER[p][1] * 64 * 8192 + ORDER[p][0] * 128
def unit_q(p):
    n, pc = p >> 2, p & 3
    return ([I(f"s_add_u32 m0, s{sM0Q}, {QSLOT[n] * 32768 + pc * 8192}")] +
            [I(f"buffer_load_dwordx4 v{vQD + i}, s[{K.S_WQ}:{K.S_WQ + 3}], s{sQP} offen offset:{1024 * i} lds", tag=("T", QSLOT[n])) for i in range(2)] +
            [I(f"s_mov_b32 s{sQP}, {poff(min(p + 1, 27))}")])
sXB, sXO = 38, 39
vXR = 30
def unit_x(kt):
    return ([I(f"s_add_u32 m0, s{sXB}, {(kt & 1) * 16384}")] +
            [I(f"buffer_load_dwordx4 v{vXA + i}, s[{K.S_X}:{K.S_X + 3}], s{sXO} offen offset:{1024 * i} lds", tag=("X", kt & 1)) for i in range(4)] +
            [I(f"s_add_u32 s{sXO}, s{sXO}, 128")])
def x_reads(kt):
    return [I(f"ds_read_b128 a[{xreg(2 * kt + ks, qb)}:{xreg(2 * kt + ks, qb) + 3}], v{vXR + ks} offset:{(kt & 1) * 16384 + qb * 2048}") for ks in range(2) for qb in range(2)]
def x_need(kt): return NEED(R("a", xreg(2 * kt, 0), 16))
def addr_x(sJ):
    return L(f"""
    v_lshrrev_b32 v28, 4, v0
    v_and_b32 v29, 7, v0
    v_xor_b32 v28, v28, v29
    v_lshlrev_b32 v28, 4, v28
    v_lshrrev_b32 v29, 3, v0
    v_mul_u32_u24 v29, 896, v29
    s_lshl_b32 s64, s{sJ}, 3
    s_add_u32 s65, s64, s{K.sWAVE}
    s_mul_i32 s65, s65, {16 * 896}
    s_sub_u32 s64, s64, s{K.sWAVE}
    s_add_u32 s64, s64, 7
    s_mul_i32 s64, s64, {16 * 896}
    s_sub_u32 s64, s64, 2048
    v_add3_u32 v{vXA}, v28, v29, s65
    v_add3_u32 v{vXA + 2}, v28, v29, s64
    v_xor_b32 v28, 64, v28
    v_add_u32 v28, {8 * 896 - 1024}, v28
    v_add3_u32 v{vXA + 1}, v28, v29, s65
    v_add3_u32 v{vXA + 3}, v28, v29, s64
    s_lshl_b32 s{sXB}, s{K.sWAVE}, 12
    s_add_u32 s{sXB}, s{sXB}, 131072
    s_mov_b32 s{sXO}, 0
    """)
def addr_xr():
    return L(f"""
    s_lshr_b32 s64, s{K.sWAVE}, 1
    s_lshl_b32 s64, s64, 13
    s_sub_u32 s64, s{sXB}, s64
    s_sub_u32 s64, s64, 65536
    v_add_u32 v{vXR}, s64, v{K.vCR}
    v_add_u32 v{vXR + 1}, s64, v{K.vCR + 1}
    """)
def addr_qd():
    return L(f"""
    v_lshrrev_b32 v28, 3, v0
    v_bfe_u32 v29, v0, 4, 1
    v_bfe_u32 v10, v0, 1, 2
    v_xor_b32 v29, v29, v10
    v_lshlrev_b32 v29, 5, v29
    v_and_b32 v10, 1, v0
    v_lshl_or_b32 v29, v10, 4, v29
    v_lshl_or_b32 v28, v28, 13, v29
    s_lshl_b32 s64, s{K.sWAVE}, 17
    s_lshl_b32 s{sM0Q}, s{K.sWAVE}, 11
    v_add_u32 v{vQD}, s64, v28
    v_xor_b32 v28, 64, v{vQD}
    v_add_u32 v{vQD + 1}, {8 * 8192 - 1024}, v28
    s_mov_b32 s{sQP}, {poff(0)}
    """)
def addr_qr():
    out = f"""
    v_lshrrev_b32 v28, 4, v0
    v_bfe_u32 v29, v0, 2, 2
    v_lshl_add_u32 v28, v28, 3, v29
    v_lshlrev_b32 v28, 7, v28
    v_and_b32 v29, 3, v0
    v_lshl_or_b32 v28, v29, 3, v28
    v_bfe_u32 v29, v0, 3, 2
    """
    for db in range(4):
        out += f"""v_xor_b32 v10, {db}, v29
        v_lshl_or_b32 v{vQL + db}, v10, 5, v28
        v_add_u32 v{vQH + db}, 0x10000, v{vQL + db}
        """
    return L(out)

def qacc(vt, s, db, qb):
    i = db * 2 + qb
    if vt: return kacc(2 * s + 1, i)
    return kacc(1, i) if s == 0 else kacc(2 * s + (i >> 2), 2 * (i & 3) + 1)
def units_of(n):
    if n == 6 and len({ORDER[24 + p][0] for p in range(4)}) == 1:
        return [(p0 + pp, d0 + dd) for d0 in (0, 2) for p0 in (0, 2) for dd in (0, 1) for pp in (0, 1)]
    return [(pc, db) for pc in range(4) for db in range(4)]
def q_reads(n, b):
    out = []
    slot = QSLOT[n]
    for u, (pc, db) in enumerate(units_of(n)[4 * b:4 * b + 4]):
        va = (vQL if slot < 2 else vQH) + db
        for ks in range(2):
            for j in range(2):
                r = Freg(b, 2 * u + ks) + 2 * j
                out.append(I(f"ds_read_b64_tr_b16 a[{r}:{r + 1}], v{va} offset:{(slot & 1) * 32768 + pc * 8192 + (32 * ks + 4 * j) * 128}"))
    return out
def q_mfmas(vt, n):
    ms = []; done = {}
    for u, (pc, db) in enumerate(units_of(n)):
        s, kt = ORDER[4 * n + pc]
        for qb in range(2):
            d = rr(qacc(vt, s, db, qb))
            for m, ks in enumerate((0, 1) if qb == 0 else (1, 0)):
                ms.append(mfma(d, R("a", Freg(u >> 2, 2 * (u & 3) + ks), 4), R("a", xreg(2 * kt + ks, qb), 4), "0" if kt == 0 and m == 0 else d))
            done[(s, db, qb)] = (kt, len(ms) - 1)
    return ms, done
def q_conv(vt, s, p, qb):
    a, b = qacc(vt, s, 2 * p, qb)[1], qacc(vt, s, 2 * p + 1, qb)[1]
    q = Qreg(qb, 2 * s + p)
    return ([I(f"v_mul_f32 v{r + e}, s{K.sSC}, v{r + e}") for r in (a, b) for e in range(4)] +
            L(f"""v_cvt_pk_bf16_f32 v{a}, v{a}, v{a+1}
            v_cvt_pk_bf16_f32 v{a+1}, v{a+2}, v{a+3}
            v_cvt_pk_bf16_f32 v{a+2}, v{b}, v{b+1}
            v_cvt_pk_bf16_f32 v{a+3}, v{b+2}, v{b+3}""") + [I(f"v_accvgpr_write_b32 a{q + e}, v{a + e}") for e in range(4)])

def place_vm(g, streams, avoid=(), caps=None):
    items = []
    for si, (ins, lo, hi) in enumerate(streams):
        link(ins)
        grp = []; cur = []
        for i in ins:
            cur.append(i)
            if i.slots()[0]: grp.append(cur); cur = []
        for x, gr in enumerate(grp): items.append((lo + (x + 0.5) * (hi - lo) / len(grp) - 0.5 * (hi - lo) / len(grp), si, gr, cur if x == len(grp) - 1 else []))
    items.sort(key=lambda t: (t[0], t[1]))
    if caps:
        nlo = sum(1 for t in items if t[0] < 46)
        nlo = max(min(nlo, caps[0]), len(items) - caps[1]); assert nlo <= caps[0], len(items)
        a = items[:nlo]; b = items[nlo:]
        a0 = min(t[0] for t in a)
        items = [(max(streams[t[1]][1], a0 + x * (45.9 - a0) / max(len(a) - 1, 1)),) + t[1:] for x, t in enumerate(a)]
        items += [(49 + x * 13.0 / len(b),) + t[1:] for x, t in enumerate(b)]
    last = {}; lock = g.__dict__.get('lock', ())
    for tgt, si, gr, tail in items:
        k = last.get(si, -1)
        ns = len(gr) - 1
        j = max(int(tgt), k + 1 + ns)
        while True:
            assert j < g.n, "no room for memory op"
            free = [q for q in range(k + 1, j) if g.room_s(q) and q not in lock]
            if g.used(j) == 0 and not g.has_s(j) and j not in avoid and not g.has_vm(j - 1) and not (j + 1 < g.n and g.has_vm(j + 1)) and len(free) >= ns: break
            j += 1
        for q, i in zip(free[len(free) - ns:] if ns else [], gr[:-1]): g.put_s(q, i)
        g.put(j, gr[-1]); last[si] = j
        for i in tail:
            j = g.fit_s(j + 1, i); last[si] = j
    return last
def place_reads(g, rs, lo, hi):
    G = [k for k in range(lo, hi) if g.used(k) == 0]
    n = len(rs); d = n - len(G)
    if d <= 0:
        pos = [G[x * len(G) // n] for x in range(n)]
    else:
        assert 2 * d <= len(G) + 1, (n, len(G))
        dbl = set(); x = 0
        cand = [G[int((y + 0.5) * len(G) / d)] for y in range(d)]
        for c in cand:
            while c in dbl or c - 1 in dbl or c + 1 in dbl or c not in G or g.nrd(c - 1) > 1: c += 1
            assert c < hi
            dbl.add(c)
        pos = [k for k in G for _ in range(2 if k in dbl else 1)]
    for k, r in zip(pos, rs): g.put(k, r)
    return pos

class VQ:
    def __init__(self): self.q = []; self.w0 = 0
    def add(self, ins, at=0):
        link(ins); self.q += [(at, i) for i in ins]
    def run(self, g, base, lo=0, hi=None):
        k = lo; hi = g.n if hi is None else hi
        self.base = base; self.placed = []
        while self.q:
            at, i = self.q[0]
            k = max(k, at - base)
            if i.slots()[0] == 0:
                k += 1
                while k < hi and not g.room_s(k): k += 1
                if k >= hi: break
                g.put_s(k, i)
            else:
                while k < hi and not g.room(k, i): k += 1
                if k >= hi: break
                g.put(k, i)
            self.placed.append(self.q.pop(0))
        return k
    def force(self, g, k, pred):
        idx = [n for n, (at, i) in enumerate(self.q) if pred(i)]
        if not idx: return 0
        for at, i in self.q[:idx[-1] + 1]: g.put(k, i)
        self.q = self.q[idx[-1] + 1:]
        return idx[-1] + 1

    def force_level(self, g, pred, lo, hi):
        idx = [n for n, (at, i) in enumerate(self.q) if pred(i)]
        if not idx: return 0
        extra = self.q[:idx[-1] + 1]; self.q = self.q[idx[-1] + 1:]
        mine = [(at, i) for at, i in self.placed if any(i in g.ve[k] for k in range(lo, hi))]
        for k in range(lo, hi): g.ve[k] = [i for i in g.ve[k] if not any(i is x for _, x in mine)]
        items = mine + extra
        ks = [k for k in range(lo, hi) if not g.has_vm(k) and not any(x.op == "s_barrier" for x in g.sc[k])]
        tot = len(items) + sum(g.used(k) for k in ks); acc = 0
        for x, k in enumerate(ks):
            acc += g.used(k)
            while items and ((acc + 1 <= (x + 1) * tot / len(ks) + 0.5 and items[0][0] - self.base <= k) or x == len(ks) - 1):
                g.put(k, items.pop(0)[1]); acc += 1
        return len(extra)

def kv_dma2(t):
    out = []
    for u in (2 * t, 2 * t + 1):
        l = []
        if u + 3 < 32: l.append(unit_c(u + 3))
        if u + 5 < 32: l.append(unit_w(u + 5))
        l += [unit_q(p) for p in {28: range(4), 30: range(4, 8), 31: range(8, 12)}.get(u, ())]
        l += [unit_x(kt) for kt in {27: (0, 1), 29: (2, 3), 31: (4,)}.get(u, ())]
        out.append(l)
    return out
def tile15(vt):
    ms = []
    for y in range(8): ms += row_mfmas(kacc, y, 1, y & 1, vt, False)
    g = Gaps(ms)
    g.put_s(46, WAITV([("C", 3)], lgkm0=True)); g.put_s(47, I("s_barrier"))
    g.put_s(110, WAITV([("T", 0)], lgkm0=True)); g.put_s(111, I("s_barrier"))
    for y in range(7):
        ny = y + 1
        for ks in range(2): g.put(y * 16, rd_c(ny & 1, (30 + (ny >> 2)) & 3, ny & 3, ks))
        g.put_s(y * 16 + 13, NEED(R("a", cfrag(ny & 1, 0), 8)))
    g.put_s(127, NEED(R("a", Freg(0, 0), 16)))
    return g
def q_window(vt, n):
    ms, done = q_mfmas(vt, n)
    g = Gaps(ms)
    g.put_s(7, NEED(R("a", Freg(0, 4), 16)))
    for b in (1, 2):
        g.put_s(16 * b - 1, NEED(R("a", Freg(b, 0), 16))); g.put_s(16 * b + 7, NEED(R("a", Freg(b, 4), 16)))
    g.put_s(47, I("s_barrier"))
    return g, done

def tile0(pt):
    from kvq import rd_w, wfrag
    cf = lambda y: 160 + 8 * y if y < 2 else 176 + 8 * (y - 2)
    rc = lambda y, ks: I(f"ds_read_b128 a[{cf(y) + 4 * ks}:{cf(y) + 4 * ks + 3}], v{K.vCR + ks} offset:{y * 2048}")
    wr = rd_w_unit(0, 0, 0)
    pre = [rc(0, 0), rc(0, 1)] + wr[:8] + [rc(1, 0), rc(1, 1)] + wr[8:] + [rc(y, ks) for y in (2, 3) for ks in range(2)]
    ms = []
    for hx in range(2):
        for y in range(4):
            for x in range(4 * hx, 4 * hx + 4):
                for n, ks in enumerate((0, 1) if x % 2 == 0 else (1, 0)):
                    w = R("a", wfrag(0, x, ks), 4); c = R("a", cf(y) + 4 * ks, 4); d = rr(kacc(y, x))
                    c0 = kvq.kv_c0(y, x) if n == 0 else d
                    ms.append(mfma(d, c, w, c0) if pt else mfma(d, w, c, c0))
    for y in range(4, 8): ms += row_mfmas(kacc, y, 0, y & 1, pt, True, kvq.kv_c0)
    g = Gaps(ms)
    g.pre = [NEED(R("a", cf(0), 8), R("a", wfrag(0, 0, 0), 8))]
    g.put_s(1, NEED(R("a", wfrag(0, 1, 0), 8))); g.put_s(3, NEED(R("a", wfrag(0, 2, 0), 8), R("a", cf(1), 8))); g.put_s(5, NEED(R("a", wfrag(0, 3, 0), 8)))
    for k, tags in ((15, [("W", 1)]), (47, [("C", 1), ("W", 2)]), (79, [("W", 3)]), (111, [("C", 2), ("W", 0)])):
        g.put_s(k - 1, WAITV(tags, lgkm0=True)); g.put_s(k, I("s_barrier"))
    for y in range(3, 8):
        ny = y + 1
        for ks in range(2): g.put(y * 16, rd_c(ny & 1, ny >> 2, ny & 3, ks))
        g.put_s(y * 16 + 13, NEED(R("a", cfrag(ny & 1, 0), 8)))
    spread2(g, rd_w_unit(0, 1, 1), 16, 28)
    g.put_s(31, NEED(R("a", wfrag(0, 4, 0), 32)))
    spread2(g, rd_w_unit(1, 2, 0), 50, 76)
    spread2(g, rd_w_unit(1, 3, 1), 82, 108)
    a_, b_, c_, d_ = [unit_w(3)], [unit_c(2), unit_w(4)], [unit_c(3), unit_w(5)], [unit_c(4), unit_w(6)]
    link([i for u_ in a_ + b_ + c_ + d_ for i in u_])
    weave_units(g, a_, 6, 14); weave_units(g, b_, 17, 45); weave_units(g, c_, 49, 77); weave_units(g, d_, 81, 109)
    return pre, g
```

```python
from common import *
import side
from side import sWAVE, sH, sJ, WS, OOB, FOP_LOAD, poll_flags
RS = [dict(row=10, off=12, g=15, x=16, b=32, acc=48, nu=2, col=(75, 76)), dict(row=29, off=28, g=26, x=96, b=80, acc=64, nu=1, col=(86,))]
RV = dict(row=10, off=12, g=15, x=16, b=32, acc=48, nu=1, col=(86,))
def fop(vl16, t, sE, sL):
    return L(f"""
    s_sub_u32 s64, 15, s{sJ}
    s_min_u32 s64, s64, s{sJ}
    s_mul_i32 s{sE}, s64, {2 * FSTR}
    s_lshl_b32 s64, s{sWAVE}, 6
    s_add_u32 s64, s64, s{sH}
    s_lshl2_add_u32 s{sE}, s64, s{sE}
    s_add_u32 s{sE}, s{sE}, {WS_FOP}
    s_movk_i32 s65, 1024
    s_cmp_lt_u32 s{sJ}, 8
    s_cselect_b32 s64, {FSTR}, s65
    s_cselect_b32 s65, 0, 64
    s_cselect_b32 s66, 32, 64
    s_add_u32 s{sL}, s{sE}, s64
    s_add_u32 s{sE}, s{sE}, s65
    v_lshrrev_b32 v{t + 2}, 5, v{vl16}
    v_mul_u32_u24 v{t + 2}, {FSTR}, v{t + 2}
    v_and_b32 v{t + 1}, 16, v{vl16}
    v_lshl_add_u32 v{t + 1}, v{t + 1}, 3, v{t + 2}
    v_mov_b32 v{t + 2}, {OOB}
    v_cmp_gt_u32 vcc, s66, v{vl16}
    v_mov_b32 v{t}, 1
    s_nop 0
    v_cndmask_b32 v{t + 1}, v{t + 2}, v{t + 1}, vcc
    """)
def rows(r):
    o = f"""
    v_mul_u32_u24 v{r['off']}, 896, v{r['row']}
    v_lshl_add_u32 v{r['off']}, v11, 4, v{r['off']}
    v_lshrrev_b32 v13, 4, v{r['row']}
    v_lshlrev_b32 v13, 5, v13
    v_and_b32 v104, 15, v{r['row']}
    v_add_lshl_u32 v13, v13, v104, 2
    buffer_load_dword v{r['g']}, v13, {WS}, s64 offen sc1
    """
    for u in range(r['nu']): o += f"buffer_load_dwordx4 v[{r['x'] + 4*u}:{r['x'] + 4*u + 3}], v{r['off']}, s[56:59], s{r['col'][u]} offen\n"
    return L(o)
def head(V):
    pair = f"s_sub_u32 s64, 15, s{sJ}\ns_lshl_b32 s64, s64, 1" if V else f"s_lshl_b32 s64, s{sJ}, 1"
    out = L(f"""
    {pair}
    s_lshr_b32 s65, s{sH}, 3
    s_add_u32 s46, s64, s65
    s_mul_i32 s46, s46, {FSTR}
    s_and_b32 s72, s{sH}, 7
    s_lshl_b32 s66, s72, 7
    s_add_u32 s46, s46, s66
    s_add_u32 s46, s46, {WS_FOP + (1024 if V else 0)}
    v_and_b32 v14, {15 if V else 31}, v0
    v_lshlrev_b32 v14, 2, v14
    {FOP_LOAD}
    s_mul_i32 s86, s65, {3 if V else 4}
    s_add_u32 s86, s86, s{sWAVE}
    {'s_add_u32 s86, s86, 8' if V else ''}
    s_mul_i32 s77, s{sJ}, {16 * OP_HEAD}
    s_mul_i32 s78, s72, 14336
    s_add_u32 s77, s77, s78
    s_add_u32 s77, s77, {WS_OP}
    """) + (L(f"""
    s_lshl_b32 s78, s86, 10
    s_add_u32 s77, s77, s78
    """) if V else L(f"""
    s_sub_u32 s64, 15, s64
    s_sub_u32 s78, s64, 1
    s_mul_i32 s78, s78, {16 * OP_HEAD}
    s_add_u32 s78, s78, s77
    s_lshl_b32 s66, s86, 10
    s_add_u32 s78, s78, s66
    s_lshl_b32 s66, s74, 10
    s_add_u32 s77, s77, s66
    s_lshl_b32 s66, s64, 7
    """)) + L(f"""
    s_lshl_b32 s86, s86, 6
    {side.ROWMAP}
    s_lshl_b32 s65, s{sJ}, 7
    s_add_u32 s73, s73, s65
    v_and_b32 v10, 15, v0
    v_add_u32 v10, s73, v10
    {'' if V else 'v_add_u32 v29, s66, v10'}
    s_mov_b32 s64, {WS_RG + 64}
    """)
    for r in ([RV] if V else RS): out += rows(r) + [I(f"v_mov_b32 v{r['acc'] + n}, 0") for n in range(8 * r['nu'])]
    return out
def base_term(r, tag):
    n = r['nu']
    return [i for w in range(4 * n) for i in L(f"v_lshlrev_b32 v{r['b']+2*w}, 16, v{r['x']+w}\nv_and_b32 v{r['b']+1+2*w}, 0xffff0000, v{r['x']+w}")] + L(f"""
    v_sub_f32 v13, 1.0, v{r['g']}
    v_cmp_eq_u32 s[80:81], s84, v{r['row']}
    v_cmp_eq_u32 s[82:83], s85, v{r['row']}
    s_or_b64 vcc, s[80:81], s[82:83]
    s_cbranch_vccnz L_moe{tag}
    L_moe_ret{tag}:
    """) + [I(f"v_mul_f32 v{r['b']+e}, v13, v{r['b']+e}") for e in range(8 * n)]
def fin(r, note=""):
    o = []
    for u in range(r['nu']):
        if side.SWAP: o += [I("s_nop 2")] + [I(f"v_permlane16_swap_b32 v{r['acc']+8*u+e}, v{r['acc']+8*u+4+e}") for e in range(4)]
        o += [I(f"v_fmac_f32 v{r['b']+8*u+e}, v{r['g']}, v{r['acc']+8*u+e}") for e in range(8)]
        o += [I(f"v_cvt_pk_bf16_f32 v{r['x']+4*u+w}, v{r['b']+8*u+2*w}, v{r['b']+1+8*u+2*w}") for w in range(4)]
        o.append(I(f"buffer_store_dwordx4 v[{r['x']+4*u}:{r['x']+3+4*u}], v{r['off']}, s[52:55], s{r['col'][u]} offen {side.OSF}{note}"))
    return o
def dots(r, src): return [i for w in range(4 * r['nu']) for i in L(f"v_dot2c_f32_bf16 v{r['acc']+2*w}, v{src+w}, v24\nv_dot2c_f32_bf16 v{r['acc']+1+2*w}, v{src+w}, v25")]
START = f"v_cmp_eq_u32 vcc, 1, v9\ns_mov_b32 s91, {SPIN_MAX}\ns_mov_b32 s69, 0\n"
def main_v(vl16, st, lag):
    out = L(START + "s_and_b32 s70, vcc_lo, 0xffff\ns_or_b32 s68, s70, 0xffff0000")
    for k in range(16 + lag):
        if k < 16:
            out += L(f"""s_cmp_lg_u32 s70, 0
            s_cbranch_scc1 L_vk{k}
            s_call_b64 s[36:37], L_rpoll
            L_vk{k}:
            s_ff1_i32_b32 s71, s70
            s_bitset0_b32 s70, s71
            s_mul_i32 s71, s71, {OP_HEAD}
            s_add_u32 s71, s71, s77
            buffer_load_dwordx4 v[{128+4*k}:{131+4*k}], v{vl16}, {WS}, s71 offen sc1""")
        if k == 1: out += base_term(RV, 2)
        if k == 15: out += st()
        if k >= lag: out += [NEED(R("v", 128 + 4 * (k - lag), 4))] + dots(RV, 128 + 4 * (k - lag))
    return out + st() + L("s_nop 1") + fin(RV)
def main_k(vl16, st, lag):
    out = L(START + "s_mov_b32 s70, vcc_lo\ns_mov_b32 s68, vcc_lo")
    far = []
    for k in range(32 + lag):
        if k < 32:
            r = 128 + 8 * (k % 16)
            out += L(f"""s_cmp_lg_u32 s70, 0
            s_cbranch_scc1 L_rk{k}
            s_call_b64 s[36:37], L_rpoll
            L_rk{k}:
            s_ff1_i32_b32 s71, s70
            s_bitset0_b32 s70, s71
            s_cmp_ge_u32 s71, 16
            s_cselect_b32 s72, s78, s77
            s_cselect_b32 s73, {hex(1 << k)}, 0
            s_cselect_b32 s87, {OOB}, 0
            s_mul_i32 s71, s71, {OP_HEAD}
            s_add_u32 s71, s71, s72
            buffer_load_dwordx4 v[{r}:{r+3}], v{vl16}, {WS}, s71 offen sc1
            s_or_b32 s69, s69, s73
            s_or_b32 s71, s71, s87
            buffer_load_dwordx4 v[{r+4}:{r+7}], v27, {WS}, s71 offen sc1""")
        if k in (1, 2): out += base_term(RS[k - 1], k - 1)
        if k == 31: out += st()
        if k >= lag:
            kk = k - lag; r = 128 + 8 * (kk % 16); f = 0 if kk < 16 else 1
            out += [NEED(R("v", r, 8))] + L(f"s_bitcmp{1 - f}_b32 s69, {kk}\ns_cbranch_scc1 L_rx{kk}") + dots(RS[f], r) + L(f"L_ry{kk}:")
            far += L(f"L_rx{kk}:") + dots(RS[1 - f], r) + L(f"s_branch L_ry{kk}")
        if k == 27:
            out += L(f"""s_and_b32 s71, s69, {hex((1 << (k - lag + 1)) - 1)}
            s_bcnt1_i32_b32 s71, s71
            s_cmp_eq_u32 s71, {k - lag + 1 - 16}
            s_cselect_b32 s66, 1, 0
            s_cbranch_scc0 L_rne""") + fin(RS[0], " ; nocount") + L("L_rne:")
    out += st() + L("s_nop 1") + fin(RS[1]) + L("s_cmp_eq_u32 s66, 1\ns_cbranch_scc1 L_rdone") + fin(RS[0]) + L("L_rdone:")
    return out, far
def moe():
    out = []
    for tag, r in ((0, RS[0]), (1, RS[1]), (2, RV)):
        out += L(f"L_moe{tag}:\ns_lshl_b32 s88, s{r['col'][0]}, 1\ns_call_b64 s[36:37], L_moe")
        out += [I(f"v_add_f32 v{r['b']+e}, v{108+e}, v{r['b']+e}") for e in range(8 * r['nu'])] + L(f"s_mov_b64 exec, -1\ns_branch L_moe_ret{tag}")
    return out + L(f"""
    L_moe:
    v_min_u32 v104, 27, v0
    v_lshlrev_b32 v104, 2, v104
    s_mov_b32 s64, {WS_FH + 512}
    """) + poll_flags(64, 64, "L_pfy", 105, 104, 65) + L(f"""
    s_or_b64 exec, s[80:81], s[82:83]
    v_mov_b32 v104, 1792
    v_cndmask_b32 v104, v104, 0, s[80:81]
    v_lshl_add_u32 v104, v11, 5, v104
    s_add_u32 s88, s88, {WS_YF}
    buffer_load_dwordx4 v[108:111], v104, {WS}, s88 offen sc1
    buffer_load_dwordx4 v[112:115], v104, {WS}, s88 offen offset:16 sc1
    buffer_load_dwordx4 v[116:119], v104, {WS}, s88 offen offset:512 sc1
    buffer_load_dwordx4 v[120:123], v104, {WS}, s88 offen offset:528 sc1
    s_waitcnt vmcnt(0)
    s_setpc_b64 s[36:37]
    """)
```

```python
from common import *
S_WS, S_DBG = 8, 12
sWAVE, sH, sJ = 20, 41, 42
WS = f"s[{S_WS}:{S_WS+3}]"
OOB = 0x20000000

def wave_sum(regs, tmps):
    out = []
    for sh in ("row_ror:8", "row_ror:4", "row_ror:2", "row_ror:1"):
        for r in regs: out.append(I(f"v_add_f32 v{r}, v{r}, v{r} {sh} row_mask:0xf bank_mask:0xf"))
    for sw in ("v_permlane16_swap_b32", "v_permlane32_swap_b32"):
        for r, t in zip(regs, tmps): out.append(I(f"v_mov_b32 v{t}, v{r}"))
        for r, t in zip(regs, tmps): out.append(I(f"{sw} v{t}, v{r}"))
        for r, t in zip(regs, tmps): out.append(I(f"v_add_f32 v{r}, v{t}, v{r}"))
    return out

def sigmoid(r, t):
    return L(f"""v_mul_f32 v{t}, 0xbfb8aa3b, v{r}
    v_exp_f32 v{t}, v{t}
    v_add_f32 v{t}, 1.0, v{t}
    v_rcp_f32 v{r}, v{t}""")

RNT = 'nt'
def r_loads(zero=True):
    return L(f"""
    s_lshl_b32 s64, s2, 2
    s_add_u32 s64, s64, s{sWAVE}
    s_mul_i32 s72, s64, 1792
    """) + [I(f"v_mov_b32 v{40+r}, 0") for r in range(16 if zero else 0)] + L(f"""
    s_mov_b32 exec_hi, 0x00ffffff
    buffer_load_dwordx4 v[40:43], v7, s[56:59], s72 offen {RNT}
    buffer_load_dwordx4 v[44:47], v7, s[56:59], s72 offen offset:896 {RNT}
    buffer_load_dwordx4 v[48:51], v7, s[60:63], 0 offen
    buffer_load_dwordx4 v[52:55], v7, s[68:71], 0 offen
    s_mov_b64 exec, -1
    """)
def r_compute():
    out = [I(f"v_mov_b32 v{56+r}, 0") for r in range(4)]
    for w in range(4):
        for n, (xr, wr) in enumerate(((40, 48), (44, 48), (40, 52), (44, 52))):
            out.append(I(f"v_dot2c_f32_bf16 v{56+n}, v{xr+w}, v{wr+w}"))
    out += wave_sum([56, 57, 58, 59], [60, 61, 62, 63])
    out += L(f"""
    v_cmp_eq_u32 vcc, 0, v0
    v_cndmask_b32 v56, v57, v56, vcc
    v_cndmask_b32 v58, v59, v58, vcc
    s_lshl_b32 s64, s2, 3
    s_lshl_b32 s72, s{sWAVE}, 1
    s_add_u32 s64, s64, s72
    v_add_u32 v60, s64, v0
    v_ashrrev_i32 v61, 31, v56
    v_or_b32 v61, 0x80000000, v61
    v_xor_b32 v61, v61, v56
    v_and_b32 v61, 0xfffff800, v61
    v_sub_u32 v62, 2047, v60
    v_or_b32 v61, v61, v62
    v_max_u32 v61, 1, v61
    """) + sigmoid(58, 59) + L(f"""
    s_lshl_b32 s72, s{sWAVE}, 3
    s_add_u32 s72, s72, {LDS_R}
    v_lshl_add_u32 v60, v0, 2, s72
    s_mov_b64 exec, 3
    ds_write_b32 v60, v61
    ds_write_b32 v60, v56 offset:32
    ds_write_b32 v60, v58 offset:64
    s_mov_b64 exec, -1
    """)
    return out
def r_store(skip):
    return L(f"""
    s_cmp_lg_u32 s{sWAVE}, 0
    s_cbranch_scc1 {skip}
    v_lshlrev_b32 v28, 2, v0
    v_add_u32 v29, {LDS_R}, v28
    s_mov_b32 exec_hi, 0
    ds_read_b32 v29, v29 ; ignore
    s_lshl_b32 s72, s2, 7
    s_add_u32 s72, s72, {WS_R}
    s_waitcnt lgkmcnt(0) ; ignore
    buffer_store_dword v29, v28, {WS}, s72 offen sc1 ; nocount
    s_mov_b64 exec, -1
    s_cmp_ge_u32 s2, 13
    s_cbranch_scc1 {skip}
    v_mov_b32 v32, 0
    v_mov_b32 v33, 0
    v_mov_b32 v34, 0
    v_mov_b32 v35, 0
    s_lshl_b32 s72, s2, 10
    s_add_u32 s72, s72, {WS_FKV}
    buffer_store_dwordx4 v[32:35], v7, {WS}, s72 offen sc1 ; nocount
    {skip}:
    """)
def r_signal(skip):
    return L(f"""
    s_cmp_lg_u32 s{sWAVE}, 0
    s_cbranch_scc1 {skip}
    v_mov_b32 v28, 1
    s_mov_b64 exec, 1
    buffer_atomic_add v28, off, s[{S_DBG}:{S_DBG+3}], 0 sc1 ; nocount
    s_mov_b64 exec, -1
    {skip}:
    """)

def wo_dma():
    out = L(f"""
    v_lshrrev_b32 v28, 5, v0
    v_mul_u32_u24 v28, 896, v28
    v_and_b32 v29, 31, v0
    v_lshl_add_u32 v28, v29, 4, v28
    s_lshr_b32 s64, s{sJ}, 1
    s_lshl_b32 s64, s64, 5
    s_lshl_b32 s72, s{sH}, 8
    s_add_u32 s64, s64, s72
    s_lshl_b32 s72, s{sWAVE}, 3
    s_add_u32 s64, s64, s72
    s_mul_i32 s64, s64, 896
    s_and_b32 s72, s{sJ}, 1
    s_mul_i32 s72, s72, 448
    s_add_u32 s64, s64, s72
    s_lshl_b32 s72, s{sWAVE}, 12
    s_add_u32 m0, s72, 131072
    s_mov_b32 exec_lo, 0x0fffffff
    s_mov_b32 exec_hi, 0x0fffffff
    """)
    for j in range(4):
        out.append(I(f"buffer_load_dwordx4 v28, s[60:63], s64 offen offset:{1024*j} lds", tag="WO"))
        if j < 3: out.append(I(f"s_add_u32 s64, s64, {2*896 - 1024}"))
    out.append(I("s_mov_b64 exec, -1"))
    return out
def wo_setup():
    out = L(f"""
    v_and_b32 v28, 15, v0
    v_lshrrev_b32 v29, 4, v0
    v_lshrrev_b32 v30, 2, v28
    v_lshl_add_u32 v29, v29, 2, v30
    v_lshlrev_b32 v29, 9, v29
    v_and_b32 v28, 3, v28
    v_lshl_add_u32 v29, v28, 4, v29
    s_lshr_b32 s64, s{sWAVE}, 1
    s_lshl_b32 s64, s64, 6
    s_and_b32 s72, s{sWAVE}, 1
    s_lshl_b32 s72, s72, 3
    s_add_u32 s64, s64, s72
    s_add_u32 s64, s64, 131072
    v_add_u32 v31, s64, v29
    s_lshl_b32 s73, s{sH}, 18
    s_lshr_b32 s64, s{sJ}, 1
    s_lshl_b32 s64, s64, 10
    s_add_u32 s73, s73, s64
    s_add_u32 s73, s73, {WS_WO}
    s_and_b32 s74, s{sJ}, 1
    s_mul_i32 s74, s74, 14
    s_add_u32 s74, s74, s{sWAVE}
    """)
    for n in range(4):
        out += L(f"""
        s_add_u32 s64, s74, {4*n}
        s_lshr_b32 s72, s64, 2
        s_lshl_b32 s72, s72, 15
        s_and_b32 s64, s64, 3
        s_lshl_b32 s64, s64, 13
        s_add_u32 s72, s73, s72
        s_add_u32 s{76+n}, s72, s64
        """)
    out += L(f"""
    s_cmp_lt_u32 s{sWAVE}, 2
    s_cselect_b64 s[74:75], -1, 0
    """)
    return out
def wo_reads():
    return [I(f"ds_read_b64_tr_b16 a[{192+4*n+2*j}:{193+4*n+2*j}], v31 offset:{n*128 + j*8192}") for n in range(4) for j in range(2)]
def wo_stores():
    st = [[I(f"buffer_store_dwordx4 a[{176+4*n}:{179+4*n}], v7, {WS}, s{76+n} offen sc1" + (" ; nocount" if n == 3 else ""))] for n in range(4)]
    st[3] = [I("s_mov_b64 exec, s[74:75]")] + st[3] + [I("s_mov_b64 exec, -1")]
    return st

def set_flag(addr_sreg, skip, vt):
    return L(f"""
    s_cmp_lg_u32 s{sWAVE}, 0
    s_cbranch_scc1 {skip}
    v_mov_b32 v{vt}, 1
    s_mov_b64 exec, 1
    buffer_store_dword v{vt}, off, {WS}, s{addr_sreg} sc1 ; nocount
    s_mov_b64 exec, -1
    {skip}:
    """)
def poll_flags(addr_sreg, nl, label, vt, va, sc):
    return L(f"""
    s_mov_b32 s{sc}, {SPIN_MAX}
    s_mov_b32 exec_lo, {hex(((1 << nl) - 1) & 0xffffffff)}
    s_mov_b32 exec_hi, {hex(((1 << nl) - 1) >> 32)}
    {label}:
    buffer_load_dword v{vt}, v{va}, {WS}, s{addr_sreg} offen sc1
    s_sub_u32 s{sc}, s{sc}, 1
    s_cbranch_scc1 {label}_x
    s_waitcnt vmcnt(0)
    v_cmp_ne_u32 vcc, 1, v{vt}
    s_cbranch_vccz {label}_x
    s_sleep 2
    s_branch {label}
    {label}_x:
    s_waitcnt vmcnt(0)
    s_mov_b64 exec, -1
    """)
def poll_count(label, vt, sc, n):
    return L(f"""
    s_mov_b32 s{sc}, {SPIN_MAX}
    {label}:
    buffer_load_dword v{vt}, off, s[{S_DBG}:{S_DBG+3}], 0 sc1
    s_sub_u32 s{sc}, s{sc}, 1
    s_cbranch_scc1 {label}_x
    s_waitcnt vmcnt(0)
    v_cmp_gt_u32 vcc, {n}, v{vt}
    s_cbranch_vccnz {label}
    {label}_x:
    s_waitcnt vmcnt(0)
    """)

def h_keys(vl16):
    return [I(f"buffer_load_dwordx4 v[{64+4*n}:{67+4*n}], v{vl16}, {WS}, s{90 + n // 4} offen offset:{(n & 3) * 1024} sc1") for n in range(8)]
def h_keymin():
    out = L("v_min3_u32 v14, v64, v65, v66")
    for n in range(3, 31, 2): out += L(f"v_min3_u32 v14, v14, v{64+n}, v{65+n}")
    return out + L("v_min_u32 v14, v14, v95\nv_cmp_eq_u32 vcc, 0, v14")
def h_stub(vl16):
    return (L(f"L_hs:\ns_mov_b32 s64, {SPIN_MAX}\nL_hs_l:") + h_keys(vl16) + L("s_waitcnt vmcnt(0)\ns_sub_u32 s64, s64, 1\ns_cbranch_scc1 L_hr") +
            h_keymin() + L("s_cbranch_vccnz L_hs_l\ns_branch L_hr"))
def h_block(vl16, lds=65536, after=()):
    out = L(f"""
    s_load_dwordx4 s[64:67], s[0:1], {A_WG}
    s_load_dwordx2 s[72:73], s[0:1], {A_WD}
    s_load_dwordx2 s[74:75], s[0:1], {A_X}
    s_and_b32 s76, s{sH}, 7
    s_mul_i32 s76, s76, 14
    s_lshr_b32 s77, s{sH}, 3
    s_mul_i32 s77, s77, 7
    s_add_u32 s76, s76, s77
    s_add_u32 s76, s76, s{sJ}
    s_mov_b32 s90, {WS_KEY}
    s_mov_b32 s91, {WS_KEY + 4096}
    """)
    out += h_keys(vl16)
    out += L(f"""
    {srd(52, 64, 448*3584)}
    {srd(56, 66, 448*3584)}
    {srd(60, 72, 1792*896)}
    {srd(68, 74, 2048*896)}
    v_lshrrev_b32 v10, 1, v0
    v_mul_u32_u24 v10, 3584, v10
    v_and_b32 v11, 1, v0
    v_lshl_add_u32 v10, v11, 4, v10
    s_lshl_b32 s77, s76, 5
    s_and_b32 s78, s{sWAVE}, 1
    s_mul_i32 s79, s78, {7 * 32 * 3584}
    s_add_u32 s77, s77, s79
    s_mul_i32 s79, s{sWAVE}, 7168
    s_add_u32 s79, s79, {lds}
    s_cmp_lt_u32 s{sWAVE}, 2
    s_cselect_b32 s52, s52, s56
    s_cselect_b32 s53, s53, s57
    """)
    for n in range(7):
        out += L(f"""s_add_u32 m0, s79, {n * 1024}
        s_nop 0""") + [I(f"buffer_load_dwordx4 v10, s[52:55], s77 offen lds", tag="HW")] + L(f"s_add_u32 s77, s77, {32 * 3584}")
    out += L(f"""
    v_lshlrev_b32 v11, 2, v0
    s_mul_i32 s77, s76, {16 * 896}
    s_mul_i32 s78, s{sWAVE}, 224
    s_add_u32 s77, s77, s78
    s_mov_b32 exec_hi, 0x00ffffff
    """)
    for f in range(16):
        if f and f % 4 == 0: out.append(I(f"s_add_u32 s77, s77, {4 * 896}"))
        out.append(I(f"buffer_load_dword v{100+f}, v11, s[60:63], s77 offen offset:{(f & 3) * 896}"))
    out.append(I("s_mov_b64 exec, -1"))
    out += h_keymin() + L("s_cbranch_vccnz L_hs\nL_hr:")
    out += L("v_max_u32 v12, v64, v65\nv_min_u32 v13, v64, v65")
    for n in range(2, 32):
        out += L(f"v_med3_u32 v13, v12, v13, v{64+n}\nv_max_u32 v12, v12, v{64+n}")
    def merge():
        return L("""v_min_u32 v16, v12, v14
        v_max_u32 v12, v12, v14
        v_max3_u32 v13, v13, v15, v16""")
    for sh in ("row_ror:8", "row_ror:4", "row_ror:2", "row_ror:1"):
        out += L(f"""v_mov_b32 v14, v12 {sh} row_mask:0xf bank_mask:0xf
        v_mov_b32 v15, v13 {sh} row_mask:0xf bank_mask:0xf""") + merge()
    for sw in ("v_permlane16_swap_b32", "v_permlane32_swap_b32"):
        out += L(f"""v_mov_b32 v14, v12
        v_mov_b32 v15, v13
        {sw} v14, v12
        {sw} v15, v13""") + merge()
    out += L(f"""
    v_and_b32 v12, 0x7ff, v12
    v_and_b32 v13, 0x7ff, v13
    v_sub_u32 v12, 2047, v12
    v_sub_u32 v13, 2047, v13
    v_and_b32 v14, 1, v0
    v_cmp_eq_u32 vcc, 0, v14
    v_cndmask_b32 v14, v13, v12, vcc
    v_lshrrev_b32 v17, 3, v14
    v_lshlrev_b32 v17, 4, v17
    v_and_b32 v15, 7, v14
    v_add_lshl_u32 v17, v17, v15, 2
    s_mov_b32 s77, {WS_RG}
    buffer_load_dword v18, v17, {WS}, s77 offen sc1
    v_mul_u32_u24 v15, 896, v14
    v_lshrrev_b32 v16, 4, v0
    v_lshl_add_u32 v15, v16, 4, v15
    """)
    for ks in range(14):
        out.append(I(f"buffer_load_dwordx4 v[{128+4*ks}:{131+4*ks}], v15, s[68:71], 0 offen offset:{64*ks}"))
    out += L(f"""
    v_and_b32 v19, 15, v0
    v_lshrrev_b32 v19, 2, v19
    v_lshl_add_u32 v19, v16, 3, v19
    v_lshlrev_b32 v19, 5, v19
    v_and_b32 v20, 3, v0
    v_lshl_add_u32 v19, v20, 3, v19
    v_add_u32 v19, {lds}, v19
    """) + [WAITV(["HW", "KVST"]), I("s_barrier")] + list(after)
    for mt in range(2):
        for ks in range(14):
            for j in range(2):
                r = mt * 56 + ks * 4 + 2 * j
                out.append(I(f"ds_read_b64_tr_b16 a[{r}:{r+1}], v19 offset:{mt * 14336 + ks * 1024 + j * 128}"))
    for mt in range(2):
        for ks in range(14):
            d = R("v", 24 + 4 * mt, 4)
            out.append(mfma(d, R("v", 128 + 4 * ks, 4), R("a", mt * 56 + ks * 4, 4), d if ks else "0"))
    out += L("""
    v_cvt_pk_bf16_f32 v24, v24, v25
    v_cvt_pk_bf16_f32 v28, v28, v29
    v_lshlrev_b32 v20, 16, v24
    v_and_b32 v21, 0xffff0000, v24
    v_mov_b32 v22, v20
    v_mov_b32 v23, v21
    """) + sigmoid(22, 26) + sigmoid(23, 27) + L("""
    v_mul_f32 v20, v20, v22
    v_mul_f32 v21, v21, v23
    v_cvt_pk_bf16_f32 v24, v20, v21
    v_lshlrev_b32 v20, 16, v24
    v_and_b32 v21, 0xffff0000, v24
    v_lshlrev_b32 v22, 16, v28
    v_and_b32 v23, 0xffff0000, v28
    v_mul_f32 v20, v20, v22
    v_mul_f32 v21, v21, v23
    v_cvt_pk_bf16_f32 v24, v20, v21
    v_lshlrev_b32 v20, 16, v24
    v_and_b32 v21, 0xffff0000, v24
    """)
    out += [I(f"v_mov_b32 v{32+n}, 0") for n in range(4)]
    for f in range(16):
        out += L(f"""v_readlane_b32 s80, v20, {f}
        v_readlane_b32 s81, v21, {f}
        v_lshlrev_b32 v22, 16, v{100+f}
        v_and_b32 v23, 0xffff0000, v{100+f}
        v_fmac_f32 v32, s80, v22
        v_fmac_f32 v33, s80, v23
        v_fmac_f32 v34, s81, v22
        v_fmac_f32 v35, s81, v23""")
    out += L(f"""
    s_mul_i32 s77, s{sWAVE}, 448
    s_mul_i32 s78, s76, 3584
    s_add_u32 s77, s77, s78
    s_add_u32 s77, s77, {WS_Y}
    v_lshlrev_b32 v22, 3, v0
    s_mov_b32 exec_hi, 0x00ffffff
    buffer_store_dwordx2 v[32:33], v22, {WS}, s77 offen sc1
    buffer_store_dwordx2 v[34:35], v22, {WS}, s77 offen offset:1792 sc1
    s_mov_b64 exec, -1
    v_cvt_pk_bf16_f32 v18, v18, v18
    v_and_b32 v18, 0xffff0000, v18
    """) + sigmoid(18, 22) + L(f"""
    v_cvt_pk_bf16_f32 v18, v18, v18
    v_and_b32 v18, 0xffff0000, v18
    s_mov_b32 s77, {WS_SEL}
    s_or_b32 s78, s76, s{sWAVE}
    s_cmp_eq_u32 s78, 0
    s_cselect_b64 exec, 3, 0
    buffer_store_dword v14, v11, {WS}, s77 offen sc1 ; nocount
    buffer_store_dword v18, v11, {WS}, s77 offen offset:8 sc1 ; nocount
    s_mov_b64 exec, -1
    s_lshl_b32 s39, s76, 2
    s_add_u32 s39, s39, {WS_FH}
    """)
    return out

FH0_LOAD = f"buffer_load_dword v24, off, {WS}, s79 sc1"
FOP_LOAD = f"buffer_load_dword v9, v14, {WS}, s46 offen sc1"
EPAR, NE = 0, 7
def sel_a(vl16):
    return L(f"""
    s_mov_b32 s79, {WS_FL}
    {FH0_LOAD}
    v_lshrrev_b32 v0, 4, v{vl16}
    v_and_b32 v14, 15, v0
    v_lshlrev_b32 v14, 2, v14
    v_lshrrev_b32 v11, 4, v0
    {GPERM}
    {srd(52, 96, 2048*896)}
    {f's_and_b32 s74, s{sH}, 1' if EPAR < 2 else f's_lshr_b32 s74, s{sH}, 3'}
    s_xor_b32 s74, s74, {EPAR & 1}
    s_mul_i32 s67, s74, {14 - 2 * NE}
    s_mul_i32 s74, s74, {NE}
    s_add_u32 s74, s74, s{sWAVE}
    s_lshl_b32 s75, s74, 6
    s_add_u32 s76, s75, 256
    s_add_u32 s67, s67, {NE - 5}
    s_sub_u32 s67, s67, s{sWAVE}
    s_and_b32 s67, s67, {OOB}
    s_or_b32 s76, s76, s67
    v_or_b32 v27, s67, v{vl16}
    v_add_u32 v27, 4096, v27
    """)
def sel_b(tag):
    return L(f"""
    v_cmp_gt_u32 vcc, {SELLV}, v24
    s_mov_b32 s65, {WS_SEL}
    s_cbranch_vccnz L_fhs{tag}
    L_fhr{tag}:
    buffer_load_dword v25, v14, {WS}, s65 offen sc1
    """)
def sel_c():
    return L("""
    v_readlane_b32 s84, v25, 0
    v_readlane_b32 s85, v25, 1
    v_mov_b32 v24, 0x3f80
    v_mov_b32 v25, 0x3f800000
    """)
RS = [dict(row=10, off=12, g=15, x=16, b=32, acc=48), dict(row=29, off=28, g=26, x=96, b=80, acc=64)]
OSF = ''
GPERM = ''
SWAP = False
WI = False
ROWMAP = 's_lshl_b32 s73, s72, 4'
SELLV = 4
def red_a(vl16):
    out = L(f"""
    s_lshl_b32 s64, s{sJ}, 1
    s_lshr_b32 s65, s{sH}, 3
    s_add_u32 s46, s64, s65
    s_mul_i32 s46, s46, {FSTR}
    s_and_b32 s65, s{sH}, 7
    s_lshl_b32 s65, s65, 7
    s_add_u32 s46, s46, s65
    s_add_u32 s46, s46, {WS_FOP}
    v_and_b32 v14, 31, v0
    v_lshlrev_b32 v14, 2, v14
    {FOP_LOAD}
    s_sub_u32 s64, 15, s64
    {f's_lshr_b32 s72, s{sH}, 1' if EPAR < 2 else f's_and_b32 s72, s{sH}, 7'}
    s_mul_i32 s77, s{sJ}, {16 * OP_HEAD}
    s_mul_i32 s78, s72, 14336
    s_add_u32 s77, s77, s78
    s_lshl_b32 s78, s74, 10
    s_add_u32 s77, s77, s78
    s_add_u32 s77, s77, {WS_OP}
    s_sub_u32 s78, s64, 1
    s_mul_i32 s78, s78, {16 * OP_HEAD}
    s_add_u32 s78, s78, s77
    {ROWMAP}
    s_lshl_b32 s65, s{sJ}, 7
    s_add_u32 s73, s73, s65
    s_lshl_b32 s64, s64, 7
    v_and_b32 v10, 15, v0
    v_add_u32 v10, s73, v10
    v_add_u32 v29, s64, v10
    s_mov_b32 s64, {WS_RG + 64}
    """)
    for r in RS:
        out += L(f"""
        v_mul_u32_u24 v{r['off']}, 896, v{r['row']}
        v_lshl_add_u32 v{r['off']}, v11, 4, v{r['off']}
        v_lshrrev_b32 v13, 4, v{r['row']}
        v_lshlrev_b32 v13, 5, v13
        v_and_b32 v104, 15, v{r['row']}
        v_add_lshl_u32 v13, v13, v104, 2
        buffer_load_dword v{r['g']}, v13, {WS}, s64 offen sc1
        buffer_load_dwordx4 v[{r['x']}:{r['x']+3}], v{r['off']}, s[56:59], s75 offen
        buffer_load_dwordx4 v[{r['x']+4}:{r['x']+7}], v{r['off']}, s[56:59], s76 offen
        """)
    return out + [I(f"v_mov_b32 v{48+n}, 0") for n in range(32)]
def red_b(t):
    r = RS[t]
    return [i for w in range(8) for i in L(f"v_lshlrev_b32 v{r['b']+2*w}, 16, v{r['x']+w}\nv_and_b32 v{r['b']+1+2*w}, 0xffff0000, v{r['x']+w}")] + L(f"""
    v_sub_f32 v13, 1.0, v{r['g']}
    v_cmp_eq_u32 s[80:81], s84, v{r['row']}
    v_cmp_eq_u32 s[82:83], s85, v{r['row']}
    s_or_b64 vcc, s[80:81], s[82:83]
    s_cbranch_vccnz L_moe{t}
    L_moe_ret{t}:
    """) + [I(f"v_mul_f32 v{r['b']+e}, v13, v{r['b']+e}") for e in range(16)]
def red_main(vl16, st=lambda: [], lag=6, early=True, sent=True):
    out = L(f"""
    v_cmp_eq_u32 vcc, 1, v9
    s_mov_b32 s91, {SPIN_MAX}
    s_mov_b32 s69, 0
    s_mov_b32 s70, vcc_lo
    s_mov_b32 s68, vcc_lo
    """)
    ring = [16, 17, 18, 19, 48, 49, 50, 51]; assert lag < 8
    def acc(k):
        d = lambda t: [i for w in range(8) for i in L(f"v_dot2c_f32_bf16 v{RS[t]['acc']+2*w}, v{128+8*(k%16)+w}, v24\nv_dot2c_f32_bf16 v{RS[t]['acc']+1+2*w}, v{128+8*(k%16)+w}, v25")]
        if sent:
            r = 128 + 8 * (k % 16); d0 = d
            tst = f"v_max3_u32 v13, v{r}, v{r+1}, v{r+2}\nv_max3_u32 v104, v{r+3}, v{r+4}, v{r+5}\nv_max3_u32 v13, v13, v{r+6}, v{r+7}\nv_max_u32 v13, v13, v104\nv_cmp_eq_u32 vcc, -1, v13"
            d = lambda t: d0(0) if t == 0 else L(tst + f"\ns_cbranch_vccnz L_rz{k}\nL_rw{k}:") + d0(1)
            far.extend(L(f"""L_rz{k}:
            buffer_load_dwordx4 v[{r}:{r+3}], v{vl16}, {WS}, s{ring[k % 8]} offen sc1
            buffer_load_dwordx4 v[{r+4}:{r+7}], v27, {WS}, s{ring[k % 8]} offen sc1
            s_waitcnt vmcnt(0)
            {tst}
            s_sub_u32 s91, s91, 1
            s_cbranch_scc1 L_rw{k}
            s_cbranch_vccnz L_rz{k}
            s_branch L_rw{k}"""))
        f = 0 if k < 16 else 1
        return ([NEED(R("v", 128 + 8 * (k % 16), 8))] + L(f"s_bitcmp{1 - f}_b32 s69, {k}\ns_cbranch_scc1 L_rx{k}") + d(f) + L(f"L_ry{k}:"),
                L(f"L_rx{k}:") + d(1 - f) + L(f"s_branch L_ry{k}"))
    def fin(t, note=""):
        r = RS[t]; o = []
        for u in range(2):
            if SWAP: o += [I("s_nop 2")] + [I(f"v_permlane16_swap_b32 v{r['acc']+8*u+e}, v{r['acc']+8*u+4+e}") for e in range(4)]
            o += [I(f"v_fmac_f32 v{r['b']+8*u+e}, v{r['g']}, v{r['acc']+8*u+e}") for e in range(8)]
            o += [I(f"v_cvt_pk_bf16_f32 v{r['x']+4*u+w}, v{r['b']+8*u+2*w}, v{r['b']+1+8*u+2*w}") for w in range(4)]
            o.append(I(f"buffer_store_dwordx4 v[{r['x']+4*u}:{r['x']+3+4*u}], v{r['off']}, s[52:55], s{75+u} offen {OSF}{note}"))
        return o
    far = []
    for k in range(32 + lag):
        if k < 32:
            out += L(f"""s_cmp_lg_u32 s70, 0
            s_cbranch_scc1 L_rk{k}
            s_call_b64 s[36:37], L_rpoll
            L_rk{k}:
            s_ff1_i32_b32 s71, s70
            s_bitset0_b32 s70, s71
            s_cmp_ge_u32 s71, 16
            s_cselect_b32 s72, s78, s77
            s_cselect_b32 s73, {hex(1 << k)}, 0
            {'s_bitcmp1_b32 s71, 3' + chr(10) + f's_cselect_b32 s72, {OOB}, s72' if WI else ''}
            s_mul_i32 s71, s71, {OP_HEAD}
            s_add_u32 s{ring[k % 8]}, s71, s72
            buffer_load_dwordx4 v[{128+8*(k%16)}:{131+8*(k%16)}], v{vl16}, {WS}, s{ring[k % 8]} offen sc1
            s_or_b32 s69, s69, s73
            buffer_load_dwordx4 v[{132+8*(k%16)}:{135+8*(k%16)}], v27, {WS}, s{ring[k % 8]} offen sc1""")
        if k in (1, 2): out += red_b(k - 1)
        if k == 31: out += st()
        if k >= lag:
            a_, f_ = acc(k - lag); out += a_; far += f_
        if early and k == 27:
            out += L(f"""s_and_b32 s71, s69, {hex((1 << (k - lag + 1)) - 1)}
            s_bcnt1_i32_b32 s71, s71
            s_cmp_eq_u32 s71, {k - lag + 1 - 16}
            s_cselect_b32 s66, 1, 0
            s_cbranch_scc0 L_rne""") + fin(0, " ; nocount") + L("L_rne:")
    out += st() + L("s_nop 1") + fin(1)
    if early: out += L("s_cmp_eq_u32 s66, 1\ns_cbranch_scc1 L_rdone")
    out += fin(0) + L("L_rdone:")
    return out, far
def red_poll():
    return L(f"""
    L_rpoll0:
    s_sleep 1
    L_rpoll:
    {FOP_LOAD}
    s_waitcnt vmcnt(0)
    v_cmp_eq_u32 vcc, 1, v9
    s_sub_u32 s91, s91, 1
    s_cselect_b32 s70, -1, 0
    s_or_b32 s70, s70, vcc_lo
    s_andn2_b32 s70, s70, s68
    s_cbranch_scc0 L_rpoll0
    s_or_b32 s68, s68, s70
    s_setpc_b64 s[36:37]
    """)
def red_moe():
    out = []
    for t in range(2):
        out += L(f"L_moe{t}:\ns_call_b64 s[36:37], L_moe") + [I(f"v_add_f32 v{RS[t]['b']+e}, v{108+e}, v{RS[t]['b']+e}") for e in range(16)] + L(f"s_mov_b64 exec, -1\ns_branch L_moe_ret{t}")
    out += L(f"""
    L_moe:
    v_min_u32 v104, 27, v0
    v_lshlrev_b32 v104, 2, v104
    s_mov_b32 s64, {WS_FH + 512}
    """) + poll_flags(64, 64, "L_pfy", 105, 104, 65) + L(f"""
    s_or_b64 exec, s[80:81], s[82:83]
    v_mov_b32 v104, 1792
    v_cndmask_b32 v104, v104, 0, s[80:81]
    v_lshl_add_u32 v104, v11, 5, v104
    s_lshl_b32 s88, s75, 1
    s_add_u32 s88, s88, {WS_YF}
    buffer_load_dwordx4 v[108:111], v104, {WS}, s88 offen sc1
    buffer_load_dwordx4 v[112:115], v104, {WS}, s88 offen offset:16 sc1
    buffer_load_dwordx4 v[116:119], v104, {WS}, s88 offen offset:512 sc1
    buffer_load_dwordx4 v[120:123], v104, {WS}, s88 offen offset:528 sc1
    s_waitcnt vmcnt(0)
    s_setpc_b64 s[36:37]
    """)
    return out
def y_reduce():
    out = L(f"""
    L_yred:
    s_lshl_b32 s89, s{sH}, 1
    s_add_u32 s89, s89, s{sWAVE}
    s_cmp_ge_u32 s89, 28
    s_cbranch_scc1 L_yred_ret
    v_lshrrev_b32 v20, 4, v7
    v_lshrrev_b32 v21, 3, v20
    v_mul_u32_u24 v21, {FSTR}, v21
    v_and_b32 v22, 7, v20
    v_lshl_add_u32 v21, v22, 7, v21
    s_mov_b32 s64, {WS_FL}
    s_mov_b32 s88, {WS_FL + 8 * FSTR}
    s_mov_b32 s91, {SPIN_MAX}
    L_yp:
    buffer_load_dword v22, v21, {WS}, s64 offen sc1
    buffer_load_dword v23, v21, {WS}, s88 offen sc1
    s_waitcnt vmcnt(0)
    v_min_u32 v22, v22, v23
    v_cmp_gt_u32 vcc, 4, v22
    s_sub_u32 s91, s91, 1
    s_cbranch_scc1 L_ypx
    s_cbranch_vccnz L_yp
    L_ypx:
    s_cmp_lt_u32 s89, 14
    s_cselect_b32 s64, 8, 12
    s_add_u32 s64, s64, {WS_SEL}
    buffer_load_dword v23, off, {WS}, s64 sc1
    v_lshrrev_b32 v21, 3, v20
    v_mul_u32_u24 v21, 3584, v21
    v_and_b32 v22, 7, v20
    v_lshl_add_u32 v21, v22, 4, v21
    s_lshl_b32 s88, s89, 7
    s_add_u32 s90, s88, {WS_YF}
    s_add_u32 s88, s88, {WS_Y}
    """)
    for n in range(14):
        out += L(f"buffer_load_dwordx4 v[{64+4*n}:{67+4*n}], v21, {WS}, s88 offen sc1\ns_add_u32 s88, s88, {8 * 3584}")
    out += L("s_branch L_yred_ret\nL_yred2:\ns_cmp_ge_u32 s89, 28\ns_cbranch_scc1 L_yred2_ret\nv_mov_b32 v22, 1\ns_waitcnt vmcnt(0)")
    acc = [64 + e for e in range(4)]
    for n in range(1, 14): out += [I(f"v_add_f32 v{a}, v{a + 4 * n}, v{a}") for a in acc]
    out += [I(f"v_add_f32 v{a}, v{a}, v{a} row_ror:8 row_mask:0xf bank_mask:0xf") for a in acc]
    for sw in ("v_permlane16_swap_b32", "v_permlane32_swap_b32"):
        out += [I(f"v_mov_b32 v{a + 4}, v{a}") for a in acc]
        out += [I(f"{sw} v{a + 4}, v{a}") for a in acc]
        out += [I(f"v_add_f32 v{a}, v{a + 4}, v{a}") for a in acc]
    for rep in range(2):
        for p in (64, 66):
            out += L(f"v_cvt_pk_bf16_f32 v21, v{p}, v{p+1}\nv_lshlrev_b32 v{p}, 16, v21\nv_and_b32 v{p+1}, 0xffff0000, v21")
        if rep == 0: out += [I(f"v_mul_f32 v{a}, v23, v{a}") for a in acc]
    out += L(f"""
    s_mov_b64 exec, 0xff
    buffer_store_dwordx4 v[64:67], v7, {WS}, s90 offen sc1
    s_lshl_b32 s89, s89, 2
    s_add_u32 s89, s89, {WS_FH + 512}
    s_mov_b64 exec, 1
    s_waitcnt vmcnt(0)
    buffer_store_dword v22, off, {WS}, s89 sc1
    s_mov_b64 exec, -1
    s_branch L_yred2_ret
    """)
    return out


JUNK = 240
NTT = "nt"
def touch(vaddr, srdreg, soff, imm=0, nt=True):
    return I(f"buffer_load_dword a{JUNK}, v{vaddr}, s[{srdreg}:{srdreg+3}], {soff} offen offset:{imm} {NTT if nt else ('sc1' if srdreg == S_WS else '')}", tag="TOUCH")
def code_addr(v, t):
    if v == t: return L(f"v_and_b32 v{v}, 48, v0\nv_lshlrev_b32 v{v}, 17, v{v}\nv_or_b32 v{v}, v{v}, v0\nv_lshl_add_u32 v{v}, v{v}, 7, s95")
    return L(f"""
    v_lshl_add_u32 v{t}, v0, 7, s95
    v_and_b32 v{v}, 48, v0
    v_lshl_add_u32 v{v}, v{v}, 24, v{t}
    """)
def code_touch():
    return L(f"""
    s_getpc_b64 s[76:77]
    L_pc0:
    s_and_b32 s77, s77, 0xffff
    s_mov_b32 s78, L_code_end-L_pc0
    s_mov_b32 s79, 0x20000
    s_lshr_b32 s64, s2, 3
    s_lshl_b32 s64, s64, 2
    s_add_u32 s64, s64, s{sWAVE}
    s_lshl_b32 s95, s64, 11
    """) + code_addr(28, 29) + [touch(28, 76, 0, nt=False)]
def kv_touch_setup(sKV):
    return L(f"""
    s_lshr_b32 s64, s{sH}, 3
    s_lshl_b32 s64, s64, 1
    s_add_u32 s64, s64, s{sKV}
    s_lshl_b32 s64, s64, 2
    s_add_u32 s64, s64, s{sWAVE}
    s_lshl_b32 s64, s64, 15
    v_lshrrev_b32 v28, 1, v0
    v_and_b32 v29, 1, v0
    v_lshlrev_b32 v29, 7, v29
    v_lshl_add_u32 v28, v28, 11, v29
    v_add_u32 v24, s64, v28
    v_and_b32 v28, 32, v0
    v_lshl_add_u32 v24, v28, 24, v24
    s_lshr_b32 s64, s{sJ}, 1
    s_lshl_b32 s64, s64, 2
    s_add_u32 s64, s64, s{sWAVE}
    s_lshl_b32 s64, s64, 15
    v_lshrrev_b32 v28, 2, v0
    v_and_b32 v29, 3, v0
    v_lshlrev_b32 v29, 7, v29
    v_lshl_add_u32 v28, v28, 13, v29
    v_add_u32 v25, s64, v28
    v_and_b32 v28, 48, v0
    v_lshl_add_u32 v25, v28, 24, v25
    """)
def kv_touch(sc, sw):
    return [touch(24, sc, 0), touch(25, sw, 0), I("v_add_u32 v24, 256, v24"), I(f"v_add_u32 v25, {128 * 8192}, v25")]
def q_touch(swq, sx, px):
    pre = L(f"""
    s_lshl_b32 s64, s{sJ}, 2
    s_add_u32 s64, s64, s{sWAVE}
    s_mul_i32 s64, s64, {7 * 8192}
    v_lshrrev_b32 v28, 2, v0
    v_and_b32 v29, 3, v0
    v_lshlrev_b32 v29, 7, v29
    v_lshl_add_u32 v28, v28, 13, v29
    v_add_u32 v16, s64, v28
    v_mov_b32 v29, 0x20000000
    v_cmp_gt_u32 vcc, 28, v0
    s_lshl_b32 s64, s{sJ}, 1
    s_lshr_b32 s72, s{sH}, 3
    v_cndmask_b32 v16, v29, v16, vcc
    s_add_u32 s64, s64, s72
    s_lshl_b32 s64, s64, 2
    s_add_u32 s64, s64, s{sWAVE}
    s_mul_i32 s64, s64, 14336
    v_lshl_add_u32 v17, v0, 7, s64
    v_cmp_gt_u32 vcc, 56, v0
    s_nop 1
    v_cndmask_b32 v17, v29, v17, vcc
    s_mov_b32 s67, 7168
    """)
    return pre, [touch(16, swq, 0)] + ([touch(17, sx, 0), touch(17, sx, "s67")] if px else [])
def h_touch_srd():
    return L(f"""
    s_load_dwordx4 s[80:83], s[0:1], {A_WG}
    s_load_dwordx2 s[84:85], s[0:1], {A_WD}
    """)
def h_touch():
    return L(f"""
    s_lshr_b32 s64, s2, 3
    s_lshl_b32 s64, s64, 2
    s_add_u32 s64, s64, s{sWAVE}
    s_cmp_lt_u32 s64, 64
    s_cselect_b32 s72, s80, s82
    s_cselect_b32 s73, s81, s83
    {srd(60, 72, 448*3584)}
    {srd(68, 84, 1792*896)}
    s_and_b32 s72, s64, 63
    s_mul_i32 s72, s72, {7 * 3584}
    s_and_b32 s73, s{sH}, 7
    s_mul_i32 s74, s73, 448
    s_add_u32 s72, s72, s74
    s_and_b32 s72, s72, 0xffffff80
    v_lshrrev_b32 v28, 2, v0
    v_mul_u32_u24 v28, 3584, v28
    v_and_b32 v29, 3, v0
    v_lshl_add_u32 v28, v29, 7, v28
    v_add_u32 v28, s72, v28
    v_mov_b32 v29, 0x20000000
    v_cmp_gt_u32 vcc, 28, v0
    s_mul_i32 s73, s73, {224 * 896}
    s_mul_i32 s64, s64, 1664
    v_cndmask_b32 v30, v29, v28, vcc
    s_add_u32 s64, s64, s73
    v_lshl_add_u32 v28, v0, 7, s64
    v_cmp_gt_u32 vcc, 13, v0
    s_nop 1
    v_cndmask_b32 v31, v29, v28, vcc
    """), [touch(30, 60, 0), touch(31, 68, 0)]


def bg_r_loads():
    return L(f"""
    s_lshl_b32 s64, s2, 2
    s_add_u32 s64, s64, s{sWAVE}
    s_mul_i32 s72, s64, 1792
    v_mov_b32 v28, {OOB}
    v_cmp_gt_u32 vcc, 56, v0
    s_nop 0
    v_cndmask_b32 v28, v28, v7, vcc
    buffer_load_dwordx4 v[16:19], v28, s[56:59], s72 offen
    buffer_load_dwordx4 v[20:23], v28, s[56:59], s72 offen offset:896
    buffer_load_dwordx4 a[176:179], v28, s[60:63], 0 offen
    buffer_load_dwordx4 a[180:183], v28, s[68:71], 0 offen
    """)
def bg_r_compute():
    out = [I(f"v_mov_b32 v{28+r}, 0") for r in range(4)]
    for w in range(4):
        out += L(f"""v_accvgpr_read_b32 v26, a{176+w}
        v_accvgpr_read_b32 v27, a{180+w}
        v_dot2c_f32_bf16 v28, v{16+w}, v26
        v_dot2c_f32_bf16 v29, v{20+w}, v26
        v_dot2c_f32_bf16 v30, v{16+w}, v27
        v_dot2c_f32_bf16 v31, v{20+w}, v27""")
    out += wave_sum([28, 29, 30, 31], [16, 17, 18, 19])
    out += L(f"""
    v_cmp_eq_u32 vcc, 0, v0
    s_lshl_b32 s64, s2, 3
    s_lshl_b32 s72, s{sWAVE}, 1
    v_cndmask_b32 v28, v29, v28, vcc
    v_cndmask_b32 v30, v31, v30, vcc
    s_add_u32 s64, s64, s72
    v_add_u32 v16, s64, v0
    v_ashrrev_i32 v17, 31, v28
    v_or_b32 v17, 0x80000000, v17
    v_xor_b32 v17, v17, v28
    v_and_b32 v17, 0xfffff800, v17
    v_sub_u32 v18, 2047, v16
    v_or_b32 v17, v17, v18
    """) + sigmoid(30, 31) + L(f"""
    s_lshl_b32 s72, s{sWAVE}, 3
    s_add_u32 s72, s72, {LDS_R}
    v_lshl_add_u32 v16, v0, 2, s72
    v_mov_b32 v18, {LDS_R + 128}
    v_cmp_gt_u32 vcc, 2, v0
    s_nop 0
    v_cndmask_b32 v16, v18, v16, vcc
    ds_write_b32 v16, v17
    ds_write_b32 v16, v28 offset:32
    ds_write_b32 v16, v30 offset:64
    """)
    return out
def bg_r_store():
    return L(f"""
    v_and_b32 v16, 31, v0
    v_lshlrev_b32 v16, 2, v16
    v_add_u32 v17, {LDS_R}, v16
    ds_read_b32 v17, v17
    s_cmp_eq_u32 s{sWAVE}, 0
    s_cselect_b32 s64, 0, {OOB}
    v_and_b32 v18, 32, v0
    v_lshl_add_u32 v16, v18, 24, v16
    v_or_b32 v16, s64, v16
    s_lshl_b32 s72, s2, 7
    s_add_u32 s72, s72, {WS_R}
    s_cmp_lt_u32 s2, 14
    s_cselect_b32 s64, s64, {OOB}
    v_or_b32 v18, s64, v7
    v_mov_b32 v20, 0
    v_mov_b32 v21, 0
    v_mov_b32 v22, 0
    v_mov_b32 v23, 0
    s_and_b32 s73, s2, 15
    s_lshl_b32 s73, s73, 10
    s_add_u32 s73, s73, {WS_FKV}
    buffer_store_dword v17, v16, {WS}, s72 offen sc1
    """) + [I(f"buffer_store_dwordx4 v[20:23], v18, {WS}, s73 offen sc1", tag="RST")]
def lane0_wave0(v):
    return L(f"""
    v_or_b32 v{v}, s{sWAVE}, v0
    v_min_u32 v{v}, 1, v{v}
    v_lshlrev_b32 v{v}, 29, v{v}
    """)
def bg_r_signal():
    return lane0_wave0(16) + L("v_mov_b32 v17, 1") + [WAITV("RST"), I(f"buffer_atomic_add v17, v16, s[{S_DBG}:{S_DBG+3}], 0 offen sc1")]
def bg_wo_dma():
    pre = L(f"""
    v_lshrrev_b32 v28, 5, v0
    v_mul_u32_u24 v28, 896, v28
    v_and_b32 v29, 31, v0
    v_lshl_add_u32 v28, v29, 4, v28
    v_mov_b32 v30, {OOB}
    v_cmp_gt_u32 vcc, 28, v29
    s_lshr_b32 s64, s{sJ}, 1
    s_lshl_b32 s64, s64, 5
    v_cndmask_b32 v28, v30, v28, vcc
    s_lshl_b32 s72, s{sH}, 8
    s_add_u32 s64, s64, s72
    s_lshl_b32 s72, s{sWAVE}, 3
    s_add_u32 s64, s64, s72
    s_mul_i32 s64, s64, 896
    s_and_b32 s72, s{sJ}, 1
    s_mul_i32 s72, s72, 448
    s_add_u32 s67, s64, s72
    v_add_u32 v29, {2*896 - 1024}, v28
    v_add_u32 v30, {2*(2*896 - 1024)}, v28
    v_add_u32 v31, {3*(2*896 - 1024)}, v28
    """)
    un = [I("s_add_u32 m0, s23, 131072")] + [I(f"buffer_load_dwordx4 v{28+j}, s[60:63], s67 offen offset:{1024*j} nt lds", tag="WO") for j in range(4)] + [I("s_nop 0")]
    return pre, un
def bg_wo_finish():
    out = wo_setup()[:-2] + L(f"""
    s_cmp_lt_u32 s{sWAVE}, 2
    s_cselect_b32 s75, 0, {OOB}
    """) + wo_reads()
    st = [I(f"buffer_store_dwordx4 a[{192+4*n}:{195+4*n}], v{24 if n == 3 else 7}, {WS}, s{76+n} offen sc1", tag="KVST") for n in range(4)]
    return out, [I('v_or_b32 v24, s75, v7')] + st
def c_touch_setup():
    return L(f"""
    s_lshl_b32 s64, s2, 2
    s_add_u32 s64, s64, s{sWAVE}
    s_lshl_b32 s64, s64, 12
    v_lshrrev_b32 v28, 2, v0
    v_and_b32 v29, 3, v0
    v_lshlrev_b32 v29, 7, v29
    v_lshl_add_u32 v28, v28, 11, v29
    v_add_u32 v24, s64, v28
    v_and_b32 v28, 56, v0
    v_lshl_add_u32 v24, v28, 24, v24
    """)
def w_touch_setup(t0, t1):
    return L(f"""
    s_and_b32 s64, s{sJ}, 7
    s_lshl_b32 s64, s64, 2
    s_add_u32 s64, s64, s{sWAVE}
    s_lshl_b32 s64, s64, 14
    v_lshrrev_b32 v{t0}, 2, v0
    v_and_b32 v{t1}, 3, v0
    v_lshlrev_b32 v{t1}, 7, v{t1}
    v_lshl_add_u32 v{t0}, v{t0}, 13, v{t1}
    v_add_u32 v{t1}, s64, v{t0}
    v_and_b32 v{t0}, 56, v0
    v_lshl_add_u32 v{t0}, v{t0}, 24, v{t1}
    v_accvgpr_write_b32 a241, v{t0}
    """)
def w_touch(sw, t):
    return [I(f"s_mov_b32 s65, {t * 64 * 8192}"), I("v_accvgpr_read_b32 v26, a241"), touch(26, sw, "s65")]
def c_touch(sc, quarter):
    return [touch(24, sc, 0, quarter * 512, nt=False)]


def z_store():
    return L(f"""
    s_lshl_b32 s64, s{sJ}, 4
    s_add_u32 s64, s64, s{sH}
    s_lshl_b32 s64, s64, 2
    s_add_u32 s64, s64, s{sWAVE}
    s_cmp_lt_u32 s64, {NZERO}
    s_cselect_b32 s39, 0, {OOB}
    s_min_u32 s64, s64, {NZERO}
    s_lshl_b32 s38, s64, 2
    s_max_u32 s67, s64, 8
    s_sub_u32 s67, s67, 8
    s_mul_i32 s67, s67, {FSTR - 1024}
    s_lshl_b32 s64, s64, 10
    s_add_u32 s64, s64, s67
    s_add_u32 s73, s64, {WS_KEY}
    v_or_b32 v64, s39, v7
    v_mov_b32 v68, 0
    v_mov_b32 v69, 0
    v_mov_b32 v70, 0
    v_mov_b32 v71, 0
    """) + [I(f"buffer_store_dwordx4 v[68:71], v64, {WS}, s73 offen offset:{1024 * n} sc1", tag="ZST") for n in range(3)]
def z_signal():
    return L(f"""
    v_min_u32 v16, 1, v0
    v_lshlrev_b32 v16, 29, v16
    v_or_b32 v16, s39, v16
    v_mov_b32 v17, 1
    """) + [WAITV("ZST"), I(f"buffer_store_dword v17, v16, s[{S_DBG}:{S_DBG+3}], s38 offen offset:64 sc1")]
def z_load():
    return L(f"""
    v_min_u32 v16, {NZERO - 1}, v0
    v_lshlrev_b32 v16, 2, v16
    buffer_load_dword v17, v16, s[{S_DBG}:{S_DBG+3}], 0 offen offset:64 sc1
    """)
def z_check(tag):
    return L(f"""
    v_cmp_ne_u32 vcc, 1, v17
    s_nop 0
    s_cbranch_vccnz L_zs{tag}
    L_zr{tag}:
    """)
def spin_stub(label, ret, load, vt, sc=64, cmp_="v_cmp_ne_u32 vcc, 1, v{vt}"):
    return L(f"""
    {label}:
    s_mov_b32 s{sc}, {SPIN_MAX}
    {label}_l:
    s_sleep 2
    {load}
    s_sub_u32 s{sc}, s{sc}, 1
    s_cbranch_scc1 {label}_x
    s_waitcnt vmcnt(0)
    {cmp_.format(vt=vt)}
    s_cbranch_vccnz {label}_l
    {label}_x:
    s_waitcnt vmcnt(0)
    s_branch {ret}
    """)
def z_stub(tag):
    return spin_stub(f"L_zs{tag}", f"L_zr{tag}", f"buffer_load_dword v17, v16, s[{S_DBG}:{S_DBG+3}], 0 offen offset:64 sc1", 17)
def rg_store():
    return L(f"""
    v_and_b32 v20, 31, v0
    v_lshlrev_b32 v20, 2, v20
    v_add_u32 v21, {LDS_R}, v20
    ds_read_b32 v19, v21
    ds_read_b32 v21, v21 offset:32
    s_cmp_eq_u32 s{sWAVE}, 0
    s_cselect_b32 s64, 0, {OOB}
    v_mov_b32 v22, {OOB}
    v_or_b32 v20, s64, v20
    v_cmp_gt_u32 vcc, 8, v0
    s_lshl_b32 s72, s2, 6
    s_add_u32 s72, s72, {WS_RG}
    v_cndmask_b32 v18, v22, v20, vcc
    v_cmp_gt_u32 vcc, 16, v0
    s_nop 0
    s_nop 0
    v_cndmask_b32 v20, v22, v20, vcc
    """) + [I(f"buffer_store_dword v21, v20, {WS}, s72 offen sc1", tag="RST")]
def key_store():
    return L(f"""
    s_lshl_b32 s72, s2, 5
    s_add_u32 s72, s72, {WS_KEY}
    """) + [WAITV("RST"), I(f"buffer_store_dword v19, v18, {WS}, s72 offen sc1")]
def lanes8(v):
    return f"v_and_b32 v28, 56, v0\nv_lshl_add_u32 v{v}, v28, 24, v{v}"
def wo_touch():
    pre = L(f"""
    s_lshr_b32 s64, s{sJ}, 1
    s_lshl_b32 s64, s64, 5
    s_lshl_b32 s72, s{sH}, 8
    s_add_u32 s64, s64, s72
    s_lshl_b32 s72, s{sWAVE}, 3
    s_add_u32 s64, s64, s72
    s_mul_i32 s64, s64, 896
    s_and_b32 s72, s{sJ}, 1
    s_mul_i32 s72, s72, 384
    s_add_u32 s64, s64, s72
    v_bfe_u32 v28, v0, 2, 2
    v_mul_u32_u24 v28, 896, v28
    v_and_b32 v29, 3, v0
    v_lshl_add_u32 v28, v29, 7, v28
    v_add_u32 v23, s64, v28
    v_and_b32 v28, 48, v0
    v_lshl_add_u32 v23, v28, 24, v23
    """)
    return pre, [[touch(23, 60, 0, n * 3584)] for n in range(2)]
def q_touch2(swq):
    pre = L(f"""
    s_lshl_b32 s64, s{sJ}, 2
    s_add_u32 s64, s64, s{sWAVE}
    s_mul_i32 s64, s64, {7 * 8192}
    v_bfe_u32 v28, v0, 2, 2
    v_and_b32 v29, 3, v0
    v_lshlrev_b32 v29, 7, v29
    v_lshl_add_u32 v28, v28, 13, v29
    v_add_u32 v23, s64, v28
    v_and_b32 v28, 48, v0
    v_lshl_add_u32 v23, v28, 24, v23
    """)
    return pre, [[touch(23, swq, 0), I(f"v_add_u32 v23, {4 * 8192}, v23")], [touch(23, swq, 0)]]
def h_touch2():
    pre = L(f"""
    s_lshr_b32 s64, s2, 3
    s_lshl_b32 s64, s64, 2
    s_add_u32 s64, s64, s{sWAVE}
    s_cmp_lt_u32 s64, 64
    s_cselect_b32 s72, s80, s82
    s_cselect_b32 s73, s81, s83
    {srd(60, 72, 448*3584)}
    {srd(68, 84, 1792*896)}
    s_and_b32 s72, s64, 63
    s_mul_i32 s72, s72, {7 * 3584}
    s_and_b32 s73, s{sH}, 7
    s_mul_i32 s74, s73, 448
    s_add_u32 s72, s72, s74
    s_and_b32 s72, s72, 0xffffff80
    v_bfe_u32 v28, v0, 2, 2
    v_mul_u32_u24 v28, 3584, v28
    v_and_b32 v29, 3, v0
    v_lshl_add_u32 v28, v29, 7, v28
    v_add_u32 v21, s72, v28
    v_and_b32 v28, 48, v0
    v_lshl_add_u32 v21, v28, 24, v21
    s_mul_i32 s73, s73, {224 * 896}
    s_mul_i32 s64, s64, 1664
    s_add_u32 s64, s64, s73
    v_lshl_add_u32 v22, v0, 7, s64
    v_lshl_add_u32 v22, v28, 24, v22
    """)
    return pre, [[touch(21, 60, 0), I(f"v_add_u32 v21, {4 * 3584}, v21")], [touch(21, 60, 0)], [touch(22, 68, 0)]]

def x_touch():
    pre = L(f"""
    s_xor_b32 s64, s2, 1
    s_lshl_b32 s64, s64, 2
    s_add_u32 s64, s64, s{sWAVE}
    s_mul_i32 s64, s64, 1792
    v_lshl_add_u32 v23, v0, 7, s64
    v_mov_b32 v28, {OOB}
    v_cmp_gt_u32 vcc, 14, v0
    s_nop 0
    s_nop 0
    v_cndmask_b32 v23, v28, v23, vcc
    """)
    return pre, [[touch(23, 56, 0, nt=False)]]

def x_touch2():
    pre = L(f"""
    s_lshl_b32 s64, s{sJ}, 1
    s_lshr_b32 s72, s{sH}, 3
    s_add_u32 s64, s64, s72
    s_lshl_b32 s64, s64, 2
    s_add_u32 s64, s64, s{sWAVE}
    s_mul_i32 s64, s64, 14336
    v_lshl_add_u32 v25, v0, 7, s64
    v_mov_b32 v28, {OOB}
    v_cmp_gt_u32 vcc, 28, v0
    s_nop 0
    s_nop 0
    v_cndmask_b32 v25, v28, v25, vcc
    """)
    return pre, [[touch(25, 56, 0, nt=False), I("v_add_u32 v25, 3584, v25")] for n in range(4)]
def flag_store(addr_sreg, va, vt, tag=None):
    return I(f"buffer_store_dword v{vt}, v{va}, {WS}, s{addr_sreg} offen sc1", tag=tag)

def q_touch3(swq):
    pre = L(f"""
    s_and_b32 s64, s{sJ}, 7
    s_lshl_b32 s64, s64, 2
    s_add_u32 s64, s64, s{sWAVE}
    s_mul_i32 s64, s64, {14 * 8192}
    v_bfe_u32 v28, v0, 2, 2
    v_and_b32 v29, 3, v0
    v_lshlrev_b32 v29, 7, v29
    v_lshl_add_u32 v28, v28, 13, v29
    v_add_u32 v23, s64, v28
    v_and_b32 v28, 48, v0
    v_lshl_add_u32 v23, v28, 24, v23
    """)
    return pre, [[touch(23, swq, 0, nt=False), I(f"v_add_u32 v23, {(4 if n < 2 else 2) * 8192}, v23")] for n in range(4)]


def wo2_dma():
    pre = L(f"""
    s_and_b32 s64, s{sJ}, 7
    s_lshl_b32 s72, s{sH}, 3
    s_add_u32 s64, s64, s72
    s_lshl_b32 s64, s64, 2
    s_add_u32 s64, s64, s{sWAVE}
    s_mul_i32 s67, s64, 7168
    s_mul_i32 s86, s{sWAVE}, 7168
    s_add_u32 s86, s86, 131072
    """)
    un = lambda o, n: [I(f"s_add_u32 m0, s86, {o}")] + [I(f"buffer_load_dwordx4 v7, s[60:63], s67 offen offset:{1024*j} nt lds", tag="WO") for j in range(n)] + [I("s_add_u32 s67, s67, 4096")]
    return pre, [un(0, 4), un(4096, 3)]
def wo2_reads():
    return L(f"""
    v_lshrrev_b32 v28, 2, v0
    v_mul_u32_u24 v28, 896, v28
    v_and_b32 v29, 3, v0
    v_lshl_add_u32 v28, v29, 4, v28
    s_lshr_b32 s64, s{sWAVE}, 1
    s_lshl_b32 s64, s64, 6
    s_and_b32 s72, s{sWAVE}, 1
    s_lshl_b32 s72, s72, 3
    s_add_u32 s64, s64, s72
    s_add_u32 s64, s64, 131072
    v_add_u32 v28, s64, v28
    s_lshl_b32 s94, s{sH}, 18
    s_and_b32 s64, s{sJ}, 7
    s_lshl_b32 s64, s64, 10
    s_add_u32 s94, s94, s64
    s_lshl_b32 s64, s{sWAVE}, 13
    s_add_u32 s94, s94, s64
    s_add_u32 s94, s94, {WS_WO}
    """) + [I(f"ds_read_b64_tr_b16 a[{192+4*n+2*j}:{193+4*n+2*j}], v28 offset:{n*128 + j*14336}") for n in range(7) for j in range(2)]
WSF = 'sc1'
def wo2_stores():
    return [[I(f"s_add_u32 s3, s94, {n * 32768}"), I(f"buffer_store_dwordx4 a[{192+4*n}:{195+4*n}], v7, {WS}, s3 offen {WSF}", tag="KVST")] for n in range(7)]

def tlb_touch(srds, sel):
    out = L(f"""
    s_lshr_b32 s64, s2, 3
    s_lshl_b32 s64, s64, 2
    s_add_u32 s64, s64, s{sWAVE}
    s_and_b32 s64, s64, {sel}
    s_min_u32 s64, s64, 1
    s_lshl_b32 s64, s64, 29
    v_lshlrev_b32 v28, 21, v0
    v_or_b32 v28, s64, v28
    """)
    return out + [touch(28, r, 0, nt=False) for r in srds]


def r4_loads():
    return L(f"""
    s_lshl_b32 s30, s{sH}, 3
    s_add_u32 s30, s30, s{sJ}
    s_lshl_b32 s64, s30, 2
    s_add_u32 s64, s64, s{sWAVE}
    s_mul_i32 s72, s64, 3584
    v_mov_b32 v32, {OOB}
    v_cmp_gt_u32 vcc, 56, v0
    s_lshl_b32 s67, s64, 2
    s_nop 0
    v_cndmask_b32 v32, v32, v7, vcc
    """) + [I(f"buffer_load_dwordx4 v[{40+4*r}:{43+4*r}], v32, s[56:59], s72 offen offset:{896*r}") for r in range(4)] + L("""
    buffer_load_dwordx4 v[56:59], v32, s[60:63], 0 offen
    buffer_load_dwordx4 v[60:63], v32, s[68:71], 0 offen
    """)
def r4_compute():
    out = [I(f"v_mov_b32 v{72+r}, 0") for r in range(8)]
    for w in range(4):
        for m in range(2):
            for r in range(4): out.append(I(f"v_dot2c_f32_bf16 v{72+4*m+r}, v{40+4*r+w}, v{56+4*m+w}"))
    prs = [(72, 74), (73, 75), (76, 78), (77, 79)]
    out += [I(f"v_permlane32_swap_b32 v{a}, v{b}") for a, b in prs] + [I(f"v_add_f32 v{a}, v{a}, v{b}") for a, b in prs]
    out += L("v_lshrrev_b32 v80, 4, v0\nv_permlane16_swap_b32 v72, v73\nv_permlane16_swap_b32 v76, v77\nv_add_f32 v72, v72, v73\nv_add_f32 v76, v76, v77\nv_add_u32 v81, s67, v80")
    for sh in ("row_ror:8", "row_ror:4", "row_ror:2", "row_ror:1"):
        out += L(f"v_add_f32 v72, v72, v72 {sh} row_mask:0xf bank_mask:0xf\nv_add_f32 v76, v76, v76 {sh} row_mask:0xf bank_mask:0xf")
    out += L(f"""
    v_ashrrev_i32 v82, 31, v72
    v_or_b32 v82, 0x80000000, v82
    v_xor_b32 v82, v82, v72
    v_and_b32 v82, 0xfffff800, v82
    v_sub_u32 v81, 2047, v81
    v_or_b32 v82, v82, v81
    v_max_u32 v82, 1, v82
    """) + sigmoid(76, 77) + L(f"""
    s_lshl_b32 s72, s{sWAVE}, 4
    s_add_u32 s72, s72, {LDS_R}
    v_lshl_add_u32 v80, v80, 2, s72
    ds_write_b32 v80, v82
    ds_write_b32 v80, v72 offset:64
    ds_write_b32 v80, v76 offset:128
    """)
    return out
def rg4_store():
    return L(f"""
    v_and_b32 v20, 31, v0
    v_lshlrev_b32 v20, 2, v20
    v_add_u32 v21, {LDS_R}, v20
    ds_read_b32 v19, v21
    ds_read_b32 v21, v21 offset:64
    s_min_u32 s64, s{sWAVE}, 1
    s_lshl_b32 s64, s64, 29
    v_and_b32 v22, 32, v0
    v_lshl_or_b32 v20, v22, 24, v20
    v_or_b32 v20, s64, v20
    v_and_b32 v22, 16, v0
    v_lshl_or_b32 v18, v22, 25, v20
    s_lshl_b32 s72, s30, 7
    s_add_u32 s72, s72, {WS_RG}
    """) + [6, I(f"buffer_store_dword v21, v20, {WS}, s72 offen sc1", tag="RST")]
def key4_store():
    return L(f"""
    s_lshl_b32 s72, s30, 6
    s_add_u32 s72, s72, {WS_KEY}
    """) + [WAITV("RST"), I(f"buffer_store_dword v19, v18, {WS}, s72 offen sc1")]


def x_touch3(nl):
    pre = L(f"""
    s_lshl_b32 s64, s{sJ}, 1
    s_lshr_b32 s72, s{sH}, 3
    s_add_u32 s64, s64, s72
    s_lshl_b32 s64, s64, 2
    s_add_u32 s64, s64, s{sWAVE}
    s_mul_i32 s64, s64, 14336
    v_lshl_add_u32 v26, v0, 7, s64
    v_mov_b32 v27, {OOB}
    v_cmp_gt_u32 vcc, {nl}, v0
    s_nop 0
    s_nop 0
    v_cndmask_b32 v26, v27, v26, vcc
    v_accvgpr_write_b32 a242, v26
    """)
    return pre, [[I(f"s_mov_b32 s65, {n * nl * 128}"), I("v_accvgpr_read_b32 v26, a242"), touch(26, 56, "s65", nt=False)] for n in range(112 // nl)]
YLV = 1
def y_reduce2(hole):
    out = L(f"""
    L_y1:
    s_lshl_b32 s89, s{sH}, 1
    s_add_u32 s89, s89, s{sWAVE}
    s_cmp_ge_u32 s{sWAVE}, 2
    s_cselect_b32 s89, 28, s89
    s_cmp_ge_u32 s89, 28
    s_cbranch_scc1 L_y1r
    v_lshrrev_b32 v50, 4, v7
    v_lshrrev_b32 v51, 3, v50
    v_mul_u32_u24 v51, {FSTR}, v51
    v_and_b32 v52, 7, v50
    v_lshl_add_u32 v51, v52, 7, v51
    s_mov_b32 s90, {WS_FL}
    s_mov_b32 s88, {WS_FL + 8 * FSTR}
    s_mov_b32 s91, {SPIN_MAX}
    L_yp:
    buffer_load_dword v52, v51, {WS}, s90 offen sc1
    buffer_load_dword v53, v51, {WS}, s88 offen sc1
    s_waitcnt vmcnt(0)
    v_min_u32 v52, v52, v53
    v_cmp_gt_u32 vcc, {YLV}, v52
    s_sub_u32 s91, s91, 1
    s_cbranch_scc1 L_ypx
    s_cbranch_vccnz L_yp
    L_ypx:
    s_cmp_lt_u32 s89, 14
    s_cselect_b32 s90, 8, 12
    s_add_u32 s90, s90, {WS_SEL}
    buffer_load_dword v53, off, {WS}, s90 sc1
    v_lshrrev_b32 v51, 3, v50
    v_mul_u32_u24 v51, 3584, v51
    v_and_b32 v52, 7, v50
    v_lshl_add_u32 v51, v52, 4, v51
    s_lshl_b32 s88, s89, 7
    s_add_u32 s90, s88, {WS_YF}
    s_add_u32 s88, s88, {WS_Y}
    """)
    for n in range(14):
        out += L(f"buffer_load_dwordx4 v[{hole(n)}:{hole(n)+3}], v51, {WS}, s88 offen sc1\ns_add_u32 s88, s88, {8 * 3584}")
    out += L("s_branch L_y1r\nL_y2:\ns_cmp_ge_u32 s89, 28\ns_cbranch_scc1 L_y2r\ns_waitcnt vmcnt(24)")
    acc = [hole(0) + e for e in range(4)]; t = [hole(1) + e for e in range(4)]
    for n in range(1, 14): out += [I(f"v_add_f32 v{a}, v{hole(n) + e}, v{a}") for e, a in enumerate(acc)]
    out += [I(f"v_add_f32 v{a}, v{a}, v{a} row_ror:8 row_mask:0xf bank_mask:0xf") for a in acc]
    for sw in ("v_permlane16_swap_b32", "v_permlane32_swap_b32"):
        out += [I(f"v_mov_b32 v{x}, v{a}") for a, x in zip(acc, t)]
        out += [I(f"{sw} v{x}, v{a}") for a, x in zip(acc, t)]
        out += [I(f"v_add_f32 v{a}, v{x}, v{a}") for a, x in zip(acc, t)]
    for rep in range(2):
        for p in (acc[0], acc[2]):
            out += L(f"v_cvt_pk_bf16_f32 v51, v{p}, v{p+1}\nv_lshlrev_b32 v{p}, 16, v51\nv_and_b32 v{p+1}, 0xffff0000, v51")
        if rep == 0: out += [I(f"v_mul_f32 v{a}, v53, v{a}") for a in acc]
    out += L(f"""
    s_mov_b64 exec, 0xff
    buffer_store_dwordx4 v[{acc[0]}:{acc[3]}], v7, {WS}, s90 offen sc1
    s_mov_b64 exec, -1
    s_branch L_y2r
    L_y3:
    s_cmp_ge_u32 s89, 28
    s_cbranch_scc1 L_y3r
    v_mov_b32 v52, 1
    s_lshl_b32 s89, s89, 2
    s_add_u32 s89, s89, {WS_FH + 512}
    s_mov_b64 exec, 1
    s_waitcnt vmcnt(5)
    buffer_store_dword v52, off, {WS}, s89 sc1
    s_mov_b64 exec, -1
    s_branch L_y3r
    """)
    return out

def wo_touch3():
    return L(f"""
    s_load_dwordx2 s[68:69], s[0:1], {A_WO}
    s_lshl_b32 s72, s{sH}, 3
    s_add_u32 s72, s72, s{sJ}
    s_lshl_b32 s72, s72, 2
    s_add_u32 s72, s72, s{sWAVE}
    s_mul_i32 s72, s72, 7168
    v_min_u32 v28, 55, v0
    v_lshlrev_b32 v28, 7, v28
    s_mov_b32 s70, {4096 * 896}
    """) + [24, I("s_and_b32 s69, s69, 0xffff"), touch(28, 68, "s72", nt=False)]
def wo_events(sEV, srdreg, nt):
    out = L(f"""
    L_ev:
    s_sub_u32 s{sEV}, s{sEV}, 1
    s_cmp_eq_u32 s{sEV}, 0
    s_cbranch_scc1 L_ev1
    s_lshl_b32 s3, s{sH}, 3
    s_add_u32 s3, s3, s{sJ}
    s_lshl_b32 s3, s3, 2
    s_add_u32 s3, s3, s{sWAVE}
    s_mul_i32 s3, s3, 7168
    s_mul_i32 s30, s{sWAVE}, 7168
    s_add_u32 m0, s30, 131072
    s_nop 0
    """)
    d = lambda j: I(f"buffer_load_dwordx4 v7, s[{srdreg}:{srdreg+3}], s3 offen offset:{1024*j} {nt} lds")
    out += [d(j) for j in range(4)] + L("s_add_u32 m0, s30, 135168\ns_add_u32 s3, s3, 4096") + [d(j) for j in range(3)] + L(f"""
    s_branch L_evr
    L_ev1:
    v_lshrrev_b32 v10, 6, v7
    v_mul_u32_u24 v10, 896, v10
    v_and_b32 v11, 48, v7
    s_lshr_b32 s3, s{sWAVE}, 1
    s_lshl_b32 s3, s3, 6
    s_and_b32 s30, s{sWAVE}, 1
    s_lshl_b32 s30, s30, 3
    s_add_u32 s3, s3, s30
    s_add_u32 s3, s3, 131072
    v_add3_u32 v10, v10, v11, s3
    """) + [I(f"ds_read_b64_tr_b16 a[{196+4*n+2*j}:{197+4*n+2*j}], v10 offset:{n*128 + j*14336}") for n in range(7) for j in range(2)] + L(f"""
    s_lshl_b32 s3, s{sH}, 18
    s_lshl_b32 s30, s{sJ}, 10
    s_add_u32 s3, s3, s30
    s_lshl_b32 s30, s{sWAVE}, 13
    s_add_u32 s3, s3, s30
    s_add_u32 s3, s3, {WS_WO}
    s_waitcnt lgkmcnt(0)
    """)
    for n in range(7): out += L(f"buffer_store_dwordx4 a[{196+4*n}:{199+4*n}], v7, {WS}, s3 offen sc1\ns_add_u32 s3, s3, 32768")
    return out + L("s_branch L_evr")

def wo4(srdreg, nt):
    pre = L(f"""
    s_and_b32 s29, s{sJ}, 7
    s_lshl_b32 s34, s29, 10
    s_lshl3_add_u32 s30, s{sH}, s29
    s_lshl2_add_u32 s30, s30, s{sWAVE}
    s_mul_i32 s30, s30, 7168
    s_lshl_b32 s29, s{sH}, 18
    s_add_u32 s34, s34, s29
    s_lshl_b32 s29, s{sWAVE}, 13
    s_add_u32 s34, s34, s29
    s_add_u32 s34, s34, {WS_WO}
    s_mul_i32 s29, s{sWAVE}, 7168
    """)
    d = lambda j: I(f"buffer_load_dwordx4 v7, s[{srdreg}:{srdreg+3}], s30 offen offset:{1024*j} {nt} lds", tag="WO")
    dma = [I("s_add_u32 m0, s29, 131072")] + [d(j) for j in range(4)] + L("s_add_u32 m0, s29, 135168\ns_add_u32 s30, s30, 4096") + [d(j) for j in range(3)]
    adr = L(f"""
    v_lshrrev_b32 v6, 6, v7
    v_mul_u32_u24 v6, 896, v6
    v_and_b32 v5, 48, v7
    s_lshr_b32 s29, s{sWAVE}, 1
    s_lshl_b32 s29, s29, 6
    s_and_b32 s30, s{sWAVE}, 1
    s_lshl3_add_u32 s29, s30, s29
    s_add_u32 s29, s29, 131072
    v_add3_u32 v5, v6, v5, s29
    """)
    rd = [I(f"ds_read_b64_tr_b16 a[{196+4*n+2*j}:{197+4*n+2*j}], v5 offset:{n*128 + j*14336}") for n in range(7) for j in range(2)]
    st = [[I(f"s_add_u32 s3, s34, {n * 32768}"), I(f"buffer_store_dwordx4 a[{196+4*n}:{199+4*n}], v7, {WS}, s3 offen sc1", tag="WST")] for n in range(7)]
    return pre, dma, adr, rd, st

def wo_touch4(nl):
    pre = L(f"""
    s_and_b32 s64, s{sJ}, 7
    s_lshl3_add_u32 s64, s{sH}, s64
    s_lshl2_add_u32 s64, s64, s{sWAVE}
    s_mul_i32 s64, s64, 7168
    v_lshl_add_u32 v22, v0, 7, s64
    v_mov_b32 v21, {OOB}
    v_cmp_gt_u32 vcc, {nl}, v0
    s_nop 0
    s_nop 0
    v_cndmask_b32 v22, v21, v22, vcc
    """)
    return pre, [[touch(22, 60, 0, nt=False), I(f"v_add_u32 v22, {nl * 128}, v22")] for n in range(56 // nl)]

def wo_consts(aWD, aOB):
    return L(f"""
    v_lshrrev_b32 v26, 4, v0
    v_bfe_u32 v27, v0, 1, 2
    v_xor_b32 v26, v26, v27
    v_lshlrev_b32 v26, 1, v26
    v_and_or_b32 v26, v0, 1, v26
    v_lshlrev_b32 v26, 4, v26
    v_lshrrev_b32 v27, 3, v0
    v_mul_u32_u24 v27, 896, v27
    s_mul_i32 s64, s{sWAVE}, {64 * 896}
    v_add3_u32 v26, v26, v27, s64
    v_accvgpr_write_b32 a{aWD}, v26
    v_bfe_u32 v26, v0, 3, 2
    v_lshlrev_b32 v26, 2, v26
    v_and_or_b32 v26, v0, 3, v26
    v_lshlrev_b32 v26, 3, v26
    v_lshrrev_b32 v27, 2, v0
    v_lshl_or_b32 v26, v27, 7, v26
    v_accvgpr_write_b32 a{aOB}, v26
    """)
```

```python
import sys
from att3 import *
import kvq, side, hw, asmlib, att3, q2, red3
from kvq import K, seq_fit
from q2 import VQ, place_vm, place_reads
opt = dict(stamp="0", v="1", thr=str(2.0 ** 40), lo=str(2.0 ** -60), m0="16", fine="0", dbgst="0", dbgl="0,3,6,7,14,18,21",
           cw="1", w1="0", q0="1", ramp="00", eo="0", pc="0", sw="1", r3="1", lagv="16", lag="6",
           pcq="4", tQ="9", tW="5", tH="7", tc="6,13", tg="113", xs_="20", odh="45", ne="8", jy="6", tl="1",
           k15="8", kst="2224a56", kf="0", v15="4", vst="2204444", vf="2", nq="8", w0l="24", ext="0", bop="1", bopk="2.0", bkk="8.0", bkv="1", bq="0", tB="13", bsp="5", l4="44", wn="2221",
           ntw="nt", ntt="", osf="sc1", stf="sc1", dfl="sc1", hot="00", npk="16")
for a in sys.argv[1:]:
    k, v = a.split("="); assert k in opt, k; opt[k] = v
O = lambda k: int(opt[k])
STAMP = opt["stamp"] == "1"
kvq.HOT = opt["hot"]; kvq.NTW = opt["ntw"]; side.NTT = opt["ntt"]; kvq.STF = opt["stf"]; att3.DFL = opt["dfl"]; side.OSF = opt["osf"]
side.EPAR = 2; side.NE = O("ne"); side.SELLV = 1; side.YLV = 4; hw.MAP = "0"
side.ROWMAP = "s_lshr_b32 s73, s72, 1\ns_sub_u32 s65, 7, s73\ns_bitcmp1_b32 s72, 0\ns_cselect_b32 s73, s65, s73\ns_lshl_b32 s73, s73, 4"
sH, sJ, sSTK, sKV, sFL = 41, 42, 44, 45, 45
XS = O('xs_'); assert XS in (18, 20)
JC = XS // 2
FSH = 7
aST = 250
NM0 = hex(f2u(-float(opt['m0'])))
BOP = O('bop')
NEVER = 0x7fff
EXT = O('ext')
SW = O('sw')
def stamp(t=10):
    if not STAMP: return []
    return L(f"""s_memrealtime s[36:37]
    s_memtime s[98:99]
    v_accvgpr_read_b32 v{t}, a{aST}
    v_accvgpr_read_b32 v{t+1}, a{aST+1}
    s_mov_b32 s100, m0
    s_mov_b32 m0, s{sSTK}
    s_waitcnt lgkmcnt(0)
    v_writelane_b32 v{t}, s98, m0
    v_writelane_b32 v{t+1}, s36, m0
    s_add_u32 s{sSTK}, s{sSTK}, 1
    s_mov_b32 m0, s100
    v_accvgpr_write_b32 a{aST}, v{t}
    v_accvgpr_write_b32 a{aST+1}, v{t+1}""")
fst = lambda n, t=10: stamp(t) if opt['fine'] == str(n) else []

F1_LOAD = f"buffer_load_dword v24, v13, {WSR}, s46 offen sc1"
F2_LOAD = f"buffer_load_dword v24, v{A.vFL}, {WSR}, s46 offen sc1"
FL_LOAD = f"buffer_load_dword v{A.vRL + 1}, v{A.vFL}, {WSR}, s46 offen sc1"
FP_LOAD = f"buffer_load_dword v{A.vRL}, off, {WSR}, s47 sc1"
ZZ = lambda: [I(f"v_mov_b32 v{A.vP1 + e}, 0") for e in range(4)]
SELM = lambda: L(f"""
    v_mov_b32 v16, 0x3f80
    v_lshrrev_b32 v17, 8, v{A.vL16}
    v_bfe_u32 v18, v{A.vL16}, 6, 2
    v_and_b32 v19, 16, v{A.vL16}
    v_lshlrev_b32 v19, v19, v16
    v_cmp_eq_u32 vcc, v17, v18
    v_and_b32 v16, 32, v{A.vL16}
    v_accvgpr_write_b32 a244, 0
    v_accvgpr_write_b32 a245, 0
    v_cndmask_b32 v19, 0, v19, vcc
    v_cmp_eq_u32 vcc, 0, v16
    v_accvgpr_write_b32 a248, 0
    v_accvgpr_write_b32 a249, 0
    v_cndmask_b32 v17, 0, v19, vcc
    v_sub_u32 v18, v19, v17
    v_accvgpr_write_b32 a246, v17
    v_accvgpr_write_b32 a247, v18
    """)

def first_qk(cv_late):
    if not cv_late:
        g = Gaps(qk_mfmas(0, "nm")); weave_reads(g, 3, 1, [("T", 1)])
        blocks = [(0, 0), (0, 1), (1, 0), (1, 1)]; rdy = [11, 19, 27, 35]
    else:
        m = lambda kb, qb, ks, c=None: mfma(R("v", Sreg(0, kb, qb), 4), R("a", Freg(kb, ks), 4), R("a", Qreg(qb, ks), 4), c or R("v", Sreg(0, kb, qb), 4))
        ms = [m(kb, qb, ks, R("v", A.vNM + 4 * qb, 4) if n == 0 else None) for kb in range(2) for qb in range(2) for n, ks in enumerate(range(6) if qb == 0 else range(5, -1, -1))]
        ms += [m(0, 0, 6), m(0, 1, 6), m(1, 1, 6), m(1, 0, 6), m(0, 0, 7), m(1, 0, 7), m(0, 1, 7), m(1, 1, 7)]
        g = Gaps(ms + qk_mfmas(0, "nm")[32:])
        for f, k in enumerate([0, 1, 2, 4, 5, 6, 8, 9]): g.put(k, rd_frag(3, 1, f, Freg(1, f)))
        g.put_s(11, NEED(R("a", Freg(1, 0), 24))); g.put_s(22, NEED(R("a", Freg(1, 6), 8)))
        for f, k in enumerate([13, 14, 16, 17, 19, 20, 27, 31]): g.put(k, rd_frag(3, 2, f, Freg(2, f)))
        for f, k in enumerate([25, 28, 29, 33, 34, 36, 37, 39]): g.put(k, rd_frag(3, 3, f, Freg(3, f)))
        g.put_s(31, NEED(R("a", Freg(2, 0), 24))); g.put_s(37, NEED(R("a", Freg(2, 6), 8)))
        g.put_s(46, WAITV([("T", 1)], lgkm0=True)); g.put_s(47, I("s_barrier"))
        for f, r in enumerate(rd_batch(1, 0)): g.put(48 + RPAT[0][f], r)
        g.put_s(62, NEED(R("a", Freg(0, 0), 32)))
        blocks = [(0, 0), (1, 0), (0, 1), (1, 1)]; rdy = [32, 33, 34, 35]
    sm = SM(sm_groups(0, blocks + blocks_of(1), (0, 1)), ready={n: rdy[n >> 1] for n in range(8)})
    return g, sm

def ramp():
    nw, nc = int(opt['ramp'][0]), int(opt['ramp'][1])
    if not nw: return [], []
    pre = L(f"""
    v_lshrrev_b32 v28, 2, v0
    v_add_u32 v28, 1, v28
    v_lshrrev_b32 v29, 1, v28
    v_and_b32 v28, 1, v28
    v_lshlrev_b32 v28, 7, v28
    v_lshl_or_b32 v28, v29, 19, v28
    v_and_b32 v29, 1, v0
    v_lshl_or_b32 v28, v29, 8, v28
    v_bfe_u32 v29, v0, 1, 1
    v_lshl_or_b32 v28, v29, 13, v28
    s_lshl_b32 s64, s{K.sWAVE}, 14
    s_add_u32 s64, s64, s75
    v_cmp_gt_u32 vcc, {4 * nw}, v0
    v_add_u32 v28, s64, v28
    v_mov_b32 v31, {side.OOB}
    v_cndmask_b32 v16, v31, v28, vcc
    v_lshrrev_b32 v28, 3, v0
    v_add_u32 v28, 1, v28
    v_lshrrev_b32 v29, 1, v28
    v_and_b32 v28, 1, v28
    v_lshlrev_b32 v28, 21, v28
    v_lshl_or_b32 v28, v29, 7, v28
    v_and_b32 v29, 7, v0
    v_lshl_or_b32 v28, v29, 11, v28
    s_lshr_b32 s64, s{sH}, 3
    s_lshl1_add_u32 s64, s{sKV}, s64
    s_lshl_b32 s64, s64, 5
    s_add_u32 s64, s64, s{K.sWAVE}
    s_lshl_b32 s64, s64, 14
    v_cmp_gt_u32 vcc, {8 * nc}, v0
    v_add_u32 v28, s64, v28
    v_cndmask_b32 v17, v31, v28, vcc
    """)
    return pre, [I(f"buffer_load_dword a240, v16, s[{K.S_W}:{K.S_W + 3}], 0 offen {opt['ntw']}", tag="TOUCH"), side.touch(17, K.S_C, 0, nt=False)]

def build_front(c):
    c.block("entry", f"""
    s_cmp_lt_u32 s2, 256
    s_cbranch_scc1 L_go
    s_endpgm
    L_go:
    {'s_memrealtime s[36:37]' + chr(10) + 's_memtime s[98:99]' if STAMP else ''}
    s_load_dwordx8 s[80:87], s[0:1], {A_X}
    s_load_dwordx4 s[88:91], s[0:1], {A_WUV}
    s_load_dwordx2 s[92:93], s[0:1], {A_WR}
    s_load_dwordx2 s[30:31], s[0:1], {A_GW}
    s_load_dwordx4 s[4:7], s[0:1], {A_DBG}
    v_lshrrev_b32 v24, 6, v0
    v_and_b32 v0, 63, v0
    v_readfirstlane_b32 s{K.sWAVE}, v24
    """, side.code_touch() if opt['pc'] == '0' else side.code_touch()[:-1], f"""
    s_and_b32 s{sH}, s2, 7
    s_lshr_b32 s{sJ}, s2, 3
    s_lshr_b32 s64, s{sJ}, 4
    s_lshl_b32 s64, s64, 3
    s_add_u32 s{sH}, s{sH}, s64
    s_and_b32 s{sJ}, s{sJ}, 15
    s_lshr_b32 s{sKV}, s{sJ}, 3
    s_xor_b32 s{sKV}, s{sKV}, {SW}
    s_mov_b32 s{sSTK}, 0
    v_accvgpr_write_b32 a{aST}, 0
    v_accvgpr_write_b32 a{aST+1}, 0
    v_and_b32 v24, 15, v0
    v_lshrrev_b32 v25, 4, v0
    v_lshlrev_b32 v{K.vST}, 4, v0
    s_and_b32 s65, s{K.sWAVE}, 1
    s_lshr_b32 s66, s{K.sWAVE}, 1
    {kvq.addr_wd()}
    {kvq.addr_cd()}
    s_mov_b32 s{K.sWOFF}, 0
    s_mov_b32 s{K.sCOFF}, 0
    s_lshl_b32 s{K.sM0W}, s{K.sWAVE}, 12
    s_add_u32 s{K.sM0C}, s{K.sM0W}, 65536
    s_lshl_b32 s74, s{sH}, 9
    s_sub_u32 s{K.S_W + 2}, {1024*8192}, s74
    s_mov_b32 s{K.S_W + 3}, 0x20000
    s_and_b32 s75, s{sJ}, 7
    s_lshl_b32 s75, s75, 16
    s_sub_u32 s{K.S_C + 2}, {2048*2048}, s75
    s_mov_b32 s{K.S_C + 3}, 0x20000
    """, ramp()[0], L(kvq.addr_rd()) + side.c_touch_setup() if opt['eo'] == '1' else [], f"""
    s_mov_b32 m0, s{K.sM0W}
    s_cmp_eq_u32 s{sKV}, 0
    s_cselect_b64 s[72:73], s[86:87], s[88:89]
    s_add_u32 s{K.S_W}, s72, s74
    s_addc_u32 s{K.S_W + 1}, s73, 0
    s_and_b32 s{K.S_W + 1}, s{K.S_W + 1}, 0xffff
    """, kvq.unit_w(0)[1:], f"""
    s_add_u32 s{K.S_C}, s82, s75
    s_addc_u32 s{K.S_C + 1}, s83, 0
    s_and_b32 s{K.S_C + 1}, s{K.S_C + 1}, 0xffff
    """, kvq.unit_c(0), ramp()[1], kvq.unit_w(1) if opt['w1'] == '0' else [], stamp(26)[2:], L(kvq.addr_rd()) + side.c_touch_setup() if opt['eo'] == '0' else [],
        side.code_addr(28, 29) + side.code_touch()[-1:] if opt['pc'] == '1' else [], f"""
    {srd(32, 82, 2048*2048)}
    {srd(K.S_X, 80, 2048*896)}
    {srd(60, 92, 896)}
    {srd(68, 30, 896)}
    {srd(K.S_WS, 6, 1 << 28)}
    {srd(K.S_DBG, 4, 256)}
    s_add_u32 s72, s84, s74
    s_addc_u32 s73, s85, 0
    s_sub_u32 s75, {448*8192}, s74
    {srd(K.S_WQ, 72, "s75")}
    s_mov_b32 s{K.sSC}, {hex(f2u(LOG2E_16))}
    s_mov_b32 s{K.sWQOFF}, 0
    s_mul_i32 s{K.sXOFF}, s{sJ}, {128*896}
    s_lshl_b32 s72, s{sKV}, 24
    s_lshl_b32 s73, s{sH}, 20
    s_add_u32 s72, s72, s73
    s_bfe_u32 s64, s{sJ}, 0x20001
    s_lshl_b32 s64, s64, 15
    s_add_u32 s72, s72, s64
    s_lshl_b32 s64, s66, 17
    s_add_u32 s72, s72, s64
    s_and_b32 s67, s{sJ}, 1
    s_cmp_eq_u32 s{sKV}, 0
    s_cselect_b32 s64, 12, 14
    s_cselect_b32 s75, 14, 10
    s_lshl_b32 s67, s67, s75
    s_add_u32 s72, s72, s67
    s_lshl_b32 s64, s65, s64
    s_add_u32 s{K.sOOFF}, s72, s64
    """, side.h_touch_srd(), f"s_load_dwordx2 s[96:97], s[0:1], {A_OUT}", f"s_cmp_lt_u32 s{sJ}, 8\ns_cbranch_scc0 L_kv1")
    pcq, tQ, tH, tW = O("pcq"), O("tQ"), O("tH"), O("tW")
    for vt in (0, 1):
        o = "v" if vt else "k"; pt = vt ^ SW
        frags = [kvq.rd_c(0, 0, 0, 0), kvq.rd_c(0, 0, 0, 1)] + kvq.rd_w_unit(0, 0, 0) + kvq.rd_w_unit(0, 1, 1)
        kvq.BIAS.update(kv="v[20:23]" if O('bkv') else None, q="v[28:31]" if O('bq') else None, rows=None)
        Q0 = opt['q0'] == '1'
        out = side.z_store()[:-3] + side.r4_loads() + side.z_store()[-3:] if vt == 0 else L(srd(60, 90, 4096*896))
        if Q0:
            frags, g0 = q2.tile0(pt)
            cw = kvq.unit_c(1) + kvq.unit_w(2); w1 = kvq.unit_w(1) if opt['w1'] == '1' else []
            if opt['cw'] == '0': out = cw + out; cw = []
            out = out + w1 + [WAITV([("C", 0), ("W", 0)], lgkm0=True), I("s_barrier")] + stamp(26) + frags + cw
            if vt == 0: out += side.r4_compute()
        else:
            out += kvq.unit_w(2) + kvq.unit_c(1) + [WAITV([("W", 1), ("C", 0), ("W", 0)], lgkm0=True), I("s_barrier")] + stamp(26) + frags
            if vt == 0: out += side.r4_compute()
            out += [NEED(R("a", kvq.wfrag(0, 0, 0), 8), R("a", 160, 8))]
        for t in range(15):
            dma = kvq.kv_dma(t)
            if vt == 1 and t == tW:
                pre, uns = side.wo2_dma(); dma[1] = dma[1] + [uns[0]]
            if vt == 1 and t == tW + 1: dma[1] = dma[1] + [uns[1]]
            if vt == 0 and t == tH - 5:
                pre, uns = hw.s1_weights()
            if vt == 0 and tH - 5 <= t <= tH + 1: dma[1] = dma[1] + [uns[t - tH + 5]]
            if vt == 0 and t == tH + 4:
                pre, un = hw.s6_down_dma(); dma[1] = dma[1] + [un]
            g = g0 if (Q0 and t == 0) else kvq.kv_tile(t, pt, dma, first=(t == 0))
            def fit(ins, k, pace=0):
                k, left = seq_fit(g, ins, k, pace); assert not left, (t, len(left)); return k
            def mm(ms, k):
                k |= 1
                for m in ms: g.put(k, m)
                return k
            tch = []
            if pcq and (t + pcq) % 4 == 0 and t + pcq < 16: tch += side.c_touch(32, (t + pcq) // 4)
            if t == 1 and vt == 0: fit(side.z_signal(), 112)
            if t == 2 and vt == 0: assert fit(side.rg4_store(), 4, 1) < 42
            if t == 3: fit(side.z_load(), 50)
            if t == 4:
                k = fit(side.z_check(vt), 112)
                if vt == 0: fit(side.key4_store(), k + 1)
            if vt == 1:
                pre_, tl = side.q_touch3(K.S_WQ)
                if t == tQ: fit(pre_, 60)
                if 0 <= t - tQ < len(tl): tch += tl[t - tQ]
                if t == tW: assert fit(pre, 42) < 80
                if t == tW + 2: g.sc[110][0].tag = g.sc[110][0].tag + ["WO"]
                if t == tW + 3: assert fit(side.wo2_reads(), 2, 2) < 108
                if t == 2: fit(SELM(), 10, 1)
            if vt == 0:
                if t == tH - 5: assert fit(pre, 42) < 90
                if t == tH: fit(hw.s2_keys(), 4)
                if t == tH + 1: assert fit(hw.s3_top2(), 10, 1) < 108
                if t == tH + 2: fit(hw.s4_sel(), 4, 1)
                if t == tH + 3:
                    (r0, m0), (r1, m1) = hw.s5_gemm()
                    k = fit([WAITV("HW")] + r0, 50); k = mm(m0, max(k + 6, 78)); k = fit(r1, k + 1); mm(m1, max(k + 6, 110))
                if t == tH + 4: assert fit(pre, 4) < 44
                if t == tH + 5:
                    s7 = hw.s7_act(); fit(s7, 2, 1)
                    assert all(i.kind != "dsr" or i not in s7 for q in range(100, 128) for i in g.ve[q])
                if t == tH + 6:
                    pre, ms, yadr, yst = hw.s8_down(); link(yadr + yst)
                    k = fit(pre, 2); k = mm(ms, max(k + 2, 46))
            if t == 14: assert fit(kvq.addr_q(), 2) < 46
            if t == 14: fit(L(f"""
                s_mul_i32 s72, s{sH}, {FSTR}
                s_add_u32 s46, s72, {WS_FL}
                s_lshl_b32 s{sFL}, s{sJ}, {FSH}
                s_add_u32 s{sFL}, s{sFL}, s46
                s_sub_u32 s66, 15, s{sJ}
                s_min_u32 s66, s66, s{sJ}
                s_lshl_b32 s47, s66, {FSH}
                s_add_u32 s47, s47, s46
                s_add_u32 s47, s47, {2048 + (0 if vt else 64)}
                s_lshl_b32 s65, s{sH}, 3
                s_add_u32 s65, s65, s66
                s_mul_i32 s{A.sPO}, s65, {PO_STRIDE}
                s_add_u32 s{A.sPO}, s{A.sPO}, {WS_PO}
                s_lshl_b32 s65, s{sJ}, 4
                s_add_u32 s65, s65, s{sH}
                s_mul_i32 s{A.sOP}, s65, {OP_HEAD}
                s_mul_i32 s65, s{A.sWAVE}, {OP_HEAD // 4}
                s_add_u32 s{A.sOP}, s{A.sOP}, s65
                s_add_u32 s{A.sOP}, s{A.sOP}, {WS_OP}
                s_sub_u32 s65, 15, s66
                s_lshl_b32 s65, s65, 16
                s_lshl_b32 s64, s{sH}, 20
                s_add_u32 s{A.sQ}, s64, s65
                s_lshl_b32 s65, s{A.sWAVE}, 14
                s_add_u32 s{A.sQ}, s{A.sQ}, s65
                s_add_u32 s{A.sQ}, s{A.sQ}, {WS_Q}
                s_mov_b32 s{A.sTHR}, {hex(f2u(float(opt['thr'])))}
                s_mov_b32 s{A.sMODE}, 1
                s_sub_u32 s64, s{sJ}, {JC}
                s_and_b32 s{A.sNC}, s64, {side.OOB}
                """), 50)
            tv = 26 if t < O('tB') - 1 else 24
            if str(t) in opt['tc'].split(','): tch += side.code_addr(26, 26) + [side.touch(26, 76, 0, nt=False)]
            fit(tch, O('tg'))
            if O('bkv'):
                if t == 0:
                    vb = VQ()
                    smp = lambda y: [kvq.kacc(y, x)[1] + e for x in range(2) for e in range(4)]
                    est = []
                    for y, r in ((1, 20), (2, 21)):
                        v = smp(y)
                        est.append(L(f"v_max3_f32 v{r}, |v{v[0]}|, |v{v[1]}|, |v{v[2]}|\nv_max3_f32 v{r}, |v{v[3]}|, |v{v[4]}|, v{r}\nv_max3_f32 v{r}, |v{v[5]}|, |v{v[6]}|, v{r}"))
                    k = fit(est[0], 16)
                    k = fit(est[1] + L(f"v_min_f32 v20, v20, v21\nv_mul_f32 v20, {hex(f2u(float(opt['bkk'])))}, v20") + [I(f"v_mov_b32 v{20 + e}, v20") for e in (1, 2, 3)] +
                            L("v_accvgpr_write_b32 a241, v20"), max(k, 24))
                    assert k < 38, k
                if t == O('tB') - 1: fit(L("v_accvgpr_read_b32 v27, a241"), 1)
                for y in range(1, 8):
                    if t == O('tB') - (y < O('bsp')):
                        vb.add([I(f"v_sub_f32 v{kvq.kacc(y, x)[1] + e}, v{kvq.kacc(y, x)[1] + e}, v27") for x in range(8) for e in range(4) if kvq.kv_c0(y, x) != "0"], 128 * t + 16 * y + 20)
                vb.run(g, 128 * t)
                for at, i in vb.placed:
                    q = min(q for q in range(128) if any(i is x for x in g.ve[q]))
                    assert 128 * t + q < at + 128 - 22, (t, at, q)
                assert t < 14 or not vb.q
            out += g.flat()
            if t in (0, 1, 11, 14) or opt['fine'] == '1': out += stamp(tv)
        flat = lambda gs: [i for x in gs for i in x]
        base = f"s_lshl_b32 s{A.sK}, s{sH}, 20\ns_mov_b32 s{A.sCNT}, 0\ns_lshl_b32 s{A.sJ[2][1]}, s{sH}, 18\ns_add_u32 s{A.sJ[2][1]}, s{A.sJ[2][1]}, {WS_WO}\ns_add_u32 s{A.sVn}, s{A.sJ[2][1]}, 65536\n"
        (c1, a1), (c2, a2), (c3, a3) = A.sJ
        jumps = L(base + (f"""
            s_add_u32 s64, s{sJ}, 1
            s_min_u32 s64, s64, {JC}
            s_sub_u32 s{A.sIT}, s64, {2 + EXT}
            s_lshl_b32 s{c3}, s64, 1
            s_sub_u32 s{c2}, s{c3}, 2
            s_lshl_b32 s64, s{sJ}, 16
            s_add_u32 s{a2}, s{A.sK}, s64
            s_sub_u32 s{a1}, {34 * 32768}, s64
            s_add_u32 s{a1}, s{a1}, s{A.sK}
            s_lshl_b32 s64, s{sJ}, 1
            s_sub_u32 s64, 32, s64
            s_cmp_ge_u32 s{sJ}, {JC}
            s_cselect_b32 s{c1}, s64, {NEVER}
            """ if vt else f"""
            s_sub_u32 s{A.sIT}, s{sJ}, 1
            s_mov_b32 s{c2}, {NEVER}
            s_mov_b32 s{a2}, 0
            s_add_u32 s{a1}, s{A.sK}, {XS * 32768}
            s_lshl_b32 s64, s{sJ}, 1
            s_add_u32 s65, s64, 4
            s_add_u32 s64, s64, 2
            s_cmp_le_u32 s{sJ}, {15 - JC}
            s_cselect_b32 s{c1}, s65, {NEVER}
            s_cselect_b32 s{c3}, {34 - XS}, s64
            """) + f"s_mov_b32 s{A.sKP}, 0")
        w0 = L("v_mov_b32 v12, 1") + side.lane0_wave0(15)
        w1_ = L(f"""
            s_mov_b32 s{A.sREQ}, {(0x500 if vt else 0x543) if EXT else (0x4003 if vt else 0x43)}
            {'' if vt else f's_cmp_lt_u32 s{sJ}, 2' + chr(10) + f's_cselect_b32 s{A.sREQ}, {0x504 if EXT else 4}, s{A.sREQ}'}
            s_lshl_b32 s64, s{A.sWAVE}, 14
            s_add_u32 s{A.sPB}, s64, s{A.sPO}
            s_add_u32 s{A.sPB + 1}, s{A.sPB}, 4096
            s_add_u32 s{A.sPB + 2}, s{A.sPB}, 8192
            s_add_u32 s{A.sPB + 3}, s{A.sPB}, 12288
            """)
        w3 = L(f"v_min_u32 v25, 15, v0\nv_lshlrev_b32 v25, {FSH}, v25\nv_{'max' if SW else 'min'}_u32 v13, {(8 if SW else 7) << FSH}, v25")
        w4 = L(f"s_lshl_b32 s{A.sM0}, s{A.sWAVE}, 13") + jumps[:8] + L(F1_LOAD) + jumps[8:]
        w5 = L(f"""
            v_add_u32 v10, s{A.sM0}, v{A.vL16}
            v_add_u32 v11, 0x1000, v10
            v_cmp_eq_u32 vcc, 0, v24
            s_lshl_b32 s64, s{A.sWAVE}, 10
            s_cbranch_vccnz L_f1s{vt}4
            L_f1r{vt}4:
            """) + dma_flat(3, A.sK, 10) + adv_k() + L(f"""
            v_mov_b32 v{A.vFL}, v25
            v_lshrrev_b32 v24, 4, v0
            v_lshlrev_b32 v24, 2, v24
            v_and_b32 v25, 15, v0
            v_sub_u32 v24, v24, v25
            s_add_u32 s64, s64, s{A.sPO}
            s_add_u32 s{A.sPS}, s64, 65536
            s_mov_b32 s{A.sLO}, {hex(f2u(float(opt['lo'])))}
            s_cmp_eq_u32 s{A.sWAVE}, 0
            s_cselect_b32 s{A.sRT}, s{A.sREQ}, 0
            s_lshr_b32 s64, s{K.sWAVE}, 1
            s_lshl_b32 s64, s64, 17
            s_and_b32 s65, s{K.sWAVE}, 1
            s_lshl_b32 s65, s65, 12
            s_add_u32 s64, s64, s65
            v_add_u32 v14, s64, v7
            v_mov_b32 v{A.vNEG}, 0xff800000
            """) + [I(f"v_cmp_lt_i32 s[{A.sTRI[e]}:{A.sTRI[e]+1}], {-e}, v24") for e in range(4)]
        head6 = L(f"""
            {F2_LOAD}
            v_mov_b32 v{A.vF0}, v15
            v_add_u32 v{A.vRD1}, 0x10000, v{A.vL16}
            v_mov_b32 v{A.vDM0}, v10
            v_mov_b32 v{A.vDM1}, v11
            s_mov_b64 s[60:61], s[76:77]
            s_mov_b32 s62, s78
            s_mov_b32 s63, 0x20000
            """) + side.code_addr(0, 10)
        kvq.X6LOW = True; asmlib.VMX = False
        body, left = kvq.kv_to_q(pt, O(o + "15"), [int(x, 16) for x in opt[o + "st"]], O(o + "f"), [side.flag_store(sFL, 15, 12)], lambda: fst(2, 26),
                                 {0: w0, 1: w1_, 2: yadr if vt == 0 else [], 3: w3, 4: w4, 5: w5}, head6, dma_flat(1, A.sK) + adv_k(),
                                 [] if vt else [[i] for i in yst], 16)
        asmlib.VMX = True
        assert len(left) == (8 if vt else 0), len(left)
        st = kvq.Storer(A.sT1, "KV4")
        park = [I(f"v_accvgpr_write_b32 a{128 + 4*n + e}, v{int(r[2:r.index(':')]) + e}") for n, (r, off) in enumerate(left) for e in range(4)]
        later = [st.st(R("a", 128 + 4 * n, 4), off) for n, (r, off) in enumerate(left)]
        xch = ([WAITV([("T", 3)], lgkm0=True), I("s_barrier")] + stamp(26) + rd_batch(3, 0) + q_from_lds() +
               L(f"""v_cmp_eq_u32 vcc, 0, v24
               v_mov_b32 v{A.vX + 7}, {3 if vt else 4 + EXT}
               v_or_b32 v{A.vRL + 1}, s{A.sNC}, v{A.vL16}
               s_cbranch_vccnz L_f1s{vt}5
               L_f1r{vt}5:
               s_mov_b32 s{A.sT1}, s{K.sOOFF}
               s_mov_b32 s{A.sT0}, s94
               s_cmp_eq_u32 s{A.sWAVE}, 0
               s_cselect_b32 s{A.sPT}, {(4 + EXT) * vt}, 0""") + [I(f"v_mov_b32 v{A.vNM + r}, {NM0}") for r in range(8)] + [NEED(R("a", 0, 96))])
        g, sm = first_qk(False)
        g.sc[46][0].tag = g.sc[46][0].tag + ["KVST", "KVM"]
        g.put(48 + 2, side.flag_store(sFL, A.vF0, A.vX + 7))
        nq = O('nq')
        qst = [([I(f"s_add_u32 s3, s{A.sQ}, {(n >> 2) * 4096}")] if n % 4 == 0 or n == nq else []) +
               [I(f"buffer_store_dwordx4 a[{4*n}:{4*n+3}], v{A.vRL + 1}, {WSR}, s3 offen offset:{(n & 3) * 1024} sc1", tag="QST")] for n in range(16)] if vt else []
        place_vm(g, [(dma_flat(2, A.sV), 1, 40)] + ([(flat(qst[:nq]), O('w0l'), 62)] if vt and nq else []))
        vq = VQ(); vq.add([I(f"v_mov_b32 v{r}, 0") for r in (A.vLS, A.vLS + 1)] + park)
        vq.run(g, 0, 0, 14)
        sm.run(g, 8, 64, final=False, upto=8)
        vq.run(g, 0)
        vq.force(g, 63, lambda i: i.op == "v_mov_b32")
        out += body + xch + g.flat() + stamp()
        if vt == 1:
            wo = [[I(f"s_add_u32 s3, s{A.sT0}, {n * 32768}"), I(w[1].text, tag="KV4")] for n, w in enumerate(side.wo2_stores())]
            w_1 = win_qk(0, "L_st8", "L_rt8", groups=qst[nq:], dma=(3, A.sK, adv_k()), sm=sm, lo_check=True, dhi=40, vq=vq)
            dump = [i for at, i in vq.q[:max(0, len(vq.q) - 16)]]; vq.q = vq.q[len(dump):]
            if O('v') > 1: sys.stderr.write(f"; start: dumped {len(dump)}\n")
            if EXT:
                n0 = int(opt['l4'][0]); st.tag = "KV3"; st.cur = None
                l4 = [[st.st(R("a", 128 + 4 * n, 4), off) for n, (r, off) in enumerate(left[:n0])]]; st.cur = None
                l4.append([st.st(R("a", 128 + 4 * n, 4), off) for n, (r, off) in enumerate(left[n0:], n0)])
                wc = [int(x) for x in opt['wn']]; wn = [wo[sum(wc[:n]):sum(wc[:n + 1])] for n in range(4)]; assert sum(wc) == 7
            def early(g):
                vq.run(g, 0); assert not vq.q
                for q in range(g.n):
                    for i in g.ve[q]:
                        if i.op.startswith("v_accvgpr"): assert not any(set(i.reads) & set(g.m[x].writes) for x in range(q + 1)), (q, i.text)
            c.block("kv1", "L_kv1:", out, w_1, dump, fst(3),
                    win_pv(0, cz=True, pre_dma=(0, A.sV), tags=["QST"], vq_first=early,
                           post=L(f"s_xor_b32 s3, s47, 64\nv_mov_b32 v{A.vX + 5}, 1\nv_or_b32 v{A.vX + 6}, s{A.sNC}, v{A.vF0}") + [side.flag_store(3, A.vX + 6, A.vX + 5)]), fst(3),
                    *([win_qk(1, "L_st9", "L_rt9", groups=later, ghi=60, scal=mask_regs(False, (0, 1))), fst(3),
                       win_pv(1, groups=wo, glo=1, ghi=34, dlo=4, scal=mask_regs(False, (3,)), tail=L("s_branch L_loop_mid"))] if not EXT else
                      [win_qk(1, "L_st9", "L_rt9", groups=l4[0], ghi=60), fst(3), win_pv(1, groups=l4[1], ghi=60), fst(3),
                       win_qk(0, "L_st12", "L_rt12", extra=L(FL_LOAD), groups=wn[0], glo=6, scal=mask_regs(False, (0, 1))),
                       win_pv(0, tags=["KV3"], groups=wn[1], ghi=44, chk=L(f"v_cmp_gt_u32 vcc, 3, v{A.vRL + 1}\ns_cbranch_vccnz L_f4s\nL_f4r:"),
                              post=L(f"v_mov_b32 v{A.vX + 7}, 4") + [side.flag_store(sFL, A.vF0, A.vX + 7)]), fst(3),
                       win_qk(1, "L_st13", "L_rt13", groups=wn[2], scal=mask_regs(False, (2, 3))),
                       win_pv(1, groups=wn[3], glo=1, ghi=20, tail=L("s_branch L_loop_mid"))]))
            b_ = c.blocks["kv1"]
            if not EXT: b_[-1:-1] = mask_regs(False, (2,))
            assert max(n for n, i in enumerate(b_) if i.tag == "KV4") < max(n for n, i in enumerate(b_) if i.kind == "dma")
        else:
            assert not vq.q
            c.block("kv0", "L_kv0:", out, f"s_cmp_eq_u32 s{sJ}, 0\ns_cbranch_scc1 L_j0")
            c.block("k1", win_qk(0, "L_st10", "L_rt10", dma=(3, A.sK, adv_k()), sm=sm, lo_check=True, dhi=40, scal=mask_regs(False)), fst(3),
                    win_pv(0, cz=True, pre_dma=(0, A.sV), tail=L(f"s_cmp_lg_u32 s{A.sIT}, 0\ns_cbranch_scc1 L_loop_top")), "s_branch L_p1")
            c.block("j0", "L_j0:", mask_regs(False), ZZ(), [i for kb in range(4) for i in mask_blk(0, kb, 0, inplace=True)], mask_regs(True),
                    zero_O_mfma(mix(init_softmax(0), dma_flat(3, A.sK) + adv_k() + L(FP_LOAD), 1, 100), A.vP1),
                    [i for kb in range(4) for i in mask_blk(1, kb, 1)], "s_branch L_p2")

def build_att(c):
    fs = lambda: fst(3)
    c.block("loop_top", ".p2align 6\nL_loop_top:", fs(), win_qk(1, "L_st1", "L_rt1", extra=[side.touch(0, 60, 0, nt=False)] if opt['tl'] == '1' else []), win_pv(1))
    c.block("loop_mid", "L_loop_mid:", fs(), win_qk(0, "L_st0", "L_rt0", head=L(f"s_and_b32 s{A.sREQ}, s{A.sRT}, 15\ns_cbranch_scc1 L_fll\nL_fllr:\ns_lshr_b32 s{A.sRT}, s{A.sRT}, 4")),
            win_pv(0, tail=L(f"s_sub_u32 s{A.sIT}, s{A.sIT}, 1\ns_cmp_lg_u32 s{A.sIT}, 0\ns_cbranch_scc1 L_loop_top"),
                   chk=L(f"""v_cmp_gt_u32 vcc, s{A.sREQ}, v{A.vRL + 1}
                   s_cbranch_vccnz L_fls0
                   L_flr0:
                   s_and_b32 s3, s{A.sPT}, 15
                   s_cbranch_scc1 L_pub3
                   L_pub3r:
                   s_lshr_b32 s{A.sPT}, s{A.sPT}, 4""")))
    c.block("p1", "L_p1:", stamp(), f"s_cmp_eq_u32 s{A.sMODE}, 0\ns_cbranch_scc1 L_final_h", win_qk(1, "L_st5", "L_rt5", masked=True), fs(),
            win_pv(1, scal=mask_regs(True), valu=[i for kb in range(4) for i in mask_blk(1, kb, 1)], vlo=34, post=L(FP_LOAD)), fs())
    g = Gaps(qkB_mfmas())
    half_reads(g, 1, 2, [("T", 2)])
    half_dma(g, dma_flat(0, A.sV))
    ck = check(0, "L_st6")
    spread_any(g, softmax_half(0, 1) + ck[:2], 0, 28); g.put(31, ck[2])
    c.block("p2", "L_p2:", g.flat(), "L_rt6:", fs(), f"s_cmp_le_u32 s{sJ}, {15 - JC}\ns_cbranch_scc1 L_p3k\ns_cmp_ge_u32 s{sJ}, {JC}\ns_cbranch_scc1 L_p3c")
    smB = lambda: SM(groups_B(), add_l(0))
    pchk = lambda n: L(f"v_cmp_ne_u32 vcc, 1, v{A.vRL}\ns_cbranch_vccnz L_fps{n}\nL_fpr{n}:")
    lfin = lambda: add_l(1, (1,)) + zip2(xlane("v_add_f32", A.vLS, A.vX), xlane("v_add_f32", A.vLS + 1, A.vX + 1)) + L(f"v_rcp_f32 v{A.vRL}, v{A.vLS}\nv_rcp_f32 v{A.vRL+1}, v{A.vLS+1}")
    w2a = lambda: L(f"s_add_u32 s{A.sVn}, s{A.sVn}, 32768")
    c.block("p3o", win_pv(0, sm=smB(), nslot=0, end=check(1, "L_st2", only=1)), "L_rt2:", stamp())
    g = Gaps(pvB_mfmas())
    half_reads(g, 0, 3, [("T", 3)])
    half_dma(g, dma_flat(2, A.sVn) + w2a())
    spread_any(g, [i for ks in range(8) for i in cvt_ctx(ks, 0)], 1, 32)
    c.block("pBo", "L_pBo:", g.flat(), stamp(), "s_branch L_op1")
    pl = [I(f"buffer_load_dwordx4 v[{A.vX+4}:{A.vX+7}], v{A.vL16}, {WSR}, s{A.sPS} offen sc1")] + [
        I(f"buffer_load_dwordx4 a[{A.aX + 4*j}:{A.aX + 4*j + 3}], v{A.vL16}, {WSR}, s{A.sPB + j // 4} offen offset:{(j & 3) * 1024} sc1") for j in range(16)]
    c.block("p3c", "L_p3c:", pchk(0), win_pv(0, sm=smB(), nslot=0, end=check(1, "L_st3", only=1), groups=[[i] for i in pl], glo=0, ghi=60, nodma=True), "L_rt3:", stamp(),
            NEED(R("v", A.vX + 4, 4)), f"""
            v_cmp_neq_f32 vcc, v{A.vNM}, v{A.vX+4}
            v_cmp_neq_f32 s[64:65], v{A.vNM+4}, v{A.vX+5}
            v_add_f32 v{A.vX+6}, v{A.vX+6}, v{A.vLS}
            v_add_f32 v{A.vX+7}, v{A.vX+7}, v{A.vLS+1}
            s_or_b64 vcc, vcc, s[64:65]
            s_cbranch_vccnz L_comb
            """)
    cm = lambda qb, ks, hf: mfma(R("v", Oreg(2 * ks + hf, qb), 4), R("a", 246 - 2 * hf, 4), R("a", A.aX + (qb * 8 + ks) * 4, 4), R("v", Oreg(2 * ks + hf, qb), 4))
    F3 = lambda b, f: 192 + 4 * f if b == 2 else Freg(b, f)
    g = Gaps([pvB_mfma(db, kp, F3) for db in range(16) for kp in ((0, 1) if db % 2 == 0 else (1, 0))] + [cm(qb, ks, hf) for qb in range(2) for ks in range(8) for hf in range(2)])
    for b_, pos in ((1, [0, 0, 2, 2, 4, 4, 5, 6]), (2, [6, 8, 8, 10, 10, 12, 12, 14]), (3, [16, 16, 17, 18, 18, 19, 20, 20])):
        for f, k in enumerate(pos): g.put(k, rd_frag(0, b_, f, F3(b_, f)))
    g.put_s(7, NEED(R("a", Freg(1, 0), 16))); g.put_s(11, NEED(R("a", Freg(1, 4), 16))); g.put_s(15, NEED(R("a", 192, 16))); g.put_s(19, NEED(R("a", 208, 16)))
    g.put_s(23, NEED(R("a", Freg(1, 0), 32))); g.put_s(31, NEED(R("a", A.aX, 32))); g.put_s(47, NEED(R("a", A.aX + 32, 16))); g.put_s(55, NEED(R("a", A.aX + 48, 16)))
    g.put_s(34, WAITV([("T", 3)], lgkm0=True)); g.put_s(35, I("s_barrier"))
    for f, r in enumerate(rd_batch(3, 0)): g.put(44 + RPAT[0][f], r)
    g.put_s(62, NEED(R("a", Freg(0, 0), 32)))
    place_vm(g, [(dma_flat(1, A.sK) + dma_flat(2, A.sVn) + w2a(), 1, 61)])
    vq = VQ(); vq.add(L(f"v_mov_b32 v{A.vLS}, v{A.vX+6}\nv_mov_b32 v{A.vLS+1}, v{A.vX+7}"))
    for ks in range(8): vq.add(cvt_ctx(ks, 0), 32 + 2 * ks + 5)
    vq.run(g, 0); vq.force(g, 63, lambda i: True)
    c.block("pBc", g.flat(), stamp())
    comb = [I("L_comb:")] + [I(pl[0].text), I("s_waitcnt vmcnt(0)")] + dma_flat(1, A.sK) + L(f"""
    s_nop 7
    v_sub_f32 v{A.vX}, v{A.vNM}, v{A.vX+4}
    v_sub_f32 v{A.vX+1}, v{A.vNM+4}, v{A.vX+5}
    v_max_f32 v{A.vX}, 0, v{A.vX}
    v_max_f32 v{A.vX+1}, 0, v{A.vX+1}
    """) + sub_S(1, (1,)) + rescale_state() + sm_flat(groups_B()) + L(f"""
    v_sub_f32 v{A.vX}, v{A.vNM}, v{A.vX+4}
    v_sub_f32 v{A.vX+1}, v{A.vNM+4}, v{A.vX+5}
    v_cvt_i32_f32 v{A.vX}, v{A.vX}
    v_cvt_i32_f32 v{A.vX+1}, v{A.vX+1}
    v_ldexp_f32 v{A.vX}, 1.0, v{A.vX}
    v_ldexp_f32 v{A.vX+1}, 1.0, v{A.vX+1}
    v_and_b32 v{A.vX}, 0xffff0000, v{A.vX}
    v_and_b32 v{A.vX+1}, 0xffff0000, v{A.vX+1}
    v_fmac_f32 v{A.vLS}, v{A.vX}, v{A.vX+6}
    v_fmac_f32 v{A.vLS+1}, v{A.vX+1}, v{A.vX+7}
    v_lshrrev_b32 v{A.vX+2}, 16, v{A.vX}
    v_lshrrev_b32 v{A.vX+3}, 16, v{A.vX+1}
    """)
    n = 0
    for qb in range(2):
        for ks in range(8):
            for w in range(4):
                t = A.vT + (n % 8); n += 1
                o = Oreg(2 * ks + (w >> 1), qb) + 2 * (w & 1)
                comb += L(f"""v_accvgpr_read_b32 v{t}, a{A.aX + (qb * 8 + ks) * 4 + w}
                v_dot2c_f32_bf16 v{o}, v{t}, v{A.vX + 2 + qb}
                v_dot2c_f32_bf16 v{o+1}, v{t}, v{A.vX + qb}""")
    comb += L("s_nop 3\ns_branch L_pBo")
    slots = [3, 1, 2, 0, 3, 1, 2]
    def op_out(j, split=False):
        b = j & 1
        jo = j
        ins = L(f"s_add_u32 s{A.sT0}, s{A.sOP}, {2 * jo * 1024}\ns_add_u32 s{A.sT1}, s{A.sOP}, {14336 + 2 * jo * 1024}")
        for pp in range(2):
            if split and pp == 1: ins.append(64)
            for qb in range(2):
                a, d = Sreg(b, 2 * pp, qb), Sreg(b, 2 * pp + 1, qb)
                if BOP and j == 0 and pp == 0:
                    nm = A.vNM + 4 * qb
                    ins += L(f"""v_max3_f32 v{nm}, |v{a}|, |v{a+1}|, |v{a+2}|
                    v_max3_f32 v{nm}, |v{a+3}|, |v{d}|, v{nm}
                    v_max3_f32 v{nm}, |v{d+1}|, |v{d+2}|, v{nm}
                    v_mul_f32 v{nm}, {opt['bopk']}, v{nm}""") + [I(f"v_mov_b32 v{nm + e}, v{nm}") for e in (1, 2, 3)] + L(f"v_mul_f32 v{A.vSUM + 2 + qb}, -v{nm}, v{A.vRL + qb}")
                if BOP and j >= 2: ins += [I(f"v_fma_f32 v{r + e}, v{r + e}, v{A.vRL + qb}, v{A.vSUM + 2 + qb}") for r in (a, d) for e in range(4)]
                else: ins += [I(f"v_mul_f32 v{r + e}, v{A.vRL + qb}, v{r + e}") for r in (a, d) for e in range(4)]
                ins += L(f"""v_cvt_pk_bf16_f32 v{a}, v{a}, v{a+1}
                v_cvt_pk_bf16_f32 v{a+1}, v{a+2}, v{a+3}
                v_cvt_pk_bf16_f32 v{a+2}, v{d}, v{d+1}
                v_cvt_pk_bf16_f32 v{a+3}, v{d+2}, v{d+3}""")
                ins.append(I(f"buffer_store_dwordx4 v[{a}:{a+3}], v{A.vL16}, {WSR}, s{A.sT0 + qb} offen offset:{pp * 1024} sc1", tag=("OP", j)))
        return ins
    fop0 = lambda: L(f"""
    s_sub_u32 s64, 15, s{sJ}
    s_min_u32 s64, s64, s{sJ}
    s_mul_i32 s{sFL}, s64, {2 * FSTR}
    s_and_b32 s64, s{sJ}, 8
    s_lshl_b32 s64, s64, 1
    s_add_u32 s64, s64, s{sH}
    s_lshl_b32 s64, s64, 2
    s_add_u32 s{sFL}, s{sFL}, s64
    s_add_u32 s{sFL}, s{sFL}, {WS_FOP}
    s_lshl_b32 s64, s{A.sWAVE}, 8
    s_add_u32 s{sFL}, s{sFL}, s64
    s_add_u32 s3, s{sFL}, {FSTR}
    v_lshrrev_b32 v{A.vX + 7}, 5, v{A.vL16}
    v_min_u32 v{A.vX + 7}, 1, v{A.vX + 7}
    v_lshlrev_b32 v{A.vX + 6}, 3, v{A.vL16}
    v_lshl_or_b32 v{A.vX + 6}, v{A.vX + 7}, 29, v{A.vX + 6}
    v_mov_b32 v{A.vX + 5}, 1
    """)
    R3 = opt['r3'] == '1'
    fop = (lambda: red3.fop(A.vL16, A.vX + 5, sFL, 3)) if R3 else fop0
    def dbgst():
        if opt['dbgst'] == '0': return []
        o = f"""
        s_load_dwordx2 s[72:73], s[0:1], {A_DBG}
        v_accvgpr_read_b32 v11, a{aST+1}
        v_accvgpr_read_b32 v15, a{aST}
        v_lshrrev_b32 v12, 4, v{A.vL16}
        v_mov_b32 v13, {side.OOB}
        s_waitcnt lgkmcnt(0)
        {srd(68, 72, 256)}
        s_lshl_b32 s64, s2, 2
        s_add_u32 s64, s64, s{A.sWAVE}
        s_cmp_eq_u32 s64, {O('dbgst')}
        s_cselect_b32 s64, 0, {side.OOB}
        s_and_b32 s65, s{sJ}, 8
        s_or_b32 s65, s65, s{A.sWAVE}
        s_cmp_eq_u32 s65, 0
        s_cselect_b32 s65, 0, {side.OOB}
        """
        for n, ln in enumerate([int(x) for x in opt['dbgl'].split(',')]):
            o += f"s_add_u32 s66, s64, {4 * (2 + n)}\nv_cmp_eq_u32 vcc, {ln}, v12\nv_mov_b32 v14, s66\ns_nop 1\nv_cndmask_b32 v13, v13, v14, vcc\n"
        o += f"""buffer_store_dword v11, v13, s[68:71], 0 offen
        buffer_store_dword v15, v13, s[68:71], 0 offen offset:28
        s_sub_u32 s66, s{sSTK}, 1
        v_mov_b32 v13, {side.OOB}
        v_cmp_eq_u32 vcc, s66, v12
        v_mov_b32 v14, 4
        s_nop 1
        v_cndmask_b32 v13, v13, v14, vcc
        v_or_b32 v13, s65, v13
        buffer_atomic_umax v11, v13, s[68:71], 0 offen
        v_not_b32 v11, v11
        v_min_u32 v13, 1, v12
        v_lshlrev_b32 v13, 29, v13
        v_or_b32 v13, s65, v13
        s_nop 1
        buffer_atomic_umax v11, v13, s[68:71], 0 offen
        s_waitcnt vmcnt(0)
        """
        return L(o)
    fin = lambda: (L("s_mov_b64 exec, -1\ns_waitcnt vmcnt(0)") + stamp(30) + L(f"""
        s_lshl_b32 s{A.sT0}, s2, 2
        s_add_u32 s{A.sT0}, s{A.sT0}, s{A.sWAVE}
        s_lshl_b32 s{A.sT0}, s{A.sT0}, 9
        s_add_u32 s{A.sT0}, s{A.sT0}, {WS_STAMP}
        v_lshrrev_b32 v10, 1, v{A.vL16}
        buffer_store_dwordx2 a[{aST}:{aST+1}], v10, {WSR}, s{A.sT0} offen
        """) + dbgst()) if STAMP else []
    def last_reads(g, slot):
        for b in range(1, 4):
            for f, r in enumerate(rd_batch(slot, b)): g.put((b - 1) * 16 + RPAT[0][f], r)
            g.put_s(b * 16 - 1, NEED(R("a", Freg(b, 0), 32)))
    ctx_v = lambda qb, ks: R("v", Oreg(2 * ks, qb), 4)
    ctx_a = lambda qb, ks: R("a", A.aX + (qb * 8 + ks) * 4, 4)
    pub = lambda: L(f"s_waitcnt vmcnt(0)\nbuffer_store_dword v{A.vX + 5}, v{A.vX + 6}, {WSR}, s3 offen sc1") + stamp(30)
    def outproj(tag, ctx, first=(), tags0=(), post0=()):
        ow = []
        for j in range(7):
            k = 2
            if j == 0 and tag:
                g = Gaps(qk_mfmas(0, "zero", breg=ctx, order=[(kb, qb) for qb in range(2) for kb in range(4)], fr=Freg4))
                half_reads(g, slots[0], slots[1], [("T", slots[1])], bar=47)
                vq = VQ()
                for ks in range(8): vq.add(cvt_ctx(ks, 1), 3 if ks > 5 else 0)
                k = vq.run(g, 0); assert k < 31 and not vq.q, k
            else:
                g = Gaps(qk_mfmas(j & 1, "nm" if BOP and j >= 2 else "zero", breg=ctx))
                if j < 6: weave_reads(g, slots[j], slots[j + 1], [("T", slots[j + 1])] + (list(tags0) if j == 0 else []))
                else: last_reads(g, slots[j])
            if j == 0:
                kk = 48
                for i in post0: kk = g.fit(kk, i) if i.slots()[0] else g.fit_s(kk, i) + 1
            if j + 3 < 7: weave_dma(g, slots[j + 3], A.sVn, w2a(), k if j == 0 else 1, 60 if j == 0 else O('odh'))
            if j == 0: assert not seq_fit(g, list(first) + (fop() if not tag else []), k)[1]
            if j == 3 and tag: assert not seq_fit(g, fop(), 1)[1]
            if j == 2: assert not seq_fit(g, side.sel_a(A.vL16), 1)[1]
            if j in (4, 5): assert not seq_fit(g, {4: side.sel_b(tag), 5: side.sel_c()}[j], 40 if j == 5 else 2)[1]
            if j == (side.NE - 1) // 2 + 2:
                assert not seq_fit(g, [WAITV([("OP", j - 2)]), I(f"buffer_store_dword v{A.vX + 5}, v{A.vX + 6}, {WSR}, s{sFL} offen sc1")], 52)[1]
            if j > 0: k = fill_valu(g, op_out(j - 1), 3, 58 if j < 6 else 36)
            if j == 6: k, last = seq_fit(g, op_out(6, True), max(k, 38))
            if tag and j in (0, 3, 5):
                n = {0: 1, 3: 2, 5: 3}[j]
                g.put_s(62, I(f"s_cmp_eq_u32 s{sJ}, {O('jy')}")); g.put_s(63, I(f"s_cbranch_scc1 L_y{n}"))
            ow += g.flat() + (L(f"L_y{n}r:") if tag and j in (0, 3, 5) else []) + fst(4, 30)
        return ow + stamp(30) + [i for i in last if not isinstance(i, int)] + pub()
    c.block("op1", "L_op1:", outproj(1, ctx_v, lfin()), f"s_cmp_lt_u32 s{sJ}, 8\ns_cbranch_scc1 L_red")
    if R3: c.block("end1", f"s_cmp_eq_u32 s{A.sWAVE}, 3\ns_cbranch_scc1 L_vend", red3.head(True), red3.main_v(A.vL16, lambda: stamp(30), O('lagv')), "L_vend:", fin(), "s_endpgm")
    else: c.block("end1", fin(), "s_endpgm")
    qld = [[I(f"buffer_load_dwordx4 a[{4*n}:{4*n+3}], v{A.vL16}, {WSR}, s{72 + n // 4} offen offset:{(n & 3) * 1024} sc1")] for n in range(16)]
    c.block("p3k", "L_p3k:", f"""
            s_mov_b32 s72, s{A.sQ}
            s_add_u32 s73, s72, 4096
            s_add_u32 s74, s72, 8192
            s_add_u32 s75, s72, 12288
            """, pchk(1), win_pv(0, sm=smB(), nslot=0, end=check(1, "L_st7", only=1), groups=qld, glo=0, ghi=60, nodma=True), "L_rt7:", stamp())
    g = Gaps(pvB_mfmas())
    half_reads(g, 0, 3, [("T", 3)])
    half_dma(g, dma_flat(1, A.sK) + adv_k())
    scal_fit(g, L(f"s_sub_u32 s{A.sIT}, {15 - JC}, s{sJ}\ns_mov_b32 s{A.sMODE}, 0"))
    vq = VQ()
    vq.add(lfin() + L(f"""v_accvgpr_write_b32 a192, v{A.vRL}
        v_accvgpr_write_b32 a193, v{A.vRL + 1}
        v_mov_b32 v{A.vLS}, 0
        v_mov_b32 v{A.vLS + 1}, 0""") + [I(f"v_mov_b32 v{A.vNM + r}, {NM0}") for r in range(8)])
    nfirst = len(vq.q)
    for ks in range(8):
        for qb in range(2):
            vq.add(cvt_ctx(ks, qb), 4 * ks + 7 if qb else 0)
            vq.add([I(f"v_accvgpr_write_b32 a{A.aX + (qb * 8 + ks) * 4 + e}, v{Oreg(2 * ks, qb) + e}") for e in range(4)], 32)
    vq.run(g, 0)
    vq.force(g, 31, lambda i: f"v{A.vNM + 7}" in i.writes)
    w_b = g.flat()
    g, sm = first_qk(False)
    g.pre = [NEED(R("a", 0, 64))]
    g.put(40, I(f"v_cmp_gt_u32 vcc, 3, v{A.vRL + 1}")); g.put_s(43, I("s_cbranch_vccnz L_f2s")); g.put_s(43, I("L_f2r:"))
    place_vm(g, [(dma_flat(2, A.sV), 3, 44), ([I(FL_LOAD)], 0, 1)])
    sm.run(g, 8, 64, final=False, upto=8)
    vq.run(g, 32)
    vq.q = [(0, i) for at, i in vq.q]
    w_1 = win_qk(0, "L_st11", "L_rt11", dma=(3, A.sK, adv_k()), sm=sm, lo_check=True, vq=vq, dhi=40)
    npk = O('npk'); dump = [i for at, i in vq.q[:max(0, len(vq.q) - npk)]]; vq.q = vq.q[len(dump):]
    if O('v') > 1: sys.stderr.write(f"; switch: dumped {len(dump)}\n")
    def early(g):
        vq.run(g, 0); assert not vq.q
        for q in range(g.n):
            for i in g.ve[q]:
                if i.op.startswith(("v_cvt", "v_accvgpr")): assert not any(set(i.reads) & set(g.m[x].writes) for x in range(q + 1)), (q, i.text)
    c.block("sw", w_b, stamp(), g.flat(), fs(), w_1, dump, fs(),
            win_pv(0, cz=True, vq_first=early, pre_dma=(0, A.sV), tail=L(f"s_cmp_lg_u32 s{A.sIT}, 0\ns_cbranch_scc1 L_loop_top")), stamp())
    pst = lambda ks, qb: [I(f"buffer_store_dwordx4 v[{Oreg(2*ks, qb)}:{Oreg(2*ks, qb)+3}], v{A.vL16}, {WSR}, s{A.sPB + (qb*8+ks) // 4} offen offset:{(ks & 3) * 1024} sc1", tag="PST")]
    g = Gaps(pv_mfmas(1))
    weave_reads(g, 0, 3, [("T", 3)])
    k = 0; rest = []
    for ks in range(8):
        for qb in range(2):
            ins = cvt_ctx(ks, qb) + pst(ks, qb)
            if rest: rest += ins; continue
            k, rest = seq_fit(g, ins, max(k, 8 * ks + 5 + 2 * qb + 4))
    c.block("final_h", "L_final_h:", WAITV([("T", 0)], lgkm0=True), "s_barrier", rd_batch(0, 0), mix(softmax_half(1, 1), dma_flat(2, A.sVn) + w2a(), 1), check(1, "L_st4"), "L_rt4:", add_l(1), f"""
    v_mov_b32 v{A.vX+2}, v{A.vNM}
    v_mov_b32 v{A.vX+3}, v{A.vNM+4}
    v_mov_b32 v{A.vX+4}, v{A.vLS}
    v_mov_b32 v{A.vX+5}, v{A.vLS+1}
    buffer_store_dwordx4 v[{A.vX+2}:{A.vX+5}], v{A.vL16}, {WSR}, s{A.sPS} offen sc1
    """, NEED(R("a", Freg(0, 0), 32)), stamp(), g.flat(), rest, stamp())
    c.block("op0", outproj(0, ctx_a, L(f"v_accvgpr_read_b32 v{A.vRL}, a192\nv_accvgpr_read_b32 v{A.vRL + 1}, a193"), ["PST"],
                           L(f"s_xor_b32 s47, s47, 64\nv_mov_b32 v{A.vT}, 1") + [side.flag_store(47, A.vF0, A.vT)]))
    rm, far = (red3.main_k if R3 else lambda *a: side.red_main(*a, True, False))(A.vL16, lambda: stamp(30), O('lag'))
    c.block("red", "L_red:", red3.head(False) if R3 else side.red_a(A.vL16), rm, fin(), "s_endpgm")
    c.block("redfar", far)
    c.block("rpoll", side.red_poll())
    c.block("comb", comb)
    stubs = ""
    for n, b in ((0, "0"), (1, "1"), (2, "B"), (3, "B"), (4, "1n"), (5, "1"), (6, "0B"), (7, "B"), (8, "f"), (9, "1"), (10, "f"), (11, "f")) + (((12, "0"), (13, "1")) if EXT else ()):
        stubs += f"L_st{n}:\ns_call_b64 s[{A.sRET}:{A.sRET+1}], L_slow{b}\ns_branch L_rt{n}\n"
    c.block("stubs", stubs)
    for nm, b, oth in (("0", 0, (0, 1)), ("1", 1, (0, 1)), ("1n", 1, ()), ("0B", 0, (1,)), ("B", 1, ()), ("f", 0, (0, 1))): c.block("slow" + nm, slow_sub(nm, b, oth))
    c.block("moe", red3.moe() if R3 else side.red_moe(), side.y_reduce2(lambda n: Oreg(2 * (n >> 1) + 1, n & 1)))
    c.block("spins", f"""
    L_fll:
    {FL_LOAD}
    s_branch L_fllr
    L_pub3:
    v_mov_b32 v{A.vX + 7}, s3
    """, side.flag_store(sFL, A.vF0, A.vX + 7), "s_branch L_pub3r",
            *[side.spin_stub(f"L_fhs{n}", f"L_fhr{n}", side.FH0_LOAD, 24, 91, "v_cmp_gt_u32 vcc, 1, v{vt}") for n in range(2)],
            *[side.spin_stub(f"L_fps{n}", f"L_fpr{n}", FP_LOAD, A.vRL, A.sSPIN) for n in range(2)],
            side.spin_stub("L_f4s", "L_f4r", FL_LOAD, A.vRL + 1, A.sSPIN, "v_cmp_gt_u32 vcc, 3, v{vt}") if EXT else [],
            side.spin_stub("L_f2s", "L_f2r", FL_LOAD, A.vRL + 1, A.sSPIN, "v_cmp_gt_u32 vcc, 3, v{vt}"),
            side.spin_stub("L_fls0", "L_flr0", FL_LOAD, A.vRL + 1, A.sSPIN, f"v_cmp_gt_u32 vcc, s{A.sREQ}, v{{vt}}"))

def early_stubs(c):
    c.block("spins0", side.z_stub(0), side.z_stub(1), hw.key_stub(),
            *[side.spin_stub(f"L_f1s{n}{w}", f"L_f1r{n}{w}", F1_LOAD if w == 4 else F2_LOAD, 24, 91, "v_cmp_eq_u32 vcc, 0, v{vt}") for n in range(2) for w in (4, 5)])

def paths(c):
    lp = ["loop_top", "loop_mid"]
    for end in (["p3c", "pBc"], ["p3o", "pBo"], ["p3c", "comb", "pBo"]):
        c.path("entry", "kv1", "loop_mid", *lp, *lp, "p1", "p2", *end, "op1", "end1")
    c.path("entry", "kv0", "k1", *lp, *lp, "p1", "p2", "p3o", "pBo", "op1", "red")
    for own in (["j0"], ["k1", "p1"], ["k1", *lp, "p1"], ["k1", *lp, *lp, "p1"]):
        for nh in (0, 1, 2):
            c.path("entry", "kv0", *own, "p2", "p3k", "sw", *(lp * nh), "final_h", "op0", "red")
    for b in ("redfar", "rpoll", "stubs", "slow0", "slow1", "slow1n", "slow0B", "slowB", "slowf", "moe", "spins", "spins0"): c.path(b)

if __name__ == "__main__":
    c = CFG(verbose=O("v"))
    build_front(c); early_stubs(c); build_att(c); paths(c)
    body = c.finalize()
    kn = NAME + "_kernel"
    print("; @launch grid=(256,1,1) block=(256,1,1) lds=163840")
    print('.amdgcn_target "amdgcn-amd-amdhsa--gfx950"\n.text')
    print(".macro M d, a, b, c\nv_mfma_f32_16x16x32_bf16 \\d, \\a, \\b, \\c\n.endm")
    print(kernel_header(kn))
    print(body.replace("  v_mfma_f32_16x16x32_bf16 ", "M ").replace("\n  ", "\n "))
    print("L_code_end:")
    print('.section .rodata,"a"\n.p2align 6')
    print(kernel_desc(kn, sgpr=102))
```

```python
from common import *

class AttRegs:
    S_WS = 8
    sWAVE = 20
    sK, sCNT, sKP, sV = 21, 22, 23, 24
    sJ = ((25, 26), (43, 4), (6, 7))
    sIT, sM0, sT0, sT1 = 27, 28, 29, 30
    sTHR, sQ, sOP, sPO, sNC = 31, 32, 33, 34, 35
    sRET, sVn, sREQ, sMODE = 36, 38, 39, 40
    sRT, sPT, sEV = 54, 5, 34
    sPB, sPS, sSPIN, sLO = 12, 52, 53, 55
    sTRI = (16, 18, 48, 50)
    sMK = 64
    vRD0, vRD1, vDM0, vDM1, vL16 = 7, 2, 3, 4, 7
    vF0, vRL, vNEG, vFL = 1, 5, 8, 9
    vX, vT, vSUM, vLS, vNM = 10, 18, 26, 30, 32
    vP0, vP1 = 40, 56
    vS, vO = 64, 128
    aQ, aF, aX = 0, 64, 128
A = AttRegs
BPV = dict(on=0, db=4, k=20.0)
aOF = 242
KSLOT = {0: 3, 1: 1}
VSLOT = {0: 2, 1: 0}
WSR = f"s[{A.S_WS}:{A.S_WS+3}]"
DKV = WS_V - WS_K

def Sreg(b, kb, qb): return A.vS + 32 * b + (kb * 2 + qb) * 4
def Oreg(db, qb): return A.vO + (db * 2 + qb) * 4
def Preg(b, kp, qb): return (A.vP0 + 8 * b + 4 * qb) if kp == 0 else (A.vP1 + 4 * qb)
def PregB(kp): return Preg(1, 0, 1 - kp)
def Qreg(qb, ks): return A.aQ + (qb * 8 + ks) * 4
def Freg(batch, f): return A.aF + (batch & 1) * 32 + f * 4
def Freg4(batch, f): return A.aF + batch * 32 + f * 4

def rd_frag(slot, batch, f, dst):
    va = 43 if slot == 4 else A.vRD1 if slot >= 2 else A.vRD0
    return I(f"ds_read_b128 a[{dst}:{dst+3}], v{va} offset:{(slot & 1) * 32768 + batch * 8192 + f * 1024}")
def rd_batch(slot, batch, reg=Freg): return [rd_frag(slot, batch, f, reg(batch, f)) for f in range(8)]

DFL = "sc1"
def dma_tile(slot, soff, v0=A.vDM0):
    out = []
    for j in range(8):
        pre = I(f"s_add_u32 m0, s{A.sM0}, {slot * 32768 + (j >> 2) * 4096}") if j % 4 == 0 else None
        out.append((pre, I(f"buffer_load_dwordx4 v{v0 + (j >> 2)}, {WSR}, s{soff} offen offset:{(j & 3) * 1024} {DFL} lds", tag=("T", slot))))
    return out
def dma_flat(slot, soff, v0=A.vDM0): return [i for p in dma_tile(slot, soff, v0) for i in p if i]
def adv_k():
    return L(f"""
    s_add_u32 s{A.sV}, s{A.sKP}, {DKV}
    s_mov_b32 s{A.sKP}, s{A.sK}
    s_add_u32 s{A.sK}, s{A.sK}, 32768
    s_add_u32 s{A.sCNT}, s{A.sCNT}, 1
    """ + "".join(f"s_cmp_eq_u32 s{A.sCNT}, s{c}\ns_cselect_b32 s{A.sK}, s{a}, s{A.sK}\n" for c, a in A.sJ))

RPAT = {0: [0, 1, 3, 4, 6, 7, 9, 10], 1: [0, 0, 3, 3, 6, 6, 9, 9]}
def weave_dma(g, slot, soff, post, lo=1, hi=45):
    t = dma_tile(slot, soff)
    link([i for p in t for i in p if i] + list(post))
    step = (hi - lo) / 8.0
    kk = lo - 1
    for j, (pre, d) in enumerate(t):
        k = max(kk + 1, int(lo + j * step))
        if pre: k = g.fit_s(max(k - 1, kk + 1 if j else 0), pre) + 1
        kk = g.fit(k, d)
    k = kk + 1
    lock = g.__dict__.setdefault("lock", set())
    for ins in post:
        k0 = k; k = g.fit_s(k, ins) + 1
        if reads_scc(ins): lock.update(range(k0 - 1, k - 1))
    return k

def weave_both(g, dma, lo, hi, groups, glo, ghi):
    import q2
    slot, soff, post = dma
    last = q2.place_vm(g, ([(dma_flat(slot, soff), lo, hi)] if slot is not None else []) + [([i for x in groups for i in x], glo, ghi)])
    if post: scal_fit(g, post, last[0])
def weave_reads(g, slot, nslot, wait_tags, pat=0):
    pat = RPAT[pat]
    for b in range(1, 4):
        for f, r in enumerate(rd_batch(slot, b)): g.put((b - 1) * 16 + pat[f], r)
        if b < 3: g.put_s(b * 16 - 1, NEED(R("a", Freg(b, 0), 32)))
    g.put_s(46, WAITV(wait_tags, lgkm0=True))
    g.put_s(47, I("s_barrier"))
    if nslot is not None:
        for f, r in enumerate(rd_batch(nslot, 0)): g.put(48 + pat[f], r)
        g.put_s(62, NEED(R("a", Freg(0, 0), 32)))
def half_reads(g, slot, nslot, wait_tags, bar=22):
    pos = [0, 0, 1, 2, 2, 3, 4, 4, 6, 6, 7, 8, 8, 10, 10, 11, 12, 12, 14, 14, 15, 16, 16, 17]
    for k, r in zip(pos, [r for b in range(1, 4) for r in rd_batch(slot, b, Freg4)]): g.put(k, r)
    g.put_s(7, NEED(R("a", Freg4(1, 0), 32))); g.put_s(15, NEED(R("a", Freg4(2, 0), 32)))
    g.put_s(bar - 1, WAITV(wait_tags, lgkm0=True)); g.put_s(bar, I("s_barrier"))
    for k, r in zip([1, 1, 2, 3, 3, 4, 5, 5] if g.n == 32 else [1 + x for x in RPAT[0]], rd_batch(nslot, 0)): g.put(bar + k, r)
    g.put_s(g.n - 1 if g.n == 32 else 62, NEED(R("a", Freg(0, 0), 32)))
    if bar > 24: g.put_s(23, NEED(R("a", Freg4(3, 0), 32)))
def half_dma(g, ins):
    link(ins); pos = [5, 9, 13, 18, 20, 28, 29, 30]; k = 0
    for i in ins:
        if i.slots()[0]: k = pos.pop(0); g.put(k, i)
        elif pos:
            q = pos[0] - 1
            while not g.room_s(q): q -= 1
            assert q > k or k == 0; g.put_s(q, i)
        else: g.put(g.n - 1, i)
    g.lock = {g.n - 1}
def spread_any(g, ins, lo, hi):
    link(ins)
    ks = [k for k in range(lo, hi) if not g.has_vm(k) and not any(x.op == "s_barrier" for x in g.sc[k])]
    tot = sum(max(i.slots()) for i in ins) + sum(g.used(k) for k in ks)
    acc = 0; n = 0; ins = list(ins)
    for x, k in enumerate(ks):
        acc += g.used(k)
        while ins and (acc + max(ins[0].slots()) <= (x + 1) * tot / len(ks) + 0.5 or x == len(ks) - 1):
            i = ins.pop(0); acc += max(i.slots()); g.put(k, i)

def cin(cmode, b, kb, qb):
    d = R("v", Sreg(b, kb, qb), 4); nm = R("v", A.vNM + 4 * qb, 4)
    return {"nm": nm, "zero": "0", "mask": nm if qb else d, "self": d}[cmode]
def qk_mfmas(b, cmode, breg=None, order=None, fr=None):
    ms = []
    for kb, qb in order or [(kb, qb) for kb in range(4) for qb in range(2)]:
        d = R("v", Sreg(b, kb, qb), 4)
        for n, ks in enumerate(range(8) if (qb == 0 or order) else range(7, -1, -1)):
            bq = breg(qb, ks) if breg else R("a", Qreg(qb, ks), 4)
            ms.append(mfma(d, R("a", (fr or Freg)(kb, ks), 4), bq, d if n else cin(cmode, b, kb, qb)))
    return ms
def qkB_mfmas():
    return [mfma(R("v", Sreg(1, kb, 1), 4), R("a", Freg4(kb, ks), 4), R("a", Qreg(1, ks), 4), R("v", Sreg(1, kb, 1), 4)) for kb in range(4) for ks in (range(8) if kb % 2 == 0 else range(7, -1, -1))]
def pv_mfmas(b, cz=False):
    ms = []
    for db in range(16):
        for qb in range(2):
            d = R("v", Oreg(db, qb), 4)
            for n, kp in enumerate((0, 1) if qb == 0 else (1, 0)):
                ms.append(mfma(d, R("a", Freg(db >> 2, (db & 3) * 2 + kp), 4), R("v", Preg(b, kp, qb), 4), d if not (cz and n == 0) else R("v", A.vX + 4 * qb, 4) if BPV['on'] and db >= BPV['db'] else "0"))
    return ms
def pvB_mfma(db, kp, reg): return mfma(R("v", Oreg(db, 1), 4), R("a", reg(db >> 2, (db & 3) * 2 + kp), 4), R("v", PregB(kp), 4), R("v", Oreg(db, 1), 4))
def pvB_mfmas(): return [pvB_mfma(db, kp, Freg4) for db in range(16) for kp in ((0, 1) if db % 2 == 0 else (1, 0))]

def blocks_of(kp): return [(2 * kp + kk, qb) for qb in range(2) for kk in range(2)]
BLK_B = [(kb, 1) for kb in range(4)]
def sm_groups(b, blocks, init, pd=None, n0=0):
    groups = []; init = set(init); n = n0
    for kb, qb in blocks:
        for pr in range(2):
            s = Sreg(b, kb, qb) + 2 * pr
            t0, t1 = A.vT + (n % 4) * 2, A.vT + (n % 4) * 2 + 1
            sm = A.vSUM + 2 * b + qb
            ex = [I(f"v_exp_f32 v{t0}, v{s}"), I(f"v_exp_f32 v{t1}, v{s+1}")]
            if qb in init: post = [I(f"v_add_f32 v{sm}, v{t0}, v{t1}")]; init.discard(qb)
            else: post = [I(f"v_add_f32 v{sm}, v{t0}, v{sm}"), I(f"v_add_f32 v{sm}, v{t1}, v{sm}")]
            p = (pd(kb >> 1) if pd else Preg(b, kb >> 1, qb)) + 2 * (kb & 1) + pr
            post.insert(1, I(f"v_cvt_pk_bf16_f32 v{p}, v{t0}, v{t1}"))
            groups.append((ex, post)); n += 1
    return groups
def half_groups(b, kp): return sm_groups(b, blocks_of(kp), (0, 1) if kp == 0 else ())
def groups_B(): return sm_groups(1, BLK_B, (1,), PregB)
def sm_flat(groups):
    out = []; prev = []
    for ex, post in groups:
        out.append(ex[0]); out += prev[:2]; out.append(ex[1]); out += prev[2:]
        prev = post
    return out + prev
def softmax_half(b, kp): return sm_flat(half_groups(b, kp))
class SM:
    def __init__(self, grp, pre=(), ready=None):
        link(list(pre) + [i for e, p in grp for i in e + p])
        self.ex = [(n, i) for n, (e, p) in enumerate(grp) for i in e]
        self.po = [(-1, i) for i in pre] + [(n, i) for n, (e, p) in enumerate(grp) for i in p]
        self.done = {}; self.ready = ready or {}; self.ng = len(grp)
    def run(self, g, lo, hi, final=True, upto=None):
        ex, po, done = self.ex, self.po, self.done
        for n in done: done[n] = (done[n][0], -1)
        last = lo; ne = 0; tot = max(len(ex), 1)
        for k in range(lo, g.n):
            empty_left = sum(1 for q in range(k, hi) if g.used(q) == 0)
            if ex and g.used(k) == 0 and (upto is None or ex[0][0] < upto):
                n = ex[0][0]
                free = not any(m <= n - 4 for m, _ in po)
                due = not final or k >= lo + ne * (hi - lo) // tot or empty_left <= len(ex)
                if free and due and k >= self.ready.get(n, 0):
                    g.put(k, ex.pop(0)[1]); done[n] = (done.get(n, (0, 0))[0] + 1, k); ne += 1; last = k
                    continue
            keep = final and ex and g.used(k) == 0 and empty_left <= len(ex) and not any(m <= ex[0][0] - 4 for m, _ in po)
            while po and g.used(k) < 2 and not keep:
                n = po[0][0]
                if n >= 0 and not (done.get(n, (0, 0))[0] == 2 and done[n][1] < k): break
                g.put(k, po.pop(0)[1]); last = k
        self.ready = {}
        if final and (ex or po):
            last = g.n - 1
            for i in self.rest(): g.put(last, i)
        return last
    def rest(self):
        out = []; prev = [i for m, i in self.po if m < (self.ex[0][0] if self.ex else self.ng)]
        for n in range(self.ex[0][0] if self.ex else self.ng, self.ng):
            e = [i for m, i in self.ex if m == n]
            if n % 4 == 0 or True: out += prev[:max(0, len(prev) - 3)]; prev = prev[max(0, len(prev) - 3):]
            out += e[:1] + prev[:2] + e[1:] + prev[2:]
            prev = [i for m, i in self.po if m == n]
        self.ex.clear(); self.po.clear()
        return out + prev

def check(b, label, lo=False, only=None):
    s0, s1 = A.vSUM + 2 * b, A.vSUM + 2 * b + 1
    if only is not None: return L(f"v_cmp_lt_f32 vcc, s{A.sTHR}, v{s0 + only}\ns_cbranch_vccnz {label}")
    if not lo: return L(f"v_max_f32 v{A.vX}, v{s0}, v{s1}\nv_cmp_lt_f32 vcc, s{A.sTHR}, v{A.vX}\ns_cbranch_vccnz {label}")
    return L(f"""v_max_f32 v{A.vX}, v{s0}, v{s1}
    v_min_f32 v{A.vX + 1}, v{s0}, v{s1}
    v_cmp_lt_f32 s[36:37], s{A.sTHR}, v{A.vX}
    v_cmp_gt_f32 vcc, s{A.sLO}, v{A.vX + 1}
    s_or_b64 vcc, vcc, s[36:37]
    s_cbranch_vccnz {label}""")
def add_l(b, qbs=(0, 1)): return [I(f"v_add_f32 v{A.vLS + q}, v{A.vSUM + 2*b + q}, v{A.vLS + q}") for q in qbs]

def xlane(op, r, t):
    return L(f"""
    v_mov_b32 v{t}, v{r}
    v_permlane16_swap_b32 v{t}, v{r}
    {op} v{r}, v{t}, v{r}
    v_mov_b32 v{t}, v{r}
    v_permlane32_swap_b32 v{t}, v{r}
    {op} v{r}, v{t}, v{r}
    """)
def zip2(a, c): return [i for p in zip(a, c) for i in p]
def rowmax(b, qbs=(0, 1)):
    ins = []
    for qb in qbs:
        vals = [Sreg(b, kb, qb) + e for kb in range(4) for e in range(4)]
        m = A.vX + qb
        ins.append(I(f"v_max3_f32 v{m}, v{vals[0]}, v{vals[1]}, v{vals[2]}"))
        for x in range(3, 15, 2): ins.append(I(f"v_max3_f32 v{m}, v{vals[x]}, v{vals[x+1]}, v{m}"))
        ins.append(I(f"v_max_f32 v{m}, v{vals[15]}, v{m}"))
    xs = [xlane("v_max_f32", A.vX + q, A.vX + 2 + q) for q in qbs]
    ins += zip2(*xs) if len(xs) == 2 else xs[0]
    return ins + [I(f"v_ceil_f32 v{A.vX + q}, v{A.vX + q}") for q in qbs]
def sub_S(b, qbs=(0, 1)): return [I(f"v_sub_f32 v{Sreg(b, kb, qb) + e}, v{Sreg(b, kb, qb) + e}, v{A.vX + qb}") for kb in range(4) for qb in qbs for e in range(4)]
def sub_NM(qbs=(0, 1)): return [I(f"v_sub_f32 v{A.vNM + 4*q + e}, v{A.vNM + 4*q + e}, v{A.vX + q}") for q in qbs for e in range(4)]
def init_softmax(b): return rowmax(b) + sub_NM() + sub_S(b) + softmax_half(b, 0)
def rescale_state(qbs=(0, 1)):
    ins = sub_NM(qbs) + [I(f"v_exp_f32 v{A.vX + 2 + q}, -v{A.vX + q}") for q in qbs]
    ins += [I(f"v_mul_f32 v{A.vLS + q}, v{A.vX + 2 + q}, v{A.vLS + q}") for q in qbs]
    if BPV['on']:
        for q in qbs: ins += L(f"v_accvgpr_read_b32 v{A.vT}, a{aOF + q}\nv_mul_f32 v{A.vT}, v{A.vX + 2 + q}, v{A.vT}\nv_accvgpr_write_b32 a{aOF + q}, v{A.vT}")
    return ins + [I(f"v_mul_f32 v{Oreg(db, q) + e}, v{A.vX + 2 + q}, v{Oreg(db, q) + e}") for db in range(16) for q in qbs for e in range(4)]
def slow_sub(name, b, other):
    qbs = (1,) if name == "B" else (0, 1)
    ins = [I(f"L_slow{name}:"), I("s_nop 7"), I("s_nop 3")] + rowmax(b, qbs)
    if name != "f": ins += [I(f"v_max_f32 v{A.vX + q}, 0, v{A.vX + q}") for q in qbs]
    ins += sub_S(b, qbs) + sub_S(1 - b, other)
    ins += sub_NM() if name == "f" else rescale_state(qbs)
    ins += sm_flat(groups_B()) if name == "B" else softmax_half(b, 0) + softmax_half(b, 1)
    return ins + [I("s_nop 3"), I(f"s_setpc_b64 s[{A.sRET}:{A.sRET+1}]")]

def fill_valu(g, ins, lo, hi):
    tot = sum(max(i.slots()) for i in link(ins))
    k = lo; acc = 0
    for i in ins:
        tgt = lo + int(acc * (hi - lo) / max(tot, 1))
        k = g.fit(g.vm_slot(max(k, tgt), i, 4), i)
        acc += max(i.slots())
    return k

def mask_regs(second, kbs=range(4)):
    out = ""
    for kb in kbs:
        u = 3 - kb if second else kb
        m = A.sMK + 8 * kb
        oth = {0: "0", 3: "-1"}.get(kb, f"s[{m+6}:{m+7}]")
        if kb in (1, 2): out += f"s_cmp_{'gt' if second else 'lt'}_u32 s{A.sWAVE}, {u}\ns_cselect_b64 {oth}, -1, 0\n"
        out += f"s_cmp_eq_u32 s{A.sWAVE}, {u}\n"
        for e in range(4): out += f"s_cselect_b64 s[{m+2*e}:{m+2*e+1}], s[{A.sTRI[e]}:{A.sTRI[e]+1}], {oth}\n"
    return L(out)
def mask_blk(b, kb, qb, inplace=False):
    return [I(f"v_cndmask_b32 v{Sreg(b, kb, qb) + e}, v{Sreg(b, kb, qb) + e if inplace else A.vNM + 4 * qb}, v{A.vNEG}, s[{A.sMK + 8*kb + 2*e}:{A.sMK + 8*kb + 2*e + 1}]") for e in range(4)]

def put_groups(g, groups, lo, hi):
    k = lo - 1
    link([i for grp in groups for i in grp])
    lock = g.__dict__.setdefault("lock", set())
    for n, grp in enumerate(groups):
        k = max(k, lo + n * (hi - lo) // len(groups) - 1)
        for i in grp:
            if i.slots()[0] == 0:
                q = k + 1
                while q < g.n - 1 and (not g.room_s(q) or (writes_scc(i) and q in lock)): q += 1
                if q < g.n - 1: g.put_s(q, i); k = q
                else: k = g.n - 1; g.put(k, i)
            else: k = g.fit(g.vm_slot(min(k + 1, g.n - 1), i, 5), i)
    return k
def put_check(g, c, k):
    if k <= g.n - len(c) - 2:
        k = max(k + 1, g.n - len(c) - 3)
        for i in c[:-1]:
            k = g.fit(k, i, lim=g.n - 2) + (0 if i is c[0] and len(c) > 3 else 1) if i.slots()[0] else g.fit_s(k + 1, i, lim=g.n - 2)
        g.put_s(g.n - 1, c[-1])
    else:
        for i in c: g.put(g.n - 1, i)
def scal_fit(g, ins, k=1):
    import kvq
    k, left = kvq.seq_fit(g, list(ins), k); assert not left
    return k
def win_qk(b, slowlabel, retlabel, extra=(), masked=False, groups=(), head=(), glo=2, ghi=58, scal=(), dma=None, sm=None, lo_check=False, tags=(), vq=None, post=(), dhi=None):
    g = Gaps(qk_mfmas(1 - b, "mask" if masked else "nm"))
    wide = len(groups) >= 4
    weave_reads(g, KSLOT[1 - b], VSLOT[b], [("T", VSLOT[b])] + list(tags), int(wide))
    for e in extra: g.fit(0, e)
    hk = -1
    for e in head:
        if e.kind != 'label': hk += 1
        g.put_s(hk, e)
    if masked:
        g.pre = mask_blk(1 - b, 0, 0)
        for kb in range(1, 4):
            k = 16 * kb - 16
            for i in mask_blk(1 - b, kb, 0):
                while g.used(k) != 1 and k < 16 * kb - 5: k += 1
                k = g.fit(k, i)
            assert k <= 16 * kb - 2, (kb, k)
    if wide: weave_both(g, dma or (VSLOT[1 - b], A.sV, []), hk + 2, dhi or 50, groups, glo, ghi)
    else: weave_dma(g, *(dma or (VSLOT[1 - b], A.sV, [])), lo=hk + 2, hi=dhi or 45)
    k = 49
    for i in post: k = g.fit(k, i)
    if scal: scal_fit(g, scal)
    if groups and not wide: put_groups(g, groups, glo, ghi)
    k = (sm or SM(half_groups(b, 1))).run(g, 0, 56)
    put_check(g, check(b, slowlabel, lo_check), k)
    if vq: vq.run(g, 0, 0, 62)
    return g.flat() + [I(retlabel + ":")]
def win_pv(b, tail=(), chk=None, post=(), groups=(), tags=(), scal=(), ghi=32, glo=2, cz=False, sm=None, nslot=None, nodma=False, pre_dma=None, dlo=1, post_dma=None, vq=None, vq_first=None, end=(), valu=(), vlo=0):
    g = Gaps(pv_mfmas(b, cz))
    nslot = KSLOT[b] if nslot is None else nslot
    wide = len(groups) >= 4 or pre_dma is not None or post_dma is not None
    weave_reads(g, VSLOT[b], nslot, [("T", nslot)] + list(tags), int(wide))
    if scal and len(scal) < 8: scal_fit(g, scal); scal = ()
    if wide:
        k = 49
        for i in post: k = g.fit(k, i)
        post = ()
        if post_dma:
            import q2
            kd = dma_flat(KSLOT[1 - b], A.sK)
            q2.place_vm(g, [(kd + list(post_dma), 1, 62)])
            scal_fit(g, adv_k(), max(q for q in range(g.n) if kd[-1] in g.ve[q]))
        elif pre_dma:
            import q2
            scal_fit(g, adv_k(), q2.place_vm(g, [(dma_flat(*pre_dma) + dma_flat(KSLOT[1 - b], A.sK), 1, 48)])[0])
        else: weave_both(g, (None, 0, []) if nodma else (KSLOT[1 - b], A.sK, adv_k()), dlo, 44 if dlo == 1 else 45, groups, glo, ghi); groups = ()
    else: assert weave_dma(g, KSLOT[1 - b], A.sK, adv_k(), hi=36) <= 53
    if chk:
        g.put(50, chk[0]); g.put_s(53, chk[1]); g.put_s(53, chk[2])
        ck = 53
        for i in chk[3:]:
            if i.kind != 'label': ck += 1
            g.put_s(ck, i)
        assert ck < 60
    k = 49
    for i in post: k = g.fit(k, i)
    if groups: put_groups(g, groups, glo, ghi)
    for q in range(g.n):
        for i in g.ve[q]:
            if i.kind == "vst": assert not any(set(i.reads) & set(g.m[x].writes) for x in range(q + 1)), (q, i.text)
    ks = scal_fit(g, scal) if scal else 0
    if cz and BPV['on']:
        est = []
        for qb in range(2):
            o, r = Oreg(0, qb), A.vX + 4 * qb
            est += L(f"v_max3_f32 v{r}, |v{o}|, |v{o+1}|, |v{o+2}|\nv_max_f32 v{r}, |v{o+3}|, v{r}\nv_mul_f32 v{r}, {hex(f2u(BPV['k']))}, v{r}") + [I(f"v_mov_b32 v{r + e}, v{r}") for e in (1, 2, 3)]
        spread_any(g, est[:6], 5, 4 * BPV['db'] - 5); spread_any(g, est[6:], 4 * BPV['db'] - 5, 4 * BPV['db'])
        for qb in range(2): g.fit(4 * BPV['db'] + 2, I(f"v_accvgpr_write_b32 a{aOF + qb}, v{A.vX + 4 * qb}"))
    if vq_first: vq_first(g)
    if valu: fill_valu(g, list(valu), max(vlo, ks + 1), 62)
    k = (sm or SM(half_groups(1 - b, 0), add_l(b))).run(g, 0, 59 if not end else 56)
    if end: put_check(g, end, k)
    if vq: vq.run(g, 0, 0, 62)
    for n, ins in enumerate(tail): g.put_s(64 - len(tail) + n - (1 if n < len(tail) - 1 else 0), ins)
    return g.flat()

def zero_O_mfma(ins, z):
    out = []; step = max(len(ins) // 9, 1); n = 0
    for k, i in enumerate(ins):
        out.append(i)
        if k % step == step - 1 and n < 8:
            out.append(I(f"v_mfma_f32_32x32x16_bf16 v[{A.vO + 16*n}:{A.vO + 16*n + 15}], v[{z}:{z+3}], v[{z}:{z+3}], 0")); n += 1
    assert n == 8
    return out
def of_rd(v): return [I(f"v_accvgpr_read_b32 v{v + q}, a{aOF + q}") for q in range(2)] if BPV['on'] else []
def cvt_ctx(ks, qb, vo=A.vX + 4):
    a, c = Oreg(2 * ks, qb), Oreg(2 * ks + 1, qb)
    return [I(f"v_sub_f32 v{r + e}, v{r + e}, v{vo + qb}") for r in (a, c) for e in range(4) if BPV['on'] and 2 * ks >= BPV['db']] + L(f"""v_cvt_pk_bf16_f32 v{a}, v{a}, v{a+1}
    v_cvt_pk_bf16_f32 v{a+1}, v{a+2}, v{a+3}
    v_cvt_pk_bf16_f32 v{a+2}, v{c}, v{c+1}
    v_cvt_pk_bf16_f32 v{a+3}, v{c+2}, v{c+3}""")

def mix(valu, mem, lo=0, hi=None):
    hi = len(valu) if hi is None else hi
    link(valu); link(mem)
    groups = []; cur = []
    for i in mem:
        cur.append(i)
        if i.slots()[0]: groups.append(cur); cur = []
    tail = cur
    out = []; n = 0
    for k, i in enumerate(valu):
        while n < len(groups) and k >= lo + n * (hi - lo) // len(groups):
            g_ = groups[n]; n += 1
            if len(g_) > 1 and out and out[-1].kind in ("valu", "trans"):
                last = out.pop(); out += g_[:-1] + [last, g_[-1]]
            else: out += g_
            if n == len(groups): out += tail
        out.append(i)
    assert n == len(groups)
    return out

def q_from_lds():
    pre = L(f"""
    s_lshl_b32 s64, s{A.sWAVE}, 13
    s_sub_u32 s65, {131072 + 3 * 8192}, s64
    v_add_u32 v{A.vX}, s64, v{A.vL16}
    v_add_u32 v{A.vX + 1}, s65, v{A.vL16}
    """)
    return pre + [I(f"ds_read_b128 a[{Qreg(qb, ks)}:{Qreg(qb, ks) + 3}], v{A.vX + qb} offset:{ks * 1024}") for qb in range(2) for ks in range(8)]
```

```python
from common import *
import side
from side import sWAVE, sH, sJ, WS, OOB, FOP_LOAD, poll_flags
RS = [dict(row=10, off=12, g=15, x=16, b=32, acc=48, nu=2, col=(75, 76)), dict(row=29, off=28, g=26, x=96, b=80, acc=64, nu=1, col=(86,))]
RV = dict(row=10, off=12, g=15, x=16, b=32, acc=48, nu=1, col=(86,))
WI = 0
def fop(vl16, t, sE, sL):
    return L(f"""
    s_sub_u32 s64, 15, s{sJ}
    s_min_u32 s64, s64, s{sJ}
    s_mul_i32 s{sE}, s64, {2 * FSTR}
    s_lshl_b32 s64, s{sWAVE}, 6
    s_add_u32 s64, s64, s{sH}
    s_lshl2_add_u32 s{sE}, s64, s{sE}
    s_add_u32 s{sE}, s{sE}, {WS_FOP}
    s_movk_i32 s65, 1024
    s_cmp_lt_u32 s{sJ}, 8
    s_cselect_b32 s64, {FSTR}, s65
    s_cselect_b32 s65, 0, 64
    s_cselect_b32 s66, 32, 64
    s_add_u32 s{sL}, s{sE}, s64
    s_add_u32 s{sE}, s{sE}, s65
    v_lshrrev_b32 v{t + 2}, 5, v{vl16}
    v_mul_u32_u24 v{t + 2}, {FSTR}, v{t + 2}
    v_and_b32 v{t + 1}, 16, v{vl16}
    v_lshl_add_u32 v{t + 1}, v{t + 1}, 3, v{t + 2}
    v_mov_b32 v{t + 2}, {OOB}
    v_cmp_gt_u32 vcc, s66, v{vl16}
    v_mov_b32 v{t}, 1
    s_nop 0
    v_cndmask_b32 v{t + 1}, v{t + 2}, v{t + 1}, vcc
    """)
def rows(r):
    o = f"""
    v_mul_u32_u24 v{r['off']}, 896, v{r['row']}
    v_lshl_add_u32 v{r['off']}, v11, 4, v{r['off']}
    v_lshrrev_b32 v13, 4, v{r['row']}
    v_lshlrev_b32 v13, 5, v13
    v_and_b32 v104, 15, v{r['row']}
    v_add_lshl_u32 v13, v13, v104, 2
    buffer_load_dword v{r['g']}, v13, {WS}, s64 offen sc1
    """
    for u in range(r['nu']): o += f"buffer_load_dwordx4 v[{r['x'] + 4*u}:{r['x'] + 4*u + 3}], v{r['off']}, s[56:59], s{r['col'][u]} offen\n"
    return L(o)
def head(V):
    pair = f"s_sub_u32 s64, 15, s{sJ}\ns_lshl_b32 s64, s64, 1" if V else f"s_lshl_b32 s64, s{sJ}, 1"
    out = L(f"""
    {pair}
    s_lshr_b32 s65, s{sH}, 3
    s_add_u32 s46, s64, s65
    s_mul_i32 s46, s46, {FSTR}
    s_and_b32 s72, s{sH}, 7
    s_lshl_b32 s66, s72, 7
    s_add_u32 s46, s46, s66
    s_add_u32 s46, s46, {WS_FOP + (1024 if V else 0)}
    v_and_b32 v14, {15 if V else 31}, v0
    v_lshlrev_b32 v14, 2, v14
    {FOP_LOAD}
    s_mul_i32 s86, s65, {3 if V else 4}
    s_add_u32 s86, s86, s{sWAVE}
    {'s_add_u32 s86, s86, 8' if V else ''}
    s_mul_i32 s77, s{sJ}, {16 * OP_HEAD}
    s_mul_i32 s78, s72, 14336
    s_add_u32 s77, s77, s78
    s_add_u32 s77, s77, {WS_OP}
    """) + (L(f"""
    s_lshl_b32 s78, s86, 10
    s_add_u32 s77, s77, s78
    """) if V else L(f"""
    s_sub_u32 s64, 15, s64
    s_sub_u32 s78, s64, 1
    s_mul_i32 s78, s78, {16 * OP_HEAD}
    s_add_u32 s78, s78, s77
    s_lshl_b32 s66, s86, 10
    s_add_u32 s78, s78, s66
    {f's_or_b32 s78, s78, {OOB}' if WI == 3 else ''}
    s_lshl_b32 s66, s74, 10
    s_add_u32 s77, s77, s66
    {f's_lshr_b32 s87, s{sH}, 3' + chr(10) + 's_sub_u32 s87, s87, 1' + chr(10) + f's_and_b32 s87, s87, {OOB}' + chr(10) + 's_or_b32 s77, s77, s87' if WI == 1 else f's_or_b32 s77, s77, {OOB}' if WI == 2 else ''}
    s_lshl_b32 s66, s64, 7
    """)) + L(f"""
    s_lshl_b32 s86, s86, 6
    {side.ROWMAP}
    s_lshl_b32 s65, s{sJ}, 7
    s_add_u32 s73, s73, s65
    v_and_b32 v10, 15, v0
    v_add_u32 v10, s73, v10
    {'' if V else 'v_add_u32 v29, s66, v10'}
    s_mov_b32 s64, {WS_RG + 64}
    """)
    for r in ([RV] if V else RS): out += rows(r) + [I(f"v_mov_b32 v{r['acc'] + n}, 0") for n in range(8 * r['nu'])]
    return out
def base_term(r, tag):
    n = r['nu']
    return [i for w in range(4 * n) for i in L(f"v_lshlrev_b32 v{r['b']+2*w}, 16, v{r['x']+w}\nv_and_b32 v{r['b']+1+2*w}, 0xffff0000, v{r['x']+w}")] + L(f"""
    v_sub_f32 v13, 1.0, v{r['g']}
    v_cmp_eq_u32 s[80:81], s84, v{r['row']}
    v_cmp_eq_u32 s[82:83], s85, v{r['row']}
    s_or_b64 vcc, s[80:81], s[82:83]
    s_cbranch_vccnz L_moe{tag}
    L_moe_ret{tag}:
    """) + [I(f"v_mul_f32 v{r['b']+e}, v13, v{r['b']+e}") for e in range(8 * n)]
def fin(r, note=""):
    o = []
    for u in range(r['nu']):
        if side.SWAP: o += [I("s_nop 2")] + [I(f"v_permlane16_swap_b32 v{r['acc']+8*u+e}, v{r['acc']+8*u+4+e}") for e in range(4)]
        o += [I(f"v_fmac_f32 v{r['b']+8*u+e}, v{r['g']}, v{r['acc']+8*u+e}") for e in range(8)]
        o += [I(f"v_cvt_pk_bf16_f32 v{r['x']+4*u+w}, v{r['b']+8*u+2*w}, v{r['b']+1+8*u+2*w}") for w in range(4)]
        o.append(I(f"buffer_store_dwordx4 v[{r['x']+4*u}:{r['x']+3+4*u}], v{r['off']}, s[52:55], s{r['col'][u]} offen {side.OSF}{note}"))
    return o
def dots(r, src): return [i for w in range(4 * r['nu']) for i in L(f"v_dot2c_f32_bf16 v{r['acc']+2*w}, v{src+w}, v24\nv_dot2c_f32_bf16 v{r['acc']+1+2*w}, v{src+w}, v25")]
START = f"v_cmp_eq_u32 vcc, 1, v9\ns_mov_b32 s91, {SPIN_MAX}\ns_mov_b32 s69, 0\n"
def main_v(vl16, st, lag, sent=False):
    out = L(START + "s_and_b32 s70, vcc_lo, 0xffff\ns_or_b32 s68, s70, 0xffff0000")
    adr = [12, 13, 14, 15, 16, 17, 18, 19, 21, 22, 23, 24, 48, 49, 50, 51]; far = []
    for k in range(16 + lag):
        if k < 16:
            out += L(f"""s_cmp_lg_u32 s70, 0
            s_cbranch_scc1 L_vk{k}
            s_call_b64 s[36:37], L_rpoll
            L_vk{k}:
            s_ff1_i32_b32 s71, s70
            s_bitset0_b32 s70, s71
            s_mul_i32 s71, s71, {OP_HEAD}
            s_add_u32 s{adr[k]}, s71, s77
            buffer_load_dwordx4 v[{128+4*k}:{131+4*k}], v{vl16}, {WS}, s{adr[k]} offen sc1""")
        if k == 1: out += base_term(RV, 2)
        if k == 15: out += st()
        if k >= lag:
            kk = k - lag; r = 128 + 4 * kk
            out += [NEED(R("v", r, 4))]
            if sent:
                tst = f"v_max3_u32 v13, v{r}, v{r+1}, v{r+2}\nv_max_u32 v13, v13, v{r+3}\nv_cmp_eq_u32 vcc, -1, v13"
                out += L(tst + f"\ns_cbranch_vccnz L_vz{kk}\nL_vw{kk}:")
                far += L(f"""L_vz{kk}:
                buffer_load_dwordx4 v[{r}:{r+3}], v{vl16}, {WS}, s{adr[kk]} offen sc1
                s_waitcnt vmcnt(0)
                {tst}
                s_sub_u32 s91, s91, 1
                s_cbranch_scc1 L_vw{kk}
                s_cbranch_vccnz L_vz{kk}
                s_branch L_vw{kk}""")
            out += dots(RV, r)
    return out + st() + L("s_nop 1") + fin(RV), far
def main_k(vl16, st, lag):
    out = L(START + "s_mov_b32 s70, vcc_lo\ns_mov_b32 s68, vcc_lo")
    far = []
    for k in range(32 + lag):
        if k < 32:
            r = 128 + 8 * (k % 16)
            out += L(f"""s_cmp_lg_u32 s70, 0
            s_cbranch_scc1 L_rk{k}
            s_call_b64 s[36:37], L_rpoll
            L_rk{k}:
            s_ff1_i32_b32 s71, s70
            s_bitset0_b32 s70, s71
            s_cmp_ge_u32 s71, 16
            s_cselect_b32 s72, s78, s77
            s_cselect_b32 s73, {hex(1 << k)}, 0
            s_cselect_b32 s87, {OOB}, 0
            s_mul_i32 s71, s71, {OP_HEAD}
            s_add_u32 s71, s71, s72
            buffer_load_dwordx4 v[{r}:{r+3}], v{vl16}, {WS}, s71 offen sc1
            s_or_b32 s69, s69, s73
            s_or_b32 s71, s71, s87
            buffer_load_dwordx4 v[{r+4}:{r+7}], v27, {WS}, s71 offen sc1""")
        if k in (1, 2): out += base_term(RS[k - 1], k - 1)
        if k == 31: out += st()
        if k >= lag:
            kk = k - lag; r = 128 + 8 * (kk % 16); f = 0 if kk < 16 else 1
            out += [NEED(R("v", r, 8))] + L(f"s_bitcmp{1 - f}_b32 s69, {kk}\ns_cbranch_scc1 L_rx{kk}") + dots(RS[f], r) + L(f"L_ry{kk}:")
            far += L(f"L_rx{kk}:") + dots(RS[1 - f], r) + L(f"s_branch L_ry{kk}")
        if k == 27:
            out += L(f"""s_and_b32 s71, s69, {hex((1 << (k - lag + 1)) - 1)}
            s_bcnt1_i32_b32 s71, s71
            s_cmp_eq_u32 s71, {k - lag + 1 - 16}
            s_cselect_b32 s66, 1, 0
            s_cbranch_scc0 L_rne""") + fin(RS[0], " ; nocount") + L("L_rne:")
    out += st() + L("s_nop 1") + fin(RS[1]) + L("s_cmp_eq_u32 s66, 1\ns_cbranch_scc1 L_rdone") + fin(RS[0]) + L("L_rdone:")
    return out, far
def moe():
    out = []
    for tag, r in ((0, RS[0]), (1, RS[1]), (2, RV)):
        out += L(f"L_moe{tag}:\ns_lshl_b32 s88, s{r['col'][0]}, 1\ns_call_b64 s[36:37], L_moe")
        out += [I(f"v_add_f32 v{r['b']+e}, v{108+e}, v{r['b']+e}") for e in range(8 * r['nu'])] + L(f"s_mov_b64 exec, -1\ns_branch L_moe_ret{tag}")
    return out + L(f"""
    L_moe:
    v_min_u32 v104, 27, v0
    v_lshlrev_b32 v104, 2, v104
    s_mov_b32 s64, {WS_FH + 512}
    """) + poll_flags(64, 64, "L_pfy", 105, 104, 65) + L(f"""
    s_or_b64 exec, s[80:81], s[82:83]
    v_mov_b32 v104, 1792
    v_cndmask_b32 v104, v104, 0, s[80:81]
    v_lshl_add_u32 v104, v11, 5, v104
    s_add_u32 s88, s88, {WS_YF}
    buffer_load_dwordx4 v[108:111], v104, {WS}, s88 offen sc1
    buffer_load_dwordx4 v[112:115], v104, {WS}, s88 offen offset:16 sc1
    buffer_load_dwordx4 v[116:119], v104, {WS}, s88 offen offset:512 sc1
    buffer_load_dwordx4 v[120:123], v104, {WS}, s88 offen offset:528 sc1
    s_waitcnt vmcnt(0)
    s_setpc_b64 s[36:37]
    """)
```

```python
from common import *
S_WS, S_DBG = 8, 12
sWAVE, sH, sJ = 20, 41, 42
WS = f"s[{S_WS}:{S_WS+3}]"
OOB = 0x20000000

def wave_sum(regs, tmps):
    out = []
    for sh in ("row_ror:8", "row_ror:4", "row_ror:2", "row_ror:1"):
        for r in regs: out.append(I(f"v_add_f32 v{r}, v{r}, v{r} {sh} row_mask:0xf bank_mask:0xf"))
    for sw in ("v_permlane16_swap_b32", "v_permlane32_swap_b32"):
        for r, t in zip(regs, tmps): out.append(I(f"v_mov_b32 v{t}, v{r}"))
        for r, t in zip(regs, tmps): out.append(I(f"{sw} v{t}, v{r}"))
        for r, t in zip(regs, tmps): out.append(I(f"v_add_f32 v{r}, v{t}, v{r}"))
    return out

def sigmoid(r, t):
    return L(f"""v_mul_f32 v{t}, 0xbfb8aa3b, v{r}
    v_exp_f32 v{t}, v{t}
    v_add_f32 v{t}, 1.0, v{t}
    v_rcp_f32 v{r}, v{t}""")

RNT = 'nt'
def r_loads(zero=True):
    return L(f"""
    s_lshl_b32 s64, s2, 2
    s_add_u32 s64, s64, s{sWAVE}
    s_mul_i32 s72, s64, 1792
    """) + [I(f"v_mov_b32 v{40+r}, 0") for r in range(16 if zero else 0)] + L(f"""
    s_mov_b32 exec_hi, 0x00ffffff
    buffer_load_dwordx4 v[40:43], v7, s[56:59], s72 offen {RNT}
    buffer_load_dwordx4 v[44:47], v7, s[56:59], s72 offen offset:896 {RNT}
    buffer_load_dwordx4 v[48:51], v7, s[60:63], 0 offen
    buffer_load_dwordx4 v[52:55], v7, s[68:71], 0 offen
    s_mov_b64 exec, -1
    """)
def r_compute():
    out = [I(f"v_mov_b32 v{56+r}, 0") for r in range(4)]
    for w in range(4):
        for n, (xr, wr) in enumerate(((40, 48), (44, 48), (40, 52), (44, 52))):
            out.append(I(f"v_dot2c_f32_bf16 v{56+n}, v{xr+w}, v{wr+w}"))
    out += wave_sum([56, 57, 58, 59], [60, 61, 62, 63])
    out += L(f"""
    v_cmp_eq_u32 vcc, 0, v0
    v_cndmask_b32 v56, v57, v56, vcc
    v_cndmask_b32 v58, v59, v58, vcc
    s_lshl_b32 s64, s2, 3
    s_lshl_b32 s72, s{sWAVE}, 1
    s_add_u32 s64, s64, s72
    v_add_u32 v60, s64, v0
    v_ashrrev_i32 v61, 31, v56
    v_or_b32 v61, 0x80000000, v61
    v_xor_b32 v61, v61, v56
    v_and_b32 v61, 0xfffff800, v61
    v_sub_u32 v62, 2047, v60
    v_or_b32 v61, v61, v62
    v_max_u32 v61, 1, v61
    """) + sigmoid(58, 59) + L(f"""
    s_lshl_b32 s72, s{sWAVE}, 3
    s_add_u32 s72, s72, {LDS_R}
    v_lshl_add_u32 v60, v0, 2, s72
    s_mov_b64 exec, 3
    ds_write_b32 v60, v61
    ds_write_b32 v60, v56 offset:32
    ds_write_b32 v60, v58 offset:64
    s_mov_b64 exec, -1
    """)
    return out
def r_store(skip):
    return L(f"""
    s_cmp_lg_u32 s{sWAVE}, 0
    s_cbranch_scc1 {skip}
    v_lshlrev_b32 v28, 2, v0
    v_add_u32 v29, {LDS_R}, v28
    s_mov_b32 exec_hi, 0
    ds_read_b32 v29, v29 ; ignore
    s_lshl_b32 s72, s2, 7
    s_add_u32 s72, s72, {WS_R}
    s_waitcnt lgkmcnt(0) ; ignore
    buffer_store_dword v29, v28, {WS}, s72 offen sc1 ; nocount
    s_mov_b64 exec, -1
    s_cmp_ge_u32 s2, 13
    s_cbranch_scc1 {skip}
    v_mov_b32 v32, 0
    v_mov_b32 v33, 0
    v_mov_b32 v34, 0
    v_mov_b32 v35, 0
    s_lshl_b32 s72, s2, 10
    s_add_u32 s72, s72, {WS_FKV}
    buffer_store_dwordx4 v[32:35], v7, {WS}, s72 offen sc1 ; nocount
    {skip}:
    """)
def r_signal(skip):
    return L(f"""
    s_cmp_lg_u32 s{sWAVE}, 0
    s_cbranch_scc1 {skip}
    v_mov_b32 v28, 1
    s_mov_b64 exec, 1
    buffer_atomic_add v28, off, s[{S_DBG}:{S_DBG+3}], 0 sc1 ; nocount
    s_mov_b64 exec, -1
    {skip}:
    """)

def wo_dma():
    out = L(f"""
    v_lshrrev_b32 v28, 5, v0
    v_mul_u32_u24 v28, 896, v28
    v_and_b32 v29, 31, v0
    v_lshl_add_u32 v28, v29, 4, v28
    s_lshr_b32 s64, s{sJ}, 1
    s_lshl_b32 s64, s64, 5
    s_lshl_b32 s72, s{sH}, 8
    s_add_u32 s64, s64, s72
    s_lshl_b32 s72, s{sWAVE}, 3
    s_add_u32 s64, s64, s72
    s_mul_i32 s64, s64, 896
    s_and_b32 s72, s{sJ}, 1
    s_mul_i32 s72, s72, 448
    s_add_u32 s64, s64, s72
    s_lshl_b32 s72, s{sWAVE}, 12
    s_add_u32 m0, s72, 131072
    s_mov_b32 exec_lo, 0x0fffffff
    s_mov_b32 exec_hi, 0x0fffffff
    """)
    for j in range(4):
        out.append(I(f"buffer_load_dwordx4 v28, s[60:63], s64 offen offset:{1024*j} lds", tag="WO"))
        if j < 3: out.append(I(f"s_add_u32 s64, s64, {2*896 - 1024}"))
    out.append(I("s_mov_b64 exec, -1"))
    return out
def wo_setup():
    out = L(f"""
    v_and_b32 v28, 15, v0
    v_lshrrev_b32 v29, 4, v0
    v_lshrrev_b32 v30, 2, v28
    v_lshl_add_u32 v29, v29, 2, v30
    v_lshlrev_b32 v29, 9, v29
    v_and_b32 v28, 3, v28
    v_lshl_add_u32 v29, v28, 4, v29
    s_lshr_b32 s64, s{sWAVE}, 1
    s_lshl_b32 s64, s64, 6
    s_and_b32 s72, s{sWAVE}, 1
    s_lshl_b32 s72, s72, 3
    s_add_u32 s64, s64, s72
    s_add_u32 s64, s64, 131072
    v_add_u32 v31, s64, v29
    s_lshl_b32 s73, s{sH}, 18
    s_lshr_b32 s64, s{sJ}, 1
    s_lshl_b32 s64, s64, 10
    s_add_u32 s73, s73, s64
    s_add_u32 s73, s73, {WS_WO}
    s_and_b32 s74, s{sJ}, 1
    s_mul_i32 s74, s74, 14
    s_add_u32 s74, s74, s{sWAVE}
    """)
    for n in range(4):
        out += L(f"""
        s_add_u32 s64, s74, {4*n}
        s_lshr_b32 s72, s64, 2
        s_lshl_b32 s72, s72, 15
        s_and_b32 s64, s64, 3
        s_lshl_b32 s64, s64, 13
        s_add_u32 s72, s73, s72
        s_add_u32 s{76+n}, s72, s64
        """)
    out += L(f"""
    s_cmp_lt_u32 s{sWAVE}, 2
    s_cselect_b64 s[74:75], -1, 0
    """)
    return out
def wo_reads():
    return [I(f"ds_read_b64_tr_b16 a[{192+4*n+2*j}:{193+4*n+2*j}], v31 offset:{n*128 + j*8192}") for n in range(4) for j in range(2)]
def wo_stores():
    st = [[I(f"buffer_store_dwordx4 a[{176+4*n}:{179+4*n}], v7, {WS}, s{76+n} offen sc1" + (" ; nocount" if n == 3 else ""))] for n in range(4)]
    st[3] = [I("s_mov_b64 exec, s[74:75]")] + st[3] + [I("s_mov_b64 exec, -1")]
    return st

def set_flag(addr_sreg, skip, vt):
    return L(f"""
    s_cmp_lg_u32 s{sWAVE}, 0
    s_cbranch_scc1 {skip}
    v_mov_b32 v{vt}, 1
    s_mov_b64 exec, 1
    buffer_store_dword v{vt}, off, {WS}, s{addr_sreg} sc1 ; nocount
    s_mov_b64 exec, -1
    {skip}:
    """)
def poll_flags(addr_sreg, nl, label, vt, va, sc):
    return L(f"""
    s_mov_b32 s{sc}, {SPIN_MAX}
    s_mov_b32 exec_lo, {hex(((1 << nl) - 1) & 0xffffffff)}
    s_mov_b32 exec_hi, {hex(((1 << nl) - 1) >> 32)}
    {label}:
    buffer_load_dword v{vt}, v{va}, {WS}, s{addr_sreg} offen sc1
    s_sub_u32 s{sc}, s{sc}, 1
    s_cbranch_scc1 {label}_x
    s_waitcnt vmcnt(0)
    v_cmp_ne_u32 vcc, 1, v{vt}
    s_cbranch_vccz {label}_x
    s_sleep 2
    s_branch {label}
    {label}_x:
    s_waitcnt vmcnt(0)
    s_mov_b64 exec, -1
    """)
def poll_count(label, vt, sc, n):
    return L(f"""
    s_mov_b32 s{sc}, {SPIN_MAX}
    {label}:
    buffer_load_dword v{vt}, off, s[{S_DBG}:{S_DBG+3}], 0 sc1
    s_sub_u32 s{sc}, s{sc}, 1
    s_cbranch_scc1 {label}_x
    s_waitcnt vmcnt(0)
    v_cmp_gt_u32 vcc, {n}, v{vt}
    s_cbranch_vccnz {label}
    {label}_x:
    s_waitcnt vmcnt(0)
    """)

def h_keys(vl16):
    return [I(f"buffer_load_dwordx4 v[{64+4*n}:{67+4*n}], v{vl16}, {WS}, s{90 + n // 4} offen offset:{(n & 3) * 1024} sc1") for n in range(8)]
def h_keymin():
    out = L("v_min3_u32 v14, v64, v65, v66")
    for n in range(3, 31, 2): out += L(f"v_min3_u32 v14, v14, v{64+n}, v{65+n}")
    return out + L("v_min_u32 v14, v14, v95\nv_cmp_eq_u32 vcc, 0, v14")
def h_stub(vl16):
    return (L(f"L_hs:\ns_mov_b32 s64, {SPIN_MAX}\nL_hs_l:") + h_keys(vl16) + L("s_waitcnt vmcnt(0)\ns_sub_u32 s64, s64, 1\ns_cbranch_scc1 L_hr") +
            h_keymin() + L("s_cbranch_vccnz L_hs_l\ns_branch L_hr"))
def h_block(vl16, lds=65536, after=()):
    out = L(f"""
    s_load_dwordx4 s[64:67], s[0:1], {A_WG}
    s_load_dwordx2 s[72:73], s[0:1], {A_WD}
    s_load_dwordx2 s[74:75], s[0:1], {A_X}
    s_and_b32 s76, s{sH}, 7
    s_mul_i32 s76, s76, 14
    s_lshr_b32 s77, s{sH}, 3
    s_mul_i32 s77, s77, 7
    s_add_u32 s76, s76, s77
    s_add_u32 s76, s76, s{sJ}
    s_mov_b32 s90, {WS_KEY}
    s_mov_b32 s91, {WS_KEY + 4096}
    """)
    out += h_keys(vl16)
    out += L(f"""
    {srd(52, 64, 448*3584)}
    {srd(56, 66, 448*3584)}
    {srd(60, 72, 1792*896)}
    {srd(68, 74, 2048*896)}
    v_lshrrev_b32 v10, 1, v0
    v_mul_u32_u24 v10, 3584, v10
    v_and_b32 v11, 1, v0
    v_lshl_add_u32 v10, v11, 4, v10
    s_lshl_b32 s77, s76, 5
    s_and_b32 s78, s{sWAVE}, 1
    s_mul_i32 s79, s78, {7 * 32 * 3584}
    s_add_u32 s77, s77, s79
    s_mul_i32 s79, s{sWAVE}, 7168
    s_add_u32 s79, s79, {lds}
    s_cmp_lt_u32 s{sWAVE}, 2
    s_cselect_b32 s52, s52, s56
    s_cselect_b32 s53, s53, s57
    """)
    for n in range(7):
        out += L(f"""s_add_u32 m0, s79, {n * 1024}
        s_nop 0""") + [I(f"buffer_load_dwordx4 v10, s[52:55], s77 offen lds", tag="HW")] + L(f"s_add_u32 s77, s77, {32 * 3584}")
    out += L(f"""
    v_lshlrev_b32 v11, 2, v0
    s_mul_i32 s77, s76, {16 * 896}
    s_mul_i32 s78, s{sWAVE}, 224
    s_add_u32 s77, s77, s78
    s_mov_b32 exec_hi, 0x00ffffff
    """)
    for f in range(16):
        if f and f % 4 == 0: out.append(I(f"s_add_u32 s77, s77, {4 * 896}"))
        out.append(I(f"buffer_load_dword v{100+f}, v11, s[60:63], s77 offen offset:{(f & 3) * 896}"))
    out.append(I("s_mov_b64 exec, -1"))
    out += h_keymin() + L("s_cbranch_vccnz L_hs\nL_hr:")
    out += L("v_max_u32 v12, v64, v65\nv_min_u32 v13, v64, v65")
    for n in range(2, 32):
        out += L(f"v_med3_u32 v13, v12, v13, v{64+n}\nv_max_u32 v12, v12, v{64+n}")
    def merge():
        return L("""v_min_u32 v16, v12, v14
        v_max_u32 v12, v12, v14
        v_max3_u32 v13, v13, v15, v16""")
    for sh in ("row_ror:8", "row_ror:4", "row_ror:2", "row_ror:1"):
        out += L(f"""v_mov_b32 v14, v12 {sh} row_mask:0xf bank_mask:0xf
        v_mov_b32 v15, v13 {sh} row_mask:0xf bank_mask:0xf""") + merge()
    for sw in ("v_permlane16_swap_b32", "v_permlane32_swap_b32"):
        out += L(f"""v_mov_b32 v14, v12
        v_mov_b32 v15, v13
        {sw} v14, v12
        {sw} v15, v13""") + merge()
    out += L(f"""
    v_and_b32 v12, 0x7ff, v12
    v_and_b32 v13, 0x7ff, v13
    v_sub_u32 v12, 2047, v12
    v_sub_u32 v13, 2047, v13
    v_and_b32 v14, 1, v0
    v_cmp_eq_u32 vcc, 0, v14
    v_cndmask_b32 v14, v13, v12, vcc
    v_lshrrev_b32 v17, 3, v14
    v_lshlrev_b32 v17, 4, v17
    v_and_b32 v15, 7, v14
    v_add_lshl_u32 v17, v17, v15, 2
    s_mov_b32 s77, {WS_RG}
    buffer_load_dword v18, v17, {WS}, s77 offen sc1
    v_mul_u32_u24 v15, 896, v14
    v_lshrrev_b32 v16, 4, v0
    v_lshl_add_u32 v15, v16, 4, v15
    """)
    for ks in range(14):
        out.append(I(f"buffer_load_dwordx4 v[{128+4*ks}:{131+4*ks}], v15, s[68:71], 0 offen offset:{64*ks}"))
    out += L(f"""
    v_and_b32 v19, 15, v0
    v_lshrrev_b32 v19, 2, v19
    v_lshl_add_u32 v19, v16, 3, v19
    v_lshlrev_b32 v19, 5, v19
    v_and_b32 v20, 3, v0
    v_lshl_add_u32 v19, v20, 3, v19
    v_add_u32 v19, {lds}, v19
    """) + [WAITV(["HW", "KVST"]), I("s_barrier")] + list(after)
    for mt in range(2):
        for ks in range(14):
            for j in range(2):
                r = mt * 56 + ks * 4 + 2 * j
                out.append(I(f"ds_read_b64_tr_b16 a[{r}:{r+1}], v19 offset:{mt * 14336 + ks * 1024 + j * 128}"))
    for mt in range(2):
        for ks in range(14):
            d = R("v", 24 + 4 * mt, 4)
            out.append(mfma(d, R("v", 128 + 4 * ks, 4), R("a", mt * 56 + ks * 4, 4), d if ks else "0"))
    out += L("""
    v_cvt_pk_bf16_f32 v24, v24, v25
    v_cvt_pk_bf16_f32 v28, v28, v29
    v_lshlrev_b32 v20, 16, v24
    v_and_b32 v21, 0xffff0000, v24
    v_mov_b32 v22, v20
    v_mov_b32 v23, v21
    """) + sigmoid(22, 26) + sigmoid(23, 27) + L("""
    v_mul_f32 v20, v20, v22
    v_mul_f32 v21, v21, v23
    v_cvt_pk_bf16_f32 v24, v20, v21
    v_lshlrev_b32 v20, 16, v24
    v_and_b32 v21, 0xffff0000, v24
    v_lshlrev_b32 v22, 16, v28
    v_and_b32 v23, 0xffff0000, v28
    v_mul_f32 v20, v20, v22
    v_mul_f32 v21, v21, v23
    v_cvt_pk_bf16_f32 v24, v20, v21
    v_lshlrev_b32 v20, 16, v24
    v_and_b32 v21, 0xffff0000, v24
    """)
    out += [I(f"v_mov_b32 v{32+n}, 0") for n in range(4)]
    for f in range(16):
        out += L(f"""v_readlane_b32 s80, v20, {f}
        v_readlane_b32 s81, v21, {f}
        v_lshlrev_b32 v22, 16, v{100+f}
        v_and_b32 v23, 0xffff0000, v{100+f}
        v_fmac_f32 v32, s80, v22
        v_fmac_f32 v33, s80, v23
        v_fmac_f32 v34, s81, v22
        v_fmac_f32 v35, s81, v23""")
    out += L(f"""
    s_mul_i32 s77, s{sWAVE}, 448
    s_mul_i32 s78, s76, 3584
    s_add_u32 s77, s77, s78
    s_add_u32 s77, s77, {WS_Y}
    v_lshlrev_b32 v22, 3, v0
    s_mov_b32 exec_hi, 0x00ffffff
    buffer_store_dwordx2 v[32:33], v22, {WS}, s77 offen sc1
    buffer_store_dwordx2 v[34:35], v22, {WS}, s77 offen offset:1792 sc1
    s_mov_b64 exec, -1
    v_cvt_pk_bf16_f32 v18, v18, v18
    v_and_b32 v18, 0xffff0000, v18
    """) + sigmoid(18, 22) + L(f"""
    v_cvt_pk_bf16_f32 v18, v18, v18
    v_and_b32 v18, 0xffff0000, v18
    s_mov_b32 s77, {WS_SEL}
    s_or_b32 s78, s76, s{sWAVE}
    s_cmp_eq_u32 s78, 0
    s_cselect_b64 exec, 3, 0
    buffer_store_dword v14, v11, {WS}, s77 offen sc1 ; nocount
    buffer_store_dword v18, v11, {WS}, s77 offen offset:8 sc1 ; nocount
    s_mov_b64 exec, -1
    s_lshl_b32 s39, s76, 2
    s_add_u32 s39, s39, {WS_FH}
    """)
    return out

FH0_LOAD = f"buffer_load_dword v24, off, {WS}, s79 sc1"
FOP_LOAD = f"buffer_load_dword v9, v14, {WS}, s46 offen sc1"
EPAR, NE = 0, 7
def sel_a(vl16):
    return L(f"""
    s_mov_b32 s79, {WS_FL}
    {FH0_LOAD}
    v_lshrrev_b32 v0, 4, v{vl16}
    v_and_b32 v14, 15, v0
    v_lshlrev_b32 v14, 2, v14
    v_lshrrev_b32 v11, 4, v0
    {GPERM}
    {srd(52, 96, 2048*896)}
    {f's_and_b32 s74, s{sH}, 1' if EPAR < 2 else f's_lshr_b32 s74, s{sH}, 3'}
    s_xor_b32 s74, s74, {EPAR & 1}
    s_mul_i32 s67, s74, {14 - 2 * NE}
    s_mul_i32 s74, s74, {NE}
    s_add_u32 s74, s74, s{sWAVE}
    s_lshl_b32 s75, s74, 6
    s_add_u32 s76, s75, 256
    s_add_u32 s67, s67, {NE - 5}
    s_sub_u32 s67, s67, s{sWAVE}
    s_and_b32 s67, s67, {OOB}
    s_or_b32 s76, s76, s67
    v_or_b32 v27, s67, v{vl16}
    v_add_u32 v27, 4096, v27
    """)
def sel_b(tag):
    return L(f"""
    v_cmp_gt_u32 vcc, {SELLV}, v24
    s_mov_b32 s65, {WS_SEL}
    s_cbranch_vccnz L_fhs{tag}
    L_fhr{tag}:
    buffer_load_dword v25, v14, {WS}, s65 offen sc1
    """)
def sel_c():
    return L("""
    v_readlane_b32 s84, v25, 0
    v_readlane_b32 s85, v25, 1
    v_mov_b32 v24, 0x3f80
    v_mov_b32 v25, 0x3f800000
    """)
RS = [dict(row=10, off=12, g=15, x=16, b=32, acc=48), dict(row=29, off=28, g=26, x=96, b=80, acc=64)]
OSF = ''
GPERM = ''
SWAP = False
WI = False
ROWMAP = 's_lshl_b32 s73, s72, 4'
SELLV = 4
def red_a(vl16):
    out = L(f"""
    s_lshl_b32 s64, s{sJ}, 1
    s_lshr_b32 s65, s{sH}, 3
    s_add_u32 s46, s64, s65
    s_mul_i32 s46, s46, {FSTR}
    s_and_b32 s65, s{sH}, 7
    s_lshl_b32 s65, s65, 7
    s_add_u32 s46, s46, s65
    s_add_u32 s46, s46, {WS_FOP}
    v_and_b32 v14, 31, v0
    v_lshlrev_b32 v14, 2, v14
    {FOP_LOAD}
    s_sub_u32 s64, 15, s64
    {f's_lshr_b32 s72, s{sH}, 1' if EPAR < 2 else f's_and_b32 s72, s{sH}, 7'}
    s_mul_i32 s77, s{sJ}, {16 * OP_HEAD}
    s_mul_i32 s78, s72, 14336
    s_add_u32 s77, s77, s78
    s_lshl_b32 s78, s74, 10
    s_add_u32 s77, s77, s78
    s_add_u32 s77, s77, {WS_OP}
    s_sub_u32 s78, s64, 1
    s_mul_i32 s78, s78, {16 * OP_HEAD}
    s_add_u32 s78, s78, s77
    {ROWMAP}
    s_lshl_b32 s65, s{sJ}, 7
    s_add_u32 s73, s73, s65
    s_lshl_b32 s64, s64, 7
    v_and_b32 v10, 15, v0
    v_add_u32 v10, s73, v10
    v_add_u32 v29, s64, v10
    s_mov_b32 s64, {WS_RG + 64}
    """)
    for r in RS:
        out += L(f"""
        v_mul_u32_u24 v{r['off']}, 896, v{r['row']}
        v_lshl_add_u32 v{r['off']}, v11, 4, v{r['off']}
        v_lshrrev_b32 v13, 4, v{r['row']}
        v_lshlrev_b32 v13, 5, v13
        v_and_b32 v104, 15, v{r['row']}
        v_add_lshl_u32 v13, v13, v104, 2
        buffer_load_dword v{r['g']}, v13, {WS}, s64 offen sc1
        buffer_load_dwordx4 v[{r['x']}:{r['x']+3}], v{r['off']}, s[56:59], s75 offen
        buffer_load_dwordx4 v[{r['x']+4}:{r['x']+7}], v{r['off']}, s[56:59], s76 offen
        """)
    return out + [I(f"v_mov_b32 v{48+n}, 0") for n in range(32)]
def red_b(t):
    r = RS[t]
    return [i for w in range(8) for i in L(f"v_lshlrev_b32 v{r['b']+2*w}, 16, v{r['x']+w}\nv_and_b32 v{r['b']+1+2*w}, 0xffff0000, v{r['x']+w}")] + L(f"""
    v_sub_f32 v13, 1.0, v{r['g']}
    v_cmp_eq_u32 s[80:81], s84, v{r['row']}
    v_cmp_eq_u32 s[82:83], s85, v{r['row']}
    s_or_b64 vcc, s[80:81], s[82:83]
    s_cbranch_vccnz L_moe{t}
    L_moe_ret{t}:
    """) + [I(f"v_mul_f32 v{r['b']+e}, v13, v{r['b']+e}") for e in range(16)]
def red_main(vl16, st=lambda: [], lag=6, early=True, sent=True):
    out = L(f"""
    v_cmp_eq_u32 vcc, 1, v9
    s_mov_b32 s91, {SPIN_MAX}
    s_mov_b32 s69, 0
    s_mov_b32 s70, vcc_lo
    s_mov_b32 s68, vcc_lo
    """)
    ring = [16, 17, 18, 19, 48, 49, 50, 51]; assert lag < 8
    def acc(k):
        d = lambda t: [i for w in range(8) for i in L(f"v_dot2c_f32_bf16 v{RS[t]['acc']+2*w}, v{128+8*(k%16)+w}, v24\nv_dot2c_f32_bf16 v{RS[t]['acc']+1+2*w}, v{128+8*(k%16)+w}, v25")]
        if sent:
            r = 128 + 8 * (k % 16); d0 = d
            tst = f"v_max3_u32 v13, v{r}, v{r+1}, v{r+2}\nv_max3_u32 v104, v{r+3}, v{r+4}, v{r+5}\nv_max3_u32 v13, v13, v{r+6}, v{r+7}\nv_max_u32 v13, v13, v104\nv_cmp_eq_u32 vcc, -1, v13"
            d = lambda t: d0(0) if t == 0 else L(tst + f"\ns_cbranch_vccnz L_rz{k}\nL_rw{k}:") + d0(1)
            far.extend(L(f"""L_rz{k}:
            buffer_load_dwordx4 v[{r}:{r+3}], v{vl16}, {WS}, s{ring[k % 8]} offen sc1
            buffer_load_dwordx4 v[{r+4}:{r+7}], v27, {WS}, s{ring[k % 8]} offen sc1
            s_waitcnt vmcnt(0)
            {tst}
            s_sub_u32 s91, s91, 1
            s_cbranch_scc1 L_rw{k}
            s_cbranch_vccnz L_rz{k}
            s_branch L_rw{k}"""))
        f = 0 if k < 16 else 1
        return ([NEED(R("v", 128 + 8 * (k % 16), 8))] + L(f"s_bitcmp{1 - f}_b32 s69, {k}\ns_cbranch_scc1 L_rx{k}") + d(f) + L(f"L_ry{k}:"),
                L(f"L_rx{k}:") + d(1 - f) + L(f"s_branch L_ry{k}"))
    def fin(t, note=""):
        r = RS[t]; o = []
        for u in range(2):
            if SWAP: o += [I("s_nop 2")] + [I(f"v_permlane16_swap_b32 v{r['acc']+8*u+e}, v{r['acc']+8*u+4+e}") for e in range(4)]
            o += [I(f"v_fmac_f32 v{r['b']+8*u+e}, v{r['g']}, v{r['acc']+8*u+e}") for e in range(8)]
            o += [I(f"v_cvt_pk_bf16_f32 v{r['x']+4*u+w}, v{r['b']+8*u+2*w}, v{r['b']+1+8*u+2*w}") for w in range(4)]
            o.append(I(f"buffer_store_dwordx4 v[{r['x']+4*u}:{r['x']+3+4*u}], v{r['off']}, s[52:55], s{75+u} offen {OSF}{note}"))
        return o
    far = []
    for k in range(32 + lag):
        if k < 32:
            out += L(f"""s_cmp_lg_u32 s70, 0
            s_cbranch_scc1 L_rk{k}
            s_call_b64 s[36:37], L_rpoll
            L_rk{k}:
            s_ff1_i32_b32 s71, s70
            s_bitset0_b32 s70, s71
            s_cmp_ge_u32 s71, 16
            s_cselect_b32 s72, s78, s77
            s_cselect_b32 s73, {hex(1 << k)}, 0
            {'s_bitcmp1_b32 s71, 3' + chr(10) + f's_cselect_b32 s72, {OOB}, s72' if WI else ''}
            s_mul_i32 s71, s71, {OP_HEAD}
            s_add_u32 s{ring[k % 8]}, s71, s72
            buffer_load_dwordx4 v[{128+8*(k%16)}:{131+8*(k%16)}], v{vl16}, {WS}, s{ring[k % 8]} offen sc1
            s_or_b32 s69, s69, s73
            buffer_load_dwordx4 v[{132+8*(k%16)}:{135+8*(k%16)}], v27, {WS}, s{ring[k % 8]} offen sc1""")
        if k in (1, 2): out += red_b(k - 1)
        if k == 31: out += st()
        if k >= lag:
            a_, f_ = acc(k - lag); out += a_; far += f_
        if early and k == 27:
            out += L(f"""s_and_b32 s71, s69, {hex((1 << (k - lag + 1)) - 1)}
            s_bcnt1_i32_b32 s71, s71
            s_cmp_eq_u32 s71, {k - lag + 1 - 16}
            s_cselect_b32 s66, 1, 0
            s_cbranch_scc0 L_rne""") + fin(0, " ; nocount") + L("L_rne:")
    out += st() + L("s_nop 1") + fin(1)
    if early: out += L("s_cmp_eq_u32 s66, 1\ns_cbranch_scc1 L_rdone")
    out += fin(0) + L("L_rdone:")
    return out, far
RSL = 1
def red_poll():
    return L(f"""
    L_rpoll0:
    s_sleep {RSL}
    L_rpoll:
    {FOP_LOAD}
    s_waitcnt vmcnt(0)
    v_cmp_eq_u32 vcc, 1, v9
    s_sub_u32 s91, s91, 1
    s_cselect_b32 s70, -1, 0
    s_or_b32 s70, s70, vcc_lo
    s_andn2_b32 s70, s70, s68
    s_cbranch_scc0 L_rpoll0
    s_or_b32 s68, s68, s70
    s_setpc_b64 s[36:37]
    """)
def red_moe():
    out = []
    for t in range(2):
        out += L(f"L_moe{t}:\ns_call_b64 s[36:37], L_moe") + [I(f"v_add_f32 v{RS[t]['b']+e}, v{108+e}, v{RS[t]['b']+e}") for e in range(16)] + L(f"s_mov_b64 exec, -1\ns_branch L_moe_ret{t}")
    out += L(f"""
    L_moe:
    v_min_u32 v104, 27, v0
    v_lshlrev_b32 v104, 2, v104
    s_mov_b32 s64, {WS_FH + 512}
    """) + poll_flags(64, 64, "L_pfy", 105, 104, 65) + L(f"""
    s_or_b64 exec, s[80:81], s[82:83]
    v_mov_b32 v104, 1792
    v_cndmask_b32 v104, v104, 0, s[80:81]
    v_lshl_add_u32 v104, v11, 5, v104
    s_lshl_b32 s88, s75, 1
    s_add_u32 s88, s88, {WS_YF}
    buffer_load_dwordx4 v[108:111], v104, {WS}, s88 offen sc1
    buffer_load_dwordx4 v[112:115], v104, {WS}, s88 offen offset:16 sc1
    buffer_load_dwordx4 v[116:119], v104, {WS}, s88 offen offset:512 sc1
    buffer_load_dwordx4 v[120:123], v104, {WS}, s88 offen offset:528 sc1
    s_waitcnt vmcnt(0)
    s_setpc_b64 s[36:37]
    """)
    return out
def y_reduce():
    out = L(f"""
    L_yred:
    s_lshl_b32 s89, s{sH}, 1
    s_add_u32 s89, s89, s{sWAVE}
    s_cmp_ge_u32 s89, 28
    s_cbranch_scc1 L_yred_ret
    v_lshrrev_b32 v20, 4, v7
    v_lshrrev_b32 v21, 3, v20
    v_mul_u32_u24 v21, {FSTR}, v21
    v_and_b32 v22, 7, v20
    v_lshl_add_u32 v21, v22, 7, v21
    s_mov_b32 s64, {WS_FL}
    s_mov_b32 s88, {WS_FL + 8 * FSTR}
    s_mov_b32 s91, {SPIN_MAX}
    L_yp:
    buffer_load_dword v22, v21, {WS}, s64 offen sc1
    buffer_load_dword v23, v21, {WS}, s88 offen sc1
    s_waitcnt vmcnt(0)
    v_min_u32 v22, v22, v23
    v_cmp_gt_u32 vcc, 4, v22
    s_sub_u32 s91, s91, 1
    s_cbranch_scc1 L_ypx
    s_cbranch_vccnz L_yp
    L_ypx:
    s_cmp_lt_u32 s89, 14
    s_cselect_b32 s64, 8, 12
    s_add_u32 s64, s64, {WS_SEL}
    buffer_load_dword v23, off, {WS}, s64 sc1
    v_lshrrev_b32 v21, 3, v20
    v_mul_u32_u24 v21, 3584, v21
    v_and_b32 v22, 7, v20
    v_lshl_add_u32 v21, v22, 4, v21
    s_lshl_b32 s88, s89, 7
    s_add_u32 s90, s88, {WS_YF}
    s_add_u32 s88, s88, {WS_Y}
    """)
    for n in range(14):
        out += L(f"buffer_load_dwordx4 v[{64+4*n}:{67+4*n}], v21, {WS}, s88 offen sc1\ns_add_u32 s88, s88, {8 * 3584}")
    out += L("s_branch L_yred_ret\nL_yred2:\ns_cmp_ge_u32 s89, 28\ns_cbranch_scc1 L_yred2_ret\nv_mov_b32 v22, 1\ns_waitcnt vmcnt(0)")
    acc = [64 + e for e in range(4)]
    for n in range(1, 14): out += [I(f"v_add_f32 v{a}, v{a + 4 * n}, v{a}") for a in acc]
    out += [I(f"v_add_f32 v{a}, v{a}, v{a} row_ror:8 row_mask:0xf bank_mask:0xf") for a in acc]
    for sw in ("v_permlane16_swap_b32", "v_permlane32_swap_b32"):
        out += [I(f"v_mov_b32 v{a + 4}, v{a}") for a in acc]
        out += [I(f"{sw} v{a + 4}, v{a}") for a in acc]
        out += [I(f"v_add_f32 v{a}, v{a + 4}, v{a}") for a in acc]
    for rep in range(2):
        for p in (64, 66):
            out += L(f"v_cvt_pk_bf16_f32 v21, v{p}, v{p+1}\nv_lshlrev_b32 v{p}, 16, v21\nv_and_b32 v{p+1}, 0xffff0000, v21")
        if rep == 0: out += [I(f"v_mul_f32 v{a}, v23, v{a}") for a in acc]
    out += L(f"""
    s_mov_b64 exec, 0xff
    buffer_store_dwordx4 v[64:67], v7, {WS}, s90 offen sc1
    s_lshl_b32 s89, s89, 2
    s_add_u32 s89, s89, {WS_FH + 512}
    s_mov_b64 exec, 1
    s_waitcnt vmcnt(0)
    buffer_store_dword v22, off, {WS}, s89 sc1
    s_mov_b64 exec, -1
    s_branch L_yred2_ret
    """)
    return out


JUNK = 240
NTT = "nt"
def touch(vaddr, srdreg, soff, imm=0, nt=True):
    return I(f"buffer_load_dword a{JUNK}, v{vaddr}, s[{srdreg}:{srdreg+3}], {soff} offen offset:{imm} {NTT if nt else ('sc1' if srdreg == S_WS else '')}", tag="TOUCH")
def code_addr(v, t):
    if v == t: return L(f"v_and_b32 v{v}, 48, v0\nv_lshlrev_b32 v{v}, 17, v{v}\nv_or_b32 v{v}, v{v}, v0\nv_lshl_add_u32 v{v}, v{v}, 7, s95")
    return L(f"""
    v_lshl_add_u32 v{t}, v0, 7, s95
    v_and_b32 v{v}, 48, v0
    v_lshl_add_u32 v{v}, v{v}, 24, v{t}
    """)
def code_touch():
    return L(f"""
    s_getpc_b64 s[76:77]
    L_pc0:
    s_and_b32 s77, s77, 0xffff
    s_mov_b32 s78, L_code_end-L_pc0
    s_mov_b32 s79, 0x20000
    s_lshr_b32 s64, s2, 3
    s_lshl_b32 s64, s64, 2
    s_add_u32 s64, s64, s{sWAVE}
    s_lshl_b32 s95, s64, 11
    """) + code_addr(28, 29) + [touch(28, 76, 0, nt=False)]
def kv_touch_setup(sKV):
    return L(f"""
    s_lshr_b32 s64, s{sH}, 3
    s_lshl_b32 s64, s64, 1
    s_add_u32 s64, s64, s{sKV}
    s_lshl_b32 s64, s64, 2
    s_add_u32 s64, s64, s{sWAVE}
    s_lshl_b32 s64, s64, 15
    v_lshrrev_b32 v28, 1, v0
    v_and_b32 v29, 1, v0
    v_lshlrev_b32 v29, 7, v29
    v_lshl_add_u32 v28, v28, 11, v29
    v_add_u32 v24, s64, v28
    v_and_b32 v28, 32, v0
    v_lshl_add_u32 v24, v28, 24, v24
    s_lshr_b32 s64, s{sJ}, 1
    s_lshl_b32 s64, s64, 2
    s_add_u32 s64, s64, s{sWAVE}
    s_lshl_b32 s64, s64, 15
    v_lshrrev_b32 v28, 2, v0
    v_and_b32 v29, 3, v0
    v_lshlrev_b32 v29, 7, v29
    v_lshl_add_u32 v28, v28, 13, v29
    v_add_u32 v25, s64, v28
    v_and_b32 v28, 48, v0
    v_lshl_add_u32 v25, v28, 24, v25
    """)
def kv_touch(sc, sw):
    return [touch(24, sc, 0), touch(25, sw, 0), I("v_add_u32 v24, 256, v24"), I(f"v_add_u32 v25, {128 * 8192}, v25")]
def q_touch(swq, sx, px):
    pre = L(f"""
    s_lshl_b32 s64, s{sJ}, 2
    s_add_u32 s64, s64, s{sWAVE}
    s_mul_i32 s64, s64, {7 * 8192}
    v_lshrrev_b32 v28, 2, v0
    v_and_b32 v29, 3, v0
    v_lshlrev_b32 v29, 7, v29
    v_lshl_add_u32 v28, v28, 13, v29
    v_add_u32 v16, s64, v28
    v_mov_b32 v29, 0x20000000
    v_cmp_gt_u32 vcc, 28, v0
    s_lshl_b32 s64, s{sJ}, 1
    s_lshr_b32 s72, s{sH}, 3
    v_cndmask_b32 v16, v29, v16, vcc
    s_add_u32 s64, s64, s72
    s_lshl_b32 s64, s64, 2
    s_add_u32 s64, s64, s{sWAVE}
    s_mul_i32 s64, s64, 14336
    v_lshl_add_u32 v17, v0, 7, s64
    v_cmp_gt_u32 vcc, 56, v0
    s_nop 1
    v_cndmask_b32 v17, v29, v17, vcc
    s_mov_b32 s67, 7168
    """)
    return pre, [touch(16, swq, 0)] + ([touch(17, sx, 0), touch(17, sx, "s67")] if px else [])
def h_touch_srd():
    return L(f"""
    s_load_dwordx4 s[80:83], s[0:1], {A_WG}
    s_load_dwordx2 s[84:85], s[0:1], {A_WD}
    """)
def h_touch():
    return L(f"""
    s_lshr_b32 s64, s2, 3
    s_lshl_b32 s64, s64, 2
    s_add_u32 s64, s64, s{sWAVE}
    s_cmp_lt_u32 s64, 64
    s_cselect_b32 s72, s80, s82
    s_cselect_b32 s73, s81, s83
    {srd(60, 72, 448*3584)}
    {srd(68, 84, 1792*896)}
    s_and_b32 s72, s64, 63
    s_mul_i32 s72, s72, {7 * 3584}
    s_and_b32 s73, s{sH}, 7
    s_mul_i32 s74, s73, 448
    s_add_u32 s72, s72, s74
    s_and_b32 s72, s72, 0xffffff80
    v_lshrrev_b32 v28, 2, v0
    v_mul_u32_u24 v28, 3584, v28
    v_and_b32 v29, 3, v0
    v_lshl_add_u32 v28, v29, 7, v28
    v_add_u32 v28, s72, v28
    v_mov_b32 v29, 0x20000000
    v_cmp_gt_u32 vcc, 28, v0
    s_mul_i32 s73, s73, {224 * 896}
    s_mul_i32 s64, s64, 1664
    v_cndmask_b32 v30, v29, v28, vcc
    s_add_u32 s64, s64, s73
    v_lshl_add_u32 v28, v0, 7, s64
    v_cmp_gt_u32 vcc, 13, v0
    s_nop 1
    v_cndmask_b32 v31, v29, v28, vcc
    """), [touch(30, 60, 0), touch(31, 68, 0)]


def bg_r_loads():
    return L(f"""
    s_lshl_b32 s64, s2, 2
    s_add_u32 s64, s64, s{sWAVE}
    s_mul_i32 s72, s64, 1792
    v_mov_b32 v28, {OOB}
    v_cmp_gt_u32 vcc, 56, v0
    s_nop 0
    v_cndmask_b32 v28, v28, v7, vcc
    buffer_load_dwordx4 v[16:19], v28, s[56:59], s72 offen
    buffer_load_dwordx4 v[20:23], v28, s[56:59], s72 offen offset:896
    buffer_load_dwordx4 a[176:179], v28, s[60:63], 0 offen
    buffer_load_dwordx4 a[180:183], v28, s[68:71], 0 offen
    """)
def bg_r_compute():
    out = [I(f"v_mov_b32 v{28+r}, 0") for r in range(4)]
    for w in range(4):
        out += L(f"""v_accvgpr_read_b32 v26, a{176+w}
        v_accvgpr_read_b32 v27, a{180+w}
        v_dot2c_f32_bf16 v28, v{16+w}, v26
        v_dot2c_f32_bf16 v29, v{20+w}, v26
        v_dot2c_f32_bf16 v30, v{16+w}, v27
        v_dot2c_f32_bf16 v31, v{20+w}, v27""")
    out += wave_sum([28, 29, 30, 31], [16, 17, 18, 19])
    out += L(f"""
    v_cmp_eq_u32 vcc, 0, v0
    s_lshl_b32 s64, s2, 3
    s_lshl_b32 s72, s{sWAVE}, 1
    v_cndmask_b32 v28, v29, v28, vcc
    v_cndmask_b32 v30, v31, v30, vcc
    s_add_u32 s64, s64, s72
    v_add_u32 v16, s64, v0
    v_ashrrev_i32 v17, 31, v28
    v_or_b32 v17, 0x80000000, v17
    v_xor_b32 v17, v17, v28
    v_and_b32 v17, 0xfffff800, v17
    v_sub_u32 v18, 2047, v16
    v_or_b32 v17, v17, v18
    """) + sigmoid(30, 31) + L(f"""
    s_lshl_b32 s72, s{sWAVE}, 3
    s_add_u32 s72, s72, {LDS_R}
    v_lshl_add_u32 v16, v0, 2, s72
    v_mov_b32 v18, {LDS_R + 128}
    v_cmp_gt_u32 vcc, 2, v0
    s_nop 0
    v_cndmask_b32 v16, v18, v16, vcc
    ds_write_b32 v16, v17
    ds_write_b32 v16, v28 offset:32
    ds_write_b32 v16, v30 offset:64
    """)
    return out
def bg_r_store():
    return L(f"""
    v_and_b32 v16, 31, v0
    v_lshlrev_b32 v16, 2, v16
    v_add_u32 v17, {LDS_R}, v16
    ds_read_b32 v17, v17
    s_cmp_eq_u32 s{sWAVE}, 0
    s_cselect_b32 s64, 0, {OOB}
    v_and_b32 v18, 32, v0
    v_lshl_add_u32 v16, v18, 24, v16
    v_or_b32 v16, s64, v16
    s_lshl_b32 s72, s2, 7
    s_add_u32 s72, s72, {WS_R}
    s_cmp_lt_u32 s2, 14
    s_cselect_b32 s64, s64, {OOB}
    v_or_b32 v18, s64, v7
    v_mov_b32 v20, 0
    v_mov_b32 v21, 0
    v_mov_b32 v22, 0
    v_mov_b32 v23, 0
    s_and_b32 s73, s2, 15
    s_lshl_b32 s73, s73, 10
    s_add_u32 s73, s73, {WS_FKV}
    buffer_store_dword v17, v16, {WS}, s72 offen sc1
    """) + [I(f"buffer_store_dwordx4 v[20:23], v18, {WS}, s73 offen sc1", tag="RST")]
def lane0_wave0(v):
    return L(f"""
    v_or_b32 v{v}, s{sWAVE}, v0
    v_min_u32 v{v}, 1, v{v}
    v_lshlrev_b32 v{v}, 29, v{v}
    """)
def bg_r_signal():
    return lane0_wave0(16) + L("v_mov_b32 v17, 1") + [WAITV("RST"), I(f"buffer_atomic_add v17, v16, s[{S_DBG}:{S_DBG+3}], 0 offen sc1")]
def bg_wo_dma():
    pre = L(f"""
    v_lshrrev_b32 v28, 5, v0
    v_mul_u32_u24 v28, 896, v28
    v_and_b32 v29, 31, v0
    v_lshl_add_u32 v28, v29, 4, v28
    v_mov_b32 v30, {OOB}
    v_cmp_gt_u32 vcc, 28, v29
    s_lshr_b32 s64, s{sJ}, 1
    s_lshl_b32 s64, s64, 5
    v_cndmask_b32 v28, v30, v28, vcc
    s_lshl_b32 s72, s{sH}, 8
    s_add_u32 s64, s64, s72
    s_lshl_b32 s72, s{sWAVE}, 3
    s_add_u32 s64, s64, s72
    s_mul_i32 s64, s64, 896
    s_and_b32 s72, s{sJ}, 1
    s_mul_i32 s72, s72, 448
    s_add_u32 s67, s64, s72
    v_add_u32 v29, {2*896 - 1024}, v28
    v_add_u32 v30, {2*(2*896 - 1024)}, v28
    v_add_u32 v31, {3*(2*896 - 1024)}, v28
    """)
    un = [I("s_add_u32 m0, s23, 131072")] + [I(f"buffer_load_dwordx4 v{28+j}, s[60:63], s67 offen offset:{1024*j} nt lds", tag="WO") for j in range(4)] + [I("s_nop 0")]
    return pre, un
def bg_wo_finish():
    out = wo_setup()[:-2] + L(f"""
    s_cmp_lt_u32 s{sWAVE}, 2
    s_cselect_b32 s75, 0, {OOB}
    """) + wo_reads()
    st = [I(f"buffer_store_dwordx4 a[{192+4*n}:{195+4*n}], v{24 if n == 3 else 7}, {WS}, s{76+n} offen sc1", tag="KVST") for n in range(4)]
    return out, [I('v_or_b32 v24, s75, v7')] + st
def c_touch_setup():
    return L(f"""
    s_lshl_b32 s64, s2, 2
    s_add_u32 s64, s64, s{sWAVE}
    s_lshl_b32 s64, s64, 12
    v_lshrrev_b32 v28, 2, v0
    v_and_b32 v29, 3, v0
    v_lshlrev_b32 v29, 7, v29
    v_lshl_add_u32 v28, v28, 11, v29
    v_add_u32 v24, s64, v28
    v_and_b32 v28, 56, v0
    v_lshl_add_u32 v24, v28, 24, v24
    """)
def w_touch_setup(t0, t1):
    return L(f"""
    s_and_b32 s64, s{sJ}, 7
    s_lshl_b32 s64, s64, 2
    s_add_u32 s64, s64, s{sWAVE}
    s_lshl_b32 s64, s64, 14
    v_lshrrev_b32 v{t0}, 2, v0
    v_and_b32 v{t1}, 3, v0
    v_lshlrev_b32 v{t1}, 7, v{t1}
    v_lshl_add_u32 v{t0}, v{t0}, 13, v{t1}
    v_add_u32 v{t1}, s64, v{t0}
    v_and_b32 v{t0}, 56, v0
    v_lshl_add_u32 v{t0}, v{t0}, 24, v{t1}
    v_accvgpr_write_b32 a241, v{t0}
    """)
def w_touch(sw, t):
    return [I(f"s_mov_b32 s65, {t * 64 * 8192}"), I("v_accvgpr_read_b32 v26, a241"), touch(26, sw, "s65")]
def c_touch(sc, quarter):
    return [touch(24, sc, 0, quarter * 512, nt=False)]


def z_store():
    return L(f"""
    s_lshl_b32 s64, s{sJ}, 4
    s_add_u32 s64, s64, s{sH}
    s_lshl_b32 s64, s64, 2
    s_add_u32 s64, s64, s{sWAVE}
    s_cmp_lt_u32 s64, {NZERO}
    s_cselect_b32 s39, 0, {OOB}
    s_min_u32 s64, s64, {NZERO}
    s_lshl_b32 s38, s64, 2
    s_max_u32 s67, s64, 8
    s_sub_u32 s67, s67, 8
    s_mul_i32 s67, s67, {FSTR - 1024}
    s_lshl_b32 s64, s64, 10
    s_add_u32 s64, s64, s67
    s_add_u32 s73, s64, {WS_KEY}
    v_or_b32 v64, s39, v7
    v_mov_b32 v68, 0
    v_mov_b32 v69, 0
    v_mov_b32 v70, 0
    v_mov_b32 v71, 0
    """) + [I(f"buffer_store_dwordx4 v[68:71], v64, {WS}, s73 offen offset:{1024 * n} sc1", tag="ZST") for n in range(3)]
def z_signal():
    return L(f"""
    v_min_u32 v16, 1, v0
    v_lshlrev_b32 v16, 29, v16
    v_or_b32 v16, s39, v16
    v_mov_b32 v17, 1
    """) + [WAITV("ZST"), I(f"buffer_store_dword v17, v16, s[{S_DBG}:{S_DBG+3}], s38 offen offset:64 sc1")]
def z_load():
    return L(f"""
    v_min_u32 v16, {NZERO - 1}, v0
    v_lshlrev_b32 v16, 2, v16
    buffer_load_dword v17, v16, s[{S_DBG}:{S_DBG+3}], 0 offen offset:64 sc1
    """)
def z_check(tag):
    return L(f"""
    v_cmp_ne_u32 vcc, 1, v17
    s_nop 0
    s_cbranch_vccnz L_zs{tag}
    L_zr{tag}:
    """)
def spin_stub(label, ret, load, vt, sc=64, cmp_="v_cmp_ne_u32 vcc, 1, v{vt}"):
    return L(f"""
    {label}:
    s_mov_b32 s{sc}, {SPIN_MAX}
    {label}_l:
    s_sleep 2
    {load}
    s_sub_u32 s{sc}, s{sc}, 1
    s_cbranch_scc1 {label}_x
    s_waitcnt vmcnt(0)
    {cmp_.format(vt=vt)}
    s_cbranch_vccnz {label}_l
    {label}_x:
    s_waitcnt vmcnt(0)
    s_branch {ret}
    """)
def z_stub(tag):
    return spin_stub(f"L_zs{tag}", f"L_zr{tag}", f"buffer_load_dword v17, v16, s[{S_DBG}:{S_DBG+3}], 0 offen offset:64 sc1", 17)
def rg_store():
    return L(f"""
    v_and_b32 v20, 31, v0
    v_lshlrev_b32 v20, 2, v20
    v_add_u32 v21, {LDS_R}, v20
    ds_read_b32 v19, v21
    ds_read_b32 v21, v21 offset:32
    s_cmp_eq_u32 s{sWAVE}, 0
    s_cselect_b32 s64, 0, {OOB}
    v_mov_b32 v22, {OOB}
    v_or_b32 v20, s64, v20
    v_cmp_gt_u32 vcc, 8, v0
    s_lshl_b32 s72, s2, 6
    s_add_u32 s72, s72, {WS_RG}
    v_cndmask_b32 v18, v22, v20, vcc
    v_cmp_gt_u32 vcc, 16, v0
    s_nop 0
    s_nop 0
    v_cndmask_b32 v20, v22, v20, vcc
    """) + [I(f"buffer_store_dword v21, v20, {WS}, s72 offen sc1", tag="RST")]
def key_store():
    return L(f"""
    s_lshl_b32 s72, s2, 5
    s_add_u32 s72, s72, {WS_KEY}
    """) + [WAITV("RST"), I(f"buffer_store_dword v19, v18, {WS}, s72 offen sc1")]
def lanes8(v):
    return f"v_and_b32 v28, 56, v0\nv_lshl_add_u32 v{v}, v28, 24, v{v}"
def wo_touch():
    pre = L(f"""
    s_lshr_b32 s64, s{sJ}, 1
    s_lshl_b32 s64, s64, 5
    s_lshl_b32 s72, s{sH}, 8
    s_add_u32 s64, s64, s72
    s_lshl_b32 s72, s{sWAVE}, 3
    s_add_u32 s64, s64, s72
    s_mul_i32 s64, s64, 896
    s_and_b32 s72, s{sJ}, 1
    s_mul_i32 s72, s72, 384
    s_add_u32 s64, s64, s72
    v_bfe_u32 v28, v0, 2, 2
    v_mul_u32_u24 v28, 896, v28
    v_and_b32 v29, 3, v0
    v_lshl_add_u32 v28, v29, 7, v28
    v_add_u32 v23, s64, v28
    v_and_b32 v28, 48, v0
    v_lshl_add_u32 v23, v28, 24, v23
    """)
    return pre, [[touch(23, 60, 0, n * 3584)] for n in range(2)]
def q_touch2(swq):
    pre = L(f"""
    s_lshl_b32 s64, s{sJ}, 2
    s_add_u32 s64, s64, s{sWAVE}
    s_mul_i32 s64, s64, {7 * 8192}
    v_bfe_u32 v28, v0, 2, 2
    v_and_b32 v29, 3, v0
    v_lshlrev_b32 v29, 7, v29
    v_lshl_add_u32 v28, v28, 13, v29
    v_add_u32 v23, s64, v28
    v_and_b32 v28, 48, v0
    v_lshl_add_u32 v23, v28, 24, v23
    """)
    return pre, [[touch(23, swq, 0), I(f"v_add_u32 v23, {4 * 8192}, v23")], [touch(23, swq, 0)]]
def h_touch2():
    pre = L(f"""
    s_lshr_b32 s64, s2, 3
    s_lshl_b32 s64, s64, 2
    s_add_u32 s64, s64, s{sWAVE}
    s_cmp_lt_u32 s64, 64
    s_cselect_b32 s72, s80, s82
    s_cselect_b32 s73, s81, s83
    {srd(60, 72, 448*3584)}
    {srd(68, 84, 1792*896)}
    s_and_b32 s72, s64, 63
    s_mul_i32 s72, s72, {7 * 3584}
    s_and_b32 s73, s{sH}, 7
    s_mul_i32 s74, s73, 448
    s_add_u32 s72, s72, s74
    s_and_b32 s72, s72, 0xffffff80
    v_bfe_u32 v28, v0, 2, 2
    v_mul_u32_u24 v28, 3584, v28
    v_and_b32 v29, 3, v0
    v_lshl_add_u32 v28, v29, 7, v28
    v_add_u32 v21, s72, v28
    v_and_b32 v28, 48, v0
    v_lshl_add_u32 v21, v28, 24, v21
    s_mul_i32 s73, s73, {224 * 896}
    s_mul_i32 s64, s64, 1664
    s_add_u32 s64, s64, s73
    v_lshl_add_u32 v22, v0, 7, s64
    v_lshl_add_u32 v22, v28, 24, v22
    """)
    return pre, [[touch(21, 60, 0), I(f"v_add_u32 v21, {4 * 3584}, v21")], [touch(21, 60, 0)], [touch(22, 68, 0)]]

def x_touch():
    pre = L(f"""
    s_xor_b32 s64, s2, 1
    s_lshl_b32 s64, s64, 2
    s_add_u32 s64, s64, s{sWAVE}
    s_mul_i32 s64, s64, 1792
    v_lshl_add_u32 v23, v0, 7, s64
    v_mov_b32 v28, {OOB}
    v_cmp_gt_u32 vcc, 14, v0
    s_nop 0
    s_nop 0
    v_cndmask_b32 v23, v28, v23, vcc
    """)
    return pre, [[touch(23, 56, 0, nt=False)]]

def x_touch2():
    pre = L(f"""
    s_lshl_b32 s64, s{sJ}, 1
    s_lshr_b32 s72, s{sH}, 3
    s_add_u32 s64, s64, s72
    s_lshl_b32 s64, s64, 2
    s_add_u32 s64, s64, s{sWAVE}
    s_mul_i32 s64, s64, 14336
    v_lshl_add_u32 v25, v0, 7, s64
    v_mov_b32 v28, {OOB}
    v_cmp_gt_u32 vcc, 28, v0
    s_nop 0
    s_nop 0
    v_cndmask_b32 v25, v28, v25, vcc
    """)
    return pre, [[touch(25, 56, 0, nt=False), I("v_add_u32 v25, 3584, v25")] for n in range(4)]
def flag_store(addr_sreg, va, vt, tag=None):
    return I(f"buffer_store_dword v{vt}, v{va}, {WS}, s{addr_sreg} offen sc1", tag=tag)

def q_touch3(swq):
    pre = L(f"""
    s_and_b32 s64, s{sJ}, 7
    s_lshl_b32 s64, s64, 2
    s_add_u32 s64, s64, s{sWAVE}
    s_mul_i32 s64, s64, {14 * 8192}
    v_bfe_u32 v28, v0, 2, 2
    v_and_b32 v29, 3, v0
    v_lshlrev_b32 v29, 7, v29
    v_lshl_add_u32 v28, v28, 13, v29
    v_add_u32 v23, s64, v28
    v_and_b32 v28, 48, v0
    v_lshl_add_u32 v23, v28, 24, v23
    """)
    return pre, [[touch(23, swq, 0, nt=False), I(f"v_add_u32 v23, {(4 if n < 2 else 2) * 8192}, v23")] for n in range(4)]


def wo2_dma():
    pre = L(f"""
    s_and_b32 s64, s{sJ}, 7
    s_lshl_b32 s72, s{sH}, 3
    s_add_u32 s64, s64, s72
    s_lshl_b32 s64, s64, 2
    s_add_u32 s64, s64, s{sWAVE}
    s_mul_i32 s67, s64, 7168
    s_mul_i32 s86, s{sWAVE}, 7168
    s_add_u32 s86, s86, 131072
    """)
    un = lambda o, n: [I(f"s_add_u32 m0, s86, {o}")] + [I(f"buffer_load_dwordx4 v7, s[60:63], s67 offen offset:{1024*j} nt lds", tag="WO") for j in range(n)] + [I("s_add_u32 s67, s67, 4096")]
    return pre, [un(0, 4), un(4096, 3)]
def wo2_reads():
    return L(f"""
    v_lshrrev_b32 v28, 2, v0
    v_mul_u32_u24 v28, 896, v28
    v_and_b32 v29, 3, v0
    v_lshl_add_u32 v28, v29, 4, v28
    s_lshr_b32 s64, s{sWAVE}, 1
    s_lshl_b32 s64, s64, 6
    s_and_b32 s72, s{sWAVE}, 1
    s_lshl_b32 s72, s72, 3
    s_add_u32 s64, s64, s72
    s_add_u32 s64, s64, 131072
    v_add_u32 v28, s64, v28
    s_lshl_b32 s94, s{sH}, 18
    s_and_b32 s64, s{sJ}, 7
    s_lshl_b32 s64, s64, 10
    s_add_u32 s94, s94, s64
    s_lshl_b32 s64, s{sWAVE}, 13
    s_add_u32 s94, s94, s64
    s_add_u32 s94, s94, {WS_WO}
    """) + [I(f"ds_read_b64_tr_b16 a[{192+4*n+2*j}:{193+4*n+2*j}], v28 offset:{n*128 + j*14336}") for n in range(7) for j in range(2)]
WSF = 'sc1'
def wo2_stores():
    return [[I(f"s_add_u32 s3, s94, {n * 32768}"), I(f"buffer_store_dwordx4 a[{192+4*n}:{195+4*n}], v7, {WS}, s3 offen {WSF}", tag="KVST")] for n in range(7)]

def tlb_touch(srds, sel):
    out = L(f"""
    s_lshr_b32 s64, s2, 3
    s_lshl_b32 s64, s64, 2
    s_add_u32 s64, s64, s{sWAVE}
    s_and_b32 s64, s64, {sel}
    s_min_u32 s64, s64, 1
    s_lshl_b32 s64, s64, 29
    v_lshlrev_b32 v28, 21, v0
    v_or_b32 v28, s64, v28
    """)
    return out + [touch(28, r, 0, nt=False) for r in srds]


def r4_loads():
    return L(f"""
    s_lshl_b32 s30, s{sH}, 3
    s_add_u32 s30, s30, s{sJ}
    s_lshl_b32 s64, s30, 2
    s_add_u32 s64, s64, s{sWAVE}
    s_mul_i32 s72, s64, 3584
    v_mov_b32 v32, {OOB}
    v_cmp_gt_u32 vcc, 56, v0
    s_lshl_b32 s67, s64, 2
    s_nop 0
    v_cndmask_b32 v32, v32, v7, vcc
    """) + [I(f"buffer_load_dwordx4 v[{40+4*r}:{43+4*r}], v32, s[56:59], s72 offen offset:{896*r}") for r in range(4)] + L("""
    buffer_load_dwordx4 v[56:59], v32, s[60:63], 0 offen
    buffer_load_dwordx4 v[60:63], v32, s[68:71], 0 offen
    """)
def r4_compute():
    out = [I(f"v_mov_b32 v{72+r}, 0") for r in range(8)]
    for w in range(4):
        for m in range(2):
            for r in range(4): out.append(I(f"v_dot2c_f32_bf16 v{72+4*m+r}, v{40+4*r+w}, v{56+4*m+w}"))
    prs = [(72, 74), (73, 75), (76, 78), (77, 79)]
    out += [I(f"v_permlane32_swap_b32 v{a}, v{b}") for a, b in prs] + [I(f"v_add_f32 v{a}, v{a}, v{b}") for a, b in prs]
    out += L("v_lshrrev_b32 v80, 4, v0\nv_permlane16_swap_b32 v72, v73\nv_permlane16_swap_b32 v76, v77\nv_add_f32 v72, v72, v73\nv_add_f32 v76, v76, v77\nv_add_u32 v81, s67, v80")
    for sh in ("row_ror:8", "row_ror:4", "row_ror:2", "row_ror:1"):
        out += L(f"v_add_f32 v72, v72, v72 {sh} row_mask:0xf bank_mask:0xf\nv_add_f32 v76, v76, v76 {sh} row_mask:0xf bank_mask:0xf")
    out += L(f"""
    v_ashrrev_i32 v82, 31, v72
    v_or_b32 v82, 0x80000000, v82
    v_xor_b32 v82, v82, v72
    v_and_b32 v82, 0xfffff800, v82
    v_sub_u32 v81, 2047, v81
    v_or_b32 v82, v82, v81
    v_max_u32 v82, 1, v82
    """) + sigmoid(76, 77) + L(f"""
    s_lshl_b32 s72, s{sWAVE}, 4
    s_add_u32 s72, s72, {LDS_R}
    v_lshl_add_u32 v80, v80, 2, s72
    ds_write_b32 v80, v82
    ds_write_b32 v80, v72 offset:64
    ds_write_b32 v80, v76 offset:128
    """)
    return out
def rg4_store():
    return L(f"""
    v_and_b32 v20, 31, v0
    v_lshlrev_b32 v20, 2, v20
    v_add_u32 v21, {LDS_R}, v20
    ds_read_b32 v19, v21
    ds_read_b32 v21, v21 offset:64
    s_min_u32 s64, s{sWAVE}, 1
    s_lshl_b32 s64, s64, 29
    v_and_b32 v22, 32, v0
    v_lshl_or_b32 v20, v22, 24, v20
    v_or_b32 v20, s64, v20
    v_and_b32 v22, 16, v0
    v_lshl_or_b32 v18, v22, 25, v20
    s_lshl_b32 s72, s30, 7
    s_add_u32 s72, s72, {WS_RG}
    """) + [6, I(f"buffer_store_dword v21, v20, {WS}, s72 offen sc1", tag="RST")]
def key4_store():
    return L(f"""
    s_lshl_b32 s72, s30, 6
    s_add_u32 s72, s72, {WS_KEY}
    """) + [WAITV("RST"), I(f"buffer_store_dword v19, v18, {WS}, s72 offen sc1")]


def x_touch3(nl):
    pre = L(f"""
    s_lshl_b32 s64, s{sJ}, 1
    s_lshr_b32 s72, s{sH}, 3
    s_add_u32 s64, s64, s72
    s_lshl_b32 s64, s64, 2
    s_add_u32 s64, s64, s{sWAVE}
    s_mul_i32 s64, s64, 14336
    v_lshl_add_u32 v26, v0, 7, s64
    v_mov_b32 v27, {OOB}
    v_cmp_gt_u32 vcc, {nl}, v0
    s_nop 0
    s_nop 0
    v_cndmask_b32 v26, v27, v26, vcc
    v_accvgpr_write_b32 a242, v26
    """)
    return pre, [[I(f"s_mov_b32 s65, {n * nl * 128}"), I("v_accvgpr_read_b32 v26, a242"), touch(26, 56, "s65", nt=False)] for n in range(112 // nl)]
YLV = 1
def y_reduce2(hole):
    out = L(f"""
    L_y1:
    s_lshl_b32 s89, s{sH}, 1
    s_add_u32 s89, s89, s{sWAVE}
    s_cmp_ge_u32 s{sWAVE}, 2
    s_cselect_b32 s89, 28, s89
    s_cmp_ge_u32 s89, 28
    s_cbranch_scc1 L_y1r
    v_lshrrev_b32 v50, 4, v7
    v_lshrrev_b32 v51, 3, v50
    v_mul_u32_u24 v51, {FSTR}, v51
    v_and_b32 v52, 7, v50
    v_lshl_add_u32 v51, v52, 7, v51
    s_mov_b32 s90, {WS_FL}
    s_mov_b32 s88, {WS_FL + 8 * FSTR}
    s_mov_b32 s91, {SPIN_MAX}
    L_yp:
    buffer_load_dword v52, v51, {WS}, s90 offen sc1
    buffer_load_dword v53, v51, {WS}, s88 offen sc1
    s_waitcnt vmcnt(0)
    v_min_u32 v52, v52, v53
    v_cmp_gt_u32 vcc, {YLV}, v52
    s_sub_u32 s91, s91, 1
    s_cbranch_scc1 L_ypx
    s_cbranch_vccnz L_yp
    L_ypx:
    s_cmp_lt_u32 s89, 14
    s_cselect_b32 s90, 8, 12
    s_add_u32 s90, s90, {WS_SEL}
    buffer_load_dword v53, off, {WS}, s90 sc1
    v_lshrrev_b32 v51, 3, v50
    v_mul_u32_u24 v51, 3584, v51
    v_and_b32 v52, 7, v50
    v_lshl_add_u32 v51, v52, 4, v51
    s_lshl_b32 s88, s89, 7
    s_add_u32 s90, s88, {WS_YF}
    s_add_u32 s88, s88, {WS_Y}
    """)
    for n in range(14):
        out += L(f"buffer_load_dwordx4 v[{hole(n)}:{hole(n)+3}], v51, {WS}, s88 offen sc1\ns_add_u32 s88, s88, {8 * 3584}")
    out += L("s_branch L_y1r\nL_y2:\ns_cmp_ge_u32 s89, 28\ns_cbranch_scc1 L_y2r\ns_waitcnt vmcnt(24)")
    acc = [hole(0) + e for e in range(4)]; t = [hole(1) + e for e in range(4)]
    for n in range(1, 14): out += [I(f"v_add_f32 v{a}, v{hole(n) + e}, v{a}") for e, a in enumerate(acc)]
    out += [I(f"v_add_f32 v{a}, v{a}, v{a} row_ror:8 row_mask:0xf bank_mask:0xf") for a in acc]
    for sw in ("v_permlane16_swap_b32", "v_permlane32_swap_b32"):
        out += [I(f"v_mov_b32 v{x}, v{a}") for a, x in zip(acc, t)]
        out += [I(f"{sw} v{x}, v{a}") for a, x in zip(acc, t)]
        out += [I(f"v_add_f32 v{a}, v{x}, v{a}") for a, x in zip(acc, t)]
    for rep in range(2):
        for p in (acc[0], acc[2]):
            out += L(f"v_cvt_pk_bf16_f32 v51, v{p}, v{p+1}\nv_lshlrev_b32 v{p}, 16, v51\nv_and_b32 v{p+1}, 0xffff0000, v51")
        if rep == 0: out += [I(f"v_mul_f32 v{a}, v53, v{a}") for a in acc]
    out += L(f"""
    s_mov_b64 exec, 0xff
    buffer_store_dwordx4 v[{acc[0]}:{acc[3]}], v7, {WS}, s90 offen sc1
    s_mov_b64 exec, -1
    s_branch L_y2r
    L_y3:
    s_cmp_ge_u32 s89, 28
    s_cbranch_scc1 L_y3r
    v_mov_b32 v52, 1
    s_lshl_b32 s89, s89, 2
    s_add_u32 s89, s89, {WS_FH + 512}
    s_mov_b64 exec, 1
    s_waitcnt vmcnt(5)
    buffer_store_dword v52, off, {WS}, s89 sc1
    s_mov_b64 exec, -1
    s_branch L_y3r
    """)
    return out

def wo_touch3():
    return L(f"""
    s_load_dwordx2 s[68:69], s[0:1], {A_WO}
    s_lshl_b32 s72, s{sH}, 3
    s_add_u32 s72, s72, s{sJ}
    s_lshl_b32 s72, s72, 2
    s_add_u32 s72, s72, s{sWAVE}
    s_mul_i32 s72, s72, 7168
    v_min_u32 v28, 55, v0
    v_lshlrev_b32 v28, 7, v28
    s_mov_b32 s70, {4096 * 896}
    """) + [24, I("s_and_b32 s69, s69, 0xffff"), touch(28, 68, "s72", nt=False)]
def wo_events(sEV, srdreg, nt):
    out = L(f"""
    L_ev:
    s_sub_u32 s{sEV}, s{sEV}, 1
    s_cmp_eq_u32 s{sEV}, 0
    s_cbranch_scc1 L_ev1
    s_lshl_b32 s3, s{sH}, 3
    s_add_u32 s3, s3, s{sJ}
    s_lshl_b32 s3, s3, 2
    s_add_u32 s3, s3, s{sWAVE}
    s_mul_i32 s3, s3, 7168
    s_mul_i32 s30, s{sWAVE}, 7168
    s_add_u32 m0, s30, 131072
    s_nop 0
    """)
    d = lambda j: I(f"buffer_load_dwordx4 v7, s[{srdreg}:{srdreg+3}], s3 offen offset:{1024*j} {nt} lds")
    out += [d(j) for j in range(4)] + L("s_add_u32 m0, s30, 135168\ns_add_u32 s3, s3, 4096") + [d(j) for j in range(3)] + L(f"""
    s_branch L_evr
    L_ev1:
    v_lshrrev_b32 v10, 6, v7
    v_mul_u32_u24 v10, 896, v10
    v_and_b32 v11, 48, v7
    s_lshr_b32 s3, s{sWAVE}, 1
    s_lshl_b32 s3, s3, 6
    s_and_b32 s30, s{sWAVE}, 1
    s_lshl_b32 s30, s30, 3
    s_add_u32 s3, s3, s30
    s_add_u32 s3, s3, 131072
    v_add3_u32 v10, v10, v11, s3
    """) + [I(f"ds_read_b64_tr_b16 a[{196+4*n+2*j}:{197+4*n+2*j}], v10 offset:{n*128 + j*14336}") for n in range(7) for j in range(2)] + L(f"""
    s_lshl_b32 s3, s{sH}, 18
    s_lshl_b32 s30, s{sJ}, 10
    s_add_u32 s3, s3, s30
    s_lshl_b32 s30, s{sWAVE}, 13
    s_add_u32 s3, s3, s30
    s_add_u32 s3, s3, {WS_WO}
    s_waitcnt lgkmcnt(0)
    """)
    for n in range(7): out += L(f"buffer_store_dwordx4 a[{196+4*n}:{199+4*n}], v7, {WS}, s3 offen sc1\ns_add_u32 s3, s3, 32768")
    return out + L("s_branch L_evr")

def wo4(srdreg, nt):
    pre = L(f"""
    s_and_b32 s29, s{sJ}, 7
    s_lshl_b32 s34, s29, 10
    s_lshl3_add_u32 s30, s{sH}, s29
    s_lshl2_add_u32 s30, s30, s{sWAVE}
    s_mul_i32 s30, s30, 7168
    s_lshl_b32 s29, s{sH}, 18
    s_add_u32 s34, s34, s29
    s_lshl_b32 s29, s{sWAVE}, 13
    s_add_u32 s34, s34, s29
    s_add_u32 s34, s34, {WS_WO}
    s_mul_i32 s29, s{sWAVE}, 7168
    """)
    d = lambda j: I(f"buffer_load_dwordx4 v7, s[{srdreg}:{srdreg+3}], s30 offen offset:{1024*j} {nt} lds", tag="WO")
    dma = [I("s_add_u32 m0, s29, 131072")] + [d(j) for j in range(4)] + L("s_add_u32 m0, s29, 135168\ns_add_u32 s30, s30, 4096") + [d(j) for j in range(3)]
    adr = L(f"""
    v_lshrrev_b32 v6, 6, v7
    v_mul_u32_u24 v6, 896, v6
    v_and_b32 v5, 48, v7
    s_lshr_b32 s29, s{sWAVE}, 1
    s_lshl_b32 s29, s29, 6
    s_and_b32 s30, s{sWAVE}, 1
    s_lshl3_add_u32 s29, s30, s29
    s_add_u32 s29, s29, 131072
    v_add3_u32 v5, v6, v5, s29
    """)
    rd = [I(f"ds_read_b64_tr_b16 a[{196+4*n+2*j}:{197+4*n+2*j}], v5 offset:{n*128 + j*14336}") for n in range(7) for j in range(2)]
    st = [[I(f"s_add_u32 s3, s34, {n * 32768}"), I(f"buffer_store_dwordx4 a[{196+4*n}:{199+4*n}], v7, {WS}, s3 offen sc1", tag="WST")] for n in range(7)]
    return pre, dma, adr, rd, st

def wo_touch4(nl):
    pre = L(f"""
    s_and_b32 s64, s{sJ}, 7
    s_lshl3_add_u32 s64, s{sH}, s64
    s_lshl2_add_u32 s64, s64, s{sWAVE}
    s_mul_i32 s64, s64, 7168
    v_lshl_add_u32 v22, v0, 7, s64
    v_mov_b32 v21, {OOB}
    v_cmp_gt_u32 vcc, {nl}, v0
    s_nop 0
    s_nop 0
    v_cndmask_b32 v22, v21, v22, vcc
    """)
    return pre, [[touch(22, 60, 0, nt=False), I(f"v_add_u32 v22, {nl * 128}, v22")] for n in range(56 // nl)]

def wo_consts(aWD, aOB):
    return L(f"""
    v_lshrrev_b32 v26, 4, v0
    v_bfe_u32 v27, v0, 1, 2
    v_xor_b32 v26, v26, v27
    v_lshlrev_b32 v26, 1, v26
    v_and_or_b32 v26, v0, 1, v26
    v_lshlrev_b32 v26, 4, v26
    v_lshrrev_b32 v27, 3, v0
    v_mul_u32_u24 v27, 896, v27
    s_mul_i32 s64, s{sWAVE}, {64 * 896}
    v_add3_u32 v26, v26, v27, s64
    v_accvgpr_write_b32 a{aWD}, v26
    v_bfe_u32 v26, v0, 3, 2
    v_lshlrev_b32 v26, 2, v26
    v_and_or_b32 v26, v0, 3, v26
    v_lshlrev_b32 v26, 3, v26
    v_lshrrev_b32 v27, 2, v0
    v_lshl_or_b32 v26, v27, 7, v26
    v_accvgpr_write_b32 a{aOB}, v26
    """)

def share_setup(sKV):
    return L(f"""
    s_and_b32 s64, s{sJ}, 7
    s_lshl2_add_u32 s64, s64, s{sWAVE}
    s_lshl_b32 s64, s64, 14
    v_lshrrev_b32 v26, 2, v0
    v_and_b32 v27, 3, v0
    v_lshlrev_b32 v27, 7, v27
    v_lshl_add_u32 v26, v26, 13, v27
    v_add_u32 v26, s64, v26
    v_and_b32 v27, 56, v0
    v_lshl_add_u32 v26, v27, 24, v26
    v_accvgpr_write_b32 a236, v26
    s_lshr_b32 s64, s{sH}, 3
    s_lshl1_add_u32 s64, s{sKV}, s64
    s_lshl_b32 s64, s64, 5
    s_add_u32 s64, s64, s{sWAVE}
    s_lshl_b32 s64, s64, 14
    v_and_b32 v26, 7, v0
    v_lshlrev_b32 v26, 11, v26
    v_and_b32 v27, 8, v0
    v_lshl_add_u32 v26, v27, 18, v26
    v_add_u32 v26, s64, v26
    v_and_b32 v27, 48, v0
    v_lshl_add_u32 v26, v27, 24, v26
    v_accvgpr_write_b32 a237, v26
    """)
def share_w(sw, t, fl): return [I(f"s_mov_b32 s65, {t * 64 * 8192}"), I("v_accvgpr_read_b32 v26, a236"), I(f"buffer_load_dword a{JUNK}, v26, s[{sw}:{sw+3}], s65 offen {fl}", tag="TOUCH")]
def share_c(sc, t): return [I("v_accvgpr_read_b32 v26, a237"), I(f"buffer_load_dword a{JUNK}, v26, s[{sc}:{sc+3}], 0 offen offset:{t * 128}", tag="TOUCH")]
```

```python
import sys
from att3 import *
import kvq, side, hw, asmlib, att3, q2, red3
from kvq import K, seq_fit
from q2 import VQ, place_vm, place_reads
opt = dict(stamp="0", v="1", thr=str(2.0 ** 40), lo=str(2.0 ** -60), m0="16", fine="0", dbgst="0", dbgl="0,3,6,7,14,18,21",
           cw="1", w1="0", q0="1", ramp="00", eo="0", pc="0", sw="1", r3="1", lagv="16", lag="8",
           pcq="4", tQ="9", tW="5", tH="7", tc="6,13", tg="113", xs_="20", odh="45", ne="8", jy="6", tl="1",
           k15="8", kst="2224a56", kf="0", v15="4", vst="2204444", vf="2", nq="8", w0l="24", ext="1", sent="0", sg="30", mk="044", s5="1", odh5="26", efw="5", efg="52", wi="0", sw_="0", sc_="0", swf="nt", hi0="44", hi1="108", rv="0", eh="1", bpv="0", bpvd="4", bpvk="20", bop="1", bopk="2.0", bkk="8.0", bkv="1", bq="0", tB="13", bsp="5", l4="44", wn="2221",
           ntw="nt", ntt="", osf="sc1", stf="sc1", dfl="sc1", hot="00", npk="16")
for a in sys.argv[1:]:
    k, v = a.split("="); assert k in opt, k; opt[k] = v
O = lambda k: int(opt[k])
STAMP = opt["stamp"] == "1"
kvq.HOT = opt["hot"]; kvq.NTW = opt["ntw"]; side.NTT = opt["ntt"]; kvq.STF = opt["stf"]; att3.DFL = opt["dfl"]; side.OSF = opt["osf"]
side.EPAR = 2; side.NE = O("ne"); side.SELLV = 1; side.YLV = 4; hw.MAP = "0"
side.ROWMAP = "s_lshr_b32 s73, s72, 1\ns_sub_u32 s65, 7, s73\ns_bitcmp1_b32 s72, 0\ns_cselect_b32 s73, s65, s73\ns_lshl_b32 s73, s73, 4"
sH, sJ, sSTK, sKV, sFL = 41, 42, 44, 45, 45
XS = O('xs_'); assert XS in (18, 20)
JC = XS // 2
FSH = 7
aST = 250
NM0 = hex(f2u(-float(opt['m0'])))
BOP = O('bop')
BPV.update(on=O('bpv'), db=O('bpvd'), k=float(opt['bpvk']))
red3.WI = O('wi')
NEVER = 0x7fff
SENT = O('sent')
EXT = O('ext')
SW = O('sw')
def stamp(t=10):
    if not STAMP: return []
    return L(f"""s_memrealtime s[36:37]
    s_memtime s[98:99]
    v_accvgpr_read_b32 v{t}, a{aST}
    v_accvgpr_read_b32 v{t+1}, a{aST+1}
    s_mov_b32 s100, m0
    s_mov_b32 m0, s{sSTK}
    s_waitcnt lgkmcnt(0)
    v_writelane_b32 v{t}, s98, m0
    v_writelane_b32 v{t+1}, s36, m0
    s_add_u32 s{sSTK}, s{sSTK}, 1
    s_mov_b32 m0, s100
    v_accvgpr_write_b32 a{aST}, v{t}
    v_accvgpr_write_b32 a{aST+1}, v{t+1}""")
fst = lambda n, t=10: stamp(t) if opt['fine'] == str(n) else []

F1_LOAD = f"buffer_load_dword v24, v13, {WSR}, s46 offen sc1"
F2_LOAD = f"buffer_load_dword v24, v{A.vFL}, {WSR}, s46 offen sc1"
FL_LOAD = f"buffer_load_dword v{A.vRL + 1}, v{A.vFL}, {WSR}, s46 offen sc1"
FP_LOAD = f"buffer_load_dword v{A.vRL}, off, {WSR}, s47 sc1"
ZZ = lambda: [I(f"v_mov_b32 v{A.vP1 + e}, 0") for e in range(4)]
SELM = lambda: L(f"""
    v_mov_b32 v16, 0x3f80
    v_lshrrev_b32 v17, 8, v{A.vL16}
    v_bfe_u32 v18, v{A.vL16}, 6, 2
    v_and_b32 v19, 16, v{A.vL16}
    v_lshlrev_b32 v19, v19, v16
    v_cmp_eq_u32 vcc, v17, v18
    v_and_b32 v16, 32, v{A.vL16}
    v_accvgpr_write_b32 a244, 0
    v_accvgpr_write_b32 a245, 0
    v_cndmask_b32 v19, 0, v19, vcc
    v_cmp_eq_u32 vcc, 0, v16
    v_accvgpr_write_b32 a248, 0
    v_accvgpr_write_b32 a249, 0
    v_cndmask_b32 v17, 0, v19, vcc
    v_sub_u32 v18, v19, v17
    v_accvgpr_write_b32 a246, v17
    v_accvgpr_write_b32 a247, v18
    """)

def first_qk(cv_late):
    if not cv_late:
        g = Gaps(qk_mfmas(0, "nm")); weave_reads(g, 3, 1, [("T", 1)])
        blocks = [(0, 0), (0, 1), (1, 0), (1, 1)]; rdy = [11, 19, 27, 35]
    else:
        m = lambda kb, qb, ks, c=None: mfma(R("v", Sreg(0, kb, qb), 4), R("a", Freg(kb, ks), 4), R("a", Qreg(qb, ks), 4), c or R("v", Sreg(0, kb, qb), 4))
        ms = [m(kb, qb, ks, R("v", A.vNM + 4 * qb, 4) if n == 0 else None) for kb in range(2) for qb in range(2) for n, ks in enumerate(range(6) if qb == 0 else range(5, -1, -1))]
        ms += [m(0, 0, 6), m(0, 1, 6), m(1, 1, 6), m(1, 0, 6), m(0, 0, 7), m(1, 0, 7), m(0, 1, 7), m(1, 1, 7)]
        g = Gaps(ms + qk_mfmas(0, "nm")[32:])
        for f, k in enumerate([0, 1, 2, 4, 5, 6, 8, 9]): g.put(k, rd_frag(3, 1, f, Freg(1, f)))
        g.put_s(11, NEED(R("a", Freg(1, 0), 24))); g.put_s(22, NEED(R("a", Freg(1, 6), 8)))
        for f, k in enumerate([13, 14, 16, 17, 19, 20, 27, 31]): g.put(k, rd_frag(3, 2, f, Freg(2, f)))
        for f, k in enumerate([25, 28, 29, 33, 34, 36, 37, 39]): g.put(k, rd_frag(3, 3, f, Freg(3, f)))
        g.put_s(31, NEED(R("a", Freg(2, 0), 24))); g.put_s(37, NEED(R("a", Freg(2, 6), 8)))
        g.put_s(46, WAITV([("T", 1)], lgkm0=True)); g.put_s(47, I("s_barrier"))
        for f, r in enumerate(rd_batch(1, 0)): g.put(48 + RPAT[0][f], r)
        g.put_s(62, NEED(R("a", Freg(0, 0), 32)))
        blocks = [(0, 0), (1, 0), (0, 1), (1, 1)]; rdy = [32, 33, 34, 35]
    sm = SM(sm_groups(0, blocks + blocks_of(1), (0, 1)), ready={n: rdy[n >> 1] for n in range(8)})
    return g, sm

def ramp():
    nw, nc = int(opt['ramp'][0]), int(opt['ramp'][1])
    if not nw: return [], []
    pre = L(f"""
    v_lshrrev_b32 v28, 2, v0
    v_add_u32 v28, 1, v28
    v_lshrrev_b32 v29, 1, v28
    v_and_b32 v28, 1, v28
    v_lshlrev_b32 v28, 7, v28
    v_lshl_or_b32 v28, v29, 19, v28
    v_and_b32 v29, 1, v0
    v_lshl_or_b32 v28, v29, 8, v28
    v_bfe_u32 v29, v0, 1, 1
    v_lshl_or_b32 v28, v29, 13, v28
    s_lshl_b32 s64, s{K.sWAVE}, 14
    s_add_u32 s64, s64, s75
    v_cmp_gt_u32 vcc, {4 * nw}, v0
    v_add_u32 v28, s64, v28
    v_mov_b32 v31, {side.OOB}
    v_cndmask_b32 v16, v31, v28, vcc
    """) + (L(f"""
    v_lshrrev_b32 v28, 3, v0
    v_add_u32 v28, 1, v28
    v_lshrrev_b32 v29, 1, v28
    v_and_b32 v28, 1, v28
    v_lshlrev_b32 v28, 21, v28
    v_lshl_or_b32 v28, v29, 7, v28
    v_and_b32 v29, 7, v0
    v_lshl_or_b32 v28, v29, 11, v28
    s_lshr_b32 s64, s{sH}, 3
    s_lshl1_add_u32 s64, s{sKV}, s64
    s_lshl_b32 s64, s64, 5
    s_add_u32 s64, s64, s{K.sWAVE}
    s_lshl_b32 s64, s64, 14
    v_cmp_gt_u32 vcc, {8 * nc}, v0
    v_add_u32 v28, s64, v28
    v_cndmask_b32 v17, v31, v28, vcc
    """) if opt['rv'] == '0' else L(f"""
    v_lshrrev_b32 v28, 4, v0
    v_add_u32 v28, 1, v28
    v_lshrrev_b32 v29, 1, v28
    v_and_b32 v28, 1, v28
    v_lshlrev_b32 v28, 21, v28
    v_lshl_or_b32 v28, v29, 7, v28
    v_and_b32 v29, 15, v0
    v_lshl_or_b32 v28, v29, 11, v28
    s_lshr_b32 s64, s{sH}, 3
    s_lshr_b32 s67, s{K.sWAVE}, 1
    s_lshl1_add_u32 s64, s64, s67
    s_lshl_b32 s64, s64, 4
    s_and_b32 s67, s{K.sWAVE}, 1
    s_add_u32 s64, s64, s67
    s_lshl_b32 s64, s64, 15
    v_cmp_gt_u32 vcc, {16 * nc}, v0
    v_add_u32 v28, s64, v28
    v_cndmask_b32 v17, v31, v28, vcc
    s_sub_u32 s64, s{sJ}, 8
    s_and_b32 s64, s64, {side.OOB}
    v_or_b32 v16, s64, v16
    v_or_b32 v17, s64, v17
    """))
    return pre, [I(f"buffer_load_dword a240, v16, s[{K.S_W}:{K.S_W + 3}], 0 offen {opt['ntw']}", tag="TOUCH"), side.touch(17, K.S_C, 0, nt=False)]

def build_front(c):
    c.block("entry", f"""
    s_cmp_lt_u32 s2, 256
    s_cbranch_scc1 L_go
    s_endpgm
    L_go:
    {'s_memrealtime s[36:37]' + chr(10) + 's_memtime s[98:99]' if STAMP else ''}
    s_load_dwordx8 s[80:87], s[0:1], {A_X}
    s_load_dwordx4 s[88:91], s[0:1], {A_WUV}
    s_load_dwordx2 s[92:93], s[0:1], {A_WR}
    s_load_dwordx2 s[30:31], s[0:1], {A_GW}
    s_load_dwordx4 s[4:7], s[0:1], {A_DBG}
    v_lshrrev_b32 v24, 6, v0
    v_and_b32 v0, 63, v0
    v_readfirstlane_b32 s{K.sWAVE}, v24
    """, side.code_touch() if opt['pc'] == '0' else side.code_touch()[:-1], f"""
    s_and_b32 s{sH}, s2, 7
    s_lshr_b32 s{sJ}, s2, 3
    s_lshr_b32 s64, s{sJ}, 4
    s_lshl_b32 s64, s64, 3
    s_add_u32 s{sH}, s{sH}, s64
    s_and_b32 s{sJ}, s{sJ}, 15
    s_lshr_b32 s{sKV}, s{sJ}, 3
    s_xor_b32 s{sKV}, s{sKV}, {SW}
    s_mov_b32 s{sSTK}, 0
    v_accvgpr_write_b32 a{aST}, 0
    v_accvgpr_write_b32 a{aST+1}, 0
    v_and_b32 v24, 15, v0
    v_lshrrev_b32 v25, 4, v0
    v_lshlrev_b32 v{K.vST}, 4, v0
    s_and_b32 s65, s{K.sWAVE}, 1
    s_lshr_b32 s66, s{K.sWAVE}, 1
    {kvq.addr_wd()}
    {kvq.addr_cd()}
    s_mov_b32 s{K.sWOFF}, 0
    s_mov_b32 s{K.sCOFF}, 0
    s_lshl_b32 s{K.sM0W}, s{K.sWAVE}, 12
    s_add_u32 s{K.sM0C}, s{K.sM0W}, 65536
    s_lshl_b32 s74, s{sH}, 9
    s_sub_u32 s{K.S_W + 2}, {1024*8192}, s74
    s_mov_b32 s{K.S_W + 3}, 0x20000
    s_and_b32 s75, s{sJ}, 7
    s_lshl_b32 s75, s75, 16
    s_sub_u32 s{K.S_C + 2}, {2048*2048}, s75
    s_mov_b32 s{K.S_C + 3}, 0x20000
    """, ramp()[0], L(kvq.addr_rd()) + side.c_touch_setup() if opt['eo'] == '1' else [], f"""
    s_mov_b32 m0, s{K.sM0W}
    s_cmp_eq_u32 s{sKV}, 0
    s_cselect_b64 s[72:73], s[86:87], s[88:89]
    s_add_u32 s{K.S_W}, s72, s74
    s_addc_u32 s{K.S_W + 1}, s73, 0
    s_and_b32 s{K.S_W + 1}, s{K.S_W + 1}, 0xffff
    """, kvq.unit_w(0)[1:], f"""
    s_add_u32 s{K.S_C}, s82, s75
    s_addc_u32 s{K.S_C + 1}, s83, 0
    s_and_b32 s{K.S_C + 1}, s{K.S_C + 1}, 0xffff
    """, kvq.unit_c(0), ramp()[1], kvq.unit_w(1) if opt['w1'] == '0' else [], stamp(26)[2:], L(kvq.addr_rd()) + side.c_touch_setup() if opt['eo'] == '0' else [],
        side.code_addr(28, 29) + side.code_touch()[-1:] if opt['pc'] == '1' else [], f"""
    {srd(32, 82, 2048*2048)}
    {srd(K.S_X, 80, 2048*896)}
    {srd(60, 92, 896)}
    {srd(68, 30, 896)}
    {srd(K.S_WS, 6, 1 << 28)}
    {srd(K.S_DBG, 4, 256)}
    s_add_u32 s72, s84, s74
    s_addc_u32 s73, s85, 0
    s_sub_u32 s75, {448*8192}, s74
    {srd(K.S_WQ, 72, "s75")}
    s_mov_b32 s{K.sSC}, {hex(f2u(LOG2E_16))}
    s_mov_b32 s{K.sWQOFF}, 0
    s_mul_i32 s{K.sXOFF}, s{sJ}, {128*896}
    s_lshl_b32 s72, s{sKV}, 24
    s_lshl_b32 s73, s{sH}, 20
    s_add_u32 s72, s72, s73
    s_bfe_u32 s64, s{sJ}, 0x20001
    s_lshl_b32 s64, s64, 15
    s_add_u32 s72, s72, s64
    s_lshl_b32 s64, s66, 17
    s_add_u32 s72, s72, s64
    s_and_b32 s67, s{sJ}, 1
    s_cmp_eq_u32 s{sKV}, 0
    s_cselect_b32 s64, 12, 14
    s_cselect_b32 s75, 14, 10
    s_lshl_b32 s67, s67, s75
    s_add_u32 s72, s72, s67
    s_lshl_b32 s64, s65, s64
    s_add_u32 s{K.sOOFF}, s72, s64
    """, side.h_touch_srd(), f"s_load_dwordx2 s[96:97], s[0:1], {A_OUT}", f"s_cmp_lt_u32 s{sJ}, 8\ns_cbranch_scc0 L_kv1")
    pcq, tQ, tH, tW = O("pcq"), O("tQ"), O("tH"), O("tW")
    for vt in (0, 1):
        o = "v" if vt else "k"; pt = vt ^ SW
        frags = [kvq.rd_c(0, 0, 0, 0), kvq.rd_c(0, 0, 0, 1)] + kvq.rd_w_unit(0, 0, 0) + kvq.rd_w_unit(0, 1, 1)
        kvq.BIAS.update(kv="v[20:23]" if O('bkv') else None, q="v[28:31]" if O('bq') else None, rows=None)
        Q0 = opt['q0'] == '1'
        out = side.z_store()[:-3] + side.r4_loads() + side.z_store()[-3:] if vt == 0 else L(srd(60, 90, 4096*896))
        if Q0:
            frags, g0 = q2.tile0(pt)
            cw = kvq.unit_c(1) + kvq.unit_w(2); w1 = kvq.unit_w(1) if opt['w1'] == '1' else []
            if opt['cw'] == '0': out = cw + out; cw = []
            out = out + w1 + [WAITV([("C", 0), ("W", 0)], lgkm0=True), I("s_barrier")] + stamp(26) + frags + cw
            if vt == 0: out += side.r4_compute()
        else:
            out += kvq.unit_w(2) + kvq.unit_c(1) + [WAITV([("W", 1), ("C", 0), ("W", 0)], lgkm0=True), I("s_barrier")] + stamp(26) + frags
            if vt == 0: out += side.r4_compute()
            out += [NEED(R("a", kvq.wfrag(0, 0, 0), 8), R("a", 160, 8))]
        for t in range(15):
            dma = kvq.kv_dma(t)
            if vt == 1 and t == tW:
                pre, uns = side.wo2_dma(); dma[1] = dma[1] + [uns[0]]
            if vt == 1 and t == tW + 1: dma[1] = dma[1] + [uns[1]]
            if vt == 0 and t == tH - 5:
                pre, uns = hw.s1_weights()
            if vt == 0 and tH - 5 <= t <= tH + 1: dma[1] = dma[1] + [uns[t - tH + 5]]
            if vt == 0 and t == tH + 4:
                pre, un = hw.s6_down_dma(); dma[1] = dma[1] + [un]
            g = g0 if (Q0 and t == 0) else kvq.kv_tile(t, pt, dma, first=(t == 0), hi1=O('hi1') if len(dma[1]) < 3 else 108, hi0=O('hi0'))
            def fit(ins, k, pace=0):
                k, left = seq_fit(g, ins, k, pace); assert not left, (t, len(left)); return k
            def mm(ms, k):
                k |= 1
                for m in ms: g.put(k, m)
                return k
            tch = []
            if pcq and (t + pcq) % 4 == 0 and t + pcq < 16: tch += side.c_touch(32, (t + pcq) // 4)
            if O('sw_') or O('sc_'):
                if t == 0: fit(side.share_setup(sKV), 50)
                if O('sw_') and 3 < t + O('sw_') < 16: tch += side.share_w(K.S_W, t + O('sw_'), opt['swf'])
                if O('sc_') and 2 < t + O('sc_') < 16: tch += side.share_c(K.S_C, t + O('sc_'))
            if t == 1 and vt == 0: fit(side.z_signal(), 112)
            if t == 2 and vt == 0: assert fit(side.rg4_store(), 4, 1) < 42
            if t == 3: fit(side.z_load(), 50)
            if t == 4:
                k = fit(side.z_check(vt), 112)
                if vt == 0: fit(side.key4_store(), k + 1)
            if vt == 1:
                pre_, tl = side.q_touch3(K.S_WQ)
                if t == tQ: fit(pre_, 60)
                if 0 <= t - tQ < len(tl): tch += tl[t - tQ]
                if t == tW: assert fit(pre, 42) < 80
                if t == tW + 2: g.sc[110][0].tag = g.sc[110][0].tag + ["WO"]
                if t == tW + 3: assert fit(side.wo2_reads(), 2, 2) < 108
                if t == 2: fit(SELM() + [I(f"v_accvgpr_write_b32 a{232 + e}, -1") for e in range(4) if SENT], 10, 1)
            if vt == 0:
                if t == tH - 5: assert fit(pre, 42) < 90
                if t == tH: fit(hw.s2_keys(), 4)
                if t == tH + 1: assert fit(hw.s3_top2(), 10, 1) < 108
                if t == tH + 2: fit(hw.s4_sel(), 4, 1)
                if t == tH + 3:
                    (r0, m0), (r1, m1) = hw.s5_gemm()
                    k = fit([WAITV("HW")] + r0, 50); k = mm(m0, max(k + 6, 78)); k = fit(r1, k + 1); mm(m1, max(k + 6, 110))
                if t == tH + 4: assert fit(pre, 4) < 44
                if t == tH + 5:
                    s7 = hw.s7_act(); fit(s7, 2, 1)
                    assert all(i.kind != "dsr" or i not in s7 for q in range(100, 128) for i in g.ve[q])
                if t == tH + 6:
                    pre, ms, yadr, yst = hw.s8_down(); link(yadr + yst)
                    k = fit(pre, 2); k = mm(ms, max(k + 2, 46))
            if t == 14: assert fit(kvq.addr_q(), 2) < 46
            if t == 14: fit(L(f"""
                s_mul_i32 s72, s{sH}, {FSTR}
                s_add_u32 s46, s72, {WS_FL}
                s_lshl_b32 s{sFL}, s{sJ}, {FSH}
                s_add_u32 s{sFL}, s{sFL}, s46
                s_sub_u32 s66, 15, s{sJ}
                s_min_u32 s66, s66, s{sJ}
                s_lshl_b32 s47, s66, {FSH}
                s_add_u32 s47, s47, s46
                s_add_u32 s47, s47, {2048 + (0 if vt else 64)}
                s_lshl_b32 s65, s{sH}, 3
                s_add_u32 s65, s65, s66
                s_mul_i32 s{A.sPO}, s65, {PO_STRIDE}
                s_add_u32 s{A.sPO}, s{A.sPO}, {WS_PO}
                s_lshl_b32 s65, s{sJ}, 4
                s_add_u32 s65, s65, s{sH}
                s_mul_i32 s{A.sOP}, s65, {OP_HEAD}
                s_mul_i32 s65, s{A.sWAVE}, {OP_HEAD // 4}
                s_add_u32 s{A.sOP}, s{A.sOP}, s65
                s_add_u32 s{A.sOP}, s{A.sOP}, {WS_OP}
                s_sub_u32 s65, 15, s66
                s_lshl_b32 s65, s65, 16
                s_lshl_b32 s64, s{sH}, 20
                s_add_u32 s{A.sQ}, s64, s65
                s_lshl_b32 s65, s{A.sWAVE}, 14
                s_add_u32 s{A.sQ}, s{A.sQ}, s65
                s_add_u32 s{A.sQ}, s{A.sQ}, {WS_Q}
                s_mov_b32 s{A.sTHR}, {hex(f2u(float(opt['thr'])))}
                s_mov_b32 s{A.sMODE}, 1
                s_sub_u32 s64, s{sJ}, {JC}
                s_and_b32 s{A.sNC}, s64, {side.OOB}
                """), 50)
            tv = 26 if t < O('tB') - 1 else 24
            if str(t) in opt['tc'].split(','): tch += side.code_addr(26, 26) + [side.touch(26, 76, 0, nt=False)]
            fit(tch, O('tg'))
            if O('bkv'):
                if t == 0:
                    vb = VQ()
                    smp = lambda y: [kvq.kacc(y, x)[1] + e for x in range(2) for e in range(4)]
                    est = []
                    for y, r in ((1, 20), (2, 21)):
                        v = smp(y)
                        est.append(L(f"v_max3_f32 v{r}, |v{v[0]}|, |v{v[1]}|, |v{v[2]}|\nv_max3_f32 v{r}, |v{v[3]}|, |v{v[4]}|, v{r}\nv_max3_f32 v{r}, |v{v[5]}|, |v{v[6]}|, v{r}"))
                    k = fit(est[0], 16)
                    k = fit(est[1] + L(f"v_min_f32 v20, v20, v21\nv_mul_f32 v20, {hex(f2u(float(opt['bkk'])))}, v20") + [I(f"v_mov_b32 v{20 + e}, v20") for e in (1, 2, 3)] +
                            L("v_accvgpr_write_b32 a241, v20"), max(k, 24))
                    assert k < 38, k
                if t == O('tB') - 1: fit(L("v_accvgpr_read_b32 v27, a241"), 1)
                for y in range(1, 8):
                    if t == O('tB') - (y < O('bsp')):
                        vb.add([I(f"v_sub_f32 v{kvq.kacc(y, x)[1] + e}, v{kvq.kacc(y, x)[1] + e}, v27") for x in range(8) for e in range(4) if kvq.kv_c0(y, x) != "0"], 128 * t + 16 * y + 20)
                vb.run(g, 128 * t)
                for at, i in vb.placed:
                    q = min(q for q in range(128) if any(i is x for x in g.ve[q]))
                    assert 128 * t + q < at + 128 - 22, (t, at, q)
                assert t < 14 or not vb.q
            out += g.flat()
            if t in (0, 1, 11, 14) or opt['fine'] == '1': out += stamp(tv)
        flat = lambda gs: [i for x in gs for i in x]
        base = f"s_lshl_b32 s{A.sK}, s{sH}, 20\ns_mov_b32 s{A.sCNT}, 0\ns_lshl_b32 s{A.sJ[2][1]}, s{sH}, 18\ns_add_u32 s{A.sJ[2][1]}, s{A.sJ[2][1]}, {WS_WO}\ns_add_u32 s{A.sVn}, s{A.sJ[2][1]}, 65536\n"
        (c1, a1), (c2, a2), (c3, a3) = A.sJ
        jumps = L(base + (f"""
            s_add_u32 s64, s{sJ}, 1
            s_min_u32 s64, s64, {JC}
            s_sub_u32 s{A.sIT}, s64, {2 + EXT}
            s_lshl_b32 s{c3}, s64, 1
            s_sub_u32 s{c2}, s{c3}, 2
            s_lshl_b32 s64, s{sJ}, 16
            s_add_u32 s{a2}, s{A.sK}, s64
            s_sub_u32 s{a1}, {34 * 32768}, s64
            s_add_u32 s{a1}, s{a1}, s{A.sK}
            s_lshl_b32 s64, s{sJ}, 1
            s_sub_u32 s64, 32, s64
            s_cmp_ge_u32 s{sJ}, {JC}
            s_cselect_b32 s{c1}, s64, {NEVER}
            """ if vt else f"""
            s_sub_u32 s{A.sIT}, s{sJ}, 1
            s_mov_b32 s{c2}, {NEVER}
            s_mov_b32 s{a2}, 0
            s_add_u32 s{a1}, s{A.sK}, {XS * 32768}
            s_lshl_b32 s64, s{sJ}, 1
            s_add_u32 s65, s64, 4
            s_add_u32 s64, s64, 2
            s_cmp_le_u32 s{sJ}, {15 - JC}
            s_cselect_b32 s{c1}, s65, {NEVER}
            s_cselect_b32 s{c3}, {34 - XS}, s64
            """) + f"s_mov_b32 s{A.sKP}, 0")
        w0 = L("v_mov_b32 v12, 1") + side.lane0_wave0(15)
        w1_ = L(f"""
            s_mov_b32 s{A.sREQ}, {(0x500 if vt else 0x543) if EXT else (0x4003 if vt else 0x43)}
            {'' if vt else f's_cmp_lt_u32 s{sJ}, 2' + chr(10) + f's_cselect_b32 s{A.sREQ}, {0x504 if EXT else 4}, s{A.sREQ}'}
            s_lshl_b32 s64, s{A.sWAVE}, 14
            s_add_u32 s{A.sPB}, s64, s{A.sPO}
            s_add_u32 s{A.sPB + 1}, s{A.sPB}, 4096
            s_add_u32 s{A.sPB + 2}, s{A.sPB}, 8192
            s_add_u32 s{A.sPB + 3}, s{A.sPB}, 12288
            """)
        w3 = L(f"v_min_u32 v25, 15, v0\nv_lshlrev_b32 v25, {FSH}, v25\nv_{'max' if SW else 'min'}_u32 v13, {(8 if SW else 7) << FSH}, v25")
        w4 = L(f"s_lshl_b32 s{A.sM0}, s{A.sWAVE}, 13") + jumps[:8] + L(F1_LOAD) + jumps[8:]
        w5 = L(f"""
            v_add_u32 v10, s{A.sM0}, v{A.vL16}
            v_add_u32 v11, 0x1000, v10
            v_cmp_eq_u32 vcc, 0, v24
            s_lshl_b32 s64, s{A.sWAVE}, 10
            s_cbranch_vccnz L_f1s{vt}4
            L_f1r{vt}4:
            """) + dma_flat(3, A.sK, 10) + adv_k() + L(f"""
            v_mov_b32 v{A.vFL}, v25
            v_lshrrev_b32 v24, 4, v0
            v_lshlrev_b32 v24, 2, v24
            v_and_b32 v25, 15, v0
            v_sub_u32 v24, v24, v25
            s_add_u32 s64, s64, s{A.sPO}
            s_add_u32 s{A.sPS}, s64, 65536
            s_mov_b32 s{A.sLO}, {hex(f2u(float(opt['lo'])))}
            s_cmp_eq_u32 s{A.sWAVE}, 0
            s_cselect_b32 s{A.sRT}, s{A.sREQ}, 0
            s_lshr_b32 s64, s{K.sWAVE}, 1
            s_lshl_b32 s64, s64, 17
            s_and_b32 s65, s{K.sWAVE}, 1
            s_lshl_b32 s65, s65, 12
            s_add_u32 s64, s64, s65
            v_add_u32 v14, s64, v7
            v_mov_b32 v{A.vNEG}, 0xff800000
            """) + [I(f"v_cmp_lt_i32 s[{A.sTRI[e]}:{A.sTRI[e]+1}], {-e}, v24") for e in range(4)]
        head6 = L(f"""
            {F2_LOAD}
            v_mov_b32 v{A.vF0}, v15
            v_add_u32 v{A.vRD1}, 0x10000, v{A.vL16}
            v_mov_b32 v{A.vDM0}, v10
            v_mov_b32 v{A.vDM1}, v11
            s_mov_b64 s[60:61], s[76:77]
            s_mov_b32 s62, s78
            s_mov_b32 s63, 0x20000
            """) + side.code_addr(0, 10)
        kvq.X6LOW = True; asmlib.VMX = False
        body, left = kvq.kv_to_q(pt, O(o + "15"), [int(x, 16) for x in opt[o + "st"]], O(o + "f"), [side.flag_store(sFL, 15, 12)], lambda: fst(2, 26),
                                 {0: w0, 1: w1_, 2: yadr if vt == 0 else [], 3: w3, 4: w4, 5: w5}, head6, dma_flat(1, A.sK) + adv_k(),
                                 [] if vt else [[i] for i in yst], 16)
        asmlib.VMX = True
        assert len(left) == (8 if vt else 0), len(left)
        st = kvq.Storer(A.sT1, "KV4")
        park = [I(f"v_accvgpr_write_b32 a{128 + 4*n + e}, v{int(r[2:r.index(':')]) + e}") for n, (r, off) in enumerate(left) for e in range(4)]
        later = [st.st(R("a", 128 + 4 * n, 4), off) for n, (r, off) in enumerate(left)]
        xch = ([WAITV([("T", 3)], lgkm0=True), I("s_barrier")] + stamp(26) + rd_batch(3, 0) + q_from_lds() +
               L(f"""v_cmp_eq_u32 vcc, 0, v24
               v_mov_b32 v{A.vX + 7}, {3 if vt else 4 + EXT}
               v_or_b32 v{A.vRL + 1}, s{A.sNC}, v{A.vL16}
               s_cbranch_vccnz L_f1s{vt}5
               L_f1r{vt}5:
               s_mov_b32 s{A.sT1}, s{K.sOOFF}
               s_mov_b32 s{A.sT0}, s94
               s_cmp_eq_u32 s{A.sWAVE}, 0
               s_cselect_b32 s{A.sPT}, {(4 + EXT) * vt}, 0""") + [I(f"v_mov_b32 v{A.vNM + r}, {NM0}") for r in range(8)] + [NEED(R("a", 0, 96))])
        g, sm = first_qk(False)
        g.sc[46][0].tag = g.sc[46][0].tag + ["KVST", "KVM"]
        g.put(48 + 2, side.flag_store(sFL, A.vF0, A.vX + 7))
        nq = O('nq')
        qst = [([I(f"s_add_u32 s3, s{A.sQ}, {(n >> 2) * 4096}")] if n % 4 == 0 or n == nq else []) +
               [I(f"buffer_store_dwordx4 a[{4*n}:{4*n+3}], v{A.vRL + 1}, {WSR}, s3 offen offset:{(n & 3) * 1024} sc1", tag="QST")] for n in range(16)] if vt else []
        place_vm(g, [(dma_flat(2, A.sV), 1, 40)] + ([(flat(qst[:nq]), O('w0l'), 62)] if vt and nq else []))
        vq = VQ(); vq.add([I(f"v_mov_b32 v{r}, 0") for r in (A.vLS, A.vLS + 1)] + park)
        vq.run(g, 0, 0, 14)
        sm.run(g, 8, 64, final=False, upto=8)
        vq.run(g, 0)
        vq.force(g, 63, lambda i: i.op == "v_mov_b32")
        out += body + xch + g.flat() + stamp()
        if vt == 1:
            wo = [[I(f"s_add_u32 s3, s{A.sT0}, {n * 32768}"), I(w[1].text, tag="KV4")] for n, w in enumerate(side.wo2_stores())]
            w_1 = win_qk(0, "L_st8", "L_rt8", groups=qst[nq:], dma=(3, A.sK, adv_k()), sm=sm, lo_check=True, dhi=40, vq=vq)
            dump = [i for at, i in vq.q[:max(0, len(vq.q) - 16)]]; vq.q = vq.q[len(dump):]
            if O('v') > 1: sys.stderr.write(f"; start: dumped {len(dump)}\n")
            if EXT:
                n0 = int(opt['l4'][0]); st.tag = "KV3"; st.cur = None
                l4 = [[st.st(R("a", 128 + 4 * n, 4), off) for n, (r, off) in enumerate(left[:n0])]]; st.cur = None
                l4.append([st.st(R("a", 128 + 4 * n, 4), off) for n, (r, off) in enumerate(left[n0:], n0)])
                wc = [int(x) for x in opt['wn']]; wn = [wo[sum(wc[:n]):sum(wc[:n + 1])] for n in range(4)]; assert sum(wc) == 7
                if SENT:
                    mk = [([I(f"s_add_u32 s3, s{A.sOP}, {10240 + (n >> 2) * 14336}")] if n % 4 == 0 or True else []) +
                          [I(f"buffer_store_dwordx4 a[232:235], v{A.vL16}, {WSR}, s3 offen offset:{(n & 3) * 1024} sc1", tag="KV4")] for n in range(8)]
                    mc = [int(x) for x in opt['mk']]; assert sum(mc) == 8
                    for n in range(3): wn[1 + n] = wn[1 + n] + mk[sum(mc[:n]):sum(mc[:n + 1])]
            def early(g):
                vq.run(g, 0); assert not vq.q
                for q in range(g.n):
                    for i in g.ve[q]:
                        if i.op.startswith("v_accvgpr"): assert not any(set(i.reads) & set(g.m[x].writes) for x in range(q + 1)), (q, i.text)
            c.block("kv1", "L_kv1:", out, w_1, dump, fst(3),
                    win_pv(0, cz=True, pre_dma=(0, A.sV), tags=["QST"], vq_first=early,
                           post=L(f"s_xor_b32 s3, s47, 64\nv_mov_b32 v{A.vRL}, 1\nv_or_b32 v{A.vRL + 1}, s{A.sNC}, v{A.vF0}") + [side.flag_store(3, A.vRL + 1, A.vRL)]), fst(3),
                    *([win_qk(1, "L_st9", "L_rt9", groups=later, ghi=60, scal=mask_regs(False, (0, 1))), fst(3),
                       win_pv(1, groups=wo, glo=1, ghi=34, dlo=4, scal=mask_regs(False, (3,)), tail=L("s_branch L_loop_mid"))] if not EXT else
                      [win_qk(1, "L_st9", "L_rt9", groups=l4[0], ghi=60), fst(3), win_pv(1, groups=l4[1], ghi=60), fst(3),
                       win_qk(0, "L_st12", "L_rt12", extra=L(FL_LOAD), groups=wn[0], glo=6, scal=mask_regs(False, (0, 1))),
                       win_pv(0, tags=["KV3"], groups=wn[1], ghi=44, chk=L(f"v_cmp_gt_u32 vcc, 3, v{A.vRL + 1}\ns_cbranch_vccnz L_f4s\nL_f4r:"),
                              post=L(f"v_mov_b32 v{A.vX + 7}, 4") + [side.flag_store(sFL, A.vF0, A.vX + 7)]), fst(3),
                       win_qk(1, "L_st13", "L_rt13", groups=wn[2], scal=mask_regs(False, (2, 3))),
                       win_pv(1, groups=wn[3], glo=1, ghi=20 if len(wn[3]) < 4 else 32, dlo=1 if len(wn[3]) < 4 else 4, tail=L("s_branch L_loop_mid"))]))
            b_ = c.blocks["kv1"]
            if not EXT: b_[-1:-1] = mask_regs(False, (2,))
            assert max(n for n, i in enumerate(b_) if i.tag == "KV4") < max(n for n, i in enumerate(b_) if i.kind == "dma")
        else:
            assert not vq.q
            c.block("kv0", "L_kv0:", out, f"s_cmp_eq_u32 s{sJ}, 0\ns_cbranch_scc1 L_j0")
            c.block("k1", win_qk(0, "L_st10", "L_rt10", dma=(3, A.sK, adv_k()), sm=sm, lo_check=True, dhi=40, scal=mask_regs(False)), fst(3),
                    win_pv(0, cz=True, pre_dma=(0, A.sV), tail=L(f"s_cmp_lg_u32 s{A.sIT}, 0\ns_cbranch_scc1 L_loop_top")), "s_branch L_p1")
            c.block("j0", "L_j0:", mask_regs(False), ZZ(), f"v_accvgpr_write_b32 a{aOF}, 0\nv_accvgpr_write_b32 a{aOF + 1}, 0", [i for kb in range(4) for i in mask_blk(0, kb, 0, inplace=True)], mask_regs(True),
                    zero_O_mfma(mix(init_softmax(0), dma_flat(3, A.sK) + adv_k() + L(FP_LOAD), 1, 100), A.vP1),
                    [i for kb in range(4) for i in mask_blk(1, kb, 1)], "s_branch L_p2")

def build_att(c):
    fs = lambda: fst(3)
    c.block("loop_top", ".p2align 6\nL_loop_top:", fs(), win_qk(1, "L_st1", "L_rt1", extra=[side.touch(0, 60, 0, nt=False)] if opt['tl'] == '1' else []), win_pv(1))
    c.block("loop_mid", "L_loop_mid:", fs(), win_qk(0, "L_st0", "L_rt0", head=L(f"s_and_b32 s{A.sREQ}, s{A.sRT}, 15\ns_cbranch_scc1 L_fll\nL_fllr:\ns_lshr_b32 s{A.sRT}, s{A.sRT}, 4")),
            win_pv(0, tail=L(f"s_sub_u32 s{A.sIT}, s{A.sIT}, 1\ns_cmp_lg_u32 s{A.sIT}, 0\ns_cbranch_scc1 L_loop_top"),
                   chk=L(f"""v_cmp_gt_u32 vcc, s{A.sREQ}, v{A.vRL + 1}
                   s_cbranch_vccnz L_fls0
                   L_flr0:
                   s_and_b32 s3, s{A.sPT}, 15
                   s_cbranch_scc1 L_pub3
                   L_pub3r:
                   s_lshr_b32 s{A.sPT}, s{A.sPT}, 4""")))
    c.block("p1", "L_p1:", stamp(), f"s_cmp_eq_u32 s{A.sMODE}, 0\ns_cbranch_scc1 L_final_h", win_qk(1, "L_st5", "L_rt5", masked=True), fs(),
            win_pv(1, scal=mask_regs(True), valu=[i for kb in range(4) for i in mask_blk(1, kb, 1)], vlo=34, post=L(FP_LOAD)), fs())
    g = Gaps(qkB_mfmas())
    half_reads(g, 1, 2, [("T", 2)])
    half_dma(g, dma_flat(0, A.sV))
    ck = check(0, "L_st6")
    spread_any(g, softmax_half(0, 1) + ck[:2], 0, 28); g.put(31, ck[2])
    c.block("p2", "L_p2:", g.flat(), "L_rt6:", fs(), f"s_cmp_le_u32 s{sJ}, {15 - JC}\ns_cbranch_scc1 L_p3k\ns_cmp_ge_u32 s{sJ}, {JC}\ns_cbranch_scc1 L_p3c")
    smB = lambda: SM(groups_B(), add_l(0))
    pchk = lambda n: L(f"v_cmp_ne_u32 vcc, 1, v{A.vRL}\ns_cbranch_vccnz L_fps{n}\nL_fpr{n}:")
    lfin = lambda: add_l(1, (1,)) + zip2(xlane("v_add_f32", A.vLS, A.vX), xlane("v_add_f32", A.vLS + 1, A.vX + 1)) + L(f"v_rcp_f32 v{A.vRL}, v{A.vLS}\nv_rcp_f32 v{A.vRL+1}, v{A.vLS+1}")
    w2a = lambda: L(f"s_add_u32 s{A.sVn}, s{A.sVn}, 32768")
    c.block("p3o", win_pv(0, sm=smB(), nslot=0, end=check(1, "L_st2", only=1)), "L_rt2:", stamp())
    g = Gaps(pvB_mfmas())
    half_reads(g, 0, 3, [("T", 3)])
    half_dma(g, dma_flat(2, A.sVn) + w2a())
    spread_any(g, of_rd(A.vX + 4) + [i for ks in range(8) for i in cvt_ctx(ks, 0)], 1, 32)
    c.block("pBo", "L_pBo:", g.flat(), stamp(), "s_branch L_op1")
    pl = [I(f"buffer_load_dwordx4 v[{A.vX+4}:{A.vX+7}], v{A.vL16}, {WSR}, s{A.sPS} offen sc1")] + [
        I(f"buffer_load_dwordx4 a[{A.aX + 4*j}:{A.aX + 4*j + 3}], v{A.vL16}, {WSR}, s{A.sPB + j // 4} offen offset:{(j & 3) * 1024} sc1") for j in range(16)]
    c.block("p3c", "L_p3c:", pchk(0), win_pv(0, sm=smB(), nslot=0, end=check(1, "L_st3", only=1), groups=[[i] for i in pl], glo=0, ghi=60, nodma=True), "L_rt3:", stamp(),
            NEED(R("v", A.vX + 4, 4)), f"""
            v_cmp_neq_f32 vcc, v{A.vNM}, v{A.vX+4}
            v_cmp_neq_f32 s[64:65], v{A.vNM+4}, v{A.vX+5}
            v_add_f32 v{A.vX+6}, v{A.vX+6}, v{A.vLS}
            v_add_f32 v{A.vX+7}, v{A.vX+7}, v{A.vLS+1}
            s_or_b64 vcc, vcc, s[64:65]
            s_cbranch_vccnz L_comb
            """)
    cm = lambda qb, ks, hf: mfma(R("v", Oreg(2 * ks + hf, qb), 4), R("a", 246 - 2 * hf, 4), R("a", A.aX + (qb * 8 + ks) * 4, 4), R("v", Oreg(2 * ks + hf, qb), 4))
    F3 = lambda b, f: 192 + 4 * f if b == 2 else Freg(b, f)
    g = Gaps([pvB_mfma(db, kp, F3) for db in range(16) for kp in ((0, 1) if db % 2 == 0 else (1, 0))] + [cm(qb, ks, hf) for qb in range(2) for ks in range(8) for hf in range(2)])
    for b_, pos in ((1, [0, 0, 2, 2, 4, 4, 5, 6]), (2, [6, 8, 8, 10, 10, 12, 12, 14]), (3, [16, 16, 17, 18, 18, 19, 20, 20])):
        for f, k in enumerate(pos): g.put(k, rd_frag(0, b_, f, F3(b_, f)))
    g.put_s(7, NEED(R("a", Freg(1, 0), 16))); g.put_s(11, NEED(R("a", Freg(1, 4), 16))); g.put_s(15, NEED(R("a", 192, 16))); g.put_s(19, NEED(R("a", 208, 16)))
    g.put_s(23, NEED(R("a", Freg(1, 0), 32))); g.put_s(31, NEED(R("a", A.aX, 32))); g.put_s(47, NEED(R("a", A.aX + 32, 16))); g.put_s(55, NEED(R("a", A.aX + 48, 16)))
    g.put_s(34, WAITV([("T", 3)], lgkm0=True)); g.put_s(35, I("s_barrier"))
    for f, r in enumerate(rd_batch(3, 0)): g.put(44 + RPAT[0][f], r)
    g.put_s(62, NEED(R("a", Freg(0, 0), 32)))
    place_vm(g, [(dma_flat(1, A.sK) + dma_flat(2, A.sVn) + w2a(), 1, 61)])
    vq = VQ(); vq.add(L(f"v_mov_b32 v{A.vLS}, v{A.vX+6}\nv_mov_b32 v{A.vLS+1}, v{A.vX+7}") + of_rd(A.vX + 4))
    cv = [cvt_ctx(ks, 0) for ks in range(8)]
    for ks in range(8): vq.add(cv[ks][:-4], 4)
    nsub = len(vq.q)
    vq.run(g, 0, 0, 30); vq.force_level(g, lambda i: True, 0, 30)
    for ks in range(8): vq.add(cv[ks][-4:], 32 + 2 * ks + 5)
    vq.run(g, 0, 30); vq.force(g, 63, lambda i: True)
    c.block("pBc", g.flat(), stamp())
    comb = [I("L_comb:")] + [I(pl[0].text), I("s_waitcnt vmcnt(0)")] + dma_flat(1, A.sK) + L(f"""
    s_nop 7
    v_sub_f32 v{A.vX}, v{A.vNM}, v{A.vX+4}
    v_sub_f32 v{A.vX+1}, v{A.vNM+4}, v{A.vX+5}
    v_max_f32 v{A.vX}, 0, v{A.vX}
    v_max_f32 v{A.vX+1}, 0, v{A.vX+1}
    """) + sub_S(1, (1,)) + rescale_state() + sm_flat(groups_B()) + L(f"""
    v_sub_f32 v{A.vX}, v{A.vNM}, v{A.vX+4}
    v_sub_f32 v{A.vX+1}, v{A.vNM+4}, v{A.vX+5}
    v_cvt_i32_f32 v{A.vX}, v{A.vX}
    v_cvt_i32_f32 v{A.vX+1}, v{A.vX+1}
    v_ldexp_f32 v{A.vX}, 1.0, v{A.vX}
    v_ldexp_f32 v{A.vX+1}, 1.0, v{A.vX+1}
    v_and_b32 v{A.vX}, 0xffff0000, v{A.vX}
    v_and_b32 v{A.vX+1}, 0xffff0000, v{A.vX+1}
    v_fmac_f32 v{A.vLS}, v{A.vX}, v{A.vX+6}
    v_fmac_f32 v{A.vLS+1}, v{A.vX+1}, v{A.vX+7}
    v_lshrrev_b32 v{A.vX+2}, 16, v{A.vX}
    v_lshrrev_b32 v{A.vX+3}, 16, v{A.vX+1}
    """)
    n = 0
    for qb in range(2):
        for ks in range(8):
            for w in range(4):
                t = A.vT + (n % 8); n += 1
                o = Oreg(2 * ks + (w >> 1), qb) + 2 * (w & 1)
                comb += L(f"""v_accvgpr_read_b32 v{t}, a{A.aX + (qb * 8 + ks) * 4 + w}
                v_dot2c_f32_bf16 v{o}, v{t}, v{A.vX + 2 + qb}
                v_dot2c_f32_bf16 v{o+1}, v{t}, v{A.vX + qb}""")
    comb += L("s_nop 3\ns_branch L_pBo")
    S5 = O('s5')
    slots = [3, 1, 2, 0, 4, 3, 1] if S5 else [3, 1, 2, 0, 3, 1, 2]
    def op_out(j, split=False):
        b = j & 1
        jo = j
        ins = L(f"s_add_u32 s{A.sT0}, s{A.sOP}, {2 * jo * 1024}\ns_add_u32 s{A.sT1}, s{A.sOP}, {14336 + 2 * jo * 1024}")
        for pp in range(2):
            if split and pp == 1: ins.append(64)
            for qb in range(2):
                a, d = Sreg(b, 2 * pp, qb), Sreg(b, 2 * pp + 1, qb)
                if BOP and j == 0 and pp == 0:
                    nm = A.vNM + 4 * qb
                    ins += L(f"""v_max3_f32 v{nm}, |v{a}|, |v{a+1}|, |v{a+2}|
                    v_max3_f32 v{nm}, |v{a+3}|, |v{d}|, v{nm}
                    v_max3_f32 v{nm}, |v{d+1}|, |v{d+2}|, v{nm}
                    v_mul_f32 v{nm}, {opt['bopk']}, v{nm}""") + [I(f"v_mov_b32 v{nm + e}, v{nm}") for e in (1, 2, 3)] + L(f"v_mul_f32 v{A.vSUM + 2 + qb}, -v{nm}, v{A.vRL + qb}")
                if BOP and j >= 2: ins += [I(f"v_fma_f32 v{r + e}, v{r + e}, v{A.vRL + qb}, v{A.vSUM + 2 + qb}") for r in (a, d) for e in range(4)]
                else: ins += [I(f"v_mul_f32 v{r + e}, v{A.vRL + qb}, v{r + e}") for r in (a, d) for e in range(4)]
                ins += L(f"""v_cvt_pk_bf16_f32 v{a}, v{a}, v{a+1}
                v_cvt_pk_bf16_f32 v{a+1}, v{a+2}, v{a+3}
                v_cvt_pk_bf16_f32 v{a+2}, v{d}, v{d+1}
                v_cvt_pk_bf16_f32 v{a+3}, v{d+2}, v{d+3}""")
                ins.append(I(f"buffer_store_dwordx4 v[{a}:{a+3}], v{A.vL16}, {WSR}, s{A.sT0 + qb} offen offset:{pp * 1024} sc1", tag=("OP", j)))
        return ins
    fop0 = lambda: L(f"""
    s_sub_u32 s64, 15, s{sJ}
    s_min_u32 s64, s64, s{sJ}
    s_mul_i32 s{sFL}, s64, {2 * FSTR}
    s_and_b32 s64, s{sJ}, 8
    s_lshl_b32 s64, s64, 1
    s_add_u32 s64, s64, s{sH}
    s_lshl_b32 s64, s64, 2
    s_add_u32 s{sFL}, s{sFL}, s64
    s_add_u32 s{sFL}, s{sFL}, {WS_FOP}
    s_lshl_b32 s64, s{A.sWAVE}, 8
    s_add_u32 s{sFL}, s{sFL}, s64
    s_add_u32 s3, s{sFL}, {FSTR}
    v_lshrrev_b32 v{A.vX + 7}, 5, v{A.vL16}
    v_min_u32 v{A.vX + 7}, 1, v{A.vX + 7}
    v_lshlrev_b32 v{A.vX + 6}, 3, v{A.vL16}
    v_lshl_or_b32 v{A.vX + 6}, v{A.vX + 7}, 29, v{A.vX + 6}
    v_mov_b32 v{A.vX + 5}, 1
    """)
    R3 = opt['r3'] == '1'
    fop = (lambda: red3.fop(A.vL16, 40, sFL, 3)) if R3 else fop0
    vFV = 40 if R3 else A.vX + 5; EH = R3 and opt['eh'] == '1'
    def dbgst():
        if opt['dbgst'] == '0': return []
        o = f"""
        s_load_dwordx2 s[72:73], s[0:1], {A_DBG}
        v_accvgpr_read_b32 v11, a{aST+1}
        v_accvgpr_read_b32 v15, a{aST}
        v_lshrrev_b32 v12, 4, v{A.vL16}
        v_mov_b32 v13, {side.OOB}
        s_waitcnt lgkmcnt(0)
        {srd(68, 72, 256)}
        s_lshl_b32 s64, s2, 2
        s_add_u32 s64, s64, s{A.sWAVE}
        s_cmp_eq_u32 s64, {O('dbgst')}
        s_cselect_b32 s64, 0, {side.OOB}
        s_and_b32 s65, s{sJ}, 8
        s_or_b32 s65, s65, s{A.sWAVE}
        s_cmp_eq_u32 s65, 0
        s_cselect_b32 s65, 0, {side.OOB}
        """
        for n, ln in enumerate([int(x) for x in opt['dbgl'].split(',')]):
            o += f"s_add_u32 s66, s64, {4 * (2 + n)}\nv_cmp_eq_u32 vcc, {ln}, v12\nv_mov_b32 v14, s66\ns_nop 1\nv_cndmask_b32 v13, v13, v14, vcc\n"
        o += f"""buffer_store_dword v11, v13, s[68:71], 0 offen
        buffer_store_dword v15, v13, s[68:71], 0 offen offset:28
        s_sub_u32 s66, s{sSTK}, 1
        v_mov_b32 v13, {side.OOB}
        v_cmp_eq_u32 vcc, s66, v12
        v_mov_b32 v14, 4
        s_nop 1
        v_cndmask_b32 v13, v13, v14, vcc
        v_or_b32 v13, s65, v13
        buffer_atomic_umax v11, v13, s[68:71], 0 offen
        v_not_b32 v11, v11
        v_min_u32 v13, 1, v12
        v_lshlrev_b32 v13, 29, v13
        v_or_b32 v13, s65, v13
        s_nop 1
        buffer_atomic_umax v11, v13, s[68:71], 0 offen
        s_waitcnt vmcnt(0)
        """
        return L(o)
    fin = lambda: (L("s_mov_b64 exec, -1\ns_waitcnt vmcnt(0)") + stamp(30) + L(f"""
        s_lshl_b32 s{A.sT0}, s2, 2
        s_add_u32 s{A.sT0}, s{A.sT0}, s{A.sWAVE}
        s_lshl_b32 s{A.sT0}, s{A.sT0}, 9
        s_add_u32 s{A.sT0}, s{A.sT0}, {WS_STAMP}
        v_lshrrev_b32 v10, 1, v{A.vL16}
        buffer_store_dwordx2 a[{aST}:{aST+1}], v10, {WSR}, s{A.sT0} offen
        """) + dbgst()) if STAMP else []
    def last_reads(g, slot):
        for b in range(1, 4):
            for f, r in enumerate(rd_batch(slot, b)): g.put((b - 1) * 16 + RPAT[0][f], r)
            g.put_s(b * 16 - 1, NEED(R("a", Freg(b, 0), 32)))
    ctx_v = lambda qb, ks: R("v", Oreg(2 * ks, qb), 4)
    ctx_a = lambda qb, ks: R("a", A.aX + (qb * 8 + ks) * 4, 4)
    pub = lambda: [WAITV([("OP", 6)])] + L(f"buffer_store_dword v{vFV}, v{vFV + 1}, {WSR}, s3 offen sc1") + stamp(30)
    def outproj(tag, ctx, first=(), tags0=(), post0=()):
        ow = []
        for j in range(7):
            k = 2
            if j == 0 and tag:
                g = Gaps(qk_mfmas(0, "zero", breg=ctx, order=[(kb, qb) for qb in range(2) for kb in range(4)], fr=Freg4))
                half_reads(g, slots[0], slots[1], [("T", slots[1])], bar=47)
                def cv0():
                    vq = VQ()
                    for ks in range(8): vq.add(cvt_ctx(ks, 1), 3 if ks > 5 else 0)
                    k = vq.run(g, 0, 0, 31); vq.force_level(g, lambda i: True, 0, 31); return min(k, 31)
                if not S5: k = cv0()
            else:
                g = Gaps(qk_mfmas(j & 1, "nm" if BOP and j >= 2 else "zero", breg=ctx))
                if j < 6: weave_reads(g, slots[j], slots[j + 1], [("T", slots[j + 1])] + (list(tags0) if j == 0 else []))
                else: last_reads(g, slots[j])
            if j == 0:
                kk = 48
                for i in post0: kk = g.fit(kk, i) if i.slots()[0] else g.fit_s(kk, i) + 1
            if S5 and j == 0: place_vm(g, [(dma_flat(0, A.sVn) + w2a() + dma_flat(4, A.sVn) + w2a(), 1 if not tag else 5, 61)])
            elif S5:
                if j < 3: weave_dma(g, slots[j + 4], A.sVn, w2a(), 1, O('odh5'))
                if j == 2: g.fit(30, I(f"v_add_u32 v43, 0x20000, v{A.vL16}"))
            elif j + 3 < 7: weave_dma(g, slots[j + 3], A.sVn, w2a(), k if j == 0 else 1, 60 if j == 0 else O('odh'))
            if j == 0 and tag and S5: k = cv0()
            if j == 0: assert not seq_fit(g, list(first) + (fop() if not (tag or S5) else []), k)[1]
            if j == 3 and (tag or S5): assert not seq_fit(g, fop(), 1)[1]
            if j == 2: assert not seq_fit(g, side.sel_a(A.vL16), 1)[1]
            if j in (4, 5): assert not seq_fit(g, {4: side.sel_b(tag), 5: side.sel_c()}[j], 40 if j == 5 else 2)[1]
            if j == O('efw'):
                assert not seq_fit(g, [WAITV([("OP", (side.NE - 1) // 2)]), I(f"buffer_store_dword v{vFV}, v{vFV + 1}, {WSR}, s{sFL} offen sc1")], O('efg'))[1]
            if j == 6 and tag and SENT:
                assert EH and not seq_fit(g, L(f"s_sub_u32 s64, s{sJ}, 8\ns_and_b32 s64, s64, {side.OOB}\ns_or_b32 s64, s64, s3") +
                                          [WAITV([("OP", 4)]), I(f"buffer_store_dword v{vFV}, v{vFV + 1}, {WSR}, s64 offen sc1")], O('sg'))[1]
            if j > 0: k = fill_valu(g, op_out(j - 1), 3, 58 if j < 6 else 36)
            if j == 6: k, last = seq_fit(g, op_out(6, True), max(k, 38))
            if tag and j in (0, 3, 5):
                n = {0: 1, 3: 2, 5: 3}[j]
                g.put_s(62, I(f"s_cmp_eq_u32 s{sJ}, {O('jy')}")); g.put_s(63, I(f"s_cbranch_scc1 L_y{n}"))
            ow += g.flat() + (L(f"L_y{n}r:") if tag and j in (0, 3, 5) else []) + fst(4, 30)
        return ow + stamp(30) + [i for i in last if not isinstance(i, int)] + ([] if EH else pub())
    c.block("op1", "L_op1:", outproj(1, ctx_v, lfin()), f"s_cmp_lt_u32 s{sJ}, 8\ns_cbranch_scc1 L_red")
    if R3:
        mv, farv = red3.main_v(A.vL16, lambda: stamp(30), O('lagv'), SENT)
        pubv = lambda: stamp(30) if SENT else pub() if EH else []
        c.block("end1", f"s_cmp_eq_u32 s{A.sWAVE}, 3\ns_cbranch_scc1 L_vend3", red3.head(True), pubv(), mv, "L_vend:", fin(), "s_endpgm")
        c.block("end3", "L_vend3:", pubv(), "s_branch L_vend", "s_waitcnt vmcnt(0)", farv)
    else: c.block("end1", fin(), "s_endpgm")
    qld = [[I(f"buffer_load_dwordx4 a[{4*n}:{4*n+3}], v{A.vL16}, {WSR}, s{72 + n // 4} offen offset:{(n & 3) * 1024} sc1")] for n in range(16)]
    c.block("p3k", "L_p3k:", f"""
            s_mov_b32 s72, s{A.sQ}
            s_add_u32 s73, s72, 4096
            s_add_u32 s74, s72, 8192
            s_add_u32 s75, s72, 12288
            """, pchk(1), win_pv(0, sm=smB(), nslot=0, end=check(1, "L_st7", only=1), groups=qld, glo=0, ghi=60, nodma=True), "L_rt7:", stamp())
    g = Gaps(pvB_mfmas())
    half_reads(g, 0, 3, [("T", 3)])
    half_dma(g, dma_flat(1, A.sK) + adv_k())
    scal_fit(g, L(f"s_sub_u32 s{A.sIT}, {15 - JC}, s{sJ}\ns_mov_b32 s{A.sMODE}, 0"))
    vq = VQ()
    vq.add(lfin() + L(f"""v_accvgpr_write_b32 a192, v{A.vRL}
        v_accvgpr_write_b32 a193, v{A.vRL + 1}
        v_mov_b32 v{A.vLS}, 0
        v_mov_b32 v{A.vLS + 1}, 0""") + [I(f"v_mov_b32 v{A.vNM + r}, {NM0}") for r in range(8)])
    vq.add(of_rd(A.vX + 4))
    for ks in range(8):
        for qb in range(2):
            vq.add(cvt_ctx(ks, qb), 4 * ks + 7 if qb else 0)
            vq.add([I(f"v_accvgpr_write_b32 a{A.aX + (qb * 8 + ks) * 4 + e}, v{Oreg(2 * ks, qb) + e}") for e in range(4)], 32)
    vq.run(g, 0)
    vq.force(g, 31, lambda i: f"v{A.vNM + 7}" in i.writes)
    w_b = g.flat()
    g, sm = first_qk(False)
    g.pre = [NEED(R("a", 0, 64))]
    g.put(40, I(f"v_cmp_gt_u32 vcc, 3, v{A.vRL + 1}")); g.put_s(43, I("s_cbranch_vccnz L_f2s")); g.put_s(43, I("L_f2r:"))
    place_vm(g, [(dma_flat(2, A.sV), 3, 44), ([I(FL_LOAD)], 0, 1)])
    sm.run(g, 8, 64, final=False, upto=8)
    vq.run(g, 32)
    vq.q = [(0, i) for at, i in vq.q]
    w_1 = win_qk(0, "L_st11", "L_rt11", dma=(3, A.sK, adv_k()), sm=sm, lo_check=True, vq=vq, dhi=40)
    npk = O('npk') if not BPV['on'] else 8; dump = [i for at, i in vq.q[:max(0, len(vq.q) - npk)]]; vq.q = vq.q[len(dump):]
    if O('v') > 1: sys.stderr.write(f"; switch: dumped {len(dump)}\n")
    def early(g):
        vq.run(g, 0); assert not vq.q
        for q in range(g.n):
            for i in g.ve[q]:
                if i.op.startswith(("v_cvt", "v_accvgpr")): assert not any(set(i.reads) & set(g.m[x].writes) for x in range(q + 1)), (q, i.text)
    c.block("sw", w_b, stamp(), g.flat(), fs(), w_1, dump, fs(),
            win_pv(0, cz=True, vq_first=early, pre_dma=(0, A.sV), tail=L(f"s_cmp_lg_u32 s{A.sIT}, 0\ns_cbranch_scc1 L_loop_top")), stamp())
    pst = lambda ks, qb: [I(f"buffer_store_dwordx4 v[{Oreg(2*ks, qb)}:{Oreg(2*ks, qb)+3}], v{A.vL16}, {WSR}, s{A.sPB + (qb*8+ks) // 4} offen offset:{(ks & 3) * 1024} sc1", tag="PST")]
    g = Gaps(pv_mfmas(1))
    weave_reads(g, 0, 3, [("T", 3)])
    k = 0; rest = []
    for ks in range(8):
        for qb in range(2):
            ins = cvt_ctx(ks, qb, A.vX + 6) + pst(ks, qb)
            if rest: rest += ins; continue
            k, rest = seq_fit(g, ins, max(k, 8 * ks + 5 + 2 * qb + 4))
    c.block("final_h", "L_final_h:", WAITV([("T", 0)], lgkm0=True), "s_barrier", rd_batch(0, 0), mix(softmax_half(1, 1), dma_flat(2, A.sVn) + w2a(), 1), check(1, "L_st4"), "L_rt4:", add_l(1), f"""
    v_mov_b32 v{A.vX+2}, v{A.vNM}
    v_mov_b32 v{A.vX+3}, v{A.vNM+4}
    v_mov_b32 v{A.vX+4}, v{A.vLS}
    v_mov_b32 v{A.vX+5}, v{A.vLS+1}
    buffer_store_dwordx4 v[{A.vX+2}:{A.vX+5}], v{A.vL16}, {WSR}, s{A.sPS} offen sc1
    """, of_rd(A.vX + 6), NEED(R("a", Freg(0, 0), 32)), stamp(), g.flat(), rest, stamp())
    c.block("op0", outproj(0, ctx_a, L(f"v_accvgpr_read_b32 v{A.vRL}, a192\nv_accvgpr_read_b32 v{A.vRL + 1}, a193"), ["PST"],
                           L(f"s_xor_b32 s47, s47, 64\nv_mov_b32 v{A.vT}, 1") + [side.flag_store(47, A.vF0, A.vT)]))
    rm, far = (red3.main_k if R3 else lambda *a: side.red_main(*a, True, False))(A.vL16, lambda: stamp(30), O('lag'))
    c.block("red", "L_red:", red3.head(False) if R3 else side.red_a(A.vL16), pub() if EH else [], rm, fin(), "s_endpgm")
    c.block("redfar", far)
    c.block("rpoll", side.red_poll())
    c.block("comb", comb)
    stubs = ""
    for n, b in ((0, "0"), (1, "1"), (2, "B"), (3, "B"), (4, "1n"), (5, "1"), (6, "0B"), (7, "B"), (8, "f"), (9, "1"), (10, "f"), (11, "f")) + (((12, "0"), (13, "1")) if EXT else ()):
        stubs += f"L_st{n}:\ns_call_b64 s[{A.sRET}:{A.sRET+1}], L_slow{b}\ns_branch L_rt{n}\n"
    c.block("stubs", stubs)
    for nm, b, oth in (("0", 0, (0, 1)), ("1", 1, (0, 1)), ("1n", 1, ()), ("0B", 0, (1,)), ("B", 1, ()), ("f", 0, (0, 1))): c.block("slow" + nm, slow_sub(nm, b, oth))
    c.block("moe", red3.moe() if R3 else side.red_moe(), side.y_reduce2(lambda n: Oreg(2 * (n >> 1) + 1, n & 1)))
    c.block("spins", f"""
    L_fll:
    {FL_LOAD}
    s_branch L_fllr
    L_pub3:
    v_mov_b32 v{A.vX + 7}, s3
    """, side.flag_store(sFL, A.vF0, A.vX + 7), "s_branch L_pub3r",
            *[side.spin_stub(f"L_fhs{n}", f"L_fhr{n}", side.FH0_LOAD, 24, 91, "v_cmp_gt_u32 vcc, 1, v{vt}") for n in range(2)],
            *[side.spin_stub(f"L_fps{n}", f"L_fpr{n}", FP_LOAD, A.vRL, A.sSPIN) for n in range(2)],
            side.spin_stub("L_f4s", "L_f4r", FL_LOAD, A.vRL + 1, A.sSPIN, "v_cmp_gt_u32 vcc, 3, v{vt}") if EXT else [],
            side.spin_stub("L_f2s", "L_f2r", FL_LOAD, A.vRL + 1, A.sSPIN, "v_cmp_gt_u32 vcc, 3, v{vt}"),
            side.spin_stub("L_fls0", "L_flr0", FL_LOAD, A.vRL + 1, A.sSPIN, f"v_cmp_gt_u32 vcc, s{A.sREQ}, v{{vt}}"))

def early_stubs(c):
    c.block("spins0", side.z_stub(0), side.z_stub(1), hw.key_stub(),
            *[side.spin_stub(f"L_f1s{n}{w}", f"L_f1r{n}{w}", F1_LOAD if w == 4 else F2_LOAD, 24, 91, "v_cmp_eq_u32 vcc, 0, v{vt}") for n in range(2) for w in (4, 5)])

def paths(c):
    lp = ["loop_top", "loop_mid"]
    for end in (["p3c", "pBc"], ["p3o", "pBo"], ["p3c", "comb", "pBo"]):
        c.path("entry", "kv1", "loop_mid", *lp, *lp, "p1", "p2", *end, "op1", "end1")
    if opt['r3'] == '1': c.path("entry", "kv1", "loop_mid", *lp, *lp, "p1", "p2", "p3o", "pBo", "op1", "end3")
    c.path("entry", "kv0", "k1", *lp, *lp, "p1", "p2", "p3o", "pBo", "op1", "red")
    for own in (["j0"], ["k1", "p1"], ["k1", *lp, "p1"], ["k1", *lp, *lp, "p1"]):
        for nh in (0, 1, 2):
            c.path("entry", "kv0", *own, "p2", "p3k", "sw", *(lp * nh), "final_h", "op0", "red")
    for b in ("redfar", "rpoll", "stubs", "slow0", "slow1", "slow1n", "slow0B", "slowB", "slowf", "moe", "spins", "spins0"): c.path(b)

if __name__ == "__main__":
    c = CFG(verbose=O("v"))
    build_front(c); early_stubs(c); build_att(c); paths(c)
    body = c.finalize()
    kn = NAME + "_kernel"
    print("; @launch grid=(256,1,1) block=(256,1,1) lds=163840")
    print('.amdgcn_target "amdgcn-amd-amdhsa--gfx950"\n.text')
    print(".macro M d, a, b, c\nv_mfma_f32_16x16x32_bf16 \\d, \\a, \\b, \\c\n.endm")
    print(kernel_header(kn))
    print(body.replace("  v_mfma_f32_16x16x32_bf16 ", "M ").replace("\n  ", "\n "))
    print("L_code_end:")
    print('.section .rodata,"a"\n.p2align 6')
    print(kernel_desc(kn, sgpr=102))
```

```python
import sys
from att3 import *
import kvq, side, hw, asmlib, att3, q2, red3
from kvq import K, seq_fit
from q2 import VQ, place_vm, place_reads
opt = dict(stamp="0", v="1", thr=str(2.0 ** 40), lo=str(2.0 ** -60), m0="16", fine="0", dbgst="0", dbgl="0,3,6,7,14,18,21",
           cw="1", w1="0", q0="1", ramp="00", eo="0", pc="0", sw="1", r3="1", lagv="16", lag="8",
           pcq="4", tQ="9", tW="5", tH="7", tc="6,13", tg="113", xs_="20", odh="45", ne="8", jy="6", tl="1",
           k15="8", kst="2224a56", kf="0", v15="4", vst="2204444", vf="2", nq="8", w0l="24", ext="1", hnt="nt", nomoe="0", sent="0", sg="30", mk="044", s5="1", odh5="26", efw="5", efg="52", wi="0", sw_="0", sc_="0", swf="nt", hi0="44", hi1="108", rv="0", eh="1", bpv="0", bpvd="4", bpvk="20", bop="1", bopk="2.0", bkk="8.0", bkv="1", bq="0", tB="13", bsp="5", l4="44", wn="2221",
           ntw="nt", ntt="", osf="sc1", stf="sc1", dfl="sc1", hot="00", npk="16")
for a in sys.argv[1:]:
    k, v = a.split("="); assert k in opt, k; opt[k] = v
O = lambda k: int(opt[k])
STAMP = opt["stamp"] == "1"
kvq.HOT = opt["hot"]; kvq.NTW = opt["ntw"]; side.NTT = opt["ntt"]; kvq.STF = opt["stf"]; att3.DFL = opt["dfl"]; side.OSF = opt["osf"]
side.EPAR = 2; side.NE = O("ne"); side.SELLV = 1; side.YLV = 4; hw.MAP = "0"
side.ROWMAP = "s_lshr_b32 s73, s72, 1\ns_sub_u32 s65, 7, s73\ns_bitcmp1_b32 s72, 0\ns_cselect_b32 s73, s65, s73\ns_lshl_b32 s73, s73, 4"
sH, sJ, sSTK, sKV, sFL = 41, 42, 44, 45, 45
XS = O('xs_'); assert XS in (18, 20)
JC = XS // 2
FSH = 7
aST = 250
NM0 = hex(f2u(-float(opt['m0'])))
BOP = O('bop')
BPV.update(on=O('bpv'), db=O('bpvd'), k=float(opt['bpvk']))
red3.WI = O('wi')
hw.HNT = opt['hnt']
NEVER = 0x7fff
SENT = O('sent')
EXT = O('ext')
SW = O('sw')
def stamp(t=10):
    if not STAMP: return []
    return L(f"""s_memrealtime s[36:37]
    s_memtime s[98:99]
    v_accvgpr_read_b32 v{t}, a{aST}
    v_accvgpr_read_b32 v{t+1}, a{aST+1}
    s_mov_b32 s100, m0
    s_mov_b32 m0, s{sSTK}
    s_waitcnt lgkmcnt(0)
    v_writelane_b32 v{t}, s98, m0
    v_writelane_b32 v{t+1}, s36, m0
    s_add_u32 s{sSTK}, s{sSTK}, 1
    s_mov_b32 m0, s100
    v_accvgpr_write_b32 a{aST}, v{t}
    v_accvgpr_write_b32 a{aST+1}, v{t+1}""")
fst = lambda n, t=10: stamp(t) if opt['fine'] == str(n) else []

F1_LOAD = f"buffer_load_dword v24, v13, {WSR}, s46 offen sc1"
F2_LOAD = f"buffer_load_dword v24, v{A.vFL}, {WSR}, s46 offen sc1"
FL_LOAD = f"buffer_load_dword v{A.vRL + 1}, v{A.vFL}, {WSR}, s46 offen sc1"
FP_LOAD = f"buffer_load_dword v{A.vRL}, off, {WSR}, s47 sc1"
ZZ = lambda: [I(f"v_mov_b32 v{A.vP1 + e}, 0") for e in range(4)]
SELM = lambda: L(f"""
    v_mov_b32 v16, 0x3f80
    v_lshrrev_b32 v17, 8, v{A.vL16}
    v_bfe_u32 v18, v{A.vL16}, 6, 2
    v_and_b32 v19, 16, v{A.vL16}
    v_lshlrev_b32 v19, v19, v16
    v_cmp_eq_u32 vcc, v17, v18
    v_and_b32 v16, 32, v{A.vL16}
    v_accvgpr_write_b32 a244, 0
    v_accvgpr_write_b32 a245, 0
    v_cndmask_b32 v19, 0, v19, vcc
    v_cmp_eq_u32 vcc, 0, v16
    v_accvgpr_write_b32 a248, 0
    v_accvgpr_write_b32 a249, 0
    v_cndmask_b32 v17, 0, v19, vcc
    v_sub_u32 v18, v19, v17
    v_accvgpr_write_b32 a246, v17
    v_accvgpr_write_b32 a247, v18
    """)

def first_qk(cv_late):
    if not cv_late:
        g = Gaps(qk_mfmas(0, "nm")); weave_reads(g, 3, 1, [("T", 1)])
        blocks = [(0, 0), (0, 1), (1, 0), (1, 1)]; rdy = [11, 19, 27, 35]
    else:
        m = lambda kb, qb, ks, c=None: mfma(R("v", Sreg(0, kb, qb), 4), R("a", Freg(kb, ks), 4), R("a", Qreg(qb, ks), 4), c or R("v", Sreg(0, kb, qb), 4))
        ms = [m(kb, qb, ks, R("v", A.vNM + 4 * qb, 4) if n == 0 else None) for kb in range(2) for qb in range(2) for n, ks in enumerate(range(6) if qb == 0 else range(5, -1, -1))]
        ms += [m(0, 0, 6), m(0, 1, 6), m(1, 1, 6), m(1, 0, 6), m(0, 0, 7), m(1, 0, 7), m(0, 1, 7), m(1, 1, 7)]
        g = Gaps(ms + qk_mfmas(0, "nm")[32:])
        for f, k in enumerate([0, 1, 2, 4, 5, 6, 8, 9]): g.put(k, rd_frag(3, 1, f, Freg(1, f)))
        g.put_s(11, NEED(R("a", Freg(1, 0), 24))); g.put_s(22, NEED(R("a", Freg(1, 6), 8)))
        for f, k in enumerate([13, 14, 16, 17, 19, 20, 27, 31]): g.put(k, rd_frag(3, 2, f, Freg(2, f)))
        for f, k in enumerate([25, 28, 29, 33, 34, 36, 37, 39]): g.put(k, rd_frag(3, 3, f, Freg(3, f)))
        g.put_s(31, NEED(R("a", Freg(2, 0), 24))); g.put_s(37, NEED(R("a", Freg(2, 6), 8)))
        g.put_s(46, WAITV([("T", 1)], lgkm0=True)); g.put_s(47, I("s_barrier"))
        for f, r in enumerate(rd_batch(1, 0)): g.put(48 + RPAT[0][f], r)
        g.put_s(62, NEED(R("a", Freg(0, 0), 32)))
        blocks = [(0, 0), (1, 0), (0, 1), (1, 1)]; rdy = [32, 33, 34, 35]
    sm = SM(sm_groups(0, blocks + blocks_of(1), (0, 1)), ready={n: rdy[n >> 1] for n in range(8)})
    return g, sm

def ramp():
    nw, nc = int(opt['ramp'][0]), int(opt['ramp'][1])
    if not nw: return [], []
    pre = L(f"""
    v_lshrrev_b32 v28, 2, v0
    v_add_u32 v28, 1, v28
    v_lshrrev_b32 v29, 1, v28
    v_and_b32 v28, 1, v28
    v_lshlrev_b32 v28, 7, v28
    v_lshl_or_b32 v28, v29, 19, v28
    v_and_b32 v29, 1, v0
    v_lshl_or_b32 v28, v29, 8, v28
    v_bfe_u32 v29, v0, 1, 1
    v_lshl_or_b32 v28, v29, 13, v28
    s_lshl_b32 s64, s{K.sWAVE}, 14
    s_add_u32 s64, s64, s75
    v_cmp_gt_u32 vcc, {4 * nw}, v0
    v_add_u32 v28, s64, v28
    v_mov_b32 v31, {side.OOB}
    v_cndmask_b32 v16, v31, v28, vcc
    """) + (L(f"""
    v_lshrrev_b32 v28, 3, v0
    v_add_u32 v28, 1, v28
    v_lshrrev_b32 v29, 1, v28
    v_and_b32 v28, 1, v28
    v_lshlrev_b32 v28, 21, v28
    v_lshl_or_b32 v28, v29, 7, v28
    v_and_b32 v29, 7, v0
    v_lshl_or_b32 v28, v29, 11, v28
    s_lshr_b32 s64, s{sH}, 3
    s_lshl1_add_u32 s64, s{sKV}, s64
    s_lshl_b32 s64, s64, 5
    s_add_u32 s64, s64, s{K.sWAVE}
    s_lshl_b32 s64, s64, 14
    v_cmp_gt_u32 vcc, {8 * nc}, v0
    v_add_u32 v28, s64, v28
    v_cndmask_b32 v17, v31, v28, vcc
    """) if opt['rv'] == '0' else L(f"""
    v_lshrrev_b32 v28, 4, v0
    v_add_u32 v28, 1, v28
    v_lshrrev_b32 v29, 1, v28
    v_and_b32 v28, 1, v28
    v_lshlrev_b32 v28, 21, v28
    v_lshl_or_b32 v28, v29, 7, v28
    v_and_b32 v29, 15, v0
    v_lshl_or_b32 v28, v29, 11, v28
    s_lshr_b32 s64, s{sH}, 3
    s_lshr_b32 s67, s{K.sWAVE}, 1
    s_lshl1_add_u32 s64, s64, s67
    s_lshl_b32 s64, s64, 4
    s_and_b32 s67, s{K.sWAVE}, 1
    s_add_u32 s64, s64, s67
    s_lshl_b32 s64, s64, 15
    v_cmp_gt_u32 vcc, {16 * nc}, v0
    v_add_u32 v28, s64, v28
    v_cndmask_b32 v17, v31, v28, vcc
    s_sub_u32 s64, s{sJ}, 8
    s_and_b32 s64, s64, {side.OOB}
    v_or_b32 v16, s64, v16
    v_or_b32 v17, s64, v17
    """))
    return pre, [I(f"buffer_load_dword a240, v16, s[{K.S_W}:{K.S_W + 3}], 0 offen {opt['ntw']}", tag="TOUCH"), side.touch(17, K.S_C, 0, nt=False)]

def build_front(c):
    c.block("entry", f"""
    s_cmp_lt_u32 s2, 256
    s_cbranch_scc1 L_go
    s_endpgm
    L_go:
    {'s_memrealtime s[36:37]' + chr(10) + 's_memtime s[98:99]' if STAMP else ''}
    s_load_dwordx8 s[80:87], s[0:1], {A_X}
    s_load_dwordx4 s[88:91], s[0:1], {A_WUV}
    s_load_dwordx2 s[92:93], s[0:1], {A_WR}
    s_load_dwordx2 s[30:31], s[0:1], {A_GW}
    s_load_dwordx4 s[4:7], s[0:1], {A_DBG}
    v_lshrrev_b32 v24, 6, v0
    v_and_b32 v0, 63, v0
    v_readfirstlane_b32 s{K.sWAVE}, v24
    """, side.code_touch() if opt['pc'] == '0' else side.code_touch()[:-1], f"""
    s_and_b32 s{sH}, s2, 7
    s_lshr_b32 s{sJ}, s2, 3
    s_lshr_b32 s64, s{sJ}, 4
    s_lshl_b32 s64, s64, 3
    s_add_u32 s{sH}, s{sH}, s64
    s_and_b32 s{sJ}, s{sJ}, 15
    s_lshr_b32 s{sKV}, s{sJ}, 3
    s_xor_b32 s{sKV}, s{sKV}, {SW}
    s_mov_b32 s{sSTK}, 0
    v_accvgpr_write_b32 a{aST}, 0
    v_accvgpr_write_b32 a{aST+1}, 0
    v_and_b32 v24, 15, v0
    v_lshrrev_b32 v25, 4, v0
    v_lshlrev_b32 v{K.vST}, 4, v0
    s_and_b32 s65, s{K.sWAVE}, 1
    s_lshr_b32 s66, s{K.sWAVE}, 1
    {kvq.addr_wd()}
    {kvq.addr_cd()}
    s_mov_b32 s{K.sWOFF}, 0
    s_mov_b32 s{K.sCOFF}, 0
    s_lshl_b32 s{K.sM0W}, s{K.sWAVE}, 12
    s_add_u32 s{K.sM0C}, s{K.sM0W}, 65536
    s_lshl_b32 s74, s{sH}, 9
    s_sub_u32 s{K.S_W + 2}, {1024*8192}, s74
    s_mov_b32 s{K.S_W + 3}, 0x20000
    s_and_b32 s75, s{sJ}, 7
    s_lshl_b32 s75, s75, 16
    s_sub_u32 s{K.S_C + 2}, {2048*2048}, s75
    s_mov_b32 s{K.S_C + 3}, 0x20000
    """, ramp()[0], L(kvq.addr_rd()) + side.c_touch_setup() if opt['eo'] == '1' else [], f"""
    s_mov_b32 m0, s{K.sM0W}
    s_cmp_eq_u32 s{sKV}, 0
    s_cselect_b64 s[72:73], s[86:87], s[88:89]
    s_add_u32 s{K.S_W}, s72, s74
    s_addc_u32 s{K.S_W + 1}, s73, 0
    s_and_b32 s{K.S_W + 1}, s{K.S_W + 1}, 0xffff
    """, kvq.unit_w(0)[1:], f"""
    s_add_u32 s{K.S_C}, s82, s75
    s_addc_u32 s{K.S_C + 1}, s83, 0
    s_and_b32 s{K.S_C + 1}, s{K.S_C + 1}, 0xffff
    """, kvq.unit_c(0), ramp()[1], kvq.unit_w(1) if opt['w1'] == '0' else [], stamp(26)[2:], L(kvq.addr_rd()) + side.c_touch_setup() if opt['eo'] == '0' else [],
        side.code_addr(28, 29) + side.code_touch()[-1:] if opt['pc'] == '1' else [], f"""
    {srd(32, 82, 2048*2048)}
    {srd(K.S_X, 80, 2048*896)}
    {srd(60, 92, 896)}
    {srd(68, 30, 896)}
    {srd(K.S_WS, 6, 1 << 28)}
    {srd(K.S_DBG, 4, 256)}
    s_add_u32 s72, s84, s74
    s_addc_u32 s73, s85, 0
    s_sub_u32 s75, {448*8192}, s74
    {srd(K.S_WQ, 72, "s75")}
    s_mov_b32 s{K.sSC}, {hex(f2u(LOG2E_16))}
    s_mov_b32 s{K.sWQOFF}, 0
    s_mul_i32 s{K.sXOFF}, s{sJ}, {128*896}
    s_lshl_b32 s72, s{sKV}, 24
    s_lshl_b32 s73, s{sH}, 20
    s_add_u32 s72, s72, s73
    s_bfe_u32 s64, s{sJ}, 0x20001
    s_lshl_b32 s64, s64, 15
    s_add_u32 s72, s72, s64
    s_lshl_b32 s64, s66, 17
    s_add_u32 s72, s72, s64
    s_and_b32 s67, s{sJ}, 1
    s_cmp_eq_u32 s{sKV}, 0
    s_cselect_b32 s64, 12, 14
    s_cselect_b32 s75, 14, 10
    s_lshl_b32 s67, s67, s75
    s_add_u32 s72, s72, s67
    s_lshl_b32 s64, s65, s64
    s_add_u32 s{K.sOOFF}, s72, s64
    """, side.h_touch_srd(), f"s_load_dwordx2 s[96:97], s[0:1], {A_OUT}", f"s_cmp_lt_u32 s{sJ}, 8\ns_cbranch_scc0 L_kv1")
    pcq, tQ, tH, tW = O("pcq"), O("tQ"), O("tH"), O("tW")
    for vt in (0, 1):
        o = "v" if vt else "k"; pt = vt ^ SW
        frags = [kvq.rd_c(0, 0, 0, 0), kvq.rd_c(0, 0, 0, 1)] + kvq.rd_w_unit(0, 0, 0) + kvq.rd_w_unit(0, 1, 1)
        kvq.BIAS.update(kv="v[20:23]" if O('bkv') else None, q="v[28:31]" if O('bq') else None, rows=None)
        Q0 = opt['q0'] == '1'
        out = side.z_store()[:-3] + side.r4_loads() + side.z_store()[-3:] if vt == 0 else L(srd(60, 90, 4096*896))
        if Q0:
            frags, g0 = q2.tile0(pt)
            cw = kvq.unit_c(1) + kvq.unit_w(2); w1 = kvq.unit_w(1) if opt['w1'] == '1' else []
            if opt['cw'] == '0': out = cw + out; cw = []
            out = out + w1 + [WAITV([("C", 0), ("W", 0)], lgkm0=True), I("s_barrier")] + stamp(26) + frags + cw
            if vt == 0: out += side.r4_compute()
        else:
            out += kvq.unit_w(2) + kvq.unit_c(1) + [WAITV([("W", 1), ("C", 0), ("W", 0)], lgkm0=True), I("s_barrier")] + stamp(26) + frags
            if vt == 0: out += side.r4_compute()
            out += [NEED(R("a", kvq.wfrag(0, 0, 0), 8), R("a", 160, 8))]
        for t in range(15):
            dma = kvq.kv_dma(t)
            if vt == 1 and t == tW:
                pre, uns = side.wo2_dma(); dma[1] = dma[1] + [uns[0]]
            if vt == 1 and t == tW + 1: dma[1] = dma[1] + [uns[1]]
            if vt == 0 and t == tH - 5:
                pre, uns = hw.s1_weights()
            if vt == 0 and tH - 5 <= t <= tH + 1 and not O('nomoe'): dma[1] = dma[1] + [uns[t - tH + 5]]
            if vt == 0 and t == tH + 4:
                pre, un = hw.s6_down_dma(); dma[1] = dma[1] + ([un] if not O('nomoe') else [])
            g = g0 if (Q0 and t == 0) else kvq.kv_tile(t, pt, dma, first=(t == 0), hi1=O('hi1') if len(dma[1]) < 3 else 108, hi0=O('hi0'))
            def fit(ins, k, pace=0):
                k, left = seq_fit(g, ins, k, pace); assert not left, (t, len(left)); return k
            def mm(ms, k):
                k |= 1
                for m in ms: g.put(k, m)
                return k
            tch = []
            if pcq and (t + pcq) % 4 == 0 and t + pcq < 16: tch += side.c_touch(32, (t + pcq) // 4)
            if O('sw_') or O('sc_'):
                if t == 0: fit(side.share_setup(sKV), 50)
                if O('sw_') and 3 < t + O('sw_') < 16: tch += side.share_w(K.S_W, t + O('sw_'), opt['swf'])
                if O('sc_') and 2 < t + O('sc_') < 16: tch += side.share_c(K.S_C, t + O('sc_'))
            if t == 1 and vt == 0: fit(side.z_signal(), 112)
            if t == 2 and vt == 0: assert fit(side.rg4_store(), 4, 1) < 42
            if t == 3: fit(side.z_load(), 50)
            if t == 4:
                k = fit(side.z_check(vt), 112)
                if vt == 0: fit(side.key4_store(), k + 1)
            if vt == 1:
                pre_, tl = side.q_touch3(K.S_WQ)
                if t == tQ: fit(pre_, 60)
                if 0 <= t - tQ < len(tl): tch += tl[t - tQ]
                if t == tW: assert fit(pre, 42) < 80
                if t == tW + 2: g.sc[110][0].tag = g.sc[110][0].tag + ["WO"]
                if t == tW + 3: assert fit(side.wo2_reads(), 2, 2) < 108
                if t == 2: fit(SELM() + [I(f"v_accvgpr_write_b32 a{232 + e}, -1") for e in range(4) if SENT], 10, 1)
            if vt == 0 and O('nomoe'):
                if t == tH - 5: assert fit(pre, 42) < 90
                if t == tH + 1: fit(L("v_cmp_eq_u32 vcc, -1, v0\ns_nop 1\ns_cbranch_vccnz L_hs\nL_hr:"), 10)
                if t == tH + 6: pre, ms, yadr, yst = hw.s8_down(); link(yadr + yst)
            elif vt == 0:
                if t == tH - 5: assert fit(pre, 42) < 90
                if t == tH: fit(hw.s2_keys(), 4)
                if t == tH + 1: assert fit(hw.s3_top2(), 10, 1) < 108
                if t == tH + 2: fit(hw.s4_sel(), 4, 1)
                if t == tH + 3:
                    (r0, m0), (r1, m1) = hw.s5_gemm()
                    k = fit([WAITV("HW")] + r0, 50); k = mm(m0, max(k + 6, 78)); k = fit(r1, k + 1); mm(m1, max(k + 6, 110))
                if t == tH + 4: assert fit(pre, 4) < 44
                if t == tH + 5:
                    s7 = hw.s7_act(); fit(s7, 2, 1)
                    assert all(i.kind != "dsr" or i not in s7 for q in range(100, 128) for i in g.ve[q])
                if t == tH + 6:
                    pre, ms, yadr, yst = hw.s8_down(); link(yadr + yst)
                    k = fit(pre, 2); k = mm(ms, max(k + 2, 46))
            if t == 14: assert fit(kvq.addr_q(), 2) < 46
            if t == 14: fit(L(f"""
                s_mul_i32 s72, s{sH}, {FSTR}
                s_add_u32 s46, s72, {WS_FL}
                s_lshl_b32 s{sFL}, s{sJ}, {FSH}
                s_add_u32 s{sFL}, s{sFL}, s46
                s_sub_u32 s66, 15, s{sJ}
                s_min_u32 s66, s66, s{sJ}
                s_lshl_b32 s47, s66, {FSH}
                s_add_u32 s47, s47, s46
                s_add_u32 s47, s47, {2048 + (0 if vt else 64)}
                s_lshl_b32 s65, s{sH}, 3
                s_add_u32 s65, s65, s66
                s_mul_i32 s{A.sPO}, s65, {PO_STRIDE}
                s_add_u32 s{A.sPO}, s{A.sPO}, {WS_PO}
                s_lshl_b32 s65, s{sJ}, 4
                s_add_u32 s65, s65, s{sH}
                s_mul_i32 s{A.sOP}, s65, {OP_HEAD}
                s_mul_i32 s65, s{A.sWAVE}, {OP_HEAD // 4}
                s_add_u32 s{A.sOP}, s{A.sOP}, s65
                s_add_u32 s{A.sOP}, s{A.sOP}, {WS_OP}
                s_sub_u32 s65, 15, s66
                s_lshl_b32 s65, s65, 16
                s_lshl_b32 s64, s{sH}, 20
                s_add_u32 s{A.sQ}, s64, s65
                s_lshl_b32 s65, s{A.sWAVE}, 14
                s_add_u32 s{A.sQ}, s{A.sQ}, s65
                s_add_u32 s{A.sQ}, s{A.sQ}, {WS_Q}
                s_mov_b32 s{A.sTHR}, {hex(f2u(float(opt['thr'])))}
                s_mov_b32 s{A.sMODE}, 1
                s_sub_u32 s64, s{sJ}, {JC}
                s_and_b32 s{A.sNC}, s64, {side.OOB}
                """), 50)
            tv = 26 if t < O('tB') - 1 else 24
            if str(t) in opt['tc'].split(','): tch += side.code_addr(26, 26) + [side.touch(26, 76, 0, nt=False)]
            fit(tch, O('tg'))
            if O('bkv'):
                if t == 0:
                    vb = VQ()
                    smp = lambda y: [kvq.kacc(y, x)[1] + e for x in range(2) for e in range(4)]
                    est = []
                    for y, r in ((1, 20), (2, 21)):
                        v = smp(y)
                        est.append(L(f"v_max3_f32 v{r}, |v{v[0]}|, |v{v[1]}|, |v{v[2]}|\nv_max3_f32 v{r}, |v{v[3]}|, |v{v[4]}|, v{r}\nv_max3_f32 v{r}, |v{v[5]}|, |v{v[6]}|, v{r}"))
                    k = fit(est[0], 16)
                    k = fit(est[1] + L(f"v_min_f32 v20, v20, v21\nv_mul_f32 v20, {hex(f2u(float(opt['bkk'])))}, v20") + [I(f"v_mov_b32 v{20 + e}, v20") for e in (1, 2, 3)] +
                            L("v_accvgpr_write_b32 a241, v20"), max(k, 24))
                    assert k < 38, k
                if t == O('tB') - 1: fit(L("v_accvgpr_read_b32 v27, a241"), 1)
                for y in range(1, 8):
                    if t == O('tB') - (y < O('bsp')):
                        vb.add([I(f"v_sub_f32 v{kvq.kacc(y, x)[1] + e}, v{kvq.kacc(y, x)[1] + e}, v27") for x in range(8) for e in range(4) if kvq.kv_c0(y, x) != "0"], 128 * t + 16 * y + 20)
                vb.run(g, 128 * t)
                for at, i in vb.placed:
                    q = min(q for q in range(128) if any(i is x for x in g.ve[q]))
                    assert 128 * t + q < at + 128 - 22, (t, at, q)
                assert t < 14 or not vb.q
            out += g.flat()
            if t in (0, 1, 11, 14) or opt['fine'] == '1': out += stamp(tv)
        flat = lambda gs: [i for x in gs for i in x]
        base = f"s_lshl_b32 s{A.sK}, s{sH}, 20\ns_mov_b32 s{A.sCNT}, 0\ns_lshl_b32 s{A.sJ[2][1]}, s{sH}, 18\ns_add_u32 s{A.sJ[2][1]}, s{A.sJ[2][1]}, {WS_WO}\ns_add_u32 s{A.sVn}, s{A.sJ[2][1]}, 65536\n"
        (c1, a1), (c2, a2), (c3, a3) = A.sJ
        jumps = L(base + (f"""
            s_add_u32 s64, s{sJ}, 1
            s_min_u32 s64, s64, {JC}
            s_sub_u32 s{A.sIT}, s64, {2 + EXT}
            s_lshl_b32 s{c3}, s64, 1
            s_sub_u32 s{c2}, s{c3}, 2
            s_lshl_b32 s64, s{sJ}, 16
            s_add_u32 s{a2}, s{A.sK}, s64
            s_sub_u32 s{a1}, {34 * 32768}, s64
            s_add_u32 s{a1}, s{a1}, s{A.sK}
            s_lshl_b32 s64, s{sJ}, 1
            s_sub_u32 s64, 32, s64
            s_cmp_ge_u32 s{sJ}, {JC}
            s_cselect_b32 s{c1}, s64, {NEVER}
            """ if vt else f"""
            s_sub_u32 s{A.sIT}, s{sJ}, 1
            s_mov_b32 s{c2}, {NEVER}
            s_mov_b32 s{a2}, 0
            s_add_u32 s{a1}, s{A.sK}, {XS * 32768}
            s_lshl_b32 s64, s{sJ}, 1
            s_add_u32 s65, s64, 4
            s_add_u32 s64, s64, 2
            s_cmp_le_u32 s{sJ}, {15 - JC}
            s_cselect_b32 s{c1}, s65, {NEVER}
            s_cselect_b32 s{c3}, {34 - XS}, s64
            """) + f"s_mov_b32 s{A.sKP}, 0")
        w0 = L("v_mov_b32 v12, 1") + side.lane0_wave0(15)
        w1_ = L(f"""
            s_mov_b32 s{A.sREQ}, {(0x500 if vt else 0x543) if EXT else (0x4003 if vt else 0x43)}
            {'' if vt else f's_cmp_lt_u32 s{sJ}, 2' + chr(10) + f's_cselect_b32 s{A.sREQ}, {0x504 if EXT else 4}, s{A.sREQ}'}
            s_lshl_b32 s64, s{A.sWAVE}, 14
            s_add_u32 s{A.sPB}, s64, s{A.sPO}
            s_add_u32 s{A.sPB + 1}, s{A.sPB}, 4096
            s_add_u32 s{A.sPB + 2}, s{A.sPB}, 8192
            s_add_u32 s{A.sPB + 3}, s{A.sPB}, 12288
            """)
        w3 = L(f"v_min_u32 v25, 15, v0\nv_lshlrev_b32 v25, {FSH}, v25\nv_{'max' if SW else 'min'}_u32 v13, {(8 if SW else 7) << FSH}, v25")
        w4 = L(f"s_lshl_b32 s{A.sM0}, s{A.sWAVE}, 13") + jumps[:8] + L(F1_LOAD) + jumps[8:]
        w5 = L(f"""
            v_add_u32 v10, s{A.sM0}, v{A.vL16}
            v_add_u32 v11, 0x1000, v10
            v_cmp_eq_u32 vcc, 0, v24
            s_lshl_b32 s64, s{A.sWAVE}, 10
            s_cbranch_vccnz L_f1s{vt}4
            L_f1r{vt}4:
            """) + dma_flat(3, A.sK, 10) + adv_k() + L(f"""
            v_mov_b32 v{A.vFL}, v25
            v_lshrrev_b32 v24, 4, v0
            v_lshlrev_b32 v24, 2, v24
            v_and_b32 v25, 15, v0
            v_sub_u32 v24, v24, v25
            s_add_u32 s64, s64, s{A.sPO}
            s_add_u32 s{A.sPS}, s64, 65536
            s_mov_b32 s{A.sLO}, {hex(f2u(float(opt['lo'])))}
            s_cmp_eq_u32 s{A.sWAVE}, 0
            s_cselect_b32 s{A.sRT}, s{A.sREQ}, 0
            s_lshr_b32 s64, s{K.sWAVE}, 1
            s_lshl_b32 s64, s64, 17
            s_and_b32 s65, s{K.sWAVE}, 1
            s_lshl_b32 s65, s65, 12
            s_add_u32 s64, s64, s65
            v_add_u32 v14, s64, v7
            v_mov_b32 v{A.vNEG}, 0xff800000
            """) + [I(f"v_cmp_lt_i32 s[{A.sTRI[e]}:{A.sTRI[e]+1}], {-e}, v24") for e in range(4)]
        head6 = L(f"""
            {F2_LOAD}
            v_mov_b32 v{A.vF0}, v15
            v_add_u32 v{A.vRD1}, 0x10000, v{A.vL16}
            v_mov_b32 v{A.vDM0}, v10
            v_mov_b32 v{A.vDM1}, v11
            s_mov_b64 s[60:61], s[76:77]
            s_mov_b32 s62, s78
            s_mov_b32 s63, 0x20000
            """) + side.code_addr(0, 10)
        kvq.X6LOW = True; asmlib.VMX = False
        body, left = kvq.kv_to_q(pt, O(o + "15"), [int(x, 16) for x in opt[o + "st"]], O(o + "f"), [side.flag_store(sFL, 15, 12)], lambda: fst(2, 26),
                                 {0: w0, 1: w1_, 2: yadr if vt == 0 else [], 3: w3, 4: w4, 5: w5}, head6, dma_flat(1, A.sK) + adv_k(),
                                 [] if vt else [[i] for i in yst], 16)
        asmlib.VMX = True
        assert len(left) == (8 if vt else 0), len(left)
        st = kvq.Storer(A.sT1, "KV4")
        park = [I(f"v_accvgpr_write_b32 a{128 + 4*n + e}, v{int(r[2:r.index(':')]) + e}") for n, (r, off) in enumerate(left) for e in range(4)]
        later = [st.st(R("a", 128 + 4 * n, 4), off) for n, (r, off) in enumerate(left)]
        xch = ([WAITV([("T", 3)], lgkm0=True), I("s_barrier")] + stamp(26) + rd_batch(3, 0) + q_from_lds() +
               L(f"""v_cmp_eq_u32 vcc, 0, v24
               v_mov_b32 v{A.vX + 7}, {3 if vt else 4 + EXT}
               v_or_b32 v{A.vRL + 1}, s{A.sNC}, v{A.vL16}
               s_cbranch_vccnz L_f1s{vt}5
               L_f1r{vt}5:
               s_mov_b32 s{A.sT1}, s{K.sOOFF}
               s_mov_b32 s{A.sT0}, s94
               s_cmp_eq_u32 s{A.sWAVE}, 0
               s_cselect_b32 s{A.sPT}, {(4 + EXT) * vt}, 0""") + [I(f"v_mov_b32 v{A.vNM + r}, {NM0}") for r in range(8)] + [NEED(R("a", 0, 96))])
        g, sm = first_qk(False)
        g.sc[46][0].tag = g.sc[46][0].tag + ["KVST", "KVM"]
        g.put(48 + 2, side.flag_store(sFL, A.vF0, A.vX + 7))
        nq = O('nq')
        qst = [([I(f"s_add_u32 s3, s{A.sQ}, {(n >> 2) * 4096}")] if n % 4 == 0 or n == nq else []) +
               [I(f"buffer_store_dwordx4 a[{4*n}:{4*n+3}], v{A.vRL + 1}, {WSR}, s3 offen offset:{(n & 3) * 1024} sc1", tag="QST")] for n in range(16)] if vt else []
        place_vm(g, [(dma_flat(2, A.sV), 1, 40)] + ([(flat(qst[:nq]), O('w0l'), 62)] if vt and nq else []))
        vq = VQ(); vq.add([I(f"v_mov_b32 v{r}, 0") for r in (A.vLS, A.vLS + 1)] + park)
        vq.run(g, 0, 0, 14)
        sm.run(g, 8, 64, final=False, upto=8)
        vq.run(g, 0)
        vq.force(g, 63, lambda i: i.op == "v_mov_b32")
        out += body + xch + g.flat() + stamp()
        if vt == 1:
            wo = [[I(f"s_add_u32 s3, s{A.sT0}, {n * 32768}"), I(w[1].text, tag="KV4")] for n, w in enumerate(side.wo2_stores())]
            w_1 = win_qk(0, "L_st8", "L_rt8", groups=qst[nq:], dma=(3, A.sK, adv_k()), sm=sm, lo_check=True, dhi=40, vq=vq)
            dump = [i for at, i in vq.q[:max(0, len(vq.q) - 16)]]; vq.q = vq.q[len(dump):]
            if O('v') > 1: sys.stderr.write(f"; start: dumped {len(dump)}\n")
            if EXT:
                n0 = int(opt['l4'][0]); st.tag = "KV3"; st.cur = None
                l4 = [[st.st(R("a", 128 + 4 * n, 4), off) for n, (r, off) in enumerate(left[:n0])]]; st.cur = None
                l4.append([st.st(R("a", 128 + 4 * n, 4), off) for n, (r, off) in enumerate(left[n0:], n0)])
                wc = [int(x) for x in opt['wn']]; wn = [wo[sum(wc[:n]):sum(wc[:n + 1])] for n in range(4)]; assert sum(wc) == 7
                if SENT:
                    mk = [([I(f"s_add_u32 s3, s{A.sOP}, {10240 + (n >> 2) * 14336}")] if n % 4 == 0 or True else []) +
                          [I(f"buffer_store_dwordx4 a[232:235], v{A.vL16}, {WSR}, s3 offen offset:{(n & 3) * 1024} sc1", tag="KV4")] for n in range(8)]
                    mc = [int(x) for x in opt['mk']]; assert sum(mc) == 8
                    for n in range(3): wn[1 + n] = wn[1 + n] + mk[sum(mc[:n]):sum(mc[:n + 1])]
            def early(g):
                vq.run(g, 0); assert not vq.q
                for q in range(g.n):
                    for i in g.ve[q]:
                        if i.op.startswith("v_accvgpr"): assert not any(set(i.reads) & set(g.m[x].writes) for x in range(q + 1)), (q, i.text)
            c.block("kv1", "L_kv1:", out, w_1, dump, fst(3),
                    win_pv(0, cz=True, pre_dma=(0, A.sV), tags=["QST"], vq_first=early,
                           post=L(f"s_xor_b32 s3, s47, 64\nv_mov_b32 v{A.vRL}, 1\nv_or_b32 v{A.vRL + 1}, s{A.sNC}, v{A.vF0}") + [side.flag_store(3, A.vRL + 1, A.vRL)]), fst(3),
                    *([win_qk(1, "L_st9", "L_rt9", groups=later, ghi=60, scal=mask_regs(False, (0, 1))), fst(3),
                       win_pv(1, groups=wo, glo=1, ghi=34, dlo=4, scal=mask_regs(False, (3,)), tail=L("s_branch L_loop_mid"))] if not EXT else
                      [win_qk(1, "L_st9", "L_rt9", groups=l4[0], ghi=60), fst(3), win_pv(1, groups=l4[1], ghi=60), fst(3),
                       win_qk(0, "L_st12", "L_rt12", extra=L(FL_LOAD), groups=wn[0], glo=6, scal=mask_regs(False, (0, 1))),
                       win_pv(0, tags=["KV3"], groups=wn[1], ghi=44, chk=L(f"v_cmp_gt_u32 vcc, 3, v{A.vRL + 1}\ns_cbranch_vccnz L_f4s\nL_f4r:"),
                              post=L(f"v_mov_b32 v{A.vX + 7}, 4") + [side.flag_store(sFL, A.vF0, A.vX + 7)]), fst(3),
                       win_qk(1, "L_st13", "L_rt13", groups=wn[2], scal=mask_regs(False, (2, 3))),
                       win_pv(1, groups=wn[3], glo=1, ghi=20 if len(wn[3]) < 4 else 32, dlo=1 if len(wn[3]) < 4 else 4, tail=L("s_branch L_loop_mid"))]))
            b_ = c.blocks["kv1"]
            if not EXT: b_[-1:-1] = mask_regs(False, (2,))
            assert max(n for n, i in enumerate(b_) if i.tag == "KV4") < max(n for n, i in enumerate(b_) if i.kind == "dma")
        else:
            assert not vq.q
            c.block("kv0", "L_kv0:", out, f"s_cmp_eq_u32 s{sJ}, 0\ns_cbranch_scc1 L_j0")
            c.block("k1", win_qk(0, "L_st10", "L_rt10", dma=(3, A.sK, adv_k()), sm=sm, lo_check=True, dhi=40, scal=mask_regs(False)), fst(3),
                    win_pv(0, cz=True, pre_dma=(0, A.sV), tail=L(f"s_cmp_lg_u32 s{A.sIT}, 0\ns_cbranch_scc1 L_loop_top")), "s_branch L_p1")
            c.block("j0", "L_j0:", mask_regs(False), ZZ(), f"v_accvgpr_write_b32 a{aOF}, 0\nv_accvgpr_write_b32 a{aOF + 1}, 0", [i for kb in range(4) for i in mask_blk(0, kb, 0, inplace=True)], mask_regs(True),
                    zero_O_mfma(mix(init_softmax(0), dma_flat(3, A.sK) + adv_k() + L(FP_LOAD), 1, 100), A.vP1),
                    [i for kb in range(4) for i in mask_blk(1, kb, 1)], "s_branch L_p2")

def build_att(c):
    fs = lambda: fst(3)
    c.block("loop_top", ".p2align 6\nL_loop_top:", fs(), win_qk(1, "L_st1", "L_rt1", extra=[side.touch(0, 60, 0, nt=False)] if opt['tl'] == '1' else []), win_pv(1))
    c.block("loop_mid", "L_loop_mid:", fs(), win_qk(0, "L_st0", "L_rt0", head=L(f"s_and_b32 s{A.sREQ}, s{A.sRT}, 15\ns_cbranch_scc1 L_fll\nL_fllr:\ns_lshr_b32 s{A.sRT}, s{A.sRT}, 4")),
            win_pv(0, tail=L(f"s_sub_u32 s{A.sIT}, s{A.sIT}, 1\ns_cmp_lg_u32 s{A.sIT}, 0\ns_cbranch_scc1 L_loop_top"),
                   chk=L(f"""v_cmp_gt_u32 vcc, s{A.sREQ}, v{A.vRL + 1}
                   s_cbranch_vccnz L_fls0
                   L_flr0:
                   s_and_b32 s3, s{A.sPT}, 15
                   s_cbranch_scc1 L_pub3
                   L_pub3r:
                   s_lshr_b32 s{A.sPT}, s{A.sPT}, 4""")))
    c.block("p1", "L_p1:", stamp(), f"s_cmp_eq_u32 s{A.sMODE}, 0\ns_cbranch_scc1 L_final_h", win_qk(1, "L_st5", "L_rt5", masked=True), fs(),
            win_pv(1, scal=mask_regs(True), valu=[i for kb in range(4) for i in mask_blk(1, kb, 1)], vlo=34, post=L(FP_LOAD)), fs())
    g = Gaps(qkB_mfmas())
    half_reads(g, 1, 2, [("T", 2)])
    half_dma(g, dma_flat(0, A.sV))
    ck = check(0, "L_st6")
    spread_any(g, softmax_half(0, 1) + ck[:2], 0, 28); g.put(31, ck[2])
    c.block("p2", "L_p2:", g.flat(), "L_rt6:", fs(), f"s_cmp_le_u32 s{sJ}, {15 - JC}\ns_cbranch_scc1 L_p3k\ns_cmp_ge_u32 s{sJ}, {JC}\ns_cbranch_scc1 L_p3c")
    smB = lambda: SM(groups_B(), add_l(0))
    pchk = lambda n: L(f"v_cmp_ne_u32 vcc, 1, v{A.vRL}\ns_cbranch_vccnz L_fps{n}\nL_fpr{n}:")
    lfin = lambda: add_l(1, (1,)) + zip2(xlane("v_add_f32", A.vLS, A.vX), xlane("v_add_f32", A.vLS + 1, A.vX + 1)) + L(f"v_rcp_f32 v{A.vRL}, v{A.vLS}\nv_rcp_f32 v{A.vRL+1}, v{A.vLS+1}")
    w2a = lambda: L(f"s_add_u32 s{A.sVn}, s{A.sVn}, 32768")
    c.block("p3o", win_pv(0, sm=smB(), nslot=0, end=check(1, "L_st2", only=1)), "L_rt2:", stamp())
    g = Gaps(pvB_mfmas())
    half_reads(g, 0, 3, [("T", 3)])
    half_dma(g, dma_flat(2, A.sVn) + w2a())
    spread_any(g, of_rd(A.vX + 4) + [i for ks in range(8) for i in cvt_ctx(ks, 0)], 1, 32)
    c.block("pBo", "L_pBo:", g.flat(), stamp(), "s_branch L_op1")
    pl = [I(f"buffer_load_dwordx4 v[{A.vX+4}:{A.vX+7}], v{A.vL16}, {WSR}, s{A.sPS} offen sc1")] + [
        I(f"buffer_load_dwordx4 a[{A.aX + 4*j}:{A.aX + 4*j + 3}], v{A.vL16}, {WSR}, s{A.sPB + j // 4} offen offset:{(j & 3) * 1024} sc1") for j in range(16)]
    c.block("p3c", "L_p3c:", pchk(0), win_pv(0, sm=smB(), nslot=0, end=check(1, "L_st3", only=1), groups=[[i] for i in pl], glo=0, ghi=60, nodma=True), "L_rt3:", stamp(),
            NEED(R("v", A.vX + 4, 4)), f"""
            v_cmp_neq_f32 vcc, v{A.vNM}, v{A.vX+4}
            v_cmp_neq_f32 s[64:65], v{A.vNM+4}, v{A.vX+5}
            v_add_f32 v{A.vX+6}, v{A.vX+6}, v{A.vLS}
            v_add_f32 v{A.vX+7}, v{A.vX+7}, v{A.vLS+1}
            s_or_b64 vcc, vcc, s[64:65]
            s_cbranch_vccnz L_comb
            """)
    cm = lambda qb, ks, hf: mfma(R("v", Oreg(2 * ks + hf, qb), 4), R("a", 246 - 2 * hf, 4), R("a", A.aX + (qb * 8 + ks) * 4, 4), R("v", Oreg(2 * ks + hf, qb), 4))
    F3 = lambda b, f: 192 + 4 * f if b == 2 else Freg(b, f)
    g = Gaps([pvB_mfma(db, kp, F3) for db in range(16) for kp in ((0, 1) if db % 2 == 0 else (1, 0))] + [cm(qb, ks, hf) for qb in range(2) for ks in range(8) for hf in range(2)])
    for b_, pos in ((1, [0, 0, 2, 2, 4, 4, 5, 6]), (2, [6, 8, 8, 10, 10, 12, 12, 14]), (3, [16, 16, 17, 18, 18, 19, 20, 20])):
        for f, k in enumerate(pos): g.put(k, rd_frag(0, b_, f, F3(b_, f)))
    g.put_s(7, NEED(R("a", Freg(1, 0), 16))); g.put_s(11, NEED(R("a", Freg(1, 4), 16))); g.put_s(15, NEED(R("a", 192, 16))); g.put_s(19, NEED(R("a", 208, 16)))
    g.put_s(23, NEED(R("a", Freg(1, 0), 32))); g.put_s(31, NEED(R("a", A.aX, 32))); g.put_s(47, NEED(R("a", A.aX + 32, 16))); g.put_s(55, NEED(R("a", A.aX + 48, 16)))
    g.put_s(34, WAITV([("T", 3)], lgkm0=True)); g.put_s(35, I("s_barrier"))
    for f, r in enumerate(rd_batch(3, 0)): g.put(44 + RPAT[0][f], r)
    g.put_s(62, NEED(R("a", Freg(0, 0), 32)))
    place_vm(g, [(dma_flat(1, A.sK) + dma_flat(2, A.sVn) + w2a(), 1, 61)])
    vq = VQ(); vq.add(L(f"v_mov_b32 v{A.vLS}, v{A.vX+6}\nv_mov_b32 v{A.vLS+1}, v{A.vX+7}") + of_rd(A.vX + 4))
    cv = [cvt_ctx(ks, 0) for ks in range(8)]
    for ks in range(8): vq.add(cv[ks][:-4], 4)
    nsub = len(vq.q)
    vq.run(g, 0, 0, 30); vq.force_level(g, lambda i: True, 0, 30)
    for ks in range(8): vq.add(cv[ks][-4:], 32 + 2 * ks + 5)
    vq.run(g, 0, 30); vq.force(g, 63, lambda i: True)
    c.block("pBc", g.flat(), stamp())
    comb = [I("L_comb:")] + [I(pl[0].text), I("s_waitcnt vmcnt(0)")] + dma_flat(1, A.sK) + L(f"""
    s_nop 7
    v_sub_f32 v{A.vX}, v{A.vNM}, v{A.vX+4}
    v_sub_f32 v{A.vX+1}, v{A.vNM+4}, v{A.vX+5}
    v_max_f32 v{A.vX}, 0, v{A.vX}
    v_max_f32 v{A.vX+1}, 0, v{A.vX+1}
    """) + sub_S(1, (1,)) + rescale_state() + sm_flat(groups_B()) + L(f"""
    v_sub_f32 v{A.vX}, v{A.vNM}, v{A.vX+4}
    v_sub_f32 v{A.vX+1}, v{A.vNM+4}, v{A.vX+5}
    v_cvt_i32_f32 v{A.vX}, v{A.vX}
    v_cvt_i32_f32 v{A.vX+1}, v{A.vX+1}
    v_ldexp_f32 v{A.vX}, 1.0, v{A.vX}
    v_ldexp_f32 v{A.vX+1}, 1.0, v{A.vX+1}
    v_and_b32 v{A.vX}, 0xffff0000, v{A.vX}
    v_and_b32 v{A.vX+1}, 0xffff0000, v{A.vX+1}
    v_fmac_f32 v{A.vLS}, v{A.vX}, v{A.vX+6}
    v_fmac_f32 v{A.vLS+1}, v{A.vX+1}, v{A.vX+7}
    v_lshrrev_b32 v{A.vX+2}, 16, v{A.vX}
    v_lshrrev_b32 v{A.vX+3}, 16, v{A.vX+1}
    """)
    n = 0
    for qb in range(2):
        for ks in range(8):
            for w in range(4):
                t = A.vT + (n % 8); n += 1
                o = Oreg(2 * ks + (w >> 1), qb) + 2 * (w & 1)
                comb += L(f"""v_accvgpr_read_b32 v{t}, a{A.aX + (qb * 8 + ks) * 4 + w}
                v_dot2c_f32_bf16 v{o}, v{t}, v{A.vX + 2 + qb}
                v_dot2c_f32_bf16 v{o+1}, v{t}, v{A.vX + qb}""")
    comb += L("s_nop 3\ns_branch L_pBo")
    S5 = O('s5')
    slots = [3, 1, 2, 0, 4, 3, 1] if S5 else [3, 1, 2, 0, 3, 1, 2]
    def op_out(j, split=False):
        b = j & 1
        jo = j
        ins = L(f"s_add_u32 s{A.sT0}, s{A.sOP}, {2 * jo * 1024}\ns_add_u32 s{A.sT1}, s{A.sOP}, {14336 + 2 * jo * 1024}")
        for pp in range(2):
            if split and pp == 1: ins.append(64)
            for qb in range(2):
                a, d = Sreg(b, 2 * pp, qb), Sreg(b, 2 * pp + 1, qb)
                if BOP and j == 0 and pp == 0:
                    nm = A.vNM + 4 * qb
                    ins += L(f"""v_max3_f32 v{nm}, |v{a}|, |v{a+1}|, |v{a+2}|
                    v_max3_f32 v{nm}, |v{a+3}|, |v{d}|, v{nm}
                    v_max3_f32 v{nm}, |v{d+1}|, |v{d+2}|, v{nm}
                    v_mul_f32 v{nm}, {opt['bopk']}, v{nm}""") + [I(f"v_mov_b32 v{nm + e}, v{nm}") for e in (1, 2, 3)] + L(f"v_mul_f32 v{A.vSUM + 2 + qb}, -v{nm}, v{A.vRL + qb}")
                if BOP and j >= 2: ins += [I(f"v_fma_f32 v{r + e}, v{r + e}, v{A.vRL + qb}, v{A.vSUM + 2 + qb}") for r in (a, d) for e in range(4)]
                else: ins += [I(f"v_mul_f32 v{r + e}, v{A.vRL + qb}, v{r + e}") for r in (a, d) for e in range(4)]
                ins += L(f"""v_cvt_pk_bf16_f32 v{a}, v{a}, v{a+1}
                v_cvt_pk_bf16_f32 v{a+1}, v{a+2}, v{a+3}
                v_cvt_pk_bf16_f32 v{a+2}, v{d}, v{d+1}
                v_cvt_pk_bf16_f32 v{a+3}, v{d+2}, v{d+3}""")
                ins.append(I(f"buffer_store_dwordx4 v[{a}:{a+3}], v{A.vL16}, {WSR}, s{A.sT0 + qb} offen offset:{pp * 1024} sc1", tag=("OP", j)))
        return ins
    fop0 = lambda: L(f"""
    s_sub_u32 s64, 15, s{sJ}
    s_min_u32 s64, s64, s{sJ}
    s_mul_i32 s{sFL}, s64, {2 * FSTR}
    s_and_b32 s64, s{sJ}, 8
    s_lshl_b32 s64, s64, 1
    s_add_u32 s64, s64, s{sH}
    s_lshl_b32 s64, s64, 2
    s_add_u32 s{sFL}, s{sFL}, s64
    s_add_u32 s{sFL}, s{sFL}, {WS_FOP}
    s_lshl_b32 s64, s{A.sWAVE}, 8
    s_add_u32 s{sFL}, s{sFL}, s64
    s_add_u32 s3, s{sFL}, {FSTR}
    v_lshrrev_b32 v{A.vX + 7}, 5, v{A.vL16}
    v_min_u32 v{A.vX + 7}, 1, v{A.vX + 7}
    v_lshlrev_b32 v{A.vX + 6}, 3, v{A.vL16}
    v_lshl_or_b32 v{A.vX + 6}, v{A.vX + 7}, 29, v{A.vX + 6}
    v_mov_b32 v{A.vX + 5}, 1
    """)
    R3 = opt['r3'] == '1'
    fop = (lambda: red3.fop(A.vL16, 40, sFL, 3)) if R3 else fop0
    vFV = 40 if R3 else A.vX + 5; EH = R3 and opt['eh'] == '1'
    def dbgst():
        if opt['dbgst'] == '0': return []
        o = f"""
        s_load_dwordx2 s[72:73], s[0:1], {A_DBG}
        v_accvgpr_read_b32 v11, a{aST+1}
        v_accvgpr_read_b32 v15, a{aST}
        v_lshrrev_b32 v12, 4, v{A.vL16}
        v_mov_b32 v13, {side.OOB}
        s_waitcnt lgkmcnt(0)
        {srd(68, 72, 256)}
        s_lshl_b32 s64, s2, 2
        s_add_u32 s64, s64, s{A.sWAVE}
        s_cmp_eq_u32 s64, {O('dbgst')}
        s_cselect_b32 s64, 0, {side.OOB}
        s_and_b32 s65, s{sJ}, 8
        s_or_b32 s65, s65, s{A.sWAVE}
        s_cmp_eq_u32 s65, 0
        s_cselect_b32 s65, 0, {side.OOB}
        """
        for n, ln in enumerate([int(x) for x in opt['dbgl'].split(',')]):
            o += f"s_add_u32 s66, s64, {4 * (2 + n)}\nv_cmp_eq_u32 vcc, {ln}, v12\nv_mov_b32 v14, s66\ns_nop 1\nv_cndmask_b32 v13, v13, v14, vcc\n"
        o += f"""buffer_store_dword v11, v13, s[68:71], 0 offen
        buffer_store_dword v15, v13, s[68:71], 0 offen offset:28
        s_sub_u32 s66, s{sSTK}, 1
        v_mov_b32 v13, {side.OOB}
        v_cmp_eq_u32 vcc, s66, v12
        v_mov_b32 v14, 4
        s_nop 1
        v_cndmask_b32 v13, v13, v14, vcc
        v_or_b32 v13, s65, v13
        buffer_atomic_umax v11, v13, s[68:71], 0 offen
        v_not_b32 v11, v11
        v_min_u32 v13, 1, v12
        v_lshlrev_b32 v13, 29, v13
        v_or_b32 v13, s65, v13
        s_nop 1
        buffer_atomic_umax v11, v13, s[68:71], 0 offen
        s_waitcnt vmcnt(0)
        """
        return L(o)
    fin = lambda: (L("s_mov_b64 exec, -1\ns_waitcnt vmcnt(0)") + stamp(30) + L(f"""
        s_lshl_b32 s{A.sT0}, s2, 2
        s_add_u32 s{A.sT0}, s{A.sT0}, s{A.sWAVE}
        s_lshl_b32 s{A.sT0}, s{A.sT0}, 9
        s_add_u32 s{A.sT0}, s{A.sT0}, {WS_STAMP}
        v_lshrrev_b32 v10, 1, v{A.vL16}
        buffer_store_dwordx2 a[{aST}:{aST+1}], v10, {WSR}, s{A.sT0} offen
        """) + dbgst()) if STAMP else []
    def last_reads(g, slot):
        for b in range(1, 4):
            for f, r in enumerate(rd_batch(slot, b)): g.put((b - 1) * 16 + RPAT[0][f], r)
            g.put_s(b * 16 - 1, NEED(R("a", Freg(b, 0), 32)))
    ctx_v = lambda qb, ks: R("v", Oreg(2 * ks, qb), 4)
    ctx_a = lambda qb, ks: R("a", A.aX + (qb * 8 + ks) * 4, 4)
    pub = lambda: [WAITV([("OP", 6)])] + L(f"buffer_store_dword v{vFV}, v{vFV + 1}, {WSR}, s3 offen sc1") + stamp(30)
    def outproj(tag, ctx, first=(), tags0=(), post0=()):
        ow = []
        for j in range(7):
            k = 2
            if j == 0 and tag:
                g = Gaps(qk_mfmas(0, "zero", breg=ctx, order=[(kb, qb) for qb in range(2) for kb in range(4)], fr=Freg4))
                half_reads(g, slots[0], slots[1], [("T", slots[1])], bar=47)
                def cv0():
                    vq = VQ()
                    for ks in range(8): vq.add(cvt_ctx(ks, 1), 3 if ks > 5 else 0)
                    k = vq.run(g, 0, 0, 31); vq.force_level(g, lambda i: True, 0, 31); return min(k, 31)
                if not S5: k = cv0()
            else:
                g = Gaps(qk_mfmas(j & 1, "nm" if BOP and j >= 2 else "zero", breg=ctx))
                if j < 6: weave_reads(g, slots[j], slots[j + 1], [("T", slots[j + 1])] + (list(tags0) if j == 0 else []))
                else: last_reads(g, slots[j])
            if j == 0:
                kk = 48
                for i in post0: kk = g.fit(kk, i) if i.slots()[0] else g.fit_s(kk, i) + 1
            if S5 and j == 0: place_vm(g, [(dma_flat(0, A.sVn) + w2a() + dma_flat(4, A.sVn) + w2a(), 1 if not tag else 5, 61)])
            elif S5:
                if j < 3: weave_dma(g, slots[j + 4], A.sVn, w2a(), 1, O('odh5'))
                if j == 2: g.fit(30, I(f"v_add_u32 v43, 0x20000, v{A.vL16}"))
            elif j + 3 < 7: weave_dma(g, slots[j + 3], A.sVn, w2a(), k if j == 0 else 1, 60 if j == 0 else O('odh'))
            if j == 0 and tag and S5: k = cv0()
            if j == 0: assert not seq_fit(g, list(first) + (fop() if not (tag or S5) else []), k)[1]
            if j == 3 and (tag or S5): assert not seq_fit(g, fop(), 1)[1]
            if j == 2: assert not seq_fit(g, side.sel_a(A.vL16), 1)[1]
            if j in (4, 5): assert not seq_fit(g, {4: side.sel_b(tag), 5: side.sel_c()}[j], 40 if j == 5 else 2)[1]
            if j == O('efw'):
                assert not seq_fit(g, [WAITV([("OP", (side.NE - 1) // 2)]), I(f"buffer_store_dword v{vFV}, v{vFV + 1}, {WSR}, s{sFL} offen sc1")], O('efg'))[1]
            if j == 6 and tag and SENT:
                assert EH and not seq_fit(g, L(f"s_sub_u32 s64, s{sJ}, 8\ns_and_b32 s64, s64, {side.OOB}\ns_or_b32 s64, s64, s3") +
                                          [WAITV([("OP", 4)]), I(f"buffer_store_dword v{vFV}, v{vFV + 1}, {WSR}, s64 offen sc1")], O('sg'))[1]
            if j > 0: k = fill_valu(g, op_out(j - 1), 3, 58 if j < 6 else 36)
            if j == 6: k, last = seq_fit(g, op_out(6, True), max(k, 38))
            if tag and j in (0, 3, 5):
                n = {0: 1, 3: 2, 5: 3}[j]
                g.put_s(62, I(f"s_cmp_eq_u32 s{sJ}, {O('jy')}")); g.put_s(63, I(f"s_cbranch_scc1 L_y{n}"))
            ow += g.flat() + (L(f"L_y{n}r:") if tag and j in (0, 3, 5) else []) + fst(4, 30)
        return ow + stamp(30) + [i for i in last if not isinstance(i, int)] + ([] if EH else pub())
    c.block("op1", "L_op1:", outproj(1, ctx_v, lfin()), f"s_cmp_lt_u32 s{sJ}, 8\ns_cbranch_scc1 L_red")
    if R3:
        mv, farv = red3.main_v(A.vL16, lambda: stamp(30), O('lagv'), SENT)
        pubv = lambda: stamp(30) if SENT else pub() if EH else []
        c.block("end1", f"s_cmp_eq_u32 s{A.sWAVE}, 3\ns_cbranch_scc1 L_vend3", red3.head(True), pubv(), mv, "L_vend:", fin(), "s_endpgm")
        c.block("end3", "L_vend3:", pubv(), "s_branch L_vend", "s_waitcnt vmcnt(0)", farv)
    else: c.block("end1", fin(), "s_endpgm")
    qld = [[I(f"buffer_load_dwordx4 a[{4*n}:{4*n+3}], v{A.vL16}, {WSR}, s{72 + n // 4} offen offset:{(n & 3) * 1024} sc1")] for n in range(16)]
    c.block("p3k", "L_p3k:", f"""
            s_mov_b32 s72, s{A.sQ}
            s_add_u32 s73, s72, 4096
            s_add_u32 s74, s72, 8192
            s_add_u32 s75, s72, 12288
            """, pchk(1), win_pv(0, sm=smB(), nslot=0, end=check(1, "L_st7", only=1), groups=qld, glo=0, ghi=60, nodma=True), "L_rt7:", stamp())
    g = Gaps(pvB_mfmas())
    half_reads(g, 0, 3, [("T", 3)])
    half_dma(g, dma_flat(1, A.sK) + adv_k())
    scal_fit(g, L(f"s_sub_u32 s{A.sIT}, {15 - JC}, s{sJ}\ns_mov_b32 s{A.sMODE}, 0"))
    vq = VQ()
    vq.add(lfin() + L(f"""v_accvgpr_write_b32 a192, v{A.vRL}
        v_accvgpr_write_b32 a193, v{A.vRL + 1}
        v_mov_b32 v{A.vLS}, 0
        v_mov_b32 v{A.vLS + 1}, 0""") + [I(f"v_mov_b32 v{A.vNM + r}, {NM0}") for r in range(8)])
    vq.add(of_rd(A.vX + 4))
    for ks in range(8):
        for qb in range(2):
            vq.add(cvt_ctx(ks, qb), 4 * ks + 7 if qb else 0)
            vq.add([I(f"v_accvgpr_write_b32 a{A.aX + (qb * 8 + ks) * 4 + e}, v{Oreg(2 * ks, qb) + e}") for e in range(4)], 32)
    vq.run(g, 0)
    vq.force(g, 31, lambda i: f"v{A.vNM + 7}" in i.writes)
    w_b = g.flat()
    g, sm = first_qk(False)
    g.pre = [NEED(R("a", 0, 64))]
    g.put(40, I(f"v_cmp_gt_u32 vcc, 3, v{A.vRL + 1}")); g.put_s(43, I("s_cbranch_vccnz L_f2s")); g.put_s(43, I("L_f2r:"))
    place_vm(g, [(dma_flat(2, A.sV), 3, 44), ([I(FL_LOAD)], 0, 1)])
    sm.run(g, 8, 64, final=False, upto=8)
    vq.run(g, 32)
    vq.q = [(0, i) for at, i in vq.q]
    w_1 = win_qk(0, "L_st11", "L_rt11", dma=(3, A.sK, adv_k()), sm=sm, lo_check=True, vq=vq, dhi=40)
    npk = O('npk') if not BPV['on'] else 8; dump = [i for at, i in vq.q[:max(0, len(vq.q) - npk)]]; vq.q = vq.q[len(dump):]
    if O('v') > 1: sys.stderr.write(f"; switch: dumped {len(dump)}\n")
    def early(g):
        vq.run(g, 0); assert not vq.q
        for q in range(g.n):
            for i in g.ve[q]:
                if i.op.startswith(("v_cvt", "v_accvgpr")): assert not any(set(i.reads) & set(g.m[x].writes) for x in range(q + 1)), (q, i.text)
    c.block("sw", w_b, stamp(), g.flat(), fs(), w_1, dump, fs(),
            win_pv(0, cz=True, vq_first=early, pre_dma=(0, A.sV), tail=L(f"s_cmp_lg_u32 s{A.sIT}, 0\ns_cbranch_scc1 L_loop_top")), stamp())
    pst = lambda ks, qb: [I(f"buffer_store_dwordx4 v[{Oreg(2*ks, qb)}:{Oreg(2*ks, qb)+3}], v{A.vL16}, {WSR}, s{A.sPB + (qb*8+ks) // 4} offen offset:{(ks & 3) * 1024} sc1", tag="PST")]
    g = Gaps(pv_mfmas(1))
    weave_reads(g, 0, 3, [("T", 3)])
    k = 0; rest = []
    for ks in range(8):
        for qb in range(2):
            ins = cvt_ctx(ks, qb, A.vX + 6) + pst(ks, qb)
            if rest: rest += ins; continue
            k, rest = seq_fit(g, ins, max(k, 8 * ks + 5 + 2 * qb + 4))
    c.block("final_h", "L_final_h:", WAITV([("T", 0)], lgkm0=True), "s_barrier", rd_batch(0, 0), mix(softmax_half(1, 1), dma_flat(2, A.sVn) + w2a(), 1), check(1, "L_st4"), "L_rt4:", add_l(1), f"""
    v_mov_b32 v{A.vX+2}, v{A.vNM}
    v_mov_b32 v{A.vX+3}, v{A.vNM+4}
    v_mov_b32 v{A.vX+4}, v{A.vLS}
    v_mov_b32 v{A.vX+5}, v{A.vLS+1}
    buffer_store_dwordx4 v[{A.vX+2}:{A.vX+5}], v{A.vL16}, {WSR}, s{A.sPS} offen sc1
    """, of_rd(A.vX + 6), NEED(R("a", Freg(0, 0), 32)), stamp(), g.flat(), rest, stamp())
    c.block("op0", outproj(0, ctx_a, L(f"v_accvgpr_read_b32 v{A.vRL}, a192\nv_accvgpr_read_b32 v{A.vRL + 1}, a193"), ["PST"],
                           L(f"s_xor_b32 s47, s47, 64\nv_mov_b32 v{A.vT}, 1") + [side.flag_store(47, A.vF0, A.vT)]))
    rm, far = (red3.main_k if R3 else lambda *a: side.red_main(*a, True, False))(A.vL16, lambda: stamp(30), O('lag'))
    c.block("red", "L_red:", red3.head(False) if R3 else side.red_a(A.vL16), pub() if EH else [], rm, fin(), "s_endpgm")
    c.block("redfar", far)
    c.block("rpoll", side.red_poll())
    c.block("comb", comb)
    stubs = ""
    for n, b in ((0, "0"), (1, "1"), (2, "B"), (3, "B"), (4, "1n"), (5, "1"), (6, "0B"), (7, "B"), (8, "f"), (9, "1"), (10, "f"), (11, "f")) + (((12, "0"), (13, "1")) if EXT else ()):
        stubs += f"L_st{n}:\ns_call_b64 s[{A.sRET}:{A.sRET+1}], L_slow{b}\ns_branch L_rt{n}\n"
    c.block("stubs", stubs)
    for nm, b, oth in (("0", 0, (0, 1)), ("1", 1, (0, 1)), ("1n", 1, ()), ("0B", 0, (1,)), ("B", 1, ()), ("f", 0, (0, 1))): c.block("slow" + nm, slow_sub(nm, b, oth))
    c.block("moe", red3.moe() if R3 else side.red_moe(), side.y_reduce2(lambda n: Oreg(2 * (n >> 1) + 1, n & 1)))
    c.block("spins", f"""
    L_fll:
    {FL_LOAD}
    s_branch L_fllr
    L_pub3:
    v_mov_b32 v{A.vX + 7}, s3
    """, side.flag_store(sFL, A.vF0, A.vX + 7), "s_branch L_pub3r",
            *[side.spin_stub(f"L_fhs{n}", f"L_fhr{n}", side.FH0_LOAD, 24, 91, "v_cmp_gt_u32 vcc, 1, v{vt}") for n in range(2)],
            *[side.spin_stub(f"L_fps{n}", f"L_fpr{n}", FP_LOAD, A.vRL, A.sSPIN) for n in range(2)],
            side.spin_stub("L_f4s", "L_f4r", FL_LOAD, A.vRL + 1, A.sSPIN, "v_cmp_gt_u32 vcc, 3, v{vt}") if EXT else [],
            side.spin_stub("L_f2s", "L_f2r", FL_LOAD, A.vRL + 1, A.sSPIN, "v_cmp_gt_u32 vcc, 3, v{vt}"),
            side.spin_stub("L_fls0", "L_flr0", FL_LOAD, A.vRL + 1, A.sSPIN, f"v_cmp_gt_u32 vcc, s{A.sREQ}, v{{vt}}"))

def early_stubs(c):
    c.block("spins0", side.z_stub(0), side.z_stub(1), hw.key_stub(),
            *[side.spin_stub(f"L_f1s{n}{w}", f"L_f1r{n}{w}", F1_LOAD if w == 4 else F2_LOAD, 24, 91, "v_cmp_eq_u32 vcc, 0, v{vt}") for n in range(2) for w in (4, 5)])

def paths(c):
    lp = ["loop_top", "loop_mid"]
    for end in (["p3c", "pBc"], ["p3o", "pBo"], ["p3c", "comb", "pBo"]):
        c.path("entry", "kv1", "loop_mid", *lp, *lp, "p1", "p2", *end, "op1", "end1")
    if opt['r3'] == '1': c.path("entry", "kv1", "loop_mid", *lp, *lp, "p1", "p2", "p3o", "pBo", "op1", "end3")
    c.path("entry", "kv0", "k1", *lp, *lp, "p1", "p2", "p3o", "pBo", "op1", "red")
    for own in (["j0"], ["k1", "p1"], ["k1", *lp, "p1"], ["k1", *lp, *lp, "p1"]):
        for nh in (0, 1, 2):
            c.path("entry", "kv0", *own, "p2", "p3k", "sw", *(lp * nh), "final_h", "op0", "red")
    for b in ("redfar", "rpoll", "stubs", "slow0", "slow1", "slow1n", "slow0B", "slowB", "slowf", "moe", "spins", "spins0"): c.path(b)

if __name__ == "__main__":
    c = CFG(verbose=O("v"))
    build_front(c); early_stubs(c); build_att(c); paths(c)
    body = c.finalize()
    kn = NAME + "_kernel"
    print("; @launch grid=(256,1,1) block=(256,1,1) lds=163840")
    print('.amdgcn_target "amdgcn-amd-amdhsa--gfx950"\n.text')
    print(".macro M d, a, b, c\nv_mfma_f32_16x16x32_bf16 \\d, \\a, \\b, \\c\n.endm")
    print(kernel_header(kn))
    print(body.replace("  v_mfma_f32_16x16x32_bf16 ", "M ").replace("\n  ", "\n "))
    print("L_code_end:")
    print('.section .rodata,"a"\n.p2align 6')
    print(kernel_desc(kn, sgpr=102))
```

```python
from common import *

class AttRegs:
    S_WS = 8
    sWAVE = 20
    sK, sCNT, sKP, sV = 21, 22, 23, 24
    sJ = ((25, 26), (43, 4), (6, 7))
    sIT, sM0, sT0, sT1 = 27, 28, 29, 30
    sTHR, sQ, sOP, sPO, sNC = 31, 32, 33, 34, 35
    sRET, sVn, sREQ, sMODE = 36, 38, 39, 40
    sRT, sPT, sEV = 54, 5, 34
    sPB, sPS, sSPIN, sLO = 12, 52, 53, 55
    sTRI = (16, 18, 48, 50)
    sMK = 64
    vRD0, vRD1, vDM0, vDM1, vL16 = 7, 2, 3, 4, 7
    vF0, vRL, vNEG, vFL = 1, 5, 8, 9
    vX, vT, vSUM, vLS, vNM = 10, 18, 26, 30, 32
    vP0, vP1 = 40, 56
    vS, vO = 64, 128
    aQ, aF, aX = 0, 64, 128
A = AttRegs
BPV = dict(on=0, db=4, k=20.0)
aOF = 242
KSLOT = {0: 3, 1: 1}
VSLOT = {0: 2, 1: 0}
WSR = f"s[{A.S_WS}:{A.S_WS+3}]"
DKV = WS_V - WS_K

def Sreg(b, kb, qb): return A.vS + 32 * b + (kb * 2 + qb) * 4
def Oreg(db, qb): return A.vO + (db * 2 + qb) * 4
def Preg(b, kp, qb): return (A.vP0 + 8 * b + 4 * qb) if kp == 0 else (A.vP1 + 4 * qb)
def PregB(kp): return Preg(1, 0, 1 - kp)
def Qreg(qb, ks): return A.aQ + (qb * 8 + ks) * 4
def Freg(batch, f): return A.aF + (batch & 1) * 32 + f * 4
def Freg4(batch, f): return A.aF + batch * 32 + f * 4

def Freg5(batch, f): return (A.aF, A.aF + 32, A.aQ, 192)[batch] + f * 4
def rd_frag(slot, batch, f, dst):
    va = 43 if slot == 4 else A.vRD1 if slot >= 2 else A.vRD0
    return I(f"ds_read_b128 a[{dst}:{dst+3}], v{va} offset:{(slot & 1) * 32768 + batch * 8192 + f * 1024}")
def rd_batch(slot, batch, reg=Freg): return [rd_frag(slot, batch, f, reg(batch, f)) for f in range(8)]

DFL = "sc1"
def dma_tile(slot, soff, v0=A.vDM0):
    out = []
    for j in range(8):
        pre = I(f"s_add_u32 m0, s{A.sM0}, {slot * 32768 + (j >> 2) * 4096}") if j % 4 == 0 else None
        out.append((pre, I(f"buffer_load_dwordx4 v{v0 + (j >> 2)}, {WSR}, s{soff} offen offset:{(j & 3) * 1024} {DFL} lds", tag=("T", slot))))
    return out
def dma_flat(slot, soff, v0=A.vDM0): return [i for p in dma_tile(slot, soff, v0) for i in p if i]
def adv_k():
    return L(f"""
    s_add_u32 s{A.sV}, s{A.sKP}, {DKV}
    s_mov_b32 s{A.sKP}, s{A.sK}
    s_add_u32 s{A.sK}, s{A.sK}, 32768
    s_add_u32 s{A.sCNT}, s{A.sCNT}, 1
    """ + "".join(f"s_cmp_eq_u32 s{A.sCNT}, s{c}\ns_cselect_b32 s{A.sK}, s{a}, s{A.sK}\n" for c, a in A.sJ))

RPAT = {0: [0, 1, 3, 4, 6, 7, 9, 10], 1: [0, 0, 3, 3, 6, 6, 9, 9]}
def weave_dma(g, slot, soff, post, lo=1, hi=45):
    t = dma_tile(slot, soff)
    link([i for p in t for i in p if i] + list(post))
    step = (hi - lo) / 8.0
    kk = lo - 1
    for j, (pre, d) in enumerate(t):
        k = max(kk + 1, int(lo + j * step))
        if pre: k = g.fit_s(max(k - 1, kk + 1 if j else 0), pre) + 1
        kk = g.fit(k, d)
    k = kk + 1
    lock = g.__dict__.setdefault("lock", set())
    for ins in post:
        k0 = k; k = g.fit_s(k, ins) + 1
        if reads_scc(ins): lock.update(range(k0 - 1, k - 1))
    return k

def weave_both(g, dma, lo, hi, groups, glo, ghi):
    import q2
    slot, soff, post = dma
    last = q2.place_vm(g, ([(dma_flat(slot, soff), lo, hi)] if slot is not None else []) + [([i for x in groups for i in x], glo, ghi)], relax=bool(g.__dict__.get('lock')) and len(groups) > 7)
    if post: scal_fit(g, post, last[0])
def weave_reads(g, slot, nslot, wait_tags, pat=0):
    pat = RPAT[pat]
    for b in range(1, 4):
        for f, r in enumerate(rd_batch(slot, b)): g.put((b - 1) * 16 + pat[f], r)
        if b < 3: g.put_s(b * 16 - 1, NEED(R("a", Freg(b, 0), 32)))
    g.put_s(46, WAITV(wait_tags, lgkm0=True))
    g.put_s(47, I("s_barrier"))
    if nslot is not None:
        for f, r in enumerate(rd_batch(nslot, 0)): g.put(48 + pat[f], r)
        g.put_s(62, NEED(R("a", Freg(0, 0), 32)))
def half_reads(g, slot, nslot, wait_tags, bar=22, Freg4=Freg4):
    pos = [0, 0, 1, 2, 2, 3, 4, 4, 6, 6, 7, 8, 8, 10, 10, 11, 12, 12, 14, 14, 15, 16, 16, 17]
    for k, r in zip(pos, [r for b in range(1, 4) for r in rd_batch(slot, b, Freg4)]): g.put(k, r)
    g.put_s(7, NEED(R("a", Freg4(1, 0), 32))); g.put_s(15, NEED(R("a", Freg4(2, 0), 32)))
    g.put_s(bar - 1, WAITV(wait_tags, lgkm0=True)); g.put_s(bar, I("s_barrier"))
    for k, r in zip([1, 1, 2, 3, 3, 4, 5, 5] if g.n == 32 else [1 + x for x in RPAT[0]], rd_batch(nslot, 0)): g.put(bar + k, r)
    g.put_s(g.n - 1 if g.n == 32 else 62, NEED(R("a", Freg(0, 0), 32)))
    if bar > 24: g.put_s(23, NEED(R("a", Freg4(3, 0), 32)))
def half_dma(g, ins):
    link(ins); pos = [5, 9, 13, 18, 20, 28, 29, 30]; k = 0
    for i in ins:
        if i.slots()[0]: k = pos.pop(0); g.put(k, i)
        elif pos:
            q = pos[0] - 1
            while not g.room_s(q): q -= 1
            assert q > k or k == 0; g.put_s(q, i)
        else: g.put(g.n - 1, i)
    g.lock = {g.n - 1}
def spread_any(g, ins, lo, hi):
    link(ins)
    ks = [k for k in range(lo, hi) if not g.has_vm(k) and not any(x.op == "s_barrier" for x in g.sc[k])]
    tot = sum(max(i.slots()) for i in ins) + sum(g.used(k) for k in ks)
    acc = 0; n = 0; ins = list(ins)
    for x, k in enumerate(ks):
        acc += g.used(k)
        while ins and (acc + max(ins[0].slots()) <= (x + 1) * tot / len(ks) + 0.5 or x == len(ks) - 1):
            i = ins.pop(0); acc += max(i.slots()); g.put(k, i)

def cin(cmode, b, kb, qb):
    d = R("v", Sreg(b, kb, qb), 4); nm = R("v", A.vNM + 4 * qb, 4)
    return {"nm": nm, "zero": "0", "mask": nm if qb else d, "self": d}[cmode]
def qk_mfmas(b, cmode, breg=None, order=None, fr=None):
    ms = []
    for kb, qb in order or [(kb, qb) for kb in range(4) for qb in range(2)]:
        d = R("v", Sreg(b, kb, qb), 4)
        for n, ks in enumerate(range(8) if (qb == 0 or order) else range(7, -1, -1)):
            bq = breg(qb, ks) if breg else R("a", Qreg(qb, ks), 4)
            ms.append(mfma(d, R("a", (fr or Freg)(kb, ks), 4), bq, d if n else cin(cmode, b, kb, qb)))
    return ms
def qkB_mfmas(Freg4=Freg4):
    return [mfma(R("v", Sreg(1, kb, 1), 4), R("a", Freg4(kb, ks), 4), R("a", Qreg(1, ks), 4), R("v", Sreg(1, kb, 1), 4)) for kb in range(4) for ks in (range(8) if kb % 2 == 0 else range(7, -1, -1))]
def pv_mfmas(b, cz=False):
    ms = []
    for db in range(16):
        for qb in range(2):
            d = R("v", Oreg(db, qb), 4)
            for n, kp in enumerate((0, 1) if qb == 0 else (1, 0)):
                ms.append(mfma(d, R("a", Freg(db >> 2, (db & 3) * 2 + kp), 4), R("v", Preg(b, kp, qb), 4), d if not (cz and n == 0) else R("v", A.vX + 4 * qb, 4) if BPV['on'] and db >= BPV['db'] else "0"))
    return ms
def pvB_mfma(db, kp, reg): return mfma(R("v", Oreg(db, 1), 4), R("a", reg(db >> 2, (db & 3) * 2 + kp), 4), R("v", PregB(kp), 4), R("v", Oreg(db, 1), 4))
def pvB_mfmas(): return [pvB_mfma(db, kp, Freg4) for db in range(16) for kp in ((0, 1) if db % 2 == 0 else (1, 0))]

def blocks_of(kp): return [(2 * kp + kk, qb) for qb in range(2) for kk in range(2)]
BLK_B = [(kb, 1) for kb in range(4)]
def sm_groups(b, blocks, init, pd=None, n0=0):
    groups = []; init = set(init); n = n0
    for kb, qb in blocks:
        for pr in range(2):
            s = Sreg(b, kb, qb) + 2 * pr
            t0, t1 = A.vT + (n % 4) * 2, A.vT + (n % 4) * 2 + 1
            sm = A.vSUM + 2 * b + qb
            ex = [I(f"v_exp_f32 v{t0}, v{s}"), I(f"v_exp_f32 v{t1}, v{s+1}")]
            if qb in init: post = [I(f"v_add_f32 v{sm}, v{t0}, v{t1}")]; init.discard(qb)
            else: post = [I(f"v_add_f32 v{sm}, v{t0}, v{sm}"), I(f"v_add_f32 v{sm}, v{t1}, v{sm}")]
            p = (pd(kb >> 1) if pd else Preg(b, kb >> 1, qb)) + 2 * (kb & 1) + pr
            post.insert(1, I(f"v_cvt_pk_bf16_f32 v{p}, v{t0}, v{t1}"))
            groups.append((ex, post)); n += 1
    return groups
def half_groups(b, kp): return sm_groups(b, blocks_of(kp), (0, 1) if kp == 0 else ())
def groups_B(): return sm_groups(1, BLK_B, (1,), PregB)
def sm_flat(groups):
    out = []; prev = []
    for ex, post in groups:
        out.append(ex[0]); out += prev[:2]; out.append(ex[1]); out += prev[2:]
        prev = post
    return out + prev
def softmax_half(b, kp): return sm_flat(half_groups(b, kp))
class SM:
    def __init__(self, grp, pre=(), ready=None):
        link(list(pre) + [i for e, p in grp for i in e + p])
        self.ex = [(n, i) for n, (e, p) in enumerate(grp) for i in e]
        self.po = [(-1, i) for i in pre] + [(n, i) for n, (e, p) in enumerate(grp) for i in p]
        self.done = {}; self.ready = ready or {}; self.ng = len(grp)
    def run(self, g, lo, hi, final=True, upto=None):
        ex, po, done = self.ex, self.po, self.done
        for n in done: done[n] = (done[n][0], -1)
        last = lo; ne = 0; tot = max(len(ex), 1)
        for k in range(lo, g.n):
            empty_left = sum(1 for q in range(k, hi) if g.used(q) == 0)
            if ex and g.used(k) == 0 and (upto is None or ex[0][0] < upto):
                n = ex[0][0]
                free = not any(m <= n - 4 for m, _ in po)
                due = not final or k >= lo + ne * (hi - lo) // tot or empty_left <= len(ex)
                if free and due and k >= self.ready.get(n, 0):
                    g.put(k, ex.pop(0)[1]); done[n] = (done.get(n, (0, 0))[0] + 1, k); ne += 1; last = k
                    continue
            keep = final and ex and g.used(k) == 0 and empty_left <= len(ex) and not any(m <= ex[0][0] - 4 for m, _ in po)
            while po and g.used(k) < 2 and not keep:
                n = po[0][0]
                if n >= 0 and not (done.get(n, (0, 0))[0] == 2 and done[n][1] < k): break
                g.put(k, po.pop(0)[1]); last = k
        self.ready = {}
        if final and (ex or po):
            last = g.n - 1
            for i in self.rest(): g.put(last, i)
        return last
    def rest(self):
        out = []; prev = [i for m, i in self.po if m < (self.ex[0][0] if self.ex else self.ng)]
        for n in range(self.ex[0][0] if self.ex else self.ng, self.ng):
            e = [i for m, i in self.ex if m == n]
            if n % 4 == 0 or True: out += prev[:max(0, len(prev) - 3)]; prev = prev[max(0, len(prev) - 3):]
            out += e[:1] + prev[:2] + e[1:] + prev[2:]
            prev = [i for m, i in self.po if m == n]
        self.ex.clear(); self.po.clear()
        return out + prev

def check(b, label, lo=False, only=None):
    s0, s1 = A.vSUM + 2 * b, A.vSUM + 2 * b + 1
    if only is not None: return L(f"v_cmp_lt_f32 vcc, s{A.sTHR}, v{s0 + only}\ns_cbranch_vccnz {label}")
    if not lo: return L(f"v_max_f32 v{A.vX}, v{s0}, v{s1}\nv_cmp_lt_f32 vcc, s{A.sTHR}, v{A.vX}\ns_cbranch_vccnz {label}")
    return L(f"""v_max_f32 v{A.vX}, v{s0}, v{s1}
    v_min_f32 v{A.vX + 1}, v{s0}, v{s1}
    v_cmp_lt_f32 s[36:37], s{A.sTHR}, v{A.vX}
    v_cmp_gt_f32 vcc, s{A.sLO}, v{A.vX + 1}
    s_or_b64 vcc, vcc, s[36:37]
    s_cbranch_vccnz {label}""")
def add_l(b, qbs=(0, 1)): return [I(f"v_add_f32 v{A.vLS + q}, v{A.vSUM + 2*b + q}, v{A.vLS + q}") for q in qbs]

def xlane(op, r, t):
    return L(f"""
    v_mov_b32 v{t}, v{r}
    v_permlane16_swap_b32 v{t}, v{r}
    {op} v{r}, v{t}, v{r}
    v_mov_b32 v{t}, v{r}
    v_permlane32_swap_b32 v{t}, v{r}
    {op} v{r}, v{t}, v{r}
    """)
def zip2(a, c): return [i for p in zip(a, c) for i in p]
def rowmax(b, qbs=(0, 1)):
    ins = []
    for qb in qbs:
        vals = [Sreg(b, kb, qb) + e for kb in range(4) for e in range(4)]
        m = A.vX + qb
        ins.append(I(f"v_max3_f32 v{m}, v{vals[0]}, v{vals[1]}, v{vals[2]}"))
        for x in range(3, 15, 2): ins.append(I(f"v_max3_f32 v{m}, v{vals[x]}, v{vals[x+1]}, v{m}"))
        ins.append(I(f"v_max_f32 v{m}, v{vals[15]}, v{m}"))
    xs = [xlane("v_max_f32", A.vX + q, A.vX + 2 + q) for q in qbs]
    ins += zip2(*xs) if len(xs) == 2 else xs[0]
    return ins + [I(f"v_ceil_f32 v{A.vX + q}, v{A.vX + q}") for q in qbs]
def sub_S(b, qbs=(0, 1)): return [I(f"v_sub_f32 v{Sreg(b, kb, qb) + e}, v{Sreg(b, kb, qb) + e}, v{A.vX + qb}") for kb in range(4) for qb in qbs for e in range(4)]
def sub_NM(qbs=(0, 1)): return [I(f"v_sub_f32 v{A.vNM + 4*q + e}, v{A.vNM + 4*q + e}, v{A.vX + q}") for q in qbs for e in range(4)]
def init_softmax(b): return rowmax(b) + sub_NM() + sub_S(b) + softmax_half(b, 0)
def rescale_state(qbs=(0, 1)):
    ins = sub_NM(qbs) + [I(f"v_exp_f32 v{A.vX + 2 + q}, -v{A.vX + q}") for q in qbs]
    ins += [I(f"v_mul_f32 v{A.vLS + q}, v{A.vX + 2 + q}, v{A.vLS + q}") for q in qbs]
    if BPV['on']:
        for q in qbs: ins += L(f"v_accvgpr_read_b32 v{A.vT}, a{aOF + q}\nv_mul_f32 v{A.vT}, v{A.vX + 2 + q}, v{A.vT}\nv_accvgpr_write_b32 a{aOF + q}, v{A.vT}")
    return ins + [I(f"v_mul_f32 v{Oreg(db, q) + e}, v{A.vX + 2 + q}, v{Oreg(db, q) + e}") for db in range(16) for q in qbs for e in range(4)]
def slow_sub(name, b, other):
    qbs = (1,) if name == "B" else (0, 1)
    ins = [I(f"L_slow{name}:"), I("s_nop 7"), I("s_nop 3")] + rowmax(b, qbs)
    if name != "f": ins += [I(f"v_max_f32 v{A.vX + q}, 0, v{A.vX + q}") for q in qbs]
    ins += sub_S(b, qbs) + sub_S(1 - b, other)
    ins += sub_NM() if name == "f" else rescale_state(qbs)
    ins += sm_flat(groups_B()) if name == "B" else softmax_half(b, 0) + softmax_half(b, 1)
    return ins + [I("s_nop 3"), I(f"s_setpc_b64 s[{A.sRET}:{A.sRET+1}]")]

def fill_valu(g, ins, lo, hi):
    tot = sum(max(i.slots()) for i in link(ins))
    k = lo; acc = 0
    for i in ins:
        tgt = lo + int(acc * (hi - lo) / max(tot, 1))
        k = g.fit(g.vm_slot(max(k, tgt), i, 4), i)
        acc += max(i.slots())
    return k

def mask_regs(second, kbs=range(4)):
    out = ""
    for kb in kbs:
        u = 3 - kb if second else kb
        m = A.sMK + 8 * kb
        oth = {0: "0", 3: "-1"}.get(kb, f"s[{m+6}:{m+7}]")
        if kb in (1, 2): out += f"s_cmp_{'gt' if second else 'lt'}_u32 s{A.sWAVE}, {u}\ns_cselect_b64 {oth}, -1, 0\n"
        out += f"s_cmp_eq_u32 s{A.sWAVE}, {u}\n"
        for e in range(4): out += f"s_cselect_b64 s[{m+2*e}:{m+2*e+1}], s[{A.sTRI[e]}:{A.sTRI[e]+1}], {oth}\n"
    return L(out)
def mask_blk(b, kb, qb, inplace=False):
    return [I(f"v_cndmask_b32 v{Sreg(b, kb, qb) + e}, v{Sreg(b, kb, qb) + e if inplace else A.vNM + 4 * qb}, v{A.vNEG}, s[{A.sMK + 8*kb + 2*e}:{A.sMK + 8*kb + 2*e + 1}]") for e in range(4)]

def put_groups(g, groups, lo, hi):
    k = lo - 1
    link([i for grp in groups for i in grp])
    lock = g.__dict__.setdefault("lock", set())
    for n, grp in enumerate(groups):
        k = max(k, lo + n * (hi - lo) // len(groups) - 1)
        for i in grp:
            if i.slots()[0] == 0:
                q = k + 1
                while q < g.n - 1 and (not g.room_s(q) or (writes_scc(i) and q in lock)): q += 1
                if q < g.n - 1: g.put_s(q, i); k = q
                else: k = g.n - 1; g.put(k, i)
            else: k = g.fit(g.vm_slot(min(k + 1, g.n - 1), i, 5), i)
    return k
def put_check(g, c, k):
    if k <= g.n - len(c) - 2:
        k = max(k + 1, g.n - len(c) - 3)
        for i in c[:-1]:
            k = g.fit(k, i, lim=g.n - 2) + (0 if i is c[0] and len(c) > 3 else 1) if i.slots()[0] else g.fit_s(k + 1, i, lim=g.n - 2)
        g.put_s(g.n - 1, c[-1])
    else:
        for i in c: g.put(g.n - 1, i)
def scal_fit(g, ins, k=1):
    import kvq
    k, left = kvq.seq_fit(g, list(ins), k); assert not left
    return k
def win_qk(b, slowlabel, retlabel, extra=(), masked=False, groups=(), head=(), glo=2, ghi=58, scal=(), dma=None, sm=None, lo_check=False, tags=(), vq=None, post=(), dhi=None, scal_at=()):
    g = Gaps(qk_mfmas(1 - b, "mask" if masked else "nm"))
    wide = len(groups) >= 4
    weave_reads(g, KSLOT[1 - b], VSLOT[b], [("T", VSLOT[b])] + list(tags), int(wide))
    for e in extra: g.fit(0, e)
    hk = -1
    for e in head:
        if e.kind != 'label': hk += 1
        g.put_s(hk, e)
    if masked:
        g.pre = mask_blk(1 - b, 0, 0)
        for kb in range(1, 4):
            k = 16 * kb - 16
            for i in mask_blk(1 - b, kb, 0):
                while g.used(k) != 1 and k < 16 * kb - 5: k += 1
                k = g.fit(k, i)
            assert k <= 16 * kb - 2, (kb, k)
    for k0, ins in scal_at: scal_fit(g, ins, k0)
    if wide: weave_both(g, dma or (VSLOT[1 - b], A.sV, []), hk + 2, dhi or 50, groups, glo, ghi)
    else: weave_dma(g, *(dma or (VSLOT[1 - b], A.sV, [])), lo=hk + 2, hi=dhi or 45)
    k = 49
    for i in post: k = g.fit(k, i)
    if scal: scal_fit(g, scal)
    if groups and not wide: put_groups(g, groups, glo, ghi)
    k = (sm or SM(half_groups(b, 1))).run(g, 0, 56)
    put_check(g, check(b, slowlabel, lo_check), k)
    if vq: vq.run(g, 0, 0, 62)
    return g.flat() + [I(retlabel + ":")]
def win_pv(b, tail=(), chk=None, post=(), groups=(), tags=(), scal=(), ghi=32, glo=2, cz=False, sm=None, nslot=None, nodma=False, pre_dma=None, dlo=1, post_dma=None, sfirst=False, vq=None, vq_first=None, end=(), valu=(), vlo=0):
    g = Gaps(pv_mfmas(b, cz))
    nslot = KSLOT[b] if nslot is None else nslot
    wide = len(groups) >= 4 or pre_dma is not None or post_dma is not None
    weave_reads(g, VSLOT[b], nslot, [("T", nslot)] + list(tags), int(wide))
    if scal and len(scal) < 8: scal_fit(g, scal); scal = ()
    if wide:
        if scal and sfirst: ks0 = scal_fit(g, scal); scal = (); vlo = max(vlo, ks0 + 1)
        k = 49
        for i in post: k = g.fit(k, i)
        post = ()
        if post_dma:
            import q2
            kd = dma_flat(KSLOT[1 - b], A.sK)
            q2.place_vm(g, [(kd + list(post_dma), 1, 62)])
            scal_fit(g, adv_k(), max(q for q in range(g.n) if kd[-1] in g.ve[q]))
        elif pre_dma:
            import q2
            scal_fit(g, adv_k(), q2.place_vm(g, [(dma_flat(*pre_dma) + dma_flat(KSLOT[1 - b], A.sK), 1, 48)])[0])
        else: weave_both(g, (None, 0, []) if nodma else (KSLOT[1 - b], A.sK, adv_k()), dlo, 44 if dlo == 1 else 45, groups, glo, ghi); groups = ()
    else: assert weave_dma(g, KSLOT[1 - b], A.sK, adv_k(), hi=36) <= 53
    if chk:
        g.put(50, chk[0]); g.put_s(53, chk[1]); g.put_s(53, chk[2])
        ck = 53
        for i in chk[3:]:
            if i.kind != 'label': ck += 1
            g.put_s(ck, i)
        assert ck < 60
    k = 49
    for i in post: k = g.fit(k, i)
    if groups: put_groups(g, groups, glo, ghi)
    for q in range(g.n):
        for i in g.ve[q]:
            if i.kind == "vst": assert not any(set(i.reads) & set(g.m[x].writes) for x in range(q + 1)), (q, i.text)
    ks = scal_fit(g, scal) if scal else 0
    if cz and BPV['on']:
        est = []
        for qb in range(2):
            o, r = Oreg(0, qb), A.vX + 4 * qb
            est += L(f"v_max3_f32 v{r}, |v{o}|, |v{o+1}|, |v{o+2}|\nv_max_f32 v{r}, |v{o+3}|, v{r}\nv_mul_f32 v{r}, {hex(f2u(BPV['k']))}, v{r}") + [I(f"v_mov_b32 v{r + e}, v{r}") for e in (1, 2, 3)]
        spread_any(g, est[:6], 5, 4 * BPV['db'] - 5); spread_any(g, est[6:], 4 * BPV['db'] - 5, 4 * BPV['db'])
        for qb in range(2): g.fit(4 * BPV['db'] + 2, I(f"v_accvgpr_write_b32 a{aOF + qb}, v{A.vX + 4 * qb}"))
    if vq_first: vq_first(g)
    if valu: fill_valu(g, list(valu), max(vlo, ks + 1), 62)
    k = (sm or SM(half_groups(1 - b, 0), add_l(b))).run(g, 0, 59 if not end else 56)
    if end: put_check(g, end, k)
    if vq: vq.run(g, 0, 0, 62)
    for n, ins in enumerate(tail): g.put_s(64 - len(tail) + n - (1 if n < len(tail) - 1 else 0), ins)
    return g.flat()

def zero_O_mfma(ins, z):
    out = []; step = max(len(ins) // 9, 1); n = 0
    for k, i in enumerate(ins):
        out.append(i)
        if k % step == step - 1 and n < 8:
            out.append(I(f"v_mfma_f32_32x32x16_bf16 v[{A.vO + 16*n}:{A.vO + 16*n + 15}], v[{z}:{z+3}], v[{z}:{z+3}], 0")); n += 1
    assert n == 8
    return out
def of_rd(v): return [I(f"v_accvgpr_read_b32 v{v + q}, a{aOF + q}") for q in range(2)] if BPV['on'] else []
def cvt_ctx(ks, qb, vo=A.vX + 4):
    a, c = Oreg(2 * ks, qb), Oreg(2 * ks + 1, qb)
    return [I(f"v_sub_f32 v{r + e}, v{r + e}, v{vo + qb}") for r in (a, c) for e in range(4) if BPV['on'] and 2 * ks >= BPV['db']] + L(f"""v_cvt_pk_bf16_f32 v{a}, v{a}, v{a+1}
    v_cvt_pk_bf16_f32 v{a+1}, v{a+2}, v{a+3}
    v_cvt_pk_bf16_f32 v{a+2}, v{c}, v{c+1}
    v_cvt_pk_bf16_f32 v{a+3}, v{c+2}, v{c+3}""")

def mix(valu, mem, lo=0, hi=None):
    hi = len(valu) if hi is None else hi
    link(valu); link(mem)
    groups = []; cur = []
    for i in mem:
        cur.append(i)
        if i.slots()[0]: groups.append(cur); cur = []
    tail = cur
    out = []; n = 0
    for k, i in enumerate(valu):
        while n < len(groups) and k >= lo + n * (hi - lo) // len(groups):
            g_ = groups[n]; n += 1
            if len(g_) > 1 and out and out[-1].kind in ("valu", "trans"):
                last = out.pop(); out += g_[:-1] + [last, g_[-1]]
            else: out += g_
            if n == len(groups): out += tail
        out.append(i)
    assert n == len(groups)
    return out

def q_from_lds():
    pre = L(f"""
    s_lshl_b32 s64, s{A.sWAVE}, 13
    s_sub_u32 s65, {131072 + 3 * 8192}, s64
    v_add_u32 v{A.vX}, s64, v{A.vL16}
    v_add_u32 v{A.vX + 1}, s65, v{A.vL16}
    """)
    return pre + [I(f"ds_read_b128 a[{Qreg(qb, ks)}:{Qreg(qb, ks) + 3}], v{A.vX + qb} offset:{ks * 1024}") for qb in range(2) for ks in range(8)]
```

```python
from common import *
import kvq
from kvq import K, kacc, rr, pack, Storer, seq_fit, kv_pairs, rd_c, cfrag, row_mfmas, spread2, rd_w_unit, weave_units, unit_c, unit_w
from att2 import A, Freg, Qreg, rd_batch, RPAT

QSLOT = [0, 1, 2, 3, 0, 1, 2]
ORDERS = {"1": [(0, 0), (0, 1), (0, 2), (0, 3), (1, 0), (1, 1), (1, 2), (1, 3), (0, 4), (0, 5), (0, 6), (1, 4), (1, 5), (1, 6)] + [(s, k) for s in (2, 3) for k in range(7)],
          "3": [(0, 0), (0, 1), (0, 2), (0, 3), (0, 4), (0, 5), (1, 0), (0, 6)] + [(1, k) for k in range(1, 7)] + [(s, k) for s in (2, 3) for k in range(7)]}
ORDER = ORDERS["1"]
sM0Q, sQP = 101, 29
vQD = 8
vQL, vQH = 1, 12
vXA = 24
vPK = 16
def xreg(ks, qb): return (176 + (ks * 2 + qb) * 4) if ks < 8 else (128 + ((ks - 8) * 2 + qb) * 4)
def poff(p): return ORDER[p][1] * 64 * 8192 + ORDER[p][0] * 128
def unit_q(p):
    n, pc = p >> 2, p & 3
    return ([I(f"s_add_u32 m0, s{sM0Q}, {QSLOT[n] * 32768 + pc * 8192}")] +
            [I(f"buffer_load_dwordx4 v{vQD + i}, s[{K.S_WQ}:{K.S_WQ + 3}], s{sQP} offen offset:{1024 * i} lds", tag=("T", QSLOT[n])) for i in range(2)] +
            [I(f"s_mov_b32 s{sQP}, {poff(min(p + 1, 27))}")])
sXB, sXO = 38, 39
vXR = 30
def unit_x(kt):
    return ([I(f"s_add_u32 m0, s{sXB}, {(kt & 1) * 16384}")] +
            [I(f"buffer_load_dwordx4 v{vXA + i}, s[{K.S_X}:{K.S_X + 3}], s{sXO} offen offset:{1024 * i} lds", tag=("X", kt & 1)) for i in range(4)] +
            [I(f"s_add_u32 s{sXO}, s{sXO}, 128")])
def x_reads(kt):
    return [I(f"ds_read_b128 a[{xreg(2 * kt + ks, qb)}:{xreg(2 * kt + ks, qb) + 3}], v{vXR + ks} offset:{(kt & 1) * 16384 + qb * 2048}") for ks in range(2) for qb in range(2)]
def x_need(kt): return NEED(R("a", xreg(2 * kt, 0), 16))
def addr_x(sJ):
    return L(f"""
    v_lshrrev_b32 v28, 4, v0
    v_and_b32 v29, 7, v0
    v_xor_b32 v28, v28, v29
    v_lshlrev_b32 v28, 4, v28
    v_lshrrev_b32 v29, 3, v0
    v_mul_u32_u24 v29, 896, v29
    s_lshl_b32 s64, s{sJ}, 3
    s_add_u32 s65, s64, s{K.sWAVE}
    s_mul_i32 s65, s65, {16 * 896}
    s_sub_u32 s64, s64, s{K.sWAVE}
    s_add_u32 s64, s64, 7
    s_mul_i32 s64, s64, {16 * 896}
    s_sub_u32 s64, s64, 2048
    v_add3_u32 v{vXA}, v28, v29, s65
    v_add3_u32 v{vXA + 2}, v28, v29, s64
    v_xor_b32 v28, 64, v28
    v_add_u32 v28, {8 * 896 - 1024}, v28
    v_add3_u32 v{vXA + 1}, v28, v29, s65
    v_add3_u32 v{vXA + 3}, v28, v29, s64
    s_lshl_b32 s{sXB}, s{K.sWAVE}, 12
    s_add_u32 s{sXB}, s{sXB}, 131072
    s_mov_b32 s{sXO}, 0
    """)
def addr_xr():
    return L(f"""
    s_lshr_b32 s64, s{K.sWAVE}, 1
    s_lshl_b32 s64, s64, 13
    s_sub_u32 s64, s{sXB}, s64
    s_sub_u32 s64, s64, 65536
    v_add_u32 v{vXR}, s64, v{K.vCR}
    v_add_u32 v{vXR + 1}, s64, v{K.vCR + 1}
    """)
def addr_qd():
    return L(f"""
    v_lshrrev_b32 v28, 3, v0
    v_bfe_u32 v29, v0, 4, 1
    v_bfe_u32 v10, v0, 1, 2
    v_xor_b32 v29, v29, v10
    v_lshlrev_b32 v29, 5, v29
    v_and_b32 v10, 1, v0
    v_lshl_or_b32 v29, v10, 4, v29
    v_lshl_or_b32 v28, v28, 13, v29
    s_lshl_b32 s64, s{K.sWAVE}, 17
    s_lshl_b32 s{sM0Q}, s{K.sWAVE}, 11
    v_add_u32 v{vQD}, s64, v28
    v_xor_b32 v28, 64, v{vQD}
    v_add_u32 v{vQD + 1}, {8 * 8192 - 1024}, v28
    s_mov_b32 s{sQP}, {poff(0)}
    """)
def addr_qr():
    out = f"""
    v_lshrrev_b32 v28, 4, v0
    v_bfe_u32 v29, v0, 2, 2
    v_lshl_add_u32 v28, v28, 3, v29
    v_lshlrev_b32 v28, 7, v28
    v_and_b32 v29, 3, v0
    v_lshl_or_b32 v28, v29, 3, v28
    v_bfe_u32 v29, v0, 3, 2
    """
    for db in range(4):
        out += f"""v_xor_b32 v10, {db}, v29
        v_lshl_or_b32 v{vQL + db}, v10, 5, v28
        v_add_u32 v{vQH + db}, 0x10000, v{vQL + db}
        """
    return L(out)

def qacc(vt, s, db, qb):
    i = db * 2 + qb
    if vt: return kacc(2 * s + 1, i)
    return kacc(1, i) if s == 0 else kacc(2 * s + (i >> 2), 2 * (i & 3) + 1)
def units_of(n):
    if n == 6 and len({ORDER[24 + p][0] for p in range(4)}) == 1:
        return [(p0 + pp, d0 + dd) for d0 in (0, 2) for p0 in (0, 2) for dd in (0, 1) for pp in (0, 1)]
    return [(pc, db) for pc in range(4) for db in range(4)]
def q_reads(n, b):
    out = []
    slot = QSLOT[n]
    for u, (pc, db) in enumerate(units_of(n)[4 * b:4 * b + 4]):
        va = (vQL if slot < 2 else vQH) + db
        for ks in range(2):
            for j in range(2):
                r = Freg(b, 2 * u + ks) + 2 * j
                out.append(I(f"ds_read_b64_tr_b16 a[{r}:{r + 1}], v{va} offset:{(slot & 1) * 32768 + pc * 8192 + (32 * ks + 4 * j) * 128}"))
    return out
def q_mfmas(vt, n):
    ms = []; done = {}
    for u, (pc, db) in enumerate(units_of(n)):
        s, kt = ORDER[4 * n + pc]
        for qb in range(2):
            d = rr(qacc(vt, s, db, qb))
            for m, ks in enumerate((0, 1) if qb == 0 else (1, 0)):
                ms.append(mfma(d, R("a", Freg(u >> 2, 2 * (u & 3) + ks), 4), R("a", xreg(2 * kt + ks, qb), 4), "0" if kt == 0 and m == 0 else d))
            done[(s, db, qb)] = (kt, len(ms) - 1)
    return ms, done
def q_conv(vt, s, p, qb):
    a, b = qacc(vt, s, 2 * p, qb)[1], qacc(vt, s, 2 * p + 1, qb)[1]
    q = Qreg(qb, 2 * s + p)
    return ([I(f"v_mul_f32 v{r + e}, s{K.sSC}, v{r + e}") for r in (a, b) for e in range(4)] +
            L(f"""v_cvt_pk_bf16_f32 v{a}, v{a}, v{a+1}
            v_cvt_pk_bf16_f32 v{a+1}, v{a+2}, v{a+3}
            v_cvt_pk_bf16_f32 v{a+2}, v{b}, v{b+1}
            v_cvt_pk_bf16_f32 v{a+3}, v{b+2}, v{b+3}""") + [I(f"v_accvgpr_write_b32 a{q + e}, v{a + e}") for e in range(4)])

def place_vm(g, streams, avoid=(), caps=None, relax=False):
    items = []
    for si, (ins, lo, hi) in enumerate(streams):
        link(ins)
        grp = []; cur = []
        for i in ins:
            cur.append(i)
            if i.slots()[0]: grp.append(cur); cur = []
        for x, gr in enumerate(grp): items.append((lo + (x + 0.5) * (hi - lo) / len(grp) - 0.5 * (hi - lo) / len(grp), si, gr, cur if x == len(grp) - 1 else []))
    items.sort(key=lambda t: (t[0], t[1]))
    if caps:
        nlo = sum(1 for t in items if t[0] < 46)
        nlo = max(min(nlo, caps[0]), len(items) - caps[1]); assert nlo <= caps[0], len(items)
        a = items[:nlo]; b = items[nlo:]
        a0 = min(t[0] for t in a)
        items = [(max(streams[t[1]][1], a0 + x * (45.9 - a0) / max(len(a) - 1, 1)),) + t[1:] for x, t in enumerate(a)]
        items += [(49 + x * 13.0 / len(b),) + t[1:] for x, t in enumerate(b)]
    last = {}; lock = g.__dict__.get('lock', ())
    for tgt, si, gr, tail in items:
        k = last.get(si, -1)
        ns = len(gr) - 1
        j0 = max(int(tgt), k + 1 + ns)
        def ok(j, apart):
            fr = [q for q in range(k + 1, j) if g.room_s(q) and q not in lock]
            return g.used(j) == 0 and not g.has_s(j) and j not in avoid and len(fr) >= ns and not (apart and (g.has_vm(j - 1) or (j + 1 < g.n and g.has_vm(j + 1))))
        cand = [j for j in range(j0, g.n) if ok(j, True)]
        if relax and (not cand or cand[0] > j0 + 4): cand = [j for j in range(j0, g.n) if ok(j, False)]
        assert cand, "no room for memory op"
        j = cand[0]; free = [q for q in range(k + 1, j) if g.room_s(q) and q not in lock]
        for q, i in zip(free[len(free) - ns:] if ns else [], gr[:-1]): g.put_s(q, i)
        g.put(j, gr[-1]); last[si] = j
        for i in tail:
            j = g.fit_s(j + 1, i); last[si] = j
    return last
def place_reads(g, rs, lo, hi):
    G = [k for k in range(lo, hi) if g.used(k) == 0]
    n = len(rs); d = n - len(G)
    if d <= 0:
        pos = [G[x * len(G) // n] for x in range(n)]
    else:
        assert 2 * d <= len(G) + 1, (n, len(G))
        dbl = set(); x = 0
        cand = [G[int((y + 0.5) * len(G) / d)] for y in range(d)]
        for c in cand:
            while c in dbl or c - 1 in dbl or c + 1 in dbl or c not in G or g.nrd(c - 1) > 1: c += 1
            assert c < hi
            dbl.add(c)
        pos = [k for k in G for _ in range(2 if k in dbl else 1)]
    for k, r in zip(pos, rs): g.put(k, r)
    return pos

class VQ:
    def __init__(self): self.q = []; self.w0 = 0
    def add(self, ins, at=0):
        link(ins); self.q += [(at, i) for i in ins]
    def run(self, g, base, lo=0, hi=None):
        k = lo; hi = g.n if hi is None else hi
        self.base = base; self.placed = []
        while self.q:
            at, i = self.q[0]
            k = max(k, at - base)
            if i.slots()[0] == 0:
                k += 1
                while k < hi and not g.room_s(k): k += 1
                if k >= hi: break
                g.put_s(k, i)
            else:
                while k < hi and not g.room(k, i): k += 1
                if k >= hi: break
                g.put(k, i)
            self.placed.append(self.q.pop(0))
        return k
    def force(self, g, k, pred):
        idx = [n for n, (at, i) in enumerate(self.q) if pred(i)]
        if not idx: return 0
        for at, i in self.q[:idx[-1] + 1]: g.put(k, i)
        self.q = self.q[idx[-1] + 1:]
        return idx[-1] + 1

    def force_level(self, g, pred, lo, hi):
        idx = [n for n, (at, i) in enumerate(self.q) if pred(i)]
        if not idx: return 0
        extra = self.q[:idx[-1] + 1]; self.q = self.q[idx[-1] + 1:]
        mine = [(at, i) for at, i in self.placed if any(i in g.ve[k] for k in range(lo, hi))]
        for k in range(lo, hi): g.ve[k] = [i for i in g.ve[k] if not any(i is x for _, x in mine)]
        items = mine + extra
        ks = [k for k in range(lo, hi) if not g.has_vm(k) and not any(x.op == "s_barrier" for x in g.sc[k])]
        tot = len(items) + sum(g.used(k) for k in ks); acc = 0
        for x, k in enumerate(ks):
            acc += g.used(k)
            while items and ((acc + 1 <= (x + 1) * tot / len(ks) + 0.5 and items[0][0] - self.base <= k) or x == len(ks) - 1):
                g.put(k, items.pop(0)[1]); acc += 1
        return len(extra)

def kv_dma2(t):
    out = []
    for u in (2 * t, 2 * t + 1):
        l = []
        if u + 3 < 32: l.append(unit_c(u + 3))
        if u + 5 < 32: l.append(unit_w(u + 5))
        l += [unit_q(p) for p in {28: range(4), 30: range(4, 8), 31: range(8, 12)}.get(u, ())]
        l += [unit_x(kt) for kt in {27: (0, 1), 29: (2, 3), 31: (4,)}.get(u, ())]
        out.append(l)
    return out
def tile15(vt):
    ms = []
    for y in range(8): ms += row_mfmas(kacc, y, 1, y & 1, vt, False)
    g = Gaps(ms)
    g.put_s(46, WAITV([("C", 3)], lgkm0=True)); g.put_s(47, I("s_barrier"))
    g.put_s(110, WAITV([("T", 0)], lgkm0=True)); g.put_s(111, I("s_barrier"))
    for y in range(7):
        ny = y + 1
        for ks in range(2): g.put(y * 16, rd_c(ny & 1, (30 + (ny >> 2)) & 3, ny & 3, ks))
        g.put_s(y * 16 + 13, NEED(R("a", cfrag(ny & 1, 0), 8)))
    g.put_s(127, NEED(R("a", Freg(0, 0), 16)))
    return g
def q_window(vt, n):
    ms, done = q_mfmas(vt, n)
    g = Gaps(ms)
    g.put_s(7, NEED(R("a", Freg(0, 4), 16)))
    for b in (1, 2):
        g.put_s(16 * b - 1, NEED(R("a", Freg(b, 0), 16))); g.put_s(16 * b + 7, NEED(R("a", Freg(b, 4), 16)))
    g.put_s(47, I("s_barrier"))
    return g, done

def tile0(pt):
    from kvq import rd_w, wfrag
    cf = lambda y: 160 + 8 * y if y < 2 else 176 + 8 * (y - 2)
    rc = lambda y, ks: I(f"ds_read_b128 a[{cf(y) + 4 * ks}:{cf(y) + 4 * ks + 3}], v{K.vCR + ks} offset:{y * 2048}")
    wr = rd_w_unit(0, 0, 0)
    pre = [rc(0, 0), rc(0, 1)] + wr[:8] + [rc(1, 0), rc(1, 1)] + wr[8:] + [rc(y, ks) for y in (2, 3) for ks in range(2)]
    ms = []
    for hx in range(2):
        for y in range(4):
            for x in range(4 * hx, 4 * hx + 4):
                for n, ks in enumerate((0, 1) if x % 2 == 0 else (1, 0)):
                    w = R("a", wfrag(0, x, ks), 4); c = R("a", cf(y) + 4 * ks, 4); d = rr(kacc(y, x))
                    c0 = kvq.kv_c0(y, x) if n == 0 else d
                    ms.append(mfma(d, c, w, c0) if pt else mfma(d, w, c, c0))
    for y in range(4, 8): ms += row_mfmas(kacc, y, 0, y & 1, pt, True, kvq.kv_c0)
    g = Gaps(ms)
    g.pre = [NEED(R("a", cf(0), 8), R("a", wfrag(0, 0, 0), 8))]
    g.put_s(1, NEED(R("a", wfrag(0, 1, 0), 8))); g.put_s(3, NEED(R("a", wfrag(0, 2, 0), 8), R("a", cf(1), 8))); g.put_s(5, NEED(R("a", wfrag(0, 3, 0), 8)))
    for k, tags in ((15, [("W", 1)]), (47, [("C", 1), ("W", 2)]), (79, [("W", 3)]), (111, [("C", 2), ("W", 0)])):
        g.put_s(k - 1, WAITV(tags, lgkm0=True)); g.put_s(k, I("s_barrier"))
    for y in range(3, 8):
        ny = y + 1
        for ks in range(2): g.put(y * 16, rd_c(ny & 1, ny >> 2, ny & 3, ks))
        g.put_s(y * 16 + 13, NEED(R("a", cfrag(ny & 1, 0), 8)))
    spread2(g, rd_w_unit(0, 1, 1), 16, 28)
    g.put_s(31, NEED(R("a", wfrag(0, 4, 0), 32)))
    spread2(g, rd_w_unit(1, 2, 0), 50, 76)
    spread2(g, rd_w_unit(1, 3, 1), 82, 108)
    a_, b_, c_, d_ = [unit_w(3)], [unit_c(2), unit_w(4)], [unit_c(3), unit_w(5)], [unit_c(4), unit_w(6)]
    link([i for u_ in a_ + b_ + c_ + d_ for i in u_])
    weave_units(g, a_, 6, 14); weave_units(g, b_, 17, 45); weave_units(g, c_, 49, 77); weave_units(g, d_, 81, 109)
    return pre, g
```

```python
from common import *
import side
from side import sWAVE, sH, sJ, WS, OOB, FOP_LOAD, poll_flags
RS = [dict(row=10, off=12, g=15, x=16, b=32, acc=48, nu=2, col=(75, 76)), dict(row=29, off=28, g=26, x=96, b=80, acc=64, nu=1, col=(86,))]
RV = dict(row=10, off=12, g=15, x=16, b=32, acc=48, nu=1, col=(86,))
WI = 0
def fop(vl16, t, sE, sL):
    return L(f"""
    s_sub_u32 s64, 15, s{sJ}
    s_min_u32 s64, s64, s{sJ}
    s_mul_i32 s{sE}, s64, {2 * FSTR}
    s_lshl_b32 s64, s{sWAVE}, 6
    s_add_u32 s64, s64, s{sH}
    s_lshl2_add_u32 s{sE}, s64, s{sE}
    s_add_u32 s{sE}, s{sE}, {WS_FOP}
    s_movk_i32 s65, 1024
    s_cmp_lt_u32 s{sJ}, 8
    s_cselect_b32 s64, {FSTR}, s65
    s_cselect_b32 s65, 0, 64
    s_cselect_b32 s66, 32, 64
    s_add_u32 s{sL}, s{sE}, s64
    s_add_u32 s{sE}, s{sE}, s65
    v_lshrrev_b32 v{t + 2}, 5, v{vl16}
    v_mul_u32_u24 v{t + 2}, {FSTR}, v{t + 2}
    v_and_b32 v{t + 1}, 16, v{vl16}
    v_lshl_add_u32 v{t + 1}, v{t + 1}, 3, v{t + 2}
    v_mov_b32 v{t + 2}, {OOB}
    v_cmp_gt_u32 vcc, s66, v{vl16}
    v_mov_b32 v{t}, 1
    s_nop 0
    v_cndmask_b32 v{t + 1}, v{t + 2}, v{t + 1}, vcc
    """)
def rows(r):
    o = f"""
    v_mul_u32_u24 v{r['off']}, 896, v{r['row']}
    v_lshl_add_u32 v{r['off']}, v11, 4, v{r['off']}
    v_lshrrev_b32 v13, 4, v{r['row']}
    v_lshlrev_b32 v13, 5, v13
    v_and_b32 v104, 15, v{r['row']}
    v_add_lshl_u32 v13, v13, v104, 2
    buffer_load_dword v{r['g']}, v13, {WS}, s64 offen sc1
    {'s_mov_b32 s58, 0' if WI == 4 else ''}
    """
    for u in range(r['nu']): o += f"buffer_load_dwordx4 v[{r['x'] + 4*u}:{r['x'] + 4*u + 3}], v{r['off']}, s[56:59], s{r['col'][u]} offen\n"
    return L(o)
def head(V):
    pair = f"s_sub_u32 s64, 15, s{sJ}\ns_lshl_b32 s64, s64, 1" if V else f"s_lshl_b32 s64, s{sJ}, 1"
    out = L(f"""
    {pair}
    s_lshr_b32 s65, s{sH}, 3
    s_add_u32 s46, s64, s65
    s_mul_i32 s46, s46, {FSTR}
    s_and_b32 s72, s{sH}, 7
    s_lshl_b32 s66, s72, 7
    s_add_u32 s46, s46, s66
    s_add_u32 s46, s46, {WS_FOP + (1024 if V else 0)}
    v_and_b32 v14, {15 if V else 31}, v0
    v_lshlrev_b32 v14, 2, v14
    {FOP_LOAD}
    s_mul_i32 s86, s65, {3 if V else 4}
    s_add_u32 s86, s86, s{sWAVE}
    {'s_add_u32 s86, s86, 8' if V else ''}
    s_mul_i32 s77, s{sJ}, {16 * OP_HEAD}
    s_mul_i32 s78, s72, 14336
    s_add_u32 s77, s77, s78
    s_add_u32 s77, s77, {WS_OP}
    """) + (L(f"""
    s_lshl_b32 s78, s86, 10
    s_add_u32 s77, s77, s78
    """) if V else L(f"""
    s_sub_u32 s64, 15, s64
    s_sub_u32 s78, s64, 1
    s_mul_i32 s78, s78, {16 * OP_HEAD}
    s_add_u32 s78, s78, s77
    s_lshl_b32 s66, s86, 10
    s_add_u32 s78, s78, s66
    {f's_or_b32 s78, s78, {OOB}' if WI == 3 else ''}
    s_lshl_b32 s66, s74, 10
    s_add_u32 s77, s77, s66
    {f's_lshr_b32 s87, s{sH}, 3' + chr(10) + 's_sub_u32 s87, s87, 1' + chr(10) + f's_and_b32 s87, s87, {OOB}' + chr(10) + 's_or_b32 s77, s77, s87' if WI == 1 else f's_or_b32 s77, s77, {OOB}' if WI == 2 else ''}
    s_lshl_b32 s66, s64, 7
    """)) + L(f"""
    s_lshl_b32 s86, s86, 6
    {side.ROWMAP}
    s_lshl_b32 s65, s{sJ}, 7
    s_add_u32 s73, s73, s65
    v_and_b32 v10, 15, v0
    v_add_u32 v10, s73, v10
    {'' if V else 'v_add_u32 v29, s66, v10'}
    s_mov_b32 s64, {WS_RG + 64}
    """)
    for r in ([RV] if V else RS): out += rows(r) + [I(f"v_mov_b32 v{r['acc'] + n}, 0") for n in range(8 * r['nu'])]
    return out
def base_term(r, tag):
    n = r['nu']
    return [i for w in range(4 * n) for i in L(f"v_lshlrev_b32 v{r['b']+2*w}, 16, v{r['x']+w}\nv_and_b32 v{r['b']+1+2*w}, 0xffff0000, v{r['x']+w}")] + L(f"""
    v_sub_f32 v13, 1.0, v{r['g']}
    v_cmp_eq_u32 s[80:81], s84, v{r['row']}
    v_cmp_eq_u32 s[82:83], s85, v{r['row']}
    s_or_b64 vcc, s[80:81], s[82:83]
    s_cbranch_vccnz L_moe{tag}
    L_moe_ret{tag}:
    """) + [I(f"v_mul_f32 v{r['b']+e}, v13, v{r['b']+e}") for e in range(8 * n)]
def fin(r, note=""):
    o = []
    for u in range(r['nu']):
        if side.SWAP: o += [I("s_nop 2")] + [I(f"v_permlane16_swap_b32 v{r['acc']+8*u+e}, v{r['acc']+8*u+4+e}") for e in range(4)]
        o += [I(f"v_fmac_f32 v{r['b']+8*u+e}, v{r['g']}, v{r['acc']+8*u+e}") for e in range(8)]
        o += [I(f"v_cvt_pk_bf16_f32 v{r['x']+4*u+w}, v{r['b']+8*u+2*w}, v{r['b']+1+8*u+2*w}") for w in range(4)]
        o.append(I(f"buffer_store_dwordx4 v[{r['x']+4*u}:{r['x']+3+4*u}], v{r['off']}, s[52:55], s{r['col'][u]} offen {side.OSF}{note}"))
    return o
def dots(r, src): return [i for w in range(4 * r['nu']) for i in L(f"v_dot2c_f32_bf16 v{r['acc']+2*w}, v{src+w}, v24\nv_dot2c_f32_bf16 v{r['acc']+1+2*w}, v{src+w}, v25")]
START = f"v_cmp_eq_u32 vcc, 1, v9\ns_mov_b32 s91, {SPIN_MAX}\ns_mov_b32 s69, 0\n"
def main_v(vl16, st, lag, sent=False):
    out = L(START + "s_and_b32 s70, vcc_lo, 0xffff\ns_or_b32 s68, s70, 0xffff0000")
    adr = [12, 13, 14, 15, 16, 17, 18, 19, 21, 22, 23, 24, 48, 49, 50, 51]; far = []
    for k in range(16 + lag):
        if k < 16:
            out += L(f"""s_cmp_lg_u32 s70, 0
            s_cbranch_scc1 L_vk{k}
            s_call_b64 s[36:37], L_rpoll
            L_vk{k}:
            s_ff1_i32_b32 s71, s70
            s_bitset0_b32 s70, s71
            s_mul_i32 s71, s71, {OP_HEAD}
            s_add_u32 s{adr[k]}, s71, s77
            buffer_load_dwordx4 v[{128+4*k}:{131+4*k}], v{vl16}, {WS}, s{adr[k]} offen sc1""")
        if k == 1: out += base_term(RV, 2)
        if k == 15: out += st()
        if k >= lag:
            kk = k - lag; r = 128 + 4 * kk
            out += [NEED(R("v", r, 4))]
            if sent:
                tst = f"v_max3_u32 v13, v{r}, v{r+1}, v{r+2}\nv_max_u32 v13, v13, v{r+3}\nv_cmp_eq_u32 vcc, -1, v13"
                out += L(tst + f"\ns_cbranch_vccnz L_vz{kk}\nL_vw{kk}:")
                far += L(f"""L_vz{kk}:
                buffer_load_dwordx4 v[{r}:{r+3}], v{vl16}, {WS}, s{adr[kk]} offen sc1
                s_waitcnt vmcnt(0)
                {tst}
                s_sub_u32 s91, s91, 1
                s_cbranch_scc1 L_vw{kk}
                s_cbranch_vccnz L_vz{kk}
                s_branch L_vw{kk}""")
            out += dots(RV, r)
    return out + st() + L("s_nop 1") + fin(RV), far
def main_k(vl16, st, lag):
    out = L(START + "s_mov_b32 s70, vcc_lo\ns_mov_b32 s68, vcc_lo")
    far = []
    for k in range(32 + lag):
        if k < 32:
            r = 128 + 8 * (k % 16)
            out += L(f"""s_cmp_lg_u32 s70, 0
            s_cbranch_scc1 L_rk{k}
            s_call_b64 s[36:37], L_rpoll
            L_rk{k}:
            s_ff1_i32_b32 s71, s70
            s_bitset0_b32 s70, s71
            s_cmp_ge_u32 s71, 16
            s_cselect_b32 s72, s78, s77
            s_cselect_b32 s73, {hex(1 << k)}, 0
            s_cselect_b32 s87, {OOB}, 0
            s_mul_i32 s71, s71, {OP_HEAD}
            s_add_u32 s71, s71, s72
            buffer_load_dwordx4 v[{r}:{r+3}], v{vl16}, {WS}, s71 offen sc1
            s_or_b32 s69, s69, s73
            s_or_b32 s71, s71, s87
            buffer_load_dwordx4 v[{r+4}:{r+7}], v27, {WS}, s71 offen sc1""")
        if k in (1, 2): out += base_term(RS[k - 1], k - 1)
        if k == 31: out += st()
        if k >= lag:
            kk = k - lag; r = 128 + 8 * (kk % 16); f = 0 if kk < 16 else 1
            out += [NEED(R("v", r, 8))] + L(f"s_bitcmp{1 - f}_b32 s69, {kk}\ns_cbranch_scc1 L_rx{kk}") + dots(RS[f], r) + L(f"L_ry{kk}:")
            far += L(f"L_rx{kk}:") + dots(RS[1 - f], r) + L(f"s_branch L_ry{kk}")
        if k == 27:
            out += L(f"""s_and_b32 s71, s69, {hex((1 << (k - lag + 1)) - 1)}
            s_bcnt1_i32_b32 s71, s71
            s_cmp_eq_u32 s71, {k - lag + 1 - 16}
            s_cselect_b32 s66, 1, 0
            s_cbranch_scc0 L_rne""") + fin(RS[0], " ; nocount") + L("L_rne:")
    out += st() + L("s_nop 1") + fin(RS[1]) + L("s_cmp_eq_u32 s66, 1\ns_cbranch_scc1 L_rdone") + fin(RS[0]) + L("L_rdone:")
    return out, far
def moe():
    out = []
    for tag, r in ((0, RS[0]), (1, RS[1]), (2, RV)):
        out += L(f"L_moe{tag}:\ns_lshl_b32 s88, s{r['col'][0]}, 1\ns_call_b64 s[36:37], L_moe")
        out += [I(f"v_add_f32 v{r['b']+e}, v{108+e}, v{r['b']+e}") for e in range(8 * r['nu'])] + L(f"s_mov_b64 exec, -1\ns_branch L_moe_ret{tag}")
    return out + L(f"""
    L_moe:
    v_min_u32 v104, 27, v0
    v_lshlrev_b32 v104, 2, v104
    s_mov_b32 s64, {WS_FH + 512}
    """) + poll_flags(64, 64, "L_pfy", 105, 104, 65) + L(f"""
    s_or_b64 exec, s[80:81], s[82:83]
    v_mov_b32 v104, 1792
    v_cndmask_b32 v104, v104, 0, s[80:81]
    v_lshl_add_u32 v104, v11, 5, v104
    s_add_u32 s88, s88, {WS_YF}
    buffer_load_dwordx4 v[108:111], v104, {WS}, s88 offen sc1
    buffer_load_dwordx4 v[112:115], v104, {WS}, s88 offen offset:16 sc1
    buffer_load_dwordx4 v[116:119], v104, {WS}, s88 offen offset:512 sc1
    buffer_load_dwordx4 v[120:123], v104, {WS}, s88 offen offset:528 sc1
    s_waitcnt vmcnt(0)
    s_setpc_b64 s[36:37]
    """)

def poll2(half):
    ld = lambda v: FOP_LOAD.replace("v9,", f"v{v},")
    tst = lambda v: f"""s_waitcnt vmcnt(1)
    v_cmp_eq_u32 vcc, 1, v{v}
    s_sub_u32 s91, s91, 1
    s_cselect_b32 s70, -1, 0
    s_or_b32 s70, s70, vcc_lo
    s_andn2_b32 s70, s70, s68"""
    return L(f"""
    L_rpoll:
    {ld(9)}
    s_sleep {half}
    L_rpoll0:
    {ld(105)}
    {tst(9)}
    s_cbranch_scc1 L_rpollx
    {ld(9)}
    {tst(105)}
    s_cbranch_scc0 L_rpoll0
    L_rpollx:
    s_or_b32 s68, s68, s70
    s_setpc_b64 s[36:37]
    """)
```

```python
import sys
from att3 import *
import kvq, side, hw, asmlib, att3, q2, red3
from kvq import K, seq_fit
from q2 import VQ, place_vm, place_reads
opt = dict(stamp="0", v="1", thr=str(2.0 ** 40), lo=str(2.0 ** -60), m0="16", fine="0", dbgst="0", dbgl="0,3,6,7,14,18,21",
           cw="1", w1="0", q0="1", ramp="00", eo="0", pc="0", sw="1", r3="1", lagv="16", lag="8",
           pcq="4", tQ="9", tW="5", tH="7", tc="6,13", tg="113", xs_="20", odh="45", ne="8", jy="6", tl="1",
           k15="8", kst="2224a56", kf="0", v15="4", vst="2204444", vf="2", nq="8", w0l="24", ext="1", wis="0", p2="0", pw="1", pfg="24", ec="1", n1="9", rsl="1", wso="0", hnt="nt", nomoe="0", sent="0", sg="30", mk="044", s5="1", odh5="26", efw="5", efg="52", wi="0", sw_="0", sc_="0", swf="nt", hi0="44", hi1="108", rv="0", eh="1", bpv="0", bpvd="4", bpvk="20", bop="1", bopk="2.0", bkk="8.0", bkv="1", bq="0", tB="13", bsp="5", l4="44", wn="2221",
           ntw="nt", ntt="", osf="sc1", stf="sc1", dfl="sc1", hot="00", npk="16")
for a in sys.argv[1:]:
    k, v = a.split("="); assert k in opt, k; opt[k] = v
O = lambda k: int(opt[k])
STAMP = opt["stamp"] == "1"
kvq.HOT = opt["hot"]; kvq.NTW = opt["ntw"]; side.NTT = opt["ntt"]; kvq.STF = opt["stf"]; att3.DFL = opt["dfl"]; side.OSF = opt["osf"]
side.EPAR = 2; side.NE = O("ne"); side.SELLV = 1; side.YLV = 4; hw.MAP = "0"
side.ROWMAP = "s_lshr_b32 s73, s72, 1\ns_sub_u32 s65, 7, s73\ns_bitcmp1_b32 s72, 0\ns_cselect_b32 s73, s65, s73\ns_lshl_b32 s73, s73, 4"
sH, sJ, sSTK, sKV, sFL = 41, 42, 44, 45, 45
XS = O('xs_'); assert XS in (18, 20)
JC = XS // 2
FSH = 7
aST = 250
NM0 = hex(f2u(-float(opt['m0'])))
BOP = O('bop')
BPV.update(on=O('bpv'), db=O('bpvd'), k=float(opt['bpvk']))
red3.WI = O('wi')
hw.HNT = opt['hnt']
side.RSL = O('rsl')
EC = O('ec')
PW = O('pw')
kvq.WIS = O('wis')
NEVER = 0x7fff
SENT = O('sent')
EXT = O('ext')
SW = O('sw')
def stamp(t=10):
    if not STAMP: return []
    return L(f"""s_memrealtime s[36:37]
    s_memtime s[98:99]
    v_accvgpr_read_b32 v{t}, a{aST}
    v_accvgpr_read_b32 v{t+1}, a{aST+1}
    s_mov_b32 s100, m0
    s_mov_b32 m0, s{sSTK}
    s_waitcnt lgkmcnt(0)
    v_writelane_b32 v{t}, s98, m0
    v_writelane_b32 v{t+1}, s36, m0
    s_add_u32 s{sSTK}, s{sSTK}, 1
    s_mov_b32 m0, s100
    v_accvgpr_write_b32 a{aST}, v{t}
    v_accvgpr_write_b32 a{aST+1}, v{t+1}""")
fst = lambda n, t=10: stamp(t) if opt['fine'] == str(n) else []

F1_LOAD = f"buffer_load_dword v24, v13, {WSR}, s46 offen sc1"
F2_LOAD = f"buffer_load_dword v24, v{A.vFL}, {WSR}, s46 offen sc1"
FL_LOAD = f"buffer_load_dword v{A.vRL + 1}, v{A.vFL}, {WSR}, s46 offen sc1"
FP_LOAD = f"buffer_load_dword v{A.vRL}, off, {WSR}, s47 sc1"
ZZ = lambda: [I(f"v_mov_b32 v{A.vP1 + e}, 0") for e in range(4)]
SELM = lambda: L(f"""
    v_mov_b32 v16, 0x3f80
    v_lshrrev_b32 v17, 8, v{A.vL16}
    v_bfe_u32 v18, v{A.vL16}, 6, 2
    v_and_b32 v19, 16, v{A.vL16}
    v_lshlrev_b32 v19, v19, v16
    v_cmp_eq_u32 vcc, v17, v18
    v_and_b32 v16, 32, v{A.vL16}
    v_accvgpr_write_b32 a244, 0
    v_accvgpr_write_b32 a245, 0
    v_cndmask_b32 v19, 0, v19, vcc
    v_cmp_eq_u32 vcc, 0, v16
    v_accvgpr_write_b32 a248, 0
    v_accvgpr_write_b32 a249, 0
    v_cndmask_b32 v17, 0, v19, vcc
    v_sub_u32 v18, v19, v17
    v_accvgpr_write_b32 a246, v17
    v_accvgpr_write_b32 a247, v18
    """)

def first_qk(cv_late):
    if not cv_late:
        g = Gaps(qk_mfmas(0, "nm")); weave_reads(g, 3, 1, [("T", 1)])
        blocks = [(0, 0), (0, 1), (1, 0), (1, 1)]; rdy = [11, 19, 27, 35]
    else:
        m = lambda kb, qb, ks, c=None: mfma(R("v", Sreg(0, kb, qb), 4), R("a", Freg(kb, ks), 4), R("a", Qreg(qb, ks), 4), c or R("v", Sreg(0, kb, qb), 4))
        ms = [m(kb, qb, ks, R("v", A.vNM + 4 * qb, 4) if n == 0 else None) for kb in range(2) for qb in range(2) for n, ks in enumerate(range(6) if qb == 0 else range(5, -1, -1))]
        ms += [m(0, 0, 6), m(0, 1, 6), m(1, 1, 6), m(1, 0, 6), m(0, 0, 7), m(1, 0, 7), m(0, 1, 7), m(1, 1, 7)]
        g = Gaps(ms + qk_mfmas(0, "nm")[32:])
        for f, k in enumerate([0, 1, 2, 4, 5, 6, 8, 9]): g.put(k, rd_frag(3, 1, f, Freg(1, f)))
        g.put_s(11, NEED(R("a", Freg(1, 0), 24))); g.put_s(22, NEED(R("a", Freg(1, 6), 8)))
        for f, k in enumerate([13, 14, 16, 17, 19, 20, 27, 31]): g.put(k, rd_frag(3, 2, f, Freg(2, f)))
        for f, k in enumerate([25, 28, 29, 33, 34, 36, 37, 39]): g.put(k, rd_frag(3, 3, f, Freg(3, f)))
        g.put_s(31, NEED(R("a", Freg(2, 0), 24))); g.put_s(37, NEED(R("a", Freg(2, 6), 8)))
        g.put_s(46, WAITV([("T", 1)], lgkm0=True)); g.put_s(47, I("s_barrier"))
        for f, r in enumerate(rd_batch(1, 0)): g.put(48 + RPAT[0][f], r)
        g.put_s(62, NEED(R("a", Freg(0, 0), 32)))
        blocks = [(0, 0), (1, 0), (0, 1), (1, 1)]; rdy = [32, 33, 34, 35]
    sm = SM(sm_groups(0, blocks + blocks_of(1), (0, 1)), ready={n: rdy[n >> 1] for n in range(8)})
    return g, sm

def ramp():
    nw, nc = int(opt['ramp'][0]), int(opt['ramp'][1])
    if not nw: return [], []
    pre = L(f"""
    v_lshrrev_b32 v28, 2, v0
    v_add_u32 v28, 1, v28
    v_lshrrev_b32 v29, 1, v28
    v_and_b32 v28, 1, v28
    v_lshlrev_b32 v28, 7, v28
    v_lshl_or_b32 v28, v29, 19, v28
    v_and_b32 v29, 1, v0
    v_lshl_or_b32 v28, v29, 8, v28
    v_bfe_u32 v29, v0, 1, 1
    v_lshl_or_b32 v28, v29, 13, v28
    s_lshl_b32 s64, s{K.sWAVE}, 14
    s_add_u32 s64, s64, s75
    v_cmp_gt_u32 vcc, {4 * nw}, v0
    v_add_u32 v28, s64, v28
    v_mov_b32 v31, {side.OOB}
    v_cndmask_b32 v16, v31, v28, vcc
    """) + (L(f"""
    v_lshrrev_b32 v28, 3, v0
    v_add_u32 v28, 1, v28
    v_lshrrev_b32 v29, 1, v28
    v_and_b32 v28, 1, v28
    v_lshlrev_b32 v28, 21, v28
    v_lshl_or_b32 v28, v29, 7, v28
    v_and_b32 v29, 7, v0
    v_lshl_or_b32 v28, v29, 11, v28
    s_lshr_b32 s64, s{sH}, 3
    s_lshl1_add_u32 s64, s{sKV}, s64
    s_lshl_b32 s64, s64, 5
    s_add_u32 s64, s64, s{K.sWAVE}
    s_lshl_b32 s64, s64, 14
    v_cmp_gt_u32 vcc, {8 * nc}, v0
    v_add_u32 v28, s64, v28
    v_cndmask_b32 v17, v31, v28, vcc
    """) if opt['rv'] == '0' else L(f"""
    v_lshrrev_b32 v28, 4, v0
    v_add_u32 v28, 1, v28
    v_lshrrev_b32 v29, 1, v28
    v_and_b32 v28, 1, v28
    v_lshlrev_b32 v28, 21, v28
    v_lshl_or_b32 v28, v29, 7, v28
    v_and_b32 v29, 15, v0
    v_lshl_or_b32 v28, v29, 11, v28
    s_lshr_b32 s64, s{sH}, 3
    s_lshr_b32 s67, s{K.sWAVE}, 1
    s_lshl1_add_u32 s64, s64, s67
    s_lshl_b32 s64, s64, 4
    s_and_b32 s67, s{K.sWAVE}, 1
    s_add_u32 s64, s64, s67
    s_lshl_b32 s64, s64, 15
    v_cmp_gt_u32 vcc, {16 * nc}, v0
    v_add_u32 v28, s64, v28
    v_cndmask_b32 v17, v31, v28, vcc
    s_sub_u32 s64, s{sJ}, 8
    s_and_b32 s64, s64, {side.OOB}
    v_or_b32 v16, s64, v16
    v_or_b32 v17, s64, v17
    """))
    return pre, [I(f"buffer_load_dword a240, v16, s[{K.S_W}:{K.S_W + 3}], 0 offen {opt['ntw']}", tag="TOUCH"), side.touch(17, K.S_C, 0, nt=False)]

def build_front(c):
    c.block("entry", f"""
    s_cmp_lt_u32 s2, 256
    s_cbranch_scc1 L_go
    s_endpgm
    L_go:
    {'s_memrealtime s[36:37]' + chr(10) + 's_memtime s[98:99]' if STAMP else ''}
    s_load_dwordx8 s[80:87], s[0:1], {A_X}
    s_load_dwordx4 s[88:91], s[0:1], {A_WUV}
    s_load_dwordx2 s[92:93], s[0:1], {A_WR}
    s_load_dwordx2 s[30:31], s[0:1], {A_GW}
    s_load_dwordx4 s[4:7], s[0:1], {A_DBG}
    v_lshrrev_b32 v24, 6, v0
    v_and_b32 v0, 63, v0
    v_readfirstlane_b32 s{K.sWAVE}, v24
    """, side.code_touch() if opt['pc'] == '0' else side.code_touch()[:-1], f"""
    s_and_b32 s{sH}, s2, 7
    s_lshr_b32 s{sJ}, s2, 3
    s_lshr_b32 s64, s{sJ}, 4
    s_lshl_b32 s64, s64, 3
    s_add_u32 s{sH}, s{sH}, s64
    s_and_b32 s{sJ}, s{sJ}, 15
    s_lshr_b32 s{sKV}, s{sJ}, 3
    s_xor_b32 s{sKV}, s{sKV}, {SW}
    s_mov_b32 s{sSTK}, 0
    v_accvgpr_write_b32 a{aST}, 0
    v_accvgpr_write_b32 a{aST+1}, 0
    v_and_b32 v24, 15, v0
    v_lshrrev_b32 v25, 4, v0
    v_lshlrev_b32 v{K.vST}, 4, v0
    s_and_b32 s65, s{K.sWAVE}, 1
    s_lshr_b32 s66, s{K.sWAVE}, 1
    {kvq.addr_wd()}
    {kvq.addr_cd()}
    s_mov_b32 s{K.sWOFF}, 0
    s_mov_b32 s{K.sCOFF}, 0
    s_lshl_b32 s{K.sM0W}, s{K.sWAVE}, 12
    s_add_u32 s{K.sM0C}, s{K.sM0W}, 65536
    s_lshl_b32 s74, s{sH}, 9
    s_sub_u32 s{K.S_W + 2}, {1024*8192}, s74
    s_mov_b32 s{K.S_W + 3}, 0x20000
    s_and_b32 s75, s{sJ}, 7
    s_lshl_b32 s75, s75, 16
    s_sub_u32 s{K.S_C + 2}, {2048*2048}, s75
    s_mov_b32 s{K.S_C + 3}, 0x20000
    """, ramp()[0], L(kvq.addr_rd()) + side.c_touch_setup() if opt['eo'] == '1' else [], f"""
    s_mov_b32 m0, s{K.sM0W}
    s_cmp_eq_u32 s{sKV}, 0
    s_cselect_b64 s[72:73], s[86:87], s[88:89]
    s_add_u32 s{K.S_W}, s72, s74
    s_addc_u32 s{K.S_W + 1}, s73, 0
    s_and_b32 s{K.S_W + 1}, s{K.S_W + 1}, 0xffff
    """, kvq.unit_w(0)[1:], f"""
    s_add_u32 s{K.S_C}, s82, s75
    s_addc_u32 s{K.S_C + 1}, s83, 0
    s_and_b32 s{K.S_C + 1}, s{K.S_C + 1}, 0xffff
    """, kvq.unit_c(0), ramp()[1], kvq.unit_w(1) if opt['w1'] == '0' else [], stamp(26)[2:], L(kvq.addr_rd()) + side.c_touch_setup() if opt['eo'] == '0' else [],
        side.code_addr(28, 29) + side.code_touch()[-1:] if opt['pc'] == '1' else [], f"""
    {srd(32, 82, 2048*2048)}
    {srd(K.S_X, 80, 2048*896)}
    {srd(60, 92, 896)}
    {srd(68, 30, 896)}
    {f's_add_u32 s6, s6, {O("wso") << 20}' + chr(10) + 's_addc_u32 s7, s7, 0' if O('wso') else ''}
    {srd(K.S_WS, 6, (256 - O('wso')) << 20)}
    {srd(K.S_DBG, 4, 256)}
    s_add_u32 s72, s84, s74
    s_addc_u32 s73, s85, 0
    s_sub_u32 s75, {448*8192}, s74
    {srd(K.S_WQ, 72, "s75")}
    s_mov_b32 s{K.sSC}, {hex(f2u(LOG2E_16))}
    s_mov_b32 s{K.sWQOFF}, 0
    s_mul_i32 s{K.sXOFF}, s{sJ}, {128*896}
    s_lshl_b32 s72, s{sKV}, 24
    s_lshl_b32 s73, s{sH}, 20
    s_add_u32 s72, s72, s73
    s_bfe_u32 s64, s{sJ}, 0x20001
    s_lshl_b32 s64, s64, 15
    s_add_u32 s72, s72, s64
    s_lshl_b32 s64, s66, 17
    s_add_u32 s72, s72, s64
    s_and_b32 s67, s{sJ}, 1
    s_cmp_eq_u32 s{sKV}, 0
    s_cselect_b32 s64, 12, 14
    s_cselect_b32 s75, 14, 10
    s_lshl_b32 s67, s67, s75
    s_add_u32 s72, s72, s67
    s_lshl_b32 s64, s65, s64
    s_add_u32 s{K.sOOFF}, s72, s64
    """, side.h_touch_srd(), f"s_load_dwordx2 s[96:97], s[0:1], {A_OUT}", f"s_cmp_lt_u32 s{sJ}, 8\ns_cbranch_scc0 L_kv1")
    pcq, tQ, tH, tW = O("pcq"), O("tQ"), O("tH"), O("tW")
    for vt in (0, 1):
        o = "v" if vt else "k"; pt = vt ^ SW
        frags = [kvq.rd_c(0, 0, 0, 0), kvq.rd_c(0, 0, 0, 1)] + kvq.rd_w_unit(0, 0, 0) + kvq.rd_w_unit(0, 1, 1)
        kvq.BIAS.update(kv="v[20:23]" if O('bkv') else None, q="v[28:31]" if O('bq') else None, rows=None)
        Q0 = opt['q0'] == '1'
        out = side.z_store()[:-3] + side.r4_loads() + side.z_store()[-3:] if vt == 0 else L(srd(60, 90, 4096*896))
        if Q0:
            frags, g0 = q2.tile0(pt)
            cw = kvq.unit_c(1) + kvq.unit_w(2); w1 = kvq.unit_w(1) if opt['w1'] == '1' else []
            if opt['cw'] == '0': out = cw + out; cw = []
            out = out + w1 + [WAITV([("C", 0), ("W", 0)], lgkm0=True), I("s_barrier")] + stamp(26) + frags + cw
            if vt == 0: out += side.r4_compute()
        else:
            out += kvq.unit_w(2) + kvq.unit_c(1) + [WAITV([("W", 1), ("C", 0), ("W", 0)], lgkm0=True), I("s_barrier")] + stamp(26) + frags
            if vt == 0: out += side.r4_compute()
            out += [NEED(R("a", kvq.wfrag(0, 0, 0), 8), R("a", 160, 8))]
        for t in range(15):
            dma = kvq.kv_dma(t)
            if vt == 1 and t == tW:
                pre, uns = side.wo2_dma(); dma[1] = dma[1] + [uns[0]]
            if vt == 1 and t == tW + 1: dma[1] = dma[1] + [uns[1]]
            if vt == 0 and t == tH - 5:
                pre, uns = hw.s1_weights()
            if vt == 0 and tH - 5 <= t <= tH + 1 and not O('nomoe'): dma[1] = dma[1] + [uns[t - tH + 5]]
            if vt == 0 and t == tH + 4:
                pre, un = hw.s6_down_dma(); dma[1] = dma[1] + ([un] if not O('nomoe') else [])
            g = g0 if (Q0 and t == 0) else kvq.kv_tile(t, pt, dma, first=(t == 0), hi1=O('hi1') if len(dma[1]) < 3 else 108, hi0=O('hi0'))
            def fit(ins, k, pace=0):
                k, left = seq_fit(g, ins, k, pace); assert not left, (t, len(left)); return k
            def mm(ms, k):
                k |= 1
                for m in ms: g.put(k, m)
                return k
            tch = []
            if pcq and (t + pcq) % 4 == 0 and t + pcq < 16: tch += side.c_touch(32, (t + pcq) // 4)
            if O('sw_') or O('sc_'):
                if t == 0: fit(side.share_setup(sKV), 50)
                if O('sw_') and 3 < t + O('sw_') < 16: tch += side.share_w(K.S_W, t + O('sw_'), opt['swf'])
                if O('sc_') and 2 < t + O('sc_') < 16: tch += side.share_c(K.S_C, t + O('sc_'))
            if t == 1 and vt == 0: fit(side.z_signal(), 112)
            if t == 2 and vt == 0: assert fit(side.rg4_store(), 4, 1) < 42
            if t == 3: fit(side.z_load(), 50)
            if t == 4:
                k = fit(side.z_check(vt), 112)
                if vt == 0: fit(side.key4_store(), k + 1)
            if vt == 1:
                pre_, tl = side.q_touch3(K.S_WQ)
                if t == tQ: fit(pre_, 60)
                if 0 <= t - tQ < len(tl): tch += tl[t - tQ]
                if t == tW: assert fit(pre, 42) < 80
                if t == tW + 2: g.sc[110][0].tag = g.sc[110][0].tag + ["WO"]
                if t == tW + 3: assert fit(side.wo2_reads(), 2, 2) < 108
                if t == 2: fit(SELM() + [I(f"v_accvgpr_write_b32 a{232 + e}, -1") for e in range(4) if SENT], 10, 1)
            if vt == 0 and O('nomoe'):
                if t == tH - 5: assert fit(pre, 42) < 90
                if t == tH + 1: fit(L("v_cmp_eq_u32 vcc, -1, v0\ns_nop 1\ns_cbranch_vccnz L_hs\nL_hr:"), 10)
                if t == tH + 6: pre, ms, yadr, yst = hw.s8_down(); link(yadr + yst)
            elif vt == 0:
                if t == tH - 5: assert fit(pre, 42) < 90
                if t == tH: fit(hw.s2_keys(), 4)
                if t == tH + 1: assert fit(hw.s3_top2(), 10, 1) < 108
                if t == tH + 2: fit(hw.s4_sel(), 4, 1)
                if t == tH + 3:
                    (r0, m0), (r1, m1) = hw.s5_gemm()
                    k = fit([WAITV("HW")] + r0, 50); k = mm(m0, max(k + 6, 78)); k = fit(r1, k + 1); mm(m1, max(k + 6, 110))
                if t == tH + 4: assert fit(pre, 4) < 44
                if t == tH + 5:
                    s7 = hw.s7_act(); fit(s7, 2, 1)
                    assert all(i.kind != "dsr" or i not in s7 for q in range(100, 128) for i in g.ve[q])
                if t == tH + 6:
                    pre, ms, yadr, yst = hw.s8_down(); link(yadr + yst)
                    k = fit(pre, 2); k = mm(ms, max(k + 2, 46))
            if t == 14: assert fit(kvq.addr_q(), 2) < 46
            if t == 14: fit(L(f"""
                s_mul_i32 s72, s{sH}, {FSTR}
                s_add_u32 s46, s72, {WS_FL}
                s_lshl_b32 s{sFL}, s{sJ}, {FSH}
                s_add_u32 s{sFL}, s{sFL}, s46
                s_sub_u32 s66, 15, s{sJ}
                s_min_u32 s66, s66, s{sJ}
                s_lshl_b32 s47, s66, {FSH}
                s_add_u32 s47, s47, s46
                s_add_u32 s47, s47, {2048 + (0 if vt else 64)}
                {f's_lshl2_add_u32 s47, s{A.sWAVE}, s47' if PW else ''}
                s_lshl_b32 s65, s{sH}, 3
                s_add_u32 s65, s65, s66
                s_mul_i32 s{A.sPO}, s65, {PO_STRIDE}
                s_add_u32 s{A.sPO}, s{A.sPO}, {WS_PO}
                s_lshl_b32 s65, s{sJ}, 4
                s_add_u32 s65, s65, s{sH}
                s_mul_i32 s{A.sOP}, s65, {OP_HEAD}
                s_mul_i32 s65, s{A.sWAVE}, {OP_HEAD // 4}
                s_add_u32 s{A.sOP}, s{A.sOP}, s65
                s_add_u32 s{A.sOP}, s{A.sOP}, {WS_OP}
                s_sub_u32 s65, 15, s66
                s_lshl_b32 s65, s65, 16
                s_lshl_b32 s64, s{sH}, 20
                s_add_u32 s{A.sQ}, s64, s65
                s_lshl_b32 s65, s{A.sWAVE}, 14
                s_add_u32 s{A.sQ}, s{A.sQ}, s65
                s_add_u32 s{A.sQ}, s{A.sQ}, {WS_Q}
                s_mov_b32 s{A.sTHR}, {hex(f2u(float(opt['thr'])))}
                s_mov_b32 s{A.sMODE}, 1
                s_sub_u32 s64, s{sJ}, {JC}
                s_and_b32 s{A.sNC}, s64, {side.OOB}
                """), 50)
            tv = 26 if t < O('tB') - 1 else 24
            if str(t) in opt['tc'].split(','): tch += side.code_addr(26, 26) + [side.touch(26, 76, 0, nt=False)]
            fit(tch, O('tg'))
            if O('bkv'):
                if t == 0:
                    vb = VQ()
                    smp = lambda y: [kvq.kacc(y, x)[1] + e for x in range(2) for e in range(4)]
                    est = []
                    for y, r in ((1, 20), (2, 21)):
                        v = smp(y)
                        est.append(L(f"v_max3_f32 v{r}, |v{v[0]}|, |v{v[1]}|, |v{v[2]}|\nv_max3_f32 v{r}, |v{v[3]}|, |v{v[4]}|, v{r}\nv_max3_f32 v{r}, |v{v[5]}|, |v{v[6]}|, v{r}"))
                    k = fit(est[0], 16)
                    k = fit(est[1] + L(f"v_min_f32 v20, v20, v21\nv_mul_f32 v20, {hex(f2u(float(opt['bkk'])))}, v20") + [I(f"v_mov_b32 v{20 + e}, v20") for e in (1, 2, 3)] +
                            L("v_accvgpr_write_b32 a241, v20"), max(k, 24))
                    assert k < 38, k
                if t == O('tB') - 1: fit(L("v_accvgpr_read_b32 v27, a241"), 1)
                for y in range(1, 8):
                    if t == O('tB') - (y < O('bsp')):
                        vb.add([I(f"v_sub_f32 v{kvq.kacc(y, x)[1] + e}, v{kvq.kacc(y, x)[1] + e}, v27") for x in range(8) for e in range(4) if kvq.kv_c0(y, x) != "0"], 128 * t + 16 * y + 20)
                vb.run(g, 128 * t)
                for at, i in vb.placed:
                    q = min(q for q in range(128) if any(i is x for x in g.ve[q]))
                    assert 128 * t + q < at + 128 - 22, (t, at, q)
                assert t < 14 or not vb.q
            out += g.flat()
            if t in (0, 1, 11, 14) or opt['fine'] == '1': out += stamp(tv)
        flat = lambda gs: [i for x in gs for i in x]
        base = f"s_lshl_b32 s{A.sK}, s{sH}, 20\ns_mov_b32 s{A.sCNT}, 0\ns_lshl_b32 s{A.sJ[2][1]}, s{sH}, 18\ns_add_u32 s{A.sJ[2][1]}, s{A.sJ[2][1]}, {WS_WO}\ns_add_u32 s{A.sVn}, s{A.sJ[2][1]}, 65536\n"
        (c1, a1), (c2, a2), (c3, a3) = A.sJ
        jumps = L(base + (f"""
            s_add_u32 s64, s{sJ}, 1
            s_min_u32 s64, s64, {JC}
            s_sub_u32 s{A.sIT}, s64, {2 + EXT}
            s_lshl_b32 s{c3}, s64, 1
            s_sub_u32 s{c2}, s{c3}, 2
            s_lshl_b32 s64, s{sJ}, 16
            s_add_u32 s{a2}, s{A.sK}, s64
            s_sub_u32 s{a1}, {34 * 32768}, s64
            s_add_u32 s{a1}, s{a1}, s{A.sK}
            s_lshl_b32 s64, s{sJ}, 1
            s_sub_u32 s64, 32, s64
            s_cmp_ge_u32 s{sJ}, {JC}
            s_cselect_b32 s{c1}, s64, {NEVER}
            """ if vt else f"""
            s_sub_u32 s{A.sIT}, s{sJ}, 1
            s_mov_b32 s{c2}, {NEVER}
            s_mov_b32 s{a2}, 0
            s_add_u32 s{a1}, s{A.sK}, {XS * 32768}
            s_lshl_b32 s64, s{sJ}, 1
            s_add_u32 s65, s64, 4
            s_add_u32 s64, s64, 2
            s_cmp_le_u32 s{sJ}, {15 - JC}
            s_cselect_b32 s{c1}, s65, {NEVER}
            s_cselect_b32 s{c3}, {34 - XS}, s64
            """) + f"s_mov_b32 s{A.sKP}, 0")
        w0 = L("v_mov_b32 v12, 1") + side.lane0_wave0(15)
        w1_ = L(f"""
            s_mov_b32 s{A.sREQ}, {(0x500 if vt else 0x543) if EXT else (0x4003 if vt else 0x43)}
            {f's_cmp_ge_u32 s{sJ}, {JC}' + chr(10) + f's_cselect_b32 s64, {hex(15 << 4 * (JC - 3 - EXT))}, 0' + chr(10) + f's_or_b32 s{A.sREQ}, s{A.sREQ}, s64' if vt and EC else ''}
            {'' if vt else f's_cmp_lt_u32 s{sJ}, 2' + chr(10) + f's_cselect_b32 s{A.sREQ}, {0x504 if EXT else 4}, s{A.sREQ}'}
            s_lshl_b32 s64, s{A.sWAVE}, 14
            s_add_u32 s{A.sPB}, s64, s{A.sPO}
            s_add_u32 s{A.sPB + 1}, s{A.sPB}, 4096
            s_add_u32 s{A.sPB + 2}, s{A.sPB}, 8192
            s_add_u32 s{A.sPB + 3}, s{A.sPB}, 12288
            """)
        w3 = L(f"v_min_u32 v25, 15, v0\nv_lshlrev_b32 v25, {FSH}, v25\nv_{'max' if SW else 'min'}_u32 v13, {(8 if SW else 7) << FSH}, v25")
        w4 = L(f"s_lshl_b32 s{A.sM0}, s{A.sWAVE}, 13") + jumps[:8] + L(F1_LOAD) + jumps[8:]
        w5 = L(f"""
            v_add_u32 v10, s{A.sM0}, v{A.vL16}
            v_add_u32 v11, 0x1000, v10
            v_cmp_eq_u32 vcc, 0, v24
            s_lshl_b32 s64, s{A.sWAVE}, 10
            s_cbranch_vccnz L_f1s{vt}4
            L_f1r{vt}4:
            """) + dma_flat(3, A.sK, 10) + adv_k() + L(f"""
            v_mov_b32 v{A.vFL}, v25
            v_lshrrev_b32 v24, 4, v0
            v_lshlrev_b32 v24, 2, v24
            v_and_b32 v25, 15, v0
            v_sub_u32 v24, v24, v25
            s_add_u32 s64, s64, s{A.sPO}
            s_add_u32 s{A.sPS}, s64, 65536
            s_mov_b32 s{A.sLO}, {hex(f2u(float(opt['lo'])))}
            s_and_b32 s65, s{A.sREQ}, {hex(15 << 4 * (JC - 3 - EXT)) if vt and EC else 0}
            s_cmp_eq_u32 s{A.sWAVE}, 0
            s_cselect_b32 s{A.sRT}, s{A.sREQ}, s65
            s_lshr_b32 s64, s{K.sWAVE}, 1
            s_lshl_b32 s64, s64, 17
            s_and_b32 s65, s{K.sWAVE}, 1
            s_lshl_b32 s65, s65, 12
            s_add_u32 s64, s64, s65
            v_add_u32 v14, s64, v7
            v_mov_b32 v{A.vNEG}, 0xff800000
            """) + [I(f"v_cmp_lt_i32 s[{A.sTRI[e]}:{A.sTRI[e]+1}], {-e}, v24") for e in range(4)]
        head6 = L(f"""
            {F2_LOAD}
            v_mov_b32 v{A.vF0}, v15
            v_add_u32 v{A.vRD1}, 0x10000, v{A.vL16}
            v_mov_b32 v{A.vDM0}, v10
            v_mov_b32 v{A.vDM1}, v11
            s_mov_b64 s[60:61], s[76:77]
            s_mov_b32 s62, s78
            s_mov_b32 s63, 0x20000
            """) + side.code_addr(0, 10)
        kvq.X6LOW = True; asmlib.VMX = False
        body, left = kvq.kv_to_q(pt, O(o + "15"), [int(x, 16) for x in opt[o + "st"]], O(o + "f"), [side.flag_store(sFL, 15, 12)], lambda: fst(2, 26),
                                 {0: w0, 1: w1_, 2: yadr if vt == 0 else [], 3: w3, 4: w4, 5: w5}, head6, dma_flat(1, A.sK) + adv_k(),
                                 [] if vt else [[i] for i in yst], 16)
        asmlib.VMX = True
        assert len(left) == (8 if vt else 0), len(left)
        st = kvq.Storer(A.sT1, "KV4")
        park = [I(f"v_accvgpr_write_b32 a{128 + 4*n + e}, v{int(r[2:r.index(':')]) + e}") for n, (r, off) in enumerate(left) for e in range(4)]
        later = [st.st(R("a", 128 + 4 * n, 4), off) for n, (r, off) in enumerate(left)]
        xch = ([WAITV([("T", 3)], lgkm0=True), I("s_barrier")] + stamp(26) + rd_batch(3, 0) + q_from_lds() +
               L(f"""v_cmp_eq_u32 vcc, 0, v24
               v_mov_b32 v{A.vX + 7}, {3 if vt else 4 + EXT}
               v_or_b32 v{A.vRL + 1}, s{A.sNC}, v{A.vL16}
               s_cbranch_vccnz L_f1s{vt}5
               L_f1r{vt}5:
               s_mov_b32 s{A.sT1}, s{K.sOOFF}
               s_mov_b32 s{A.sT0}, s94
               s_cmp_eq_u32 s{A.sWAVE}, 0
               s_cselect_b32 s{A.sPT}, {(4 + EXT) * vt}, 0""") + [I(f"v_mov_b32 v{A.vNM + r}, {NM0}") for r in range(8)] + [NEED(R("a", 0, 96))])
        g, sm = first_qk(False)
        g.sc[46][0].tag = g.sc[46][0].tag + ["KVST", "KVM"]
        g.put(48 + 2, side.flag_store(sFL, A.vF0, A.vX + 7))
        nq = O('nq')
        qst = [([I(f"s_add_u32 s3, s{A.sQ}, {(n >> 2) * 4096}")] if n % 4 == 0 or n == nq else []) +
               [I(f"buffer_store_dwordx4 a[{4*n}:{4*n+3}], v{A.vRL + 1}, {WSR}, s3 offen offset:{(n & 3) * 1024} sc1", tag="QST")] for n in range(16)] if vt else []
        place_vm(g, [(dma_flat(2, A.sV), 1, 40)] + ([(flat(qst[:nq]), O('w0l'), 62)] if vt and nq else []))
        vq = VQ(); vq.add([I(f"v_mov_b32 v{r}, 0") for r in (A.vLS, A.vLS + 1)] + park)
        vq.run(g, 0, 0, 14)
        sm.run(g, 8, 64, final=False, upto=8)
        vq.run(g, 0)
        vq.force(g, 63, lambda i: i.op == "v_mov_b32")
        out += body + xch + g.flat() + stamp()
        if vt == 1:
            wo = [[I(f"s_add_u32 s3, s{A.sT0}, {n * 32768}"), I(w[1].text, tag="KV4")] for n, w in enumerate(side.wo2_stores())]
            w_1 = win_qk(0, "L_st8", "L_rt8", groups=qst[nq:], dma=(3, A.sK, adv_k()), sm=sm, lo_check=True, dhi=40, vq=vq)
            dump = [i for at, i in vq.q[:max(0, len(vq.q) - 16)]]; vq.q = vq.q[len(dump):]
            if O('v') > 1: sys.stderr.write(f"; start: dumped {len(dump)}\n")
            if EXT:
                n0 = int(opt['l4'][0]); st.tag = "KV3"; st.cur = None
                l4 = [[st.st(R("a", 128 + 4 * n, 4), off) for n, (r, off) in enumerate(left[:n0])]]; st.cur = None
                l4.append([st.st(R("a", 128 + 4 * n, 4), off) for n, (r, off) in enumerate(left[n0:], n0)])
                wc = [int(x) for x in opt['wn']]; wn = [wo[sum(wc[:n]):sum(wc[:n + 1])] for n in range(4)]; assert sum(wc) == 7
                if SENT:
                    mk = [([I(f"s_add_u32 s3, s{A.sOP}, {10240 + (n >> 2) * 14336}")] if n % 4 == 0 or True else []) +
                          [I(f"buffer_store_dwordx4 a[232:235], v{A.vL16}, {WSR}, s3 offen offset:{(n & 3) * 1024} sc1", tag="KV4")] for n in range(8)]
                    mc = [int(x) for x in opt['mk']]; assert sum(mc) == 8
                    for n in range(3): wn[1 + n] = wn[1 + n] + mk[sum(mc[:n]):sum(mc[:n + 1])]
            def early(g):
                vq.run(g, 0); assert not vq.q
                for q in range(g.n):
                    for i in g.ve[q]:
                        if i.op.startswith("v_accvgpr"): assert not any(set(i.reads) & set(g.m[x].writes) for x in range(q + 1)), (q, i.text)
            c.block("kv1", "L_kv1:", out, w_1, dump, fst(3),
                    win_pv(0, cz=True, pre_dma=(0, A.sV), tags=["QST"], vq_first=early,
                           post=L(f"s_xor_b32 s3, s47, 64\nv_mov_b32 v{A.vRL}, 1") + (L(f"v_min_u32 v{A.vRL + 1}, 1, v{A.vL16}\nv_lshlrev_b32 v{A.vRL + 1}, 29, v{A.vRL + 1}\nv_or_b32 v{A.vRL + 1}, s{A.sNC}, v{A.vRL + 1}") if PW else
                                L(f"v_or_b32 v{A.vRL + 1}, s{A.sNC}, v{A.vF0}")) + [side.flag_store(3, A.vRL + 1, A.vRL)]), fst(3),
                    *([win_qk(1, "L_st9", "L_rt9", groups=later, ghi=60, scal=mask_regs(False, (0, 1))), fst(3),
                       win_pv(1, groups=wo, glo=1, ghi=34, dlo=4, scal=mask_regs(False, (3,)), tail=L("s_branch L_loop_mid"))] if not EXT else
                      [win_qk(1, "L_st9", "L_rt9", groups=l4[0], ghi=60), fst(3), win_pv(1, groups=l4[1], ghi=60), fst(3),
                       win_qk(0, "L_st12", "L_rt12", extra=L(FL_LOAD), groups=wn[0], glo=6, scal=mask_regs(False, (0, 1))),
                       win_pv(0, tags=["KV3"], groups=wn[1], ghi=44, chk=L(f"v_cmp_gt_u32 vcc, 3, v{A.vRL + 1}\ns_cbranch_vccnz L_f4s\nL_f4r:"),
                              post=L(f"v_mov_b32 v{A.vX + 7}, 4") + [side.flag_store(sFL, A.vF0, A.vX + 7)]), fst(3),
                       win_qk(1, "L_st13", "L_rt13", groups=wn[2], scal=mask_regs(False, (2, 3))),
                       win_pv(1, groups=wn[3], glo=1, ghi=20 if len(wn[3]) < 4 else 32, dlo=1 if len(wn[3]) < 4 else 4, tail=L("s_branch L_loop_mid"))]))
            b_ = c.blocks["kv1"]
            if not EXT: b_[-1:-1] = mask_regs(False, (2,))
            assert max(n for n, i in enumerate(b_) if i.tag == "KV4") < max(n for n, i in enumerate(b_) if i.kind == "dma")
        else:
            assert not vq.q
            c.block("kv0", "L_kv0:", out, f"s_cmp_eq_u32 s{sJ}, 0\ns_cbranch_scc1 L_j0")
            c.block("k1", win_qk(0, "L_st10", "L_rt10", dma=(3, A.sK, adv_k()), sm=sm, lo_check=True, dhi=40, scal=mask_regs(False)), fst(3),
                    win_pv(0, cz=True, pre_dma=(0, A.sV), tail=L(f"s_cmp_lg_u32 s{A.sIT}, 0\ns_cbranch_scc1 L_loop_top")), "s_branch L_p1")
            c.block("j0", "L_j0:", mask_regs(False), ZZ(), f"v_accvgpr_write_b32 a{aOF}, 0\nv_accvgpr_write_b32 a{aOF + 1}, 0", [i for kb in range(4) for i in mask_blk(0, kb, 0, inplace=True)], mask_regs(True),
                    zero_O_mfma(mix(init_softmax(0), dma_flat(3, A.sK) + adv_k() + L(FP_LOAD), 1, 100), A.vP1),
                    [i for kb in range(4) for i in mask_blk(1, kb, 1)], "s_branch L_p2")

def build_att(c):
    fs = lambda: fst(3)
    c.block("loop_top", ".p2align 6\nL_loop_top:", fs(), win_qk(1, "L_st1", "L_rt1", extra=[side.touch(0, 60, 0, nt=False)] if opt['tl'] == '1' else []), win_pv(1))
    c.block("loop_mid", "L_loop_mid:", fs(), win_qk(0, "L_st0", "L_rt0", head=L(f"s_and_b32 s{A.sREQ}, s{A.sRT}, 15\ns_cbranch_scc1 L_fll\nL_fllr:\ns_lshr_b32 s{A.sRT}, s{A.sRT}, 4")),
            win_pv(0, tail=L(f"s_sub_u32 s{A.sIT}, s{A.sIT}, 1\ns_cmp_lg_u32 s{A.sIT}, 0\ns_cbranch_scc1 L_loop_top"),
                   chk=L(f"""v_cmp_gt_u32 vcc, s{A.sREQ}, v{A.vRL + 1}
                   s_cbranch_vccnz L_fls0
                   L_flr0:
                   s_and_b32 s3, s{A.sPT}, 15
                   s_cbranch_scc1 L_pub3
                   L_pub3r:
                   s_lshr_b32 s{A.sPT}, s{A.sPT}, 4""")))
    c.block("p1", "L_p1:", stamp(), f"s_cmp_eq_u32 s{A.sMODE}, 0\ns_cbranch_scc1 L_final_h",
            f"s_cmp_ge_u32 s{sJ}, {JC}\ns_cbranch_scc1 L_p1c" if EC else "", win_qk(1, "L_st5", "L_rt5", masked=True), fs(),
            win_pv(1, scal=mask_regs(True), valu=[i for kb in range(4) for i in mask_blk(1, kb, 1)], vlo=34, post=L(FP_LOAD)), fs())
    g = Gaps(qkB_mfmas())
    half_reads(g, 1, 2, [("T", 2)])
    half_dma(g, dma_flat(0, A.sV))
    ck = check(0, "L_st6")
    spread_any(g, softmax_half(0, 1) + ck[:2], 0, 28); g.put(31, ck[2])
    c.block("p2", "L_p2:", g.flat(), "L_rt6:", fs(), f"s_cmp_le_u32 s{sJ}, {15 - JC}\ns_cbranch_scc1 L_p3k", f"s_cmp_ge_u32 s{sJ}, {JC}\ns_cbranch_scc1 L_p3c" if not EC else "L_p3o:")
    smB = lambda: SM(groups_B(), add_l(0))
    pchk = lambda n: L(f"v_cmp_ne_u32 vcc, 1, v{A.vRL}\ns_cbranch_vccnz L_fps{n}\nL_fpr{n}:")
    lfin = lambda: add_l(1, (1,)) + zip2(xlane("v_add_f32", A.vLS, A.vX), xlane("v_add_f32", A.vLS + 1, A.vX + 1)) + L(f"v_rcp_f32 v{A.vRL}, v{A.vLS}\nv_rcp_f32 v{A.vRL+1}, v{A.vLS+1}")
    w2a = lambda: L(f"s_add_u32 s{A.sVn}, s{A.sVn}, 32768")
    c.block("p3o", win_pv(0, sm=smB(), nslot=0, end=check(1, "L_st2", only=1)), "L_rt2:", stamp())
    g = Gaps(pvB_mfmas())
    half_reads(g, 0, 3, [("T", 3)])
    half_dma(g, dma_flat(2, A.sVn) + w2a())
    spread_any(g, of_rd(A.vX + 4) + [i for ks in range(8) for i in cvt_ctx(ks, 0)], 1, 32)
    c.block("pBo", "L_pBo:", g.flat(), stamp(), "s_branch L_op1")
    pl = [I(f"buffer_load_dwordx4 v[{A.vX+4}:{A.vX+7}], v{A.vL16}, {WSR}, s{A.sPS} offen sc1")] + [
        I(f"buffer_load_dwordx4 a[{A.aX + 4*j}:{A.aX + 4*j + 3}], v{A.vL16}, {WSR}, s{A.sPB + j // 4} offen offset:{(j & 3) * 1024} sc1") for j in range(16)]
    cm = lambda qb, ks, hf: mfma(R("v", Oreg(2 * ks + hf, qb), 4), R("a", 246 - 2 * hf, 4), R("a", A.aX + (qb * 8 + ks) * 4, 4), R("v", Oreg(2 * ks + hf, qb), 4))
    if EC:
        n1 = O('n1')
        g = Gaps(qkB_mfmas(Freg5) + [cm(qb, ks, hf) for qb in range(2) for ks in range(8) for hf in range(2)])
        half_reads(g, 1, 2, [("T", 2)], bar=47, Freg4=Freg5)
        g.put_s(31, NEED(R("a", A.aX, 32))); g.put_s(45, NEED(R("a", A.aX + 32, 32)))
        place_vm(g, [(dma_flat(0, A.sV), 5, 44)])
        put_check(g, check(0, "L_st14"), SM(half_groups(0, 1)).run(g, 0, 56))
        c.block("p1c", "L_p1c:", win_qk(1, "L_st3", "L_rt3", masked=True, groups=[[i] for i in pl[:n1]], glo=1, ghi=60,
                                           scal_at=[(16 * kb + (4 if kb < 3 else 0), mask_regs(True, (kb,))) for kb in range(4)]), fs(),
                win_pv(1, valu=[i for kb in range(4) for i in mask_blk(1, kb, 1)], vlo=4, groups=[[i] for i in pl[n1:]], glo=2, ghi=46), fs(), f"""
                v_cmp_neq_f32 vcc, v{A.vNM}, v{A.vX+4}
                v_cmp_neq_f32 s[64:65], v{A.vNM+4}, v{A.vX+5}
                s_nop 0
                s_or_b64 vcc, vcc, s[64:65]
                s_cbranch_vccnz L_comb
                """)
        c.block("p2c", f"v_add_f32 v{A.vLS}, v{A.vX+6}, v{A.vLS}\nv_add_f32 v{A.vLS+1}, v{A.vX+7}, v{A.vLS+1}", g.flat(), "L_rt14:", fs(), "s_branch L_p3o")
    if not EC: c.block("p3c", "L_p3c:", pchk(0), win_pv(0, sm=smB(), nslot=0, end=check(1, "L_st3", only=1), groups=[[i] for i in pl], glo=0, ghi=60, nodma=True), "L_rt3:", stamp(),
            NEED(R("v", A.vX + 4, 4)), f"""
            v_cmp_neq_f32 vcc, v{A.vNM}, v{A.vX+4}
            v_cmp_neq_f32 s[64:65], v{A.vNM+4}, v{A.vX+5}
            v_add_f32 v{A.vX+6}, v{A.vX+6}, v{A.vLS}
            v_add_f32 v{A.vX+7}, v{A.vX+7}, v{A.vLS+1}
            s_or_b64 vcc, vcc, s[64:65]
            s_cbranch_vccnz L_comb
            """)
    F3 = lambda b, f: 192 + 4 * f if b == 2 else Freg(b, f)
    g = Gaps([pvB_mfma(db, kp, F3) for db in range(16) for kp in ((0, 1) if db % 2 == 0 else (1, 0))] + [cm(qb, ks, hf) for qb in range(2) for ks in range(8) for hf in range(2)])
    for b_, pos in ((1, [0, 0, 2, 2, 4, 4, 5, 6]), (2, [6, 8, 8, 10, 10, 12, 12, 14]), (3, [16, 16, 17, 18, 18, 19, 20, 20])):
        for f, k in enumerate(pos): g.put(k, rd_frag(0, b_, f, F3(b_, f)))
    g.put_s(7, NEED(R("a", Freg(1, 0), 16))); g.put_s(11, NEED(R("a", Freg(1, 4), 16))); g.put_s(15, NEED(R("a", 192, 16))); g.put_s(19, NEED(R("a", 208, 16)))
    g.put_s(23, NEED(R("a", Freg(1, 0), 32))); g.put_s(31, NEED(R("a", A.aX, 32))); g.put_s(47, NEED(R("a", A.aX + 32, 16))); g.put_s(55, NEED(R("a", A.aX + 48, 16)))
    g.put_s(34, WAITV([("T", 3)], lgkm0=True)); g.put_s(35, I("s_barrier"))
    for f, r in enumerate(rd_batch(3, 0)): g.put(44 + RPAT[0][f], r)
    g.put_s(62, NEED(R("a", Freg(0, 0), 32)))
    place_vm(g, [(dma_flat(1, A.sK) + dma_flat(2, A.sVn) + w2a(), 1, 61)])
    vq = VQ(); vq.add(L(f"v_mov_b32 v{A.vLS}, v{A.vX+6}\nv_mov_b32 v{A.vLS+1}, v{A.vX+7}") + of_rd(A.vX + 4))
    cv = [cvt_ctx(ks, 0) for ks in range(8)]
    for ks in range(8): vq.add(cv[ks][:-4], 4)
    nsub = len(vq.q)
    vq.run(g, 0, 0, 30); vq.force_level(g, lambda i: True, 0, 30)
    for ks in range(8): vq.add(cv[ks][-4:], 32 + 2 * ks + 5)
    vq.run(g, 0, 30); vq.force(g, 63, lambda i: True)
    if not EC: c.block("pBc", g.flat(), stamp())
    comb = [I("L_comb:")] + [I(pl[0].text), I("s_waitcnt vmcnt(0)")] + (dma_flat(1, A.sK) if not EC else []) + L(f"""
    s_nop 7
    v_sub_f32 v{A.vX}, v{A.vNM}, v{A.vX+4}
    v_sub_f32 v{A.vX+1}, v{A.vNM+4}, v{A.vX+5}
    v_max_f32 v{A.vX}, 0, v{A.vX}
    v_max_f32 v{A.vX+1}, 0, v{A.vX+1}
    """) + sub_S(1, (1,)) + (sub_S(0) if EC else []) + rescale_state() + (softmax_half(0, 0) if EC else sm_flat(groups_B())) + L(f"""
    v_sub_f32 v{A.vX}, v{A.vNM}, v{A.vX+4}
    v_sub_f32 v{A.vX+1}, v{A.vNM+4}, v{A.vX+5}
    v_cvt_i32_f32 v{A.vX}, v{A.vX}
    v_cvt_i32_f32 v{A.vX+1}, v{A.vX+1}
    v_ldexp_f32 v{A.vX}, 1.0, v{A.vX}
    v_ldexp_f32 v{A.vX+1}, 1.0, v{A.vX+1}
    v_and_b32 v{A.vX}, 0xffff0000, v{A.vX}
    v_and_b32 v{A.vX+1}, 0xffff0000, v{A.vX+1}
    v_fmac_f32 v{A.vLS}, v{A.vX}, v{A.vX+6}
    v_fmac_f32 v{A.vLS+1}, v{A.vX+1}, v{A.vX+7}
    v_lshrrev_b32 v{A.vX+2}, 16, v{A.vX}
    v_lshrrev_b32 v{A.vX+3}, 16, v{A.vX+1}
    """)
    n = 0
    for qb in range(2):
        for ks in range(8):
            for w in range(4):
                t = A.vT + (n % 8); n += 1
                o = Oreg(2 * ks + (w >> 1), qb) + 2 * (w & 1)
                comb += L(f"""v_accvgpr_read_b32 v{t}, a{A.aX + (qb * 8 + ks) * 4 + w}
                v_dot2c_f32_bf16 v{o}, v{t}, v{A.vX + 2 + qb}
                v_dot2c_f32_bf16 v{o+1}, v{t}, v{A.vX + qb}""")
    comb += L(f"s_nop 3\ns_branch {'L_p2' if EC else 'L_pBo'}")
    S5 = O('s5')
    slots = [3, 1, 2, 0, 4, 3, 1] if S5 else [3, 1, 2, 0, 3, 1, 2]
    def op_out(j, split=False):
        b = j & 1
        jo = j
        ins = L(f"s_add_u32 s{A.sT0}, s{A.sOP}, {2 * jo * 1024}\ns_add_u32 s{A.sT1}, s{A.sOP}, {14336 + 2 * jo * 1024}")
        for pp in range(2):
            if split and pp == 1: ins.append(64)
            for qb in range(2):
                a, d = Sreg(b, 2 * pp, qb), Sreg(b, 2 * pp + 1, qb)
                if BOP and j == 0 and pp == 0:
                    nm = A.vNM + 4 * qb
                    ins += L(f"""v_max3_f32 v{nm}, |v{a}|, |v{a+1}|, |v{a+2}|
                    v_max3_f32 v{nm}, |v{a+3}|, |v{d}|, v{nm}
                    v_max3_f32 v{nm}, |v{d+1}|, |v{d+2}|, v{nm}
                    v_mul_f32 v{nm}, {opt['bopk']}, v{nm}""") + [I(f"v_mov_b32 v{nm + e}, v{nm}") for e in (1, 2, 3)] + L(f"v_mul_f32 v{A.vSUM + 2 + qb}, -v{nm}, v{A.vRL + qb}")
                if BOP and j >= 2: ins += [I(f"v_fma_f32 v{r + e}, v{r + e}, v{A.vRL + qb}, v{A.vSUM + 2 + qb}") for r in (a, d) for e in range(4)]
                else: ins += [I(f"v_mul_f32 v{r + e}, v{A.vRL + qb}, v{r + e}") for r in (a, d) for e in range(4)]
                ins += L(f"""v_cvt_pk_bf16_f32 v{a}, v{a}, v{a+1}
                v_cvt_pk_bf16_f32 v{a+1}, v{a+2}, v{a+3}
                v_cvt_pk_bf16_f32 v{a+2}, v{d}, v{d+1}
                v_cvt_pk_bf16_f32 v{a+3}, v{d+2}, v{d+3}""")
                ins.append(I(f"buffer_store_dwordx4 v[{a}:{a+3}], v{A.vL16}, {WSR}, s{A.sT0 + qb} offen offset:{pp * 1024} sc1", tag=("OP", j)))
        return ins
    fop0 = lambda: L(f"""
    s_sub_u32 s64, 15, s{sJ}
    s_min_u32 s64, s64, s{sJ}
    s_mul_i32 s{sFL}, s64, {2 * FSTR}
    s_and_b32 s64, s{sJ}, 8
    s_lshl_b32 s64, s64, 1
    s_add_u32 s64, s64, s{sH}
    s_lshl_b32 s64, s64, 2
    s_add_u32 s{sFL}, s{sFL}, s64
    s_add_u32 s{sFL}, s{sFL}, {WS_FOP}
    s_lshl_b32 s64, s{A.sWAVE}, 8
    s_add_u32 s{sFL}, s{sFL}, s64
    s_add_u32 s3, s{sFL}, {FSTR}
    v_lshrrev_b32 v{A.vX + 7}, 5, v{A.vL16}
    v_min_u32 v{A.vX + 7}, 1, v{A.vX + 7}
    v_lshlrev_b32 v{A.vX + 6}, 3, v{A.vL16}
    v_lshl_or_b32 v{A.vX + 6}, v{A.vX + 7}, 29, v{A.vX + 6}
    v_mov_b32 v{A.vX + 5}, 1
    """)
    R3 = opt['r3'] == '1'
    fop = (lambda: red3.fop(A.vL16, 40, sFL, 3)) if R3 else fop0
    vFV = 40 if R3 else A.vX + 5; EH = R3 and opt['eh'] == '1'
    def dbgst():
        if opt['dbgst'] == '0': return []
        o = f"""
        s_load_dwordx2 s[72:73], s[0:1], {A_DBG}
        v_accvgpr_read_b32 v11, a{aST+1}
        v_accvgpr_read_b32 v15, a{aST}
        v_lshrrev_b32 v12, 4, v{A.vL16}
        v_mov_b32 v13, {side.OOB}
        s_waitcnt lgkmcnt(0)
        {srd(68, 72, 256)}
        s_lshl_b32 s64, s2, 2
        s_add_u32 s64, s64, s{A.sWAVE}
        s_cmp_eq_u32 s64, {O('dbgst')}
        s_cselect_b32 s64, 0, {side.OOB}
        s_and_b32 s65, s{sJ}, 8
        s_or_b32 s65, s65, s{A.sWAVE}
        s_cmp_eq_u32 s65, 0
        s_cselect_b32 s65, 0, {side.OOB}
        """
        for n, ln in enumerate([int(x) for x in opt['dbgl'].split(',')]):
            o += f"s_add_u32 s66, s64, {4 * (2 + n)}\nv_cmp_eq_u32 vcc, {ln}, v12\nv_mov_b32 v14, s66\ns_nop 1\nv_cndmask_b32 v13, v13, v14, vcc\n"
        o += f"""buffer_store_dword v11, v13, s[68:71], 0 offen
        buffer_store_dword v15, v13, s[68:71], 0 offen offset:28
        s_sub_u32 s66, s{sSTK}, 1
        v_mov_b32 v13, {side.OOB}
        v_cmp_eq_u32 vcc, s66, v12
        v_mov_b32 v14, 4
        s_nop 1
        v_cndmask_b32 v13, v13, v14, vcc
        v_or_b32 v13, s65, v13
        buffer_atomic_umax v11, v13, s[68:71], 0 offen
        v_not_b32 v11, v11
        v_min_u32 v13, 1, v12
        v_lshlrev_b32 v13, 29, v13
        v_or_b32 v13, s65, v13
        s_nop 1
        buffer_atomic_umax v11, v13, s[68:71], 0 offen
        s_waitcnt vmcnt(0)
        """
        return L(o)
    fin = lambda: (L("s_mov_b64 exec, -1\ns_waitcnt vmcnt(0)") + stamp(30) + L(f"""
        s_lshl_b32 s{A.sT0}, s2, 2
        s_add_u32 s{A.sT0}, s{A.sT0}, s{A.sWAVE}
        s_lshl_b32 s{A.sT0}, s{A.sT0}, 9
        s_add_u32 s{A.sT0}, s{A.sT0}, {WS_STAMP}
        v_lshrrev_b32 v10, 1, v{A.vL16}
        buffer_store_dwordx2 a[{aST}:{aST+1}], v10, {WSR}, s{A.sT0} offen
        """) + dbgst()) if STAMP else []
    def last_reads(g, slot):
        for b in range(1, 4):
            for f, r in enumerate(rd_batch(slot, b)): g.put((b - 1) * 16 + RPAT[0][f], r)
            g.put_s(b * 16 - 1, NEED(R("a", Freg(b, 0), 32)))
    ctx_v = lambda qb, ks: R("v", Oreg(2 * ks, qb), 4)
    ctx_a = lambda qb, ks: R("a", A.aX + (qb * 8 + ks) * 4, 4)
    pub = lambda: [WAITV([("OP", 6)])] + L(f"buffer_store_dword v{vFV}, v{vFV + 1}, {WSR}, s3 offen sc1") + stamp(30)
    def outproj(tag, ctx, first=(), tags0=(), post0=()):
        ow = []
        for j in range(7):
            k = 2
            if j == 0 and tag:
                g = Gaps(qk_mfmas(0, "zero", breg=ctx, order=[(kb, qb) for qb in range(2) for kb in range(4)], fr=Freg4))
                half_reads(g, slots[0], slots[1], [("T", slots[1])], bar=47)
                def cv0():
                    vq = VQ()
                    for ks in range(8): vq.add(cvt_ctx(ks, 1), 3 if ks > 5 else 0)
                    k = vq.run(g, 0, 0, 31); vq.force_level(g, lambda i: True, 0, 31); return min(k, 31)
                if not S5: k = cv0()
            else:
                g = Gaps(qk_mfmas(j & 1, "nm" if BOP and j >= 2 else "zero", breg=ctx))
                if j < 6: weave_reads(g, slots[j], slots[j + 1], [("T", slots[j + 1])] + (list(tags0) if j == 0 else []))
                else: last_reads(g, slots[j])
            if j == 0:
                kk = 48 if not PW else O('pfg') - 4
                for i in post0: kk = g.fit(kk, i) if i.slots()[0] else g.fit_s(kk + (i.op == "WAITV"), i) + 1
            if S5 and j == 0: place_vm(g, [(dma_flat(0, A.sVn) + w2a() + dma_flat(4, A.sVn) + w2a(), 1 if not tag else 5, 61)])
            elif S5:
                if j < 3: weave_dma(g, slots[j + 4], A.sVn, w2a(), 1, O('odh5'))
                if j == 2: g.fit(30, I(f"v_add_u32 v43, 0x20000, v{A.vL16}"))
            elif j + 3 < 7: weave_dma(g, slots[j + 3], A.sVn, w2a(), k if j == 0 else 1, 60 if j == 0 else O('odh'))
            if j == 0 and tag and S5: k = cv0()
            if j == 0: assert not seq_fit(g, list(first) + (fop() if not (tag or S5) else []), k)[1]
            if j == 3 and (tag or S5): assert not seq_fit(g, fop(), 1)[1]
            if j == 2: assert not seq_fit(g, side.sel_a(A.vL16), 1)[1]
            if j in (4, 5): assert not seq_fit(g, {4: side.sel_b(tag), 5: side.sel_c()}[j], 40 if j == 5 else 2)[1]
            if j == O('efw'):
                assert not seq_fit(g, [WAITV([("OP", (side.NE - 1) // 2)]), I(f"buffer_store_dword v{vFV}, v{vFV + 1}, {WSR}, s{sFL} offen sc1")], O('efg'))[1]
            if j == 6 and tag and SENT:
                assert EH and not seq_fit(g, L(f"s_sub_u32 s64, s{sJ}, 8\ns_and_b32 s64, s64, {side.OOB}\ns_or_b32 s64, s64, s3") +
                                          [WAITV([("OP", 4)]), I(f"buffer_store_dword v{vFV}, v{vFV + 1}, {WSR}, s64 offen sc1")], O('sg'))[1]
            if j > 0: k = fill_valu(g, op_out(j - 1), 3, 58 if j < 6 else 36)
            if j == 6: k, last = seq_fit(g, op_out(6, True), max(k, 38))
            if tag and j in (0, 3, 5):
                n = {0: 1, 3: 2, 5: 3}[j]
                g.put_s(62, I(f"s_cmp_eq_u32 s{sJ}, {O('jy')}")); g.put_s(63, I(f"s_cbranch_scc1 L_y{n}"))
            ow += g.flat() + (L(f"L_y{n}r:") if tag and j in (0, 3, 5) else []) + fst(4, 30)
        return ow + stamp(30) + [i for i in last if not isinstance(i, int)] + ([] if EH else pub())
    c.block("op1", "L_op1:", outproj(1, ctx_v, lfin()), f"s_cmp_lt_u32 s{sJ}, 8\ns_cbranch_scc1 L_red")
    if R3:
        mv, farv = red3.main_v(A.vL16, lambda: stamp(30), O('lagv'), SENT)
        pubv = lambda: stamp(30) if SENT else pub() if EH else []
        c.block("end1", f"s_cmp_eq_u32 s{A.sWAVE}, 3\ns_cbranch_scc1 L_vend3", red3.head(True), pubv(), mv, "L_vend:", fin(), "s_endpgm")
        c.block("end3", "L_vend3:", pubv(), "s_branch L_vend", "s_waitcnt vmcnt(0)", farv)
    else: c.block("end1", fin(), "s_endpgm")
    qld = [[I(f"buffer_load_dwordx4 a[{4*n}:{4*n+3}], v{A.vL16}, {WSR}, s{72 + n // 4} offen offset:{(n & 3) * 1024} sc1")] for n in range(16)]
    c.block("p3k", "L_p3k:", f"""
            s_mov_b32 s72, s{A.sQ}
            s_add_u32 s73, s72, 4096
            s_add_u32 s74, s72, 8192
            s_add_u32 s75, s72, 12288
            """, pchk(1), win_pv(0, sm=smB(), nslot=0, end=check(1, "L_st7", only=1), groups=qld, glo=0, ghi=60, nodma=True), "L_rt7:", stamp())
    g = Gaps(pvB_mfmas())
    half_reads(g, 0, 3, [("T", 3)])
    half_dma(g, dma_flat(1, A.sK) + adv_k())
    scal_fit(g, L(f"s_sub_u32 s{A.sIT}, {15 - JC}, s{sJ}\ns_mov_b32 s{A.sMODE}, 0"))
    vq = VQ()
    vq.add(lfin() + L(f"""v_accvgpr_write_b32 a192, v{A.vRL}
        v_accvgpr_write_b32 a193, v{A.vRL + 1}
        v_mov_b32 v{A.vLS}, 0
        v_mov_b32 v{A.vLS + 1}, 0""") + [I(f"v_mov_b32 v{A.vNM + r}, {NM0}") for r in range(8)])
    vq.add(of_rd(A.vX + 4))
    for ks in range(8):
        for qb in range(2):
            vq.add(cvt_ctx(ks, qb), 4 * ks + 7 if qb else 0)
            vq.add([I(f"v_accvgpr_write_b32 a{A.aX + (qb * 8 + ks) * 4 + e}, v{Oreg(2 * ks, qb) + e}") for e in range(4)], 32)
    vq.run(g, 0)
    vq.force(g, 31, lambda i: f"v{A.vNM + 7}" in i.writes)
    w_b = g.flat()
    g, sm = first_qk(False)
    g.pre = [NEED(R("a", 0, 64))]
    g.put(40, I(f"v_cmp_gt_u32 vcc, 3, v{A.vRL + 1}")); g.put_s(43, I("s_cbranch_vccnz L_f2s")); g.put_s(43, I("L_f2r:"))
    place_vm(g, [(dma_flat(2, A.sV), 3, 44), ([I(FL_LOAD)], 0, 1)])
    sm.run(g, 8, 64, final=False, upto=8)
    vq.run(g, 32)
    vq.q = [(0, i) for at, i in vq.q]
    w_1 = win_qk(0, "L_st11", "L_rt11", dma=(3, A.sK, adv_k()), sm=sm, lo_check=True, vq=vq, dhi=40)
    npk = O('npk') if not BPV['on'] else 8; dump = [i for at, i in vq.q[:max(0, len(vq.q) - npk)]]; vq.q = vq.q[len(dump):]
    if O('v') > 1: sys.stderr.write(f"; switch: dumped {len(dump)}\n")
    def early(g):
        vq.run(g, 0); assert not vq.q
        for q in range(g.n):
            for i in g.ve[q]:
                if i.op.startswith(("v_cvt", "v_accvgpr")): assert not any(set(i.reads) & set(g.m[x].writes) for x in range(q + 1)), (q, i.text)
    c.block("sw", w_b, stamp(), g.flat(), fs(), w_1, dump, fs(),
            win_pv(0, cz=True, vq_first=early, pre_dma=(0, A.sV), tail=L(f"s_cmp_lg_u32 s{A.sIT}, 0\ns_cbranch_scc1 L_loop_top")), stamp())
    pst = lambda ks, qb: [I(f"buffer_store_dwordx4 v[{Oreg(2*ks, qb)}:{Oreg(2*ks, qb)+3}], v{A.vL16}, {WSR}, s{A.sPB + (qb*8+ks) // 4} offen offset:{(ks & 3) * 1024} sc1", tag="PST")]
    g = Gaps(pv_mfmas(1))
    weave_reads(g, 0, 3, [("T", 3)])
    k = 0; rest = []
    for ks in range(8):
        for qb in range(2):
            ins = cvt_ctx(ks, qb, A.vX + 6) + pst(ks, qb)
            if rest: rest += ins; continue
            k, rest = seq_fit(g, ins, max(k, 8 * ks + 5 + 2 * qb + 4))
    c.block("final_h", "L_final_h:", WAITV([("T", 0)], lgkm0=True), "s_barrier", rd_batch(0, 0), mix(softmax_half(1, 1), dma_flat(2, A.sVn) + w2a(), 1), check(1, "L_st4"), "L_rt4:", add_l(1), f"""
    v_mov_b32 v{A.vX+2}, v{A.vNM}
    v_mov_b32 v{A.vX+3}, v{A.vNM+4}
    v_mov_b32 v{A.vX+4}, v{A.vLS}
    v_mov_b32 v{A.vX+5}, v{A.vLS+1}
    buffer_store_dwordx4 v[{A.vX+2}:{A.vX+5}], v{A.vL16}, {WSR}, s{A.sPS} offen sc1
    """, of_rd(A.vX + 6), NEED(R("a", Freg(0, 0), 32)), stamp(), g.flat(), rest, stamp())
    c.block("op0", outproj(0, ctx_a, L(f"v_accvgpr_read_b32 v{A.vRL}, a192\nv_accvgpr_read_b32 v{A.vRL + 1}, a193"), ["PST"] if not PW else [],
                           L(f"s_xor_b32 s47, s47, 64\nv_mov_b32 v{A.vT}, 1") + ([side.flag_store(47, A.vF0, A.vT)] if not PW else
                           L(f"v_min_u32 v{A.vT + 1}, 1, v{A.vL16}\nv_lshlrev_b32 v{A.vT + 1}, 29, v{A.vT + 1}") + [WAITV(["PST"]), side.flag_store(47, A.vT + 1, A.vT)])))
    rm, far = (red3.main_k if R3 else lambda *a: side.red_main(*a, True, False))(A.vL16, lambda: stamp(30), O('lag'))
    c.block("red", "L_red:", red3.head(False) if R3 else side.red_a(A.vL16), pub() if EH else [], rm, fin(), "s_endpgm")
    c.block("redfar", far)
    c.block("rpoll", red3.poll2(O('p2')) if O('p2') else side.red_poll())
    c.block("comb", comb)
    stubs = ""
    for n, b in ((0, "0"), (1, "1"), (2, "B"), (3, "1" if EC else "B"), (4, "1n"), (5, "1"), (6, "0B"), (7, "B"), (8, "f"), (9, "1"), (10, "f"), (11, "f")) + (((14, "0B"),) if EC else ()) + (((12, "0"), (13, "1")) if EXT else ()):
        stubs += f"L_st{n}:\ns_call_b64 s[{A.sRET}:{A.sRET+1}], L_slow{b}\ns_branch L_rt{n}\n"
    c.block("stubs", stubs)
    for nm, b, oth in (("0", 0, (0, 1)), ("1", 1, (0, 1)), ("1n", 1, ()), ("0B", 0, (1,)), ("B", 1, ()), ("f", 0, (0, 1))): c.block("slow" + nm, slow_sub(nm, b, oth))
    c.block("moe", red3.moe() if R3 else side.red_moe(), side.y_reduce2(lambda n: Oreg(2 * (n >> 1) + 1, n & 1)))
    c.block("spins", f"""
    L_fll:
    s_cmp_lg_u32 s{A.sREQ}, 15
    s_cbranch_scc1 L_fll1
    v_mov_b32 v{A.vFL}, 0
    s_mov_b32 s46, s47
    s_mov_b32 s{A.sREQ}, 1
    L_fll1:
    {FL_LOAD}
    s_branch L_fllr
    L_pub3:
    v_mov_b32 v{A.vX + 7}, s3
    """, side.flag_store(sFL, A.vF0, A.vX + 7), "s_branch L_pub3r",
            *[side.spin_stub(f"L_fhs{n}", f"L_fhr{n}", side.FH0_LOAD, 24, 91, "v_cmp_gt_u32 vcc, 1, v{vt}") for n in range(2)],
            *[side.spin_stub(f"L_fps{n}", f"L_fpr{n}", FP_LOAD, A.vRL, A.sSPIN) for n in range(EC, 2)],
            side.spin_stub("L_f4s", "L_f4r", FL_LOAD, A.vRL + 1, A.sSPIN, "v_cmp_gt_u32 vcc, 3, v{vt}") if EXT else [],
            side.spin_stub("L_f2s", "L_f2r", FL_LOAD, A.vRL + 1, A.sSPIN, "v_cmp_gt_u32 vcc, 3, v{vt}"),
            side.spin_stub("L_fls0", "L_flr0", FL_LOAD, A.vRL + 1, A.sSPIN, f"v_cmp_gt_u32 vcc, s{A.sREQ}, v{{vt}}"))

def early_stubs(c):
    c.block("spins0", side.z_stub(0), side.z_stub(1), hw.key_stub(),
            *[side.spin_stub(f"L_f1s{n}{w}", f"L_f1r{n}{w}", F1_LOAD if w == 4 else F2_LOAD, 24, 91, "v_cmp_eq_u32 vcc, 0, v{vt}") for n in range(2) for w in (4, 5)])

def paths(c):
    lp = ["loop_top", "loop_mid"]
    for end in ((["p1", "p2", "p3c", "pBc"], ["p1", "p2", "p3o", "pBo"], ["p1", "p2", "p3c", "comb", "pBo"]) if not EC else
                (["p1c", "p2c", "p3o", "pBo"], ["p1", "p2", "p3o", "pBo"], ["p1c", "comb", "p2", "p3o", "pBo"])):
        c.path("entry", "kv1", "loop_mid", *lp, *lp, *end, "op1", "end1")
    if opt['r3'] == '1': c.path("entry", "kv1", "loop_mid", *lp, *lp, "p1", "p2", "p3o", "pBo", "op1", "end3")
    c.path("entry", "kv0", "k1", *lp, *lp, "p1", "p2", "p3o", "pBo", "op1", "red")
    for own in (["j0"], ["k1", "p1"], ["k1", *lp, "p1"], ["k1", *lp, *lp, "p1"]):
        for nh in (0, 1, 2):
            c.path("entry", "kv0", *own, "p2", "p3k", "sw", *(lp * nh), "final_h", "op0", "red")
    for b in ("redfar", "rpoll", "stubs", "slow0", "slow1", "slow1n", "slow0B", "slowB", "slowf", "moe", "spins", "spins0"): c.path(b)

if __name__ == "__main__":
    c = CFG(verbose=O("v"))
    build_front(c); early_stubs(c); build_att(c); paths(c)
    body = c.finalize()
    kn = NAME + "_kernel"
    print("; @launch grid=(256,1,1) block=(256,1,1) lds=163840")
    print('.amdgcn_target "amdgcn-amd-amdhsa--gfx950"\n.text')
    print(".macro M d, a, b, c\nv_mfma_f32_16x16x32_bf16 \\d, \\a, \\b, \\c\n.endm")
    print(kernel_header(kn))
    print(body.replace("  v_mfma_f32_16x16x32_bf16 ", "M ").replace("\n  ", "\n "))
    print("L_code_end:")
    print('.section .rodata,"a"\n.p2align 6')
    print(kernel_desc(kn, sgpr=102))
```

```python
from common import *

class AttRegs:
    S_WS = 8
    sWAVE = 20
    sK, sCNT, sKP, sV = 21, 22, 23, 24
    sJ = ((25, 26), (43, 4), (6, 7))
    sIT, sM0, sT0, sT1 = 27, 28, 29, 30
    sTHR, sQ, sOP, sPO, sNC = 31, 32, 33, 34, 35
    sRET, sVn, sREQ, sMODE = 36, 38, 39, 40
    sRT, sPT, sEV = 54, 5, 34
    sPB, sPS, sSPIN, sLO = 12, 52, 53, 55
    sTRI = (16, 18, 48, 50)
    sMK = 64
    vRD0, vRD1, vDM0, vDM1, vL16 = 7, 2, 3, 4, 7
    vF0, vRL, vNEG, vFL = 1, 5, 8, 9
    vX, vT, vSUM, vLS, vNM = 10, 18, 26, 30, 32
    vP0, vP1 = 40, 56
    vS, vO = 64, 128
    aQ, aF, aX = 0, 64, 128
A = AttRegs
BPV = dict(on=0, db=4, k=20.0)
aOF = 242
KSLOT = {0: 3, 1: 1}
VSLOT = {0: 2, 1: 0}
WSR = f"s[{A.S_WS}:{A.S_WS+3}]"
DKV = WS_V - WS_K

def Sreg(b, kb, qb): return A.vS + 32 * b + (kb * 2 + qb) * 4
def Oreg(db, qb): return A.vO + (db * 2 + qb) * 4
def Preg(b, kp, qb): return (A.vP0 + 8 * b + 4 * qb) if kp == 0 else (A.vP1 + 4 * qb)
def PregB(kp): return Preg(1, 0, 1 - kp)
def Qreg(qb, ks): return A.aQ + (qb * 8 + ks) * 4
def Freg(batch, f): return A.aF + (batch & 1) * 32 + f * 4
def Freg4(batch, f): return A.aF + batch * 32 + f * 4

def Freg5(batch, f): return (A.aF, A.aF + 32, A.aQ, 192)[batch] + f * 4
def rd_frag(slot, batch, f, dst):
    va = 43 if slot == 4 else A.vRD1 if slot >= 2 else A.vRD0
    return I(f"ds_read_b128 a[{dst}:{dst+3}], v{va} offset:{(slot & 1) * 32768 + batch * 8192 + f * 1024}")
def rd_batch(slot, batch, reg=Freg): return [rd_frag(slot, batch, f, reg(batch, f)) for f in range(8)]

DFL = "sc1"
def dma_tile(slot, soff, v0=A.vDM0):
    out = []
    for j in range(8):
        pre = I(f"s_add_u32 m0, s{A.sM0}, {slot * 32768 + (j >> 2) * 4096}") if j % 4 == 0 else None
        out.append((pre, I(f"buffer_load_dwordx4 v{v0 + (j >> 2)}, {WSR}, s{soff} offen offset:{(j & 3) * 1024} {DFL} lds", tag=("T", slot))))
    return out
def dma_flat(slot, soff, v0=A.vDM0): return [i for p in dma_tile(slot, soff, v0) for i in p if i]
def adv_k():
    return L(f"""
    s_add_u32 s{A.sV}, s{A.sKP}, {NUMA.V if NUMA.on else DKV}
    s_mov_b32 s{A.sKP}, s{A.sK}
    s_add_u32 s{A.sK}, s{A.sK}, {E(32768)}
    s_add_u32 s{A.sCNT}, s{A.sCNT}, 1
    """ + "".join(f"s_cmp_eq_u32 s{A.sCNT}, s{c}\ns_cselect_b32 s{A.sK}, s{a}, s{A.sK}\n" for c, a in A.sJ))

RPAT = {0: [0, 1, 3, 4, 6, 7, 9, 10], 1: [0, 0, 3, 3, 6, 6, 9, 9]}
def weave_dma(g, slot, soff, post, lo=1, hi=45):
    t = dma_tile(slot, soff)
    link([i for p in t for i in p if i] + list(post))
    step = (hi - lo) / 8.0
    kk = lo - 1
    for j, (pre, d) in enumerate(t):
        k = max(kk + 1, int(lo + j * step))
        if pre: k = g.fit_s(max(k - 1, kk + 1 if j else 0), pre) + 1
        kk = g.fit(k, d)
    k = kk + 1
    lock = g.__dict__.setdefault("lock", set())
    for ins in post:
        k0 = k; k = g.fit_s(k, ins) + 1
        if reads_scc(ins): lock.update(range(k0 - 1, k - 1))
    return k

def weave_both(g, dma, lo, hi, groups, glo, ghi):
    import q2
    slot, soff, post = dma
    last = q2.place_vm(g, ([(dma_flat(slot, soff), lo, hi)] if slot is not None else []) + [([i for x in groups for i in x], glo, ghi)], relax=bool(g.__dict__.get('lock')) and len(groups) > 7)
    if post: scal_fit(g, post, last[0])
def weave_reads(g, slot, nslot, wait_tags, pat=0):
    pat = RPAT[pat]
    for b in range(1, 4):
        for f, r in enumerate(rd_batch(slot, b)): g.put((b - 1) * 16 + pat[f], r)
        if b < 3: g.put_s(b * 16 - 1, NEED(R("a", Freg(b, 0), 32)))
    g.put_s(46, WAITV(wait_tags, lgkm0=True))
    g.put_s(47, I("s_barrier"))
    if nslot is not None:
        for f, r in enumerate(rd_batch(nslot, 0)): g.put(48 + pat[f], r)
        g.put_s(62, NEED(R("a", Freg(0, 0), 32)))
def half_reads(g, slot, nslot, wait_tags, bar=22, Freg4=Freg4):
    pos = [0, 0, 1, 2, 2, 3, 4, 4, 6, 6, 7, 8, 8, 10, 10, 11, 12, 12, 14, 14, 15, 16, 16, 17]
    for k, r in zip(pos, [r for b in range(1, 4) for r in rd_batch(slot, b, Freg4)]): g.put(k, r)
    g.put_s(7, NEED(R("a", Freg4(1, 0), 32))); g.put_s(15, NEED(R("a", Freg4(2, 0), 32)))
    g.put_s(bar - 1, WAITV(wait_tags, lgkm0=True)); g.put_s(bar, I("s_barrier"))
    for k, r in zip([1, 1, 2, 3, 3, 4, 5, 5] if g.n == 32 else [1 + x for x in RPAT[0]], rd_batch(nslot, 0)): g.put(bar + k, r)
    g.put_s(g.n - 1 if g.n == 32 else 62, NEED(R("a", Freg(0, 0), 32)))
    if bar > 24: g.put_s(23, NEED(R("a", Freg4(3, 0), 32)))
def half_dma(g, ins):
    link(ins); pos = [5, 9, 13, 18, 20, 28, 29, 30]; k = 0
    for i in ins:
        if i.slots()[0]: k = pos.pop(0); g.put(k, i)
        elif pos:
            q = pos[0] - 1
            while not g.room_s(q): q -= 1
            assert q > k or k == 0; g.put_s(q, i)
        else: g.put(g.n - 1, i)
    g.lock = {g.n - 1}
def spread_any(g, ins, lo, hi):
    link(ins)
    ks = [k for k in range(lo, hi) if not g.has_vm(k) and not any(x.op == "s_barrier" for x in g.sc[k])]
    tot = sum(max(i.slots()) for i in ins) + sum(g.used(k) for k in ks)
    acc = 0; n = 0; ins = list(ins)
    for x, k in enumerate(ks):
        acc += g.used(k)
        while ins and (acc + max(ins[0].slots()) <= (x + 1) * tot / len(ks) + 0.5 or x == len(ks) - 1):
            i = ins.pop(0); acc += max(i.slots()); g.put(k, i)

def cin(cmode, b, kb, qb):
    d = R("v", Sreg(b, kb, qb), 4); nm = R("v", A.vNM + 4 * qb, 4)
    return {"nm": nm, "zero": "0", "mask": nm if qb else d, "self": d}[cmode]
SNK = 0
def qk_mfmas(b, cmode, breg=None, order=None, fr=None, snk=True):
    ms = []
    flip = lambda kb: SNK > 1 and kb & 1 and cmode != "mask" and snk
    for kb, qb in order or [(kb, qb ^ flip(kb)) for kb in range(4) for qb in range(2)]:
        d = R("v", Sreg(b, kb, qb), 4)
        for n, ks in enumerate(range(8) if (qb == flip(kb) or order) else range(7, -1, -1)):
            bq = breg(qb, ks) if breg else R("a", Qreg(qb, ks), 4)
            ms.append(mfma(d, R("a", (fr or Freg)(kb, ks), 4), bq, d if n else cin(cmode, b, kb, qb)))
    return ms
def qkB_mfmas(Freg4=Freg4):
    return [mfma(R("v", Sreg(1, kb, 1), 4), R("a", Freg4(kb, ks), 4), R("a", Qreg(1, ks), 4), R("v", Sreg(1, kb, 1), 4)) for kb in range(4) for ks in (range(8) if kb % 2 == 0 else range(7, -1, -1))]
def pv_mfmas(b, cz=False):
    ms = []
    for db in range(16):
        for x, qb in enumerate((1, 0) if SNK and db & 1 else (0, 1)):
            d = R("v", Oreg(db, qb), 4)
            for n, kp in enumerate((0, 1) if x == 0 else (1, 0)):
                ms.append(mfma(d, R("a", Freg(db >> 2, (db & 3) * 2 + kp), 4), R("v", Preg(b, kp, qb), 4), d if not (cz and n == 0) else R("v", A.vX + 4 * qb, 4) if BPV['on'] and db >= BPV['db'] else "0"))
    return ms
def pvB_mfma(db, kp, reg): return mfma(R("v", Oreg(db, 1), 4), R("a", reg(db >> 2, (db & 3) * 2 + kp), 4), R("v", PregB(kp), 4), R("v", Oreg(db, 1), 4))
def pvB_mfmas(): return [pvB_mfma(db, kp, Freg4) for db in range(16) for kp in ((0, 1) if db % 2 == 0 else (1, 0))]

def blocks_of(kp): return [(2 * kp + kk, qb) for qb in range(2) for kk in range(2)]
BLK_B = [(kb, 1) for kb in range(4)]
def sm_groups(b, blocks, init, pd=None, n0=0):
    groups = []; init = set(init); n = n0
    for kb, qb in blocks:
        for pr in range(2):
            s = Sreg(b, kb, qb) + 2 * pr
            t0, t1 = A.vT + (n % 4) * 2, A.vT + (n % 4) * 2 + 1
            sm = A.vSUM + 2 * b + qb
            ex = [I(f"v_exp_f32 v{t0}, v{s}"), I(f"v_exp_f32 v{t1}, v{s+1}")]
            if qb in init: post = [I(f"v_add_f32 v{sm}, v{t0}, v{t1}")]; init.discard(qb)
            else: post = [I(f"v_add_f32 v{sm}, v{t0}, v{sm}"), I(f"v_add_f32 v{sm}, v{t1}, v{sm}")]
            p = (pd(kb >> 1) if pd else Preg(b, kb >> 1, qb)) + 2 * (kb & 1) + pr
            post.insert(1, I(f"v_cvt_pk_bf16_f32 v{p}, v{t0}, v{t1}"))
            groups.append((ex, post)); n += 1
    return groups
def half_groups(b, kp): return sm_groups(b, blocks_of(kp), (0, 1) if kp == 0 else ())
def groups_B(): return sm_groups(1, BLK_B, (1,), PregB)
def sm_flat(groups):
    out = []; prev = []
    for ex, post in groups:
        out.append(ex[0]); out += prev[:2]; out.append(ex[1]); out += prev[2:]
        prev = post
    return out + prev
def softmax_half(b, kp): return sm_flat(half_groups(b, kp))
class SM:
    def __init__(self, grp, pre=(), ready=None):
        link(list(pre) + [i for e, p in grp for i in e + p])
        self.ex = [(n, i) for n, (e, p) in enumerate(grp) for i in e]
        self.po = [(-1, i) for i in pre] + [(n, i) for n, (e, p) in enumerate(grp) for i in p]
        self.done = {}; self.ready = ready or {}; self.ng = len(grp)
    def run(self, g, lo, hi, final=True, upto=None):
        ex, po, done = self.ex, self.po, self.done
        for n in done: done[n] = (done[n][0], -1)
        last = lo; ne = 0; tot = max(len(ex), 1)
        for k in range(lo, g.n):
            empty_left = sum(1 for q in range(k, hi) if g.used(q) == 0)
            if ex and g.used(k) == 0 and (upto is None or ex[0][0] < upto):
                n = ex[0][0]
                free = not any(m <= n - 4 for m, _ in po)
                due = not final or k >= lo + ne * (hi - lo) // tot or empty_left <= len(ex)
                if free and due and k >= self.ready.get(n, 0):
                    g.put(k, ex.pop(0)[1]); done[n] = (done.get(n, (0, 0))[0] + 1, k); ne += 1; last = k
                    continue
            keep = final and ex and g.used(k) == 0 and empty_left <= len(ex) and not any(m <= ex[0][0] - 4 for m, _ in po)
            while po and g.used(k) < 2 and not keep:
                n = po[0][0]
                if n >= 0 and not (done.get(n, (0, 0))[0] == 2 and done[n][1] < k): break
                g.put(k, po.pop(0)[1]); last = k
        self.ready = {}
        if final and (ex or po):
            last = g.n - 1
            for i in self.rest(): g.put(last, i)
        return last
    def rest(self):
        out = []; prev = [i for m, i in self.po if m < (self.ex[0][0] if self.ex else self.ng)]
        for n in range(self.ex[0][0] if self.ex else self.ng, self.ng):
            e = [i for m, i in self.ex if m == n]
            if n % 4 == 0 or True: out += prev[:max(0, len(prev) - 3)]; prev = prev[max(0, len(prev) - 3):]
            out += e[:1] + prev[:2] + e[1:] + prev[2:]
            prev = [i for m, i in self.po if m == n]
        self.ex.clear(); self.po.clear()
        return out + prev

def check(b, label, lo=False, only=None):
    s0, s1 = A.vSUM + 2 * b, A.vSUM + 2 * b + 1
    if only is not None: return L(f"v_cmp_lt_f32 vcc, s{A.sTHR}, v{s0 + only}\ns_cbranch_vccnz {label}")
    if not lo: return L(f"v_max_f32 v{A.vX}, v{s0}, v{s1}\nv_cmp_lt_f32 vcc, s{A.sTHR}, v{A.vX}\ns_cbranch_vccnz {label}")
    return L(f"""v_max_f32 v{A.vX}, v{s0}, v{s1}
    v_min_f32 v{A.vX + 1}, v{s0}, v{s1}
    v_cmp_lt_f32 s[36:37], s{A.sTHR}, v{A.vX}
    v_cmp_gt_f32 vcc, s{A.sLO}, v{A.vX + 1}
    s_or_b64 vcc, vcc, s[36:37]
    s_cbranch_vccnz {label}""")
def add_l(b, qbs=(0, 1)): return [I(f"v_add_f32 v{A.vLS + q}, v{A.vSUM + 2*b + q}, v{A.vLS + q}") for q in qbs]

def xlane(op, r, t):
    return L(f"""
    v_mov_b32 v{t}, v{r}
    v_permlane16_swap_b32 v{t}, v{r}
    {op} v{r}, v{t}, v{r}
    v_mov_b32 v{t}, v{r}
    v_permlane32_swap_b32 v{t}, v{r}
    {op} v{r}, v{t}, v{r}
    """)
def zip2(a, c): return [i for p in zip(a, c) for i in p]
def rowmax(b, qbs=(0, 1)):
    ins = []
    for qb in qbs:
        vals = [Sreg(b, kb, qb) + e for kb in range(4) for e in range(4)]
        m = A.vX + qb
        ins.append(I(f"v_max3_f32 v{m}, v{vals[0]}, v{vals[1]}, v{vals[2]}"))
        for x in range(3, 15, 2): ins.append(I(f"v_max3_f32 v{m}, v{vals[x]}, v{vals[x+1]}, v{m}"))
        ins.append(I(f"v_max_f32 v{m}, v{vals[15]}, v{m}"))
    xs = [xlane("v_max_f32", A.vX + q, A.vX + 2 + q) for q in qbs]
    ins += zip2(*xs) if len(xs) == 2 else xs[0]
    return ins + [I(f"v_ceil_f32 v{A.vX + q}, v{A.vX + q}") for q in qbs]
def sub_S(b, qbs=(0, 1)): return [I(f"v_sub_f32 v{Sreg(b, kb, qb) + e}, v{Sreg(b, kb, qb) + e}, v{A.vX + qb}") for kb in range(4) for qb in qbs for e in range(4)]
def sub_NM(qbs=(0, 1)): return [I(f"v_sub_f32 v{A.vNM + 4*q + e}, v{A.vNM + 4*q + e}, v{A.vX + q}") for q in qbs for e in range(4)]
def init_softmax(b): return rowmax(b) + sub_NM() + sub_S(b) + softmax_half(b, 0)
def rescale_state(qbs=(0, 1)):
    ins = sub_NM(qbs) + [I(f"v_exp_f32 v{A.vX + 2 + q}, -v{A.vX + q}") for q in qbs]
    ins += [I(f"v_mul_f32 v{A.vLS + q}, v{A.vX + 2 + q}, v{A.vLS + q}") for q in qbs]
    if BPV['on']:
        for q in qbs: ins += L(f"v_accvgpr_read_b32 v{A.vT}, a{aOF + q}\nv_mul_f32 v{A.vT}, v{A.vX + 2 + q}, v{A.vT}\nv_accvgpr_write_b32 a{aOF + q}, v{A.vT}")
    return ins + [I(f"v_mul_f32 v{Oreg(db, q) + e}, v{A.vX + 2 + q}, v{Oreg(db, q) + e}") for db in range(16) for q in qbs for e in range(4)]
def slow_sub(name, b, other):
    qbs = (1,) if name == "B" else (0, 1)
    ins = [I(f"L_slow{name}:"), I("s_nop 7"), I("s_nop 3")] + rowmax(b, qbs)
    if name != "f": ins += [I(f"v_max_f32 v{A.vX + q}, 0, v{A.vX + q}") for q in qbs]
    ins += sub_S(b, qbs) + sub_S(1 - b, other)
    ins += sub_NM() if name == "f" else rescale_state(qbs)
    ins += sm_flat(groups_B()) if name == "B" else softmax_half(b, 0) + softmax_half(b, 1)
    return ins + [I("s_nop 3"), I(f"s_setpc_b64 s[{A.sRET}:{A.sRET+1}]")]

def fill_valu(g, ins, lo, hi):
    tot = sum(max(i.slots()) for i in link(ins))
    k = lo; acc = 0
    for i in ins:
        tgt = lo + int(acc * (hi - lo) / max(tot, 1))
        k = g.fit(g.vm_slot(max(k, tgt), i, 4), i)
        acc += max(i.slots())
    return k

def mask_regs(second, kbs=range(4)):
    out = ""
    for kb in kbs:
        u = 3 - kb if second else kb
        m = A.sMK + 8 * kb
        oth = {0: "0", 3: "-1"}.get(kb, f"s[{m+6}:{m+7}]")
        if kb in (1, 2): out += f"s_cmp_{'gt' if second else 'lt'}_u32 s{A.sWAVE}, {u}\ns_cselect_b64 {oth}, -1, 0\n"
        out += f"s_cmp_eq_u32 s{A.sWAVE}, {u}\n"
        for e in range(4): out += f"s_cselect_b64 s[{m+2*e}:{m+2*e+1}], s[{A.sTRI[e]}:{A.sTRI[e]+1}], {oth}\n"
    return L(out)
def mask_blk(b, kb, qb, inplace=False):
    return [I(f"v_cndmask_b32 v{Sreg(b, kb, qb) + e}, v{Sreg(b, kb, qb) + e if inplace else A.vNM + 4 * qb}, v{A.vNEG}, s[{A.sMK + 8*kb + 2*e}:{A.sMK + 8*kb + 2*e + 1}]") for e in range(4)]

def put_groups(g, groups, lo, hi):
    k = lo - 1
    link([i for grp in groups for i in grp])
    lock = g.__dict__.setdefault("lock", set())
    for n, grp in enumerate(groups):
        k = max(k, lo + n * (hi - lo) // len(groups) - 1)
        for i in grp:
            if i.slots()[0] == 0:
                q = k + 1
                while q < g.n - 1 and (not g.room_s(q) or (writes_scc(i) and q in lock)): q += 1
                if q < g.n - 1: g.put_s(q, i); k = q
                else: k = g.n - 1; g.put(k, i)
            else: k = g.fit(g.vm_slot(min(k + 1, g.n - 1), i, 5), i)
    return k
def put_check(g, c, k):
    if k <= g.n - len(c) - 2:
        k = max(k + 1, g.n - len(c) - 3)
        for i in c[:-1]:
            k = g.fit(k, i, lim=g.n - 2) + (0 if i is c[0] and len(c) > 3 else 1) if i.slots()[0] else g.fit_s(k + 1, i, lim=g.n - 2)
        g.put_s(g.n - 1, c[-1])
    else:
        for i in c: g.put(g.n - 1, i)
def scal_fit(g, ins, k=1):
    import kvq
    k, left = kvq.seq_fit(g, list(ins), k); assert not left
    return k
def win_qk(b, slowlabel, retlabel, extra=(), masked=False, groups=(), head=(), glo=2, ghi=58, scal=(), dma=None, sm=None, lo_check=False, tags=(), vq=None, post=(), dhi=None, scal_at=()):
    g = Gaps(qk_mfmas(1 - b, "mask" if masked else "nm"))
    wide = len(groups) >= 4
    weave_reads(g, KSLOT[1 - b], VSLOT[b], [("T", VSLOT[b])] + list(tags), int(wide))
    for e in extra: g.fit(0, e)
    hk = -1
    for e in head:
        if e.kind != 'label': hk += 1
        g.put_s(hk, e)
    if masked:
        g.pre = mask_blk(1 - b, 0, 0)
        for kb in range(1, 4):
            k = 16 * kb - 16
            for i in mask_blk(1 - b, kb, 0):
                while g.used(k) != 1 and k < 16 * kb - 5: k += 1
                k = g.fit(k, i)
            assert k <= 16 * kb - 2, (kb, k)
    for k0, ins in scal_at: scal_fit(g, ins, k0)
    if wide: weave_both(g, dma or (VSLOT[1 - b], A.sV, []), hk + 2, dhi or 50, groups, glo, ghi)
    else: weave_dma(g, *(dma or (VSLOT[1 - b], A.sV, [])), lo=hk + 2, hi=dhi or 45)
    k = 49
    for i in post: k = g.fit(k, i)
    if scal: scal_fit(g, scal)
    if groups and not wide: put_groups(g, groups, glo, ghi)
    k = (sm or SM(half_groups(b, 1))).run(g, 0, 56)
    put_check(g, check(b, slowlabel, lo_check), k)
    if vq: vq.run(g, 0, 0, 62)
    return g.flat() + [I(retlabel + ":")]
def win_pv(b, tail=(), chk=None, post=(), groups=(), tags=(), scal=(), ghi=32, glo=2, cz=False, sm=None, nslot=None, nodma=False, pre_dma=None, dlo=1, post_dma=None, sfirst=False, vq=None, vq_first=None, end=(), valu=(), vlo=0):
    g = Gaps(pv_mfmas(b, cz))
    nslot = KSLOT[b] if nslot is None else nslot
    wide = len(groups) >= 4 or pre_dma is not None or post_dma is not None
    weave_reads(g, VSLOT[b], nslot, [("T", nslot)] + list(tags), int(wide))
    if scal and len(scal) < 8: scal_fit(g, scal); scal = ()
    if wide:
        if scal and sfirst: ks0 = scal_fit(g, scal); scal = (); vlo = max(vlo, ks0 + 1)
        k = 49
        for i in post: k = g.fit(k, i)
        post = ()
        if post_dma:
            import q2
            kd = dma_flat(KSLOT[1 - b], A.sK)
            q2.place_vm(g, [(kd + list(post_dma), 1, 62)])
            scal_fit(g, adv_k(), max(q for q in range(g.n) if kd[-1] in g.ve[q]))
        elif pre_dma:
            import q2
            scal_fit(g, adv_k(), q2.place_vm(g, [(dma_flat(*pre_dma) + dma_flat(KSLOT[1 - b], A.sK), 1, 48)])[0])
        else: weave_both(g, (None, 0, []) if nodma else (KSLOT[1 - b], A.sK, adv_k()), dlo, 44 if dlo == 1 else 45, groups, glo, ghi); groups = ()
    else: assert weave_dma(g, KSLOT[1 - b], A.sK, adv_k(), hi=36) <= 53
    if chk:
        g.put(50, chk[0]); g.put_s(53, chk[1]); g.put_s(53, chk[2])
        ck = 53
        for i in chk[3:]:
            if i.kind != 'label': ck += 1
            g.put_s(ck, i)
        assert ck < 60
    k = 49
    for i in post: k = g.fit(k, i)
    if groups: put_groups(g, groups, glo, ghi)
    for q in range(g.n):
        for i in g.ve[q]:
            if i.kind == "vst": assert not any(set(i.reads) & set(g.m[x].writes) for x in range(q + 1)), (q, i.text)
    ks = scal_fit(g, scal) if scal else 0
    if cz and BPV['on']:
        est = []
        for qb in range(2):
            o, r = Oreg(0, qb), A.vX + 4 * qb
            est += L(f"v_max3_f32 v{r}, |v{o}|, |v{o+1}|, |v{o+2}|\nv_max_f32 v{r}, |v{o+3}|, v{r}\nv_mul_f32 v{r}, {hex(f2u(BPV['k']))}, v{r}") + [I(f"v_mov_b32 v{r + e}, v{r}") for e in (1, 2, 3)]
        spread_any(g, est[:6], 5, 4 * BPV['db'] - 5); spread_any(g, est[6:], 4 * BPV['db'] - 5, 4 * BPV['db'])
        for qb in range(2): g.fit(4 * BPV['db'] + 2, I(f"v_accvgpr_write_b32 a{aOF + qb}, v{A.vX + 4 * qb}"))
    if vq_first: vq_first(g)
    if valu: fill_valu(g, list(valu), max(vlo, ks + 1), 62)
    k = (sm or SM(half_groups(1 - b, 0), add_l(b))).run(g, 0, 59 if not end else 56)
    if end: put_check(g, end, k)
    if vq: vq.run(g, 0, 0, 62)
    for n, ins in enumerate(tail): g.put_s(64 - len(tail) + n - (1 if n < len(tail) - 1 else 0), ins)
    return g.flat()

def zero_O_mfma(ins, z):
    out = []; step = max(len(ins) // 9, 1); n = 0
    for k, i in enumerate(ins):
        out.append(i)
        if k % step == step - 1 and n < 8:
            out.append(I(f"v_mfma_f32_32x32x16_bf16 v[{A.vO + 16*n}:{A.vO + 16*n + 15}], v[{z}:{z+3}], v[{z}:{z+3}], 0")); n += 1
    assert n == 8
    return out
def of_rd(v): return [I(f"v_accvgpr_read_b32 v{v + q}, a{aOF + q}") for q in range(2)] if BPV['on'] else []
def cvt_ctx(ks, qb, vo=A.vX + 4):
    a, c = Oreg(2 * ks, qb), Oreg(2 * ks + 1, qb)
    return [I(f"v_sub_f32 v{r + e}, v{r + e}, v{vo + qb}") for r in (a, c) for e in range(4) if BPV['on'] and 2 * ks >= BPV['db']] + L(f"""v_cvt_pk_bf16_f32 v{a}, v{a}, v{a+1}
    v_cvt_pk_bf16_f32 v{a+1}, v{a+2}, v{a+3}
    v_cvt_pk_bf16_f32 v{a+2}, v{c}, v{c+1}
    v_cvt_pk_bf16_f32 v{a+3}, v{c+2}, v{c+3}""")

def mix(valu, mem, lo=0, hi=None):
    hi = len(valu) if hi is None else hi
    link(valu); link(mem)
    groups = []; cur = []
    for i in mem:
        cur.append(i)
        if i.slots()[0]: groups.append(cur); cur = []
    tail = cur
    out = []; n = 0
    for k, i in enumerate(valu):
        while n < len(groups) and k >= lo + n * (hi - lo) // len(groups):
            g_ = groups[n]; n += 1
            if len(g_) > 1 and out and out[-1].kind in ("valu", "trans"):
                last = out.pop(); out += g_[:-1] + [last, g_[-1]]
            else: out += g_
            if n == len(groups): out += tail
        out.append(i)
    assert n == len(groups)
    return out

def q_from_lds():
    pre = L(f"""
    s_lshl_b32 s64, s{A.sWAVE}, 13
    s_sub_u32 s65, {131072 + 3 * 8192}, s64
    v_add_u32 v{A.vX}, s64, v{A.vL16}
    v_add_u32 v{A.vX + 1}, s65, v{A.vL16}
    """)
    return pre + [I(f"ds_read_b128 a[{Qreg(qb, ks)}:{Qreg(qb, ks) + 3}], v{A.vX + qb} offset:{ks * 1024}") for qb in range(2) for ks in range(8)]
```

```python
from common import *

class KR:
    S_WS, S_DBG, S_W, S_C, S_WQ, S_X = 8, 12, 16, 48, 52, 56
    sWAVE = 20
    sWOFF, sCOFF, sM0W, sM0C, sT, sOOFF, sQOFF, sWQOFF, sXOFF, sLOOP, sSC = 21, 22, 23, 24, 3, 93, 4, 28, 29, 30, 5
    vWR, vCR, vST, vWD, vCD, vXD, vWR2, vT = 1, 5, 7, 8, 12, 16, 20, 24
K = KR
WSLOT = [0, 16384, 32768, 49152, 131072, 147456]

def kacc(y, x):
    return ("a", 4 * x) if y == 0 else ("v", 32 + 4 * ((y - 1) * 8 + x))
def rr(t): return R(t[0], t[1], 4)
def wfrag(buf, x, ks): return 32 + buf * 64 + (x * 2 + ks) * 4
def cfrag(buf, ks): return 160 + buf * 8 + ks * 4

NTW = 'nt'
NTC = 99
CFL = ''
def unit(m0base, ldsoff, vreg, srdreg, soff, adv, tag, fl=''):
    return ([I(f"s_add_u32 m0, s{m0base}, {ldsoff}")] +
            [I(f"buffer_load_dwordx4 v{vreg+j}, s[{srdreg}:{srdreg+3}], s{soff} offen offset:{1024*j} {CFL} {NTW if srdreg == K.S_W else fl} lds", tag=tag) for j in range(4)] +
            [I(f"s_add_u32 s{soff}, s{soff}, {adv}") if adv >= 0 else I(f"s_sub_u32 s{soff}, s{soff}, {-adv}")])
HOT = '00'
def unit_w(u): return unit(K.sM0W, WSLOT[u & 3], K.vWD, K.S_W, K.sWOFF, 128 if u % 2 == 0 else (64 * 8192 - 128 if HOT[0] == '0' else -128), ("W", u & 3))
def unit_c(u): return unit(K.sM0C, (u & 3) * 16384, K.vCD, K.S_C, K.sCOFF, 1024 * 2048 if u % 2 == 0 else -(1024 * 2048 - (128 if HOT[1] == '0' else 0)), ("C", u & 3), 'nt' if (u >= NTC if NTC > 0 else u < -NTC) else '')
WQ_SCHED = {27: [0], 28: [1, 4], 29: [2, 5], 30: [3], 31: [6]}
def unit_wq(v):
    order = [x for u in sorted(WQ_SCHED) for x in WQ_SCHED[u]] + list(range(7, 15))
    off = lambda x: (x >> 1) * 64 * 8192 + (x & 1) * 128
    return unit(K.sM0W, WSLOT[v % 6], K.vWD, K.S_WQ, K.sWQOFF, off(order[order.index(v) + 1]) - off(v), ("W", v % 6))
X6LOW = True
def unit_x(t): return unit(K.sM0C, (t & 3) * 16384, K.vXD, K.S_X, K.sXOFF, 128, ("C", t & 3)) if (t < 6 or not X6LOW) else unit(K.sM0W, 32768, K.vXD, K.S_X, K.sXOFF, 128, ("C", 2))

def rd_w(buf, slot, x, ks, j):
    r = wfrag(buf, x, ks) + 2 * j
    va, base = (K.vWR, WSLOT[slot]) if slot < 4 else (K.vWR2, WSLOT[slot] - 131072)
    return I(f"ds_read_b64_tr_b16 a[{r}:{r+1}], v{va + (x & 3)} offset:{base + (32 * ks + 4 * j) * 256}")
def rd_w_unit(buf, slot, hx):
    return [rd_w(buf, slot, x, ks, j) for x in range(4 * hx, 4 * hx + 4) for ks in range(2) for j in range(2)]
def rd_c(buf, slot, y4, ks):
    r = cfrag(buf, ks)
    return I(f"ds_read_b128 a[{r}:{r+3}], v{K.vCR + ks} offset:{slot * 16384 + y4 * 2048}")

def weave_units(g, units, lo, hi):
    n = sum(len(u) - 2 for u in units)
    if not n: return
    step = (hi - lo) / float(n)
    x = 0; kk = lo - 1
    link([i for u in units for i in u])
    for un in units:
        k = max(int(lo + x * step), kk + 1)
        k = g.fit_s(max(k - 1, kk + 1 if x else 0), un[0]) + 1
        for j in range(len(un) - 2):
            kk = g.fit(max(k, int(lo + x * step)), un[1 + j]); k = kk; x += 1
        kk = g.fit_s(kk + 1, un[-1])

BIAS = dict(kv=None, q=None, rows=range(1, 8))
sKB, sQB = 101, 40
RSNK = 0
def row_mfmas(accf, y, wbuf, cbuf, vtype, first, c0="0", rs=False):
    ms = []
    for xi, x in enumerate(range(7, -1, -1) if RSNK and y & 1 and rs else range(8)):
        for n, ks in enumerate((0, 1) if xi % 2 == 0 else (1, 0)):
            w = R("a", wfrag(wbuf, x, ks), 4); c = R("a", cfrag(cbuf, ks), 4)
            d = rr(accf(y, x))
            cin = (c0(y, x) if callable(c0) else c0) if (first and n == 0) else d
            ms.append(mfma(d, c, w, cin) if vtype else mfma(d, w, c, cin))
    return ms

def kv_c0(y, x): return BIAS['kv'] if BIAS['kv'] and (y >= 4 or (y >= 1 and x >= 4)) else "0"
def spread2(g, ins, lo, hi):
    if not PAIR: return g.spread(ins, lo, hi)
    n = len(ins) // 2; k = lo
    for x in range(n):
        k = max(k, lo + x * (hi - lo) // n)
        while g.used(k): k += 1
        g.put(k, ins[2 * x]); g.put(k, ins[2 * x + 1])
PAIR = True
FAST0 = True
def kv_tile(t, vtype, dma, first=False, lo1=51, hi1=108, hi0=44):
    ms = []
    for y in range(8): ms += row_mfmas(kacc, y, t & 1, y & 1, vtype, first, rs=0 < t < 15)
    g = Gaps(ms)
    for h in (1, 2):
        u = 2 * t + h
        k0 = (4 * h - 1) * 16 - 1
        g.put_s(k0 - 1, WAITV([("C", u & 3), ("W", (u + 2) & 3)], lgkm0=True))
        g.put_s(k0, I("s_barrier"))
    for y in range(8):
        ny = y + 1
        u = 2 * t + (ny >> 2)
        for ks in range(2): g.put(y * 16 + (0 if PAIR else ks), rd_c(ny & 1, u & 3, ny & 3, ks))
        g.put_s(y * 16 + 13, NEED(R("a", cfrag(ny & 1, 0), 8)))
    if first and FAST0:
        for x in range(1, 8, 2): g.put_s(2 * x - 1, NEED(R("a", wfrag(0, x, 0), 16 if x < 7 else 8)))
        g.put_s(14, WAITV([("W", 2)], lgkm0=True)); g.put_s(15, I("s_barrier"))
        spread2(g, rd_w_unit(1, 2, 0), 17, 42)
        spread2(g, rd_w_unit(1, 3, 1), 50, 106)
        a_, b_, c_ = [unit_w(3)], [unit_c(2), unit_w(4)], dma[0] + dma[1]
        link([i for u_ in a_ + b_ + c_ for i in u_])
        weave_units(g, a_, 1, 14); weave_units(g, b_, 17, 46); weave_units(g, c_, 49, 110 if len(c_) > 3 else 90)
        return g
    spread2(g, rd_w_unit((t + 1) & 1, (2 * t + 2) & 3, 0), 1, 42)
    spread2(g, rd_w_unit((t + 1) & 1, (2 * t + 3) & 3, 1), 50, 106)
    short = 2 * t < max(CU)
    weave_units(g, dma[0], 1 if short else 3, 36 if short and len(dma[0]) < 3 else hi0)
    weave_units(g, dma[1], 49 if short else lo1, 90 if short and len(dma[1]) < 3 else hi1)
    return g
CU = (0, 0)
def kv_dma(t):
    out = []
    for u in (2 * t, 2 * t + 1):
        l = []
        if 0 < u <= CU[0]: l.append(unit_c(u + 2))
        if 0 < u <= CU[1]: l.append(unit_w(u + 4))
        if u >= CU[0]: l.append(unit_c(u + 3) if u + 3 < 32 else unit_x(u + 3 - 32))
        if u >= CU[1]:
            if u + 5 < 32: l.append(unit_w(u + 5))
            else: l += [unit_wq(v) for v in WQ_SCHED[u]]
        out.append(l)
    return out

def pack(ta, tb, tmp, yy=None):
    ins = []
    ra, rb = ta[1], tb[1]
    if ta[0] == "a":
        ins += [I(f"v_accvgpr_read_b32 v{tmp+e}, a{ta[1]+e}") for e in range(4)]; ra = tmp
    if tb[0] == "a":
        ins += [I(f"v_accvgpr_read_b32 v{tmp+4+e}, a{tb[1]+e}") for e in range(4)]; rb = tmp + 4
    ins += L(f"""v_cvt_pk_bf16_f32 v{ra}, v{ra}, v{ra+1}
    v_cvt_pk_bf16_f32 v{ra+1}, v{ra+2}, v{ra+3}
    v_cvt_pk_bf16_f32 v{ra+2}, v{rb}, v{rb+1}
    v_cvt_pk_bf16_f32 v{ra+3}, v{rb+2}, v{rb+3}""")
    return ins, ra
NOST = False
WIS = 0
STF = 'sc1'
QSF = 'sc1'
class Storer:
    def __init__(self, sbase, tag, va=None): self.sbase, self.cur, self.tag, self.va = sbase, None, tag, va or K.vST
    def st(self, reg, off):
        ins = []
        if NOST and self.tag == 'KVST': return ins
        off = E(off) + (off & 8192 if NUMA.on and not NUMA.kv else 0)
        if self.cur != off >> 12:
            self.cur = off >> 12
            ins.append(I(f"s_add_u32 s{K.sT}, s{self.sbase}, {(off & ~0xfff) + (0x20000000 if WIS and off >= WIS * 262144 else 0)}")); self.base = ins[-1]
        ins.append(I(f"buffer_store_dwordx4 {reg}, v{self.va}, s[{K.S_WS}:{K.S_WS+3}], s{K.sT} offen offset:{off & 0xfff} {QSF if self.tag == 'QST' else STF}", tag=self.tag))
        link([self.base, ins[-1]])
        return ins
def kv_pairs(vtype):
    if not vtype:
        return [((y, 2 * xp), (y, 2 * xp + 1), (y >> 1) * 262144 + (y & 1) * 8192 + xp * 1024) for y in range(8) for xp in range(4)]
    return [((2 * yp, x), (2 * yp + 1, x), yp * 262144 + x * 2048) for yp in range(4) for x in range(8)]
def qacc_map(vtype):
    if not vtype:
        free = [kacc(1, x) for x in range(8)] + [kacc(y, x) for y in range(2, 8) for x in (1, 3, 5, 7)]
    else:
        free = [kacc(y, x) for y in (1, 3, 5, 7) for x in range(8)]
    return lambda y, x: free[y * 8 + x]

VMR = 6
def seq_fit(g, ins, k, pace=0):
    fresh = False
    link(ins)
    lock = g.__dict__.setdefault("lock", set())
    n = -1
    while n + 1 < len(ins):
        n += 1
        i = ins[n]
        if isinstance(i, int):
            if k + i >= g.n: return g.n, ins[n + 1:]
            k += i; fresh = True
            continue
        need = max(i.slots())
        if i.kind == "label":
            (g.ve[k] if (g.ve[k] and g.ve[k][-1] is ins[n - 1]) else g.sc[k]).append(i)
            continue
        m = 0
        while n + m + 1 < len(ins) and not isinstance(ins[n + m + 1], int) and ins[n + m + 1].extra.get("scc") is i: m += 1
        if m:
            j = k if fresh else k + 1
            while True:
                slots = []; q = j
                while q < g.n and len(slots) < m + 1 and not any(writes_scc(x) for x in g.sc[q] + g.ve[q]) and q not in lock:
                    if g.room_s(q): slots.append(q)
                    q += 1
                if len(slots) == m + 1: break
                if q >= g.n: return g.n, ins[n:]
                j = q + 1
            for x, q in enumerate(slots): g.put_s(q, ins[n + x])
            lock.update(range(slots[0], slots[-1]))
            k = slots[-1]; fresh = False; n += m
            continue
        w = writes_scc(i)
        if i.slots()[0] == 0:
            j = k if fresh else k + 1
            if j < g.n and g.room_s(j) and not (w and j in lock):
                g.put_s(j, i); k = j; fresh = False
                continue
        j = g.vm_slot(k, i, VMR) if VMR else k
        while j < g.n and (not g.room(j, i) or (w and j in lock) or (i.slots()[0] == 0 and g.has_vm(j))): j += 1
        if j >= g.n: return g.n, ins[n:]
        g.put(j, i); k = j; fresh = False
        if pace and i.slots()[0]:
            k = min(j + pace, g.n - 1); fresh = k > j
    return k, []

def q_tile(tau, qacc, last=6):
    ms = []
    for y in range(4): ms += row_mfmas(qacc, y, tau & 1, y & 1, 0, tau == 0, BIAS['q'] or "0")
    g = Gaps(ms)
    if tau < last:
        v0 = 2 * tau + 2
        g.put_s(30, WAITV([("W", (v0 + 1) % 6), ("C", (tau + 1) & 3)], lgkm0=True)); g.put_s(31, I("s_barrier"))
        if tau + 1 < last:
            g.put_s(62, WAITV([("W", (v0 + 2) % 6)], lgkm0=True)); g.put_s(63, I("s_barrier"))
        else:
            g.put_s(62, WAITV([], lgkm0=True)); g.put_s(63, I("s_barrier"))
    for y in range(4):
        if y == 3 and tau == last: continue
        ny = y + 1
        for ks in range(2): g.put(y * 16 + (0 if PAIR else ks), rd_c(ny & 1, (tau + (ny >> 2)) & 3, ny & 3, ks))
        g.put_s(y * 16 + 13, NEED(R("a", cfrag(ny & 1, 0), 8)))
    if tau < last:
        spread2(g, rd_w_unit((tau + 1) & 1, (2 * tau + 2) % 6, 0), 1, 26)
        spread2(g, rd_w_unit((tau + 1) & 1, (2 * tau + 3) % 6, 1), 33, 58)
    u0 = [unit_wq(2 * tau + 7)] if 2 * tau + 7 < 14 else []
    u1 = [unit_wq(2 * tau + 8)] if 2 * tau + 8 < 14 else []
    if tau + 3 < last: u0.append(unit_x(tau + 3))
    if tau == 4: u0.append(unit_x(6))
    if tau == 5 and X6LOW:
        for ks in range(2): g.fit(40, I(f"v_subrev_u32 v{K.vCR + ks}, 0x10000, v{K.vCR + ks}"))
    if len(u0) == 2 and u1: weave_units(g, u0 + u1, 1, 60)
    else: weave_units(g, u0, 1, 28 if tau != 4 else 17); weave_units(g, u1, 34, 58)
    return g

def kv_to_q(vtype, n15, nst, flag_at, flag, stamp, weave, head6, dma6, extra=(), extra_at=8, mid6=()):
    g = kv_tile(15, vtype, kv_dma(15))
    st = Storer(K.sOOFF, "KVST")
    def store(n, reg, off):
        st.tag = "KV1" if n < 8 else ("KVM" if n < 24 and not vtype else "KVST")
        return st.st(reg, off)
    pend = []
    k = 0; carry = []
    prs = kv_pairs(vtype)
    done_at = lambda ta, tb: max(ta[0] * 16 + ta[1] * 2 + 1, tb[0] * 16 + tb[1] * 2 + 1) + 4
    lo = 8 if not vtype else 22
    for n, (ta, tb, off) in enumerate(prs[:n15]):
        ins, reg = pack(kacc(*ta), kacc(*tb), K.vT)
        k, left = seq_fit(g, ins + store(n, R("v", reg, 4), off), max(k, done_at(ta, tb), lo + (n * (118 - lo) // n15 if n15 >= 8 else n * 6))); assert not left
    for grp in (0, 1):
        if grp: k = 0
        for n, (ta, tb, off) in enumerate(prs):
            if n < n15 or (n >= 8) != grp: continue
            ins, reg = pack(kacc(*ta), kacc(*tb), K.vT)
            if n < 8:
                park = 4 * n if vtype else (8 * n if n < 4 else 8 * (n - 4) + 4)
                ins += [I(f"v_accvgpr_write_b32 a{park + e}, v{reg + e}") for e in range(4)]
                pend.append((n, R("a", park, 4), off))
            else:
                pend.append((n, R("v", reg, 4), off))
            if carry: carry += ins; continue
            k, carry = seq_fit(g, ins, max(k, done_at(ta, tb)))
        assert grp or not carry
    pend = pend[:extra_at - n15] + [(None, e, None) for e in extra] + pend[extra_at - n15:]
    def reset(e):
        st.cur = None; return e
    nxt = lambda: (lambda p: reset(p[1]) if p[0] is None else store(*p))(pend.pop(0))
    out = g.flat() + stamp()
    qacc = qacc_map(vtype)
    for tau in range(7):
        g = q_tile(tau, qacc)
        k = 3
        if flag_at == tau - 1: seq_fit(g, list(flag), 0)
        if carry:
            cs = set(map(id, carry))
            k, carry = seq_fit(g, carry, 3 if len(carry) <= 16 else 0); assert not carry
            for q in range(g.n):
                for i in g.ve[q]:
                    if id(i) in cs: assert not any(set(i.reads) & set(g.m[x].writes) for x in range(q + 1)), (q, i.text)
        if tau < 6:
            if tau in weave:
                k2, left = seq_fit(g, list(weave[tau]), 1 if tau != 4 else 17); assert not left, (tau, len(left))
            for n in range(nst[tau]):
                k, left = seq_fit(g, nxt(), max(k, 3 + (58 // nst[tau]) * n)); assert not left
            if flag_at == tau:
                g.sc[62][0].tag = g.sc[62][0].tag + ["KV1"]; assert all(p[0] is None or p[0] >= 8 for p in pend)
            out += g.flat() + stamp()
        else:
            qs = Storer(K.sQOFF, "QST", 13); rest = []
            g.put_s(39, WAITV(["KVM"] if mid6 else [], lgkm0=True)); g.put_s(40, I("s_barrier"))
            assert not mid6 or all(p[0] is None or p[0] >= 24 for p in pend)
            dma6 = list(mid6) + list(dma6)
            k, left = seq_fit(g, list(head6), 0); assert not left and k < 39, k
            k, left2 = seq_fit(g, list(dma6), 41); k = 0
            n6 = nst[6]
            for y in range(4):
                for xp in range(4):
                    ta, tb = qacc(y, 2 * xp), qacc(y, 2 * xp + 1)
                    if BIAS['q']: ins = [I(f"v_fma_f32 v{r[1]+e}, v{r[1]+e}, s{K.sSC}, v31") for r in (ta, tb) for e in range(4)]
                    elif rest: ins = [I(f"v_pk_mul_f32 v[{r[1]+e}:{r[1]+e+1}], v[{r[1]+e}:{r[1]+e+1}], s[{K.sSC - 1}:{K.sSC}] op_sel:[0,1] op_sel_hi:[1,1]") for r in (ta, tb) for e in (0, 2)]
                    else: ins = [I(f"v_mul_f32 v{r[1]+e}, s{K.sSC}, v{r[1]+e}") for r in (ta, tb) for e in range(4)]
                    p, reg = pack(ta, tb, K.vT)
                    ins += p + [I(f"ds_write_b128 v14, v[{reg}:{reg+3}] offset:{y * 8192 + xp * 1024}")]
                    if n6: ins += nxt(); n6 -= 1
                    if rest: rest += ins; continue
                    k0 = max(k, y * 16 + 4 * xp + 3 + 4)
                    k, rest = seq_fit(g, ins, k0)
            from att import mix
            out += g.flat() + (mix(rest, left2, 0, len(rest) // 2) if any(i.slots()[0] for i in left2) else left2 + rest)
    return out, [(p[1], p[2]) for p in pend]

def addr_wd():
    out = ""
    for jn in range(4):
        out += f"""
        v_or_b32 v28, {(jn >> 1) << 2}, v25
        v_lshlrev_b32 v28, 1, v28
        v_xor_b32 v28, v28, v24
        v_lshrrev_b32 v29, 3, v28
        v_lshlrev_b32 v29, 8, v29
        v_and_b32 v28, 7, v28
        v_lshl_add_u32 v28, v28, 4, v29
        v_lshl_add_u32 v28, v25, 13, v28
        s_lshl_b32 s64, s{K.sWAVE}, 17
        s_add_u32 s64, s64, {4*jn*8192 - 1024*jn}
        v_add_u32 v{K.vWD+jn}, s64, v28
        """ if jn % 2 == 0 else f"""
        v_add_u32 v{K.vWD+jn}, {4*8192 - 1024}, v{K.vWD+jn-1}
        """
    return out
def addr_cd():
    out = ""
    for jn in range(2):
        out += f"""
        v_add_u32 v28, {4*jn}, v25
        v_and_b32 v29, 7, v0
        v_xor_b32 v28, v28, v29
        v_lshlrev_b32 v28, 4, v28
        v_lshrrev_b32 v29, 3, v0
        v_lshl_add_u32 v30, v29, 11, v28
        s_lshl_b32 s64, s66, 19
        s_lshl_b32 s67, s65, 20
        s_add_u32 s64, s64, s67
        s_add_u32 s64, s64, {8*jn*2048 - 1024*jn}
        v_add_u32 v{K.vCD+jn}, s64, v30
        v_add_u32 v{K.vCD+jn+2}, {16*2048 - 2048}, v{K.vCD+jn}
        """
    return out
def addr_rd():
    out = """
    v_lshrrev_b32 v26, 2, v24
    v_and_b32 v28, 1, v25
    v_lshl_or_b32 v28, v28, 2, v26
    v_lshl_add_u32 v29, v25, 3, v26
    v_lshlrev_b32 v29, 8, v29
    v_and_b32 v30, 3, v0
    v_lshl_add_u32 v29, v30, 3, v29
    """
    for b in range(4):
        out += f"""
        s_lshl_b32 s64, s65, 2
        s_add_u32 s64, s64, {b}
        v_xor_b32 v30, s64, v28
        v_lshl_add_u32 v{K.vWR+b}, v30, 5, v29
        """
    for ks in range(2):
        out += f"""
        v_add_u32 v28, {4*ks}, v25
        v_lshrrev_b32 v29, 1, v24
        v_xor_b32 v28, v28, v29
        v_lshlrev_b32 v28, 4, v28
        v_lshl_add_u32 v28, v24, 7, v28
        s_lshl_b32 s64, s66, 13
        s_add_u32 s64, s64, 65536
        v_add_u32 v{K.vCR+ks}, s64, v28
        """
    return out

def addr_q():
    out = ""
    for jn in range(2):
        out += f"""
        v_lshrrev_b32 v28, 4, v0
        v_add_u32 v28, {4*jn}, v28
        v_and_b32 v29, 7, v0
        v_xor_b32 v28, v28, v29
        v_lshlrev_b32 v28, 4, v28
        v_lshrrev_b32 v29, 3, v0
        v_mul_u32_u24 v29, 896, v29
        s_mul_i32 s64, s{K.sWAVE}, {32*896}
        s_add_u32 s64, s64, {8*jn*896 - 1024*jn}
        v_add3_u32 v{K.vXD+jn}, v29, v28, s64
        v_add_u32 v{K.vXD+jn+2}, {16*896 - 2048}, v{K.vXD+jn}
        """
    for b in range(4): out += f"v_add_u32 v{K.vWR2+b}, 0x20000, v{K.vWR+b}\n"
    return L(out)
```

```python
from common import *
import side
from side import sWAVE, sH, sJ, WS, OOB, FOP_LOAD, poll_flags
RS = [dict(row=10, off=12, g=15, x=16, b=32, acc=48, nu=2, col=(75, 76)), dict(row=29, off=28, g=26, x=96, b=80, acc=64, nu=1, col=(86,))]
RV = dict(row=10, off=12, g=15, x=16, b=32, acc=48, nu=1, col=(86,))
RFL = ''
WI = 0
def fop(vl16, t, sE, sL):
    return L(f"""
    s_sub_u32 s64, 15, s{sJ}
    s_min_u32 s64, s64, s{sJ}
    s_mul_i32 s{sE}, s64, {2 * FSTR}
    s_lshl_b32 s64, s{sWAVE}, 6
    s_add_u32 s64, s64, s{sH}
    s_lshl2_add_u32 s{sE}, s64, s{sE}
    s_add_u32 s{sE}, s{sE}, {WS_FOP}
    s_movk_i32 s65, 1024
    s_cmp_lt_u32 s{sJ}, 8
    s_cselect_b32 s64, {FSTR}, s65
    s_cselect_b32 s65, 0, 64
    s_cselect_b32 s66, 32, 64
    s_add_u32 s{sL}, s{sE}, s64
    s_add_u32 s{sE}, s{sE}, s65
    v_lshrrev_b32 v{t + 2}, 5, v{vl16}
    v_mul_u32_u24 v{t + 2}, {FSTR}, v{t + 2}
    v_and_b32 v{t + 1}, 16, v{vl16}
    v_lshl_add_u32 v{t + 1}, v{t + 1}, 3, v{t + 2}
    v_mov_b32 v{t + 2}, {OOB}
    v_cmp_gt_u32 vcc, s66, v{vl16}
    v_mov_b32 v{t}, 1
    s_nop 0
    v_cndmask_b32 v{t + 1}, v{t + 2}, v{t + 1}, vcc
    """)
def rows(r):
    o = f"""
    v_mul_u32_u24 v{r['off']}, 896, v{r['row']}
    v_lshl_add_u32 v{r['off']}, v11, 4, v{r['off']}
    v_lshrrev_b32 v13, 4, v{r['row']}
    v_lshlrev_b32 v13, 5, v13
    v_and_b32 v104, 15, v{r['row']}
    v_add_lshl_u32 v13, v13, v104, 2
    buffer_load_dword v{r['g']}, v13, {WS}, s64 offen sc1
    {'s_mov_b32 s58, 0' if WI == 4 else ''}
    """
    for u in range(r['nu']): o += f"buffer_load_dwordx4 v[{r['x'] + 4*u}:{r['x'] + 4*u + 3}], v{r['off']}, s[56:59], s{r['col'][u]} offen\n"
    return L(o)
def head(V):
    pair = f"s_sub_u32 s64, 15, s{sJ}\ns_lshl_b32 s64, s64, 1" if V else f"s_lshl_b32 s64, s{sJ}, 1"
    out = L(f"""
    {pair}
    s_lshr_b32 s65, s{sH}, 3
    s_add_u32 s46, s64, s65
    s_mul_i32 s46, s46, {FSTR}
    s_and_b32 s72, s{sH}, 7
    s_lshl_b32 s66, s72, 7
    s_add_u32 s46, s46, s66
    s_add_u32 s46, s46, {WS_FOP + (1024 if V else 0)}
    v_and_b32 v14, {15 if V else 31}, v0
    v_lshlrev_b32 v14, 2, v14
    {FOP_LOAD}
    s_mul_i32 s86, s65, {3 if V else 4}
    s_add_u32 s86, s86, s{sWAVE}
    {'s_add_u32 s86, s86, 8' if V else ''}
    s_mul_i32 s77, s{sJ}, {16 * OP_HEAD}
    s_mul_i32 s78, s72, 14336
    s_add_u32 s77, s77, s78
    s_add_u32 s77, s77, {WS_OP}
    """) + (L(f"""
    s_lshl_b32 s78, s86, 10
    s_add_u32 s77, s77, s78
    """) if V else L(f"""
    s_sub_u32 s64, 15, s64
    s_sub_u32 s78, s64, 1
    s_mul_i32 s78, s78, {16 * OP_HEAD}
    s_add_u32 s78, s78, s77
    s_lshl_b32 s66, s86, 10
    s_add_u32 s78, s78, s66
    {f's_or_b32 s78, s78, {OOB}' if WI == 3 else ''}
    s_lshl_b32 s66, s74, 10
    s_add_u32 s77, s77, s66
    {f's_lshr_b32 s87, s{sH}, 3' + chr(10) + 's_sub_u32 s87, s87, 1' + chr(10) + f's_and_b32 s87, s87, {OOB}' + chr(10) + 's_or_b32 s77, s77, s87' if WI == 1 else f's_or_b32 s77, s77, {OOB}' if WI == 2 else ''}
    s_lshl_b32 s66, s64, 7
    """)) + L(f"""
    s_lshl_b32 s86, s86, 6
    {side.ROWMAP}
    s_lshl_b32 s65, s{sJ}, 7
    s_add_u32 s73, s73, s65
    v_and_b32 v10, 15, v0
    v_add_u32 v10, s73, v10
    {'' if V else 'v_add_u32 v29, s66, v10'}
    s_mov_b32 s64, {WS_RG + 64}
    """)
    for r in ([RV] if V else RS): out += rows(r) + [I(f"v_mov_b32 v{r['acc'] + n}, 0") for n in range(8 * r['nu'])]
    return out
def base_term(r, tag):
    n = r['nu']
    return [i for w in range(4 * n) for i in L(f"v_lshlrev_b32 v{r['b']+2*w}, 16, v{r['x']+w}\nv_and_b32 v{r['b']+1+2*w}, 0xffff0000, v{r['x']+w}")] + L(f"""
    v_sub_f32 v13, 1.0, v{r['g']}
    v_cmp_eq_u32 s[80:81], s84, v{r['row']}
    v_cmp_eq_u32 s[82:83], s85, v{r['row']}
    s_or_b64 vcc, s[80:81], s[82:83]
    s_cbranch_vccnz L_moe{tag}
    L_moe_ret{tag}:
    """) + [I(f"v_mul_f32 v{r['b']+e}, v13, v{r['b']+e}") for e in range(8 * n)]
def fin(r, note=""):
    o = []
    for u in range(r['nu']):
        if side.SWAP: o += [I("s_nop 2")] + [I(f"v_permlane16_swap_b32 v{r['acc']+8*u+e}, v{r['acc']+8*u+4+e}") for e in range(4)]
        o += [I(f"v_fmac_f32 v{r['b']+8*u+e}, v{r['g']}, v{r['acc']+8*u+e}") for e in range(8)]
        o += [I(f"v_cvt_pk_bf16_f32 v{r['x']+4*u+w}, v{r['b']+8*u+2*w}, v{r['b']+1+8*u+2*w}") for w in range(4)]
        o.append(I(f"buffer_store_dwordx4 v[{r['x']+4*u}:{r['x']+3+4*u}], v{r['off']}, s[52:55], s{r['col'][u]} offen {side.OSF}{note}"))
    return o
def dots(r, src): return [i for w in range(4 * r['nu']) for i in L(f"v_dot2c_f32_bf16 v{r['acc']+2*w}, v{src+w}, v24\nv_dot2c_f32_bf16 v{r['acc']+1+2*w}, v{src+w}, v25")]
START = f"v_cmp_eq_u32 vcc, 1, v9\ns_mov_b32 s91, {SPIN_MAX}\ns_mov_b32 s69, 0\n"
def main_v(vl16, st, lag, sent=False):
    out = L(START + "s_and_b32 s70, vcc_lo, 0xffff\ns_or_b32 s68, s70, 0xffff0000")
    adr = [12, 13, 14, 15, 16, 17, 18, 19, 21, 22, 23, 24, 48, 49, 50, 51]; far = []
    for k in range(16 + lag):
        if k < 16:
            out += L(f"""s_cmp_lg_u32 s70, 0
            s_cbranch_scc1 L_vk{k}
            s_call_b64 s[36:37], L_rpoll
            L_vk{k}:
            s_ff1_i32_b32 s71, s70
            s_bitset0_b32 s70, s71
            s_mul_i32 s71, s71, {OP_HEAD}
            s_add_u32 s{adr[k]}, s71, s77
            buffer_load_dwordx4 v[{128+4*k}:{131+4*k}], v{vl16}, {WS}, s{adr[k]} offen sc1 {RFL}""")
        if k == 1: out += base_term(RV, 2)
        if k == 15: out += st()
        if k >= lag:
            kk = k - lag; r = 128 + 4 * kk
            out += [NEED(R("v", r, 4))]
            if sent:
                tst = f"v_max3_u32 v13, v{r}, v{r+1}, v{r+2}\nv_max_u32 v13, v13, v{r+3}\nv_cmp_eq_u32 vcc, -1, v13"
                out += L(tst + f"\ns_cbranch_vccnz L_vz{kk}\nL_vw{kk}:")
                far += L(f"""L_vz{kk}:
                buffer_load_dwordx4 v[{r}:{r+3}], v{vl16}, {WS}, s{adr[kk]} offen sc1
                s_waitcnt vmcnt(0)
                {tst}
                s_sub_u32 s91, s91, 1
                s_cbranch_scc1 L_vw{kk}
                s_cbranch_vccnz L_vz{kk}
                s_branch L_vw{kk}""")
            out += dots(RV, r)
    return out + st() + L("s_nop 1") + fin(RV), far
def main_k(vl16, st, lag):
    out = L(START + "s_mov_b32 s70, vcc_lo\ns_mov_b32 s68, vcc_lo")
    far = []
    for k in range(32 + lag):
        if k < 32:
            r = 128 + 8 * (k % 16)
            out += L(f"""s_cmp_lg_u32 s70, 0
            s_cbranch_scc1 L_rk{k}
            s_call_b64 s[36:37], L_rpoll
            L_rk{k}:
            s_ff1_i32_b32 s71, s70
            s_bitset0_b32 s70, s71
            s_cmp_ge_u32 s71, 16
            s_cselect_b32 s72, s78, s77
            s_cselect_b32 s73, {hex(1 << k)}, 0
            s_cselect_b32 s87, {OOB}, 0
            s_mul_i32 s71, s71, {OP_HEAD}
            s_add_u32 s71, s71, s72
            buffer_load_dwordx4 v[{r}:{r+3}], v{vl16}, {WS}, s71 offen sc1 {RFL}
            s_or_b32 s69, s69, s73
            s_or_b32 s71, s71, s87
            buffer_load_dwordx4 v[{r+4}:{r+7}], v27, {WS}, s71 offen sc1 {RFL}""")
        if k in (1, 2): out += base_term(RS[k - 1], k - 1)
        if k == 31: out += st()
        if k >= lag:
            kk = k - lag; r = 128 + 8 * (kk % 16); f = 0 if kk < 16 else 1
            out += [NEED(R("v", r, 8))] + L(f"s_bitcmp{1 - f}_b32 s69, {kk}\ns_cbranch_scc1 L_rx{kk}") + dots(RS[f], r) + L(f"L_ry{kk}:")
            far += L(f"L_rx{kk}:") + dots(RS[1 - f], r) + L(f"s_branch L_ry{kk}")
        if k == 27:
            out += L(f"""s_and_b32 s71, s69, {hex((1 << (k - lag + 1)) - 1)}
            s_bcnt1_i32_b32 s71, s71
            s_cmp_eq_u32 s71, {k - lag + 1 - 16}
            s_cselect_b32 s66, 1, 0
            s_cbranch_scc0 L_rne""") + fin(RS[0], " ; nocount") + L("L_rne:")
    out += st() + L("s_nop 1") + fin(RS[1]) + L("s_cmp_eq_u32 s66, 1\ns_cbranch_scc1 L_rdone") + fin(RS[0]) + L("L_rdone:")
    return out, far
def moe():
    out = []
    for tag, r in ((0, RS[0]), (1, RS[1]), (2, RV)):
        out += L(f"L_moe{tag}:\ns_lshl_b32 s88, s{r['col'][0]}, 1\ns_call_b64 s[36:37], L_moe")
        out += [I(f"v_add_f32 v{r['b']+e}, v{108+e}, v{r['b']+e}") for e in range(8 * r['nu'])] + L(f"s_mov_b64 exec, -1\ns_branch L_moe_ret{tag}")
    return out + L(f"""
    L_moe:
    v_min_u32 v104, 27, v0
    v_lshlrev_b32 v104, 2, v104
    s_mov_b32 s64, {WS_FH + 512}
    """) + poll_flags(64, 64, "L_pfy", 105, 104, 65) + L(f"""
    s_or_b64 exec, s[80:81], s[82:83]
    v_mov_b32 v104, 1792
    v_cndmask_b32 v104, v104, 0, s[80:81]
    v_lshl_add_u32 v104, v11, 5, v104
    s_add_u32 s88, s88, {WS_YF}
    buffer_load_dwordx4 v[108:111], v104, {WS}, s88 offen sc1
    buffer_load_dwordx4 v[112:115], v104, {WS}, s88 offen offset:16 sc1
    buffer_load_dwordx4 v[116:119], v104, {WS}, s88 offen offset:512 sc1
    buffer_load_dwordx4 v[120:123], v104, {WS}, s88 offen offset:528 sc1
    s_waitcnt vmcnt(0)
    s_setpc_b64 s[36:37]
    """)

def poll2(half):
    ld = lambda v: FOP_LOAD.replace("v9,", f"v{v},")
    tst = lambda v: f"""s_waitcnt vmcnt(1)
    v_cmp_eq_u32 vcc, 1, v{v}
    s_sub_u32 s91, s91, 1
    s_cselect_b32 s70, -1, 0
    s_or_b32 s70, s70, vcc_lo
    s_andn2_b32 s70, s70, s68"""
    return L(f"""
    L_rpoll:
    {ld(9)}
    s_sleep {half}
    L_rpoll0:
    {ld(105)}
    {tst(9)}
    s_cbranch_scc1 L_rpollx
    {ld(9)}
    {tst(105)}
    s_cbranch_scc0 L_rpoll0
    L_rpollx:
    s_or_b32 s68, s68, s70
    s_setpc_b64 s[36:37]
    """)
```

```python
import sys
from att3 import *
import kvq, side, hw, asmlib, att3, q2, red3
from kvq import K, seq_fit
from q2 import VQ, place_vm, place_reads
opt = dict(stamp="0", v="1", thr=str(2.0 ** 40), lo=str(2.0 ** -60), m0="16", fine="0", dbgst="0", dbgl="0,3,6,7,14,18,21",
           cw="1", w1="0", q0="1", ramp="00", eo="0", pc="0", sw="1", r3="1", lagv="16", lag="8",
           pcq="4", tQ="9", tW="5", tH="7", tc="6,13", tg="113", xs_="20", odh="45", ne="8", jy="6", tl="1",
           k15="8", kst="2224a56", kf="0", v15="4", vst="2204444", vf="2", nq="8", w0l="24", ext="1", lay="1", qfl="nt", rfl="nt", pfl="nt", ofl="sc1", rsnk="1", snk="2", wis="0", p2="0", pw="1", pfg="24", ec="1", n1="9", rsl="1", wso="0", hnt="nt", nomoe="0", sent="0", sg="30", mk="044", s5="1", odh5="26", efw="5", efg="52", wi="0", sw_="0", sc_="0", swf="nt", hi0="44", hi1="108", rv="0", eh="1", bpv="0", bpvd="4", bpvk="20", bop="2", bopk="2.0", bkk="8.0", bkv="1", bq="0", tB="13", bsp="5", l4="44", wn="2221",
           ntw="nt", ntt="", osf="sc1", stf="sc1", dfl="sc1", hot="00", npk="16")
for a in sys.argv[1:]:
    k, v = a.split("="); assert k in opt, k; opt[k] = v
O = lambda k: int(opt[k])
STAMP = opt["stamp"] == "1"
kvq.HOT = opt["hot"]; kvq.NTW = opt["ntw"]; side.NTT = opt["ntt"]; kvq.STF = opt["stf"].replace("+", " "); att3.DFL = opt["dfl"]; side.OSF = opt["osf"]
side.EPAR = 2; side.NE = O("ne"); side.SELLV = 1; side.YLV = 4; hw.MAP = "0"
side.ROWMAP = "s_lshr_b32 s73, s72, 1\ns_sub_u32 s65, 7, s73\ns_bitcmp1_b32 s72, 0\ns_cselect_b32 s73, s65, s73\ns_lshl_b32 s73, s73, 4"
sH, sJ, sSTK, sKV, sFL = 41, 42, 44, 45, 45
XS = O('xs_'); assert XS in (18, 20)
JC = XS // 2
FSH = 7
aST = 250
NM0 = hex(f2u(-float(opt['m0'])))
BOP = O('bop')
BPV.update(on=O('bpv'), db=O('bpvd'), k=float(opt['bpvk']))
red3.WI = O('wi')
hw.HNT = opt['hnt']
side.RSL = O('rsl')
EC = O('ec')
PW = O('pw')
kvq.WIS = O('wis')
att3.SNK = O('snk')
kvq.RSNK = O('rsnk')
red3.RFL = opt['rfl']
NEVER = 0x7fff
SENT = O('sent')
EXT = O('ext')
SW = O('sw')
def stamp(t=10):
    if not STAMP: return []
    return L(f"""s_memrealtime s[36:37]
    s_memtime s[98:99]
    v_accvgpr_read_b32 v{t}, a{aST}
    v_accvgpr_read_b32 v{t+1}, a{aST+1}
    s_mov_b32 s100, m0
    s_mov_b32 m0, s{sSTK}
    s_waitcnt lgkmcnt(0)
    v_writelane_b32 v{t}, s98, m0
    v_writelane_b32 v{t+1}, s36, m0
    s_add_u32 s{sSTK}, s{sSTK}, 1
    s_mov_b32 m0, s100
    v_accvgpr_write_b32 a{aST}, v{t}
    v_accvgpr_write_b32 a{aST+1}, v{t+1}""")
fst = lambda n, t=10: stamp(t) if opt['fine'] == str(n) else []

F1_LOAD = f"buffer_load_dword v24, v13, {WSR}, s46 offen sc1"
F2_LOAD = f"buffer_load_dword v24, v{A.vFL}, {WSR}, s46 offen sc1"
FL_LOAD = f"buffer_load_dword v{A.vRL + 1}, v{A.vFL}, {WSR}, s46 offen sc1"
FP_LOAD = f"buffer_load_dword v{A.vRL}, off, {WSR}, s47 sc1"
ZZ = lambda: [I(f"v_mov_b32 v{A.vP1 + e}, 0") for e in range(4)]
SELM = lambda: L(f"""
    v_mov_b32 v16, 0x3f80
    v_lshrrev_b32 v17, 8, v{A.vL16}
    v_bfe_u32 v18, v{A.vL16}, 6, 2
    v_and_b32 v19, 16, v{A.vL16}
    v_lshlrev_b32 v19, v19, v16
    v_cmp_eq_u32 vcc, v17, v18
    v_and_b32 v16, 32, v{A.vL16}
    v_accvgpr_write_b32 a244, 0
    v_accvgpr_write_b32 a245, 0
    v_cndmask_b32 v19, 0, v19, vcc
    v_cmp_eq_u32 vcc, 0, v16
    v_accvgpr_write_b32 a248, 0
    v_accvgpr_write_b32 a249, 0
    v_cndmask_b32 v17, 0, v19, vcc
    v_sub_u32 v18, v19, v17
    v_accvgpr_write_b32 a246, v17
    v_accvgpr_write_b32 a247, v18
    """)

def first_qk(cv_late):
    if not cv_late:
        g = Gaps(qk_mfmas(0, "nm", snk=False)); weave_reads(g, 3, 1, [("T", 1)])
        blocks = [(0, 0), (0, 1), (1, 0), (1, 1)]; rdy = [11, 19, 27, 35]
    else:
        m = lambda kb, qb, ks, c=None: mfma(R("v", Sreg(0, kb, qb), 4), R("a", Freg(kb, ks), 4), R("a", Qreg(qb, ks), 4), c or R("v", Sreg(0, kb, qb), 4))
        ms = [m(kb, qb, ks, R("v", A.vNM + 4 * qb, 4) if n == 0 else None) for kb in range(2) for qb in range(2) for n, ks in enumerate(range(6) if qb == 0 else range(5, -1, -1))]
        ms += [m(0, 0, 6), m(0, 1, 6), m(1, 1, 6), m(1, 0, 6), m(0, 0, 7), m(1, 0, 7), m(0, 1, 7), m(1, 1, 7)]
        g = Gaps(ms + qk_mfmas(0, "nm")[32:])
        for f, k in enumerate([0, 1, 2, 4, 5, 6, 8, 9]): g.put(k, rd_frag(3, 1, f, Freg(1, f)))
        g.put_s(11, NEED(R("a", Freg(1, 0), 24))); g.put_s(22, NEED(R("a", Freg(1, 6), 8)))
        for f, k in enumerate([13, 14, 16, 17, 19, 20, 27, 31]): g.put(k, rd_frag(3, 2, f, Freg(2, f)))
        for f, k in enumerate([25, 28, 29, 33, 34, 36, 37, 39]): g.put(k, rd_frag(3, 3, f, Freg(3, f)))
        g.put_s(31, NEED(R("a", Freg(2, 0), 24))); g.put_s(37, NEED(R("a", Freg(2, 6), 8)))
        g.put_s(46, WAITV([("T", 1)], lgkm0=True)); g.put_s(47, I("s_barrier"))
        for f, r in enumerate(rd_batch(1, 0)): g.put(48 + RPAT[0][f], r)
        g.put_s(62, NEED(R("a", Freg(0, 0), 32)))
        blocks = [(0, 0), (1, 0), (0, 1), (1, 1)]; rdy = [32, 33, 34, 35]
    sm = SM(sm_groups(0, blocks + blocks_of(1), (0, 1)), ready={n: rdy[n >> 1] for n in range(8)})
    return g, sm

def ramp():
    nw, nc = int(opt['ramp'][0]), int(opt['ramp'][1])
    if not nw: return [], []
    pre = L(f"""
    v_lshrrev_b32 v28, 2, v0
    v_add_u32 v28, 1, v28
    v_lshrrev_b32 v29, 1, v28
    v_and_b32 v28, 1, v28
    v_lshlrev_b32 v28, 7, v28
    v_lshl_or_b32 v28, v29, 19, v28
    v_and_b32 v29, 1, v0
    v_lshl_or_b32 v28, v29, 8, v28
    v_bfe_u32 v29, v0, 1, 1
    v_lshl_or_b32 v28, v29, 13, v28
    s_lshl_b32 s64, s{K.sWAVE}, 14
    s_add_u32 s64, s64, s75
    v_cmp_gt_u32 vcc, {4 * nw}, v0
    v_add_u32 v28, s64, v28
    v_mov_b32 v31, {side.OOB}
    v_cndmask_b32 v16, v31, v28, vcc
    """) + (L(f"""
    v_lshrrev_b32 v28, 3, v0
    v_add_u32 v28, 1, v28
    v_lshrrev_b32 v29, 1, v28
    v_and_b32 v28, 1, v28
    v_lshlrev_b32 v28, 21, v28
    v_lshl_or_b32 v28, v29, 7, v28
    v_and_b32 v29, 7, v0
    v_lshl_or_b32 v28, v29, 11, v28
    s_lshr_b32 s64, s{sH}, 3
    s_lshl1_add_u32 s64, s{sKV}, s64
    s_lshl_b32 s64, s64, 5
    s_add_u32 s64, s64, s{K.sWAVE}
    s_lshl_b32 s64, s64, 14
    v_cmp_gt_u32 vcc, {8 * nc}, v0
    v_add_u32 v28, s64, v28
    v_cndmask_b32 v17, v31, v28, vcc
    """) if opt['rv'] == '0' else L(f"""
    v_lshrrev_b32 v28, 4, v0
    v_add_u32 v28, 1, v28
    v_lshrrev_b32 v29, 1, v28
    v_and_b32 v28, 1, v28
    v_lshlrev_b32 v28, 21, v28
    v_lshl_or_b32 v28, v29, 7, v28
    v_and_b32 v29, 15, v0
    v_lshl_or_b32 v28, v29, 11, v28
    s_lshr_b32 s64, s{sH}, 3
    s_lshr_b32 s67, s{K.sWAVE}, 1
    s_lshl1_add_u32 s64, s64, s67
    s_lshl_b32 s64, s64, 4
    s_and_b32 s67, s{K.sWAVE}, 1
    s_add_u32 s64, s64, s67
    s_lshl_b32 s64, s64, 15
    v_cmp_gt_u32 vcc, {16 * nc}, v0
    v_add_u32 v28, s64, v28
    v_cndmask_b32 v17, v31, v28, vcc
    s_sub_u32 s64, s{sJ}, 8
    s_and_b32 s64, s64, {side.OOB}
    v_or_b32 v16, s64, v16
    v_or_b32 v17, s64, v17
    """))
    return pre, [I(f"buffer_load_dword a240, v16, s[{K.S_W}:{K.S_W + 3}], 0 offen {opt['ntw']}", tag="TOUCH"), side.touch(17, K.S_C, 0, nt=False)]

def build_front(c):
    c.block("entry", f"""
    s_cmp_lt_u32 s2, 256
    s_cbranch_scc1 L_go
    s_endpgm
    L_go:
    {'s_memrealtime s[36:37]' + chr(10) + 's_memtime s[98:99]' if STAMP else ''}
    s_load_dwordx8 s[80:87], s[0:1], {A_X}
    s_load_dwordx4 s[88:91], s[0:1], {A_WUV}
    s_load_dwordx2 s[92:93], s[0:1], {A_WR}
    s_load_dwordx2 s[30:31], s[0:1], {A_GW}
    s_load_dwordx4 s[4:7], s[0:1], {A_DBG}
    v_lshrrev_b32 v24, 6, v0
    v_and_b32 v0, 63, v0
    v_readfirstlane_b32 s{K.sWAVE}, v24
    """, side.code_touch() if opt['pc'] == '0' else side.code_touch()[:-1], f"""
    s_and_b32 s{sH}, s2, 7
    s_lshr_b32 s{sJ}, s2, 3
    s_lshr_b32 s64, s{sJ}, 4
    s_lshl_b32 s64, s64, 3
    s_add_u32 s{sH}, s{sH}, s64
    s_and_b32 s{sJ}, s{sJ}, 15
    s_lshr_b32 s{sKV}, s{sJ}, 3
    s_xor_b32 s{sKV}, s{sKV}, {SW}
    s_mov_b32 s{sSTK}, 0
    v_accvgpr_write_b32 a{aST}, 0
    v_accvgpr_write_b32 a{aST+1}, 0
    v_and_b32 v24, 15, v0
    v_lshrrev_b32 v25, 4, v0
    v_lshlrev_b32 v{K.vST}, 4, v0
    s_and_b32 s65, s{K.sWAVE}, 1
    s_lshr_b32 s66, s{K.sWAVE}, 1
    {kvq.addr_wd()}
    {kvq.addr_cd()}
    s_mov_b32 s{K.sWOFF}, 0
    s_mov_b32 s{K.sCOFF}, 0
    s_lshl_b32 s{K.sM0W}, s{K.sWAVE}, 12
    s_add_u32 s{K.sM0C}, s{K.sM0W}, 65536
    s_lshl_b32 s74, s{sH}, 9
    s_sub_u32 s{K.S_W + 2}, {1024*8192}, s74
    s_mov_b32 s{K.S_W + 3}, 0x20000
    s_and_b32 s75, s{sJ}, 7
    s_lshl_b32 s75, s75, 16
    s_sub_u32 s{K.S_C + 2}, {2048*2048}, s75
    s_mov_b32 s{K.S_C + 3}, 0x20000
    """, ramp()[0], L(kvq.addr_rd()) + side.c_touch_setup() if opt['eo'] == '1' else [], f"""
    s_mov_b32 m0, s{K.sM0W}
    s_cmp_eq_u32 s{sKV}, 0
    s_cselect_b64 s[72:73], s[86:87], s[88:89]
    s_add_u32 s{K.S_W}, s72, s74
    s_addc_u32 s{K.S_W + 1}, s73, 0
    s_and_b32 s{K.S_W + 1}, s{K.S_W + 1}, 0xffff
    """, kvq.unit_w(0)[1:], f"""
    s_add_u32 s{K.S_C}, s82, s75
    s_addc_u32 s{K.S_C + 1}, s83, 0
    s_and_b32 s{K.S_C + 1}, s{K.S_C + 1}, 0xffff
    """, kvq.unit_c(0), ramp()[1], kvq.unit_w(1) if opt['w1'] == '0' else [], stamp(26)[2:], L(kvq.addr_rd()) + side.c_touch_setup() if opt['eo'] == '0' else [],
        side.code_addr(28, 29) + side.code_touch()[-1:] if opt['pc'] == '1' else [], f"""
    {srd(32, 82, 2048*2048)}
    {srd(K.S_X, 80, 2048*896)}
    {srd(60, 92, 896)}
    {srd(68, 30, 896)}
    {f's_add_u32 s6, s6, {O("wso") << 20}' + chr(10) + 's_addc_u32 s7, s7, 0' if O('wso') else ''}
    {srd(K.S_WS, 6, (256 - O('wso')) << 20)}
    {srd(K.S_DBG, 4, 256)}
    s_add_u32 s72, s84, s74
    s_addc_u32 s73, s85, 0
    s_sub_u32 s75, {448*8192}, s74
    {srd(K.S_WQ, 72, "s75")}
    s_mov_b32 s{K.sSC}, {hex(f2u(LOG2E_16))}
    s_mov_b32 s{K.sWQOFF}, 0
    s_mul_i32 s{K.sXOFF}, s{sJ}, {128*896}
    s_lshl_b32 s72, s{sKV}, 24
    s_lshl_b32 s73, s{sH}, 20
    s_add_u32 s72, s72, s73
    s_bfe_u32 s64, s{sJ}, 0x20001
    s_lshl_b32 s64, s64, 15
    s_add_u32 s72, s72, s64
    s_lshl_b32 s64, s66, 17
    s_add_u32 s72, s72, s64
    s_and_b32 s67, s{sJ}, 1
    s_cmp_eq_u32 s{sKV}, 0
    s_cselect_b32 s64, 12, 14
    s_cselect_b32 s75, 14, 10
    s_lshl_b32 s67, s67, s75
    s_add_u32 s72, s72, s67
    s_lshl_b32 s64, s65, s64
    s_add_u32 s{K.sOOFF}, s72, s64
    """, side.h_touch_srd(), f"s_load_dwordx2 s[96:97], s[0:1], {A_OUT}", f"s_cmp_lt_u32 s{sJ}, 8\ns_cbranch_scc0 L_kv1")
    pcq, tQ, tH, tW = O("pcq"), O("tQ"), O("tH"), O("tW")
    for vt in (0, 1):
        o = "v" if vt else "k"; pt = vt ^ SW
        frags = [kvq.rd_c(0, 0, 0, 0), kvq.rd_c(0, 0, 0, 1)] + kvq.rd_w_unit(0, 0, 0) + kvq.rd_w_unit(0, 1, 1)
        kvq.BIAS.update(kv="v[20:23]" if O('bkv') else None, q="v[28:31]" if O('bq') else None, rows=None)
        Q0 = opt['q0'] == '1'
        out = side.z_store()[:-3] + side.r4_loads() + side.z_store()[-3:] if vt == 0 else L(srd(60, 90, 4096*896))
        if Q0:
            frags, g0 = q2.tile0(pt)
            cw = kvq.unit_c(1) + kvq.unit_w(2); w1 = kvq.unit_w(1) if opt['w1'] == '1' else []
            if opt['cw'] == '0': out = cw + out; cw = []
            out = out + w1 + [WAITV([("C", 0), ("W", 0)], lgkm0=True), I("s_barrier")] + stamp(26) + frags + cw
            if vt == 0: out += side.r4_compute()
        else:
            out += kvq.unit_w(2) + kvq.unit_c(1) + [WAITV([("W", 1), ("C", 0), ("W", 0)], lgkm0=True), I("s_barrier")] + stamp(26) + frags
            if vt == 0: out += side.r4_compute()
            out += [NEED(R("a", kvq.wfrag(0, 0, 0), 8), R("a", 160, 8))]
        for t in range(15):
            dma = kvq.kv_dma(t)
            if vt == 1 and t == tW:
                pre, uns = side.wo2_dma(); dma[1] = dma[1] + [uns[0]]
            if vt == 1 and t == tW + 1: dma[1] = dma[1] + [uns[1]]
            if vt == 0 and t == tH - 5:
                pre, uns = hw.s1_weights()
            if vt == 0 and tH - 5 <= t <= tH + 1 and not O('nomoe'): dma[1] = dma[1] + [uns[t - tH + 5]]
            if vt == 0 and t == tH + 4:
                pre, un = hw.s6_down_dma(); dma[1] = dma[1] + ([un] if not O('nomoe') else [])
            g = g0 if (Q0 and t == 0) else kvq.kv_tile(t, pt, dma, first=(t == 0), hi1=O('hi1') if len(dma[1]) < 3 else 108, hi0=O('hi0'))
            def fit(ins, k, pace=0):
                k, left = seq_fit(g, ins, k, pace); assert not left, (t, len(left)); return k
            def mm(ms, k):
                k |= 1
                for m in ms: g.put(k, m)
                return k
            tch = []
            if pcq and (t + pcq) % 4 == 0 and t + pcq < 16: tch += side.c_touch(32, (t + pcq) // 4)
            if O('sw_') or O('sc_'):
                if t == 0: fit(side.share_setup(sKV), 50)
                if O('sw_') and 3 < t + O('sw_') < 16: tch += side.share_w(K.S_W, t + O('sw_'), opt['swf'])
                if O('sc_') and 2 < t + O('sc_') < 16: tch += side.share_c(K.S_C, t + O('sc_'))
            if t == 1 and vt == 0: fit(side.z_signal(), 112)
            if t == 2 and vt == 0: assert fit(side.rg4_store(), 4, 1) < 42
            if t == 3: fit(side.z_load(), 50)
            if t == 4:
                k = fit(side.z_check(vt), 112)
                if vt == 0: fit(side.key4_store(), k + 1)
            if vt == 1:
                pre_, tl = side.q_touch3(K.S_WQ)
                if t == tQ: fit(pre_, 60)
                if 0 <= t - tQ < len(tl): tch += tl[t - tQ]
                if t == tW: assert fit(pre, 42) < 80
                if t == tW + 2: g.sc[110][0].tag = g.sc[110][0].tag + ["WO"]
                if t == tW + 3: assert fit(side.wo2_reads(), 2, 2) < 108
                if t == 2: fit(SELM() + [I(f"v_accvgpr_write_b32 a{232 + e}, -1") for e in range(4) if SENT], 10, 1)
            if vt == 0 and O('nomoe'):
                if t == tH - 5: assert fit(pre, 42) < 90
                if t == tH + 1: fit(L("v_cmp_eq_u32 vcc, -1, v0\ns_nop 1\ns_cbranch_vccnz L_hs\nL_hr:"), 10)
                if t == tH + 6: pre, ms, yadr, yst = hw.s8_down(); link(yadr + yst)
            elif vt == 0:
                if t == tH - 5: assert fit(pre, 42) < 90
                if t == tH: fit(hw.s2_keys(), 4)
                if t == tH + 1: assert fit(hw.s3_top2(), 10, 1) < 108
                if t == tH + 2: fit(hw.s4_sel(), 4, 1)
                if t == tH + 3:
                    (r0, m0), (r1, m1) = hw.s5_gemm()
                    k = fit([WAITV("HW")] + r0, 50); k = mm(m0, max(k + 6, 78)); k = fit(r1, k + 1); mm(m1, max(k + 6, 110))
                if t == tH + 4: assert fit(pre, 4) < 44
                if t == tH + 5:
                    s7 = hw.s7_act(); fit(s7, 2, 1)
                    assert all(i.kind != "dsr" or i not in s7 for q in range(100, 128) for i in g.ve[q])
                if t == tH + 6:
                    pre, ms, yadr, yst = hw.s8_down(); link(yadr + yst)
                    k = fit(pre, 2); k = mm(ms, max(k + 2, 46))
            if t == 14: assert fit(kvq.addr_q(), 2) < 46
            if t == 14: fit(L(f"""
                s_mul_i32 s72, s{sH}, {FSTR}
                s_add_u32 s46, s72, {WS_FL}
                s_lshl_b32 s{sFL}, s{sJ}, {FSH}
                s_add_u32 s{sFL}, s{sFL}, s46
                s_sub_u32 s66, 15, s{sJ}
                s_min_u32 s66, s66, s{sJ}
                s_lshl_b32 s47, s66, {FSH}
                s_add_u32 s47, s47, s46
                s_add_u32 s47, s47, {2048 + (0 if vt else 64)}
                {f's_lshl2_add_u32 s47, s{A.sWAVE}, s47' if PW else ''}
                s_lshl_b32 s65, s{sH}, 3
                s_add_u32 s65, s65, s66
                s_mul_i32 s{A.sPO}, s65, {PO_STRIDE}
                s_add_u32 s{A.sPO}, s{A.sPO}, {WS_PO}
                s_lshl_b32 s65, s{sJ}, 4
                s_add_u32 s65, s65, s{sH}
                s_mul_i32 s{A.sOP}, s65, {OP_HEAD}
                s_mul_i32 s65, s{A.sWAVE}, {OP_HEAD // 4}
                s_add_u32 s{A.sOP}, s{A.sOP}, s65
                s_add_u32 s{A.sOP}, s{A.sOP}, {WS_OP}
                s_sub_u32 s65, 15, s66
                s_lshl_b32 s65, s65, 16
                s_lshl_b32 s64, s{sH}, 20
                s_add_u32 s{A.sQ}, s64, s65
                s_lshl_b32 s65, s{A.sWAVE}, 14
                s_add_u32 s{A.sQ}, s{A.sQ}, s65
                s_add_u32 s{A.sQ}, s{A.sQ}, {WS_Q}
                s_mov_b32 s{A.sTHR}, {hex(f2u(float(opt['thr'])))}
                s_mov_b32 s{A.sMODE}, 1
                s_sub_u32 s64, s{sJ}, {JC}
                s_and_b32 s{A.sNC}, s64, {side.OOB}
                """), 50)
            tv = 26 if t < O('tB') - 1 else 24
            if str(t) in opt['tc'].split(','): tch += side.code_addr(26, 26) + [side.touch(26, 76, 0, nt=False)]
            fit(tch, O('tg'))
            if O('bkv'):
                if t == 0:
                    vb = VQ()
                    smp = lambda y: [kvq.kacc(y, x)[1] + e for x in range(2) for e in range(4)]
                    est = []
                    for y, r in ((1, 20), (2, 21)):
                        v = smp(y)
                        est.append(L(f"v_max3_f32 v{r}, |v{v[0]}|, |v{v[1]}|, |v{v[2]}|\nv_max3_f32 v{r}, |v{v[3]}|, |v{v[4]}|, v{r}\nv_max3_f32 v{r}, |v{v[5]}|, |v{v[6]}|, v{r}"))
                    k = fit(est[0], 16)
                    k = fit(est[1] + L(f"v_min_f32 v20, v20, v21\nv_mul_f32 v20, {hex(f2u(float(opt['bkk'])))}, v20") + [I(f"v_mov_b32 v{20 + e}, v20") for e in (1, 2, 3)] +
                            L("v_accvgpr_write_b32 a241, v20"), max(k, 24))
                    assert k < 38, k
                if t == O('tB') - 1: fit(L("v_accvgpr_read_b32 v27, a241"), 1)
                for y in range(1, 8):
                    if t == O('tB') - (y < O('bsp')):
                        vb.add([I(f"v_sub_f32 v{kvq.kacc(y, x)[1] + e}, v{kvq.kacc(y, x)[1] + e}, v27") for x in range(8) for e in range(4) if kvq.kv_c0(y, x) != "0"], 128 * t + 16 * y + 20)
                vb.run(g, 128 * t)
                for at, i in vb.placed:
                    q = min(q for q in range(128) if any(i is x for x in g.ve[q]))
                    assert 128 * t + q < at + 128 - 22, (t, at, q)
                assert t < 14 or not vb.q
            out += g.flat()
            if t in (0, 1, 11, 14) or opt['fine'] == '1': out += stamp(tv)
        flat = lambda gs: [i for x in gs for i in x]
        base = f"s_lshl_b32 s{A.sK}, s{sH}, 20\ns_mov_b32 s{A.sCNT}, 0\ns_lshl_b32 s{A.sJ[2][1]}, s{sH}, 18\ns_add_u32 s{A.sJ[2][1]}, s{A.sJ[2][1]}, {WS_WO}\ns_add_u32 s{A.sVn}, s{A.sJ[2][1]}, 65536\n"
        (c1, a1), (c2, a2), (c3, a3) = A.sJ
        jumps = L(base + (f"""
            s_add_u32 s64, s{sJ}, 1
            s_min_u32 s64, s64, {JC}
            s_sub_u32 s{A.sIT}, s64, {2 + EXT}
            s_lshl_b32 s{c3}, s64, 1
            s_sub_u32 s{c2}, s{c3}, 2
            s_lshl_b32 s64, s{sJ}, 16
            s_add_u32 s{a2}, s{A.sK}, s64
            s_sub_u32 s{a1}, {34 * 32768}, s64
            s_add_u32 s{a1}, s{a1}, s{A.sK}
            s_lshl_b32 s64, s{sJ}, 1
            s_sub_u32 s64, 32, s64
            s_cmp_ge_u32 s{sJ}, {JC}
            s_cselect_b32 s{c1}, s64, {NEVER}
            """ if vt else f"""
            s_sub_u32 s{A.sIT}, s{sJ}, 1
            s_mov_b32 s{c2}, {NEVER}
            s_mov_b32 s{a2}, 0
            s_add_u32 s{a1}, s{A.sK}, {XS * 32768}
            s_lshl_b32 s64, s{sJ}, 1
            s_add_u32 s65, s64, 4
            s_add_u32 s64, s64, 2
            s_cmp_le_u32 s{sJ}, {15 - JC}
            s_cselect_b32 s{c1}, s65, {NEVER}
            s_cselect_b32 s{c3}, {34 - XS}, s64
            """) + f"s_mov_b32 s{A.sKP}, 0")
        w0 = L("v_mov_b32 v12, 1") + side.lane0_wave0(15)
        w1_ = L(f"""
            s_mov_b32 s{A.sREQ}, {(0x500 if vt else 0x543) if EXT else (0x4003 if vt else 0x43)}
            {f's_cmp_ge_u32 s{sJ}, {JC}' + chr(10) + f's_cselect_b32 s64, {hex(15 << 4 * (JC - 3 - EXT))}, 0' + chr(10) + f's_or_b32 s{A.sREQ}, s{A.sREQ}, s64' if vt and EC else ''}
            {'' if vt else f's_cmp_lt_u32 s{sJ}, 2' + chr(10) + f's_cselect_b32 s{A.sREQ}, {0x504 if EXT else 4}, s{A.sREQ}'}
            s_lshl_b32 s64, s{A.sWAVE}, 14
            s_add_u32 s{A.sPB}, s64, s{A.sPO}
            s_add_u32 s{A.sPB + 1}, s{A.sPB}, 4096
            s_add_u32 s{A.sPB + 2}, s{A.sPB}, 8192
            s_add_u32 s{A.sPB + 3}, s{A.sPB}, 12288
            """)
        w3 = L(f"v_min_u32 v25, 15, v0\nv_lshlrev_b32 v25, {FSH}, v25\nv_{'max' if SW else 'min'}_u32 v13, {(8 if SW else 7) << FSH}, v25")
        w4 = L(f"s_lshl_b32 s{A.sM0}, s{A.sWAVE}, 13") + jumps[:8] + L(F1_LOAD) + jumps[8:]
        w5 = L(f"""
            v_add_u32 v10, s{A.sM0}, v{A.vL16}
            v_add_u32 v11, 0x1000, v10
            v_cmp_eq_u32 vcc, 0, v24
            s_lshl_b32 s64, s{A.sWAVE}, 10
            s_cbranch_vccnz L_f1s{vt}4
            L_f1r{vt}4:
            """) + dma_flat(3, A.sK, 10) + adv_k() + L(f"""
            v_mov_b32 v{A.vFL}, v25
            v_lshrrev_b32 v24, 4, v0
            v_lshlrev_b32 v24, 2, v24
            v_and_b32 v25, 15, v0
            v_sub_u32 v24, v24, v25
            s_add_u32 s64, s64, s{A.sPO}
            s_add_u32 s{A.sPS}, s64, 65536
            s_mov_b32 s{A.sLO}, {hex(f2u(float(opt['lo'])))}
            s_and_b32 s65, s{A.sREQ}, {hex(15 << 4 * (JC - 3 - EXT)) if vt and EC else 0}
            s_cmp_eq_u32 s{A.sWAVE}, 0
            s_cselect_b32 s{A.sRT}, s{A.sREQ}, s65
            s_lshr_b32 s64, s{K.sWAVE}, 1
            s_lshl_b32 s64, s64, 17
            s_and_b32 s65, s{K.sWAVE}, 1
            s_lshl_b32 s65, s65, 12
            s_add_u32 s64, s64, s65
            v_add_u32 v14, s64, v7
            v_mov_b32 v{A.vNEG}, 0xff800000
            """) + [I(f"v_cmp_lt_i32 s[{A.sTRI[e]}:{A.sTRI[e]+1}], {-e}, v24") for e in range(4)]
        head6 = L(f"""
            {F2_LOAD}
            v_mov_b32 v{A.vF0}, v15
            v_add_u32 v{A.vRD1}, 0x10000, v{A.vL16}
            v_mov_b32 v{A.vDM0}, v10
            v_mov_b32 v{A.vDM1}, v11
            s_mov_b64 s[60:61], s[76:77]
            s_mov_b32 s62, s78
            s_mov_b32 s63, 0x20000
            """) + side.code_addr(0, 10)
        kvq.X6LOW = True; asmlib.VMX = False
        body, left = kvq.kv_to_q(pt, O(o + "15"), [int(x, 16) for x in opt[o + "st"]], O(o + "f"), [side.flag_store(sFL, 15, 12)], lambda: fst(2, 26),
                                 {0: w0, 1: w1_, 2: yadr if vt == 0 else [], 3: w3, 4: w4, 5: w5}, head6, dma_flat(1, A.sK) + adv_k(),
                                 [] if vt else [[i] for i in yst], 16)
        asmlib.VMX = True
        assert len(left) == (8 if vt else 0), len(left)
        st = kvq.Storer(A.sT1, "KV4")
        park = [I(f"v_accvgpr_write_b32 a{128 + 4*n + e}, v{int(r[2:r.index(':')]) + e}") for n, (r, off) in enumerate(left) for e in range(4)]
        later = [st.st(R("a", 128 + 4 * n, 4), off) for n, (r, off) in enumerate(left)]
        xch = ([WAITV([("T", 3)], lgkm0=True), I("s_barrier")] + stamp(26) + rd_batch(3, 0) + q_from_lds() +
               L(f"""v_cmp_eq_u32 vcc, 0, v24
               v_mov_b32 v{A.vX + 7}, {3 if vt else 4 + EXT}
               v_or_b32 v{A.vRL + 1}, s{A.sNC}, v{A.vL16}
               s_cbranch_vccnz L_f1s{vt}5
               L_f1r{vt}5:
               s_mov_b32 s{A.sT1}, s{K.sOOFF}
               s_mov_b32 s{A.sT0}, s94
               s_cmp_eq_u32 s{A.sWAVE}, 0
               s_cselect_b32 s{A.sPT}, {(4 + EXT) * vt}, 0""") + [I(f"v_mov_b32 v{A.vNM + r}, {NM0}") for r in range(8)] + [NEED(R("a", 0, 96))])
        g, sm = first_qk(False)
        g.sc[46][0].tag = g.sc[46][0].tag + ["KVST", "KVM"]
        g.put(48 + 2, side.flag_store(sFL, A.vF0, A.vX + 7))
        nq = O('nq')
        qst = [([I(f"s_add_u32 s3, s{A.sQ}, {(n >> 2) * 4096}")] if n % 4 == 0 or n == nq else []) +
               [I(f"buffer_store_dwordx4 a[{4*n}:{4*n+3}], v{A.vRL + 1}, {WSR}, s3 offen offset:{(n & 3) * 1024} sc1", tag="QST")] for n in range(16)] if vt else []
        place_vm(g, [(dma_flat(2, A.sV), 1, 40)] + ([(flat(qst[:nq]), O('w0l'), 62)] if vt and nq else []))
        vq = VQ(); vq.add([I(f"v_mov_b32 v{r}, 0") for r in (A.vLS, A.vLS + 1)] + park)
        vq.run(g, 0, 0, 14)
        sm.run(g, 8, 64, final=False, upto=8)
        vq.run(g, 0)
        vq.force(g, 63, lambda i: i.op == "v_mov_b32")
        out += body + xch + g.flat() + stamp()
        if vt == 1:
            wo = [[I(f"s_add_u32 s3, s{A.sT0}, {n * 32768}"), I(w[1].text, tag="KV4")] for n, w in enumerate(side.wo2_stores())]
            w_1 = win_qk(0, "L_st8", "L_rt8", groups=qst[nq:], dma=(3, A.sK, adv_k()), sm=sm, lo_check=True, dhi=40, vq=vq)
            dump = [i for at, i in vq.q[:max(0, len(vq.q) - 16)]]; vq.q = vq.q[len(dump):]
            if O('v') > 1: sys.stderr.write(f"; start: dumped {len(dump)}\n")
            if EXT:
                n0 = int(opt['l4'][0]); st.tag = "KV3"; st.cur = None
                l4 = [[st.st(R("a", 128 + 4 * n, 4), off) for n, (r, off) in enumerate(left[:n0])]]; st.cur = None
                l4.append([st.st(R("a", 128 + 4 * n, 4), off) for n, (r, off) in enumerate(left[n0:], n0)])
                wc = [int(x) for x in opt['wn']]; wn = [wo[sum(wc[:n]):sum(wc[:n + 1])] for n in range(4)]; assert sum(wc) == 7
                if SENT:
                    mk = [([I(f"s_add_u32 s3, s{A.sOP}, {10240 + (n >> 2) * 14336}")] if n % 4 == 0 or True else []) +
                          [I(f"buffer_store_dwordx4 a[232:235], v{A.vL16}, {WSR}, s3 offen offset:{(n & 3) * 1024} sc1", tag="KV4")] for n in range(8)]
                    mc = [int(x) for x in opt['mk']]; assert sum(mc) == 8
                    for n in range(3): wn[1 + n] = wn[1 + n] + mk[sum(mc[:n]):sum(mc[:n + 1])]
            def early(g):
                vq.run(g, 0); assert not vq.q
                for q in range(g.n):
                    for i in g.ve[q]:
                        if i.op.startswith("v_accvgpr"): assert not any(set(i.reads) & set(g.m[x].writes) for x in range(q + 1)), (q, i.text)
            c.block("kv1", "L_kv1:", out, w_1, dump, fst(3),
                    win_pv(0, cz=True, pre_dma=(0, A.sV), tags=["QST"], vq_first=early,
                           post=L(f"s_xor_b32 s3, s47, 64\nv_mov_b32 v{A.vRL}, 1") + (L(f"v_min_u32 v{A.vRL + 1}, 1, v{A.vL16}\nv_lshlrev_b32 v{A.vRL + 1}, 29, v{A.vRL + 1}\nv_or_b32 v{A.vRL + 1}, s{A.sNC}, v{A.vRL + 1}") if PW else
                                L(f"v_or_b32 v{A.vRL + 1}, s{A.sNC}, v{A.vF0}")) + [side.flag_store(3, A.vRL + 1, A.vRL)]), fst(3),
                    *([win_qk(1, "L_st9", "L_rt9", groups=later, ghi=60, scal=mask_regs(False, (0, 1))), fst(3),
                       win_pv(1, groups=wo, glo=1, ghi=34, dlo=4, scal=mask_regs(False, (3,)), tail=L("s_branch L_loop_mid"))] if not EXT else
                      [win_qk(1, "L_st9", "L_rt9", groups=l4[0], ghi=60), fst(3), win_pv(1, groups=l4[1], ghi=60), fst(3),
                       win_qk(0, "L_st12", "L_rt12", extra=L(FL_LOAD), groups=wn[0], glo=6, scal=mask_regs(False, (0, 1))),
                       win_pv(0, tags=["KV3"], groups=wn[1], ghi=44, chk=L(f"v_cmp_gt_u32 vcc, 3, v{A.vRL + 1}\ns_cbranch_vccnz L_f4s\nL_f4r:"),
                              post=L(f"v_mov_b32 v{A.vX + 7}, 4") + [side.flag_store(sFL, A.vF0, A.vX + 7)]), fst(3),
                       win_qk(1, "L_st13", "L_rt13", groups=wn[2], scal=mask_regs(False, (2, 3))),
                       win_pv(1, groups=wn[3], glo=1, ghi=20 if len(wn[3]) < 4 else 32, dlo=1 if len(wn[3]) < 4 else 4, tail=L("s_branch L_loop_mid"))]))
            b_ = c.blocks["kv1"]
            if not EXT: b_[-1:-1] = mask_regs(False, (2,))
            assert max(n for n, i in enumerate(b_) if i.tag == "KV4") < max(n for n, i in enumerate(b_) if i.kind == "dma")
        else:
            assert not vq.q
            c.block("kv0", "L_kv0:", out, f"s_cmp_eq_u32 s{sJ}, 0\ns_cbranch_scc1 L_j0")
            c.block("k1", win_qk(0, "L_st10", "L_rt10", dma=(3, A.sK, adv_k()), sm=sm, lo_check=True, dhi=40, scal=mask_regs(False)), fst(3),
                    win_pv(0, cz=True, pre_dma=(0, A.sV), tail=L(f"s_cmp_lg_u32 s{A.sIT}, 0\ns_cbranch_scc1 L_loop_top")), "s_branch L_p1")
            c.block("j0", "L_j0:", mask_regs(False), ZZ(), f"v_accvgpr_write_b32 a{aOF}, 0\nv_accvgpr_write_b32 a{aOF + 1}, 0", [i for kb in range(4) for i in mask_blk(0, kb, 0, inplace=True)], mask_regs(True),
                    zero_O_mfma(mix(init_softmax(0), dma_flat(3, A.sK) + adv_k() + L(FP_LOAD), 1, 100), A.vP1),
                    [i for kb in range(4) for i in mask_blk(1, kb, 1)], "s_branch L_p2")

def build_att(c):
    fs = lambda: fst(3)
    c.block("loop_top", ".p2align 6\nL_loop_top:", fs(), win_qk(1, "L_st1", "L_rt1", extra=[side.touch(0, 60, 0, nt=False)] if opt['tl'] == '1' else []), win_pv(1))
    c.block("loop_mid", "L_loop_mid:", fs(), win_qk(0, "L_st0", "L_rt0", head=L(f"s_and_b32 s{A.sREQ}, s{A.sRT}, 15\ns_cbranch_scc1 L_fll\nL_fllr:\ns_lshr_b32 s{A.sRT}, s{A.sRT}, 4")),
            win_pv(0, tail=L(f"s_sub_u32 s{A.sIT}, s{A.sIT}, 1\ns_cmp_lg_u32 s{A.sIT}, 0\ns_cbranch_scc1 L_loop_top"),
                   chk=L(f"""v_cmp_gt_u32 vcc, s{A.sREQ}, v{A.vRL + 1}
                   s_cbranch_vccnz L_fls0
                   L_flr0:
                   s_and_b32 s3, s{A.sPT}, 15
                   s_cbranch_scc1 L_pub3
                   L_pub3r:
                   s_lshr_b32 s{A.sPT}, s{A.sPT}, 4""")))
    LAY = O('lay'); assert EC or not LAY
    c.block("ph", "L_p1:", stamp(), f"s_cmp_eq_u32 s{A.sMODE}, 0\ns_cbranch_scc1 L_final_h",
            f"s_cmp_lt_u32 s{sJ}, {JC}\ns_cbranch_scc1 L_p1n" if LAY else f"s_cmp_ge_u32 s{sJ}, {JC}\ns_cbranch_scc1 L_p1c" if EC else "")
    c.block("p1", "L_p1n:", win_qk(1, "L_st5", "L_rt5", masked=True), fs(),
            win_pv(1, scal=mask_regs(True), valu=[i for kb in range(4) for i in mask_blk(1, kb, 1)], vlo=34, post=L(FP_LOAD)), fs())
    g = Gaps(qkB_mfmas())
    half_reads(g, 1, 2, [("T", 2)])
    half_dma(g, dma_flat(0, A.sV))
    ck = check(0, "L_st6")
    spread_any(g, softmax_half(0, 1) + ck[:2], 0, 28); g.put(31, ck[2])
    c.block("p2", "L_p2:", g.flat(), "L_rt6:", fs(), f"s_cmp_gt_u32 s{sJ}, {15 - JC}\ns_cbranch_scc1 L_p3o" if LAY else f"s_cmp_le_u32 s{sJ}, {15 - JC}\ns_cbranch_scc1 L_p3k",
            f"s_cmp_ge_u32 s{sJ}, {JC}\ns_cbranch_scc1 L_p3c" if not EC else "")
    smB = lambda: SM(groups_B(), add_l(0))
    pchk = lambda n: L(f"v_cmp_ne_u32 vcc, 1, v{A.vRL}\ns_cbranch_vccnz L_fps{n}\nL_fpr{n}:")
    lfin = lambda: add_l(1, (1,)) + zip2(xlane("v_add_f32", A.vLS, A.vX), xlane("v_add_f32", A.vLS + 1, A.vX + 1)) + L(f"v_rcp_f32 v{A.vRL}, v{A.vLS}\nv_rcp_f32 v{A.vRL+1}, v{A.vLS+1}")
    w2a = lambda: L(f"s_add_u32 s{A.sVn}, s{A.sVn}, 32768")
    c.block("p3o", "L_p3o:", win_pv(0, sm=smB(), nslot=0, end=check(1, "L_st2", only=1)), "L_rt2:", stamp())
    g = Gaps(pvB_mfmas())
    half_reads(g, 0, 3, [("T", 3)])
    half_dma(g, dma_flat(2, A.sVn) + w2a())
    spread_any(g, of_rd(A.vX + 4) + [i for ks in range(8) for i in cvt_ctx(ks, 0)], 1, 32)
    c.block("pBo", "L_pBo:", g.flat(), stamp(), "s_branch L_op1" if not LAY else "")
    pl = [I(f"buffer_load_dwordx4 v[{A.vX+4}:{A.vX+7}], v{A.vL16}, {WSR}, s{A.sPS} offen sc1")] + [
        I(f"buffer_load_dwordx4 a[{A.aX + 4*j}:{A.aX + 4*j + 3}], v{A.vL16}, {WSR}, s{A.sPB + j // 4} offen offset:{(j & 3) * 1024} sc1 {opt['pfl']}") for j in range(16)]
    cm = lambda qb, ks, hf: mfma(R("v", Oreg(2 * ks + hf, qb), 4), R("a", 246 - 2 * hf, 4), R("a", A.aX + (qb * 8 + ks) * 4, 4), R("v", Oreg(2 * ks + hf, qb), 4))
    if EC:
        n1 = O('n1')
        g = Gaps(qkB_mfmas(Freg5) + [cm(qb, ks, hf) for qb in range(2) for ks in range(8) for hf in range(2)])
        half_reads(g, 1, 2, [("T", 2)], bar=47, Freg4=Freg5)
        g.put_s(31, NEED(R("a", A.aX, 32))); g.put_s(45, NEED(R("a", A.aX + 32, 32)))
        place_vm(g, [(dma_flat(0, A.sV), 5, 44)])
        put_check(g, check(0, "L_st14"), SM(half_groups(0, 1)).run(g, 0, 56))
        c.block("p1c", "L_p1c:", win_qk(1, "L_st3", "L_rt3", masked=True, groups=[[i] for i in pl[:n1]], glo=1, ghi=60,
                                           scal_at=[(16 * kb + (4 if kb < 3 else 0), mask_regs(True, (kb,))) for kb in range(4)]), fs(),
                win_pv(1, valu=[i for kb in range(4) for i in mask_blk(1, kb, 1)], vlo=4, groups=[[i] for i in pl[n1:]], glo=2, ghi=46), fs(), f"""
                v_cmp_neq_f32 vcc, v{A.vNM}, v{A.vX+4}
                v_cmp_neq_f32 s[64:65], v{A.vNM+4}, v{A.vX+5}
                s_nop 0
                s_or_b64 vcc, vcc, s[64:65]
                s_cbranch_vccnz L_comb
                """)
        c.block("p2c", f"v_add_f32 v{A.vLS}, v{A.vX+6}, v{A.vLS}\nv_add_f32 v{A.vLS+1}, v{A.vX+7}, v{A.vLS+1}", g.flat(), "L_rt14:", fs(), "s_branch L_p3o" if not LAY else "")
    if not EC: c.block("p3c", "L_p3c:", pchk(0), win_pv(0, sm=smB(), nslot=0, end=check(1, "L_st3", only=1), groups=[[i] for i in pl], glo=0, ghi=60, nodma=True), "L_rt3:", stamp(),
            NEED(R("v", A.vX + 4, 4)), f"""
            v_cmp_neq_f32 vcc, v{A.vNM}, v{A.vX+4}
            v_cmp_neq_f32 s[64:65], v{A.vNM+4}, v{A.vX+5}
            v_add_f32 v{A.vX+6}, v{A.vX+6}, v{A.vLS}
            v_add_f32 v{A.vX+7}, v{A.vX+7}, v{A.vLS+1}
            s_or_b64 vcc, vcc, s[64:65]
            s_cbranch_vccnz L_comb
            """)
    F3 = lambda b, f: 192 + 4 * f if b == 2 else Freg(b, f)
    g = Gaps([pvB_mfma(db, kp, F3) for db in range(16) for kp in ((0, 1) if db % 2 == 0 else (1, 0))] + [cm(qb, ks, hf) for qb in range(2) for ks in range(8) for hf in range(2)])
    for b_, pos in ((1, [0, 0, 2, 2, 4, 4, 5, 6]), (2, [6, 8, 8, 10, 10, 12, 12, 14]), (3, [16, 16, 17, 18, 18, 19, 20, 20])):
        for f, k in enumerate(pos): g.put(k, rd_frag(0, b_, f, F3(b_, f)))
    g.put_s(7, NEED(R("a", Freg(1, 0), 16))); g.put_s(11, NEED(R("a", Freg(1, 4), 16))); g.put_s(15, NEED(R("a", 192, 16))); g.put_s(19, NEED(R("a", 208, 16)))
    g.put_s(23, NEED(R("a", Freg(1, 0), 32))); g.put_s(31, NEED(R("a", A.aX, 32))); g.put_s(47, NEED(R("a", A.aX + 32, 16))); g.put_s(55, NEED(R("a", A.aX + 48, 16)))
    g.put_s(34, WAITV([("T", 3)], lgkm0=True)); g.put_s(35, I("s_barrier"))
    for f, r in enumerate(rd_batch(3, 0)): g.put(44 + RPAT[0][f], r)
    g.put_s(62, NEED(R("a", Freg(0, 0), 32)))
    place_vm(g, [(dma_flat(1, A.sK) + dma_flat(2, A.sVn) + w2a(), 1, 61)])
    vq = VQ(); vq.add(L(f"v_mov_b32 v{A.vLS}, v{A.vX+6}\nv_mov_b32 v{A.vLS+1}, v{A.vX+7}") + of_rd(A.vX + 4))
    cv = [cvt_ctx(ks, 0) for ks in range(8)]
    for ks in range(8): vq.add(cv[ks][:-4], 4)
    nsub = len(vq.q)
    vq.run(g, 0, 0, 30); vq.force_level(g, lambda i: True, 0, 30)
    for ks in range(8): vq.add(cv[ks][-4:], 32 + 2 * ks + 5)
    vq.run(g, 0, 30); vq.force(g, 63, lambda i: True)
    if not EC: c.block("pBc", g.flat(), stamp())
    comb = [I("L_comb:")] + [I(pl[0].text), I("s_waitcnt vmcnt(0)")] + (dma_flat(1, A.sK) if not EC else []) + L(f"""
    s_nop 7
    v_sub_f32 v{A.vX}, v{A.vNM}, v{A.vX+4}
    v_sub_f32 v{A.vX+1}, v{A.vNM+4}, v{A.vX+5}
    v_max_f32 v{A.vX}, 0, v{A.vX}
    v_max_f32 v{A.vX+1}, 0, v{A.vX+1}
    """) + sub_S(1, (1,)) + (sub_S(0) if EC else []) + rescale_state() + (softmax_half(0, 0) if EC else sm_flat(groups_B())) + L(f"""
    v_sub_f32 v{A.vX}, v{A.vNM}, v{A.vX+4}
    v_sub_f32 v{A.vX+1}, v{A.vNM+4}, v{A.vX+5}
    v_cvt_i32_f32 v{A.vX}, v{A.vX}
    v_cvt_i32_f32 v{A.vX+1}, v{A.vX+1}
    v_ldexp_f32 v{A.vX}, 1.0, v{A.vX}
    v_ldexp_f32 v{A.vX+1}, 1.0, v{A.vX+1}
    v_and_b32 v{A.vX}, 0xffff0000, v{A.vX}
    v_and_b32 v{A.vX+1}, 0xffff0000, v{A.vX+1}
    v_fmac_f32 v{A.vLS}, v{A.vX}, v{A.vX+6}
    v_fmac_f32 v{A.vLS+1}, v{A.vX+1}, v{A.vX+7}
    v_lshrrev_b32 v{A.vX+2}, 16, v{A.vX}
    v_lshrrev_b32 v{A.vX+3}, 16, v{A.vX+1}
    """)
    n = 0
    for qb in range(2):
        for ks in range(8):
            for w in range(4):
                t = A.vT + (n % 8); n += 1
                o = Oreg(2 * ks + (w >> 1), qb) + 2 * (w & 1)
                comb += L(f"""v_accvgpr_read_b32 v{t}, a{A.aX + (qb * 8 + ks) * 4 + w}
                v_dot2c_f32_bf16 v{o}, v{t}, v{A.vX + 2 + qb}
                v_dot2c_f32_bf16 v{o+1}, v{t}, v{A.vX + qb}""")
    comb += L(f"s_nop 3\ns_branch {'L_p2' if EC else 'L_pBo'}")
    S5 = O('s5')
    slots = [3, 1, 2, 0, 4, 3, 1] if S5 else [3, 1, 2, 0, 3, 1, 2]
    def op_out(j, split=False):
        b = j & 1
        jo = j
        ins = L(f"s_add_u32 s{A.sT0}, s{A.sOP}, {2 * jo * 1024}\ns_add_u32 s{A.sT1}, s{A.sOP}, {14336 + 2 * jo * 1024}")
        for pp in range(2):
            if split and pp == 1: ins.append(64)
            for qb in range(2):
                a, d = Sreg(b, 2 * pp, qb), Sreg(b, 2 * pp + 1, qb)
                if BOP == 2 and j == 0 and pp == 0: ins += L(f"v_mul_f32 v{A.vSUM + 2 + qb}, -v{A.vNM + 4 * qb}, v{A.vRL + qb}")
                if BOP == 1 and j == 0 and pp == 0:
                    nm = A.vNM + 4 * qb
                    ins += L(f"""v_max3_f32 v{nm}, |v{a}|, |v{a+1}|, |v{a+2}|
                    v_max3_f32 v{nm}, |v{a+3}|, |v{d}|, v{nm}
                    v_max3_f32 v{nm}, |v{d+1}|, |v{d+2}|, v{nm}
                    v_mul_f32 v{nm}, {opt['bopk']}, v{nm}""") + [I(f"v_mov_b32 v{nm + e}, v{nm}") for e in (1, 2, 3)] + L(f"v_mul_f32 v{A.vSUM + 2 + qb}, -v{nm}, v{A.vRL + qb}")
                if BOP and j >= 3 - BOP: ins += [I(f"v_fma_f32 v{r + e}, v{r + e}, v{A.vRL + qb}, v{A.vSUM + 2 + qb}") for r in (a, d) for e in range(4)]
                else: ins += [I(f"v_mul_f32 v{r + e}, v{A.vRL + qb}, v{r + e}") for r in (a, d) for e in range(4)]
                ins += L(f"""v_cvt_pk_bf16_f32 v{a}, v{a}, v{a+1}
                v_cvt_pk_bf16_f32 v{a+1}, v{a+2}, v{a+3}
                v_cvt_pk_bf16_f32 v{a+2}, v{d}, v{d+1}
                v_cvt_pk_bf16_f32 v{a+3}, v{d+2}, v{d+3}""")
                ins.append(I(f"buffer_store_dwordx4 v[{a}:{a+3}], v{A.vL16}, {WSR}, s{A.sT0 + qb} offen offset:{pp * 1024} {opt['ofl'].replace('+', ' ')}", tag=("OP", j)))
        return ins
    fop0 = lambda: L(f"""
    s_sub_u32 s64, 15, s{sJ}
    s_min_u32 s64, s64, s{sJ}
    s_mul_i32 s{sFL}, s64, {2 * FSTR}
    s_and_b32 s64, s{sJ}, 8
    s_lshl_b32 s64, s64, 1
    s_add_u32 s64, s64, s{sH}
    s_lshl_b32 s64, s64, 2
    s_add_u32 s{sFL}, s{sFL}, s64
    s_add_u32 s{sFL}, s{sFL}, {WS_FOP}
    s_lshl_b32 s64, s{A.sWAVE}, 8
    s_add_u32 s{sFL}, s{sFL}, s64
    s_add_u32 s3, s{sFL}, {FSTR}
    v_lshrrev_b32 v{A.vX + 7}, 5, v{A.vL16}
    v_min_u32 v{A.vX + 7}, 1, v{A.vX + 7}
    v_lshlrev_b32 v{A.vX + 6}, 3, v{A.vL16}
    v_lshl_or_b32 v{A.vX + 6}, v{A.vX + 7}, 29, v{A.vX + 6}
    v_mov_b32 v{A.vX + 5}, 1
    """)
    R3 = opt['r3'] == '1'
    fop = (lambda: red3.fop(A.vL16, 40, sFL, 3)) if R3 else fop0
    vFV = 40 if R3 else A.vX + 5; EH = R3 and opt['eh'] == '1'
    def dbgst():
        if opt['dbgst'] == '0': return []
        o = f"""
        s_load_dwordx2 s[72:73], s[0:1], {A_DBG}
        v_accvgpr_read_b32 v11, a{aST+1}
        v_accvgpr_read_b32 v15, a{aST}
        v_lshrrev_b32 v12, 4, v{A.vL16}
        v_mov_b32 v13, {side.OOB}
        s_waitcnt lgkmcnt(0)
        {srd(68, 72, 256)}
        s_lshl_b32 s64, s2, 2
        s_add_u32 s64, s64, s{A.sWAVE}
        s_cmp_eq_u32 s64, {O('dbgst')}
        s_cselect_b32 s64, 0, {side.OOB}
        s_and_b32 s65, s{sJ}, 8
        s_or_b32 s65, s65, s{A.sWAVE}
        s_cmp_eq_u32 s65, 0
        s_cselect_b32 s65, 0, {side.OOB}
        """
        for n, ln in enumerate([int(x) for x in opt['dbgl'].split(',')]):
            o += f"s_add_u32 s66, s64, {4 * (2 + n)}\nv_cmp_eq_u32 vcc, {ln}, v12\nv_mov_b32 v14, s66\ns_nop 1\nv_cndmask_b32 v13, v13, v14, vcc\n"
        o += f"""buffer_store_dword v11, v13, s[68:71], 0 offen
        buffer_store_dword v15, v13, s[68:71], 0 offen offset:28
        s_sub_u32 s66, s{sSTK}, 1
        v_mov_b32 v13, {side.OOB}
        v_cmp_eq_u32 vcc, s66, v12
        v_mov_b32 v14, 4
        s_nop 1
        v_cndmask_b32 v13, v13, v14, vcc
        v_or_b32 v13, s65, v13
        buffer_atomic_umax v11, v13, s[68:71], 0 offen
        v_not_b32 v11, v11
        v_min_u32 v13, 1, v12
        v_lshlrev_b32 v13, 29, v13
        v_or_b32 v13, s65, v13
        s_nop 1
        buffer_atomic_umax v11, v13, s[68:71], 0 offen
        s_waitcnt vmcnt(0)
        """
        return L(o)
    fin = lambda: (L("s_mov_b64 exec, -1\ns_waitcnt vmcnt(0)") + stamp(30) + L(f"""
        s_lshl_b32 s{A.sT0}, s2, 2
        s_add_u32 s{A.sT0}, s{A.sT0}, s{A.sWAVE}
        s_lshl_b32 s{A.sT0}, s{A.sT0}, 9
        s_add_u32 s{A.sT0}, s{A.sT0}, {WS_STAMP}
        v_lshrrev_b32 v10, 1, v{A.vL16}
        buffer_store_dwordx2 a[{aST}:{aST+1}], v10, {WSR}, s{A.sT0} offen
        """) + dbgst()) if STAMP else []
    def last_reads(g, slot):
        for b in range(1, 4):
            for f, r in enumerate(rd_batch(slot, b)): g.put((b - 1) * 16 + RPAT[0][f], r)
            g.put_s(b * 16 - 1, NEED(R("a", Freg(b, 0), 32)))
    ctx_v = lambda qb, ks: R("v", Oreg(2 * ks, qb), 4)
    ctx_a = lambda qb, ks: R("a", A.aX + (qb * 8 + ks) * 4, 4)
    pub = lambda: [WAITV([("OP", 6)])] + L(f"buffer_store_dword v{vFV}, v{vFV + 1}, {WSR}, s3 offen sc1") + stamp(30)
    def outproj(tag, ctx, first=(), tags0=(), post0=()):
        ow = []
        for j in range(7):
            k = 2
            if j == 0 and tag:
                g = Gaps(qk_mfmas(0, "zero", breg=ctx, order=[(kb, qb) for qb in range(2) for kb in range(4)], fr=Freg4))
                half_reads(g, slots[0], slots[1], [("T", slots[1])], bar=47)
                def cv0():
                    vq = VQ()
                    for ks in range(8): vq.add(cvt_ctx(ks, 1), 3 if ks > 5 else 0)
                    k = vq.run(g, 0, 0, 31); vq.force_level(g, lambda i: True, 0, 31); return min(k, 31)
                if not S5: k = cv0()
            else:
                g = Gaps(qk_mfmas(j & 1, "nm" if BOP and j >= 3 - BOP else "zero", breg=ctx, snk=j < 6))
                if j < 6: weave_reads(g, slots[j], slots[j + 1], [("T", slots[j + 1])] + (list(tags0) if j == 0 else []))
                else: last_reads(g, slots[j])
            if j == 0:
                kk = 48 if not PW else O('pfg') - 4
                for i in post0: kk = g.fit(kk, i) if i.slots()[0] else g.fit_s(kk + (i.op == "WAITV"), i) + 1
            if S5 and j == 0: place_vm(g, [(dma_flat(0, A.sVn) + w2a() + dma_flat(4, A.sVn) + w2a(), 1 if not tag else 5, 61)])
            elif S5:
                if j < 3: weave_dma(g, slots[j + 4], A.sVn, w2a(), 1, O('odh5'))
                if j == 2: g.fit(30, I(f"v_add_u32 v43, 0x20000, v{A.vL16}"))
            elif j + 3 < 7: weave_dma(g, slots[j + 3], A.sVn, w2a(), k if j == 0 else 1, 60 if j == 0 else O('odh'))
            if j == 0 and tag and S5: k = cv0()
            if j == 0: assert not seq_fit(g, list(first) + (fop() if not (tag or S5) else []), k)[1]
            if j == 0 and BOP == 2:
                est = []
                for qb in range(2):
                    a, nm = Sreg(0, 0, qb), A.vNM + 4 * qb; d = Sreg(0, 1, qb)
                    est += L(f"""v_max3_f32 v{nm}, |v{a}|, |v{a+1}|, |v{a+2}|
                    v_max3_f32 v{nm}, |v{a+3}|, |v{d}|, v{nm}
                    v_max3_f32 v{nm}, |v{d+1}|, |v{d+2}|, v{nm}
                    v_mul_f32 v{nm}, {opt['bopk']}, v{nm}""") + [I(f"v_mov_b32 v{nm + e}, v{nm}") for e in (1, 2, 3)]
                if tag: spread_any(g, est[:7], 40, 52); spread_any(g, est[7:], 52, 62)
                else: spread_any(g, est, 36, 62)
            if j == 3 and (tag or S5): assert not seq_fit(g, fop(), 1)[1]
            if j == 2: assert not seq_fit(g, side.sel_a(A.vL16), 1)[1]
            if j in (4, 5): assert not seq_fit(g, {4: side.sel_b(tag), 5: side.sel_c()}[j], 40 if j == 5 else 2)[1]
            if j == O('efw'):
                assert not seq_fit(g, [WAITV([("OP", (side.NE - 1) // 2)]), I(f"buffer_store_dword v{vFV}, v{vFV + 1}, {WSR}, s{sFL} offen sc1")], O('efg'))[1]
            if j == 6 and tag and SENT:
                assert EH and not seq_fit(g, L(f"s_sub_u32 s64, s{sJ}, 8\ns_and_b32 s64, s64, {side.OOB}\ns_or_b32 s64, s64, s3") +
                                          [WAITV([("OP", 4)]), I(f"buffer_store_dword v{vFV}, v{vFV + 1}, {WSR}, s64 offen sc1")], O('sg'))[1]
            if j > 0: k = fill_valu(g, op_out(j - 1), 3, 58 if j < 6 else 36)
            if j == 6: k, last = seq_fit(g, op_out(6, True), max(k, 38))
            if tag and j in (0, 3, 5):
                n = {0: 1, 3: 2, 5: 3}[j]
                g.put_s(62, I(f"s_cmp_eq_u32 s{sJ}, {O('jy')}")); g.put_s(63, I(f"s_cbranch_scc1 L_y{n}"))
            ow += g.flat() + (L(f"L_y{n}r:") if tag and j in (0, 3, 5) else []) + fst(4, 30)
        return ow + stamp(30) + [i for i in last if not isinstance(i, int)] + ([] if EH else pub())
    c.block("op1", "L_op1:", outproj(1, ctx_v, lfin()), f"s_cmp_lt_u32 s{sJ}, 8\ns_cbranch_scc1 L_red")
    if R3:
        mv, farv = red3.main_v(A.vL16, lambda: stamp(30), O('lagv'), SENT)
        pubv = lambda: stamp(30) if SENT else pub() if EH else []
        c.block("end1", f"s_cmp_eq_u32 s{A.sWAVE}, 3\ns_cbranch_scc1 L_vend3", red3.head(True), pubv(), mv, "L_vend:", fin(), "s_endpgm")
        c.block("end3", "L_vend3:", pubv(), "s_branch L_vend", "s_waitcnt vmcnt(0)", farv)
    else: c.block("end1", fin(), "s_endpgm")
    qld = [[I(f"buffer_load_dwordx4 a[{4*n}:{4*n+3}], v{A.vL16}, {WSR}, s{72 + n // 4} offen offset:{(n & 3) * 1024} sc1 {opt['qfl']}")] for n in range(16)]
    c.block("p3k", "L_p3k:", f"""
            s_mov_b32 s72, s{A.sQ}
            s_add_u32 s73, s72, 4096
            s_add_u32 s74, s72, 8192
            s_add_u32 s75, s72, 12288
            """, pchk(1), win_pv(0, sm=smB(), nslot=0, end=check(1, "L_st7", only=1), groups=qld, glo=0, ghi=60, nodma=True), "L_rt7:", stamp())
    g = Gaps(pvB_mfmas())
    half_reads(g, 0, 3, [("T", 3)])
    half_dma(g, dma_flat(1, A.sK) + adv_k())
    scal_fit(g, L(f"s_sub_u32 s{A.sIT}, {15 - JC}, s{sJ}\ns_mov_b32 s{A.sMODE}, 0"))
    vq = VQ()
    vq.add(lfin() + L(f"""v_accvgpr_write_b32 a192, v{A.vRL}
        v_accvgpr_write_b32 a193, v{A.vRL + 1}
        v_mov_b32 v{A.vLS}, 0
        v_mov_b32 v{A.vLS + 1}, 0""") + [I(f"v_mov_b32 v{A.vNM + r}, {NM0}") for r in range(8)])
    vq.add(of_rd(A.vX + 4))
    for ks in range(8):
        for qb in range(2):
            vq.add(cvt_ctx(ks, qb), 4 * ks + 7 if qb else 0)
            vq.add([I(f"v_accvgpr_write_b32 a{A.aX + (qb * 8 + ks) * 4 + e}, v{Oreg(2 * ks, qb) + e}") for e in range(4)], 32)
    vq.run(g, 0)
    vq.force(g, 31, lambda i: f"v{A.vNM + 7}" in i.writes)
    w_b = g.flat()
    g, sm = first_qk(False)
    g.pre = [NEED(R("a", 0, 64))]
    g.put(40, I(f"v_cmp_gt_u32 vcc, 3, v{A.vRL + 1}")); g.put_s(43, I("s_cbranch_vccnz L_f2s")); g.put_s(43, I("L_f2r:"))
    place_vm(g, [(dma_flat(2, A.sV), 3, 44), ([I(FL_LOAD)], 0, 1)])
    sm.run(g, 8, 64, final=False, upto=8)
    vq.run(g, 32)
    vq.q = [(0, i) for at, i in vq.q]
    w_1 = win_qk(0, "L_st11", "L_rt11", dma=(3, A.sK, adv_k()), sm=sm, lo_check=True, vq=vq, dhi=40)
    npk = O('npk') if not BPV['on'] else 8; dump = [i for at, i in vq.q[:max(0, len(vq.q) - npk)]]; vq.q = vq.q[len(dump):]
    if O('v') > 1: sys.stderr.write(f"; switch: dumped {len(dump)}\n")
    def early(g):
        vq.run(g, 0); assert not vq.q
        for q in range(g.n):
            for i in g.ve[q]:
                if i.op.startswith(("v_cvt", "v_accvgpr")): assert not any(set(i.reads) & set(g.m[x].writes) for x in range(q + 1)), (q, i.text)
    c.block("sw", w_b, stamp(), g.flat(), fs(), w_1, dump, fs(),
            win_pv(0, cz=True, vq_first=early, pre_dma=(0, A.sV), tail=L(f"s_cmp_lg_u32 s{A.sIT}, 0\ns_cbranch_scc1 L_loop_top")), stamp())
    pst = lambda ks, qb: [I(f"buffer_store_dwordx4 v[{Oreg(2*ks, qb)}:{Oreg(2*ks, qb)+3}], v{A.vL16}, {WSR}, s{A.sPB + (qb*8+ks) // 4} offen offset:{(ks & 3) * 1024} sc1", tag="PST")]
    g = Gaps(pv_mfmas(1))
    weave_reads(g, 0, 3, [("T", 3)])
    k = 0; rest = []
    for ks in range(8):
        for qb in range(2):
            ins = cvt_ctx(ks, qb, A.vX + 6) + pst(ks, qb)
            if rest: rest += ins; continue
            k, rest = seq_fit(g, ins, max(k, 8 * ks + (7 if att3.SNK else 5 + 2 * qb) + 4))
    c.block("final_h", "L_final_h:", WAITV([("T", 0)], lgkm0=True), "s_barrier", rd_batch(0, 0), mix(softmax_half(1, 1), dma_flat(2, A.sVn) + w2a(), 1), check(1, "L_st4"), "L_rt4:", add_l(1), f"""
    v_mov_b32 v{A.vX+2}, v{A.vNM}
    v_mov_b32 v{A.vX+3}, v{A.vNM+4}
    v_mov_b32 v{A.vX+4}, v{A.vLS}
    v_mov_b32 v{A.vX+5}, v{A.vLS+1}
    buffer_store_dwordx4 v[{A.vX+2}:{A.vX+5}], v{A.vL16}, {WSR}, s{A.sPS} offen sc1
    """, of_rd(A.vX + 6), NEED(R("a", Freg(0, 0), 32)), stamp(), g.flat(), rest, stamp())
    c.block("op0", outproj(0, ctx_a, L(f"v_accvgpr_read_b32 v{A.vRL}, a192\nv_accvgpr_read_b32 v{A.vRL + 1}, a193"), ["PST"] if not PW else [],
                           L(f"s_xor_b32 s47, s47, 64\nv_mov_b32 v{A.vT}, 1") + ([side.flag_store(47, A.vF0, A.vT)] if not PW else
                           L(f"v_min_u32 v{A.vT + 1}, 1, v{A.vL16}\nv_lshlrev_b32 v{A.vT + 1}, 29, v{A.vT + 1}") + [WAITV(["PST"]), side.flag_store(47, A.vT + 1, A.vT)])))
    rm, far = (red3.main_k if R3 else lambda *a: side.red_main(*a, True, False))(A.vL16, lambda: stamp(30), O('lag'))
    c.block("red", "L_red:", red3.head(False) if R3 else side.red_a(A.vL16), pub() if EH else [], rm, fin(), "s_endpgm")
    c.block("redfar", far)
    c.block("rpoll", red3.poll2(O('p2')) if O('p2') else side.red_poll())
    c.block("comb", comb)
    stubs = ""
    for n, b in ((0, "0"), (1, "1"), (2, "B"), (3, "1" if EC else "B"), (4, "1n"), (5, "1"), (6, "0B"), (7, "B"), (8, "f"), (9, "1"), (10, "f"), (11, "f")) + (((14, "0B"),) if EC else ()) + (((12, "0"), (13, "1")) if EXT else ()):
        stubs += f"L_st{n}:\ns_call_b64 s[{A.sRET}:{A.sRET+1}], L_slow{b}\ns_branch L_rt{n}\n"
    c.block("stubs", stubs)
    for nm, b, oth in (("0", 0, (0, 1)), ("1", 1, (0, 1)), ("1n", 1, ()), ("0B", 0, (1,)), ("B", 1, ()), ("f", 0, (0, 1))): c.block("slow" + nm, slow_sub(nm, b, oth))
    c.block("moe", red3.moe() if R3 else side.red_moe(), side.y_reduce2(lambda n: Oreg(2 * (n >> 1) + 1, n & 1)))
    c.block("spins", f"""
    L_fll:
    s_cmp_lg_u32 s{A.sREQ}, 15
    s_cbranch_scc1 L_fll1
    v_mov_b32 v{A.vFL}, 0
    s_mov_b32 s46, s47
    s_mov_b32 s{A.sREQ}, 1
    L_fll1:
    {FL_LOAD}
    s_branch L_fllr
    L_pub3:
    v_mov_b32 v{A.vX + 7}, s3
    """, side.flag_store(sFL, A.vF0, A.vX + 7), "s_branch L_pub3r",
            *[side.spin_stub(f"L_fhs{n}", f"L_fhr{n}", side.FH0_LOAD, 24, 91, "v_cmp_gt_u32 vcc, 1, v{vt}") for n in range(2)],
            *[side.spin_stub(f"L_fps{n}", f"L_fpr{n}", FP_LOAD, A.vRL, A.sSPIN) for n in range(EC, 2)],
            side.spin_stub("L_f4s", "L_f4r", FL_LOAD, A.vRL + 1, A.sSPIN, "v_cmp_gt_u32 vcc, 3, v{vt}") if EXT else [],
            side.spin_stub("L_f2s", "L_f2r", FL_LOAD, A.vRL + 1, A.sSPIN, "v_cmp_gt_u32 vcc, 3, v{vt}"),
            side.spin_stub("L_fls0", "L_flr0", FL_LOAD, A.vRL + 1, A.sSPIN, f"v_cmp_gt_u32 vcc, s{A.sREQ}, v{{vt}}"))

def layout(c):
    if opt['lay'] == '0': return
    seq = ["ph", "p1c", "p2c", "p3o", "pBo", "op1", "end1", "end3", "p1", "p2", "p3k"]
    o = [b for b in c.order if b not in seq]; k = o.index("loop_mid") + 1
    c.order = o[:k] + seq + o[k:]; assert c.order[c.order.index("p3k") + 1] == "sw"

def early_stubs(c):
    c.block("spins0", side.z_stub(0), side.z_stub(1), hw.key_stub(),
            *[side.spin_stub(f"L_f1s{n}{w}", f"L_f1r{n}{w}", F1_LOAD if w == 4 else F2_LOAD, 24, 91, "v_cmp_eq_u32 vcc, 0, v{vt}") for n in range(2) for w in (4, 5)])

def paths(c):
    lp = ["loop_top", "loop_mid"]
    for end in ((["ph", "p1", "p2", "p3c", "pBc"], ["ph", "p1", "p2", "p3o", "pBo"], ["ph", "p1", "p2", "p3c", "comb", "pBo"]) if not EC else
                (["ph", "p1c", "p2c", "p3o", "pBo"], ["ph", "p1", "p2", "p3o", "pBo"], ["ph", "p1c", "comb", "p2", "p3o", "pBo"])):
        c.path("entry", "kv1", "loop_mid", *lp, *lp, *end, "op1", "end1")
    if opt['r3'] == '1': c.path("entry", "kv1", "loop_mid", *lp, *lp, "ph", "p1", "p2", "p3o", "pBo", "op1", "end3")
    c.path("entry", "kv0", "k1", *lp, *lp, "ph", "p1", "p2", "p3o", "pBo", "op1", "red")
    for own in (["j0"], ["k1", "ph", "p1"], ["k1", *lp, "ph", "p1"], ["k1", *lp, *lp, "ph", "p1"]):
        for nh in (0, 1, 2):
            c.path("entry", "kv0", *own, "p2", "p3k", "sw", *(lp * nh + ["ph"] * (nh > 0)), "final_h", "op0", "red")
    for b in ("redfar", "rpoll", "stubs", "slow0", "slow1", "slow1n", "slow0B", "slowB", "slowf", "moe", "spins", "spins0"): c.path(b)

if __name__ == "__main__":
    c = CFG(verbose=O("v"))
    build_front(c); early_stubs(c); build_att(c); layout(c); paths(c)
    body = c.finalize()
    kn = NAME + "_kernel"
    print("; @launch grid=(256,1,1) block=(256,1,1) lds=163840")
    print('.amdgcn_target "amdgcn-amd-amdhsa--gfx950"\n.text')
    print(".macro M d, a, b, c\nv_mfma_f32_16x16x32_bf16 \\d, \\a, \\b, \\c\n.endm")
    print(kernel_header(kn))
    print(body.replace("  v_mfma_f32_16x16x32_bf16 ", "M ").replace("\n  ", "\n "))
    print("L_code_end:")
    print('.section .rodata,"a"\n.p2align 6')
    print(kernel_desc(kn, sgpr=102))
```

```python
from asmlib import *
NAME = "gated_mix__compressed_kv_cla__moe_arch_mod__prompt"
A_X, A_CKV, A_WQ, A_WUK, A_WUV, A_WO, A_BX, A_WR, A_WG, A_WU, A_WD, A_GW, A_OUT, A_DBG, A_WS = [8 * i for i in range(15)]
WS_K = 0
WS_V = 16 << 20
WS_Q = 32 << 20
WS_PO = 48 << 20
WS_OP = 64 << 20
WS_R = 224 << 20
WS_STAMP = 240 << 20

def srd(s, base_lo, nbytes):
    return (f"s_mov_b32 s{s}, s{base_lo}\ns_and_b32 s{s+1}, s{base_lo+1}, 0xffff\n"
            f"s_mov_b32 s{s+2}, {nbytes}\ns_mov_b32 s{s+3}, 0x20000")

def mfma(d, a, b, c):
    return I(f"v_mfma_f32_16x16x32_bf16 {d}, {a}, {b}, {c}")

def kernel_header(name):
    return f".globl {name}\n.p2align 8\n.type {name},@function\n{name}:"

def kernel_desc(name, vgpr=512, accum=256, sgpr=96):
    return f""".amdhsa_kernel {name}
  .amdhsa_next_free_vgpr {vgpr}
  .amdhsa_next_free_sgpr {sgpr}
  .amdhsa_accum_offset {accum}
  .amdhsa_group_segment_fixed_size 0
  .amdhsa_kernarg_size 120
  .amdhsa_user_sgpr_count 2
  .amdhsa_user_sgpr_kernarg_segment_ptr 1
  .amdhsa_system_sgpr_workgroup_id_x 1
  .amdhsa_float_denorm_mode_32 3
.end_amdhsa_kernel"""

WS_WO = 96 << 20
PO_STRIDE = 73728
OP_HEAD = 114688
LOG2E_16 = 1.4426950408889634 / 16.0
import struct
def f2u(x): return struct.unpack("<I", struct.pack("<f", x))[0]

WS_Y = WS_R + (1 << 20)
WS_SEL = WS_R + 32768
WS_FKV = WS_R + 65536
WS_FPO = WS_FKV + 4096
WS_FOP = WS_FPO + 4096
WS_FH = WS_FOP + 4096
SPIN_MAX = 1 << 16
WS_DUMMY = 110 << 20
LDS_R = 163840 - 256

WS_RG = WS_R
WS_KEY = WS_FKV - 8192
NZERO = 21

FSTR = 16512
WS_FL = WS_FKV
WS_FOP = WS_FL + 16 * FSTR
WS_FH = WS_FL + 32 * FSTR
WS_YF = WS_R + 40960
NZERO = 41

class NUMA:
    on = 0; pl = 0; fl = 0; kv = 1; pg = 0
    K, V, OP, Q, PO, WO = 0, 32 << 20, 64 << 20, 128 << 20, 160 << 20, 192 << 20
def E(off): return ((off >> 13) << 14) + (off & 8191) if NUMA.on else off
sHP = 27
sBM, sSEL = 101, 92
```

```python
from common import *
import side
from side import sWAVE, sH, sJ, WS, OOB, FOP_LOAD, poll_flags
RS = [dict(row=10, off=12, g=15, x=16, b=32, acc=48, nu=2, col=(75, 76)), dict(row=29, off=28, g=26, x=96, b=80, acc=64, nu=1, col=(86,))]
RV = dict(row=10, off=12, g=15, x=16, b=32, acc=48, nu=1, col=(86,))
RFL = ''
NL = chr(10)
OPH = lambda: 262144 if NUMA.on else OP_HEAD
WI = 0
def fop(vl16, t, sE, sL):
    return L(f"""
    s_sub_u32 s64, 15, s{sJ}
    s_min_u32 s64, s64, s{sJ}
    s_mul_i32 s{sE}, s64, {2 * FSTR}
    s_lshl_b32 s64, s{sWAVE}, 6
    s_add_u32 s64, s64, s{sH}
    s_lshl2_add_u32 s{sE}, s64, s{sE}
    s_add_u32 s{sE}, s{sE}, {WS_FOP}
    s_movk_i32 s65, 1024
    s_cmp_lt_u32 s{sJ}, 8
    s_cselect_b32 s64, {FSTR}, s65
    s_cselect_b32 s65, 0, 64
    s_cselect_b32 s66, 32, 64
    s_add_u32 s{sL}, s{sE}, s64
    s_add_u32 s{sE}, s{sE}, s65
    v_lshrrev_b32 v{t + 2}, 5, v{vl16}
    v_mul_u32_u24 v{t + 2}, {FSTR}, v{t + 2}
    v_and_b32 v{t + 1}, 16, v{vl16}
    v_lshl_add_u32 v{t + 1}, v{t + 1}, 3, v{t + 2}
    v_mov_b32 v{t + 2}, {OOB}
    v_cmp_gt_u32 vcc, s66, v{vl16}
    v_mov_b32 v{t}, 1
    s_nop 0
    v_cndmask_b32 v{t + 1}, v{t + 2}, v{t + 1}, vcc
    """)
def rows(r):
    o = f"""
    v_mul_u32_u24 v{r['off']}, 896, v{r['row']}
    v_lshl_add_u32 v{r['off']}, v11, 4, v{r['off']}
    v_lshrrev_b32 v13, 4, v{r['row']}
    v_lshlrev_b32 v13, 5, v13
    v_and_b32 v104, 15, v{r['row']}
    v_add_lshl_u32 v13, v13, v104, 2
    buffer_load_dword v{r['g']}, v13, {WS}, s64 offen sc1
    {'s_mov_b32 s58, 0' if WI == 4 else ''}
    """
    for u in range(r['nu']): o += f"buffer_load_dwordx4 v[{r['x'] + 4*u}:{r['x'] + 4*u + 3}], v{r['off']}, s[56:59], s{r['col'][u]} offen\n"
    return L(o)
def head(V):
    pair = f"s_sub_u32 s64, 15, s{sJ}\ns_lshl_b32 s64, s64, 1" if V else f"s_lshl_b32 s64, s{sJ}, 1"
    out = L(f"""
    {pair}
    s_lshr_b32 s65, s{sH}, 3
    s_add_u32 s46, s64, s65
    s_mul_i32 s46, s46, {FSTR}
    s_and_b32 s72, s{sH}, 7
    s_lshl_b32 s66, s72, 7
    s_add_u32 s46, s46, s66
    s_add_u32 s46, s46, {WS_FOP + (1024 if V else 0)}
    v_and_b32 v14, {15 if V else 31}, v0
    v_lshlrev_b32 v14, 2, v14
    {FOP_LOAD}
    s_mul_i32 s86, s65, {3 if V else 4}
    s_add_u32 s86, s86, s{sWAVE}
    {'s_add_u32 s86, s86, 8' if V else ''}
    s_mul_i32 s77, s{sJ}, {16 * OPH()}
    s_mul_i32 s78, s72, {32768 if NUMA.on else 14336}
    s_add_u32 s77, s77, s78
    s_add_u32 s77, s77, {NUMA.OP if NUMA.on else WS_OP}
    {(f's_and_b32 s78, s{sBM}, 2' + NL + 's_lshl_b32 s78, s78, 12' + NL + 's_add_u32 s77, s77, s78' if not NUMA.pl else
      f's_bfe_u32 s90, s{sBM}, 0x80008' + NL + 's_mul_i32 s90, s90, 0x01010101' + NL + 's_xor_b32 s90, s90, 0xff00ff00') if NUMA.on else ''}
    """) + (L(f"""
    s_lshl_b32 s78, s86, 10
    s_add_u32 s77, s77, s78
    {'s_add_u32 s77, s77, 8192' if NUMA.on else ''}
    """) if V else L(f"""
    s_sub_u32 s64, 15, s64
    s_sub_u32 s78, s64, 1
    s_mul_i32 s78, s78, {16 * OPH()}
    s_add_u32 s78, s78, s77
    s_lshl_b32 s66, s86, 10
    s_add_u32 s78, s78, s66
    {f's_or_b32 s78, s78, {OOB}' if WI == 3 else ''}
    s_lshl_b32 s66, s74, 10
    s_add_u32 s77, s77, s66
    {'s_and_b32 s66, s66, 8192' + NL + 's_add_u32 s77, s77, s66' if NUMA.on else ''}
    {f's_lshr_b32 s87, s{sH}, 3' + chr(10) + 's_sub_u32 s87, s87, 1' + chr(10) + f's_and_b32 s87, s87, {OOB}' + chr(10) + 's_or_b32 s77, s77, s87' if WI == 1 else f's_or_b32 s77, s77, {OOB}' if WI == 2 else ''}
    s_lshl_b32 s66, s64, 7
    """)) + L(f"""
    s_lshl_b32 s86, s86, 6
    {side.ROWMAP}
    s_lshl_b32 s65, s{sJ}, 7
    s_add_u32 s73, s73, s65
    v_and_b32 v10, 15, v0
    v_add_u32 v10, s73, v10
    {'' if V else 'v_add_u32 v29, s66, v10'}
    s_mov_b32 s64, {WS_RG + 64}
    """)
    for r in ([RV] if V else RS): out += rows(r) + [I(f"v_mov_b32 v{r['acc'] + n}, 0") for n in range(8 * r['nu'])]
    return out
def base_term(r, tag):
    n = r['nu']
    return [i for w in range(4 * n) for i in L(f"v_lshlrev_b32 v{r['b']+2*w}, 16, v{r['x']+w}\nv_and_b32 v{r['b']+1+2*w}, 0xffff0000, v{r['x']+w}")] + L(f"""
    v_sub_f32 v13, 1.0, v{r['g']}
    v_cmp_eq_u32 s[80:81], s84, v{r['row']}
    v_cmp_eq_u32 s[82:83], s85, v{r['row']}
    s_or_b64 vcc, s[80:81], s[82:83]
    s_cbranch_vccnz L_moe{tag}
    L_moe_ret{tag}:
    """) + [I(f"v_mul_f32 v{r['b']+e}, v13, v{r['b']+e}") for e in range(8 * n)]
def fin(r, note=""):
    o = []
    for u in range(r['nu']):
        if side.SWAP: o += [I("s_nop 2")] + [I(f"v_permlane16_swap_b32 v{r['acc']+8*u+e}, v{r['acc']+8*u+4+e}") for e in range(4)]
        o += [I(f"v_fmac_f32 v{r['b']+8*u+e}, v{r['g']}, v{r['acc']+8*u+e}") for e in range(8)]
        o += [I(f"v_cvt_pk_bf16_f32 v{r['x']+4*u+w}, v{r['b']+8*u+2*w}, v{r['b']+1+8*u+2*w}") for w in range(4)]
        o.append(I(f"buffer_store_dwordx4 v[{r['x']+4*u}:{r['x']+3+4*u}], v{r['off']}, s[52:55], s{r['col'][u]} offen {side.OSF}{note}"))
    return o
def dots(r, src): return [i for w in range(4 * r['nu']) for i in L(f"v_dot2c_f32_bf16 v{r['acc']+2*w}, v{src+w}, v24\nv_dot2c_f32_bf16 v{r['acc']+1+2*w}, v{src+w}, v25")]
START = f"v_cmp_eq_u32 vcc, 1, v9\ns_mov_b32 s91, {SPIN_MAX}\ns_mov_b32 s69, 0\n"
def main_v(vl16, st, lag, sent=False):
    out = L(START + "s_and_b32 s70, vcc_lo, 0xffff\ns_or_b32 s68, s70, 0xffff0000")
    adr = [12, 13, 14, 15, 16, 17, 18, 19, 21, 22, 23, 24, 48, 49, 50, 51]; far = []
    for k in range(16 + lag):
        if k < 16:
            out += L(f"""s_cmp_lg_u32 s70, 0
            s_cbranch_scc1 L_vk{k}
            s_call_b64 s[36:37], L_rpoll
            L_vk{k}:
            s_ff1_i32_b32 s71, s70
            s_bitset0_b32 s70, s71
            {('s_and_b32 s72, s71, 8' + NL + 's_lshl_b32 s72, s72, 10' if not NUMA.pl else 's_bitcmp1_b32 s90, s71' + NL + 's_cselect_b32 s72, 8192, 0') + NL + 's_xor_b32 s72, s72, s77' if NUMA.on else ''}
            s_mul_i32 s71, s71, {OPH()}
            s_add_u32 s{adr[k]}, s71, s{72 if NUMA.on else 77}
            buffer_load_dwordx4 v[{128+4*k}:{131+4*k}], v{vl16}, {WS}, s{adr[k]} offen sc1 {RFL}""")
        if k == 1: out += base_term(RV, 2)
        if k == 15: out += st()
        if k >= lag:
            kk = k - lag; r = 128 + 4 * kk
            out += [NEED(R("v", r, 4))]
            if sent:
                tst = f"v_max3_u32 v13, v{r}, v{r+1}, v{r+2}\nv_max_u32 v13, v13, v{r+3}\nv_cmp_eq_u32 vcc, -1, v13"
                out += L(tst + f"\ns_cbranch_vccnz L_vz{kk}\nL_vw{kk}:")
                far += L(f"""L_vz{kk}:
                buffer_load_dwordx4 v[{r}:{r+3}], v{vl16}, {WS}, s{adr[kk]} offen sc1
                s_waitcnt vmcnt(0)
                {tst}
                s_sub_u32 s91, s91, 1
                s_cbranch_scc1 L_vw{kk}
                s_cbranch_vccnz L_vz{kk}
                s_branch L_vw{kk}""")
            out += dots(RV, r)
    return out + st() + L("s_nop 1") + fin(RV), far
def pf_poll():
    return L(f"""
    s_mul_i32 s93, s{sJ}, {2 * FSTR}
    s_and_b32 s64, s{sH}, 7
    s_mul_i32 s94, s64, 14336
    s_lshl_b32 s64, s64, 7
    s_add_u32 s93, s93, s64
    s_add_u32 s93, s93, {WS_FOP + 2048}
    s_mul_i32 s64, s{sJ}, {16 * OP_HEAD}
    s_add_u32 s94, s94, s64
    s_lshl_b32 s64, s74, 10
    s_add_u32 s94, s94, s64
    s_add_u32 s94, s94, {WS_OP}
    s_lshl_b32 s64, s{sH}, 26
    s_and_b32 s64, s64, {OOB}
    s_or_b32 s94, s94, s64
    """), I(f"buffer_load_dword v44, v14, {WS}, s93 offen sc1")
def pf_test():
    return L(f"""
    v_cmp_ne_u32 vcc, 1, v44
    s_nop 0
    s_cmp_eq_u64 vcc, 0
    s_cselect_b32 s64, 0, {OOB}
    s_or_b32 s94, s94, s64
    s_and_b32 s92, s94, {OOB}
    s_xor_b32 s92, s92, {OOB}
    """)
def pf_loads(vl16): return [[I(f"buffer_load_dwordx4 v[{192+4*n}:{195+4*n}], v{vl16}, {WS}, s94 offen sc1 {RFL}"), I(f"s_add_u32 s94, s94, {OP_HEAD}")] for n in range(16)]
def main_k(vl16, st, lag, pf=False):
    out = L(START + "s_mov_b32 s70, vcc_lo\ns_mov_b32 s68, vcc_lo")
    if pf:
        out += [NEED("v[192:255]")] + L("s_cmp_eq_u32 s92, 0\ns_cbranch_scc1 L_npf") + [i for n in range(16) for i in dots(dict(RS[0], nu=1), 192 + 4 * n)] + L("L_npf:")
    far = []
    for k in range(32 + lag):
        if k < 32:
            r = 128 + 8 * (k % 16)
            out += L(f"""s_cmp_lg_u32 s70, 0
            s_cbranch_scc1 L_rk{k}
            s_call_b64 s[36:37], L_rpoll
            L_rk{k}:
            s_ff1_i32_b32 s71, s70
            s_bitset0_b32 s70, s71
            s_cmp_ge_u32 s71, 16
            s_cselect_b32 s72, s78, s77
            s_cselect_b32 s73, {hex(1 << k)}, 0
            s_cselect_b32 s87, {OOB}, 0
            {'s_cselect_b32 s88, 0, s92' if pf else ''}
            {('s_and_b32 s89, s71, 8' + NL + 's_lshl_b32 s89, s89, 10' if not NUMA.pl else 's_bitcmp1_b32 s90, s71' + NL + 's_cselect_b32 s89, 8192, 0') + NL + 's_xor_b32 s72, s72, s89' if NUMA.on else ''}
            s_mul_i32 s71, s71, {OPH()}
            s_add_u32 s71, s71, s72
            {'s_or_b32 s88, s88, s71' if pf else ''}
            buffer_load_dwordx4 v[{r}:{r+3}], v{vl16}, {WS}, s{88 if pf else 71} offen sc1 {RFL}
            s_or_b32 s69, s69, s73
            s_or_b32 s71, s71, s87
            buffer_load_dwordx4 v[{r+4}:{r+7}], v27, {WS}, s71 offen sc1 {RFL}""")
        if k in (1, 2): out += base_term(RS[k - 1], k - 1)
        if k == 31: out += st()
        if k >= lag:
            kk = k - lag; r = 128 + 8 * (kk % 16); f = 0 if kk < 16 else 1
            out += [NEED(R("v", r, 8))] + L(f"s_bitcmp{1 - f}_b32 s69, {kk}\ns_cbranch_scc1 L_rx{kk}") + dots(RS[f], r) + L(f"L_ry{kk}:")
            far += L(f"L_rx{kk}:") + dots(RS[1 - f], r) + L(f"s_branch L_ry{kk}")
        if k == 27:
            out += L(f"""s_and_b32 s71, s69, {hex((1 << (k - lag + 1)) - 1)}
            s_bcnt1_i32_b32 s71, s71
            s_cmp_eq_u32 s71, {k - lag + 1 - 16}
            s_cselect_b32 s66, 1, 0
            s_cbranch_scc0 L_rne""") + fin(RS[0], " ; nocount") + L("L_rne:")
    out += st() + L("s_nop 1") + fin(RS[1]) + L("s_cmp_eq_u32 s66, 1\ns_cbranch_scc1 L_rdone") + fin(RS[0]) + L("L_rdone:")
    return out, far
def moe():
    out = []
    for tag, r in ((0, RS[0]), (1, RS[1]), (2, RV)):
        out += L(f"L_moe{tag}:\ns_lshl_b32 s88, s{r['col'][0]}, 1\ns_call_b64 s[36:37], L_moe")
        out += [I(f"v_add_f32 v{r['b']+e}, v{108+e}, v{r['b']+e}") for e in range(8 * r['nu'])] + L(f"s_mov_b64 exec, -1\ns_branch L_moe_ret{tag}")
    return out + L(f"""
    L_moe:
    v_min_u32 v104, 27, v0
    v_lshlrev_b32 v104, 2, v104
    s_mov_b32 s64, {WS_FH + 512}
    """) + poll_flags(64, 64, "L_pfy", 105, 104, 65) + L(f"""
    s_or_b64 exec, s[80:81], s[82:83]
    v_mov_b32 v104, 1792
    v_cndmask_b32 v104, v104, 0, s[80:81]
    v_lshl_add_u32 v104, v11, 5, v104
    s_add_u32 s88, s88, {WS_YF}
    buffer_load_dwordx4 v[108:111], v104, {WS}, s88 offen sc1
    buffer_load_dwordx4 v[112:115], v104, {WS}, s88 offen offset:16 sc1
    buffer_load_dwordx4 v[116:119], v104, {WS}, s88 offen offset:512 sc1
    buffer_load_dwordx4 v[120:123], v104, {WS}, s88 offen offset:528 sc1
    s_waitcnt vmcnt(0)
    s_setpc_b64 s[36:37]
    """)

def poll2(half):
    ld = lambda v: FOP_LOAD.replace("v9,", f"v{v},")
    tst = lambda v: f"""s_waitcnt vmcnt(1)
    v_cmp_eq_u32 vcc, 1, v{v}
    s_sub_u32 s91, s91, 1
    s_cselect_b32 s70, -1, 0
    s_or_b32 s70, s70, vcc_lo
    s_andn2_b32 s70, s70, s68"""
    return L(f"""
    L_rpoll:
    {ld(9)}
    s_sleep {half}
    L_rpoll0:
    {ld(105)}
    {tst(9)}
    s_cbranch_scc1 L_rpollx
    {ld(9)}
    {tst(105)}
    s_cbranch_scc0 L_rpoll0
    L_rpollx:
    s_or_b32 s68, s68, s70
    s_setpc_b64 s[36:37]
    """)
```

```python
from common import *
S_WS, S_DBG = 8, 12
sWAVE, sH, sJ = 20, 41, 42
WS = f"s[{S_WS}:{S_WS+3}]"
OOB = 0x20000000

def wave_sum(regs, tmps):
    out = []
    for sh in ("row_ror:8", "row_ror:4", "row_ror:2", "row_ror:1"):
        for r in regs: out.append(I(f"v_add_f32 v{r}, v{r}, v{r} {sh} row_mask:0xf bank_mask:0xf"))
    for sw in ("v_permlane16_swap_b32", "v_permlane32_swap_b32"):
        for r, t in zip(regs, tmps): out.append(I(f"v_mov_b32 v{t}, v{r}"))
        for r, t in zip(regs, tmps): out.append(I(f"{sw} v{t}, v{r}"))
        for r, t in zip(regs, tmps): out.append(I(f"v_add_f32 v{r}, v{t}, v{r}"))
    return out

def sigmoid(r, t):
    return L(f"""v_mul_f32 v{t}, 0xbfb8aa3b, v{r}
    v_exp_f32 v{t}, v{t}
    v_add_f32 v{t}, 1.0, v{t}
    v_rcp_f32 v{r}, v{t}""")

RNT = 'nt'
def r_loads(zero=True):
    return L(f"""
    s_lshl_b32 s64, s2, 2
    s_add_u32 s64, s64, s{sWAVE}
    s_mul_i32 s72, s64, 1792
    """) + [I(f"v_mov_b32 v{40+r}, 0") for r in range(16 if zero else 0)] + L(f"""
    s_mov_b32 exec_hi, 0x00ffffff
    buffer_load_dwordx4 v[40:43], v7, s[56:59], s72 offen {RNT}
    buffer_load_dwordx4 v[44:47], v7, s[56:59], s72 offen offset:896 {RNT}
    buffer_load_dwordx4 v[48:51], v7, s[60:63], 0 offen
    buffer_load_dwordx4 v[52:55], v7, s[68:71], 0 offen
    s_mov_b64 exec, -1
    """)
def r_compute():
    out = [I(f"v_mov_b32 v{56+r}, 0") for r in range(4)]
    for w in range(4):
        for n, (xr, wr) in enumerate(((40, 48), (44, 48), (40, 52), (44, 52))):
            out.append(I(f"v_dot2c_f32_bf16 v{56+n}, v{xr+w}, v{wr+w}"))
    out += wave_sum([56, 57, 58, 59], [60, 61, 62, 63])
    out += L(f"""
    v_cmp_eq_u32 vcc, 0, v0
    v_cndmask_b32 v56, v57, v56, vcc
    v_cndmask_b32 v58, v59, v58, vcc
    s_lshl_b32 s64, s2, 3
    s_lshl_b32 s72, s{sWAVE}, 1
    s_add_u32 s64, s64, s72
    v_add_u32 v60, s64, v0
    v_ashrrev_i32 v61, 31, v56
    v_or_b32 v61, 0x80000000, v61
    v_xor_b32 v61, v61, v56
    v_and_b32 v61, 0xfffff800, v61
    v_sub_u32 v62, 2047, v60
    v_or_b32 v61, v61, v62
    v_max_u32 v61, 1, v61
    """) + sigmoid(58, 59) + L(f"""
    s_lshl_b32 s72, s{sWAVE}, 3
    s_add_u32 s72, s72, {LDS_R}
    v_lshl_add_u32 v60, v0, 2, s72
    s_mov_b64 exec, 3
    ds_write_b32 v60, v61
    ds_write_b32 v60, v56 offset:32
    ds_write_b32 v60, v58 offset:64
    s_mov_b64 exec, -1
    """)
    return out
def r_store(skip):
    return L(f"""
    s_cmp_lg_u32 s{sWAVE}, 0
    s_cbranch_scc1 {skip}
    v_lshlrev_b32 v28, 2, v0
    v_add_u32 v29, {LDS_R}, v28
    s_mov_b32 exec_hi, 0
    ds_read_b32 v29, v29 ; ignore
    s_lshl_b32 s72, s2, 7
    s_add_u32 s72, s72, {WS_R}
    s_waitcnt lgkmcnt(0) ; ignore
    buffer_store_dword v29, v28, {WS}, s72 offen sc1 ; nocount
    s_mov_b64 exec, -1
    s_cmp_ge_u32 s2, 13
    s_cbranch_scc1 {skip}
    v_mov_b32 v32, 0
    v_mov_b32 v33, 0
    v_mov_b32 v34, 0
    v_mov_b32 v35, 0
    s_lshl_b32 s72, s2, 10
    s_add_u32 s72, s72, {WS_FKV}
    buffer_store_dwordx4 v[32:35], v7, {WS}, s72 offen sc1 ; nocount
    {skip}:
    """)
def r_signal(skip):
    return L(f"""
    s_cmp_lg_u32 s{sWAVE}, 0
    s_cbranch_scc1 {skip}
    v_mov_b32 v28, 1
    s_mov_b64 exec, 1
    buffer_atomic_add v28, off, s[{S_DBG}:{S_DBG+3}], 0 sc1 ; nocount
    s_mov_b64 exec, -1
    {skip}:
    """)

def wo_dma():
    out = L(f"""
    v_lshrrev_b32 v28, 5, v0
    v_mul_u32_u24 v28, 896, v28
    v_and_b32 v29, 31, v0
    v_lshl_add_u32 v28, v29, 4, v28
    s_lshr_b32 s64, s{sJ}, 1
    s_lshl_b32 s64, s64, 5
    s_lshl_b32 s72, s{sH}, 8
    s_add_u32 s64, s64, s72
    s_lshl_b32 s72, s{sWAVE}, 3
    s_add_u32 s64, s64, s72
    s_mul_i32 s64, s64, 896
    s_and_b32 s72, s{sJ}, 1
    s_mul_i32 s72, s72, 448
    s_add_u32 s64, s64, s72
    s_lshl_b32 s72, s{sWAVE}, 12
    s_add_u32 m0, s72, 131072
    s_mov_b32 exec_lo, 0x0fffffff
    s_mov_b32 exec_hi, 0x0fffffff
    """)
    for j in range(4):
        out.append(I(f"buffer_load_dwordx4 v28, s[60:63], s64 offen offset:{1024*j} lds", tag="WO"))
        if j < 3: out.append(I(f"s_add_u32 s64, s64, {2*896 - 1024}"))
    out.append(I("s_mov_b64 exec, -1"))
    return out
def wo_setup():
    out = L(f"""
    v_and_b32 v28, 15, v0
    v_lshrrev_b32 v29, 4, v0
    v_lshrrev_b32 v30, 2, v28
    v_lshl_add_u32 v29, v29, 2, v30
    v_lshlrev_b32 v29, 9, v29
    v_and_b32 v28, 3, v28
    v_lshl_add_u32 v29, v28, 4, v29
    s_lshr_b32 s64, s{sWAVE}, 1
    s_lshl_b32 s64, s64, 6
    s_and_b32 s72, s{sWAVE}, 1
    s_lshl_b32 s72, s72, 3
    s_add_u32 s64, s64, s72
    s_add_u32 s64, s64, 131072
    v_add_u32 v31, s64, v29
    s_lshl_b32 s73, s{sH}, 18
    s_lshr_b32 s64, s{sJ}, 1
    s_lshl_b32 s64, s64, 10
    s_add_u32 s73, s73, s64
    s_add_u32 s73, s73, {WS_WO}
    s_and_b32 s74, s{sJ}, 1
    s_mul_i32 s74, s74, 14
    s_add_u32 s74, s74, s{sWAVE}
    """)
    for n in range(4):
        out += L(f"""
        s_add_u32 s64, s74, {4*n}
        s_lshr_b32 s72, s64, 2
        s_lshl_b32 s72, s72, 15
        s_and_b32 s64, s64, 3
        s_lshl_b32 s64, s64, 13
        s_add_u32 s72, s73, s72
        s_add_u32 s{76+n}, s72, s64
        """)
    out += L(f"""
    s_cmp_lt_u32 s{sWAVE}, 2
    s_cselect_b64 s[74:75], -1, 0
    """)
    return out
def wo_reads():
    return [I(f"ds_read_b64_tr_b16 a[{192+4*n+2*j}:{193+4*n+2*j}], v31 offset:{n*128 + j*8192}") for n in range(4) for j in range(2)]
def wo_stores():
    st = [[I(f"buffer_store_dwordx4 a[{176+4*n}:{179+4*n}], v7, {WS}, s{76+n} offen sc1" + (" ; nocount" if n == 3 else ""))] for n in range(4)]
    st[3] = [I("s_mov_b64 exec, s[74:75]")] + st[3] + [I("s_mov_b64 exec, -1")]
    return st

def set_flag(addr_sreg, skip, vt):
    return L(f"""
    s_cmp_lg_u32 s{sWAVE}, 0
    s_cbranch_scc1 {skip}
    v_mov_b32 v{vt}, 1
    s_mov_b64 exec, 1
    buffer_store_dword v{vt}, off, {WS}, s{addr_sreg} sc1 ; nocount
    s_mov_b64 exec, -1
    {skip}:
    """)
def poll_flags(addr_sreg, nl, label, vt, va, sc):
    return L(f"""
    s_mov_b32 s{sc}, {SPIN_MAX}
    s_mov_b32 exec_lo, {hex(((1 << nl) - 1) & 0xffffffff)}
    s_mov_b32 exec_hi, {hex(((1 << nl) - 1) >> 32)}
    {label}:
    buffer_load_dword v{vt}, v{va}, {WS}, s{addr_sreg} offen sc1
    s_sub_u32 s{sc}, s{sc}, 1
    s_cbranch_scc1 {label}_x
    s_waitcnt vmcnt(0)
    v_cmp_ne_u32 vcc, 1, v{vt}
    s_cbranch_vccz {label}_x
    s_sleep 2
    s_branch {label}
    {label}_x:
    s_waitcnt vmcnt(0)
    s_mov_b64 exec, -1
    """)
def poll_count(label, vt, sc, n):
    return L(f"""
    s_mov_b32 s{sc}, {SPIN_MAX}
    {label}:
    buffer_load_dword v{vt}, off, s[{S_DBG}:{S_DBG+3}], 0 sc1
    s_sub_u32 s{sc}, s{sc}, 1
    s_cbranch_scc1 {label}_x
    s_waitcnt vmcnt(0)
    v_cmp_gt_u32 vcc, {n}, v{vt}
    s_cbranch_vccnz {label}
    {label}_x:
    s_waitcnt vmcnt(0)
    """)

def h_keys(vl16):
    return [I(f"buffer_load_dwordx4 v[{64+4*n}:{67+4*n}], v{vl16}, {WS}, s{90 + n // 4} offen offset:{(n & 3) * 1024} sc1") for n in range(8)]
def h_keymin():
    out = L("v_min3_u32 v14, v64, v65, v66")
    for n in range(3, 31, 2): out += L(f"v_min3_u32 v14, v14, v{64+n}, v{65+n}")
    return out + L("v_min_u32 v14, v14, v95\nv_cmp_eq_u32 vcc, 0, v14")
def h_stub(vl16):
    return (L(f"L_hs:\ns_mov_b32 s64, {SPIN_MAX}\nL_hs_l:") + h_keys(vl16) + L("s_waitcnt vmcnt(0)\ns_sub_u32 s64, s64, 1\ns_cbranch_scc1 L_hr") +
            h_keymin() + L("s_cbranch_vccnz L_hs_l\ns_branch L_hr"))
def h_block(vl16, lds=65536, after=()):
    out = L(f"""
    s_load_dwordx4 s[64:67], s[0:1], {A_WG}
    s_load_dwordx2 s[72:73], s[0:1], {A_WD}
    s_load_dwordx2 s[74:75], s[0:1], {A_X}
    s_and_b32 s76, s{sH}, 7
    s_mul_i32 s76, s76, 14
    s_lshr_b32 s77, s{sH}, 3
    s_mul_i32 s77, s77, 7
    s_add_u32 s76, s76, s77
    s_add_u32 s76, s76, s{sJ}
    s_mov_b32 s90, {WS_KEY}
    s_mov_b32 s91, {WS_KEY + 4096}
    """)
    out += h_keys(vl16)
    out += L(f"""
    {srd(52, 64, 448*3584)}
    {srd(56, 66, 448*3584)}
    {srd(60, 72, 1792*896)}
    {srd(68, 74, 2048*896)}
    v_lshrrev_b32 v10, 1, v0
    v_mul_u32_u24 v10, 3584, v10
    v_and_b32 v11, 1, v0
    v_lshl_add_u32 v10, v11, 4, v10
    s_lshl_b32 s77, s76, 5
    s_and_b32 s78, s{sWAVE}, 1
    s_mul_i32 s79, s78, {7 * 32 * 3584}
    s_add_u32 s77, s77, s79
    s_mul_i32 s79, s{sWAVE}, 7168
    s_add_u32 s79, s79, {lds}
    s_cmp_lt_u32 s{sWAVE}, 2
    s_cselect_b32 s52, s52, s56
    s_cselect_b32 s53, s53, s57
    """)
    for n in range(7):
        out += L(f"""s_add_u32 m0, s79, {n * 1024}
        s_nop 0""") + [I(f"buffer_load_dwordx4 v10, s[52:55], s77 offen lds", tag="HW")] + L(f"s_add_u32 s77, s77, {32 * 3584}")
    out += L(f"""
    v_lshlrev_b32 v11, 2, v0
    s_mul_i32 s77, s76, {16 * 896}
    s_mul_i32 s78, s{sWAVE}, 224
    s_add_u32 s77, s77, s78
    s_mov_b32 exec_hi, 0x00ffffff
    """)
    for f in range(16):
        if f and f % 4 == 0: out.append(I(f"s_add_u32 s77, s77, {4 * 896}"))
        out.append(I(f"buffer_load_dword v{100+f}, v11, s[60:63], s77 offen offset:{(f & 3) * 896}"))
    out.append(I("s_mov_b64 exec, -1"))
    out += h_keymin() + L("s_cbranch_vccnz L_hs\nL_hr:")
    out += L("v_max_u32 v12, v64, v65\nv_min_u32 v13, v64, v65")
    for n in range(2, 32):
        out += L(f"v_med3_u32 v13, v12, v13, v{64+n}\nv_max_u32 v12, v12, v{64+n}")
    def merge():
        return L("""v_min_u32 v16, v12, v14
        v_max_u32 v12, v12, v14
        v_max3_u32 v13, v13, v15, v16""")
    for sh in ("row_ror:8", "row_ror:4", "row_ror:2", "row_ror:1"):
        out += L(f"""v_mov_b32 v14, v12 {sh} row_mask:0xf bank_mask:0xf
        v_mov_b32 v15, v13 {sh} row_mask:0xf bank_mask:0xf""") + merge()
    for sw in ("v_permlane16_swap_b32", "v_permlane32_swap_b32"):
        out += L(f"""v_mov_b32 v14, v12
        v_mov_b32 v15, v13
        {sw} v14, v12
        {sw} v15, v13""") + merge()
    out += L(f"""
    v_and_b32 v12, 0x7ff, v12
    v_and_b32 v13, 0x7ff, v13
    v_sub_u32 v12, 2047, v12
    v_sub_u32 v13, 2047, v13
    v_and_b32 v14, 1, v0
    v_cmp_eq_u32 vcc, 0, v14
    v_cndmask_b32 v14, v13, v12, vcc
    v_lshrrev_b32 v17, 3, v14
    v_lshlrev_b32 v17, 4, v17
    v_and_b32 v15, 7, v14
    v_add_lshl_u32 v17, v17, v15, 2
    s_mov_b32 s77, {WS_RG}
    buffer_load_dword v18, v17, {WS}, s77 offen sc1
    v_mul_u32_u24 v15, 896, v14
    v_lshrrev_b32 v16, 4, v0
    v_lshl_add_u32 v15, v16, 4, v15
    """)
    for ks in range(14):
        out.append(I(f"buffer_load_dwordx4 v[{128+4*ks}:{131+4*ks}], v15, s[68:71], 0 offen offset:{64*ks}"))
    out += L(f"""
    v_and_b32 v19, 15, v0
    v_lshrrev_b32 v19, 2, v19
    v_lshl_add_u32 v19, v16, 3, v19
    v_lshlrev_b32 v19, 5, v19
    v_and_b32 v20, 3, v0
    v_lshl_add_u32 v19, v20, 3, v19
    v_add_u32 v19, {lds}, v19
    """) + [WAITV(["HW", "KVST"]), I("s_barrier")] + list(after)
    for mt in range(2):
        for ks in range(14):
            for j in range(2):
                r = mt * 56 + ks * 4 + 2 * j
                out.append(I(f"ds_read_b64_tr_b16 a[{r}:{r+1}], v19 offset:{mt * 14336 + ks * 1024 + j * 128}"))
    for mt in range(2):
        for ks in range(14):
            d = R("v", 24 + 4 * mt, 4)
            out.append(mfma(d, R("v", 128 + 4 * ks, 4), R("a", mt * 56 + ks * 4, 4), d if ks else "0"))
    out += L("""
    v_cvt_pk_bf16_f32 v24, v24, v25
    v_cvt_pk_bf16_f32 v28, v28, v29
    v_lshlrev_b32 v20, 16, v24
    v_and_b32 v21, 0xffff0000, v24
    v_mov_b32 v22, v20
    v_mov_b32 v23, v21
    """) + sigmoid(22, 26) + sigmoid(23, 27) + L("""
    v_mul_f32 v20, v20, v22
    v_mul_f32 v21, v21, v23
    v_cvt_pk_bf16_f32 v24, v20, v21
    v_lshlrev_b32 v20, 16, v24
    v_and_b32 v21, 0xffff0000, v24
    v_lshlrev_b32 v22, 16, v28
    v_and_b32 v23, 0xffff0000, v28
    v_mul_f32 v20, v20, v22
    v_mul_f32 v21, v21, v23
    v_cvt_pk_bf16_f32 v24, v20, v21
    v_lshlrev_b32 v20, 16, v24
    v_and_b32 v21, 0xffff0000, v24
    """)
    out += [I(f"v_mov_b32 v{32+n}, 0") for n in range(4)]
    for f in range(16):
        out += L(f"""v_readlane_b32 s80, v20, {f}
        v_readlane_b32 s81, v21, {f}
        v_lshlrev_b32 v22, 16, v{100+f}
        v_and_b32 v23, 0xffff0000, v{100+f}
        v_fmac_f32 v32, s80, v22
        v_fmac_f32 v33, s80, v23
        v_fmac_f32 v34, s81, v22
        v_fmac_f32 v35, s81, v23""")
    out += L(f"""
    s_mul_i32 s77, s{sWAVE}, 448
    s_mul_i32 s78, s76, 3584
    s_add_u32 s77, s77, s78
    s_add_u32 s77, s77, {WS_Y}
    v_lshlrev_b32 v22, 3, v0
    s_mov_b32 exec_hi, 0x00ffffff
    buffer_store_dwordx2 v[32:33], v22, {WS}, s77 offen sc1
    buffer_store_dwordx2 v[34:35], v22, {WS}, s77 offen offset:1792 sc1
    s_mov_b64 exec, -1
    v_cvt_pk_bf16_f32 v18, v18, v18
    v_and_b32 v18, 0xffff0000, v18
    """) + sigmoid(18, 22) + L(f"""
    v_cvt_pk_bf16_f32 v18, v18, v18
    v_and_b32 v18, 0xffff0000, v18
    s_mov_b32 s77, {WS_SEL}
    s_or_b32 s78, s76, s{sWAVE}
    s_cmp_eq_u32 s78, 0
    s_cselect_b64 exec, 3, 0
    buffer_store_dword v14, v11, {WS}, s77 offen sc1 ; nocount
    buffer_store_dword v18, v11, {WS}, s77 offen offset:8 sc1 ; nocount
    s_mov_b64 exec, -1
    s_lshl_b32 s39, s76, 2
    s_add_u32 s39, s39, {WS_FH}
    """)
    return out

FH0_LOAD = f"buffer_load_dword v24, off, {WS}, s79 sc1"
FOP_LOAD = f"buffer_load_dword v9, v14, {WS}, s46 offen sc1"
EPAR, NE = 0, 7
def sel_a(vl16):
    return L(f"""
    s_mov_b32 s79, {WS_FL}
    {FH0_LOAD}
    v_lshrrev_b32 v0, 4, v{vl16}
    v_and_b32 v14, 15, v0
    v_lshlrev_b32 v14, 2, v14
    v_lshrrev_b32 v11, 4, v0
    {GPERM}
    {srd(52, 96, 2048*896)}
    {f's_and_b32 s74, s{sH}, 1' if EPAR < 2 else f's_lshr_b32 s74, s{sH}, 3'}
    s_xor_b32 s74, s74, {EPAR & 1}
    s_mul_i32 s67, s74, {14 - 2 * NE}
    s_mul_i32 s74, s74, {NE}
    s_add_u32 s74, s74, s{sWAVE}
    s_lshl_b32 s75, s74, 6
    s_add_u32 s76, s75, 256
    s_add_u32 s67, s67, {NE - 5}
    s_sub_u32 s67, s67, s{sWAVE}
    s_and_b32 s67, s67, {OOB}
    s_or_b32 s76, s76, s67
    v_or_b32 v27, s67, v{vl16}
    v_add_u32 v27, 4096, v27
    """)
def sel_b(tag):
    return L(f"""
    v_cmp_gt_u32 vcc, {SELLV}, v24
    s_mov_b32 s65, {WS_SEL}
    s_cbranch_vccnz L_fhs{tag}
    L_fhr{tag}:
    buffer_load_dword v25, v14, {WS}, s65 offen sc1
    """)
def sel_c():
    return L("""
    v_readlane_b32 s84, v25, 0
    v_readlane_b32 s85, v25, 1
    v_mov_b32 v24, 0x3f80
    v_mov_b32 v25, 0x3f800000
    """)
RS = [dict(row=10, off=12, g=15, x=16, b=32, acc=48), dict(row=29, off=28, g=26, x=96, b=80, acc=64)]
OSF = ''
GPERM = ''
SWAP = False
WI = False
ROWMAP = 's_lshl_b32 s73, s72, 4'
SELLV = 4
def red_a(vl16):
    out = L(f"""
    s_lshl_b32 s64, s{sJ}, 1
    s_lshr_b32 s65, s{sH}, 3
    s_add_u32 s46, s64, s65
    s_mul_i32 s46, s46, {FSTR}
    s_and_b32 s65, s{sH}, 7
    s_lshl_b32 s65, s65, 7
    s_add_u32 s46, s46, s65
    s_add_u32 s46, s46, {WS_FOP}
    v_and_b32 v14, 31, v0
    v_lshlrev_b32 v14, 2, v14
    {FOP_LOAD}
    s_sub_u32 s64, 15, s64
    {f's_lshr_b32 s72, s{sH}, 1' if EPAR < 2 else f's_and_b32 s72, s{sH}, 7'}
    s_mul_i32 s77, s{sJ}, {16 * OP_HEAD}
    s_mul_i32 s78, s72, 14336
    s_add_u32 s77, s77, s78
    s_lshl_b32 s78, s74, 10
    s_add_u32 s77, s77, s78
    s_add_u32 s77, s77, {WS_OP}
    s_sub_u32 s78, s64, 1
    s_mul_i32 s78, s78, {16 * OP_HEAD}
    s_add_u32 s78, s78, s77
    {ROWMAP}
    s_lshl_b32 s65, s{sJ}, 7
    s_add_u32 s73, s73, s65
    s_lshl_b32 s64, s64, 7
    v_and_b32 v10, 15, v0
    v_add_u32 v10, s73, v10
    v_add_u32 v29, s64, v10
    s_mov_b32 s64, {WS_RG + 64}
    """)
    for r in RS:
        out += L(f"""
        v_mul_u32_u24 v{r['off']}, 896, v{r['row']}
        v_lshl_add_u32 v{r['off']}, v11, 4, v{r['off']}
        v_lshrrev_b32 v13, 4, v{r['row']}
        v_lshlrev_b32 v13, 5, v13
        v_and_b32 v104, 15, v{r['row']}
        v_add_lshl_u32 v13, v13, v104, 2
        buffer_load_dword v{r['g']}, v13, {WS}, s64 offen sc1
        buffer_load_dwordx4 v[{r['x']}:{r['x']+3}], v{r['off']}, s[56:59], s75 offen
        buffer_load_dwordx4 v[{r['x']+4}:{r['x']+7}], v{r['off']}, s[56:59], s76 offen
        """)
    return out + [I(f"v_mov_b32 v{48+n}, 0") for n in range(32)]
def red_b(t):
    r = RS[t]
    return [i for w in range(8) for i in L(f"v_lshlrev_b32 v{r['b']+2*w}, 16, v{r['x']+w}\nv_and_b32 v{r['b']+1+2*w}, 0xffff0000, v{r['x']+w}")] + L(f"""
    v_sub_f32 v13, 1.0, v{r['g']}
    v_cmp_eq_u32 s[80:81], s84, v{r['row']}
    v_cmp_eq_u32 s[82:83], s85, v{r['row']}
    s_or_b64 vcc, s[80:81], s[82:83]
    s_cbranch_vccnz L_moe{t}
    L_moe_ret{t}:
    """) + [I(f"v_mul_f32 v{r['b']+e}, v13, v{r['b']+e}") for e in range(16)]
def red_main(vl16, st=lambda: [], lag=6, early=True, sent=True):
    out = L(f"""
    v_cmp_eq_u32 vcc, 1, v9
    s_mov_b32 s91, {SPIN_MAX}
    s_mov_b32 s69, 0
    s_mov_b32 s70, vcc_lo
    s_mov_b32 s68, vcc_lo
    """)
    ring = [16, 17, 18, 19, 48, 49, 50, 51]; assert lag < 8
    def acc(k):
        d = lambda t: [i for w in range(8) for i in L(f"v_dot2c_f32_bf16 v{RS[t]['acc']+2*w}, v{128+8*(k%16)+w}, v24\nv_dot2c_f32_bf16 v{RS[t]['acc']+1+2*w}, v{128+8*(k%16)+w}, v25")]
        if sent:
            r = 128 + 8 * (k % 16); d0 = d
            tst = f"v_max3_u32 v13, v{r}, v{r+1}, v{r+2}\nv_max3_u32 v104, v{r+3}, v{r+4}, v{r+5}\nv_max3_u32 v13, v13, v{r+6}, v{r+7}\nv_max_u32 v13, v13, v104\nv_cmp_eq_u32 vcc, -1, v13"
            d = lambda t: d0(0) if t == 0 else L(tst + f"\ns_cbranch_vccnz L_rz{k}\nL_rw{k}:") + d0(1)
            far.extend(L(f"""L_rz{k}:
            buffer_load_dwordx4 v[{r}:{r+3}], v{vl16}, {WS}, s{ring[k % 8]} offen sc1
            buffer_load_dwordx4 v[{r+4}:{r+7}], v27, {WS}, s{ring[k % 8]} offen sc1
            s_waitcnt vmcnt(0)
            {tst}
            s_sub_u32 s91, s91, 1
            s_cbranch_scc1 L_rw{k}
            s_cbranch_vccnz L_rz{k}
            s_branch L_rw{k}"""))
        f = 0 if k < 16 else 1
        return ([NEED(R("v", 128 + 8 * (k % 16), 8))] + L(f"s_bitcmp{1 - f}_b32 s69, {k}\ns_cbranch_scc1 L_rx{k}") + d(f) + L(f"L_ry{k}:"),
                L(f"L_rx{k}:") + d(1 - f) + L(f"s_branch L_ry{k}"))
    def fin(t, note=""):
        r = RS[t]; o = []
        for u in range(2):
            if SWAP: o += [I("s_nop 2")] + [I(f"v_permlane16_swap_b32 v{r['acc']+8*u+e}, v{r['acc']+8*u+4+e}") for e in range(4)]
            o += [I(f"v_fmac_f32 v{r['b']+8*u+e}, v{r['g']}, v{r['acc']+8*u+e}") for e in range(8)]
            o += [I(f"v_cvt_pk_bf16_f32 v{r['x']+4*u+w}, v{r['b']+8*u+2*w}, v{r['b']+1+8*u+2*w}") for w in range(4)]
            o.append(I(f"buffer_store_dwordx4 v[{r['x']+4*u}:{r['x']+3+4*u}], v{r['off']}, s[52:55], s{75+u} offen {OSF}{note}"))
        return o
    far = []
    for k in range(32 + lag):
        if k < 32:
            out += L(f"""s_cmp_lg_u32 s70, 0
            s_cbranch_scc1 L_rk{k}
            s_call_b64 s[36:37], L_rpoll
            L_rk{k}:
            s_ff1_i32_b32 s71, s70
            s_bitset0_b32 s70, s71
            s_cmp_ge_u32 s71, 16
            s_cselect_b32 s72, s78, s77
            s_cselect_b32 s73, {hex(1 << k)}, 0
            {'s_bitcmp1_b32 s71, 3' + chr(10) + f's_cselect_b32 s72, {OOB}, s72' if WI else ''}
            s_mul_i32 s71, s71, {OP_HEAD}
            s_add_u32 s{ring[k % 8]}, s71, s72
            buffer_load_dwordx4 v[{128+8*(k%16)}:{131+8*(k%16)}], v{vl16}, {WS}, s{ring[k % 8]} offen sc1
            s_or_b32 s69, s69, s73
            buffer_load_dwordx4 v[{132+8*(k%16)}:{135+8*(k%16)}], v27, {WS}, s{ring[k % 8]} offen sc1""")
        if k in (1, 2): out += red_b(k - 1)
        if k == 31: out += st()
        if k >= lag:
            a_, f_ = acc(k - lag); out += a_; far += f_
        if early and k == 27:
            out += L(f"""s_and_b32 s71, s69, {hex((1 << (k - lag + 1)) - 1)}
            s_bcnt1_i32_b32 s71, s71
            s_cmp_eq_u32 s71, {k - lag + 1 - 16}
            s_cselect_b32 s66, 1, 0
            s_cbranch_scc0 L_rne""") + fin(0, " ; nocount") + L("L_rne:")
    out += st() + L("s_nop 1") + fin(1)
    if early: out += L("s_cmp_eq_u32 s66, 1\ns_cbranch_scc1 L_rdone")
    out += fin(0) + L("L_rdone:")
    return out, far
RSL = 1
def red_poll():
    return L(f"""
    L_rpoll0:
    s_sleep {RSL}
    L_rpoll:
    {FOP_LOAD}
    s_waitcnt vmcnt(0)
    v_cmp_eq_u32 vcc, 1, v9
    s_sub_u32 s91, s91, 1
    s_cselect_b32 s70, -1, 0
    s_or_b32 s70, s70, vcc_lo
    s_andn2_b32 s70, s70, s68
    s_cbranch_scc0 L_rpoll0
    s_or_b32 s68, s68, s70
    s_setpc_b64 s[36:37]
    """)
def red_moe():
    out = []
    for t in range(2):
        out += L(f"L_moe{t}:\ns_call_b64 s[36:37], L_moe") + [I(f"v_add_f32 v{RS[t]['b']+e}, v{108+e}, v{RS[t]['b']+e}") for e in range(16)] + L(f"s_mov_b64 exec, -1\ns_branch L_moe_ret{t}")
    out += L(f"""
    L_moe:
    v_min_u32 v104, 27, v0
    v_lshlrev_b32 v104, 2, v104
    s_mov_b32 s64, {WS_FH + 512}
    """) + poll_flags(64, 64, "L_pfy", 105, 104, 65) + L(f"""
    s_or_b64 exec, s[80:81], s[82:83]
    v_mov_b32 v104, 1792
    v_cndmask_b32 v104, v104, 0, s[80:81]
    v_lshl_add_u32 v104, v11, 5, v104
    s_lshl_b32 s88, s75, 1
    s_add_u32 s88, s88, {WS_YF}
    buffer_load_dwordx4 v[108:111], v104, {WS}, s88 offen sc1
    buffer_load_dwordx4 v[112:115], v104, {WS}, s88 offen offset:16 sc1
    buffer_load_dwordx4 v[116:119], v104, {WS}, s88 offen offset:512 sc1
    buffer_load_dwordx4 v[120:123], v104, {WS}, s88 offen offset:528 sc1
    s_waitcnt vmcnt(0)
    s_setpc_b64 s[36:37]
    """)
    return out
def y_reduce():
    out = L(f"""
    L_yred:
    s_lshl_b32 s89, s{sH}, 1
    s_add_u32 s89, s89, s{sWAVE}
    s_cmp_ge_u32 s89, 28
    s_cbranch_scc1 L_yred_ret
    v_lshrrev_b32 v20, 4, v7
    v_lshrrev_b32 v21, 3, v20
    v_mul_u32_u24 v21, {FSTR}, v21
    v_and_b32 v22, 7, v20
    v_lshl_add_u32 v21, v22, 7, v21
    s_mov_b32 s64, {WS_FL}
    s_mov_b32 s88, {WS_FL + 8 * FSTR}
    s_mov_b32 s91, {SPIN_MAX}
    L_yp:
    buffer_load_dword v22, v21, {WS}, s64 offen sc1
    buffer_load_dword v23, v21, {WS}, s88 offen sc1
    s_waitcnt vmcnt(0)
    v_min_u32 v22, v22, v23
    v_cmp_gt_u32 vcc, 4, v22
    s_sub_u32 s91, s91, 1
    s_cbranch_scc1 L_ypx
    s_cbranch_vccnz L_yp
    L_ypx:
    s_cmp_lt_u32 s89, 14
    s_cselect_b32 s64, 8, 12
    s_add_u32 s64, s64, {WS_SEL}
    buffer_load_dword v23, off, {WS}, s64 sc1
    v_lshrrev_b32 v21, 3, v20
    v_mul_u32_u24 v21, 3584, v21
    v_and_b32 v22, 7, v20
    v_lshl_add_u32 v21, v22, 4, v21
    s_lshl_b32 s88, s89, 7
    s_add_u32 s90, s88, {WS_YF}
    s_add_u32 s88, s88, {WS_Y}
    """)
    for n in range(14):
        out += L(f"buffer_load_dwordx4 v[{64+4*n}:{67+4*n}], v21, {WS}, s88 offen sc1\ns_add_u32 s88, s88, {8 * 3584}")
    out += L("s_branch L_yred_ret\nL_yred2:\ns_cmp_ge_u32 s89, 28\ns_cbranch_scc1 L_yred2_ret\nv_mov_b32 v22, 1\ns_waitcnt vmcnt(0)")
    acc = [64 + e for e in range(4)]
    for n in range(1, 14): out += [I(f"v_add_f32 v{a}, v{a + 4 * n}, v{a}") for a in acc]
    out += [I(f"v_add_f32 v{a}, v{a}, v{a} row_ror:8 row_mask:0xf bank_mask:0xf") for a in acc]
    for sw in ("v_permlane16_swap_b32", "v_permlane32_swap_b32"):
        out += [I(f"v_mov_b32 v{a + 4}, v{a}") for a in acc]
        out += [I(f"{sw} v{a + 4}, v{a}") for a in acc]
        out += [I(f"v_add_f32 v{a}, v{a + 4}, v{a}") for a in acc]
    for rep in range(2):
        for p in (64, 66):
            out += L(f"v_cvt_pk_bf16_f32 v21, v{p}, v{p+1}\nv_lshlrev_b32 v{p}, 16, v21\nv_and_b32 v{p+1}, 0xffff0000, v21")
        if rep == 0: out += [I(f"v_mul_f32 v{a}, v23, v{a}") for a in acc]
    out += L(f"""
    s_mov_b64 exec, 0xff
    buffer_store_dwordx4 v[64:67], v7, {WS}, s90 offen sc1
    s_lshl_b32 s89, s89, 2
    s_add_u32 s89, s89, {WS_FH + 512}
    s_mov_b64 exec, 1
    s_waitcnt vmcnt(0)
    buffer_store_dword v22, off, {WS}, s89 sc1
    s_mov_b64 exec, -1
    s_branch L_yred2_ret
    """)
    return out


JUNK = 240
NTT = "nt"
def touch(vaddr, srdreg, soff, imm=0, nt=True):
    return I(f"buffer_load_dword a{JUNK}, v{vaddr}, s[{srdreg}:{srdreg+3}], {soff} offen offset:{imm} {NTT if nt else ('sc1' if srdreg == S_WS else '')}", tag="TOUCH")
def code_addr(v, t):
    if v == t: return L(f"v_and_b32 v{v}, 48, v0\nv_lshlrev_b32 v{v}, 17, v{v}\nv_or_b32 v{v}, v{v}, v0\nv_lshl_add_u32 v{v}, v{v}, 7, s95")
    return L(f"""
    v_lshl_add_u32 v{t}, v0, 7, s95
    v_and_b32 v{v}, 48, v0
    v_lshl_add_u32 v{v}, v{v}, 24, v{t}
    """)
def code_touch():
    return L(f"""
    s_getpc_b64 s[76:77]
    L_pc0:
    s_and_b32 s77, s77, 0xffff
    s_mov_b32 s78, L_code_end-L_pc0
    s_mov_b32 s79, 0x20000
    s_lshr_b32 s64, s2, 3
    s_lshl_b32 s64, s64, 2
    s_add_u32 s64, s64, s{sWAVE}
    s_lshl_b32 s95, s64, 11
    """) + code_addr(28, 29) + [touch(28, 76, 0, nt=False)]
def kv_touch_setup(sKV):
    return L(f"""
    s_lshr_b32 s64, s{sH}, 3
    s_lshl_b32 s64, s64, 1
    s_add_u32 s64, s64, s{sKV}
    s_lshl_b32 s64, s64, 2
    s_add_u32 s64, s64, s{sWAVE}
    s_lshl_b32 s64, s64, 15
    v_lshrrev_b32 v28, 1, v0
    v_and_b32 v29, 1, v0
    v_lshlrev_b32 v29, 7, v29
    v_lshl_add_u32 v28, v28, 11, v29
    v_add_u32 v24, s64, v28
    v_and_b32 v28, 32, v0
    v_lshl_add_u32 v24, v28, 24, v24
    s_lshr_b32 s64, s{sJ}, 1
    s_lshl_b32 s64, s64, 2
    s_add_u32 s64, s64, s{sWAVE}
    s_lshl_b32 s64, s64, 15
    v_lshrrev_b32 v28, 2, v0
    v_and_b32 v29, 3, v0
    v_lshlrev_b32 v29, 7, v29
    v_lshl_add_u32 v28, v28, 13, v29
    v_add_u32 v25, s64, v28
    v_and_b32 v28, 48, v0
    v_lshl_add_u32 v25, v28, 24, v25
    """)
def kv_touch(sc, sw):
    return [touch(24, sc, 0), touch(25, sw, 0), I("v_add_u32 v24, 256, v24"), I(f"v_add_u32 v25, {128 * 8192}, v25")]
def q_touch(swq, sx, px):
    pre = L(f"""
    s_lshl_b32 s64, s{sJ}, 2
    s_add_u32 s64, s64, s{sWAVE}
    s_mul_i32 s64, s64, {7 * 8192}
    v_lshrrev_b32 v28, 2, v0
    v_and_b32 v29, 3, v0
    v_lshlrev_b32 v29, 7, v29
    v_lshl_add_u32 v28, v28, 13, v29
    v_add_u32 v16, s64, v28
    v_mov_b32 v29, 0x20000000
    v_cmp_gt_u32 vcc, 28, v0
    s_lshl_b32 s64, s{sJ}, 1
    s_lshr_b32 s72, s{sH}, 3
    v_cndmask_b32 v16, v29, v16, vcc
    s_add_u32 s64, s64, s72
    s_lshl_b32 s64, s64, 2
    s_add_u32 s64, s64, s{sWAVE}
    s_mul_i32 s64, s64, 14336
    v_lshl_add_u32 v17, v0, 7, s64
    v_cmp_gt_u32 vcc, 56, v0
    s_nop 1
    v_cndmask_b32 v17, v29, v17, vcc
    s_mov_b32 s67, 7168
    """)
    return pre, [touch(16, swq, 0)] + ([touch(17, sx, 0), touch(17, sx, "s67")] if px else [])
def h_touch_srd():
    return L(f"""
    s_load_dwordx4 s[80:83], s[0:1], {A_WG}
    s_load_dwordx2 s[84:85], s[0:1], {A_WD}
    """)
def h_touch():
    return L(f"""
    s_lshr_b32 s64, s2, 3
    s_lshl_b32 s64, s64, 2
    s_add_u32 s64, s64, s{sWAVE}
    s_cmp_lt_u32 s64, 64
    s_cselect_b32 s72, s80, s82
    s_cselect_b32 s73, s81, s83
    {srd(60, 72, 448*3584)}
    {srd(68, 84, 1792*896)}
    s_and_b32 s72, s64, 63
    s_mul_i32 s72, s72, {7 * 3584}
    s_and_b32 s73, s{sH}, 7
    s_mul_i32 s74, s73, 448
    s_add_u32 s72, s72, s74
    s_and_b32 s72, s72, 0xffffff80
    v_lshrrev_b32 v28, 2, v0
    v_mul_u32_u24 v28, 3584, v28
    v_and_b32 v29, 3, v0
    v_lshl_add_u32 v28, v29, 7, v28
    v_add_u32 v28, s72, v28
    v_mov_b32 v29, 0x20000000
    v_cmp_gt_u32 vcc, 28, v0
    s_mul_i32 s73, s73, {224 * 896}
    s_mul_i32 s64, s64, 1664
    v_cndmask_b32 v30, v29, v28, vcc
    s_add_u32 s64, s64, s73
    v_lshl_add_u32 v28, v0, 7, s64
    v_cmp_gt_u32 vcc, 13, v0
    s_nop 1
    v_cndmask_b32 v31, v29, v28, vcc
    """), [touch(30, 60, 0), touch(31, 68, 0)]


def bg_r_loads():
    return L(f"""
    s_lshl_b32 s64, s2, 2
    s_add_u32 s64, s64, s{sWAVE}
    s_mul_i32 s72, s64, 1792
    v_mov_b32 v28, {OOB}
    v_cmp_gt_u32 vcc, 56, v0
    s_nop 0
    v_cndmask_b32 v28, v28, v7, vcc
    buffer_load_dwordx4 v[16:19], v28, s[56:59], s72 offen
    buffer_load_dwordx4 v[20:23], v28, s[56:59], s72 offen offset:896
    buffer_load_dwordx4 a[176:179], v28, s[60:63], 0 offen
    buffer_load_dwordx4 a[180:183], v28, s[68:71], 0 offen
    """)
def bg_r_compute():
    out = [I(f"v_mov_b32 v{28+r}, 0") for r in range(4)]
    for w in range(4):
        out += L(f"""v_accvgpr_read_b32 v26, a{176+w}
        v_accvgpr_read_b32 v27, a{180+w}
        v_dot2c_f32_bf16 v28, v{16+w}, v26
        v_dot2c_f32_bf16 v29, v{20+w}, v26
        v_dot2c_f32_bf16 v30, v{16+w}, v27
        v_dot2c_f32_bf16 v31, v{20+w}, v27""")
    out += wave_sum([28, 29, 30, 31], [16, 17, 18, 19])
    out += L(f"""
    v_cmp_eq_u32 vcc, 0, v0
    s_lshl_b32 s64, s2, 3
    s_lshl_b32 s72, s{sWAVE}, 1
    v_cndmask_b32 v28, v29, v28, vcc
    v_cndmask_b32 v30, v31, v30, vcc
    s_add_u32 s64, s64, s72
    v_add_u32 v16, s64, v0
    v_ashrrev_i32 v17, 31, v28
    v_or_b32 v17, 0x80000000, v17
    v_xor_b32 v17, v17, v28
    v_and_b32 v17, 0xfffff800, v17
    v_sub_u32 v18, 2047, v16
    v_or_b32 v17, v17, v18
    """) + sigmoid(30, 31) + L(f"""
    s_lshl_b32 s72, s{sWAVE}, 3
    s_add_u32 s72, s72, {LDS_R}
    v_lshl_add_u32 v16, v0, 2, s72
    v_mov_b32 v18, {LDS_R + 128}
    v_cmp_gt_u32 vcc, 2, v0
    s_nop 0
    v_cndmask_b32 v16, v18, v16, vcc
    ds_write_b32 v16, v17
    ds_write_b32 v16, v28 offset:32
    ds_write_b32 v16, v30 offset:64
    """)
    return out
def bg_r_store():
    return L(f"""
    v_and_b32 v16, 31, v0
    v_lshlrev_b32 v16, 2, v16
    v_add_u32 v17, {LDS_R}, v16
    ds_read_b32 v17, v17
    s_cmp_eq_u32 s{sWAVE}, 0
    s_cselect_b32 s64, 0, {OOB}
    v_and_b32 v18, 32, v0
    v_lshl_add_u32 v16, v18, 24, v16
    v_or_b32 v16, s64, v16
    s_lshl_b32 s72, s2, 7
    s_add_u32 s72, s72, {WS_R}
    s_cmp_lt_u32 s2, 14
    s_cselect_b32 s64, s64, {OOB}
    v_or_b32 v18, s64, v7
    v_mov_b32 v20, 0
    v_mov_b32 v21, 0
    v_mov_b32 v22, 0
    v_mov_b32 v23, 0
    s_and_b32 s73, s2, 15
    s_lshl_b32 s73, s73, 10
    s_add_u32 s73, s73, {WS_FKV}
    buffer_store_dword v17, v16, {WS}, s72 offen sc1
    """) + [I(f"buffer_store_dwordx4 v[20:23], v18, {WS}, s73 offen sc1", tag="RST")]
def lane0_wave0(v):
    return L(f"""
    v_or_b32 v{v}, s{sWAVE}, v0
    v_min_u32 v{v}, 1, v{v}
    v_lshlrev_b32 v{v}, 29, v{v}
    """)
def bg_r_signal():
    return lane0_wave0(16) + L("v_mov_b32 v17, 1") + [WAITV("RST"), I(f"buffer_atomic_add v17, v16, s[{S_DBG}:{S_DBG+3}], 0 offen sc1")]
def bg_wo_dma():
    pre = L(f"""
    v_lshrrev_b32 v28, 5, v0
    v_mul_u32_u24 v28, 896, v28
    v_and_b32 v29, 31, v0
    v_lshl_add_u32 v28, v29, 4, v28
    v_mov_b32 v30, {OOB}
    v_cmp_gt_u32 vcc, 28, v29
    s_lshr_b32 s64, s{sJ}, 1
    s_lshl_b32 s64, s64, 5
    v_cndmask_b32 v28, v30, v28, vcc
    s_lshl_b32 s72, s{sH}, 8
    s_add_u32 s64, s64, s72
    s_lshl_b32 s72, s{sWAVE}, 3
    s_add_u32 s64, s64, s72
    s_mul_i32 s64, s64, 896
    s_and_b32 s72, s{sJ}, 1
    s_mul_i32 s72, s72, 448
    s_add_u32 s67, s64, s72
    v_add_u32 v29, {2*896 - 1024}, v28
    v_add_u32 v30, {2*(2*896 - 1024)}, v28
    v_add_u32 v31, {3*(2*896 - 1024)}, v28
    """)
    un = [I("s_add_u32 m0, s23, 131072")] + [I(f"buffer_load_dwordx4 v{28+j}, s[60:63], s67 offen offset:{1024*j} nt lds", tag="WO") for j in range(4)] + [I("s_nop 0")]
    return pre, un
def bg_wo_finish():
    out = wo_setup()[:-2] + L(f"""
    s_cmp_lt_u32 s{sWAVE}, 2
    s_cselect_b32 s75, 0, {OOB}
    """) + wo_reads()
    st = [I(f"buffer_store_dwordx4 a[{192+4*n}:{195+4*n}], v{24 if n == 3 else 7}, {WS}, s{76+n} offen sc1", tag="KVST") for n in range(4)]
    return out, [I('v_or_b32 v24, s75, v7')] + st
def c_touch_setup():
    return L(f"""
    s_lshl_b32 s64, s2, 2
    s_add_u32 s64, s64, s{sWAVE}
    s_lshl_b32 s64, s64, 12
    v_lshrrev_b32 v28, 2, v0
    v_and_b32 v29, 3, v0
    v_lshlrev_b32 v29, 7, v29
    v_lshl_add_u32 v28, v28, 11, v29
    v_add_u32 v24, s64, v28
    v_and_b32 v28, 56, v0
    v_lshl_add_u32 v24, v28, 24, v24
    """)
def w_touch_setup(t0, t1):
    return L(f"""
    s_and_b32 s64, s{sJ}, 7
    s_lshl_b32 s64, s64, 2
    s_add_u32 s64, s64, s{sWAVE}
    s_lshl_b32 s64, s64, 14
    v_lshrrev_b32 v{t0}, 2, v0
    v_and_b32 v{t1}, 3, v0
    v_lshlrev_b32 v{t1}, 7, v{t1}
    v_lshl_add_u32 v{t0}, v{t0}, 13, v{t1}
    v_add_u32 v{t1}, s64, v{t0}
    v_and_b32 v{t0}, 56, v0
    v_lshl_add_u32 v{t0}, v{t0}, 24, v{t1}
    v_accvgpr_write_b32 a241, v{t0}
    """)
def w_touch(sw, t):
    return [I(f"s_mov_b32 s65, {t * 64 * 8192}"), I("v_accvgpr_read_b32 v26, a241"), touch(26, sw, "s65")]
def c_touch(sc, quarter):
    return [touch(24, sc, 0, quarter * 512, nt=False)]


def z_store():
    return L(f"""
    s_lshl_b32 s64, s{sJ}, 4
    s_add_u32 s64, s64, s{sH}
    s_lshl_b32 s64, s64, 2
    s_add_u32 s64, s64, s{sWAVE}
    s_cmp_lt_u32 s64, {NZERO}
    s_cselect_b32 s39, 0, {OOB}
    s_min_u32 s64, s64, {NZERO}
    s_lshl_b32 s38, s64, 2
    s_max_u32 s67, s64, 8
    s_sub_u32 s67, s67, 8
    s_mul_i32 s67, s67, {FSTR - 1024}
    s_lshl_b32 s64, s64, 10
    s_add_u32 s64, s64, s67
    s_add_u32 s73, s64, {WS_KEY}
    v_or_b32 v64, s39, v7
    v_mov_b32 v68, 0
    v_mov_b32 v69, 0
    v_mov_b32 v70, 0
    v_mov_b32 v71, 0
    """) + [I(f"buffer_store_dwordx4 v[68:71], v64, {WS}, s73 offen offset:{1024 * n} sc1", tag="ZST") for n in range(3)]
def z_signal():
    return L(f"""
    v_min_u32 v16, 1, v0
    v_lshlrev_b32 v16, 29, v16
    v_or_b32 v16, s39, v16
    v_mov_b32 v17, 1
    """) + [WAITV("ZST"), I(f"buffer_store_dword v17, v16, s[{S_DBG}:{S_DBG+3}], s38 offen offset:64 sc1")]
def z_load():
    return L(f"""
    v_min_u32 v16, {NZERO - 1 + 16 * NUMA.on}, v0
    v_lshlrev_b32 v16, 2, v16
    buffer_load_dword v17, v16, s[{S_DBG}:{S_DBG+3}], 0 offen offset:{0 if NUMA.on else 64} sc1
    """)
def z_check(tag):
    return L(f"""
    v_cmp_eq_u32 vcc, 0, v17
    s_nop 0
    s_cbranch_vccnz L_zs{tag}
    L_zr{tag}:
    """)
def spin_stub(label, ret, load, vt, sc=64, cmp_="v_cmp_ne_u32 vcc, 1, v{vt}"):
    return L(f"""
    {label}:
    s_mov_b32 s{sc}, {SPIN_MAX}
    {label}_l:
    s_sleep 2
    {load}
    s_sub_u32 s{sc}, s{sc}, 1
    s_cbranch_scc1 {label}_x
    s_waitcnt vmcnt(0)
    {cmp_.format(vt=vt)}
    s_cbranch_vccnz {label}_l
    {label}_x:
    s_waitcnt vmcnt(0)
    s_branch {ret}
    """)
def z_stub(tag):
    return spin_stub(f"L_zs{tag}", f"L_zr{tag}", f"buffer_load_dword v17, v16, s[{S_DBG}:{S_DBG+3}], 0 offen offset:{0 if NUMA.on else 64} sc1", 17, 64, "v_cmp_eq_u32 vcc, 0, v{vt}")
def rg_store():
    return L(f"""
    v_and_b32 v20, 31, v0
    v_lshlrev_b32 v20, 2, v20
    v_add_u32 v21, {LDS_R}, v20
    ds_read_b32 v19, v21
    ds_read_b32 v21, v21 offset:32
    s_cmp_eq_u32 s{sWAVE}, 0
    s_cselect_b32 s64, 0, {OOB}
    v_mov_b32 v22, {OOB}
    v_or_b32 v20, s64, v20
    v_cmp_gt_u32 vcc, 8, v0
    s_lshl_b32 s72, s2, 6
    s_add_u32 s72, s72, {WS_RG}
    v_cndmask_b32 v18, v22, v20, vcc
    v_cmp_gt_u32 vcc, 16, v0
    s_nop 0
    s_nop 0
    v_cndmask_b32 v20, v22, v20, vcc
    """) + [I(f"buffer_store_dword v21, v20, {WS}, s72 offen sc1", tag="RST")]
def key_store():
    return L(f"""
    s_lshl_b32 s72, s2, 5
    s_add_u32 s72, s72, {WS_KEY}
    """) + [WAITV("RST"), I(f"buffer_store_dword v19, v18, {WS}, s72 offen sc1")]
def lanes8(v):
    return f"v_and_b32 v28, 56, v0\nv_lshl_add_u32 v{v}, v28, 24, v{v}"
def wo_touch():
    pre = L(f"""
    s_lshr_b32 s64, s{sJ}, 1
    s_lshl_b32 s64, s64, 5
    s_lshl_b32 s72, s{sH}, 8
    s_add_u32 s64, s64, s72
    s_lshl_b32 s72, s{sWAVE}, 3
    s_add_u32 s64, s64, s72
    s_mul_i32 s64, s64, 896
    s_and_b32 s72, s{sJ}, 1
    s_mul_i32 s72, s72, 384
    s_add_u32 s64, s64, s72
    v_bfe_u32 v28, v0, 2, 2
    v_mul_u32_u24 v28, 896, v28
    v_and_b32 v29, 3, v0
    v_lshl_add_u32 v28, v29, 7, v28
    v_add_u32 v23, s64, v28
    v_and_b32 v28, 48, v0
    v_lshl_add_u32 v23, v28, 24, v23
    """)
    return pre, [[touch(23, 60, 0, n * 3584)] for n in range(2)]
def q_touch2(swq):
    pre = L(f"""
    s_lshl_b32 s64, s{sJ}, 2
    s_add_u32 s64, s64, s{sWAVE}
    s_mul_i32 s64, s64, {7 * 8192}
    v_bfe_u32 v28, v0, 2, 2
    v_and_b32 v29, 3, v0
    v_lshlrev_b32 v29, 7, v29
    v_lshl_add_u32 v28, v28, 13, v29
    v_add_u32 v23, s64, v28
    v_and_b32 v28, 48, v0
    v_lshl_add_u32 v23, v28, 24, v23
    """)
    return pre, [[touch(23, swq, 0), I(f"v_add_u32 v23, {4 * 8192}, v23")], [touch(23, swq, 0)]]
def h_touch2():
    pre = L(f"""
    s_lshr_b32 s64, s2, 3
    s_lshl_b32 s64, s64, 2
    s_add_u32 s64, s64, s{sWAVE}
    s_cmp_lt_u32 s64, 64
    s_cselect_b32 s72, s80, s82
    s_cselect_b32 s73, s81, s83
    {srd(60, 72, 448*3584)}
    {srd(68, 84, 1792*896)}
    s_and_b32 s72, s64, 63
    s_mul_i32 s72, s72, {7 * 3584}
    s_and_b32 s73, s{sH}, 7
    s_mul_i32 s74, s73, 448
    s_add_u32 s72, s72, s74
    s_and_b32 s72, s72, 0xffffff80
    v_bfe_u32 v28, v0, 2, 2
    v_mul_u32_u24 v28, 3584, v28
    v_and_b32 v29, 3, v0
    v_lshl_add_u32 v28, v29, 7, v28
    v_add_u32 v21, s72, v28
    v_and_b32 v28, 48, v0
    v_lshl_add_u32 v21, v28, 24, v21
    s_mul_i32 s73, s73, {224 * 896}
    s_mul_i32 s64, s64, 1664
    s_add_u32 s64, s64, s73
    v_lshl_add_u32 v22, v0, 7, s64
    v_lshl_add_u32 v22, v28, 24, v22
    """)
    return pre, [[touch(21, 60, 0), I(f"v_add_u32 v21, {4 * 3584}, v21")], [touch(21, 60, 0)], [touch(22, 68, 0)]]

def x_touch():
    pre = L(f"""
    s_xor_b32 s64, s2, 1
    s_lshl_b32 s64, s64, 2
    s_add_u32 s64, s64, s{sWAVE}
    s_mul_i32 s64, s64, 1792
    v_lshl_add_u32 v23, v0, 7, s64
    v_mov_b32 v28, {OOB}
    v_cmp_gt_u32 vcc, 14, v0
    s_nop 0
    s_nop 0
    v_cndmask_b32 v23, v28, v23, vcc
    """)
    return pre, [[touch(23, 56, 0, nt=False)]]

def x_touch2():
    pre = L(f"""
    s_lshl_b32 s64, s{sJ}, 1
    s_lshr_b32 s72, s{sH}, 3
    s_add_u32 s64, s64, s72
    s_lshl_b32 s64, s64, 2
    s_add_u32 s64, s64, s{sWAVE}
    s_mul_i32 s64, s64, 14336
    v_lshl_add_u32 v25, v0, 7, s64
    v_mov_b32 v28, {OOB}
    v_cmp_gt_u32 vcc, 28, v0
    s_nop 0
    s_nop 0
    v_cndmask_b32 v25, v28, v25, vcc
    """)
    return pre, [[touch(25, 56, 0, nt=False), I("v_add_u32 v25, 3584, v25")] for n in range(4)]
def flag_store(addr_sreg, va, vt, tag=None):
    return I(f"buffer_store_dword v{vt}, v{va}, {WS}, s{addr_sreg} offen sc1", tag=tag)

def q_touch3(swq):
    pre = L(f"""
    s_and_b32 s64, s{sJ}, 7
    s_lshl_b32 s64, s64, 2
    s_add_u32 s64, s64, s{sWAVE}
    s_mul_i32 s64, s64, {14 * 8192}
    v_bfe_u32 v28, v0, 2, 2
    v_and_b32 v29, 3, v0
    v_lshlrev_b32 v29, 7, v29
    v_lshl_add_u32 v28, v28, 13, v29
    v_add_u32 v23, s64, v28
    v_and_b32 v28, 48, v0
    v_lshl_add_u32 v23, v28, 24, v23
    """)
    return pre, [[touch(23, swq, 0, nt=False), I(f"v_add_u32 v23, {(4 if n < 2 else 2) * 8192}, v23")] for n in range(4)]


def wo2_dma():
    pre = L(f"""
    s_and_b32 s64, s{sJ}, 7
    s_lshl_b32 s72, s{sH}, 3
    s_add_u32 s64, s64, s72
    s_lshl_b32 s64, s64, 2
    s_add_u32 s64, s64, s{sWAVE}
    s_mul_i32 s67, s64, 7168
    s_mul_i32 s86, s{sWAVE}, 7168
    s_add_u32 s86, s86, 131072
    """)
    un = lambda o, n: [I(f"s_add_u32 m0, s86, {o}")] + [I(f"buffer_load_dwordx4 v7, s[60:63], s67 offen offset:{1024*j} nt lds", tag="WO") for j in range(n)] + [I("s_add_u32 s67, s67, 4096")]
    return pre, [un(0, 4), un(4096, 3)]
def wo2_reads():
    return L(f"""
    v_lshrrev_b32 v28, 2, v0
    v_mul_u32_u24 v28, 896, v28
    v_and_b32 v29, 3, v0
    v_lshl_add_u32 v28, v29, 4, v28
    s_lshr_b32 s64, s{sWAVE}, 1
    s_lshl_b32 s64, s64, 6
    s_and_b32 s72, s{sWAVE}, 1
    s_lshl_b32 s72, s72, 3
    s_add_u32 s64, s64, s72
    s_add_u32 s64, s64, 131072
    v_add_u32 v28, s64, v28
    s_lshl_b32 s94, s{sH}, {21 if NUMA.on else 18}
    s_and_b32 s64, s{sJ}, 7
    s_lshl_b32 s64, s64, 10
    s_add_u32 s94, s94, s64
    s_lshl_b32 s64, s{sWAVE}, {13 + NUMA.on}
    s_add_u32 s94, s94, s64
    s_add_u32 s94, s94, {NUMA.WO if NUMA.on else WS_WO}
    """) + [I(f"ds_read_b64_tr_b16 a[{192+4*n+2*j}:{193+4*n+2*j}], v28 offset:{n*128 + j*14336}") for n in range(7) for j in range(2)]
WSF = 'sc1'
def wo2_stores():
    return [[I(f"s_add_u32 s3, s94, {n * 32768}"), I(f"buffer_store_dwordx4 a[{192+4*n}:{195+4*n}], v7, {WS}, s3 offen {WSF}", tag="KVST")] for n in range(7)]

def tlb_touch(srds, sel):
    out = L(f"""
    s_lshr_b32 s64, s2, 3
    s_lshl_b32 s64, s64, 2
    s_add_u32 s64, s64, s{sWAVE}
    s_and_b32 s64, s64, {sel}
    s_min_u32 s64, s64, 1
    s_lshl_b32 s64, s64, 29
    v_lshlrev_b32 v28, 21, v0
    v_or_b32 v28, s64, v28
    """)
    return out + [touch(28, r, 0, nt=False) for r in srds]


def r4_loads():
    return L(f"""
    s_lshl_b32 s30, s{sH}, 3
    s_add_u32 s30, s30, s{sJ}
    s_lshl_b32 s64, s30, 2
    s_add_u32 s64, s64, s{sWAVE}
    s_mul_i32 s72, s64, 3584
    v_mov_b32 v32, {OOB}
    v_cmp_gt_u32 vcc, 56, v0
    s_lshl_b32 s67, s64, 2
    s_nop 0
    v_cndmask_b32 v32, v32, v7, vcc
    """) + [I(f"buffer_load_dwordx4 v[{40+4*r}:{43+4*r}], v32, s[56:59], s72 offen offset:{896*r}") for r in range(4)] + L("""
    buffer_load_dwordx4 v[56:59], v32, s[60:63], 0 offen
    buffer_load_dwordx4 v[60:63], v32, s[68:71], 0 offen
    """)
def r4_compute():
    out = [I(f"v_mov_b32 v{72+r}, 0") for r in range(8)]
    for w in range(4):
        for m in range(2):
            for r in range(4): out.append(I(f"v_dot2c_f32_bf16 v{72+4*m+r}, v{40+4*r+w}, v{56+4*m+w}"))
    prs = [(72, 74), (73, 75), (76, 78), (77, 79)]
    out += [I(f"v_permlane32_swap_b32 v{a}, v{b}") for a, b in prs] + [I(f"v_add_f32 v{a}, v{a}, v{b}") for a, b in prs]
    out += L("v_lshrrev_b32 v80, 4, v0\nv_permlane16_swap_b32 v72, v73\nv_permlane16_swap_b32 v76, v77\nv_add_f32 v72, v72, v73\nv_add_f32 v76, v76, v77\nv_add_u32 v81, s67, v80")
    for sh in ("row_ror:8", "row_ror:4", "row_ror:2", "row_ror:1"):
        out += L(f"v_add_f32 v72, v72, v72 {sh} row_mask:0xf bank_mask:0xf\nv_add_f32 v76, v76, v76 {sh} row_mask:0xf bank_mask:0xf")
    out += L(f"""
    v_ashrrev_i32 v82, 31, v72
    v_or_b32 v82, 0x80000000, v82
    v_xor_b32 v82, v82, v72
    v_and_b32 v82, 0xfffff800, v82
    v_sub_u32 v81, 2047, v81
    v_or_b32 v82, v82, v81
    v_max_u32 v82, 1, v82
    """) + sigmoid(76, 77) + L(f"""
    s_lshl_b32 s72, s{sWAVE}, 4
    s_add_u32 s72, s72, {LDS_R}
    v_lshl_add_u32 v80, v80, 2, s72
    ds_write_b32 v80, v82
    ds_write_b32 v80, v72 offset:64
    ds_write_b32 v80, v76 offset:128
    """)
    return out
def rg4_store():
    return L(f"""
    v_and_b32 v20, 31, v0
    v_lshlrev_b32 v20, 2, v20
    v_add_u32 v21, {LDS_R}, v20
    ds_read_b32 v19, v21
    ds_read_b32 v21, v21 offset:64
    s_min_u32 s64, s{sWAVE}, 1
    s_lshl_b32 s64, s64, 29
    v_and_b32 v22, 32, v0
    v_lshl_or_b32 v20, v22, 24, v20
    v_or_b32 v20, s64, v20
    v_and_b32 v22, 16, v0
    v_lshl_or_b32 v18, v22, 25, v20
    s_lshl_b32 s72, s30, 7
    s_add_u32 s72, s72, {WS_RG}
    """) + [6, I(f"buffer_store_dword v21, v20, {WS}, s72 offen sc1", tag="RST")]
def key4_store():
    return L(f"""
    s_lshl_b32 s72, s30, 6
    s_add_u32 s72, s72, {WS_KEY}
    """) + [WAITV("RST"), I(f"buffer_store_dword v19, v18, {WS}, s72 offen sc1")]


def x_touch3(nl):
    pre = L(f"""
    s_lshl_b32 s64, s{sJ}, 1
    s_lshr_b32 s72, s{sH}, 3
    s_add_u32 s64, s64, s72
    s_lshl_b32 s64, s64, 2
    s_add_u32 s64, s64, s{sWAVE}
    s_mul_i32 s64, s64, 14336
    v_lshl_add_u32 v26, v0, 7, s64
    v_mov_b32 v27, {OOB}
    v_cmp_gt_u32 vcc, {nl}, v0
    s_nop 0
    s_nop 0
    v_cndmask_b32 v26, v27, v26, vcc
    v_accvgpr_write_b32 a242, v26
    """)
    return pre, [[I(f"s_mov_b32 s65, {n * nl * 128}"), I("v_accvgpr_read_b32 v26, a242"), touch(26, 56, "s65", nt=False)] for n in range(112 // nl)]
YLV = 1
def y_reduce2(hole):
    out = L(f"""
    L_y1:
    s_lshl_b32 s89, s{sH}, 1
    s_add_u32 s89, s89, s{sWAVE}
    s_cmp_ge_u32 s{sWAVE}, 2
    s_cselect_b32 s89, 28, s89
    s_cmp_ge_u32 s89, 28
    s_cbranch_scc1 L_y1r
    v_lshrrev_b32 v50, 4, v7
    v_lshrrev_b32 v51, 3, v50
    v_mul_u32_u24 v51, {FSTR}, v51
    v_and_b32 v52, 7, v50
    v_lshl_add_u32 v51, v52, 7, v51
    s_mov_b32 s90, {WS_FL}
    s_mov_b32 s88, {WS_FL + 8 * FSTR}
    s_mov_b32 s91, {SPIN_MAX}
    L_yp:
    buffer_load_dword v52, v51, {WS}, s90 offen sc1
    buffer_load_dword v53, v51, {WS}, s88 offen sc1
    s_waitcnt vmcnt(0)
    v_min_u32 v52, v52, v53
    v_cmp_gt_u32 vcc, {YLV}, v52
    s_sub_u32 s91, s91, 1
    s_cbranch_scc1 L_ypx
    s_cbranch_vccnz L_yp
    L_ypx:
    s_cmp_lt_u32 s89, 14
    s_cselect_b32 s90, 8, 12
    s_add_u32 s90, s90, {WS_SEL}
    buffer_load_dword v53, off, {WS}, s90 sc1
    v_lshrrev_b32 v51, 3, v50
    v_mul_u32_u24 v51, 3584, v51
    v_and_b32 v52, 7, v50
    v_lshl_add_u32 v51, v52, 4, v51
    s_lshl_b32 s88, s89, 7
    s_add_u32 s90, s88, {WS_YF}
    s_add_u32 s88, s88, {WS_Y}
    """)
    for n in range(14):
        out += L(f"buffer_load_dwordx4 v[{hole(n)}:{hole(n)+3}], v51, {WS}, s88 offen sc1\ns_add_u32 s88, s88, {8 * 3584}")
    out += L("s_branch L_y1r\nL_y2:\ns_cmp_ge_u32 s89, 28\ns_cbranch_scc1 L_y2r\ns_waitcnt vmcnt(24)")
    acc = [hole(0) + e for e in range(4)]; t = [hole(1) + e for e in range(4)]
    for n in range(1, 14): out += [I(f"v_add_f32 v{a}, v{hole(n) + e}, v{a}") for e, a in enumerate(acc)]
    out += [I(f"v_add_f32 v{a}, v{a}, v{a} row_ror:8 row_mask:0xf bank_mask:0xf") for a in acc]
    for sw in ("v_permlane16_swap_b32", "v_permlane32_swap_b32"):
        out += [I(f"v_mov_b32 v{x}, v{a}") for a, x in zip(acc, t)]
        out += [I(f"{sw} v{x}, v{a}") for a, x in zip(acc, t)]
        out += [I(f"v_add_f32 v{a}, v{x}, v{a}") for a, x in zip(acc, t)]
    for rep in range(2):
        for p in (acc[0], acc[2]):
            out += L(f"v_cvt_pk_bf16_f32 v51, v{p}, v{p+1}\nv_lshlrev_b32 v{p}, 16, v51\nv_and_b32 v{p+1}, 0xffff0000, v51")
        if rep == 0: out += [I(f"v_mul_f32 v{a}, v53, v{a}") for a in acc]
    out += L(f"""
    s_mov_b64 exec, 0xff
    buffer_store_dwordx4 v[{acc[0]}:{acc[3]}], v7, {WS}, s90 offen sc1
    s_mov_b64 exec, -1
    s_branch L_y2r
    L_y3:
    s_cmp_ge_u32 s89, 28
    s_cbranch_scc1 L_y3r
    v_mov_b32 v52, 1
    s_lshl_b32 s89, s89, 2
    s_add_u32 s89, s89, {WS_FH + 512}
    s_mov_b64 exec, 1
    s_waitcnt vmcnt(5)
    buffer_store_dword v52, off, {WS}, s89 sc1
    s_mov_b64 exec, -1
    s_branch L_y3r
    """)
    return out

def wo_touch3():
    return L(f"""
    s_load_dwordx2 s[68:69], s[0:1], {A_WO}
    s_lshl_b32 s72, s{sH}, 3
    s_add_u32 s72, s72, s{sJ}
    s_lshl_b32 s72, s72, 2
    s_add_u32 s72, s72, s{sWAVE}
    s_mul_i32 s72, s72, 7168
    v_min_u32 v28, 55, v0
    v_lshlrev_b32 v28, 7, v28
    s_mov_b32 s70, {4096 * 896}
    """) + [24, I("s_and_b32 s69, s69, 0xffff"), touch(28, 68, "s72", nt=False)]
def wo_events(sEV, srdreg, nt):
    out = L(f"""
    L_ev:
    s_sub_u32 s{sEV}, s{sEV}, 1
    s_cmp_eq_u32 s{sEV}, 0
    s_cbranch_scc1 L_ev1
    s_lshl_b32 s3, s{sH}, 3
    s_add_u32 s3, s3, s{sJ}
    s_lshl_b32 s3, s3, 2
    s_add_u32 s3, s3, s{sWAVE}
    s_mul_i32 s3, s3, 7168
    s_mul_i32 s30, s{sWAVE}, 7168
    s_add_u32 m0, s30, 131072
    s_nop 0
    """)
    d = lambda j: I(f"buffer_load_dwordx4 v7, s[{srdreg}:{srdreg+3}], s3 offen offset:{1024*j} {nt} lds")
    out += [d(j) for j in range(4)] + L("s_add_u32 m0, s30, 135168\ns_add_u32 s3, s3, 4096") + [d(j) for j in range(3)] + L(f"""
    s_branch L_evr
    L_ev1:
    v_lshrrev_b32 v10, 6, v7
    v_mul_u32_u24 v10, 896, v10
    v_and_b32 v11, 48, v7
    s_lshr_b32 s3, s{sWAVE}, 1
    s_lshl_b32 s3, s3, 6
    s_and_b32 s30, s{sWAVE}, 1
    s_lshl_b32 s30, s30, 3
    s_add_u32 s3, s3, s30
    s_add_u32 s3, s3, 131072
    v_add3_u32 v10, v10, v11, s3
    """) + [I(f"ds_read_b64_tr_b16 a[{196+4*n+2*j}:{197+4*n+2*j}], v10 offset:{n*128 + j*14336}") for n in range(7) for j in range(2)] + L(f"""
    s_lshl_b32 s3, s{sH}, 18
    s_lshl_b32 s30, s{sJ}, 10
    s_add_u32 s3, s3, s30
    s_lshl_b32 s30, s{sWAVE}, 13
    s_add_u32 s3, s3, s30
    s_add_u32 s3, s3, {WS_WO}
    s_waitcnt lgkmcnt(0)
    """)
    for n in range(7): out += L(f"buffer_store_dwordx4 a[{196+4*n}:{199+4*n}], v7, {WS}, s3 offen sc1\ns_add_u32 s3, s3, 32768")
    return out + L("s_branch L_evr")

def wo4(srdreg, nt):
    pre = L(f"""
    s_and_b32 s29, s{sJ}, 7
    s_lshl_b32 s34, s29, 10
    s_lshl3_add_u32 s30, s{sH}, s29
    s_lshl2_add_u32 s30, s30, s{sWAVE}
    s_mul_i32 s30, s30, 7168
    s_lshl_b32 s29, s{sH}, 18
    s_add_u32 s34, s34, s29
    s_lshl_b32 s29, s{sWAVE}, 13
    s_add_u32 s34, s34, s29
    s_add_u32 s34, s34, {WS_WO}
    s_mul_i32 s29, s{sWAVE}, 7168
    """)
    d = lambda j: I(f"buffer_load_dwordx4 v7, s[{srdreg}:{srdreg+3}], s30 offen offset:{1024*j} {nt} lds", tag="WO")
    dma = [I("s_add_u32 m0, s29, 131072")] + [d(j) for j in range(4)] + L("s_add_u32 m0, s29, 135168\ns_add_u32 s30, s30, 4096") + [d(j) for j in range(3)]
    adr = L(f"""
    v_lshrrev_b32 v6, 6, v7
    v_mul_u32_u24 v6, 896, v6
    v_and_b32 v5, 48, v7
    s_lshr_b32 s29, s{sWAVE}, 1
    s_lshl_b32 s29, s29, 6
    s_and_b32 s30, s{sWAVE}, 1
    s_lshl3_add_u32 s29, s30, s29
    s_add_u32 s29, s29, 131072
    v_add3_u32 v5, v6, v5, s29
    """)
    rd = [I(f"ds_read_b64_tr_b16 a[{196+4*n+2*j}:{197+4*n+2*j}], v5 offset:{n*128 + j*14336}") for n in range(7) for j in range(2)]
    st = [[I(f"s_add_u32 s3, s34, {n * 32768}"), I(f"buffer_store_dwordx4 a[{196+4*n}:{199+4*n}], v7, {WS}, s3 offen sc1", tag="WST")] for n in range(7)]
    return pre, dma, adr, rd, st

def wo_touch4(nl):
    pre = L(f"""
    s_and_b32 s64, s{sJ}, 7
    s_lshl3_add_u32 s64, s{sH}, s64
    s_lshl2_add_u32 s64, s64, s{sWAVE}
    s_mul_i32 s64, s64, 7168
    v_lshl_add_u32 v22, v0, 7, s64
    v_mov_b32 v21, {OOB}
    v_cmp_gt_u32 vcc, {nl}, v0
    s_nop 0
    s_nop 0
    v_cndmask_b32 v22, v21, v22, vcc
    """)
    return pre, [[touch(22, 60, 0, nt=False), I(f"v_add_u32 v22, {nl * 128}, v22")] for n in range(56 // nl)]

def wo_consts(aWD, aOB):
    return L(f"""
    v_lshrrev_b32 v26, 4, v0
    v_bfe_u32 v27, v0, 1, 2
    v_xor_b32 v26, v26, v27
    v_lshlrev_b32 v26, 1, v26
    v_and_or_b32 v26, v0, 1, v26
    v_lshlrev_b32 v26, 4, v26
    v_lshrrev_b32 v27, 3, v0
    v_mul_u32_u24 v27, 896, v27
    s_mul_i32 s64, s{sWAVE}, {64 * 896}
    v_add3_u32 v26, v26, v27, s64
    v_accvgpr_write_b32 a{aWD}, v26
    v_bfe_u32 v26, v0, 3, 2
    v_lshlrev_b32 v26, 2, v26
    v_and_or_b32 v26, v0, 3, v26
    v_lshlrev_b32 v26, 3, v26
    v_lshrrev_b32 v27, 2, v0
    v_lshl_or_b32 v26, v27, 7, v26
    v_accvgpr_write_b32 a{aOB}, v26
    """)

def share_setup(sKV):
    return L(f"""
    s_and_b32 s64, s{sJ}, 7
    s_lshl2_add_u32 s64, s64, s{sWAVE}
    s_lshl_b32 s64, s64, 14
    v_lshrrev_b32 v26, 2, v0
    v_and_b32 v27, 3, v0
    v_lshlrev_b32 v27, 7, v27
    v_lshl_add_u32 v26, v26, 13, v27
    v_add_u32 v26, s64, v26
    v_and_b32 v27, 56, v0
    v_lshl_add_u32 v26, v27, 24, v26
    v_accvgpr_write_b32 a236, v26
    s_lshr_b32 s64, s{sH}, 3
    s_lshl1_add_u32 s64, s{sKV}, s64
    s_lshl_b32 s64, s64, 5
    s_add_u32 s64, s64, s{sWAVE}
    s_lshl_b32 s64, s64, 14
    v_and_b32 v26, 7, v0
    v_lshlrev_b32 v26, 11, v26
    v_and_b32 v27, 8, v0
    v_lshl_add_u32 v26, v27, 18, v26
    v_add_u32 v26, s64, v26
    v_and_b32 v27, 48, v0
    v_lshl_add_u32 v26, v27, 24, v26
    v_accvgpr_write_b32 a237, v26
    """)
def share_w(sw, t, fl): return [I(f"s_mov_b32 s65, {t * 64 * 8192}"), I("v_accvgpr_read_b32 v26, a236"), I(f"buffer_load_dword a{JUNK}, v26, s[{sw}:{sw+3}], s65 offen {fl}", tag="TOUCH")]
def share_c(sc, t): return [I("v_accvgpr_read_b32 v26, a237"), I(f"buffer_load_dword a{JUNK}, v26, s[{sc}:{sc+3}], 0 offen offset:{t * 128}", tag="TOUCH")]

WS_PROBE = 228 << 20
LDS_P = 163840 - 32
def nu_issue():
    return L(f"""
    s_lshl2_add_u32 s40, s2, s{sWAVE}
    s_lshr_b32 s46, s40, 7
    s_lshl_b32 s46, s46, 1
    s_and_b32 s47, s40, 1
    s_add_u32 s46, s46, s47
    s_lshl_b32 s46, s46, 6
    s_bfe_u32 s47, s40, 0x60001
    s_add_u32 s46, s46, s47
    s_lshl_b32 s46, s46, 7
    s_add_u32 s46, s46, {WS_PROBE}
    s_add_u32 s46, s46, s6
    s_addc_u32 s47, s7, 0
    s_load_dword s43, s[46:47], 0
    """)
def nu_time():
    return L(f"""
    s_and_b32 s64, s{sJ}, 6
    s_and_b32 s65, s{sH}, 1
    s_or_b32 s64, s64, s65
    s_cbranch_scc1 L_nut
    s_lshl_b32 s67, s{sWAVE}, 2
    s_add_u32 s67, s67, {LDS_P}
    v_mov_b32 v17, s67
    s_waitcnt lgkmcnt(0)
    s_memtime s[26:27]
    s_load_dword s43, s[46:47], 0x40000
    s_waitcnt lgkmcnt(0)
    s_memtime s[64:65]
    s_waitcnt lgkmcnt(0)
    s_sub_u32 s64, s64, s26
    s_min_u32 s64, s64, 2500
    v_mov_b32 v16, s64
    ds_write_b32 v17, v16
    s_waitcnt lgkmcnt(0)
    L_nut:
    """)
def nu_publish():
    return L(f"""
    v_mov_b32 v26, {LDS_P}
    ds_read_b128 v[28:31], v26
    s_getreg_b32 s92, hwreg(20, 2, 1)
    s_add_u32 s101, s{sH}, s{sJ}
    s_sub_u32 s101, s101, 8
    s_lshl_b32 s101, s101, 2
    s_and_b32 s100, s{sH}, 1
    s_and_b32 s40, s{sJ}, 6
    s_or_b32 s100, s100, s40
    s_min_u32 s100, s100, 1
    s_lshl_b32 s100, s100, 29
    s_or_b32 s101, s101, s100
    s_lshl_b32 s100, s92, 30
    s_add_u32 s100, s100, 0x4000
    s_lshl_b32 s92, s92, 1
    s_sub_u32 s92, 1, s92
    """) + lane0_wave0(26) + L(f"""
    v_add_u32 v28, v28, v30
    v_add_u32 v29, v29, v31
    v_sub_u32 v28, v28, v29
    v_mul_i32_i24 v28, s92, v28
    v_add_u32 v28, s100, v28
    buffer_store_dword v28, v26, s[{S_DBG}:{S_DBG+3}], s101 offen sc1
    """)
def nu_decide():
    out = L(f"v_cmp_le_u32 vcc, 0x40000000, v17\nv_and_b32 v17, 0xffff, v17\ns_and_b32 s92, s{sH}, 6\ns_mov_b32 s100, vcc_lo")
    out += [I(f"v_add_u32 v17, v17, v17 {sh} row_mask:0xf bank_mask:0xf") for sh in ("row_ror:8", "row_ror:4", "row_ror:2", "row_ror:1")]
    return out + L(f"""
    v_cmp_lt_u32 vcc, {16 * 0x4000}, v17
    s_lshr_b32 s92, s100, s92
    s_and_b32 s92, s92, 1
    s_mul_i32 s92, s92, 3
    s_lshl_b32 s{sBM}, s{sWAVE}, 1
    s_lshr_b32 s{sBM}, s100, s{sBM}
    s_and_b32 s{sBM}, s{sBM}, 1
    s_lshl_b32 s{sBM}, s{sBM}, 16
    s_or_b32 s{sBM}, s{sBM}, s92
    s_and_b32 s100, s100, 0x55
    s_mul_i32 s100, s100, 0x300
    s_or_b32 s{sBM}, s{sBM}, s100
    s_and_b32 s92, vcc_lo, 1
    s_mul_i32 s92, s92, 0x1ff03
    s_xor_b32 s{sBM}, s{sBM}, s92
    """)
```

```python
import sys
from att3 import *
import kvq, side, hw, asmlib, att3, q2, red3
from kvq import K, seq_fit
from q2 import VQ, place_vm, place_reads
opt = dict(stamp="0", v="1", thr=str(2.0 ** 40), lo=str(2.0 ** -60), m0="16", fine="0", dbgst="0", dbgl="0,3,6,7,14,18,21",
           cw="1", w1="0", q0="1", ramp="00", eo="0", pc="0", sw="1", r3="1", lagv="16", lag="8",
           pcq="4", tQ="9", tW="5", tH="7", tc="6,13", tg="113", xs_="20", odh="45", ne="8", jy="6", tl="1",
           k15="8", kst="2224a56", kf="0", v15="4", vst="2204444", vf="2", nq="8", w0l="24", ext="1", nu="1", pl="0", nud="0", sp="0", spa="56", spp="50", spt="12", lay="1", qfl="", rfl="", pfl="", ofl="sc1", rsnk="1", snk="2", wis="0", p2="0", pw="1", pfg="24", ec="1", n1="9", rsl="1", wso="0", hnt="nt", nomoe="0", sent="0", sg="30", mk="044", s5="1", odh5="26", efw="5", efg="52", wi="0", sw_="0", sc_="0", swf="nt", hi0="44", hi1="108", rv="0", eh="1", bpv="0", bpvd="4", bpvk="20", bop="2", bopk="2.0", bkk="8.0", bkv="1", bq="0", tB="13", bsp="5", l4="44", wn="2221",
           ntw="nt", ntt="", osf="sc1", stf="sc1", dfl="sc1", hot="00", npk="16")
for a in sys.argv[1:]:
    k, v = a.split("="); assert k in opt, k; opt[k] = v
O = lambda k: int(opt[k])
STAMP = opt["stamp"] == "1"
kvq.HOT = opt["hot"]; kvq.NTW = opt["ntw"]; side.NTT = opt["ntt"]; kvq.STF = opt["stf"].replace("+", " "); att3.DFL = opt["dfl"]; side.OSF = opt["osf"]
side.EPAR = 2; side.NE = O("ne"); side.SELLV = 1; side.YLV = 4; hw.MAP = "0"
side.ROWMAP = "s_lshr_b32 s73, s72, 1\ns_sub_u32 s65, 7, s73\ns_bitcmp1_b32 s72, 0\ns_cselect_b32 s73, s65, s73\ns_lshl_b32 s73, s73, 4"
sH, sJ, sSTK, sKV, sFL = 41, 42, 44, 45, 45
XS = O('xs_'); assert XS in (18, 20)
JC = XS // 2
FSH = 7
aST = 250
NM0 = hex(f2u(-float(opt['m0'])))
BOP = O('bop')
BPV.update(on=O('bpv'), db=O('bpvd'), k=float(opt['bpvk']))
red3.WI = O('wi')
hw.HNT = opt['hnt']
side.RSL = O('rsl')
EC = O('ec')
PW = O('pw')
kvq.WIS = O('wis')
att3.SNK = O('snk')
kvq.RSNK = O('rsnk')
red3.RFL = opt['rfl']
NU = NUMA.on = O('nu'); assert not (NU and (O('sp') or O('sent') or opt['r3'] == '0'))
NUMA.pl = O('pl')
NEVER = 0x7fff
SENT = O('sent')
EXT = O('ext')
SW = O('sw')
def stamp(t=10):
    if not STAMP: return []
    return L(f"""s_memrealtime s[36:37]
    s_memtime s[98:99]
    v_accvgpr_read_b32 v{t}, a{aST}
    v_accvgpr_read_b32 v{t+1}, a{aST+1}
    s_mov_b32 s100, m0
    s_mov_b32 m0, s{sSTK}
    s_waitcnt lgkmcnt(0)
    v_writelane_b32 v{t}, s98, m0
    v_writelane_b32 v{t+1}, s36, m0
    s_add_u32 s{sSTK}, s{sSTK}, 1
    s_mov_b32 m0, s100
    v_accvgpr_write_b32 a{aST}, v{t}
    v_accvgpr_write_b32 a{aST+1}, v{t+1}""")
fst = lambda n, t=10: stamp(t) if opt['fine'] == str(n) else []

F1_LOAD = f"buffer_load_dword v24, v13, {WSR}, s46 offen sc1"
F2_LOAD = f"buffer_load_dword v24, v{A.vFL}, {WSR}, s46 offen sc1"
FL_LOAD = f"buffer_load_dword v{A.vRL + 1}, v{A.vFL}, {WSR}, s46 offen sc1"
FP_LOAD = f"buffer_load_dword v{A.vRL}, off, {WSR}, s47 sc1"
ZZ = lambda: [I(f"v_mov_b32 v{A.vP1 + e}, 0") for e in range(4)]
SELM = lambda: L(f"""
    v_mov_b32 v16, 0x3f80
    v_lshrrev_b32 v17, 8, v{A.vL16}
    v_bfe_u32 v18, v{A.vL16}, 6, 2
    v_and_b32 v19, 16, v{A.vL16}
    v_lshlrev_b32 v19, v19, v16
    v_cmp_eq_u32 vcc, v17, v18
    v_and_b32 v16, 32, v{A.vL16}
    v_accvgpr_write_b32 a244, 0
    v_accvgpr_write_b32 a245, 0
    v_cndmask_b32 v19, 0, v19, vcc
    v_cmp_eq_u32 vcc, 0, v16
    v_accvgpr_write_b32 a248, 0
    v_accvgpr_write_b32 a249, 0
    v_cndmask_b32 v17, 0, v19, vcc
    v_sub_u32 v18, v19, v17
    v_accvgpr_write_b32 a246, v17
    v_accvgpr_write_b32 a247, v18
    """)

def first_qk(cv_late):
    if not cv_late:
        g = Gaps(qk_mfmas(0, "nm", snk=False)); weave_reads(g, 3, 1, [("T", 1)])
        blocks = [(0, 0), (0, 1), (1, 0), (1, 1)]; rdy = [11, 19, 27, 35]
    else:
        m = lambda kb, qb, ks, c=None: mfma(R("v", Sreg(0, kb, qb), 4), R("a", Freg(kb, ks), 4), R("a", Qreg(qb, ks), 4), c or R("v", Sreg(0, kb, qb), 4))
        ms = [m(kb, qb, ks, R("v", A.vNM + 4 * qb, 4) if n == 0 else None) for kb in range(2) for qb in range(2) for n, ks in enumerate(range(6) if qb == 0 else range(5, -1, -1))]
        ms += [m(0, 0, 6), m(0, 1, 6), m(1, 1, 6), m(1, 0, 6), m(0, 0, 7), m(1, 0, 7), m(0, 1, 7), m(1, 1, 7)]
        g = Gaps(ms + qk_mfmas(0, "nm")[32:])
        for f, k in enumerate([0, 1, 2, 4, 5, 6, 8, 9]): g.put(k, rd_frag(3, 1, f, Freg(1, f)))
        g.put_s(11, NEED(R("a", Freg(1, 0), 24))); g.put_s(22, NEED(R("a", Freg(1, 6), 8)))
        for f, k in enumerate([13, 14, 16, 17, 19, 20, 27, 31]): g.put(k, rd_frag(3, 2, f, Freg(2, f)))
        for f, k in enumerate([25, 28, 29, 33, 34, 36, 37, 39]): g.put(k, rd_frag(3, 3, f, Freg(3, f)))
        g.put_s(31, NEED(R("a", Freg(2, 0), 24))); g.put_s(37, NEED(R("a", Freg(2, 6), 8)))
        g.put_s(46, WAITV([("T", 1)], lgkm0=True)); g.put_s(47, I("s_barrier"))
        for f, r in enumerate(rd_batch(1, 0)): g.put(48 + RPAT[0][f], r)
        g.put_s(62, NEED(R("a", Freg(0, 0), 32)))
        blocks = [(0, 0), (1, 0), (0, 1), (1, 1)]; rdy = [32, 33, 34, 35]
    sm = SM(sm_groups(0, blocks + blocks_of(1), (0, 1)), ready={n: rdy[n >> 1] for n in range(8)})
    return g, sm

NU_SEL = f"""
    s_xor_b32 s64, s{sBM}, s{sH}
    s_and_b32 s64, s64, 1
    s_lshl_b32 s{sSEL}, s64, 13
    s_add_u32 s{K.sOOFF}, s{K.sOOFF}, s{sSEL}
    s_add_u32 s{A.sPO}, s{A.sPO}, s{sSEL}
    s_add_u32 s{A.sQ}, s{A.sQ}, s{sSEL}
    s_lshr_b32 s64, s{sBM}, {0 if NUMA.pl else 16}
    s_lshr_b32 s65, s{sH}, 3
    s_xor_b32 s64, s64, s65
    s_and_b32 s64, s64, 1
    s_lshl_b32 s64, s64, 13
    s_add_u32 s{A.sOP}, s{A.sOP}, s64"""

def ramp():
    nw, nc = int(opt['ramp'][0]), int(opt['ramp'][1])
    if not nw: return [], []
    pre = L(f"""
    v_lshrrev_b32 v28, 2, v0
    v_add_u32 v28, 1, v28
    v_lshrrev_b32 v29, 1, v28
    v_and_b32 v28, 1, v28
    v_lshlrev_b32 v28, 7, v28
    v_lshl_or_b32 v28, v29, 19, v28
    v_and_b32 v29, 1, v0
    v_lshl_or_b32 v28, v29, 8, v28
    v_bfe_u32 v29, v0, 1, 1
    v_lshl_or_b32 v28, v29, 13, v28
    s_lshl_b32 s64, s{K.sWAVE}, 14
    s_add_u32 s64, s64, s75
    v_cmp_gt_u32 vcc, {4 * nw}, v0
    v_add_u32 v28, s64, v28
    v_mov_b32 v31, {side.OOB}
    v_cndmask_b32 v16, v31, v28, vcc
    """) + (L(f"""
    v_lshrrev_b32 v28, 3, v0
    v_add_u32 v28, 1, v28
    v_lshrrev_b32 v29, 1, v28
    v_and_b32 v28, 1, v28
    v_lshlrev_b32 v28, 21, v28
    v_lshl_or_b32 v28, v29, 7, v28
    v_and_b32 v29, 7, v0
    v_lshl_or_b32 v28, v29, 11, v28
    s_lshr_b32 s64, s{sH}, 3
    s_lshl1_add_u32 s64, s{sKV}, s64
    s_lshl_b32 s64, s64, 5
    s_add_u32 s64, s64, s{K.sWAVE}
    s_lshl_b32 s64, s64, 14
    v_cmp_gt_u32 vcc, {8 * nc}, v0
    v_add_u32 v28, s64, v28
    v_cndmask_b32 v17, v31, v28, vcc
    """) if opt['rv'] == '0' else L(f"""
    v_lshrrev_b32 v28, 4, v0
    v_add_u32 v28, 1, v28
    v_lshrrev_b32 v29, 1, v28
    v_and_b32 v28, 1, v28
    v_lshlrev_b32 v28, 21, v28
    v_lshl_or_b32 v28, v29, 7, v28
    v_and_b32 v29, 15, v0
    v_lshl_or_b32 v28, v29, 11, v28
    s_lshr_b32 s64, s{sH}, 3
    s_lshr_b32 s67, s{K.sWAVE}, 1
    s_lshl1_add_u32 s64, s64, s67
    s_lshl_b32 s64, s64, 4
    s_and_b32 s67, s{K.sWAVE}, 1
    s_add_u32 s64, s64, s67
    s_lshl_b32 s64, s64, 15
    v_cmp_gt_u32 vcc, {16 * nc}, v0
    v_add_u32 v28, s64, v28
    v_cndmask_b32 v17, v31, v28, vcc
    s_sub_u32 s64, s{sJ}, 8
    s_and_b32 s64, s64, {side.OOB}
    v_or_b32 v16, s64, v16
    v_or_b32 v17, s64, v17
    """))
    return pre, [I(f"buffer_load_dword a240, v16, s[{K.S_W}:{K.S_W + 3}], 0 offen {opt['ntw']}", tag="TOUCH"), side.touch(17, K.S_C, 0, nt=False)]

def build_front(c):
    c.block("entry", f"""
    s_cmp_lt_u32 s2, 256
    s_cbranch_scc1 L_go
    s_endpgm
    L_go:
    {'s_memrealtime s[36:37]' + chr(10) + 's_memtime s[98:99]' if STAMP else ''}
    s_load_dwordx8 s[80:87], s[0:1], {A_X}
    s_load_dwordx4 s[88:91], s[0:1], {A_WUV}
    s_load_dwordx2 s[92:93], s[0:1], {A_WR}
    s_load_dwordx2 s[30:31], s[0:1], {A_GW}
    s_load_dwordx4 s[4:7], s[0:1], {A_DBG}
    v_lshrrev_b32 v24, 6, v0
    v_and_b32 v0, 63, v0
    v_readfirstlane_b32 s{K.sWAVE}, v24
    """, side.code_touch() if opt['pc'] == '0' else side.code_touch()[:-1], f"""
    s_and_b32 s{sH}, s2, 7
    s_lshr_b32 s{sJ}, s2, 3
    s_lshr_b32 s64, s{sJ}, 4
    s_lshl_b32 s64, s64, 3
    s_add_u32 s{sH}, s{sH}, s64
    s_and_b32 s{sJ}, s{sJ}, 15
    s_lshr_b32 s{sKV}, s{sJ}, 3
    s_xor_b32 s{sKV}, s{sKV}, {SW}
    s_mov_b32 s{sSTK}, 0
    v_accvgpr_write_b32 a{aST}, 0
    v_accvgpr_write_b32 a{aST+1}, 0
    v_and_b32 v24, 15, v0
    v_lshrrev_b32 v25, 4, v0
    v_lshlrev_b32 v{K.vST}, 4, v0
    s_and_b32 s65, s{K.sWAVE}, 1
    s_lshr_b32 s66, s{K.sWAVE}, 1
    {kvq.addr_wd()}
    {kvq.addr_cd()}
    s_mov_b32 s{K.sWOFF}, 0
    s_mov_b32 s{K.sCOFF}, 0
    s_lshl_b32 s{K.sM0W}, s{K.sWAVE}, 12
    s_add_u32 s{K.sM0C}, s{K.sM0W}, 65536
    s_lshl_b32 s74, s{sH}, 9
    s_sub_u32 s{K.S_W + 2}, {1024*8192}, s74
    s_mov_b32 s{K.S_W + 3}, 0x20000
    s_and_b32 s75, s{sJ}, 7
    s_lshl_b32 s75, s75, 16
    s_sub_u32 s{K.S_C + 2}, {2048*2048}, s75
    s_mov_b32 s{K.S_C + 3}, 0x20000
    """, ramp()[0], L(kvq.addr_rd()) + side.c_touch_setup() if opt['eo'] == '1' else [], f"""
    s_mov_b32 m0, s{K.sM0W}
    s_cmp_eq_u32 s{sKV}, 0
    s_cselect_b64 s[72:73], s[86:87], s[88:89]
    s_add_u32 s{K.S_W}, s72, s74
    s_addc_u32 s{K.S_W + 1}, s73, 0
    s_and_b32 s{K.S_W + 1}, s{K.S_W + 1}, 0xffff
    """, kvq.unit_w(0)[1:], f"""
    s_add_u32 s{K.S_C}, s82, s75
    s_addc_u32 s{K.S_C + 1}, s83, 0
    s_and_b32 s{K.S_C + 1}, s{K.S_C + 1}, 0xffff
    """, kvq.unit_c(0), ramp()[1], kvq.unit_w(1) if opt['w1'] == '0' else [], stamp(26)[2:], side.nu_issue() if NU else [], L(kvq.addr_rd()) + side.c_touch_setup() if opt['eo'] == '0' else [],
        side.code_addr(28, 29) + side.code_touch()[-1:] if opt['pc'] == '1' else [], f"""
    {srd(32, 82, 2048*2048)}
    {srd(K.S_X, 80, 2048*896)}
    {srd(60, 92, 896)}
    {srd(68, 30, 896)}
    {f's_add_u32 s6, s6, {O("wso") << 20}' + chr(10) + 's_addc_u32 s7, s7, 0' if O('wso') else ''}
    {srd(K.S_WS, 6, (256 - O('wso')) << 20)}
    {srd(K.S_DBG, 4, 256)}
    s_add_u32 s72, s84, s74
    s_addc_u32 s73, s85, 0
    s_sub_u32 s75, {448*8192}, s74
    {srd(K.S_WQ, 72, "s75")}
    s_mov_b32 s{K.sSC}, {hex(f2u(LOG2E_16))}
    s_mov_b32 s{K.sWQOFF}, 0
    s_mul_i32 s{K.sXOFF}, s{sJ}, {128*896}
    s_lshl_b32 s72, s{sKV}, {24 + NU}
    s_lshl_b32 s73, s{sH}, {20 + NU}
    s_add_u32 s72, s72, s73
    s_bfe_u32 s64, s{sJ}, 0x20001
    s_lshl_b32 s64, s64, {15 + NU}
    s_add_u32 s72, s72, s64
    s_lshl_b32 s64, s66, {17 + NU}
    s_add_u32 s72, s72, s64
    s_and_b32 s67, s{sJ}, 1
    s_cmp_eq_u32 s{sKV}, 0
    s_cselect_b32 s64, 12, {14 + NU}
    s_cselect_b32 s75, {14 + NU}, 10
    s_lshl_b32 s67, s67, s75
    s_add_u32 s72, s72, s67
    s_lshl_b32 s64, s65, s64
    s_add_u32 s{K.sOOFF}, s72, s64
    """, side.h_touch_srd(), f"s_load_dwordx2 s[96:97], s[0:1], {A_OUT}", f"s_cmp_lt_u32 s{sJ}, 8\ns_cbranch_scc0 L_kv1")
    pcq, tQ, tH, tW = O("pcq"), O("tQ"), O("tH"), O("tW")
    for vt in (0, 1):
        o = "v" if vt else "k"; pt = vt ^ SW
        frags = [kvq.rd_c(0, 0, 0, 0), kvq.rd_c(0, 0, 0, 1)] + kvq.rd_w_unit(0, 0, 0) + kvq.rd_w_unit(0, 1, 1)
        kvq.BIAS.update(kv="v[20:23]" if O('bkv') else None, q="v[28:31]" if O('bq') else None, rows=None)
        Q0 = opt['q0'] == '1'
        out = side.z_store()[:-3] + side.r4_loads() + side.z_store()[-3:] if vt == 0 else L(srd(60, 90, 4096*896)) + (side.nu_time() if NU else [])
        if Q0:
            frags, g0 = q2.tile0(pt)
            cw = kvq.unit_c(1) + kvq.unit_w(2); w1 = kvq.unit_w(1) if opt['w1'] == '1' else []
            if opt['cw'] == '0': out = cw + out; cw = []
            out = out + w1 + [WAITV([("C", 0), ("W", 0)], lgkm0=True), I("s_barrier")] + stamp(26) + frags + cw
            if vt == 0: out += side.r4_compute()
        else:
            out += kvq.unit_w(2) + kvq.unit_c(1) + [WAITV([("W", 1), ("C", 0), ("W", 0)], lgkm0=True), I("s_barrier")] + stamp(26) + frags
            if vt == 0: out += side.r4_compute()
            out += [NEED(R("a", kvq.wfrag(0, 0, 0), 8), R("a", 160, 8))]
        for t in range(15):
            dma = kvq.kv_dma(t)
            if vt == 1 and t == tW:
                pre, uns = side.wo2_dma(); dma[1] = dma[1] + [uns[0]]
            if vt == 1 and t == tW + 1: dma[1] = dma[1] + [uns[1]]
            if vt == 0 and t == tH - 5:
                pre, uns = hw.s1_weights()
            if vt == 0 and tH - 5 <= t <= tH + 1 and not O('nomoe'): dma[1] = dma[1] + [uns[t - tH + 5]]
            if vt == 0 and t == tH + 4:
                pre, un = hw.s6_down_dma(); dma[1] = dma[1] + ([un] if not O('nomoe') else [])
            g = g0 if (Q0 and t == 0) else kvq.kv_tile(t, pt, dma, first=(t == 0), hi1=O('hi1') if len(dma[1]) < 3 else 108, hi0=O('hi0'))
            def fit(ins, k, pace=0):
                k, left = seq_fit(g, ins, k, pace); assert not left, (t, len(left)); return k
            def mm(ms, k):
                k |= 1
                for m in ms: g.put(k, m)
                return k
            tch = []
            if pcq and (t + pcq) % 4 == 0 and t + pcq < 16: tch += side.c_touch(32, (t + pcq) // 4)
            if O('sw_') or O('sc_'):
                if t == 0: fit(side.share_setup(sKV), 50)
                if O('sw_') and 3 < t + O('sw_') < 16: tch += side.share_w(K.S_W, t + O('sw_'), opt['swf'])
                if O('sc_') and 2 < t + O('sc_') < 16: tch += side.share_c(K.S_C, t + O('sc_'))
            if t == 1 and vt == 0: fit(side.z_signal(), 112)
            if t == 2 and vt == 0: assert fit(side.rg4_store(), 4, 1) < 42
            if t == 3: fit(side.z_load(), 50)
            if NU and t == 1 and vt: fit(side.nu_publish(), 50)
            if NU and t == 5: assert fit(side.nu_decide() + (L(f"s_lshl_b32 s92, s2, 2\ns_add_u32 s92, s92, {(232 << 20)}\nv_mov_b32 v16, s{sBM}\nbuffer_store_dword v16, off, {WSR}, s92 sc1") if opt['nud'] == '1' else []), 2) < 40
            if t == 4:
                k = fit(side.z_check(vt), 112)
                if vt == 0: fit(side.key4_store(), k + 1)
            if vt == 1:
                pre_, tl = side.q_touch3(K.S_WQ)
                if t == tQ: fit(pre_, 60)
                if 0 <= t - tQ < len(tl): tch += tl[t - tQ]
                if t == tW: assert fit(pre, 42) < 80
                if t == tW + 2: g.sc[110][0].tag = g.sc[110][0].tag + ["WO"]
                if t == tW + 3: assert fit(side.wo2_reads(), 2, 2) < 108
                if t == 2: fit(SELM() + [I(f"v_accvgpr_write_b32 a{232 + e}, -1") for e in range(4) if SENT], 10, 1)
            if vt == 0 and O('nomoe'):
                if t == tH - 5: assert fit(pre, 42) < 90
                if t == tH + 1: fit(L("v_cmp_eq_u32 vcc, -1, v0\ns_nop 1\ns_cbranch_vccnz L_hs\nL_hr:"), 10)
                if t == tH + 6: pre, ms, yadr, yst = hw.s8_down(); link(yadr + yst)
            elif vt == 0:
                if t == tH - 5: assert fit(pre, 42) < 90
                if t == tH: fit(hw.s2_keys(), 4)
                if t == tH + 1: assert fit(hw.s3_top2(), 10, 1) < 108
                if t == tH + 2: fit(hw.s4_sel(), 4, 1)
                if t == tH + 3:
                    (r0, m0), (r1, m1) = hw.s5_gemm()
                    k = fit([WAITV("HW")] + r0, 50); k = mm(m0, max(k + 6, 78)); k = fit(r1, k + 1); mm(m1, max(k + 6, 110))
                if t == tH + 4: assert fit(pre, 4) < 44
                if t == tH + 5:
                    s7 = hw.s7_act(); fit(s7, 2, 1)
                    assert all(i.kind != "dsr" or i not in s7 for q in range(100, 128) for i in g.ve[q])
                if t == tH + 6:
                    pre, ms, yadr, yst = hw.s8_down(); link(yadr + yst)
                    k = fit(pre, 2); k = mm(ms, max(k + 2, 46))
            if t == 14: assert fit(kvq.addr_q(), 2) < 46
            if t == 14: fit(L(f"""
                s_mul_i32 s72, s{sH}, {FSTR}
                s_add_u32 s46, s72, {WS_FL}
                s_lshl_b32 s{sFL}, s{sJ}, {FSH}
                s_add_u32 s{sFL}, s{sFL}, s46
                s_sub_u32 s66, 15, s{sJ}
                s_min_u32 s66, s66, s{sJ}
                s_lshl_b32 s47, s66, {FSH}
                s_add_u32 s47, s47, s46
                s_add_u32 s47, s47, {2048 + (0 if vt else 64)}
                {f's_lshl2_add_u32 s47, s{A.sWAVE}, s47' if PW else ''}
                s_lshl_b32 s65, s{sH}, 3
                s_add_u32 s65, s65, s66
                s_mul_i32 s{A.sPO}, s65, {262144 if NU else PO_STRIDE}
                s_add_u32 s{A.sPO}, s{A.sPO}, {NUMA.PO if NU else WS_PO}
                s_lshl_b32 s65, s{sJ}, 4
                s_add_u32 s65, s65, s{sH}
                s_mul_i32 s{A.sOP}, s65, {red3.OPH()}
                s_mul_i32 s65, s{A.sWAVE}, {red3.OPH() // 4}
                s_add_u32 s{A.sOP}, s{A.sOP}, s65
                s_add_u32 s{A.sOP}, s{A.sOP}, {NUMA.OP if NU else WS_OP}
                s_sub_u32 s65, 15, s66
                s_lshl_b32 s65, s65, {16 + NU}
                s_lshl_b32 s64, s{sH}, {20 + NU}
                s_add_u32 s{A.sQ}, s64, s65
                s_lshl_b32 s65, s{A.sWAVE}, {14 + NU}
                s_add_u32 s{A.sQ}, s{A.sQ}, s65
                s_add_u32 s{A.sQ}, s{A.sQ}, {NUMA.Q if NU else WS_Q}
                {NU_SEL if NU else ''}
                s_mov_b32 s{A.sTHR}, {hex(f2u(float(opt['thr'])))}
                s_mov_b32 s{A.sMODE}, 1
                s_sub_u32 s64, s{sJ}, {JC}
                s_and_b32 s{A.sNC}, s64, {side.OOB}
                """), 50)
            tv = 26 if t < O('tB') - 1 else 24
            if str(t) in opt['tc'].split(','): tch += side.code_addr(26, 26) + [side.touch(26, 76, 0, nt=False)]
            fit(tch, O('tg'))
            if O('bkv'):
                if t == 0:
                    vb = VQ()
                    smp = lambda y: [kvq.kacc(y, x)[1] + e for x in range(2) for e in range(4)]
                    est = []
                    for y, r in ((1, 20), (2, 21)):
                        v = smp(y)
                        est.append(L(f"v_max3_f32 v{r}, |v{v[0]}|, |v{v[1]}|, |v{v[2]}|\nv_max3_f32 v{r}, |v{v[3]}|, |v{v[4]}|, v{r}\nv_max3_f32 v{r}, |v{v[5]}|, |v{v[6]}|, v{r}"))
                    k = fit(est[0], 16)
                    k = fit(est[1] + L(f"v_min_f32 v20, v20, v21\nv_mul_f32 v20, {hex(f2u(float(opt['bkk'])))}, v20") + [I(f"v_mov_b32 v{20 + e}, v20") for e in (1, 2, 3)] +
                            L("v_accvgpr_write_b32 a241, v20"), max(k, 24))
                    assert k < 38, k
                if t == O('tB') - 1: fit(L("v_accvgpr_read_b32 v27, a241"), 1)
                for y in range(1, 8):
                    if t == O('tB') - (y < O('bsp')):
                        vb.add([I(f"v_sub_f32 v{kvq.kacc(y, x)[1] + e}, v{kvq.kacc(y, x)[1] + e}, v27") for x in range(8) for e in range(4) if kvq.kv_c0(y, x) != "0"], 128 * t + 16 * y + 20)
                vb.run(g, 128 * t)
                for at, i in vb.placed:
                    q = min(q for q in range(128) if any(i is x for x in g.ve[q]))
                    assert 128 * t + q < at + 128 - 22, (t, at, q)
                assert t < 14 or not vb.q
            out += g.flat()
            if t in (0, 1, 11, 14) or opt['fine'] == '1': out += stamp(tv)
        flat = lambda gs: [i for x in gs for i in x]
        base = (f"s_lshl_b32 s{A.sK}, s{sH}, 20\ns_mov_b32 s{A.sCNT}, 0\ns_lshl_b32 s{A.sJ[2][1]}, s{sH}, 18\ns_add_u32 s{A.sJ[2][1]}, s{A.sJ[2][1]}, {WS_WO}\n" if not NU else
                f"s_lshl_b32 s{A.sK}, s{sH}, 21\ns_mov_b32 s{A.sCNT}, 0\ns_add_u32 s{A.sK}, s{A.sK}, s{sSEL}\ns_add_u32 s{A.sJ[2][1]}, s{A.sK}, {NUMA.WO}\n") + f"s_add_u32 s{A.sVn}, s{A.sJ[2][1]}, {E(65536)}\n"
        (c1, a1), (c2, a2), (c3, a3) = A.sJ
        jumps = L(base + (f"""
            s_add_u32 s64, s{sJ}, 1
            s_min_u32 s64, s64, {JC}
            s_sub_u32 s{A.sIT}, s64, {2 + EXT}
            s_lshl_b32 s{c3}, s64, 1
            s_sub_u32 s{c2}, s{c3}, 2
            s_lshl_b32 s64, s{sJ}, {16 + NU}
            s_add_u32 s{a2}, s{A.sK}, s64
            s_sub_u32 s{a1}, {E(34 * 32768)}, s64
            s_add_u32 s{a1}, s{a1}, s{A.sK}
            s_lshl_b32 s64, s{sJ}, 1
            s_sub_u32 s64, 32, s64
            s_cmp_ge_u32 s{sJ}, {JC}
            s_cselect_b32 s{c1}, s64, {NEVER}
            """ if vt else f"""
            s_sub_u32 s{A.sIT}, s{sJ}, 1
            s_mov_b32 s{c2}, {NEVER}
            s_mov_b32 s{a2}, 0
            s_add_u32 s{a1}, s{A.sK}, {E(XS * 32768)}
            s_lshl_b32 s64, s{sJ}, 1
            s_add_u32 s65, s64, 4
            s_add_u32 s64, s64, 2
            s_cmp_le_u32 s{sJ}, {15 - JC}
            s_cselect_b32 s{c1}, s65, {NEVER}
            s_cselect_b32 s{c3}, {34 - XS}, s64
            """) + f"s_mov_b32 s{A.sKP}, 0")
        w0 = L("v_mov_b32 v12, 1") + side.lane0_wave0(15)
        w1_ = L(f"""
            s_mov_b32 s{A.sREQ}, {(0x500 if vt else 0x543) if EXT else (0x4003 if vt else 0x43)}
            {f's_cmp_ge_u32 s{sJ}, {JC}' + chr(10) + f's_cselect_b32 s64, {hex(15 << 4 * (JC - 3 - EXT))}, 0' + chr(10) + f's_or_b32 s{A.sREQ}, s{A.sREQ}, s64' if vt and EC else ''}
            {'' if vt else f's_cmp_lt_u32 s{sJ}, 2' + chr(10) + f's_cselect_b32 s{A.sREQ}, {0x504 if EXT else 4}, s{A.sREQ}'}
            s_lshl_b32 s64, s{A.sWAVE}, {14 + NU}
            s_add_u32 s{A.sPB}, s64, s{A.sPO}
            s_add_u32 s{A.sPB + 1}, s{A.sPB}, 4096
            s_add_u32 s{A.sPB + 2}, s{A.sPB}, {E(8192)}
            s_add_u32 s{A.sPB + 3}, s{A.sPB}, {E(12288)}
            """)
        w3 = L(f"v_min_u32 v25, 15, v0\nv_lshlrev_b32 v25, {FSH}, v25\nv_{'max' if SW else 'min'}_u32 v13, {(8 if SW else 7) << FSH}, v25")
        w4 = L(f"s_lshl_b32 s{A.sM0}, s{A.sWAVE}, 13") + jumps[:8] + L(F1_LOAD) + jumps[8:]
        w5 = L(f"""
            {f'v_add_u32 v10, s{A.sM0}, v{A.vL16}' + chr(10) + f'v_add_u32 v10, s{A.sM0}, v10' if NU else f'v_add_u32 v10, s{A.sM0}, v{A.vL16}'}
            v_add_u32 v11, 0x1000, v10
            v_cmp_eq_u32 vcc, 0, v24
            s_lshl_b32 s64, s{A.sWAVE}, 10
            s_cbranch_vccnz L_f1s{vt}4
            L_f1r{vt}4:
            """) + dma_flat(3, A.sK, 10) + adv_k() + L(f"""
            v_mov_b32 v{A.vFL}, v25
            v_lshrrev_b32 v24, 4, v0
            v_lshlrev_b32 v24, 2, v24
            v_and_b32 v25, 15, v0
            v_sub_u32 v24, v24, v25
            s_add_u32 s64, s64, s{A.sPO}
            s_add_u32 s{A.sPS}, s64, {E(65536)}
            s_mov_b32 s{A.sLO}, {hex(f2u(float(opt['lo'])))}
            s_and_b32 s65, s{A.sREQ}, {hex(15 << 4 * (JC - 3 - EXT)) if vt and EC else 0}
            s_cmp_eq_u32 s{A.sWAVE}, 0
            s_cselect_b32 s{A.sRT}, s{A.sREQ}, s65
            s_lshr_b32 s64, s{K.sWAVE}, 1
            s_lshl_b32 s64, s64, 17
            s_and_b32 s65, s{K.sWAVE}, 1
            s_lshl_b32 s65, s65, 12
            s_add_u32 s64, s64, s65
            v_add_u32 v14, s64, v7
            v_mov_b32 v{A.vNEG}, 0xff800000
            """) + [I(f"v_cmp_lt_i32 s[{A.sTRI[e]}:{A.sTRI[e]+1}], {-e}, v24") for e in range(4)]
        head6 = L(f"""
            {F2_LOAD}
            v_mov_b32 v{A.vF0}, v15
            v_add_u32 v{A.vRD1}, 0x10000, v{A.vL16}
            v_mov_b32 v{A.vDM0}, v10
            v_mov_b32 v{A.vDM1}, v11
            s_mov_b64 s[60:61], s[76:77]
            s_mov_b32 s62, s78
            s_mov_b32 s63, 0x20000
            """) + side.code_addr(0, 10)
        kvq.X6LOW = True; asmlib.VMX = False
        body, left = kvq.kv_to_q(pt, O(o + "15"), [int(x, 16) for x in opt[o + "st"]], O(o + "f"), [side.flag_store(sFL, 15, 12)], lambda: fst(2, 26),
                                 {0: w0, 1: w1_, 2: yadr if vt == 0 else [], 3: w3, 4: w4, 5: w5}, head6, dma_flat(1, A.sK) + adv_k(),
                                 [] if vt else [[i] for i in yst], 16)
        asmlib.VMX = True
        assert len(left) == (8 if vt else 0), len(left)
        st = kvq.Storer(A.sT1, "KV4")
        park = [I(f"v_accvgpr_write_b32 a{128 + 4*n + e}, v{int(r[2:r.index(':')]) + e}") for n, (r, off) in enumerate(left) for e in range(4)]
        later = [st.st(R("a", 128 + 4 * n, 4), off) for n, (r, off) in enumerate(left)]
        xch = ([WAITV([("T", 3)], lgkm0=True), I("s_barrier")] + stamp(26) + rd_batch(3, 0) + q_from_lds() +
               L(f"""v_cmp_eq_u32 vcc, 0, v24
               v_mov_b32 v{A.vX + 7}, {3 if vt else 4 + EXT}
               v_or_b32 v{A.vRL + 1}, s{A.sNC}, v{A.vL16}
               s_cbranch_vccnz L_f1s{vt}5
               L_f1r{vt}5:
               s_mov_b32 s{A.sT1}, s{K.sOOFF}
               {f's_add_u32 s{A.sT0}, s94, s{sSEL}' if NU else f's_mov_b32 s{A.sT0}, s94'}
               s_cmp_eq_u32 s{A.sWAVE}, 0
               s_cselect_b32 s{A.sPT}, {(4 + EXT) * vt}, 0""") + [I(f"v_mov_b32 v{A.vNM + r}, {NM0}") for r in range(8)] + [NEED(R("a", 0, 96))])
        g, sm = first_qk(False)
        g.sc[46][0].tag = g.sc[46][0].tag + ["KVST", "KVM"]
        g.put(48 + 2, side.flag_store(sFL, A.vF0, A.vX + 7))
        nq = O('nq')
        qst = [([I(f"s_add_u32 s3, s{A.sQ}, {E((n >> 2) * 4096)}")] if n % 4 == 0 or n == nq else []) +
               [I(f"buffer_store_dwordx4 a[{4*n}:{4*n+3}], v{A.vRL + 1}, {WSR}, s3 offen offset:{(n & 3) * 1024} sc1", tag="QST")] for n in range(16)] if vt else []
        place_vm(g, [(dma_flat(2, A.sV), 1, 40)] + ([(flat(qst[:nq]), O('w0l'), 62)] if vt and nq else []))
        vq = VQ(); vq.add([I(f"v_mov_b32 v{r}, 0") for r in (A.vLS, A.vLS + 1)] + park)
        vq.run(g, 0, 0, 14)
        sm.run(g, 8, 64, final=False, upto=8)
        vq.run(g, 0)
        vq.force(g, 63, lambda i: i.op == "v_mov_b32")
        out += body + xch + g.flat() + stamp()
        if vt == 1:
            wo = [[I(f"s_add_u32 s3, s{A.sT0}, {E(n * 32768)}"), I(w[1].text, tag="KV4")] for n, w in enumerate(side.wo2_stores())]
            w_1 = win_qk(0, "L_st8", "L_rt8", groups=qst[nq:], dma=(3, A.sK, adv_k()), sm=sm, lo_check=True, dhi=40, vq=vq)
            dump = [i for at, i in vq.q[:max(0, len(vq.q) - 16)]]; vq.q = vq.q[len(dump):]
            if O('v') > 1: sys.stderr.write(f"; start: dumped {len(dump)}\n")
            if EXT:
                n0 = int(opt['l4'][0]); st.tag = "KV3"; st.cur = None
                l4 = [[st.st(R("a", 128 + 4 * n, 4), off) for n, (r, off) in enumerate(left[:n0])]]; st.cur = None
                l4.append([st.st(R("a", 128 + 4 * n, 4), off) for n, (r, off) in enumerate(left[n0:], n0)])
                wc = [int(x) for x in opt['wn']]; wn = [wo[sum(wc[:n]):sum(wc[:n + 1])] for n in range(4)]; assert sum(wc) == 7
                if SENT:
                    mk = [([I(f"s_add_u32 s3, s{A.sOP}, {10240 + (n >> 2) * 14336}")] if n % 4 == 0 or True else []) +
                          [I(f"buffer_store_dwordx4 a[232:235], v{A.vL16}, {WSR}, s3 offen offset:{(n & 3) * 1024} sc1", tag="KV4")] for n in range(8)]
                    mc = [int(x) for x in opt['mk']]; assert sum(mc) == 8
                    for n in range(3): wn[1 + n] = wn[1 + n] + mk[sum(mc[:n]):sum(mc[:n + 1])]
            def early(g):
                vq.run(g, 0); assert not vq.q
                for q in range(g.n):
                    for i in g.ve[q]:
                        if i.op.startswith("v_accvgpr"): assert not any(set(i.reads) & set(g.m[x].writes) for x in range(q + 1)), (q, i.text)
            c.block("kv1", "L_kv1:", out, w_1, dump, fst(3),
                    win_pv(0, cz=True, pre_dma=(0, A.sV), tags=["QST"], vq_first=early,
                           post=L(f"s_xor_b32 s3, s47, 64\nv_mov_b32 v{A.vRL}, 1") + (L(f"v_min_u32 v{A.vRL + 1}, 1, v{A.vL16}\nv_lshlrev_b32 v{A.vRL + 1}, 29, v{A.vRL + 1}\nv_or_b32 v{A.vRL + 1}, s{A.sNC}, v{A.vRL + 1}") if PW else
                                L(f"v_or_b32 v{A.vRL + 1}, s{A.sNC}, v{A.vF0}")) + [side.flag_store(3, A.vRL + 1, A.vRL)]), fst(3),
                    *([win_qk(1, "L_st9", "L_rt9", groups=later, ghi=60, scal=mask_regs(False, (0, 1))), fst(3),
                       win_pv(1, groups=wo, glo=1, ghi=34, dlo=4, scal=mask_regs(False, (3,)), tail=L("s_branch L_loop_mid"))] if not EXT else
                      [win_qk(1, "L_st9", "L_rt9", groups=l4[0], ghi=60), fst(3), win_pv(1, groups=l4[1], ghi=60), fst(3),
                       win_qk(0, "L_st12", "L_rt12", extra=L(FL_LOAD), groups=wn[0], glo=6, scal=mask_regs(False, (0, 1))),
                       win_pv(0, tags=["KV3"], groups=wn[1], ghi=44, chk=L(f"v_cmp_gt_u32 vcc, 3, v{A.vRL + 1}\ns_cbranch_vccnz L_f4s\nL_f4r:"),
                              post=L(f"v_mov_b32 v{A.vX + 7}, 4") + [side.flag_store(sFL, A.vF0, A.vX + 7)]), fst(3),
                       win_qk(1, "L_st13", "L_rt13", groups=wn[2], scal=mask_regs(False, (2, 3))),
                       win_pv(1, groups=wn[3], glo=1, ghi=20 if len(wn[3]) < 4 else 32, dlo=1 if len(wn[3]) < 4 else 4, tail=L("s_branch L_loop_mid"))]))
            b_ = c.blocks["kv1"]
            if not EXT: b_[-1:-1] = mask_regs(False, (2,))
            assert max(n for n, i in enumerate(b_) if i.tag == "KV4") < max(n for n, i in enumerate(b_) if i.kind == "dma")
        else:
            assert not vq.q
            c.block("kv0", "L_kv0:", out, f"s_cmp_eq_u32 s{sJ}, 0\ns_cbranch_scc1 L_j0")
            c.block("k1", win_qk(0, "L_st10", "L_rt10", dma=(3, A.sK, adv_k()), sm=sm, lo_check=True, dhi=40, scal=mask_regs(False)), fst(3),
                    win_pv(0, cz=True, pre_dma=(0, A.sV), tail=L(f"s_cmp_lg_u32 s{A.sIT}, 0\ns_cbranch_scc1 L_loop_top")), "s_branch L_p1")
            c.block("j0", "L_j0:", mask_regs(False), ZZ(), f"v_accvgpr_write_b32 a{aOF}, 0\nv_accvgpr_write_b32 a{aOF + 1}, 0", [i for kb in range(4) for i in mask_blk(0, kb, 0, inplace=True)], mask_regs(True),
                    zero_O_mfma(mix(init_softmax(0), dma_flat(3, A.sK) + adv_k() + L(FP_LOAD), 1, 100), A.vP1),
                    [i for kb in range(4) for i in mask_blk(1, kb, 1)], "s_branch L_p2")

def build_att(c):
    fs = lambda: fst(3)
    c.block("loop_top", ".p2align 6\nL_loop_top:", fs(), win_qk(1, "L_st1", "L_rt1", extra=[side.touch(0, 60, 0, nt=False)] if opt['tl'] == '1' else []), win_pv(1))
    c.block("loop_mid", "L_loop_mid:", fs(), win_qk(0, "L_st0", "L_rt0", head=L(f"s_and_b32 s{A.sREQ}, s{A.sRT}, 15\ns_cbranch_scc1 L_fll\nL_fllr:\ns_lshr_b32 s{A.sRT}, s{A.sRT}, 4")),
            win_pv(0, tail=L(f"s_sub_u32 s{A.sIT}, s{A.sIT}, 1\ns_cmp_lg_u32 s{A.sIT}, 0\ns_cbranch_scc1 L_loop_top"),
                   chk=L(f"""v_cmp_gt_u32 vcc, s{A.sREQ}, v{A.vRL + 1}
                   s_cbranch_vccnz L_fls0
                   L_flr0:
                   s_and_b32 s3, s{A.sPT}, 15
                   s_cbranch_scc1 L_pub3
                   L_pub3r:
                   s_lshr_b32 s{A.sPT}, s{A.sPT}, 4""")))
    LAY = O('lay'); assert EC or not LAY
    c.block("ph", "L_p1:", stamp(), f"s_cmp_eq_u32 s{A.sMODE}, 0\ns_cbranch_scc1 L_final_h",
            f"s_cmp_lt_u32 s{sJ}, {JC}\ns_cbranch_scc1 L_p1n" if LAY else f"s_cmp_ge_u32 s{sJ}, {JC}\ns_cbranch_scc1 L_p1c" if EC else "")
    c.block("p1", "L_p1n:", win_qk(1, "L_st5", "L_rt5", masked=True), fs(),
            win_pv(1, scal=mask_regs(True), valu=[i for kb in range(4) for i in mask_blk(1, kb, 1)], vlo=34, post=L(FP_LOAD)), fs())
    g = Gaps(qkB_mfmas())
    half_reads(g, 1, 2, [("T", 2)])
    half_dma(g, dma_flat(0, A.sV))
    ck = check(0, "L_st6")
    spread_any(g, softmax_half(0, 1) + ck[:2], 0, 28); g.put(31, ck[2])
    c.block("p2", "L_p2:", g.flat(), "L_rt6:", fs(), f"s_cmp_gt_u32 s{sJ}, {15 - JC}\ns_cbranch_scc1 L_p3o" if LAY else f"s_cmp_le_u32 s{sJ}, {15 - JC}\ns_cbranch_scc1 L_p3k",
            f"s_cmp_ge_u32 s{sJ}, {JC}\ns_cbranch_scc1 L_p3c" if not EC else "")
    smB = lambda: SM(groups_B(), add_l(0))
    pchk = lambda n: L(f"v_cmp_ne_u32 vcc, 1, v{A.vRL}\ns_cbranch_vccnz L_fps{n}\nL_fpr{n}:")
    lfin = lambda: add_l(1, (1,)) + zip2(xlane("v_add_f32", A.vLS, A.vX), xlane("v_add_f32", A.vLS + 1, A.vX + 1)) + L(f"v_rcp_f32 v{A.vRL}, v{A.vLS}\nv_rcp_f32 v{A.vRL+1}, v{A.vLS+1}")
    w2a = lambda: L(f"s_add_u32 s{A.sVn}, s{A.sVn}, {E(32768)}")
    c.block("p3o", "L_p3o:", win_pv(0, sm=smB(), nslot=0, end=check(1, "L_st2", only=1)), "L_rt2:", stamp())
    g = Gaps(pvB_mfmas())
    half_reads(g, 0, 3, [("T", 3)])
    half_dma(g, dma_flat(2, A.sVn) + w2a())
    spread_any(g, of_rd(A.vX + 4) + [i for ks in range(8) for i in cvt_ctx(ks, 0)], 1, 32)
    c.block("pBo", "L_pBo:", g.flat(), stamp(), "s_branch L_op1" if not LAY else "")
    pl = [I(f"buffer_load_dwordx4 v[{A.vX+4}:{A.vX+7}], v{A.vL16}, {WSR}, s{A.sPS} offen sc1")] + [
        I(f"buffer_load_dwordx4 a[{A.aX + 4*j}:{A.aX + 4*j + 3}], v{A.vL16}, {WSR}, s{A.sPB + j // 4} offen offset:{(j & 3) * 1024} sc1 {opt['pfl']}") for j in range(16)]
    cm = lambda qb, ks, hf: mfma(R("v", Oreg(2 * ks + hf, qb), 4), R("a", 246 - 2 * hf, 4), R("a", A.aX + (qb * 8 + ks) * 4, 4), R("v", Oreg(2 * ks + hf, qb), 4))
    if EC:
        n1 = O('n1')
        g = Gaps(qkB_mfmas(Freg5) + [cm(qb, ks, hf) for qb in range(2) for ks in range(8) for hf in range(2)])
        half_reads(g, 1, 2, [("T", 2)], bar=47, Freg4=Freg5)
        g.put_s(31, NEED(R("a", A.aX, 32))); g.put_s(45, NEED(R("a", A.aX + 32, 32)))
        place_vm(g, [(dma_flat(0, A.sV), 5, 44)])
        put_check(g, check(0, "L_st14"), SM(half_groups(0, 1)).run(g, 0, 56))
        c.block("p1c", "L_p1c:", win_qk(1, "L_st3", "L_rt3", masked=True, groups=[[i] for i in pl[:n1]], glo=1, ghi=60,
                                           scal_at=[(16 * kb + (4 if kb < 3 else 0), mask_regs(True, (kb,))) for kb in range(4)]), fs(),
                win_pv(1, valu=[i for kb in range(4) for i in mask_blk(1, kb, 1)], vlo=4, groups=[[i] for i in pl[n1:]], glo=2, ghi=46), fs(), f"""
                v_cmp_neq_f32 vcc, v{A.vNM}, v{A.vX+4}
                v_cmp_neq_f32 s[64:65], v{A.vNM+4}, v{A.vX+5}
                s_nop 0
                s_or_b64 vcc, vcc, s[64:65]
                s_cbranch_vccnz L_comb
                """)
        c.block("p2c", f"v_add_f32 v{A.vLS}, v{A.vX+6}, v{A.vLS}\nv_add_f32 v{A.vLS+1}, v{A.vX+7}, v{A.vLS+1}", g.flat(), "L_rt14:", fs(), "s_branch L_p3o" if not LAY else "")
    if not EC: c.block("p3c", "L_p3c:", pchk(0), win_pv(0, sm=smB(), nslot=0, end=check(1, "L_st3", only=1), groups=[[i] for i in pl], glo=0, ghi=60, nodma=True), "L_rt3:", stamp(),
            NEED(R("v", A.vX + 4, 4)), f"""
            v_cmp_neq_f32 vcc, v{A.vNM}, v{A.vX+4}
            v_cmp_neq_f32 s[64:65], v{A.vNM+4}, v{A.vX+5}
            v_add_f32 v{A.vX+6}, v{A.vX+6}, v{A.vLS}
            v_add_f32 v{A.vX+7}, v{A.vX+7}, v{A.vLS+1}
            s_or_b64 vcc, vcc, s[64:65]
            s_cbranch_vccnz L_comb
            """)
    F3 = lambda b, f: 192 + 4 * f if b == 2 else Freg(b, f)
    g = Gaps([pvB_mfma(db, kp, F3) for db in range(16) for kp in ((0, 1) if db % 2 == 0 else (1, 0))] + [cm(qb, ks, hf) for qb in range(2) for ks in range(8) for hf in range(2)])
    for b_, pos in ((1, [0, 0, 2, 2, 4, 4, 5, 6]), (2, [6, 8, 8, 10, 10, 12, 12, 14]), (3, [16, 16, 17, 18, 18, 19, 20, 20])):
        for f, k in enumerate(pos): g.put(k, rd_frag(0, b_, f, F3(b_, f)))
    g.put_s(7, NEED(R("a", Freg(1, 0), 16))); g.put_s(11, NEED(R("a", Freg(1, 4), 16))); g.put_s(15, NEED(R("a", 192, 16))); g.put_s(19, NEED(R("a", 208, 16)))
    g.put_s(23, NEED(R("a", Freg(1, 0), 32))); g.put_s(31, NEED(R("a", A.aX, 32))); g.put_s(47, NEED(R("a", A.aX + 32, 16))); g.put_s(55, NEED(R("a", A.aX + 48, 16)))
    g.put_s(34, WAITV([("T", 3)], lgkm0=True)); g.put_s(35, I("s_barrier"))
    for f, r in enumerate(rd_batch(3, 0)): g.put(44 + RPAT[0][f], r)
    g.put_s(62, NEED(R("a", Freg(0, 0), 32)))
    place_vm(g, [(dma_flat(1, A.sK) + dma_flat(2, A.sVn) + w2a(), 1, 61)])
    vq = VQ(); vq.add(L(f"v_mov_b32 v{A.vLS}, v{A.vX+6}\nv_mov_b32 v{A.vLS+1}, v{A.vX+7}") + of_rd(A.vX + 4))
    cv = [cvt_ctx(ks, 0) for ks in range(8)]
    for ks in range(8): vq.add(cv[ks][:-4], 4)
    nsub = len(vq.q)
    vq.run(g, 0, 0, 30); vq.force_level(g, lambda i: True, 0, 30)
    for ks in range(8): vq.add(cv[ks][-4:], 32 + 2 * ks + 5)
    vq.run(g, 0, 30); vq.force(g, 63, lambda i: True)
    if not EC: c.block("pBc", g.flat(), stamp())
    comb = [I("L_comb:")] + [I(pl[0].text), I("s_waitcnt vmcnt(0)")] + (dma_flat(1, A.sK) if not EC else []) + L(f"""
    s_nop 7
    v_sub_f32 v{A.vX}, v{A.vNM}, v{A.vX+4}
    v_sub_f32 v{A.vX+1}, v{A.vNM+4}, v{A.vX+5}
    v_max_f32 v{A.vX}, 0, v{A.vX}
    v_max_f32 v{A.vX+1}, 0, v{A.vX+1}
    """) + sub_S(1, (1,)) + (sub_S(0) if EC else []) + rescale_state() + (softmax_half(0, 0) if EC else sm_flat(groups_B())) + L(f"""
    v_sub_f32 v{A.vX}, v{A.vNM}, v{A.vX+4}
    v_sub_f32 v{A.vX+1}, v{A.vNM+4}, v{A.vX+5}
    v_cvt_i32_f32 v{A.vX}, v{A.vX}
    v_cvt_i32_f32 v{A.vX+1}, v{A.vX+1}
    v_ldexp_f32 v{A.vX}, 1.0, v{A.vX}
    v_ldexp_f32 v{A.vX+1}, 1.0, v{A.vX+1}
    v_and_b32 v{A.vX}, 0xffff0000, v{A.vX}
    v_and_b32 v{A.vX+1}, 0xffff0000, v{A.vX+1}
    v_fmac_f32 v{A.vLS}, v{A.vX}, v{A.vX+6}
    v_fmac_f32 v{A.vLS+1}, v{A.vX+1}, v{A.vX+7}
    v_lshrrev_b32 v{A.vX+2}, 16, v{A.vX}
    v_lshrrev_b32 v{A.vX+3}, 16, v{A.vX+1}
    """)
    n = 0
    for qb in range(2):
        for ks in range(8):
            for w in range(4):
                t = A.vT + (n % 8); n += 1
                o = Oreg(2 * ks + (w >> 1), qb) + 2 * (w & 1)
                comb += L(f"""v_accvgpr_read_b32 v{t}, a{A.aX + (qb * 8 + ks) * 4 + w}
                v_dot2c_f32_bf16 v{o}, v{t}, v{A.vX + 2 + qb}
                v_dot2c_f32_bf16 v{o+1}, v{t}, v{A.vX + qb}""")
    comb += L(f"s_nop 3\ns_branch {'L_p2' if EC else 'L_pBo'}")
    SP = O('sp')
    S5 = O('s5')
    slots = [3, 1, 2, 0, 4, 3, 1] if S5 else [3, 1, 2, 0, 3, 1, 2]
    def op_out(j, split=False):
        b = j & 1
        jo = j
        ins = L(f"s_add_u32 s{A.sT0}, s{A.sOP}, {E(2 * jo * 1024)}\ns_add_u32 s{A.sT1}, s{A.sOP}, {(32768 if NU else 14336) + E(2 * jo * 1024)}")
        for pp in range(2):
            if split and pp == 1: ins.append(64)
            for qb in range(2):
                a, d = Sreg(b, 2 * pp, qb), Sreg(b, 2 * pp + 1, qb)
                if BOP == 2 and j == 0 and pp == 0: ins += L(f"v_mul_f32 v{A.vSUM + 2 + qb}, -v{A.vNM + 4 * qb}, v{A.vRL + qb}")
                if BOP == 1 and j == 0 and pp == 0:
                    nm = A.vNM + 4 * qb
                    ins += L(f"""v_max3_f32 v{nm}, |v{a}|, |v{a+1}|, |v{a+2}|
                    v_max3_f32 v{nm}, |v{a+3}|, |v{d}|, v{nm}
                    v_max3_f32 v{nm}, |v{d+1}|, |v{d+2}|, v{nm}
                    v_mul_f32 v{nm}, {opt['bopk']}, v{nm}""") + [I(f"v_mov_b32 v{nm + e}, v{nm}") for e in (1, 2, 3)] + L(f"v_mul_f32 v{A.vSUM + 2 + qb}, -v{nm}, v{A.vRL + qb}")
                if BOP and j >= 3 - BOP: ins += [I(f"v_fma_f32 v{r + e}, v{r + e}, v{A.vRL + qb}, v{A.vSUM + 2 + qb}") for r in (a, d) for e in range(4)]
                else: ins += [I(f"v_mul_f32 v{r + e}, v{A.vRL + qb}, v{r + e}") for r in (a, d) for e in range(4)]
                ins += L(f"""v_cvt_pk_bf16_f32 v{a}, v{a}, v{a+1}
                v_cvt_pk_bf16_f32 v{a+1}, v{a+2}, v{a+3}
                v_cvt_pk_bf16_f32 v{a+2}, v{d}, v{d+1}
                v_cvt_pk_bf16_f32 v{a+3}, v{d+2}, v{d+3}""")
                ins.append(I(f"buffer_store_dwordx4 v[{a}:{a+3}], v{A.vL16}, {WSR}, s{A.sT0 + qb} offen offset:{pp * 1024} {opt['ofl'].replace('+', ' ')}", tag=("OP", j)))
        return ins
    fop0 = lambda: L(f"""
    s_sub_u32 s64, 15, s{sJ}
    s_min_u32 s64, s64, s{sJ}
    s_mul_i32 s{sFL}, s64, {2 * FSTR}
    s_and_b32 s64, s{sJ}, 8
    s_lshl_b32 s64, s64, 1
    s_add_u32 s64, s64, s{sH}
    s_lshl_b32 s64, s64, 2
    s_add_u32 s{sFL}, s{sFL}, s64
    s_add_u32 s{sFL}, s{sFL}, {WS_FOP}
    s_lshl_b32 s64, s{A.sWAVE}, 8
    s_add_u32 s{sFL}, s{sFL}, s64
    s_add_u32 s3, s{sFL}, {FSTR}
    v_lshrrev_b32 v{A.vX + 7}, 5, v{A.vL16}
    v_min_u32 v{A.vX + 7}, 1, v{A.vX + 7}
    v_lshlrev_b32 v{A.vX + 6}, 3, v{A.vL16}
    v_lshl_or_b32 v{A.vX + 6}, v{A.vX + 7}, 29, v{A.vX + 6}
    v_mov_b32 v{A.vX + 5}, 1
    """)
    R3 = opt['r3'] == '1'
    fop = (lambda: red3.fop(A.vL16, 40, sFL, 3)) if R3 else fop0
    vFV = 40 if R3 else A.vX + 5; EH = R3 and opt['eh'] == '1'
    def dbgst():
        if opt['dbgst'] == '0': return []
        o = f"""
        s_load_dwordx2 s[72:73], s[0:1], {A_DBG}
        v_accvgpr_read_b32 v11, a{aST+1}
        v_accvgpr_read_b32 v15, a{aST}
        v_lshrrev_b32 v12, 4, v{A.vL16}
        v_mov_b32 v13, {side.OOB}
        s_waitcnt lgkmcnt(0)
        {srd(68, 72, 256)}
        s_lshl_b32 s64, s2, 2
        s_add_u32 s64, s64, s{A.sWAVE}
        s_cmp_eq_u32 s64, {O('dbgst')}
        s_cselect_b32 s64, 0, {side.OOB}
        s_and_b32 s65, s{sJ}, 8
        s_or_b32 s65, s65, s{A.sWAVE}
        s_cmp_eq_u32 s65, 0
        s_cselect_b32 s65, 0, {side.OOB}
        """
        for n, ln in enumerate([int(x) for x in opt['dbgl'].split(',')]):
            o += f"s_add_u32 s66, s64, {4 * (2 + n)}\nv_cmp_eq_u32 vcc, {ln}, v12\nv_mov_b32 v14, s66\ns_nop 1\nv_cndmask_b32 v13, v13, v14, vcc\n"
        o += f"""buffer_store_dword v11, v13, s[68:71], 0 offen
        buffer_store_dword v15, v13, s[68:71], 0 offen offset:28
        s_sub_u32 s66, s{sSTK}, 1
        v_mov_b32 v13, {side.OOB}
        v_cmp_eq_u32 vcc, s66, v12
        v_mov_b32 v14, 4
        s_nop 1
        v_cndmask_b32 v13, v13, v14, vcc
        v_or_b32 v13, s65, v13
        buffer_atomic_umax v11, v13, s[68:71], 0 offen
        v_not_b32 v11, v11
        v_min_u32 v13, 1, v12
        v_lshlrev_b32 v13, 29, v13
        v_or_b32 v13, s65, v13
        s_nop 1
        buffer_atomic_umax v11, v13, s[68:71], 0 offen
        s_waitcnt vmcnt(0)
        """
        return L(o)
    fin = lambda: (L("s_mov_b64 exec, -1\ns_waitcnt vmcnt(0)") + stamp(30) + L(f"""
        s_lshl_b32 s{A.sT0}, s2, 2
        s_add_u32 s{A.sT0}, s{A.sT0}, s{A.sWAVE}
        s_lshl_b32 s{A.sT0}, s{A.sT0}, 9
        s_add_u32 s{A.sT0}, s{A.sT0}, {WS_STAMP}
        v_lshrrev_b32 v10, 1, v{A.vL16}
        buffer_store_dwordx2 a[{aST}:{aST+1}], v10, {WSR}, s{A.sT0} offen
        """) + dbgst()) if STAMP else []
    def last_reads(g, slot):
        for b in range(1, 4):
            for f, r in enumerate(rd_batch(slot, b)): g.put((b - 1) * 16 + RPAT[0][f], r)
            g.put_s(b * 16 - 1, NEED(R("a", Freg(b, 0), 32)))
    ctx_v = lambda qb, ks: R("v", Oreg(2 * ks, qb), 4)
    ctx_a = lambda qb, ks: R("a", A.aX + (qb * 8 + ks) * 4, 4)
    pub = lambda: [WAITV([("OP", 6)])] + L(f"buffer_store_dword v{vFV}, v{vFV + 1}, {WSR}, s3 offen sc1") + stamp(30)
    def outproj(tag, ctx, first=(), tags0=(), post0=()):
        ow = []
        for j in range(7):
            k = 2
            if j == 0 and tag:
                g = Gaps(qk_mfmas(0, "zero", breg=ctx, order=[(kb, qb) for qb in range(2) for kb in range(4)], fr=Freg4))
                half_reads(g, slots[0], slots[1], [("T", slots[1])], bar=47)
                def cv0():
                    vq = VQ()
                    for ks in range(8): vq.add(cvt_ctx(ks, 1), 3 if ks > 5 else 0)
                    k = vq.run(g, 0, 0, 31); vq.force_level(g, lambda i: True, 0, 31); return min(k, 31)
                if not S5: k = cv0()
            else:
                g = Gaps(qk_mfmas(j & 1, "nm" if BOP and j >= 3 - BOP else "zero", breg=ctx, snk=j < 6))
                if j < 6: weave_reads(g, slots[j], slots[j + 1], [("T", slots[j + 1])] + (list(tags0) if j == 0 else []))
                else: last_reads(g, slots[j])
            if j == 0:
                kk = 48 if not PW else O('pfg') - 4
                for i in post0: kk = g.fit(kk, i) if i.slots()[0] else g.fit_s(kk + (i.op == "WAITV"), i) + 1
            if S5 and j == 0: place_vm(g, [(dma_flat(0, A.sVn) + w2a() + dma_flat(4, A.sVn) + w2a(), 1 if not tag else 5, 61)])
            elif S5:
                if j < 3: weave_dma(g, slots[j + 4], A.sVn, w2a(), 1, O('odh5'))
                if j == 2: g.fit(30, I(f"v_add_u32 v43, 0x20000, v{A.vL16}"))
            elif j + 3 < 7: weave_dma(g, slots[j + 3], A.sVn, w2a(), k if j == 0 else 1, 60 if j == 0 else O('odh'))
            if j == 0 and tag and S5: k = cv0()
            if j == 0: assert not seq_fit(g, list(first) + (fop() if not (tag or S5) else []), k)[1]
            if j == 0 and BOP == 2:
                est = []
                for qb in range(2):
                    a, nm = Sreg(0, 0, qb), A.vNM + 4 * qb; d = Sreg(0, 1, qb)
                    est += L(f"""v_max3_f32 v{nm}, |v{a}|, |v{a+1}|, |v{a+2}|
                    v_max3_f32 v{nm}, |v{a+3}|, |v{d}|, v{nm}
                    v_max3_f32 v{nm}, |v{d+1}|, |v{d+2}|, v{nm}
                    v_mul_f32 v{nm}, {opt['bopk']}, v{nm}""") + [I(f"v_mov_b32 v{nm + e}, v{nm}") for e in (1, 2, 3)]
                if tag: spread_any(g, est[:7], 40, 52); spread_any(g, est[7:], 52, 62)
                else: spread_any(g, est, 36, 62)
            if j == 3 and (tag or S5): assert not seq_fit(g, fop(), 1)[1]
            if j == 2: assert not seq_fit(g, side.sel_a(A.vL16), 1)[1]
            if j in (4, 5): assert not seq_fit(g, {4: side.sel_b(tag), 5: side.sel_c()}[j], 40 if j == 5 else 2)[1]
            if j == O('efw'):
                assert not seq_fit(g, [WAITV([("OP", (side.NE - 1) // 2)]), I(f"buffer_store_dword v{vFV}, v{vFV + 1}, {WSR}, s{sFL} offen sc1")], O('efg'))[1]
            if j == 6 and tag and SENT:
                assert EH and not seq_fit(g, L(f"s_sub_u32 s64, s{sJ}, 8\ns_and_b32 s64, s64, {side.OOB}\ns_or_b32 s64, s64, s3") +
                                          [WAITV([("OP", 4)]), I(f"buffer_store_dword v{vFV}, v{vFV + 1}, {WSR}, s64 offen sc1")], O('sg'))[1]
            if SP and tag and j == 4: scal_fit(g, L("s_mov_b32 s92, 0"))
            if SP and not tag:
                if j == 3: assert not seq_fit(g, L(f"s_add_u32 s92, s{sFL}, 2048") + [WAITV([("OP", 1)]), I(f"buffer_store_dword v{vFV}, v{vFV + 1}, {WSR}, s92 offen sc1")], O('spa'))[1]
                if j == 4:
                    pre_, ld_ = red3.pf_poll(); link(pre_ + [ld_]); k0 = scal_fit(g, pre_, 12); g.fit(max(k0 + 1, O('spp')), ld_)
                if j == 5:
                    pfl = red3.pf_loads(A.vL16); k0 = scal_fit(g, red3.pf_test(), O('spt'))
                    place_vm(g, [([i for x in pfl[:8] for i in x], k0 + 1, 62)], relax=True)
                if j == 6: place_vm(g, [([i for x in pfl[8:] for i in x], 1, 40)], relax=True)
            if j > 0: k = fill_valu(g, op_out(j - 1), 3, 58 if j < 6 else 36)
            if j == 6: k, last = seq_fit(g, op_out(6, True), max(k, 38))
            if tag and j in (0, 3, 5):
                n = {0: 1, 3: 2, 5: 3}[j]
                g.put_s(62, I(f"s_cmp_eq_u32 s{sJ}, {O('jy')}")); g.put_s(63, I(f"s_cbranch_scc1 L_y{n}"))
            ow += g.flat() + (L(f"L_y{n}r:") if tag and j in (0, 3, 5) else []) + fst(4, 30)
        return ow + stamp(30) + [i for i in last if not isinstance(i, int)] + ([] if EH else pub())
    c.block("op1", "L_op1:", outproj(1, ctx_v, lfin()), f"s_cmp_lt_u32 s{sJ}, 8\ns_cbranch_scc1 L_red")
    if R3:
        mv, farv = red3.main_v(A.vL16, lambda: stamp(30), O('lagv'), SENT)
        pubv = lambda: stamp(30) if SENT else pub() if EH else []
        c.block("end1", f"s_cmp_eq_u32 s{A.sWAVE}, 3\ns_cbranch_scc1 L_vend3", red3.head(True), pubv(), mv, "L_vend:", fin(), "s_endpgm")
        c.block("end3", "L_vend3:", pubv(), "s_branch L_vend", "s_waitcnt vmcnt(0)", farv)
    else: c.block("end1", fin(), "s_endpgm")
    qld = [[I(f"buffer_load_dwordx4 a[{4*n}:{4*n+3}], v{A.vL16}, {WSR}, s{72 + n // 4} offen offset:{(n & 3) * 1024} sc1 {opt['qfl']}")] for n in range(16)]
    c.block("p3k", "L_p3k:", f"""
            s_mov_b32 s72, s{A.sQ}
            s_add_u32 s73, s72, 4096
            s_add_u32 s74, s72, {E(8192)}
            s_add_u32 s75, s72, {E(12288)}
            """, pchk(1), win_pv(0, sm=smB(), nslot=0, end=check(1, "L_st7", only=1), groups=qld, glo=0, ghi=60, nodma=True), "L_rt7:", stamp())
    g = Gaps(pvB_mfmas())
    half_reads(g, 0, 3, [("T", 3)])
    half_dma(g, dma_flat(1, A.sK) + adv_k())
    scal_fit(g, L(f"s_sub_u32 s{A.sIT}, {15 - JC}, s{sJ}\ns_mov_b32 s{A.sMODE}, 0"))
    vq = VQ()
    vq.add(lfin() + L(f"""v_accvgpr_write_b32 a192, v{A.vRL}
        v_accvgpr_write_b32 a193, v{A.vRL + 1}
        v_mov_b32 v{A.vLS}, 0
        v_mov_b32 v{A.vLS + 1}, 0""") + [I(f"v_mov_b32 v{A.vNM + r}, {NM0}") for r in range(8)])
    vq.add(of_rd(A.vX + 4))
    for ks in range(8):
        for qb in range(2):
            vq.add(cvt_ctx(ks, qb), 4 * ks + 7 if qb else 0)
            vq.add([I(f"v_accvgpr_write_b32 a{A.aX + (qb * 8 + ks) * 4 + e}, v{Oreg(2 * ks, qb) + e}") for e in range(4)], 32)
    vq.run(g, 0)
    vq.force(g, 31, lambda i: f"v{A.vNM + 7}" in i.writes)
    w_b = g.flat()
    g, sm = first_qk(False)
    g.pre = [NEED(R("a", 0, 64))]
    g.put(40, I(f"v_cmp_gt_u32 vcc, 3, v{A.vRL + 1}")); g.put_s(43, I("s_cbranch_vccnz L_f2s")); g.put_s(43, I("L_f2r:"))
    place_vm(g, [(dma_flat(2, A.sV), 3, 44), ([I(FL_LOAD)], 0, 1)])
    sm.run(g, 8, 64, final=False, upto=8)
    vq.run(g, 32)
    vq.q = [(0, i) for at, i in vq.q]
    w_1 = win_qk(0, "L_st11", "L_rt11", dma=(3, A.sK, adv_k()), sm=sm, lo_check=True, vq=vq, dhi=40)
    npk = O('npk') if not BPV['on'] else 8; dump = [i for at, i in vq.q[:max(0, len(vq.q) - npk)]]; vq.q = vq.q[len(dump):]
    if O('v') > 1: sys.stderr.write(f"; switch: dumped {len(dump)}\n")
    def early(g):
        vq.run(g, 0); assert not vq.q
        for q in range(g.n):
            for i in g.ve[q]:
                if i.op.startswith(("v_cvt", "v_accvgpr")): assert not any(set(i.reads) & set(g.m[x].writes) for x in range(q + 1)), (q, i.text)
    c.block("sw", w_b, stamp(), g.flat(), fs(), w_1, dump, fs(),
            win_pv(0, cz=True, vq_first=early, pre_dma=(0, A.sV), tail=L(f"s_cmp_lg_u32 s{A.sIT}, 0\ns_cbranch_scc1 L_loop_top")), stamp())
    pst = lambda ks, qb: [I(f"buffer_store_dwordx4 v[{Oreg(2*ks, qb)}:{Oreg(2*ks, qb)+3}], v{A.vL16}, {WSR}, s{A.sPB + (qb*8+ks) // 4} offen offset:{(ks & 3) * 1024} sc1", tag="PST")]
    g = Gaps(pv_mfmas(1))
    weave_reads(g, 0, 3, [("T", 3)])
    k = 0; rest = []
    for ks in range(8):
        for qb in range(2):
            ins = cvt_ctx(ks, qb, A.vX + 6) + pst(ks, qb)
            if rest: rest += ins; continue
            k, rest = seq_fit(g, ins, max(k, 8 * ks + (7 if att3.SNK else 5 + 2 * qb) + 4))
    c.block("final_h", "L_final_h:", WAITV([("T", 0)], lgkm0=True), "s_barrier", rd_batch(0, 0), mix(softmax_half(1, 1), dma_flat(2, A.sVn) + w2a(), 1), check(1, "L_st4"), "L_rt4:", add_l(1), f"""
    v_mov_b32 v{A.vX+2}, v{A.vNM}
    v_mov_b32 v{A.vX+3}, v{A.vNM+4}
    v_mov_b32 v{A.vX+4}, v{A.vLS}
    v_mov_b32 v{A.vX+5}, v{A.vLS+1}
    buffer_store_dwordx4 v[{A.vX+2}:{A.vX+5}], v{A.vL16}, {WSR}, s{A.sPS} offen sc1
    """, of_rd(A.vX + 6), NEED(R("a", Freg(0, 0), 32)), stamp(), g.flat(), rest, stamp())
    c.block("op0", outproj(0, ctx_a, L(f"v_accvgpr_read_b32 v{A.vRL}, a192\nv_accvgpr_read_b32 v{A.vRL + 1}, a193"), ["PST"] if not PW else [],
                           L(f"s_xor_b32 s47, s47, 64\nv_mov_b32 v{A.vT}, 1") + ([side.flag_store(47, A.vF0, A.vT)] if not PW else
                           L(f"v_min_u32 v{A.vT + 1}, 1, v{A.vL16}\nv_lshlrev_b32 v{A.vT + 1}, 29, v{A.vT + 1}") + [WAITV(["PST"]), side.flag_store(47, A.vT + 1, A.vT)])))
    rm, far = red3.main_k(A.vL16, lambda: stamp(30), O('lag'), SP) if R3 else side.red_main(A.vL16, lambda: stamp(30), O('lag'), True, False)
    c.block("red", "L_red:", red3.head(False) if R3 else side.red_a(A.vL16), pub() if EH else [], rm, fin(), "s_endpgm")
    c.block("redfar", far)
    c.block("rpoll", red3.poll2(O('p2')) if O('p2') else side.red_poll())
    c.block("comb", comb)
    stubs = ""
    for n, b in ((0, "0"), (1, "1"), (2, "B"), (3, "1" if EC else "B"), (4, "1n"), (5, "1"), (6, "0B"), (7, "B"), (8, "f"), (9, "1"), (10, "f"), (11, "f")) + (((14, "0B"),) if EC else ()) + (((12, "0"), (13, "1")) if EXT else ()):
        stubs += f"L_st{n}:\ns_call_b64 s[{A.sRET}:{A.sRET+1}], L_slow{b}\ns_branch L_rt{n}\n"
    c.block("stubs", stubs)
    for nm, b, oth in (("0", 0, (0, 1)), ("1", 1, (0, 1)), ("1n", 1, ()), ("0B", 0, (1,)), ("B", 1, ()), ("f", 0, (0, 1))): c.block("slow" + nm, slow_sub(nm, b, oth))
    c.block("moe", red3.moe() if R3 else side.red_moe(), side.y_reduce2(lambda n: Oreg(2 * (n >> 1) + 1, n & 1)))
    c.block("spins", f"""
    L_fll:
    s_cmp_lg_u32 s{A.sREQ}, 15
    s_cbranch_scc1 L_fll1
    v_mov_b32 v{A.vFL}, 0
    s_mov_b32 s46, s47
    s_mov_b32 s{A.sREQ}, 1
    L_fll1:
    {FL_LOAD}
    s_branch L_fllr
    L_pub3:
    v_mov_b32 v{A.vX + 7}, s3
    """, side.flag_store(sFL, A.vF0, A.vX + 7), "s_branch L_pub3r",
            *[side.spin_stub(f"L_fhs{n}", f"L_fhr{n}", side.FH0_LOAD, 24, 91, "v_cmp_gt_u32 vcc, 1, v{vt}") for n in range(2)],
            *[side.spin_stub(f"L_fps{n}", f"L_fpr{n}", FP_LOAD, A.vRL, A.sSPIN) for n in range(EC, 2)],
            side.spin_stub("L_f4s", "L_f4r", FL_LOAD, A.vRL + 1, A.sSPIN, "v_cmp_gt_u32 vcc, 3, v{vt}") if EXT else [],
            side.spin_stub("L_f2s", "L_f2r", FL_LOAD, A.vRL + 1, A.sSPIN, "v_cmp_gt_u32 vcc, 3, v{vt}"),
            side.spin_stub("L_fls0", "L_flr0", FL_LOAD, A.vRL + 1, A.sSPIN, f"v_cmp_gt_u32 vcc, s{A.sREQ}, v{{vt}}"))

def layout(c):
    if opt['lay'] == '0': return
    seq = ["ph", "p1c", "p2c", "p3o", "pBo", "op1", "end1", "end3", "p1", "p2", "p3k"]
    o = [b for b in c.order if b not in seq]; k = o.index("loop_mid") + 1
    c.order = o[:k] + seq + o[k:]; assert c.order[c.order.index("p3k") + 1] == "sw"

def early_stubs(c):
    c.block("spins0", side.z_stub(0), side.z_stub(1), hw.key_stub(),
            *[side.spin_stub(f"L_f1s{n}{w}", f"L_f1r{n}{w}", F1_LOAD if w == 4 else F2_LOAD, 24, 91, "v_cmp_eq_u32 vcc, 0, v{vt}") for n in range(2) for w in (4, 5)])

def paths(c):
    lp = ["loop_top", "loop_mid"]
    for end in ((["ph", "p1", "p2", "p3c", "pBc"], ["ph", "p1", "p2", "p3o", "pBo"], ["ph", "p1", "p2", "p3c", "comb", "pBo"]) if not EC else
                (["ph", "p1c", "p2c", "p3o", "pBo"], ["ph", "p1", "p2", "p3o", "pBo"], ["ph", "p1c", "comb", "p2", "p3o", "pBo"])):
        c.path("entry", "kv1", "loop_mid", *lp, *lp, *end, "op1", "end1")
    if opt['r3'] == '1': c.path("entry", "kv1", "loop_mid", *lp, *lp, "ph", "p1", "p2", "p3o", "pBo", "op1", "end3")
    c.path("entry", "kv0", "k1", *lp, *lp, "ph", "p1", "p2", "p3o", "pBo", "op1", "red")
    for own in (["j0"], ["k1", "ph", "p1"], ["k1", *lp, "ph", "p1"], ["k1", *lp, *lp, "ph", "p1"]):
        for nh in (0, 1, 2):
            c.path("entry", "kv0", *own, "p2", "p3k", "sw", *(lp * nh + ["ph"] * (nh > 0)), "final_h", "op0", "red")
    for b in ("redfar", "rpoll", "stubs", "slow0", "slow1", "slow1n", "slow0B", "slowB", "slowf", "moe", "spins", "spins0"): c.path(b)

if __name__ == "__main__":
    c = CFG(verbose=O("v"))
    build_front(c); early_stubs(c); build_att(c); layout(c); paths(c)
    body = c.finalize()
    kn = NAME + "_kernel"
    print("; @launch grid=(256,1,1) block=(256,1,1) lds=163840")
    print('.amdgcn_target "amdgcn-amd-amdhsa--gfx950"\n.text')
    print(".macro M d, a, b, c\nv_mfma_f32_16x16x32_bf16 \\d, \\a, \\b, \\c\n.endm")
    print(kernel_header(kn))
    print(body.replace("  v_mfma_f32_16x16x32_bf16 ", "M ").replace("\n  ", "\n "))
    print("L_code_end:")
    print('.section .rodata,"a"\n.p2align 6')
    print(kernel_desc(kn, sgpr=102))
```

```python
from common import *
import side
from side import sWAVE, sH, sJ, WS, OOB, FOP_LOAD, poll_flags
RS = [dict(row=10, off=12, g=15, x=16, b=32, acc=48, nu=2, col=(75, 76)), dict(row=29, off=28, g=26, x=96, b=80, acc=64, nu=1, col=(86,))]
RV = dict(row=10, off=12, g=15, x=16, b=32, acc=48, nu=1, col=(86,))
RFL = ''
NL = chr(10)
OPH = lambda: 262144 if NUMA.on else OP_HEAD
WI = 0
def fop(vl16, t, sE, sL):
    return L(f"""
    s_sub_u32 s64, 15, s{sJ}
    s_min_u32 s64, s64, s{sJ}
    s_mul_i32 s{sE}, s64, {2 * FSTR}
    s_lshl_b32 s64, s{sWAVE}, 6
    s_add_u32 s64, s64, s{sH}
    s_lshl2_add_u32 s{sE}, s64, s{sE}
    s_add_u32 s{sE}, s{sE}, {WS_FOP}
    s_movk_i32 s65, 1024
    s_cmp_lt_u32 s{sJ}, 8
    s_cselect_b32 s64, {FSTR}, s65
    s_cselect_b32 s65, 0, 64
    s_cselect_b32 s66, 32, 64
    s_add_u32 s{sL}, s{sE}, s64
    s_add_u32 s{sE}, s{sE}, s65
    v_lshrrev_b32 v{t + 2}, 5, v{vl16}
    v_mul_u32_u24 v{t + 2}, {FSTR}, v{t + 2}
    v_and_b32 v{t + 1}, 16, v{vl16}
    v_lshl_add_u32 v{t + 1}, v{t + 1}, 3, v{t + 2}
    {f's_lshl_b32 s65, s{sWAVE}, 1' + NL + f's_lshr_b32 s65, s{sBM}, s65' + NL + f'v_bfe_u32 v{t + 2}, v{vl16}, 4, 1' + NL + f'v_lshrrev_b32 v{t + 2}, v{t + 2}, s65' + NL +
     f'v_and_b32 v{t + 2}, 1, v{t + 2}' + NL + f'v_lshl_add_u32 v{t + 1}, v{t + 2}, 13, v{t + 1}' if NUMA.fl else ''}
    v_mov_b32 v{t + 2}, {OOB}
    v_cmp_gt_u32 vcc, s66, v{vl16}
    v_mov_b32 v{t}, 1
    s_nop 0
    v_cndmask_b32 v{t + 1}, v{t + 2}, v{t + 1}, vcc
    """)
def rows(r):
    o = f"""
    v_mul_u32_u24 v{r['off']}, 896, v{r['row']}
    v_lshl_add_u32 v{r['off']}, v11, 4, v{r['off']}
    v_lshrrev_b32 v13, 4, v{r['row']}
    v_lshlrev_b32 v13, 5, v13
    v_and_b32 v104, 15, v{r['row']}
    v_add_lshl_u32 v13, v13, v104, 2
    buffer_load_dword v{r['g']}, v13, {WS}, s64 offen sc1
    {'s_mov_b32 s58, 0' if WI == 4 else ''}
    """
    for u in range(r['nu']): o += f"buffer_load_dwordx4 v[{r['x'] + 4*u}:{r['x'] + 4*u + 3}], v{r['off']}, s[56:59], s{r['col'][u]} offen\n"
    return L(o)
def head(V):
    pair = f"s_sub_u32 s64, 15, s{sJ}\ns_lshl_b32 s64, s64, 1" if V else f"s_lshl_b32 s64, s{sJ}, 1"
    out = L(f"""
    {pair}
    s_lshr_b32 s65, s{sH}, 3
    s_add_u32 s46, s64, s65
    s_mul_i32 s46, s46, {FSTR}
    s_and_b32 s72, s{sH}, 7
    s_lshl_b32 s66, s72, 7
    s_add_u32 s46, s46, s66
    s_add_u32 s46, s46, {WS_FOP + (1024 if V else 0)}
    {side.nu_bit(46, 66) if NUMA.fl else ''}
    v_and_b32 v14, {15 if V else 31}, v0
    v_lshlrev_b32 v14, 2, v14
    {FOP_LOAD}
    s_mul_i32 s86, s65, {3 if V else 4}
    s_add_u32 s86, s86, s{sWAVE}
    {'s_add_u32 s86, s86, 8' if V else ''}
    s_mul_i32 s77, s{sJ}, {16 * OPH()}
    s_mul_i32 s78, s72, {32768 if NUMA.on else 14336}
    s_add_u32 s77, s77, s78
    s_add_u32 s77, s77, {NUMA.OP if NUMA.on else WS_OP}
    {(f's_lshr_b32 s78, s{sBM}, s72' + NL + 's_and_b32 s78, s78, 1' + NL + 's_lshl_b32 s78, s78, 13' + NL + 's_add_u32 s77, s77, s78' if not NUMA.pl else
      f's_mul_i32 s90, s{sBM}, 0x01010101' + NL + 's_xor_b32 s90, s90, 0xff00ff00') if NUMA.on else ''}
    """) + (L(f"""
    s_lshl_b32 s78, s86, 10
    s_add_u32 s77, s77, s78
    {'s_add_u32 s77, s77, 8192' if NUMA.on else ''}
    """) if V else L(f"""
    s_sub_u32 s64, 15, s64
    s_sub_u32 s78, s64, 1
    s_mul_i32 s78, s78, {16 * OPH()}
    s_add_u32 s78, s78, s77
    s_lshl_b32 s66, s86, 10
    s_add_u32 s78, s78, s66
    {f's_or_b32 s78, s78, {OOB}' if WI == 3 else ''}
    s_lshl_b32 s66, s74, 10
    s_add_u32 s77, s77, s66
    {'s_and_b32 s66, s66, 8192' + NL + 's_add_u32 s77, s77, s66' if NUMA.on else ''}
    {f's_lshr_b32 s87, s{sH}, 3' + chr(10) + 's_sub_u32 s87, s87, 1' + chr(10) + f's_and_b32 s87, s87, {OOB}' + chr(10) + 's_or_b32 s77, s77, s87' if WI == 1 else f's_or_b32 s77, s77, {OOB}' if WI == 2 else ''}
    s_lshl_b32 s66, s64, 7
    """)) + L(f"""
    s_lshl_b32 s86, s86, 6
    {side.ROWMAP}
    s_lshl_b32 s65, s{sJ}, 7
    s_add_u32 s73, s73, s65
    v_and_b32 v10, 15, v0
    v_add_u32 v10, s73, v10
    {'' if V else 'v_add_u32 v29, s66, v10'}
    s_mov_b32 s64, {WS_RG + 64}
    """)
    for r in ([RV] if V else RS): out += rows(r) + [I(f"v_mov_b32 v{r['acc'] + n}, 0") for n in range(8 * r['nu'])]
    return out
def base_term(r, tag):
    n = r['nu']
    return [i for w in range(4 * n) for i in L(f"v_lshlrev_b32 v{r['b']+2*w}, 16, v{r['x']+w}\nv_and_b32 v{r['b']+1+2*w}, 0xffff0000, v{r['x']+w}")] + L(f"""
    v_sub_f32 v13, 1.0, v{r['g']}
    v_cmp_eq_u32 s[80:81], s84, v{r['row']}
    v_cmp_eq_u32 s[82:83], s85, v{r['row']}
    s_or_b64 vcc, s[80:81], s[82:83]
    s_cbranch_vccnz L_moe{tag}
    L_moe_ret{tag}:
    """) + [I(f"v_mul_f32 v{r['b']+e}, v13, v{r['b']+e}") for e in range(8 * n)]
def fin(r, note=""):
    o = []
    for u in range(r['nu']):
        if side.SWAP: o += [I("s_nop 2")] + [I(f"v_permlane16_swap_b32 v{r['acc']+8*u+e}, v{r['acc']+8*u+4+e}") for e in range(4)]
        o += [I(f"v_fmac_f32 v{r['b']+8*u+e}, v{r['g']}, v{r['acc']+8*u+e}") for e in range(8)]
        o += [I(f"v_cvt_pk_bf16_f32 v{r['x']+4*u+w}, v{r['b']+8*u+2*w}, v{r['b']+1+8*u+2*w}") for w in range(4)]
        o.append(I(f"buffer_store_dwordx4 v[{r['x']+4*u}:{r['x']+3+4*u}], v{r['off']}, s[52:55], s{r['col'][u]} offen {side.OSF}{note}"))
    return o
def dots(r, src): return [i for w in range(4 * r['nu']) for i in L(f"v_dot2c_f32_bf16 v{r['acc']+2*w}, v{src+w}, v24\nv_dot2c_f32_bf16 v{r['acc']+1+2*w}, v{src+w}, v25")]
START = f"v_cmp_eq_u32 vcc, 1, v9\ns_mov_b32 s91, {SPIN_MAX}\ns_mov_b32 s69, 0\n"
def main_v(vl16, st, lag, sent=False):
    out = L(START + "s_and_b32 s70, vcc_lo, 0xffff\ns_or_b32 s68, s70, 0xffff0000")
    adr = [12, 13, 14, 15, 16, 17, 18, 19, 21, 22, 23, 24, 48, 49, 50, 51]; far = []
    for k in range(16 + lag):
        if k < 16:
            out += L(f"""s_cmp_lg_u32 s70, 0
            s_cbranch_scc1 L_vk{k}
            s_call_b64 s[36:37], L_rpoll
            L_vk{k}:
            s_ff1_i32_b32 s71, s70
            s_bitset0_b32 s70, s71
            {('s_and_b32 s72, s71, 8' + NL + 's_lshl_b32 s72, s72, 10' if not NUMA.pl else 's_bitcmp1_b32 s90, s71' + NL + 's_cselect_b32 s72, 8192, 0') + NL + 's_xor_b32 s72, s72, s77' if NUMA.on else ''}
            s_mul_i32 s71, s71, {OPH()}
            s_add_u32 s{adr[k]}, s71, s{72 if NUMA.on else 77}
            buffer_load_dwordx4 v[{128+4*k}:{131+4*k}], v{vl16}, {WS}, s{adr[k]} offen sc1 {RFL}""")
        if k == 1: out += base_term(RV, 2)
        if k == 15: out += st()
        if k >= lag:
            kk = k - lag; r = 128 + 4 * kk
            out += [NEED(R("v", r, 4))]
            if sent:
                tst = f"v_max3_u32 v13, v{r}, v{r+1}, v{r+2}\nv_max_u32 v13, v13, v{r+3}\nv_cmp_eq_u32 vcc, -1, v13"
                out += L(tst + f"\ns_cbranch_vccnz L_vz{kk}\nL_vw{kk}:")
                far += L(f"""L_vz{kk}:
                buffer_load_dwordx4 v[{r}:{r+3}], v{vl16}, {WS}, s{adr[kk]} offen sc1
                s_waitcnt vmcnt(0)
                {tst}
                s_sub_u32 s91, s91, 1
                s_cbranch_scc1 L_vw{kk}
                s_cbranch_vccnz L_vz{kk}
                s_branch L_vw{kk}""")
            out += dots(RV, r)
    return out + st() + L("s_nop 1") + fin(RV), far
def pf_poll():
    return L(f"""
    s_mul_i32 s93, s{sJ}, {2 * FSTR}
    s_and_b32 s64, s{sH}, 7
    s_mul_i32 s94, s64, 14336
    s_lshl_b32 s64, s64, 7
    s_add_u32 s93, s93, s64
    s_add_u32 s93, s93, {WS_FOP + 2048}
    s_mul_i32 s64, s{sJ}, {16 * OP_HEAD}
    s_add_u32 s94, s94, s64
    s_lshl_b32 s64, s74, 10
    s_add_u32 s94, s94, s64
    s_add_u32 s94, s94, {WS_OP}
    s_lshl_b32 s64, s{sH}, 26
    s_and_b32 s64, s64, {OOB}
    s_or_b32 s94, s94, s64
    """), I(f"buffer_load_dword v44, v14, {WS}, s93 offen sc1")
def pf_test():
    return L(f"""
    v_cmp_ne_u32 vcc, 1, v44
    s_nop 0
    s_cmp_eq_u64 vcc, 0
    s_cselect_b32 s64, 0, {OOB}
    s_or_b32 s94, s94, s64
    s_and_b32 s92, s94, {OOB}
    s_xor_b32 s92, s92, {OOB}
    """)
def pf_loads(vl16): return [[I(f"buffer_load_dwordx4 v[{192+4*n}:{195+4*n}], v{vl16}, {WS}, s94 offen sc1 {RFL}"), I(f"s_add_u32 s94, s94, {OP_HEAD}")] for n in range(16)]
def main_k(vl16, st, lag, pf=False):
    out = L(START + "s_mov_b32 s70, vcc_lo\ns_mov_b32 s68, vcc_lo")
    if pf:
        out += [NEED("v[192:255]")] + L("s_cmp_eq_u32 s92, 0\ns_cbranch_scc1 L_npf") + [i for n in range(16) for i in dots(dict(RS[0], nu=1), 192 + 4 * n)] + L("L_npf:")
    far = []
    for k in range(32 + lag):
        if k < 32:
            r = 128 + 8 * (k % 16)
            out += L(f"""s_cmp_lg_u32 s70, 0
            s_cbranch_scc1 L_rk{k}
            s_call_b64 s[36:37], L_rpoll
            L_rk{k}:
            s_ff1_i32_b32 s71, s70
            s_bitset0_b32 s70, s71
            s_cmp_ge_u32 s71, 16
            s_cselect_b32 s72, s78, s77
            s_cselect_b32 s73, {hex(1 << k)}, 0
            s_cselect_b32 s87, {OOB}, 0
            {'s_cselect_b32 s88, 0, s92' if pf else ''}
            {('s_and_b32 s89, s71, 8' + NL + 's_lshl_b32 s89, s89, 10' if not NUMA.pl else 's_bitcmp1_b32 s90, s71' + NL + 's_cselect_b32 s89, 8192, 0') + NL + 's_xor_b32 s72, s72, s89' if NUMA.on else ''}
            s_mul_i32 s71, s71, {OPH()}
            s_add_u32 s71, s71, s72
            {'s_or_b32 s88, s88, s71' if pf else ''}
            buffer_load_dwordx4 v[{r}:{r+3}], v{vl16}, {WS}, s{88 if pf else 71} offen sc1 {RFL}
            s_or_b32 s69, s69, s73
            s_or_b32 s71, s71, s87
            buffer_load_dwordx4 v[{r+4}:{r+7}], v27, {WS}, s71 offen sc1 {RFL}""")
        if k in (1, 2): out += base_term(RS[k - 1], k - 1)
        if k == 31: out += st()
        if k >= lag:
            kk = k - lag; r = 128 + 8 * (kk % 16); f = 0 if kk < 16 else 1
            out += [NEED(R("v", r, 8))] + L(f"s_bitcmp{1 - f}_b32 s69, {kk}\ns_cbranch_scc1 L_rx{kk}") + dots(RS[f], r) + L(f"L_ry{kk}:")
            far += L(f"L_rx{kk}:") + dots(RS[1 - f], r) + L(f"s_branch L_ry{kk}")
        if k == 27:
            out += L(f"""s_and_b32 s71, s69, {hex((1 << (k - lag + 1)) - 1)}
            s_bcnt1_i32_b32 s71, s71
            s_cmp_eq_u32 s71, {k - lag + 1 - 16}
            s_cselect_b32 s66, 1, 0
            s_cbranch_scc0 L_rne""") + fin(RS[0], " ; nocount") + L("L_rne:")
    out += st() + L("s_nop 1") + fin(RS[1]) + L("s_cmp_eq_u32 s66, 1\ns_cbranch_scc1 L_rdone") + fin(RS[0]) + L("L_rdone:")
    return out, far
def moe():
    out = []
    for tag, r in ((0, RS[0]), (1, RS[1]), (2, RV)):
        out += L(f"L_moe{tag}:\ns_lshl_b32 s88, s{r['col'][0]}, 1\ns_call_b64 s[36:37], L_moe")
        out += [I(f"v_add_f32 v{r['b']+e}, v{108+e}, v{r['b']+e}") for e in range(8 * r['nu'])] + L(f"s_mov_b64 exec, -1\ns_branch L_moe_ret{tag}")
    return out + L(f"""
    L_moe:
    v_min_u32 v104, 27, v0
    v_lshlrev_b32 v104, 2, v104
    s_mov_b32 s64, {WS_FH + 512}
    """) + poll_flags(64, 64, "L_pfy", 105, 104, 65) + L(f"""
    s_or_b64 exec, s[80:81], s[82:83]
    v_mov_b32 v104, 1792
    v_cndmask_b32 v104, v104, 0, s[80:81]
    v_lshl_add_u32 v104, v11, 5, v104
    s_add_u32 s88, s88, {WS_YF}
    buffer_load_dwordx4 v[108:111], v104, {WS}, s88 offen sc1
    buffer_load_dwordx4 v[112:115], v104, {WS}, s88 offen offset:16 sc1
    buffer_load_dwordx4 v[116:119], v104, {WS}, s88 offen offset:512 sc1
    buffer_load_dwordx4 v[120:123], v104, {WS}, s88 offen offset:528 sc1
    s_waitcnt vmcnt(0)
    s_setpc_b64 s[36:37]
    """)

def poll2(half):
    ld = lambda v: FOP_LOAD.replace("v9,", f"v{v},")
    tst = lambda v: f"""s_waitcnt vmcnt(1)
    v_cmp_eq_u32 vcc, 1, v{v}
    s_sub_u32 s91, s91, 1
    s_cselect_b32 s70, -1, 0
    s_or_b32 s70, s70, vcc_lo
    s_andn2_b32 s70, s70, s68"""
    return L(f"""
    L_rpoll:
    {ld(9)}
    s_sleep {half}
    L_rpoll0:
    {ld(105)}
    {tst(9)}
    s_cbranch_scc1 L_rpollx
    {ld(9)}
    {tst(105)}
    s_cbranch_scc0 L_rpoll0
    L_rpollx:
    s_or_b32 s68, s68, s70
    s_setpc_b64 s[36:37]
    """)
```

```python
from common import *
S_WS, S_DBG = 8, 12
sWAVE, sH, sJ = 20, 41, 42
WS = f"s[{S_WS}:{S_WS+3}]"
OOB = 0x20000000

def wave_sum(regs, tmps):
    out = []
    for sh in ("row_ror:8", "row_ror:4", "row_ror:2", "row_ror:1"):
        for r in regs: out.append(I(f"v_add_f32 v{r}, v{r}, v{r} {sh} row_mask:0xf bank_mask:0xf"))
    for sw in ("v_permlane16_swap_b32", "v_permlane32_swap_b32"):
        for r, t in zip(regs, tmps): out.append(I(f"v_mov_b32 v{t}, v{r}"))
        for r, t in zip(regs, tmps): out.append(I(f"{sw} v{t}, v{r}"))
        for r, t in zip(regs, tmps): out.append(I(f"v_add_f32 v{r}, v{t}, v{r}"))
    return out

def sigmoid(r, t):
    return L(f"""v_mul_f32 v{t}, 0xbfb8aa3b, v{r}
    v_exp_f32 v{t}, v{t}
    v_add_f32 v{t}, 1.0, v{t}
    v_rcp_f32 v{r}, v{t}""")

RNT = 'nt'
def r_loads(zero=True):
    return L(f"""
    s_lshl_b32 s64, s2, 2
    s_add_u32 s64, s64, s{sWAVE}
    s_mul_i32 s72, s64, 1792
    """) + [I(f"v_mov_b32 v{40+r}, 0") for r in range(16 if zero else 0)] + L(f"""
    s_mov_b32 exec_hi, 0x00ffffff
    buffer_load_dwordx4 v[40:43], v7, s[56:59], s72 offen {RNT}
    buffer_load_dwordx4 v[44:47], v7, s[56:59], s72 offen offset:896 {RNT}
    buffer_load_dwordx4 v[48:51], v7, s[60:63], 0 offen
    buffer_load_dwordx4 v[52:55], v7, s[68:71], 0 offen
    s_mov_b64 exec, -1
    """)
def r_compute():
    out = [I(f"v_mov_b32 v{56+r}, 0") for r in range(4)]
    for w in range(4):
        for n, (xr, wr) in enumerate(((40, 48), (44, 48), (40, 52), (44, 52))):
            out.append(I(f"v_dot2c_f32_bf16 v{56+n}, v{xr+w}, v{wr+w}"))
    out += wave_sum([56, 57, 58, 59], [60, 61, 62, 63])
    out += L(f"""
    v_cmp_eq_u32 vcc, 0, v0
    v_cndmask_b32 v56, v57, v56, vcc
    v_cndmask_b32 v58, v59, v58, vcc
    s_lshl_b32 s64, s2, 3
    s_lshl_b32 s72, s{sWAVE}, 1
    s_add_u32 s64, s64, s72
    v_add_u32 v60, s64, v0
    v_ashrrev_i32 v61, 31, v56
    v_or_b32 v61, 0x80000000, v61
    v_xor_b32 v61, v61, v56
    v_and_b32 v61, 0xfffff800, v61
    v_sub_u32 v62, 2047, v60
    v_or_b32 v61, v61, v62
    v_max_u32 v61, 1, v61
    """) + sigmoid(58, 59) + L(f"""
    s_lshl_b32 s72, s{sWAVE}, 3
    s_add_u32 s72, s72, {LDS_R}
    v_lshl_add_u32 v60, v0, 2, s72
    s_mov_b64 exec, 3
    ds_write_b32 v60, v61
    ds_write_b32 v60, v56 offset:32
    ds_write_b32 v60, v58 offset:64
    s_mov_b64 exec, -1
    """)
    return out
def r_store(skip):
    return L(f"""
    s_cmp_lg_u32 s{sWAVE}, 0
    s_cbranch_scc1 {skip}
    v_lshlrev_b32 v28, 2, v0
    v_add_u32 v29, {LDS_R}, v28
    s_mov_b32 exec_hi, 0
    ds_read_b32 v29, v29 ; ignore
    s_lshl_b32 s72, s2, 7
    s_add_u32 s72, s72, {WS_R}
    s_waitcnt lgkmcnt(0) ; ignore
    buffer_store_dword v29, v28, {WS}, s72 offen sc1 ; nocount
    s_mov_b64 exec, -1
    s_cmp_ge_u32 s2, 13
    s_cbranch_scc1 {skip}
    v_mov_b32 v32, 0
    v_mov_b32 v33, 0
    v_mov_b32 v34, 0
    v_mov_b32 v35, 0
    s_lshl_b32 s72, s2, 10
    s_add_u32 s72, s72, {WS_FKV}
    buffer_store_dwordx4 v[32:35], v7, {WS}, s72 offen sc1 ; nocount
    {skip}:
    """)
def r_signal(skip):
    return L(f"""
    s_cmp_lg_u32 s{sWAVE}, 0
    s_cbranch_scc1 {skip}
    v_mov_b32 v28, 1
    s_mov_b64 exec, 1
    buffer_atomic_add v28, off, s[{S_DBG}:{S_DBG+3}], 0 sc1 ; nocount
    s_mov_b64 exec, -1
    {skip}:
    """)

def wo_dma():
    out = L(f"""
    v_lshrrev_b32 v28, 5, v0
    v_mul_u32_u24 v28, 896, v28
    v_and_b32 v29, 31, v0
    v_lshl_add_u32 v28, v29, 4, v28
    s_lshr_b32 s64, s{sJ}, 1
    s_lshl_b32 s64, s64, 5
    s_lshl_b32 s72, s{sH}, 8
    s_add_u32 s64, s64, s72
    s_lshl_b32 s72, s{sWAVE}, 3
    s_add_u32 s64, s64, s72
    s_mul_i32 s64, s64, 896
    s_and_b32 s72, s{sJ}, 1
    s_mul_i32 s72, s72, 448
    s_add_u32 s64, s64, s72
    s_lshl_b32 s72, s{sWAVE}, 12
    s_add_u32 m0, s72, 131072
    s_mov_b32 exec_lo, 0x0fffffff
    s_mov_b32 exec_hi, 0x0fffffff
    """)
    for j in range(4):
        out.append(I(f"buffer_load_dwordx4 v28, s[60:63], s64 offen offset:{1024*j} lds", tag="WO"))
        if j < 3: out.append(I(f"s_add_u32 s64, s64, {2*896 - 1024}"))
    out.append(I("s_mov_b64 exec, -1"))
    return out
def wo_setup():
    out = L(f"""
    v_and_b32 v28, 15, v0
    v_lshrrev_b32 v29, 4, v0
    v_lshrrev_b32 v30, 2, v28
    v_lshl_add_u32 v29, v29, 2, v30
    v_lshlrev_b32 v29, 9, v29
    v_and_b32 v28, 3, v28
    v_lshl_add_u32 v29, v28, 4, v29
    s_lshr_b32 s64, s{sWAVE}, 1
    s_lshl_b32 s64, s64, 6
    s_and_b32 s72, s{sWAVE}, 1
    s_lshl_b32 s72, s72, 3
    s_add_u32 s64, s64, s72
    s_add_u32 s64, s64, 131072
    v_add_u32 v31, s64, v29
    s_lshl_b32 s73, s{sH}, 18
    s_lshr_b32 s64, s{sJ}, 1
    s_lshl_b32 s64, s64, 10
    s_add_u32 s73, s73, s64
    s_add_u32 s73, s73, {WS_WO}
    s_and_b32 s74, s{sJ}, 1
    s_mul_i32 s74, s74, 14
    s_add_u32 s74, s74, s{sWAVE}
    """)
    for n in range(4):
        out += L(f"""
        s_add_u32 s64, s74, {4*n}
        s_lshr_b32 s72, s64, 2
        s_lshl_b32 s72, s72, 15
        s_and_b32 s64, s64, 3
        s_lshl_b32 s64, s64, 13
        s_add_u32 s72, s73, s72
        s_add_u32 s{76+n}, s72, s64
        """)
    out += L(f"""
    s_cmp_lt_u32 s{sWAVE}, 2
    s_cselect_b64 s[74:75], -1, 0
    """)
    return out
def wo_reads():
    return [I(f"ds_read_b64_tr_b16 a[{192+4*n+2*j}:{193+4*n+2*j}], v31 offset:{n*128 + j*8192}") for n in range(4) for j in range(2)]
def wo_stores():
    st = [[I(f"buffer_store_dwordx4 a[{176+4*n}:{179+4*n}], v7, {WS}, s{76+n} offen sc1" + (" ; nocount" if n == 3 else ""))] for n in range(4)]
    st[3] = [I("s_mov_b64 exec, s[74:75]")] + st[3] + [I("s_mov_b64 exec, -1")]
    return st

def set_flag(addr_sreg, skip, vt):
    return L(f"""
    s_cmp_lg_u32 s{sWAVE}, 0
    s_cbranch_scc1 {skip}
    v_mov_b32 v{vt}, 1
    s_mov_b64 exec, 1
    buffer_store_dword v{vt}, off, {WS}, s{addr_sreg} sc1 ; nocount
    s_mov_b64 exec, -1
    {skip}:
    """)
def poll_flags(addr_sreg, nl, label, vt, va, sc):
    return L(f"""
    s_mov_b32 s{sc}, {SPIN_MAX}
    s_mov_b32 exec_lo, {hex(((1 << nl) - 1) & 0xffffffff)}
    s_mov_b32 exec_hi, {hex(((1 << nl) - 1) >> 32)}
    {label}:
    buffer_load_dword v{vt}, v{va}, {WS}, s{addr_sreg} offen sc1
    s_sub_u32 s{sc}, s{sc}, 1
    s_cbranch_scc1 {label}_x
    s_waitcnt vmcnt(0)
    v_cmp_ne_u32 vcc, 1, v{vt}
    s_cbranch_vccz {label}_x
    s_sleep 2
    s_branch {label}
    {label}_x:
    s_waitcnt vmcnt(0)
    s_mov_b64 exec, -1
    """)
def poll_count(label, vt, sc, n):
    return L(f"""
    s_mov_b32 s{sc}, {SPIN_MAX}
    {label}:
    buffer_load_dword v{vt}, off, s[{S_DBG}:{S_DBG+3}], 0 sc1
    s_sub_u32 s{sc}, s{sc}, 1
    s_cbranch_scc1 {label}_x
    s_waitcnt vmcnt(0)
    v_cmp_gt_u32 vcc, {n}, v{vt}
    s_cbranch_vccnz {label}
    {label}_x:
    s_waitcnt vmcnt(0)
    """)

def h_keys(vl16):
    return [I(f"buffer_load_dwordx4 v[{64+4*n}:{67+4*n}], v{vl16}, {WS}, s{90 + n // 4} offen offset:{(n & 3) * 1024} sc1") for n in range(8)]
def h_keymin():
    out = L("v_min3_u32 v14, v64, v65, v66")
    for n in range(3, 31, 2): out += L(f"v_min3_u32 v14, v14, v{64+n}, v{65+n}")
    return out + L("v_min_u32 v14, v14, v95\nv_cmp_eq_u32 vcc, 0, v14")
def h_stub(vl16):
    return (L(f"L_hs:\ns_mov_b32 s64, {SPIN_MAX}\nL_hs_l:") + h_keys(vl16) + L("s_waitcnt vmcnt(0)\ns_sub_u32 s64, s64, 1\ns_cbranch_scc1 L_hr") +
            h_keymin() + L("s_cbranch_vccnz L_hs_l\ns_branch L_hr"))
def h_block(vl16, lds=65536, after=()):
    out = L(f"""
    s_load_dwordx4 s[64:67], s[0:1], {A_WG}
    s_load_dwordx2 s[72:73], s[0:1], {A_WD}
    s_load_dwordx2 s[74:75], s[0:1], {A_X}
    s_and_b32 s76, s{sH}, 7
    s_mul_i32 s76, s76, 14
    s_lshr_b32 s77, s{sH}, 3
    s_mul_i32 s77, s77, 7
    s_add_u32 s76, s76, s77
    s_add_u32 s76, s76, s{sJ}
    s_mov_b32 s90, {WS_KEY}
    s_mov_b32 s91, {WS_KEY + 4096}
    """)
    out += h_keys(vl16)
    out += L(f"""
    {srd(52, 64, 448*3584)}
    {srd(56, 66, 448*3584)}
    {srd(60, 72, 1792*896)}
    {srd(68, 74, 2048*896)}
    v_lshrrev_b32 v10, 1, v0
    v_mul_u32_u24 v10, 3584, v10
    v_and_b32 v11, 1, v0
    v_lshl_add_u32 v10, v11, 4, v10
    s_lshl_b32 s77, s76, 5
    s_and_b32 s78, s{sWAVE}, 1
    s_mul_i32 s79, s78, {7 * 32 * 3584}
    s_add_u32 s77, s77, s79
    s_mul_i32 s79, s{sWAVE}, 7168
    s_add_u32 s79, s79, {lds}
    s_cmp_lt_u32 s{sWAVE}, 2
    s_cselect_b32 s52, s52, s56
    s_cselect_b32 s53, s53, s57
    """)
    for n in range(7):
        out += L(f"""s_add_u32 m0, s79, {n * 1024}
        s_nop 0""") + [I(f"buffer_load_dwordx4 v10, s[52:55], s77 offen lds", tag="HW")] + L(f"s_add_u32 s77, s77, {32 * 3584}")
    out += L(f"""
    v_lshlrev_b32 v11, 2, v0
    s_mul_i32 s77, s76, {16 * 896}
    s_mul_i32 s78, s{sWAVE}, 224
    s_add_u32 s77, s77, s78
    s_mov_b32 exec_hi, 0x00ffffff
    """)
    for f in range(16):
        if f and f % 4 == 0: out.append(I(f"s_add_u32 s77, s77, {4 * 896}"))
        out.append(I(f"buffer_load_dword v{100+f}, v11, s[60:63], s77 offen offset:{(f & 3) * 896}"))
    out.append(I("s_mov_b64 exec, -1"))
    out += h_keymin() + L("s_cbranch_vccnz L_hs\nL_hr:")
    out += L("v_max_u32 v12, v64, v65\nv_min_u32 v13, v64, v65")
    for n in range(2, 32):
        out += L(f"v_med3_u32 v13, v12, v13, v{64+n}\nv_max_u32 v12, v12, v{64+n}")
    def merge():
        return L("""v_min_u32 v16, v12, v14
        v_max_u32 v12, v12, v14
        v_max3_u32 v13, v13, v15, v16""")
    for sh in ("row_ror:8", "row_ror:4", "row_ror:2", "row_ror:1"):
        out += L(f"""v_mov_b32 v14, v12 {sh} row_mask:0xf bank_mask:0xf
        v_mov_b32 v15, v13 {sh} row_mask:0xf bank_mask:0xf""") + merge()
    for sw in ("v_permlane16_swap_b32", "v_permlane32_swap_b32"):
        out += L(f"""v_mov_b32 v14, v12
        v_mov_b32 v15, v13
        {sw} v14, v12
        {sw} v15, v13""") + merge()
    out += L(f"""
    v_and_b32 v12, 0x7ff, v12
    v_and_b32 v13, 0x7ff, v13
    v_sub_u32 v12, 2047, v12
    v_sub_u32 v13, 2047, v13
    v_and_b32 v14, 1, v0
    v_cmp_eq_u32 vcc, 0, v14
    v_cndmask_b32 v14, v13, v12, vcc
    v_lshrrev_b32 v17, 3, v14
    v_lshlrev_b32 v17, 4, v17
    v_and_b32 v15, 7, v14
    v_add_lshl_u32 v17, v17, v15, 2
    s_mov_b32 s77, {WS_RG}
    buffer_load_dword v18, v17, {WS}, s77 offen sc1
    v_mul_u32_u24 v15, 896, v14
    v_lshrrev_b32 v16, 4, v0
    v_lshl_add_u32 v15, v16, 4, v15
    """)
    for ks in range(14):
        out.append(I(f"buffer_load_dwordx4 v[{128+4*ks}:{131+4*ks}], v15, s[68:71], 0 offen offset:{64*ks}"))
    out += L(f"""
    v_and_b32 v19, 15, v0
    v_lshrrev_b32 v19, 2, v19
    v_lshl_add_u32 v19, v16, 3, v19
    v_lshlrev_b32 v19, 5, v19
    v_and_b32 v20, 3, v0
    v_lshl_add_u32 v19, v20, 3, v19
    v_add_u32 v19, {lds}, v19
    """) + [WAITV(["HW", "KVST"]), I("s_barrier")] + list(after)
    for mt in range(2):
        for ks in range(14):
            for j in range(2):
                r = mt * 56 + ks * 4 + 2 * j
                out.append(I(f"ds_read_b64_tr_b16 a[{r}:{r+1}], v19 offset:{mt * 14336 + ks * 1024 + j * 128}"))
    for mt in range(2):
        for ks in range(14):
            d = R("v", 24 + 4 * mt, 4)
            out.append(mfma(d, R("v", 128 + 4 * ks, 4), R("a", mt * 56 + ks * 4, 4), d if ks else "0"))
    out += L("""
    v_cvt_pk_bf16_f32 v24, v24, v25
    v_cvt_pk_bf16_f32 v28, v28, v29
    v_lshlrev_b32 v20, 16, v24
    v_and_b32 v21, 0xffff0000, v24
    v_mov_b32 v22, v20
    v_mov_b32 v23, v21
    """) + sigmoid(22, 26) + sigmoid(23, 27) + L("""
    v_mul_f32 v20, v20, v22
    v_mul_f32 v21, v21, v23
    v_cvt_pk_bf16_f32 v24, v20, v21
    v_lshlrev_b32 v20, 16, v24
    v_and_b32 v21, 0xffff0000, v24
    v_lshlrev_b32 v22, 16, v28
    v_and_b32 v23, 0xffff0000, v28
    v_mul_f32 v20, v20, v22
    v_mul_f32 v21, v21, v23
    v_cvt_pk_bf16_f32 v24, v20, v21
    v_lshlrev_b32 v20, 16, v24
    v_and_b32 v21, 0xffff0000, v24
    """)
    out += [I(f"v_mov_b32 v{32+n}, 0") for n in range(4)]
    for f in range(16):
        out += L(f"""v_readlane_b32 s80, v20, {f}
        v_readlane_b32 s81, v21, {f}
        v_lshlrev_b32 v22, 16, v{100+f}
        v_and_b32 v23, 0xffff0000, v{100+f}
        v_fmac_f32 v32, s80, v22
        v_fmac_f32 v33, s80, v23
        v_fmac_f32 v34, s81, v22
        v_fmac_f32 v35, s81, v23""")
    out += L(f"""
    s_mul_i32 s77, s{sWAVE}, 448
    s_mul_i32 s78, s76, 3584
    s_add_u32 s77, s77, s78
    s_add_u32 s77, s77, {WS_Y}
    v_lshlrev_b32 v22, 3, v0
    s_mov_b32 exec_hi, 0x00ffffff
    buffer_store_dwordx2 v[32:33], v22, {WS}, s77 offen sc1
    buffer_store_dwordx2 v[34:35], v22, {WS}, s77 offen offset:1792 sc1
    s_mov_b64 exec, -1
    v_cvt_pk_bf16_f32 v18, v18, v18
    v_and_b32 v18, 0xffff0000, v18
    """) + sigmoid(18, 22) + L(f"""
    v_cvt_pk_bf16_f32 v18, v18, v18
    v_and_b32 v18, 0xffff0000, v18
    s_mov_b32 s77, {WS_SEL}
    s_or_b32 s78, s76, s{sWAVE}
    s_cmp_eq_u32 s78, 0
    s_cselect_b64 exec, 3, 0
    buffer_store_dword v14, v11, {WS}, s77 offen sc1 ; nocount
    buffer_store_dword v18, v11, {WS}, s77 offen offset:8 sc1 ; nocount
    s_mov_b64 exec, -1
    s_lshl_b32 s39, s76, 2
    s_add_u32 s39, s39, {WS_FH}
    """)
    return out

FH0_LOAD = f"buffer_load_dword v24, off, {WS}, s79 sc1"
FOP_LOAD = f"buffer_load_dword v9, v14, {WS}, s46 offen sc1"
EPAR, NE = 0, 7
def sel_a(vl16):
    return L(f"""
    {f's_and_b32 s79, s{sBM}, 1' + chr(10) + 's_lshl_b32 s79, s79, 13' + chr(10) + f's_add_u32 s79, s79, {WS_FL}' if NUMA.fl else f's_mov_b32 s79, {WS_FL}'}
    {FH0_LOAD}
    v_lshrrev_b32 v0, 4, v{vl16}
    v_and_b32 v14, 15, v0
    v_lshlrev_b32 v14, 2, v14
    v_lshrrev_b32 v11, 4, v0
    {GPERM}
    {srd(52, 96, 2048*896)}
    {f's_and_b32 s74, s{sH}, 1' if EPAR < 2 else f's_lshr_b32 s74, s{sH}, 3'}
    s_xor_b32 s74, s74, {EPAR & 1}
    s_mul_i32 s67, s74, {14 - 2 * NE}
    s_mul_i32 s74, s74, {NE}
    s_add_u32 s74, s74, s{sWAVE}
    s_lshl_b32 s75, s74, 6
    s_add_u32 s76, s75, 256
    s_add_u32 s67, s67, {NE - 5}
    s_sub_u32 s67, s67, s{sWAVE}
    s_and_b32 s67, s67, {OOB}
    s_or_b32 s76, s76, s67
    v_or_b32 v27, s67, v{vl16}
    v_add_u32 v27, 4096, v27
    """)
def sel_b(tag):
    return L(f"""
    v_cmp_gt_u32 vcc, {SELLV}, v24
    s_mov_b32 s65, {WS_SEL}
    s_cbranch_vccnz L_fhs{tag}
    L_fhr{tag}:
    buffer_load_dword v25, v14, {WS}, s65 offen sc1
    """)
def sel_c():
    return L("""
    v_readlane_b32 s84, v25, 0
    v_readlane_b32 s85, v25, 1
    v_mov_b32 v24, 0x3f80
    v_mov_b32 v25, 0x3f800000
    """)
RS = [dict(row=10, off=12, g=15, x=16, b=32, acc=48), dict(row=29, off=28, g=26, x=96, b=80, acc=64)]
OSF = ''
GPERM = ''
SWAP = False
WI = False
ROWMAP = 's_lshl_b32 s73, s72, 4'
SELLV = 4
def red_a(vl16):
    out = L(f"""
    s_lshl_b32 s64, s{sJ}, 1
    s_lshr_b32 s65, s{sH}, 3
    s_add_u32 s46, s64, s65
    s_mul_i32 s46, s46, {FSTR}
    s_and_b32 s65, s{sH}, 7
    s_lshl_b32 s65, s65, 7
    s_add_u32 s46, s46, s65
    s_add_u32 s46, s46, {WS_FOP}
    v_and_b32 v14, 31, v0
    v_lshlrev_b32 v14, 2, v14
    {FOP_LOAD}
    s_sub_u32 s64, 15, s64
    {f's_lshr_b32 s72, s{sH}, 1' if EPAR < 2 else f's_and_b32 s72, s{sH}, 7'}
    s_mul_i32 s77, s{sJ}, {16 * OP_HEAD}
    s_mul_i32 s78, s72, 14336
    s_add_u32 s77, s77, s78
    s_lshl_b32 s78, s74, 10
    s_add_u32 s77, s77, s78
    s_add_u32 s77, s77, {WS_OP}
    s_sub_u32 s78, s64, 1
    s_mul_i32 s78, s78, {16 * OP_HEAD}
    s_add_u32 s78, s78, s77
    {ROWMAP}
    s_lshl_b32 s65, s{sJ}, 7
    s_add_u32 s73, s73, s65
    s_lshl_b32 s64, s64, 7
    v_and_b32 v10, 15, v0
    v_add_u32 v10, s73, v10
    v_add_u32 v29, s64, v10
    s_mov_b32 s64, {WS_RG + 64}
    """)
    for r in RS:
        out += L(f"""
        v_mul_u32_u24 v{r['off']}, 896, v{r['row']}
        v_lshl_add_u32 v{r['off']}, v11, 4, v{r['off']}
        v_lshrrev_b32 v13, 4, v{r['row']}
        v_lshlrev_b32 v13, 5, v13
        v_and_b32 v104, 15, v{r['row']}
        v_add_lshl_u32 v13, v13, v104, 2
        buffer_load_dword v{r['g']}, v13, {WS}, s64 offen sc1
        buffer_load_dwordx4 v[{r['x']}:{r['x']+3}], v{r['off']}, s[56:59], s75 offen
        buffer_load_dwordx4 v[{r['x']+4}:{r['x']+7}], v{r['off']}, s[56:59], s76 offen
        """)
    return out + [I(f"v_mov_b32 v{48+n}, 0") for n in range(32)]
def red_b(t):
    r = RS[t]
    return [i for w in range(8) for i in L(f"v_lshlrev_b32 v{r['b']+2*w}, 16, v{r['x']+w}\nv_and_b32 v{r['b']+1+2*w}, 0xffff0000, v{r['x']+w}")] + L(f"""
    v_sub_f32 v13, 1.0, v{r['g']}
    v_cmp_eq_u32 s[80:81], s84, v{r['row']}
    v_cmp_eq_u32 s[82:83], s85, v{r['row']}
    s_or_b64 vcc, s[80:81], s[82:83]
    s_cbranch_vccnz L_moe{t}
    L_moe_ret{t}:
    """) + [I(f"v_mul_f32 v{r['b']+e}, v13, v{r['b']+e}") for e in range(16)]
def red_main(vl16, st=lambda: [], lag=6, early=True, sent=True):
    out = L(f"""
    v_cmp_eq_u32 vcc, 1, v9
    s_mov_b32 s91, {SPIN_MAX}
    s_mov_b32 s69, 0
    s_mov_b32 s70, vcc_lo
    s_mov_b32 s68, vcc_lo
    """)
    ring = [16, 17, 18, 19, 48, 49, 50, 51]; assert lag < 8
    def acc(k):
        d = lambda t: [i for w in range(8) for i in L(f"v_dot2c_f32_bf16 v{RS[t]['acc']+2*w}, v{128+8*(k%16)+w}, v24\nv_dot2c_f32_bf16 v{RS[t]['acc']+1+2*w}, v{128+8*(k%16)+w}, v25")]
        if sent:
            r = 128 + 8 * (k % 16); d0 = d
            tst = f"v_max3_u32 v13, v{r}, v{r+1}, v{r+2}\nv_max3_u32 v104, v{r+3}, v{r+4}, v{r+5}\nv_max3_u32 v13, v13, v{r+6}, v{r+7}\nv_max_u32 v13, v13, v104\nv_cmp_eq_u32 vcc, -1, v13"
            d = lambda t: d0(0) if t == 0 else L(tst + f"\ns_cbranch_vccnz L_rz{k}\nL_rw{k}:") + d0(1)
            far.extend(L(f"""L_rz{k}:
            buffer_load_dwordx4 v[{r}:{r+3}], v{vl16}, {WS}, s{ring[k % 8]} offen sc1
            buffer_load_dwordx4 v[{r+4}:{r+7}], v27, {WS}, s{ring[k % 8]} offen sc1
            s_waitcnt vmcnt(0)
            {tst}
            s_sub_u32 s91, s91, 1
            s_cbranch_scc1 L_rw{k}
            s_cbranch_vccnz L_rz{k}
            s_branch L_rw{k}"""))
        f = 0 if k < 16 else 1
        return ([NEED(R("v", 128 + 8 * (k % 16), 8))] + L(f"s_bitcmp{1 - f}_b32 s69, {k}\ns_cbranch_scc1 L_rx{k}") + d(f) + L(f"L_ry{k}:"),
                L(f"L_rx{k}:") + d(1 - f) + L(f"s_branch L_ry{k}"))
    def fin(t, note=""):
        r = RS[t]; o = []
        for u in range(2):
            if SWAP: o += [I("s_nop 2")] + [I(f"v_permlane16_swap_b32 v{r['acc']+8*u+e}, v{r['acc']+8*u+4+e}") for e in range(4)]
            o += [I(f"v_fmac_f32 v{r['b']+8*u+e}, v{r['g']}, v{r['acc']+8*u+e}") for e in range(8)]
            o += [I(f"v_cvt_pk_bf16_f32 v{r['x']+4*u+w}, v{r['b']+8*u+2*w}, v{r['b']+1+8*u+2*w}") for w in range(4)]
            o.append(I(f"buffer_store_dwordx4 v[{r['x']+4*u}:{r['x']+3+4*u}], v{r['off']}, s[52:55], s{75+u} offen {OSF}{note}"))
        return o
    far = []
    for k in range(32 + lag):
        if k < 32:
            out += L(f"""s_cmp_lg_u32 s70, 0
            s_cbranch_scc1 L_rk{k}
            s_call_b64 s[36:37], L_rpoll
            L_rk{k}:
            s_ff1_i32_b32 s71, s70
            s_bitset0_b32 s70, s71
            s_cmp_ge_u32 s71, 16
            s_cselect_b32 s72, s78, s77
            s_cselect_b32 s73, {hex(1 << k)}, 0
            {'s_bitcmp1_b32 s71, 3' + chr(10) + f's_cselect_b32 s72, {OOB}, s72' if WI else ''}
            s_mul_i32 s71, s71, {OP_HEAD}
            s_add_u32 s{ring[k % 8]}, s71, s72
            buffer_load_dwordx4 v[{128+8*(k%16)}:{131+8*(k%16)}], v{vl16}, {WS}, s{ring[k % 8]} offen sc1
            s_or_b32 s69, s69, s73
            buffer_load_dwordx4 v[{132+8*(k%16)}:{135+8*(k%16)}], v27, {WS}, s{ring[k % 8]} offen sc1""")
        if k in (1, 2): out += red_b(k - 1)
        if k == 31: out += st()
        if k >= lag:
            a_, f_ = acc(k - lag); out += a_; far += f_
        if early and k == 27:
            out += L(f"""s_and_b32 s71, s69, {hex((1 << (k - lag + 1)) - 1)}
            s_bcnt1_i32_b32 s71, s71
            s_cmp_eq_u32 s71, {k - lag + 1 - 16}
            s_cselect_b32 s66, 1, 0
            s_cbranch_scc0 L_rne""") + fin(0, " ; nocount") + L("L_rne:")
    out += st() + L("s_nop 1") + fin(1)
    if early: out += L("s_cmp_eq_u32 s66, 1\ns_cbranch_scc1 L_rdone")
    out += fin(0) + L("L_rdone:")
    return out, far
RSL = 1
def red_poll():
    return L(f"""
    L_rpoll0:
    s_sleep {RSL}
    L_rpoll:
    {FOP_LOAD}
    s_waitcnt vmcnt(0)
    v_cmp_eq_u32 vcc, 1, v9
    s_sub_u32 s91, s91, 1
    s_cselect_b32 s70, -1, 0
    s_or_b32 s70, s70, vcc_lo
    s_andn2_b32 s70, s70, s68
    s_cbranch_scc0 L_rpoll0
    s_or_b32 s68, s68, s70
    s_setpc_b64 s[36:37]
    """)
def red_moe():
    out = []
    for t in range(2):
        out += L(f"L_moe{t}:\ns_call_b64 s[36:37], L_moe") + [I(f"v_add_f32 v{RS[t]['b']+e}, v{108+e}, v{RS[t]['b']+e}") for e in range(16)] + L(f"s_mov_b64 exec, -1\ns_branch L_moe_ret{t}")
    out += L(f"""
    L_moe:
    v_min_u32 v104, 27, v0
    v_lshlrev_b32 v104, 2, v104
    s_mov_b32 s64, {WS_FH + 512}
    """) + poll_flags(64, 64, "L_pfy", 105, 104, 65) + L(f"""
    s_or_b64 exec, s[80:81], s[82:83]
    v_mov_b32 v104, 1792
    v_cndmask_b32 v104, v104, 0, s[80:81]
    v_lshl_add_u32 v104, v11, 5, v104
    s_lshl_b32 s88, s75, 1
    s_add_u32 s88, s88, {WS_YF}
    buffer_load_dwordx4 v[108:111], v104, {WS}, s88 offen sc1
    buffer_load_dwordx4 v[112:115], v104, {WS}, s88 offen offset:16 sc1
    buffer_load_dwordx4 v[116:119], v104, {WS}, s88 offen offset:512 sc1
    buffer_load_dwordx4 v[120:123], v104, {WS}, s88 offen offset:528 sc1
    s_waitcnt vmcnt(0)
    s_setpc_b64 s[36:37]
    """)
    return out
def y_reduce():
    out = L(f"""
    L_yred:
    s_lshl_b32 s89, s{sH}, 1
    s_add_u32 s89, s89, s{sWAVE}
    s_cmp_ge_u32 s89, 28
    s_cbranch_scc1 L_yred_ret
    v_lshrrev_b32 v20, 4, v7
    v_lshrrev_b32 v21, 3, v20
    v_mul_u32_u24 v21, {FSTR}, v21
    v_and_b32 v22, 7, v20
    v_lshl_add_u32 v21, v22, 7, v21
    s_mov_b32 s64, {WS_FL}
    s_mov_b32 s88, {WS_FL + 8 * FSTR}
    s_mov_b32 s91, {SPIN_MAX}
    L_yp:
    buffer_load_dword v22, v21, {WS}, s64 offen sc1
    buffer_load_dword v23, v21, {WS}, s88 offen sc1
    s_waitcnt vmcnt(0)
    v_min_u32 v22, v22, v23
    v_cmp_gt_u32 vcc, 4, v22
    s_sub_u32 s91, s91, 1
    s_cbranch_scc1 L_ypx
    s_cbranch_vccnz L_yp
    L_ypx:
    s_cmp_lt_u32 s89, 14
    s_cselect_b32 s64, 8, 12
    s_add_u32 s64, s64, {WS_SEL}
    buffer_load_dword v23, off, {WS}, s64 sc1
    v_lshrrev_b32 v21, 3, v20
    v_mul_u32_u24 v21, 3584, v21
    v_and_b32 v22, 7, v20
    v_lshl_add_u32 v21, v22, 4, v21
    s_lshl_b32 s88, s89, 7
    s_add_u32 s90, s88, {WS_YF}
    s_add_u32 s88, s88, {WS_Y}
    """)
    for n in range(14):
        out += L(f"buffer_load_dwordx4 v[{64+4*n}:{67+4*n}], v21, {WS}, s88 offen sc1\ns_add_u32 s88, s88, {8 * 3584}")
    out += L("s_branch L_yred_ret\nL_yred2:\ns_cmp_ge_u32 s89, 28\ns_cbranch_scc1 L_yred2_ret\nv_mov_b32 v22, 1\ns_waitcnt vmcnt(0)")
    acc = [64 + e for e in range(4)]
    for n in range(1, 14): out += [I(f"v_add_f32 v{a}, v{a + 4 * n}, v{a}") for a in acc]
    out += [I(f"v_add_f32 v{a}, v{a}, v{a} row_ror:8 row_mask:0xf bank_mask:0xf") for a in acc]
    for sw in ("v_permlane16_swap_b32", "v_permlane32_swap_b32"):
        out += [I(f"v_mov_b32 v{a + 4}, v{a}") for a in acc]
        out += [I(f"{sw} v{a + 4}, v{a}") for a in acc]
        out += [I(f"v_add_f32 v{a}, v{a + 4}, v{a}") for a in acc]
    for rep in range(2):
        for p in (64, 66):
            out += L(f"v_cvt_pk_bf16_f32 v21, v{p}, v{p+1}\nv_lshlrev_b32 v{p}, 16, v21\nv_and_b32 v{p+1}, 0xffff0000, v21")
        if rep == 0: out += [I(f"v_mul_f32 v{a}, v23, v{a}") for a in acc]
    out += L(f"""
    s_mov_b64 exec, 0xff
    buffer_store_dwordx4 v[64:67], v7, {WS}, s90 offen sc1
    s_lshl_b32 s89, s89, 2
    s_add_u32 s89, s89, {WS_FH + 512}
    s_mov_b64 exec, 1
    s_waitcnt vmcnt(0)
    buffer_store_dword v22, off, {WS}, s89 sc1
    s_mov_b64 exec, -1
    s_branch L_yred2_ret
    """)
    return out


JUNK = 240
NTT = "nt"
def touch(vaddr, srdreg, soff, imm=0, nt=True):
    return I(f"buffer_load_dword a{JUNK}, v{vaddr}, s[{srdreg}:{srdreg+3}], {soff} offen offset:{imm} {NTT if nt else ('sc1' if srdreg == S_WS else '')}", tag="TOUCH")
def code_addr(v, t):
    if v == t: return L(f"v_and_b32 v{v}, 48, v0\nv_lshlrev_b32 v{v}, 17, v{v}\nv_or_b32 v{v}, v{v}, v0\nv_lshl_add_u32 v{v}, v{v}, 7, s95")
    return L(f"""
    v_lshl_add_u32 v{t}, v0, 7, s95
    v_and_b32 v{v}, 48, v0
    v_lshl_add_u32 v{v}, v{v}, 24, v{t}
    """)
def code_touch():
    return L(f"""
    s_getpc_b64 s[76:77]
    L_pc0:
    s_and_b32 s77, s77, 0xffff
    s_mov_b32 s78, L_code_end-L_pc0
    s_mov_b32 s79, 0x20000
    s_lshr_b32 s64, s2, 3
    s_lshl_b32 s64, s64, 2
    s_add_u32 s64, s64, s{sWAVE}
    s_lshl_b32 s95, s64, 11
    """) + code_addr(28, 29) + [touch(28, 76, 0, nt=False)]
def kv_touch_setup(sKV):
    return L(f"""
    s_lshr_b32 s64, s{sH}, 3
    s_lshl_b32 s64, s64, 1
    s_add_u32 s64, s64, s{sKV}
    s_lshl_b32 s64, s64, 2
    s_add_u32 s64, s64, s{sWAVE}
    s_lshl_b32 s64, s64, 15
    v_lshrrev_b32 v28, 1, v0
    v_and_b32 v29, 1, v0
    v_lshlrev_b32 v29, 7, v29
    v_lshl_add_u32 v28, v28, 11, v29
    v_add_u32 v24, s64, v28
    v_and_b32 v28, 32, v0
    v_lshl_add_u32 v24, v28, 24, v24
    s_lshr_b32 s64, s{sJ}, 1
    s_lshl_b32 s64, s64, 2
    s_add_u32 s64, s64, s{sWAVE}
    s_lshl_b32 s64, s64, 15
    v_lshrrev_b32 v28, 2, v0
    v_and_b32 v29, 3, v0
    v_lshlrev_b32 v29, 7, v29
    v_lshl_add_u32 v28, v28, 13, v29
    v_add_u32 v25, s64, v28
    v_and_b32 v28, 48, v0
    v_lshl_add_u32 v25, v28, 24, v25
    """)
def kv_touch(sc, sw):
    return [touch(24, sc, 0), touch(25, sw, 0), I("v_add_u32 v24, 256, v24"), I(f"v_add_u32 v25, {128 * 8192}, v25")]
def q_touch(swq, sx, px):
    pre = L(f"""
    s_lshl_b32 s64, s{sJ}, 2
    s_add_u32 s64, s64, s{sWAVE}
    s_mul_i32 s64, s64, {7 * 8192}
    v_lshrrev_b32 v28, 2, v0
    v_and_b32 v29, 3, v0
    v_lshlrev_b32 v29, 7, v29
    v_lshl_add_u32 v28, v28, 13, v29
    v_add_u32 v16, s64, v28
    v_mov_b32 v29, 0x20000000
    v_cmp_gt_u32 vcc, 28, v0
    s_lshl_b32 s64, s{sJ}, 1
    s_lshr_b32 s72, s{sH}, 3
    v_cndmask_b32 v16, v29, v16, vcc
    s_add_u32 s64, s64, s72
    s_lshl_b32 s64, s64, 2
    s_add_u32 s64, s64, s{sWAVE}
    s_mul_i32 s64, s64, 14336
    v_lshl_add_u32 v17, v0, 7, s64
    v_cmp_gt_u32 vcc, 56, v0
    s_nop 1
    v_cndmask_b32 v17, v29, v17, vcc
    s_mov_b32 s67, 7168
    """)
    return pre, [touch(16, swq, 0)] + ([touch(17, sx, 0), touch(17, sx, "s67")] if px else [])
def h_touch_srd():
    return L(f"""
    s_load_dwordx4 s[80:83], s[0:1], {A_WG}
    s_load_dwordx2 s[84:85], s[0:1], {A_WD}
    """)
def h_touch():
    return L(f"""
    s_lshr_b32 s64, s2, 3
    s_lshl_b32 s64, s64, 2
    s_add_u32 s64, s64, s{sWAVE}
    s_cmp_lt_u32 s64, 64
    s_cselect_b32 s72, s80, s82
    s_cselect_b32 s73, s81, s83
    {srd(60, 72, 448*3584)}
    {srd(68, 84, 1792*896)}
    s_and_b32 s72, s64, 63
    s_mul_i32 s72, s72, {7 * 3584}
    s_and_b32 s73, s{sH}, 7
    s_mul_i32 s74, s73, 448
    s_add_u32 s72, s72, s74
    s_and_b32 s72, s72, 0xffffff80
    v_lshrrev_b32 v28, 2, v0
    v_mul_u32_u24 v28, 3584, v28
    v_and_b32 v29, 3, v0
    v_lshl_add_u32 v28, v29, 7, v28
    v_add_u32 v28, s72, v28
    v_mov_b32 v29, 0x20000000
    v_cmp_gt_u32 vcc, 28, v0
    s_mul_i32 s73, s73, {224 * 896}
    s_mul_i32 s64, s64, 1664
    v_cndmask_b32 v30, v29, v28, vcc
    s_add_u32 s64, s64, s73
    v_lshl_add_u32 v28, v0, 7, s64
    v_cmp_gt_u32 vcc, 13, v0
    s_nop 1
    v_cndmask_b32 v31, v29, v28, vcc
    """), [touch(30, 60, 0), touch(31, 68, 0)]


def bg_r_loads():
    return L(f"""
    s_lshl_b32 s64, s2, 2
    s_add_u32 s64, s64, s{sWAVE}
    s_mul_i32 s72, s64, 1792
    v_mov_b32 v28, {OOB}
    v_cmp_gt_u32 vcc, 56, v0
    s_nop 0
    v_cndmask_b32 v28, v28, v7, vcc
    buffer_load_dwordx4 v[16:19], v28, s[56:59], s72 offen
    buffer_load_dwordx4 v[20:23], v28, s[56:59], s72 offen offset:896
    buffer_load_dwordx4 a[176:179], v28, s[60:63], 0 offen
    buffer_load_dwordx4 a[180:183], v28, s[68:71], 0 offen
    """)
def bg_r_compute():
    out = [I(f"v_mov_b32 v{28+r}, 0") for r in range(4)]
    for w in range(4):
        out += L(f"""v_accvgpr_read_b32 v26, a{176+w}
        v_accvgpr_read_b32 v27, a{180+w}
        v_dot2c_f32_bf16 v28, v{16+w}, v26
        v_dot2c_f32_bf16 v29, v{20+w}, v26
        v_dot2c_f32_bf16 v30, v{16+w}, v27
        v_dot2c_f32_bf16 v31, v{20+w}, v27""")
    out += wave_sum([28, 29, 30, 31], [16, 17, 18, 19])
    out += L(f"""
    v_cmp_eq_u32 vcc, 0, v0
    s_lshl_b32 s64, s2, 3
    s_lshl_b32 s72, s{sWAVE}, 1
    v_cndmask_b32 v28, v29, v28, vcc
    v_cndmask_b32 v30, v31, v30, vcc
    s_add_u32 s64, s64, s72
    v_add_u32 v16, s64, v0
    v_ashrrev_i32 v17, 31, v28
    v_or_b32 v17, 0x80000000, v17
    v_xor_b32 v17, v17, v28
    v_and_b32 v17, 0xfffff800, v17
    v_sub_u32 v18, 2047, v16
    v_or_b32 v17, v17, v18
    """) + sigmoid(30, 31) + L(f"""
    s_lshl_b32 s72, s{sWAVE}, 3
    s_add_u32 s72, s72, {LDS_R}
    v_lshl_add_u32 v16, v0, 2, s72
    v_mov_b32 v18, {LDS_R + 128}
    v_cmp_gt_u32 vcc, 2, v0
    s_nop 0
    v_cndmask_b32 v16, v18, v16, vcc
    ds_write_b32 v16, v17
    ds_write_b32 v16, v28 offset:32
    ds_write_b32 v16, v30 offset:64
    """)
    return out
def bg_r_store():
    return L(f"""
    v_and_b32 v16, 31, v0
    v_lshlrev_b32 v16, 2, v16
    v_add_u32 v17, {LDS_R}, v16
    ds_read_b32 v17, v17
    s_cmp_eq_u32 s{sWAVE}, 0
    s_cselect_b32 s64, 0, {OOB}
    v_and_b32 v18, 32, v0
    v_lshl_add_u32 v16, v18, 24, v16
    v_or_b32 v16, s64, v16
    s_lshl_b32 s72, s2, 7
    s_add_u32 s72, s72, {WS_R}
    s_cmp_lt_u32 s2, 14
    s_cselect_b32 s64, s64, {OOB}
    v_or_b32 v18, s64, v7
    v_mov_b32 v20, 0
    v_mov_b32 v21, 0
    v_mov_b32 v22, 0
    v_mov_b32 v23, 0
    s_and_b32 s73, s2, 15
    s_lshl_b32 s73, s73, 10
    s_add_u32 s73, s73, {WS_FKV}
    buffer_store_dword v17, v16, {WS}, s72 offen sc1
    """) + [I(f"buffer_store_dwordx4 v[20:23], v18, {WS}, s73 offen sc1", tag="RST")]
def lane0_wave0(v):
    return L(f"""
    v_or_b32 v{v}, s{sWAVE}, v0
    v_min_u32 v{v}, 1, v{v}
    v_lshlrev_b32 v{v}, 29, v{v}
    """)
def bg_r_signal():
    return lane0_wave0(16) + L("v_mov_b32 v17, 1") + [WAITV("RST"), I(f"buffer_atomic_add v17, v16, s[{S_DBG}:{S_DBG+3}], 0 offen sc1")]
def bg_wo_dma():
    pre = L(f"""
    v_lshrrev_b32 v28, 5, v0
    v_mul_u32_u24 v28, 896, v28
    v_and_b32 v29, 31, v0
    v_lshl_add_u32 v28, v29, 4, v28
    v_mov_b32 v30, {OOB}
    v_cmp_gt_u32 vcc, 28, v29
    s_lshr_b32 s64, s{sJ}, 1
    s_lshl_b32 s64, s64, 5
    v_cndmask_b32 v28, v30, v28, vcc
    s_lshl_b32 s72, s{sH}, 8
    s_add_u32 s64, s64, s72
    s_lshl_b32 s72, s{sWAVE}, 3
    s_add_u32 s64, s64, s72
    s_mul_i32 s64, s64, 896
    s_and_b32 s72, s{sJ}, 1
    s_mul_i32 s72, s72, 448
    s_add_u32 s67, s64, s72
    v_add_u32 v29, {2*896 - 1024}, v28
    v_add_u32 v30, {2*(2*896 - 1024)}, v28
    v_add_u32 v31, {3*(2*896 - 1024)}, v28
    """)
    un = [I("s_add_u32 m0, s23, 131072")] + [I(f"buffer_load_dwordx4 v{28+j}, s[60:63], s67 offen offset:{1024*j} nt lds", tag="WO") for j in range(4)] + [I("s_nop 0")]
    return pre, un
def bg_wo_finish():
    out = wo_setup()[:-2] + L(f"""
    s_cmp_lt_u32 s{sWAVE}, 2
    s_cselect_b32 s75, 0, {OOB}
    """) + wo_reads()
    st = [I(f"buffer_store_dwordx4 a[{192+4*n}:{195+4*n}], v{24 if n == 3 else 7}, {WS}, s{76+n} offen sc1", tag="KVST") for n in range(4)]
    return out, [I('v_or_b32 v24, s75, v7')] + st
def c_touch_setup():
    return L(f"""
    s_lshl_b32 s64, s2, 2
    s_add_u32 s64, s64, s{sWAVE}
    s_lshl_b32 s64, s64, 12
    v_lshrrev_b32 v28, 2, v0
    v_and_b32 v29, 3, v0
    v_lshlrev_b32 v29, 7, v29
    v_lshl_add_u32 v28, v28, 11, v29
    v_add_u32 v24, s64, v28
    v_and_b32 v28, 56, v0
    v_lshl_add_u32 v24, v28, 24, v24
    """)
def w_touch_setup(t0, t1):
    return L(f"""
    s_and_b32 s64, s{sJ}, 7
    s_lshl_b32 s64, s64, 2
    s_add_u32 s64, s64, s{sWAVE}
    s_lshl_b32 s64, s64, 14
    v_lshrrev_b32 v{t0}, 2, v0
    v_and_b32 v{t1}, 3, v0
    v_lshlrev_b32 v{t1}, 7, v{t1}
    v_lshl_add_u32 v{t0}, v{t0}, 13, v{t1}
    v_add_u32 v{t1}, s64, v{t0}
    v_and_b32 v{t0}, 56, v0
    v_lshl_add_u32 v{t0}, v{t0}, 24, v{t1}
    v_accvgpr_write_b32 a241, v{t0}
    """)
def w_touch(sw, t):
    return [I(f"s_mov_b32 s65, {t * 64 * 8192}"), I("v_accvgpr_read_b32 v26, a241"), touch(26, sw, "s65")]
def c_touch(sc, quarter):
    return [touch(24, sc, 0, quarter * 512, nt=False)]


def z_store():
    return L(f"""
    s_lshl_b32 s64, s{sJ}, 4
    s_add_u32 s64, s64, s{sH}
    s_lshl_b32 s64, s64, 2
    s_add_u32 s64, s64, s{sWAVE}
    s_cmp_lt_u32 s64, {NZERO}
    s_cselect_b32 s39, 0, {OOB}
    s_min_u32 s64, s64, {NZERO}
    s_lshl_b32 s38, s64, 2
    s_max_u32 s67, s64, 8
    s_sub_u32 s67, s67, 8
    s_mul_i32 s67, s67, {FSTR - 1024}
    s_lshl_b32 s64, s64, 10
    s_add_u32 s64, s64, s67
    s_add_u32 s73, s64, {WS_KEY}
    v_or_b32 v64, s39, v7
    v_mov_b32 v68, 0
    v_mov_b32 v69, 0
    v_mov_b32 v70, 0
    v_mov_b32 v71, 0
    """) + [I(f"buffer_store_dwordx4 v[68:71], v64, {WS}, s73 offen offset:{1024 * n} sc1", tag="ZST") for n in range(3)] + (
        [I("s_add_u32 s73, s73, 8192")] + [I(f"buffer_store_dwordx4 v[68:71], v64, {WS}, s73 offen offset:{1024 * n} sc1", tag="ZST") for n in range(3)] if NUMA.fl else [])
def z_signal():
    return L(f"""
    v_min_u32 v16, 1, v0
    v_lshlrev_b32 v16, 29, v16
    v_or_b32 v16, s39, v16
    v_mov_b32 v17, 1
    """) + [WAITV("ZST"), I(f"buffer_store_dword v17, v16, s[{S_DBG}:{S_DBG+3}], s38 offen offset:64 sc1")]
def z_load():
    return L(f"""
    v_min_u32 v16, {NZERO - 1 + 16 * NUMA.on}, v0
    v_lshlrev_b32 v16, 2, v16
    buffer_load_dword v17, v16, s[{S_DBG}:{S_DBG+3}], 0 offen offset:{0 if NUMA.on else 64} sc1
    """)
def z_check(tag):
    return L(f"""
    v_cmp_eq_u32 vcc, 0, v17
    s_nop 0
    s_cbranch_vccnz L_zs{tag}
    L_zr{tag}:
    """)
def spin_stub(label, ret, load, vt, sc=64, cmp_="v_cmp_ne_u32 vcc, 1, v{vt}"):
    return L(f"""
    {label}:
    s_mov_b32 s{sc}, {SPIN_MAX}
    {label}_l:
    s_sleep 2
    {load}
    s_sub_u32 s{sc}, s{sc}, 1
    s_cbranch_scc1 {label}_x
    s_waitcnt vmcnt(0)
    {cmp_.format(vt=vt)}
    s_cbranch_vccnz {label}_l
    {label}_x:
    s_waitcnt vmcnt(0)
    s_branch {ret}
    """)
def z_stub(tag):
    return spin_stub(f"L_zs{tag}", f"L_zr{tag}", f"buffer_load_dword v17, v16, s[{S_DBG}:{S_DBG+3}], 0 offen offset:{0 if NUMA.on else 64} sc1", 17, 64, "v_cmp_eq_u32 vcc, 0, v{vt}")
def rg_store():
    return L(f"""
    v_and_b32 v20, 31, v0
    v_lshlrev_b32 v20, 2, v20
    v_add_u32 v21, {LDS_R}, v20
    ds_read_b32 v19, v21
    ds_read_b32 v21, v21 offset:32
    s_cmp_eq_u32 s{sWAVE}, 0
    s_cselect_b32 s64, 0, {OOB}
    v_mov_b32 v22, {OOB}
    v_or_b32 v20, s64, v20
    v_cmp_gt_u32 vcc, 8, v0
    s_lshl_b32 s72, s2, 6
    s_add_u32 s72, s72, {WS_RG}
    v_cndmask_b32 v18, v22, v20, vcc
    v_cmp_gt_u32 vcc, 16, v0
    s_nop 0
    s_nop 0
    v_cndmask_b32 v20, v22, v20, vcc
    """) + [I(f"buffer_store_dword v21, v20, {WS}, s72 offen sc1", tag="RST")]
def key_store():
    return L(f"""
    s_lshl_b32 s72, s2, 5
    s_add_u32 s72, s72, {WS_KEY}
    """) + [WAITV("RST"), I(f"buffer_store_dword v19, v18, {WS}, s72 offen sc1")]
def lanes8(v):
    return f"v_and_b32 v28, 56, v0\nv_lshl_add_u32 v{v}, v28, 24, v{v}"
def wo_touch():
    pre = L(f"""
    s_lshr_b32 s64, s{sJ}, 1
    s_lshl_b32 s64, s64, 5
    s_lshl_b32 s72, s{sH}, 8
    s_add_u32 s64, s64, s72
    s_lshl_b32 s72, s{sWAVE}, 3
    s_add_u32 s64, s64, s72
    s_mul_i32 s64, s64, 896
    s_and_b32 s72, s{sJ}, 1
    s_mul_i32 s72, s72, 384
    s_add_u32 s64, s64, s72
    v_bfe_u32 v28, v0, 2, 2
    v_mul_u32_u24 v28, 896, v28
    v_and_b32 v29, 3, v0
    v_lshl_add_u32 v28, v29, 7, v28
    v_add_u32 v23, s64, v28
    v_and_b32 v28, 48, v0
    v_lshl_add_u32 v23, v28, 24, v23
    """)
    return pre, [[touch(23, 60, 0, n * 3584)] for n in range(2)]
def q_touch2(swq):
    pre = L(f"""
    s_lshl_b32 s64, s{sJ}, 2
    s_add_u32 s64, s64, s{sWAVE}
    s_mul_i32 s64, s64, {7 * 8192}
    v_bfe_u32 v28, v0, 2, 2
    v_and_b32 v29, 3, v0
    v_lshlrev_b32 v29, 7, v29
    v_lshl_add_u32 v28, v28, 13, v29
    v_add_u32 v23, s64, v28
    v_and_b32 v28, 48, v0
    v_lshl_add_u32 v23, v28, 24, v23
    """)
    return pre, [[touch(23, swq, 0), I(f"v_add_u32 v23, {4 * 8192}, v23")], [touch(23, swq, 0)]]
def h_touch2():
    pre = L(f"""
    s_lshr_b32 s64, s2, 3
    s_lshl_b32 s64, s64, 2
    s_add_u32 s64, s64, s{sWAVE}
    s_cmp_lt_u32 s64, 64
    s_cselect_b32 s72, s80, s82
    s_cselect_b32 s73, s81, s83
    {srd(60, 72, 448*3584)}
    {srd(68, 84, 1792*896)}
    s_and_b32 s72, s64, 63
    s_mul_i32 s72, s72, {7 * 3584}
    s_and_b32 s73, s{sH}, 7
    s_mul_i32 s74, s73, 448
    s_add_u32 s72, s72, s74
    s_and_b32 s72, s72, 0xffffff80
    v_bfe_u32 v28, v0, 2, 2
    v_mul_u32_u24 v28, 3584, v28
    v_and_b32 v29, 3, v0
    v_lshl_add_u32 v28, v29, 7, v28
    v_add_u32 v21, s72, v28
    v_and_b32 v28, 48, v0
    v_lshl_add_u32 v21, v28, 24, v21
    s_mul_i32 s73, s73, {224 * 896}
    s_mul_i32 s64, s64, 1664
    s_add_u32 s64, s64, s73
    v_lshl_add_u32 v22, v0, 7, s64
    v_lshl_add_u32 v22, v28, 24, v22
    """)
    return pre, [[touch(21, 60, 0), I(f"v_add_u32 v21, {4 * 3584}, v21")], [touch(21, 60, 0)], [touch(22, 68, 0)]]

def x_touch():
    pre = L(f"""
    s_xor_b32 s64, s2, 1
    s_lshl_b32 s64, s64, 2
    s_add_u32 s64, s64, s{sWAVE}
    s_mul_i32 s64, s64, 1792
    v_lshl_add_u32 v23, v0, 7, s64
    v_mov_b32 v28, {OOB}
    v_cmp_gt_u32 vcc, 14, v0
    s_nop 0
    s_nop 0
    v_cndmask_b32 v23, v28, v23, vcc
    """)
    return pre, [[touch(23, 56, 0, nt=False)]]

def x_touch2():
    pre = L(f"""
    s_lshl_b32 s64, s{sJ}, 1
    s_lshr_b32 s72, s{sH}, 3
    s_add_u32 s64, s64, s72
    s_lshl_b32 s64, s64, 2
    s_add_u32 s64, s64, s{sWAVE}
    s_mul_i32 s64, s64, 14336
    v_lshl_add_u32 v25, v0, 7, s64
    v_mov_b32 v28, {OOB}
    v_cmp_gt_u32 vcc, 28, v0
    s_nop 0
    s_nop 0
    v_cndmask_b32 v25, v28, v25, vcc
    """)
    return pre, [[touch(25, 56, 0, nt=False), I("v_add_u32 v25, 3584, v25")] for n in range(4)]
def flag_store(addr_sreg, va, vt, tag=None):
    return I(f"buffer_store_dword v{vt}, v{va}, {WS}, s{addr_sreg} offen sc1", tag=tag)

def q_touch3(swq):
    pre = L(f"""
    s_and_b32 s64, s{sJ}, 7
    s_lshl_b32 s64, s64, 2
    s_add_u32 s64, s64, s{sWAVE}
    s_mul_i32 s64, s64, {14 * 8192}
    v_bfe_u32 v28, v0, 2, 2
    v_and_b32 v29, 3, v0
    v_lshlrev_b32 v29, 7, v29
    v_lshl_add_u32 v28, v28, 13, v29
    v_add_u32 v23, s64, v28
    v_and_b32 v28, 48, v0
    v_lshl_add_u32 v23, v28, 24, v23
    """)
    return pre, [[touch(23, swq, 0, nt=False), I(f"v_add_u32 v23, {(4 if n < 2 else 2) * 8192}, v23")] for n in range(4)]


def wo2_dma():
    pre = L(f"""
    s_and_b32 s64, s{sJ}, 7
    s_lshl_b32 s72, s{sH}, 3
    s_add_u32 s64, s64, s72
    s_lshl_b32 s64, s64, 2
    s_add_u32 s64, s64, s{sWAVE}
    s_mul_i32 s67, s64, 7168
    s_mul_i32 s86, s{sWAVE}, 7168
    s_add_u32 s86, s86, 131072
    """)
    un = lambda o, n: [I(f"s_add_u32 m0, s86, {o}")] + [I(f"buffer_load_dwordx4 v7, s[60:63], s67 offen offset:{1024*j} nt lds", tag="WO") for j in range(n)] + [I("s_add_u32 s67, s67, 4096")]
    return pre, [un(0, 4), un(4096, 3)]
def wo2_reads():
    return L(f"""
    v_lshrrev_b32 v28, 2, v0
    v_mul_u32_u24 v28, 896, v28
    v_and_b32 v29, 3, v0
    v_lshl_add_u32 v28, v29, 4, v28
    s_lshr_b32 s64, s{sWAVE}, 1
    s_lshl_b32 s64, s64, 6
    s_and_b32 s72, s{sWAVE}, 1
    s_lshl_b32 s72, s72, 3
    s_add_u32 s64, s64, s72
    s_add_u32 s64, s64, 131072
    v_add_u32 v28, s64, v28
    s_lshl_b32 s94, s{sHP if NUMA.on else sH}, {21 if NUMA.on else 18}
    s_and_b32 s64, s{sJ}, 7
    s_lshl_b32 s64, s64, 10
    s_add_u32 s94, s94, s64
    s_lshl_b32 s64, s{sWAVE}, {13 + NUMA.on}
    s_add_u32 s94, s94, s64
    {f's_and_b32 s64, s{sWAVE}, 1' + chr(10) + 's_lshl_b32 s64, s64, 13' + chr(10) + 's_add_u32 s94, s94, s64' if NUMA.on and not NUMA.kv else ''}
    s_add_u32 s94, s94, {NUMA.WO if NUMA.on else WS_WO}
    """) + [I(f"ds_read_b64_tr_b16 a[{192+4*n+2*j}:{193+4*n+2*j}], v28 offset:{n*128 + j*14336}") for n in range(7) for j in range(2)]
WSF = 'sc1'
def wo2_stores():
    return [[I(f"s_add_u32 s3, s94, {n * 32768}"), I(f"buffer_store_dwordx4 a[{192+4*n}:{195+4*n}], v7, {WS}, s3 offen {WSF}", tag="KVST")] for n in range(7)]

def tlb_touch(srds, sel):
    out = L(f"""
    s_lshr_b32 s64, s2, 3
    s_lshl_b32 s64, s64, 2
    s_add_u32 s64, s64, s{sWAVE}
    s_and_b32 s64, s64, {sel}
    s_min_u32 s64, s64, 1
    s_lshl_b32 s64, s64, 29
    v_lshlrev_b32 v28, 21, v0
    v_or_b32 v28, s64, v28
    """)
    return out + [touch(28, r, 0, nt=False) for r in srds]


def r4_loads():
    return L(f"""
    s_lshl_b32 s30, s{sH}, 3
    s_add_u32 s30, s30, s{sJ}
    s_lshl_b32 s64, s30, 2
    s_add_u32 s64, s64, s{sWAVE}
    s_mul_i32 s72, s64, 3584
    v_mov_b32 v32, {OOB}
    v_cmp_gt_u32 vcc, 56, v0
    s_lshl_b32 s67, s64, 2
    s_nop 0
    v_cndmask_b32 v32, v32, v7, vcc
    """) + [I(f"buffer_load_dwordx4 v[{40+4*r}:{43+4*r}], v32, s[56:59], s72 offen offset:{896*r}") for r in range(4)] + L("""
    buffer_load_dwordx4 v[56:59], v32, s[60:63], 0 offen
    buffer_load_dwordx4 v[60:63], v32, s[68:71], 0 offen
    """)
def r4_compute():
    out = [I(f"v_mov_b32 v{72+r}, 0") for r in range(8)]
    for w in range(4):
        for m in range(2):
            for r in range(4): out.append(I(f"v_dot2c_f32_bf16 v{72+4*m+r}, v{40+4*r+w}, v{56+4*m+w}"))
    prs = [(72, 74), (73, 75), (76, 78), (77, 79)]
    out += [I(f"v_permlane32_swap_b32 v{a}, v{b}") for a, b in prs] + [I(f"v_add_f32 v{a}, v{a}, v{b}") for a, b in prs]
    out += L("v_lshrrev_b32 v80, 4, v0\nv_permlane16_swap_b32 v72, v73\nv_permlane16_swap_b32 v76, v77\nv_add_f32 v72, v72, v73\nv_add_f32 v76, v76, v77\nv_add_u32 v81, s67, v80")
    for sh in ("row_ror:8", "row_ror:4", "row_ror:2", "row_ror:1"):
        out += L(f"v_add_f32 v72, v72, v72 {sh} row_mask:0xf bank_mask:0xf\nv_add_f32 v76, v76, v76 {sh} row_mask:0xf bank_mask:0xf")
    out += L(f"""
    v_ashrrev_i32 v82, 31, v72
    v_or_b32 v82, 0x80000000, v82
    v_xor_b32 v82, v82, v72
    v_and_b32 v82, 0xfffff800, v82
    v_sub_u32 v81, 2047, v81
    v_or_b32 v82, v82, v81
    v_max_u32 v82, 1, v82
    """) + sigmoid(76, 77) + L(f"""
    s_lshl_b32 s72, s{sWAVE}, 4
    s_add_u32 s72, s72, {LDS_R}
    v_lshl_add_u32 v80, v80, 2, s72
    ds_write_b32 v80, v82
    ds_write_b32 v80, v72 offset:64
    ds_write_b32 v80, v76 offset:128
    """)
    return out
def rg4_store():
    return L(f"""
    v_and_b32 v20, 31, v0
    v_lshlrev_b32 v20, 2, v20
    v_add_u32 v21, {LDS_R}, v20
    ds_read_b32 v19, v21
    ds_read_b32 v21, v21 offset:64
    s_min_u32 s64, s{sWAVE}, 1
    s_lshl_b32 s64, s64, 29
    v_and_b32 v22, 32, v0
    v_lshl_or_b32 v20, v22, 24, v20
    v_or_b32 v20, s64, v20
    v_and_b32 v22, 16, v0
    v_lshl_or_b32 v18, v22, 25, v20
    s_lshl_b32 s72, s30, 7
    s_add_u32 s72, s72, {WS_RG}
    """) + [6, I(f"buffer_store_dword v21, v20, {WS}, s72 offen sc1", tag="RST")]
def key4_store():
    return L(f"""
    s_lshl_b32 s72, s30, 6
    s_add_u32 s72, s72, {WS_KEY}
    """) + [WAITV("RST"), I(f"buffer_store_dword v19, v18, {WS}, s72 offen sc1")]


def x_touch3(nl):
    pre = L(f"""
    s_lshl_b32 s64, s{sJ}, 1
    s_lshr_b32 s72, s{sH}, 3
    s_add_u32 s64, s64, s72
    s_lshl_b32 s64, s64, 2
    s_add_u32 s64, s64, s{sWAVE}
    s_mul_i32 s64, s64, 14336
    v_lshl_add_u32 v26, v0, 7, s64
    v_mov_b32 v27, {OOB}
    v_cmp_gt_u32 vcc, {nl}, v0
    s_nop 0
    s_nop 0
    v_cndmask_b32 v26, v27, v26, vcc
    v_accvgpr_write_b32 a242, v26
    """)
    return pre, [[I(f"s_mov_b32 s65, {n * nl * 128}"), I("v_accvgpr_read_b32 v26, a242"), touch(26, 56, "s65", nt=False)] for n in range(112 // nl)]
YLV = 1
def y_reduce2(hole):
    out = L(f"""
    L_y1:
    s_lshl_b32 s89, s{sH}, 1
    s_add_u32 s89, s89, s{sWAVE}
    s_cmp_ge_u32 s{sWAVE}, 2
    s_cselect_b32 s89, 28, s89
    s_cmp_ge_u32 s89, 28
    s_cbranch_scc1 L_y1r
    v_lshrrev_b32 v50, 4, v7
    v_lshrrev_b32 v51, 3, v50
    {f'v_lshrrev_b32 v52, v51, s{sBM}' + chr(10) + 'v_and_b32 v53, 1, v52' if NUMA.fl else ''}
    v_mul_u32_u24 v51, {FSTR}, v51
    v_and_b32 v52, 7, v50
    v_lshl_add_u32 v51, v52, 7, v51
    {'v_lshl_add_u32 v51, v53, 13, v51' if NUMA.fl else ''}
    s_mov_b32 s90, {WS_FL}
    s_mov_b32 s88, {WS_FL + 8 * FSTR}
    s_mov_b32 s91, {SPIN_MAX}
    L_yp:
    buffer_load_dword v52, v51, {WS}, s90 offen sc1
    buffer_load_dword v53, v51, {WS}, s88 offen sc1
    s_waitcnt vmcnt(0)
    v_min_u32 v52, v52, v53
    v_cmp_gt_u32 vcc, {YLV}, v52
    s_sub_u32 s91, s91, 1
    s_cbranch_scc1 L_ypx
    s_cbranch_vccnz L_yp
    L_ypx:
    s_cmp_lt_u32 s89, 14
    s_cselect_b32 s90, 8, 12
    s_add_u32 s90, s90, {WS_SEL}
    buffer_load_dword v53, off, {WS}, s90 sc1
    v_lshrrev_b32 v51, 3, v50
    v_mul_u32_u24 v51, 3584, v51
    v_and_b32 v52, 7, v50
    v_lshl_add_u32 v51, v52, 4, v51
    s_lshl_b32 s88, s89, 7
    s_add_u32 s90, s88, {WS_YF}
    s_add_u32 s88, s88, {WS_Y}
    """)
    for n in range(14):
        out += L(f"buffer_load_dwordx4 v[{hole(n)}:{hole(n)+3}], v51, {WS}, s88 offen sc1\ns_add_u32 s88, s88, {8 * 3584}")
    out += L("s_branch L_y1r\nL_y2:\ns_cmp_ge_u32 s89, 28\ns_cbranch_scc1 L_y2r\ns_waitcnt vmcnt(24)")
    acc = [hole(0) + e for e in range(4)]; t = [hole(1) + e for e in range(4)]
    for n in range(1, 14): out += [I(f"v_add_f32 v{a}, v{hole(n) + e}, v{a}") for e, a in enumerate(acc)]
    out += [I(f"v_add_f32 v{a}, v{a}, v{a} row_ror:8 row_mask:0xf bank_mask:0xf") for a in acc]
    for sw in ("v_permlane16_swap_b32", "v_permlane32_swap_b32"):
        out += [I(f"v_mov_b32 v{x}, v{a}") for a, x in zip(acc, t)]
        out += [I(f"{sw} v{x}, v{a}") for a, x in zip(acc, t)]
        out += [I(f"v_add_f32 v{a}, v{x}, v{a}") for a, x in zip(acc, t)]
    for rep in range(2):
        for p in (acc[0], acc[2]):
            out += L(f"v_cvt_pk_bf16_f32 v51, v{p}, v{p+1}\nv_lshlrev_b32 v{p}, 16, v51\nv_and_b32 v{p+1}, 0xffff0000, v51")
        if rep == 0: out += [I(f"v_mul_f32 v{a}, v53, v{a}") for a in acc]
    out += L(f"""
    s_mov_b64 exec, 0xff
    buffer_store_dwordx4 v[{acc[0]}:{acc[3]}], v7, {WS}, s90 offen sc1
    s_mov_b64 exec, -1
    s_branch L_y2r
    L_y3:
    s_cmp_ge_u32 s89, 28
    s_cbranch_scc1 L_y3r
    v_mov_b32 v52, 1
    s_lshl_b32 s89, s89, 2
    s_add_u32 s89, s89, {WS_FH + 512}
    s_mov_b64 exec, 1
    s_waitcnt vmcnt(5)
    buffer_store_dword v52, off, {WS}, s89 sc1
    s_mov_b64 exec, -1
    s_branch L_y3r
    """)
    return out

def wo_touch3():
    return L(f"""
    s_load_dwordx2 s[68:69], s[0:1], {A_WO}
    s_lshl_b32 s72, s{sH}, 3
    s_add_u32 s72, s72, s{sJ}
    s_lshl_b32 s72, s72, 2
    s_add_u32 s72, s72, s{sWAVE}
    s_mul_i32 s72, s72, 7168
    v_min_u32 v28, 55, v0
    v_lshlrev_b32 v28, 7, v28
    s_mov_b32 s70, {4096 * 896}
    """) + [24, I("s_and_b32 s69, s69, 0xffff"), touch(28, 68, "s72", nt=False)]
def wo_events(sEV, srdreg, nt):
    out = L(f"""
    L_ev:
    s_sub_u32 s{sEV}, s{sEV}, 1
    s_cmp_eq_u32 s{sEV}, 0
    s_cbranch_scc1 L_ev1
    s_lshl_b32 s3, s{sH}, 3
    s_add_u32 s3, s3, s{sJ}
    s_lshl_b32 s3, s3, 2
    s_add_u32 s3, s3, s{sWAVE}
    s_mul_i32 s3, s3, 7168
    s_mul_i32 s30, s{sWAVE}, 7168
    s_add_u32 m0, s30, 131072
    s_nop 0
    """)
    d = lambda j: I(f"buffer_load_dwordx4 v7, s[{srdreg}:{srdreg+3}], s3 offen offset:{1024*j} {nt} lds")
    out += [d(j) for j in range(4)] + L("s_add_u32 m0, s30, 135168\ns_add_u32 s3, s3, 4096") + [d(j) for j in range(3)] + L(f"""
    s_branch L_evr
    L_ev1:
    v_lshrrev_b32 v10, 6, v7
    v_mul_u32_u24 v10, 896, v10
    v_and_b32 v11, 48, v7
    s_lshr_b32 s3, s{sWAVE}, 1
    s_lshl_b32 s3, s3, 6
    s_and_b32 s30, s{sWAVE}, 1
    s_lshl_b32 s30, s30, 3
    s_add_u32 s3, s3, s30
    s_add_u32 s3, s3, 131072
    v_add3_u32 v10, v10, v11, s3
    """) + [I(f"ds_read_b64_tr_b16 a[{196+4*n+2*j}:{197+4*n+2*j}], v10 offset:{n*128 + j*14336}") for n in range(7) for j in range(2)] + L(f"""
    s_lshl_b32 s3, s{sH}, 18
    s_lshl_b32 s30, s{sJ}, 10
    s_add_u32 s3, s3, s30
    s_lshl_b32 s30, s{sWAVE}, 13
    s_add_u32 s3, s3, s30
    s_add_u32 s3, s3, {WS_WO}
    s_waitcnt lgkmcnt(0)
    """)
    for n in range(7): out += L(f"buffer_store_dwordx4 a[{196+4*n}:{199+4*n}], v7, {WS}, s3 offen sc1\ns_add_u32 s3, s3, 32768")
    return out + L("s_branch L_evr")

def wo4(srdreg, nt):
    pre = L(f"""
    s_and_b32 s29, s{sJ}, 7
    s_lshl_b32 s34, s29, 10
    s_lshl3_add_u32 s30, s{sH}, s29
    s_lshl2_add_u32 s30, s30, s{sWAVE}
    s_mul_i32 s30, s30, 7168
    s_lshl_b32 s29, s{sH}, 18
    s_add_u32 s34, s34, s29
    s_lshl_b32 s29, s{sWAVE}, 13
    s_add_u32 s34, s34, s29
    s_add_u32 s34, s34, {WS_WO}
    s_mul_i32 s29, s{sWAVE}, 7168
    """)
    d = lambda j: I(f"buffer_load_dwordx4 v7, s[{srdreg}:{srdreg+3}], s30 offen offset:{1024*j} {nt} lds", tag="WO")
    dma = [I("s_add_u32 m0, s29, 131072")] + [d(j) for j in range(4)] + L("s_add_u32 m0, s29, 135168\ns_add_u32 s30, s30, 4096") + [d(j) for j in range(3)]
    adr = L(f"""
    v_lshrrev_b32 v6, 6, v7
    v_mul_u32_u24 v6, 896, v6
    v_and_b32 v5, 48, v7
    s_lshr_b32 s29, s{sWAVE}, 1
    s_lshl_b32 s29, s29, 6
    s_and_b32 s30, s{sWAVE}, 1
    s_lshl3_add_u32 s29, s30, s29
    s_add_u32 s29, s29, 131072
    v_add3_u32 v5, v6, v5, s29
    """)
    rd = [I(f"ds_read_b64_tr_b16 a[{196+4*n+2*j}:{197+4*n+2*j}], v5 offset:{n*128 + j*14336}") for n in range(7) for j in range(2)]
    st = [[I(f"s_add_u32 s3, s34, {n * 32768}"), I(f"buffer_store_dwordx4 a[{196+4*n}:{199+4*n}], v7, {WS}, s3 offen sc1", tag="WST")] for n in range(7)]
    return pre, dma, adr, rd, st

def wo_touch4(nl):
    pre = L(f"""
    s_and_b32 s64, s{sJ}, 7
    s_lshl3_add_u32 s64, s{sH}, s64
    s_lshl2_add_u32 s64, s64, s{sWAVE}
    s_mul_i32 s64, s64, 7168
    v_lshl_add_u32 v22, v0, 7, s64
    v_mov_b32 v21, {OOB}
    v_cmp_gt_u32 vcc, {nl}, v0
    s_nop 0
    s_nop 0
    v_cndmask_b32 v22, v21, v22, vcc
    """)
    return pre, [[touch(22, 60, 0, nt=False), I(f"v_add_u32 v22, {nl * 128}, v22")] for n in range(56 // nl)]

def wo_consts(aWD, aOB):
    return L(f"""
    v_lshrrev_b32 v26, 4, v0
    v_bfe_u32 v27, v0, 1, 2
    v_xor_b32 v26, v26, v27
    v_lshlrev_b32 v26, 1, v26
    v_and_or_b32 v26, v0, 1, v26
    v_lshlrev_b32 v26, 4, v26
    v_lshrrev_b32 v27, 3, v0
    v_mul_u32_u24 v27, 896, v27
    s_mul_i32 s64, s{sWAVE}, {64 * 896}
    v_add3_u32 v26, v26, v27, s64
    v_accvgpr_write_b32 a{aWD}, v26
    v_bfe_u32 v26, v0, 3, 2
    v_lshlrev_b32 v26, 2, v26
    v_and_or_b32 v26, v0, 3, v26
    v_lshlrev_b32 v26, 3, v26
    v_lshrrev_b32 v27, 2, v0
    v_lshl_or_b32 v26, v27, 7, v26
    v_accvgpr_write_b32 a{aOB}, v26
    """)

def share_setup(sKV):
    return L(f"""
    s_and_b32 s64, s{sJ}, 7
    s_lshl2_add_u32 s64, s64, s{sWAVE}
    s_lshl_b32 s64, s64, 14
    v_lshrrev_b32 v26, 2, v0
    v_and_b32 v27, 3, v0
    v_lshlrev_b32 v27, 7, v27
    v_lshl_add_u32 v26, v26, 13, v27
    v_add_u32 v26, s64, v26
    v_and_b32 v27, 56, v0
    v_lshl_add_u32 v26, v27, 24, v26
    v_accvgpr_write_b32 a236, v26
    s_lshr_b32 s64, s{sH}, 3
    s_lshl1_add_u32 s64, s{sKV}, s64
    s_lshl_b32 s64, s64, 5
    s_add_u32 s64, s64, s{sWAVE}
    s_lshl_b32 s64, s64, 14
    v_and_b32 v26, 7, v0
    v_lshlrev_b32 v26, 11, v26
    v_and_b32 v27, 8, v0
    v_lshl_add_u32 v26, v27, 18, v26
    v_add_u32 v26, s64, v26
    v_and_b32 v27, 48, v0
    v_lshl_add_u32 v26, v27, 24, v26
    v_accvgpr_write_b32 a237, v26
    """)
def share_w(sw, t, fl): return [I(f"s_mov_b32 s65, {t * 64 * 8192}"), I("v_accvgpr_read_b32 v26, a236"), I(f"buffer_load_dword a{JUNK}, v26, s[{sw}:{sw+3}], s65 offen {fl}", tag="TOUCH")]
def share_c(sc, t): return [I("v_accvgpr_read_b32 v26, a237"), I(f"buffer_load_dword a{JUNK}, v26, s[{sc}:{sc+3}], 0 offen offset:{t * 128}", tag="TOUCH")]

WS_PROBE = 228 << 20
LDS_P = 163840 - 32
def nu_issue():
    return L(f"""
    s_lshl2_add_u32 s40, s2, s{sWAVE}
    s_lshr_b32 s46, s40, 7
    s_lshl_b32 s46, s46, 1
    s_and_b32 s47, s40, 1
    s_add_u32 s46, s46, s47
    s_lshl_b32 s46, s46, 6
    s_bfe_u32 s47, s40, 0x60001
    s_add_u32 s46, s46, s47
    s_lshl_b32 s46, s46, 7
    {f's_add_u32 s46, s46, {WS_PROBE}' if not NUMA.pg else f's_lshl_b32 s47, s{sH}, 24' + chr(10) + 's_add_u32 s46, s46, s47' + chr(10) + f's_add_u32 s46, s46, {(NUMA.pg - 1) << 22}'}
    s_add_u32 s46, s46, s6
    s_addc_u32 s47, s7, 0
    s_load_dword s43, s[46:47], 0
    """)
def nu_time():
    return L(f"""
    s_cmp_lg_u32 s{sJ}, 8
    s_cbranch_scc1 L_nut
    s_lshl_b32 s67, s{sWAVE}, 2
    s_add_u32 s67, s67, {LDS_P}
    v_mov_b32 v17, s67
    s_waitcnt lgkmcnt(0)
    s_memtime s[72:73]
    s_waitcnt lgkmcnt(0)
    s_load_dword s43, s[46:47], 0x40000
    s_load_dword s40, s[46:47], 0x60000
    s_load_dword s26, s[46:47], 0x80000
    s_waitcnt lgkmcnt(2)
    s_memtime s[64:65]
    s_waitcnt lgkmcnt(0)
    s_sub_u32 s64, s64, s72
    s_min_u32 s64, s64, 2500
    v_mov_b32 v16, s64
    ds_write_b32 v17, v16
    s_waitcnt lgkmcnt(0)
    L_nut:
    """)
def nu_publish():
    return L(f"""
    v_mov_b32 v26, {LDS_P}
    ds_read_b128 v[28:31], v26
    s_getreg_b32 s92, hwreg(20, 2, 1)
    s_lshl_b32 s101, s{sH}, 2
    s_and_b32 s100, s{sJ}, 7
    s_min_u32 s100, s100, 1
    s_lshl_b32 s100, s100, 29
    s_or_b32 s101, s101, s100
    s_lshl_b32 s100, s92, 30
    s_add_u32 s100, s100, 0x4000
    s_lshl_b32 s92, s92, 1
    s_sub_u32 s92, 1, s92
    """) + lane0_wave0(26) + L(f"""
    v_sub_u32 v28, v28, v29
    v_sub_u32 v30, v30, v31
    v_max_i32 v28, -400, v28
    v_max_i32 v30, -400, v30
    v_min_i32 v28, 400, v28
    v_min_i32 v30, 400, v30
    v_add_u32 v28, v28, v30
    v_mul_i32_i24 v28, s92, v28
    v_add_u32 v28, s100, v28
    buffer_store_dword v28, v26, s[{S_DBG}:{S_DBG+3}], s101 offen sc1
    """)
def nu_decide():
    out = L(f"v_cmp_le_u32 vcc, 0x40000000, v17\nv_and_b32 v17, 0xffff, v17\ns_nop 0\ns_and_b32 s{sBM}, vcc_lo, 0xff")
    out += [I(f"v_add_u32 v17, v17, v17 {sh} row_mask:0xf bank_mask:0xf") for sh in ("row_ror:8", "row_ror:4", "row_ror:2", "row_ror:1")]
    return out + L(f"""
    v_cmp_lt_u32 vcc, {16 * 0x4000}, v17
    s_nop 0
    s_nop 0
    s_and_b32 s92, vcc_lo, 1
    s_mul_i32 s92, s92, 0xff
    s_xor_b32 s{sBM}, s{sBM}, s92
    """)
def nu_bit(r, t): return f"s_and_b32 s{t}, s{sH}, 7\ns_lshr_b32 s{t}, s{sBM}, s{t}\ns_and_b32 s{t}, s{t}, 1\ns_lshl_b32 s{t}, s{t}, 13\ns_add_u32 s{r}, s{r}, s{t}"
```

```python
import sys
from att3 import *
import kvq, side, hw, asmlib, att3, q2, red3
from kvq import K, seq_fit
from q2 import VQ, place_vm, place_reads
opt = dict(stamp="0", v="1", thr=str(2.0 ** 40), lo=str(2.0 ** -60), m0="16", fine="0", dbgst="0", dbgl="0,3,6,7,14,18,21",
           cw="1", w1="0", q0="1", ramp="00", eo="0", pc="0", sw="1", r3="1", lagv="16", lag="8",
           pcq="4", tQ="9", tW="5", tH="7", tc="6,13", tg="113", xs_="20", odh="45", ne="8", jy="6", tl="1",
           k15="8", kst="2224a56", kf="0", v15="4", vst="2204444", vf="2", nq="8", w0l="24", ext="1", nu="1", nuf="1", pl="0", nud="0", sp="0", spa="56", spp="50", spt="12", lay="1", qfl="", rfl="", pfl="", ofl="sc1", rsnk="1", snk="2", wis="0", p2="0", pw="1", pfg="24", ec="1", n1="9", rsl="1", wso="0", hnt="nt", nomoe="0", sent="0", sg="30", mk="044", s5="1", odh5="26", efw="5", efg="52", wi="0", sw_="0", sc_="0", swf="nt", hi0="44", hi1="108", rv="0", eh="1", bpv="0", bpvd="4", bpvk="20", bop="2", bopk="2.0", bkk="8.0", bkv="1", bq="0", tB="13", bsp="5", l4="44", wn="2221",
           ntw="nt", ntt="", osf="sc1", stf="sc1", dfl="sc1", hot="00", npk="16")
for a in sys.argv[1:]:
    k, v = a.split("="); assert k in opt, k; opt[k] = v
O = lambda k: int(opt[k])
STAMP = opt["stamp"] == "1"
kvq.HOT = opt["hot"]; kvq.NTW = opt["ntw"]; side.NTT = opt["ntt"]; kvq.STF = opt["stf"].replace("+", " "); att3.DFL = opt["dfl"]; side.OSF = opt["osf"]
side.EPAR = 2; side.NE = O("ne"); side.SELLV = 1; side.YLV = 4; hw.MAP = "0"
side.ROWMAP = "s_lshr_b32 s73, s72, 1\ns_sub_u32 s65, 7, s73\ns_bitcmp1_b32 s72, 0\ns_cselect_b32 s73, s65, s73\ns_lshl_b32 s73, s73, 4"
sH, sJ, sSTK, sKV, sFL = 41, 42, 44, 45, 45
XS = O('xs_'); assert XS in (18, 20)
JC = XS // 2
FSH = 7
aST = 250
NM0 = hex(f2u(-float(opt['m0'])))
BOP = O('bop')
BPV.update(on=O('bpv'), db=O('bpvd'), k=float(opt['bpvk']))
red3.WI = O('wi')
hw.HNT = opt['hnt']
side.RSL = O('rsl')
EC = O('ec')
PW = O('pw')
kvq.WIS = O('wis')
att3.SNK = O('snk')
kvq.RSNK = O('rsnk')
red3.RFL = opt['rfl']
NU = NUMA.on = O('nu'); assert not (NU and (O('sp') or O('sent') or opt['r3'] == '0'))
NUMA.pl = O('pl')
NUMA.fl = NU and O('nuf')
NEVER = 0x7fff
SENT = O('sent')
EXT = O('ext')
SW = O('sw')
def stamp(t=10):
    if not STAMP: return []
    return L(f"""s_memrealtime s[36:37]
    s_memtime s[98:99]
    v_accvgpr_read_b32 v{t}, a{aST}
    v_accvgpr_read_b32 v{t+1}, a{aST+1}
    s_mov_b32 s100, m0
    s_mov_b32 m0, s{sSTK}
    s_waitcnt lgkmcnt(0)
    v_writelane_b32 v{t}, s98, m0
    v_writelane_b32 v{t+1}, s36, m0
    s_add_u32 s{sSTK}, s{sSTK}, 1
    s_mov_b32 m0, s100
    v_accvgpr_write_b32 a{aST}, v{t}
    v_accvgpr_write_b32 a{aST+1}, v{t+1}""")
fst = lambda n, t=10: stamp(t) if opt['fine'] == str(n) else []

F1_LOAD = f"buffer_load_dword v24, v13, {WSR}, s46 offen sc1"
F2_LOAD = f"buffer_load_dword v24, v{A.vFL}, {WSR}, s46 offen sc1"
FL_LOAD = f"buffer_load_dword v{A.vRL + 1}, v{A.vFL}, {WSR}, s46 offen sc1"
FP_LOAD = f"buffer_load_dword v{A.vRL}, off, {WSR}, s47 sc1"
ZZ = lambda: [I(f"v_mov_b32 v{A.vP1 + e}, 0") for e in range(4)]
SELM = lambda: L(f"""
    v_mov_b32 v16, 0x3f80
    v_lshrrev_b32 v17, 8, v{A.vL16}
    v_bfe_u32 v18, v{A.vL16}, 6, 2
    v_and_b32 v19, 16, v{A.vL16}
    v_lshlrev_b32 v19, v19, v16
    v_cmp_eq_u32 vcc, v17, v18
    v_and_b32 v16, 32, v{A.vL16}
    v_accvgpr_write_b32 a244, 0
    v_accvgpr_write_b32 a245, 0
    v_cndmask_b32 v19, 0, v19, vcc
    v_cmp_eq_u32 vcc, 0, v16
    v_accvgpr_write_b32 a248, 0
    v_accvgpr_write_b32 a249, 0
    v_cndmask_b32 v17, 0, v19, vcc
    v_sub_u32 v18, v19, v17
    v_accvgpr_write_b32 a246, v17
    v_accvgpr_write_b32 a247, v18
    """)

def first_qk(cv_late):
    if not cv_late:
        g = Gaps(qk_mfmas(0, "nm", snk=False)); weave_reads(g, 3, 1, [("T", 1)])
        blocks = [(0, 0), (0, 1), (1, 0), (1, 1)]; rdy = [11, 19, 27, 35]
    else:
        m = lambda kb, qb, ks, c=None: mfma(R("v", Sreg(0, kb, qb), 4), R("a", Freg(kb, ks), 4), R("a", Qreg(qb, ks), 4), c or R("v", Sreg(0, kb, qb), 4))
        ms = [m(kb, qb, ks, R("v", A.vNM + 4 * qb, 4) if n == 0 else None) for kb in range(2) for qb in range(2) for n, ks in enumerate(range(6) if qb == 0 else range(5, -1, -1))]
        ms += [m(0, 0, 6), m(0, 1, 6), m(1, 1, 6), m(1, 0, 6), m(0, 0, 7), m(1, 0, 7), m(0, 1, 7), m(1, 1, 7)]
        g = Gaps(ms + qk_mfmas(0, "nm")[32:])
        for f, k in enumerate([0, 1, 2, 4, 5, 6, 8, 9]): g.put(k, rd_frag(3, 1, f, Freg(1, f)))
        g.put_s(11, NEED(R("a", Freg(1, 0), 24))); g.put_s(22, NEED(R("a", Freg(1, 6), 8)))
        for f, k in enumerate([13, 14, 16, 17, 19, 20, 27, 31]): g.put(k, rd_frag(3, 2, f, Freg(2, f)))
        for f, k in enumerate([25, 28, 29, 33, 34, 36, 37, 39]): g.put(k, rd_frag(3, 3, f, Freg(3, f)))
        g.put_s(31, NEED(R("a", Freg(2, 0), 24))); g.put_s(37, NEED(R("a", Freg(2, 6), 8)))
        g.put_s(46, WAITV([("T", 1)], lgkm0=True)); g.put_s(47, I("s_barrier"))
        for f, r in enumerate(rd_batch(1, 0)): g.put(48 + RPAT[0][f], r)
        g.put_s(62, NEED(R("a", Freg(0, 0), 32)))
        blocks = [(0, 0), (1, 0), (0, 1), (1, 1)]; rdy = [32, 33, 34, 35]
    sm = SM(sm_groups(0, blocks + blocks_of(1), (0, 1)), ready={n: rdy[n >> 1] for n in range(8)})
    return g, sm

NU_SEL = f"""
    s_and_b32 s64, s{sH}, 7
    s_lshr_b32 s64, s{sBM}, s64
    s_lshr_b32 s65, s{sH}, 3
    s_xor_b32 s64, s64, s65
    s_and_b32 s64, s64, 1
    s_lshl_b32 s{sSEL}, s64, 13
    s_add_u32 s{K.sOOFF}, s{K.sOOFF}, s{sSEL}
    s_add_u32 s{A.sPO}, s{A.sPO}, s{sSEL}
    s_add_u32 s{A.sQ}, s{A.sQ}, s{sSEL}
    """ + (f"s_add_u32 s{A.sOP}, s{A.sOP}, s{sSEL}" if NUMA.pl else f"""
    s_lshl_b32 s64, s{A.sWAVE}, 1
    s_lshr_b32 s64, s{sBM}, s64
    s_xor_b32 s64, s64, s65
    s_and_b32 s64, s64, 1
    s_lshl_b32 s64, s64, 13
    s_add_u32 s{A.sOP}, s{A.sOP}, s64""")
NU_OPD = f"""
    s_lshl_b32 s64, s{A.sWAVE}, 1
    s_lshr_b32 s64, s{sBM}, s64
    s_lshr_b32 s93, s64, 1
    s_xor_b32 s64, s64, s93
    s_and_b32 s64, s64, {0 if NUMA.pl else 1}
    s_lshl_b32 s64, s64, 13
    s_xor_b32 s93, s{A.sOP}, s64
    s_add_u32 s93, s93, 32768"""

def ramp():
    nw, nc = int(opt['ramp'][0]), int(opt['ramp'][1])
    if not nw: return [], []
    pre = L(f"""
    v_lshrrev_b32 v28, 2, v0
    v_add_u32 v28, 1, v28
    v_lshrrev_b32 v29, 1, v28
    v_and_b32 v28, 1, v28
    v_lshlrev_b32 v28, 7, v28
    v_lshl_or_b32 v28, v29, 19, v28
    v_and_b32 v29, 1, v0
    v_lshl_or_b32 v28, v29, 8, v28
    v_bfe_u32 v29, v0, 1, 1
    v_lshl_or_b32 v28, v29, 13, v28
    s_lshl_b32 s64, s{K.sWAVE}, 14
    s_add_u32 s64, s64, s75
    v_cmp_gt_u32 vcc, {4 * nw}, v0
    v_add_u32 v28, s64, v28
    v_mov_b32 v31, {side.OOB}
    v_cndmask_b32 v16, v31, v28, vcc
    """) + (L(f"""
    v_lshrrev_b32 v28, 3, v0
    v_add_u32 v28, 1, v28
    v_lshrrev_b32 v29, 1, v28
    v_and_b32 v28, 1, v28
    v_lshlrev_b32 v28, 21, v28
    v_lshl_or_b32 v28, v29, 7, v28
    v_and_b32 v29, 7, v0
    v_lshl_or_b32 v28, v29, 11, v28
    s_lshr_b32 s64, s{sH}, 3
    s_lshl1_add_u32 s64, s{sKV}, s64
    s_lshl_b32 s64, s64, 5
    s_add_u32 s64, s64, s{K.sWAVE}
    s_lshl_b32 s64, s64, 14
    v_cmp_gt_u32 vcc, {8 * nc}, v0
    v_add_u32 v28, s64, v28
    v_cndmask_b32 v17, v31, v28, vcc
    """) if opt['rv'] == '0' else L(f"""
    v_lshrrev_b32 v28, 4, v0
    v_add_u32 v28, 1, v28
    v_lshrrev_b32 v29, 1, v28
    v_and_b32 v28, 1, v28
    v_lshlrev_b32 v28, 21, v28
    v_lshl_or_b32 v28, v29, 7, v28
    v_and_b32 v29, 15, v0
    v_lshl_or_b32 v28, v29, 11, v28
    s_lshr_b32 s64, s{sH}, 3
    s_lshr_b32 s67, s{K.sWAVE}, 1
    s_lshl1_add_u32 s64, s64, s67
    s_lshl_b32 s64, s64, 4
    s_and_b32 s67, s{K.sWAVE}, 1
    s_add_u32 s64, s64, s67
    s_lshl_b32 s64, s64, 15
    v_cmp_gt_u32 vcc, {16 * nc}, v0
    v_add_u32 v28, s64, v28
    v_cndmask_b32 v17, v31, v28, vcc
    s_sub_u32 s64, s{sJ}, 8
    s_and_b32 s64, s64, {side.OOB}
    v_or_b32 v16, s64, v16
    v_or_b32 v17, s64, v17
    """))
    return pre, [I(f"buffer_load_dword a240, v16, s[{K.S_W}:{K.S_W + 3}], 0 offen {opt['ntw']}", tag="TOUCH"), side.touch(17, K.S_C, 0, nt=False)]

def build_front(c):
    c.block("entry", f"""
    s_cmp_lt_u32 s2, 256
    s_cbranch_scc1 L_go
    s_endpgm
    L_go:
    {'s_memrealtime s[36:37]' + chr(10) + 's_memtime s[98:99]' if STAMP else ''}
    s_load_dwordx8 s[80:87], s[0:1], {A_X}
    s_load_dwordx4 s[88:91], s[0:1], {A_WUV}
    s_load_dwordx2 s[92:93], s[0:1], {A_WR}
    s_load_dwordx2 s[30:31], s[0:1], {A_GW}
    s_load_dwordx4 s[4:7], s[0:1], {A_DBG}
    v_lshrrev_b32 v24, 6, v0
    v_and_b32 v0, 63, v0
    v_readfirstlane_b32 s{K.sWAVE}, v24
    """, side.code_touch() if opt['pc'] == '0' else side.code_touch()[:-1], f"""
    s_and_b32 s{sH}, s2, 7
    s_lshr_b32 s{sJ}, s2, 3
    s_lshr_b32 s64, s{sJ}, 4
    s_lshl_b32 s64, s64, 3
    s_add_u32 s{sH}, s{sH}, s64
    s_and_b32 s{sJ}, s{sJ}, 15
    s_lshr_b32 s{sKV}, s{sJ}, 3
    s_xor_b32 s{sKV}, s{sKV}, {SW}
    s_mov_b32 s{sSTK}, 0
    v_accvgpr_write_b32 a{aST}, 0
    v_accvgpr_write_b32 a{aST+1}, 0
    v_and_b32 v24, 15, v0
    v_lshrrev_b32 v25, 4, v0
    v_lshlrev_b32 v{K.vST}, 4, v0
    s_and_b32 s65, s{K.sWAVE}, 1
    s_lshr_b32 s66, s{K.sWAVE}, 1
    {kvq.addr_wd()}
    {kvq.addr_cd()}
    s_mov_b32 s{K.sWOFF}, 0
    s_mov_b32 s{K.sCOFF}, 0
    s_lshl_b32 s{K.sM0W}, s{K.sWAVE}, 12
    s_add_u32 s{K.sM0C}, s{K.sM0W}, 65536
    s_lshl_b32 s74, s{sH}, 9
    s_sub_u32 s{K.S_W + 2}, {1024*8192}, s74
    s_mov_b32 s{K.S_W + 3}, 0x20000
    s_and_b32 s75, s{sJ}, 7
    s_lshl_b32 s75, s75, 16
    s_sub_u32 s{K.S_C + 2}, {2048*2048}, s75
    s_mov_b32 s{K.S_C + 3}, 0x20000
    """, ramp()[0], L(kvq.addr_rd()) + side.c_touch_setup() if opt['eo'] == '1' else [], f"""
    s_mov_b32 m0, s{K.sM0W}
    s_cmp_eq_u32 s{sKV}, 0
    s_cselect_b64 s[72:73], s[86:87], s[88:89]
    s_add_u32 s{K.S_W}, s72, s74
    s_addc_u32 s{K.S_W + 1}, s73, 0
    s_and_b32 s{K.S_W + 1}, s{K.S_W + 1}, 0xffff
    """, kvq.unit_w(0)[1:], f"""
    s_add_u32 s{K.S_C}, s82, s75
    s_addc_u32 s{K.S_C + 1}, s83, 0
    s_and_b32 s{K.S_C + 1}, s{K.S_C + 1}, 0xffff
    """, kvq.unit_c(0), ramp()[1], kvq.unit_w(1) if opt['w1'] == '0' else [], stamp(26)[2:], side.nu_issue() if NU else [], L(kvq.addr_rd()) + side.c_touch_setup() if opt['eo'] == '0' else [],
        side.code_addr(28, 29) + side.code_touch()[-1:] if opt['pc'] == '1' else [], f"""
    {srd(32, 82, 2048*2048)}
    {srd(K.S_X, 80, 2048*896)}
    {srd(60, 92, 896)}
    {srd(68, 30, 896)}
    {f's_add_u32 s6, s6, {O("wso") << 20}' + chr(10) + 's_addc_u32 s7, s7, 0' if O('wso') else ''}
    {srd(K.S_WS, 6, (256 - O('wso')) << 20)}
    {srd(K.S_DBG, 4, 256)}
    s_add_u32 s72, s84, s74
    s_addc_u32 s73, s85, 0
    s_sub_u32 s75, {448*8192}, s74
    {srd(K.S_WQ, 72, "s75")}
    s_mov_b32 s{K.sSC}, {hex(f2u(LOG2E_16))}
    s_mov_b32 s{K.sWQOFF}, 0
    s_mul_i32 s{K.sXOFF}, s{sJ}, {128*896}
    s_lshl_b32 s72, s{sKV}, {24 + NU}
    {f's_and_b32 s{sHP}, s{sH}, 7' + chr(10) + f's_lshr_b32 s73, s{sH}, 3' + chr(10) + f's_lshl1_add_u32 s{sHP}, s{sHP}, s73' if NU else ''}
    s_lshl_b32 s73, s{sHP if NU else sH}, {20 + NU}
    s_add_u32 s72, s72, s73
    s_bfe_u32 s64, s{sJ}, 0x20001
    s_lshl_b32 s64, s64, {15 + NU}
    s_add_u32 s72, s72, s64
    s_lshl_b32 s64, s66, {17 + NU}
    s_add_u32 s72, s72, s64
    s_and_b32 s67, s{sJ}, 1
    s_cmp_eq_u32 s{sKV}, 0
    s_cselect_b32 s64, 12, {14 + NU}
    s_cselect_b32 s75, {14 + NU}, 10
    s_lshl_b32 s67, s67, s75
    s_add_u32 s72, s72, s67
    s_lshl_b32 s64, s65, s64
    s_add_u32 s{K.sOOFF}, s72, s64
    """, side.h_touch_srd(), f"s_load_dwordx2 s[96:97], s[0:1], {A_OUT}", f"s_cmp_lt_u32 s{sJ}, 8\ns_cbranch_scc0 L_kv1")
    pcq, tQ, tH, tW = O("pcq"), O("tQ"), O("tH"), O("tW")
    for vt in (0, 1):
        o = "v" if vt else "k"; pt = vt ^ SW
        frags = [kvq.rd_c(0, 0, 0, 0), kvq.rd_c(0, 0, 0, 1)] + kvq.rd_w_unit(0, 0, 0) + kvq.rd_w_unit(0, 1, 1)
        kvq.BIAS.update(kv="v[20:23]" if O('bkv') else None, q="v[28:31]" if O('bq') else None, rows=None)
        Q0 = opt['q0'] == '1'; NZ = 7 if NUMA.fl else 3
        out = side.z_store()[:-NZ] + side.r4_loads() + side.z_store()[-NZ:] if vt == 0 else L(srd(60, 90, 4096*896)) + (side.nu_time() if NU else [])
        if Q0:
            frags, g0 = q2.tile0(pt)
            cw = kvq.unit_c(1) + kvq.unit_w(2); w1 = kvq.unit_w(1) if opt['w1'] == '1' else []
            if opt['cw'] == '0': out = cw + out; cw = []
            out = out + w1 + [WAITV([("C", 0), ("W", 0)], lgkm0=True), I("s_barrier")] + stamp(26) + frags + cw
            if vt == 0: out += side.r4_compute()
        else:
            out += kvq.unit_w(2) + kvq.unit_c(1) + [WAITV([("W", 1), ("C", 0), ("W", 0)], lgkm0=True), I("s_barrier")] + stamp(26) + frags
            if vt == 0: out += side.r4_compute()
            out += [NEED(R("a", kvq.wfrag(0, 0, 0), 8), R("a", 160, 8))]
        for t in range(15):
            dma = kvq.kv_dma(t)
            if vt == 1 and t == tW:
                pre, uns = side.wo2_dma(); dma[1] = dma[1] + [uns[0]]
            if vt == 1 and t == tW + 1: dma[1] = dma[1] + [uns[1]]
            if vt == 0 and t == tH - 5:
                pre, uns = hw.s1_weights()
            if vt == 0 and tH - 5 <= t <= tH + 1 and not O('nomoe'): dma[1] = dma[1] + [uns[t - tH + 5]]
            if vt == 0 and t == tH + 4:
                pre, un = hw.s6_down_dma(); dma[1] = dma[1] + ([un] if not O('nomoe') else [])
            g = g0 if (Q0 and t == 0) else kvq.kv_tile(t, pt, dma, first=(t == 0), hi1=O('hi1') if len(dma[1]) < 3 else 108, hi0=O('hi0'))
            def fit(ins, k, pace=0):
                k, left = seq_fit(g, ins, k, pace); assert not left, (t, len(left)); return k
            def mm(ms, k):
                k |= 1
                for m in ms: g.put(k, m)
                return k
            tch = []
            if pcq and (t + pcq) % 4 == 0 and t + pcq < 16: tch += side.c_touch(32, (t + pcq) // 4)
            if O('sw_') or O('sc_'):
                if t == 0: fit(side.share_setup(sKV), 50)
                if O('sw_') and 3 < t + O('sw_') < 16: tch += side.share_w(K.S_W, t + O('sw_'), opt['swf'])
                if O('sc_') and 2 < t + O('sc_') < 16: tch += side.share_c(K.S_C, t + O('sc_'))
            if t == 1 and vt == 0: fit(side.z_signal(), 112)
            if t == 2 and vt == 0: assert fit(side.rg4_store(), 4, 1) < 42
            if t == 3: fit(side.z_load(), 50)
            if NU and t == 1 and vt: fit(side.nu_publish(), 50)
            if NU and t == 5: assert fit(side.nu_decide() + (L(f"s_lshl_b32 s92, s2, 2\ns_add_u32 s92, s92, {(232 << 20)}\nv_mov_b32 v16, s{sBM}\nbuffer_store_dword v16, off, {WSR}, s92 sc1") if opt['nud'] == '1' else []), 2) < 40
            if t == 4:
                k = fit(side.z_check(vt), 112)
                if vt == 0: fit(side.key4_store(), k + 1)
            if vt == 1:
                pre_, tl = side.q_touch3(K.S_WQ)
                if t == tQ: fit(pre_, 60)
                if 0 <= t - tQ < len(tl): tch += tl[t - tQ]
                if t == tW: assert fit(pre, 42) < 80
                if t == tW + 2: g.sc[110][0].tag = g.sc[110][0].tag + ["WO"]
                if t == tW + 3: assert fit(side.wo2_reads(), 2, 2) < 108
                if t == 2: fit(SELM() + [I(f"v_accvgpr_write_b32 a{232 + e}, -1") for e in range(4) if SENT], 10, 1)
            if vt == 0 and O('nomoe'):
                if t == tH - 5: assert fit(pre, 42) < 90
                if t == tH + 1: fit(L("v_cmp_eq_u32 vcc, -1, v0\ns_nop 1\ns_cbranch_vccnz L_hs\nL_hr:"), 10)
                if t == tH + 6: pre, ms, yadr, yst = hw.s8_down(); link(yadr + yst)
            elif vt == 0:
                if t == tH - 5: assert fit(pre, 42) < 90
                if t == tH: fit(hw.s2_keys(), 4)
                if t == tH + 1: assert fit(hw.s3_top2(), 10, 1) < 108
                if t == tH + 2: fit(hw.s4_sel(), 4, 1)
                if t == tH + 3:
                    (r0, m0), (r1, m1) = hw.s5_gemm()
                    k = fit([WAITV("HW")] + r0, 50); k = mm(m0, max(k + 6, 78)); k = fit(r1, k + 1); mm(m1, max(k + 6, 110))
                if t == tH + 4: assert fit(pre, 4) < 44
                if t == tH + 5:
                    s7 = hw.s7_act(); fit(s7, 2, 1)
                    assert all(i.kind != "dsr" or i not in s7 for q in range(100, 128) for i in g.ve[q])
                if t == tH + 6:
                    pre, ms, yadr, yst = hw.s8_down(); link(yadr + yst)
                    k = fit(pre, 2); k = mm(ms, max(k + 2, 46))
            if t == 14: assert fit(kvq.addr_q(), 2) < 46
            if t == 14: fit(L(f"""
                s_mul_i32 s72, s{sH}, {FSTR}
                s_add_u32 s46, s72, {WS_FL}
                {side.nu_bit(46, 64) if NUMA.fl else ''}
                s_lshl_b32 s{sFL}, s{sJ}, {FSH}
                s_add_u32 s{sFL}, s{sFL}, s46
                s_sub_u32 s66, 15, s{sJ}
                s_min_u32 s66, s66, s{sJ}
                s_lshl_b32 s47, s66, {FSH}
                s_add_u32 s47, s47, s46
                s_add_u32 s47, s47, {2048 + (0 if vt else 64)}
                {f's_lshl2_add_u32 s47, s{A.sWAVE}, s47' if PW else ''}
                s_lshl_b32 s65, s{sHP if NU else sH}, 3
                s_add_u32 s65, s65, s66
                s_mul_i32 s{A.sPO}, s65, {262144 if NU else PO_STRIDE}
                s_add_u32 s{A.sPO}, s{A.sPO}, {NUMA.PO if NU else WS_PO}
                s_lshl_b32 s65, s{sJ}, 4
                s_add_u32 s65, s65, s{sH}
                s_mul_i32 s{A.sOP}, s65, {red3.OPH()}
                s_mul_i32 s65, s{A.sWAVE}, {red3.OPH() // 4}
                s_add_u32 s{A.sOP}, s{A.sOP}, s65
                s_add_u32 s{A.sOP}, s{A.sOP}, {NUMA.OP if NU else WS_OP}
                s_sub_u32 s65, 15, s66
                s_lshl_b32 s65, s65, {16 + NU}
                s_lshl_b32 s64, s{sHP if NU else sH}, {20 + NU}
                s_add_u32 s{A.sQ}, s64, s65
                s_lshl_b32 s65, s{A.sWAVE}, {14 + NU}
                s_add_u32 s{A.sQ}, s{A.sQ}, s65
                s_add_u32 s{A.sQ}, s{A.sQ}, {NUMA.Q if NU else WS_Q}
                {NU_SEL if NU else ''}
                s_mov_b32 s{A.sTHR}, {hex(f2u(float(opt['thr'])))}
                s_mov_b32 s{A.sMODE}, 1
                s_sub_u32 s64, s{sJ}, {JC}
                s_and_b32 s{A.sNC}, s64, {side.OOB}
                """), 50)
            tv = 26 if t < O('tB') - 1 else 24
            if str(t) in opt['tc'].split(','): tch += side.code_addr(26, 26) + [side.touch(26, 76, 0, nt=False)]
            fit(tch, O('tg'))
            if O('bkv'):
                if t == 0:
                    vb = VQ()
                    smp = lambda y: [kvq.kacc(y, x)[1] + e for x in range(2) for e in range(4)]
                    est = []
                    for y, r in ((1, 20), (2, 21)):
                        v = smp(y)
                        est.append(L(f"v_max3_f32 v{r}, |v{v[0]}|, |v{v[1]}|, |v{v[2]}|\nv_max3_f32 v{r}, |v{v[3]}|, |v{v[4]}|, v{r}\nv_max3_f32 v{r}, |v{v[5]}|, |v{v[6]}|, v{r}"))
                    k = fit(est[0], 16)
                    k = fit(est[1] + L(f"v_min_f32 v20, v20, v21\nv_mul_f32 v20, {hex(f2u(float(opt['bkk'])))}, v20") + [I(f"v_mov_b32 v{20 + e}, v20") for e in (1, 2, 3)] +
                            L("v_accvgpr_write_b32 a241, v20"), max(k, 24))
                    assert k < 38, k
                if t == O('tB') - 1: fit(L("v_accvgpr_read_b32 v27, a241"), 1)
                for y in range(1, 8):
                    if t == O('tB') - (y < O('bsp')):
                        vb.add([I(f"v_sub_f32 v{kvq.kacc(y, x)[1] + e}, v{kvq.kacc(y, x)[1] + e}, v27") for x in range(8) for e in range(4) if kvq.kv_c0(y, x) != "0"], 128 * t + 16 * y + 20)
                vb.run(g, 128 * t)
                for at, i in vb.placed:
                    q = min(q for q in range(128) if any(i is x for x in g.ve[q]))
                    assert 128 * t + q < at + 128 - 22, (t, at, q)
                assert t < 14 or not vb.q
            out += g.flat()
            if t in (0, 1, 11, 14) or opt['fine'] == '1': out += stamp(tv)
        flat = lambda gs: [i for x in gs for i in x]
        base = (f"s_lshl_b32 s{A.sK}, s{sH}, 20\ns_mov_b32 s{A.sCNT}, 0\ns_lshl_b32 s{A.sJ[2][1]}, s{sH}, 18\ns_add_u32 s{A.sJ[2][1]}, s{A.sJ[2][1]}, {WS_WO}\n" if not NU else
                f"s_lshl_b32 s{A.sK}, s{sHP}, 21\ns_mov_b32 s{A.sCNT}, 0\ns_add_u32 s{A.sK}, s{A.sK}, s{sSEL}\ns_add_u32 s{A.sJ[2][1]}, s{A.sK}, {NUMA.WO}\n") + f"s_add_u32 s{A.sVn}, s{A.sJ[2][1]}, {E(65536)}\n"
        (c1, a1), (c2, a2), (c3, a3) = A.sJ
        jumps = L(base + (f"""
            s_add_u32 s64, s{sJ}, 1
            s_min_u32 s64, s64, {JC}
            s_sub_u32 s{A.sIT}, s64, {2 + EXT}
            s_lshl_b32 s{c3}, s64, 1
            s_sub_u32 s{c2}, s{c3}, 2
            s_lshl_b32 s64, s{sJ}, {16 + NU}
            s_add_u32 s{a2}, s{A.sK}, s64
            s_sub_u32 s{a1}, {E(34 * 32768)}, s64
            s_add_u32 s{a1}, s{a1}, s{A.sK}
            s_lshl_b32 s64, s{sJ}, 1
            s_sub_u32 s64, 32, s64
            s_cmp_ge_u32 s{sJ}, {JC}
            s_cselect_b32 s{c1}, s64, {NEVER}
            """ if vt else f"""
            s_sub_u32 s{A.sIT}, s{sJ}, 1
            s_mov_b32 s{c2}, {NEVER}
            s_mov_b32 s{a2}, 0
            s_add_u32 s{a1}, s{A.sK}, {E(XS * 32768)}
            s_lshl_b32 s64, s{sJ}, 1
            s_add_u32 s65, s64, 4
            s_add_u32 s64, s64, 2
            s_cmp_le_u32 s{sJ}, {15 - JC}
            s_cselect_b32 s{c1}, s65, {NEVER}
            s_cselect_b32 s{c3}, {34 - XS}, s64
            """) + f"s_mov_b32 s{A.sKP}, 0")
        w0 = L("v_mov_b32 v12, 1") + side.lane0_wave0(15)
        w1_ = L(f"""
            s_mov_b32 s{A.sREQ}, {(0x500 if vt else 0x543) if EXT else (0x4003 if vt else 0x43)}
            {f's_cmp_ge_u32 s{sJ}, {JC}' + chr(10) + f's_cselect_b32 s64, {hex(15 << 4 * (JC - 3 - EXT))}, 0' + chr(10) + f's_or_b32 s{A.sREQ}, s{A.sREQ}, s64' if vt and EC else ''}
            {'' if vt else f's_cmp_lt_u32 s{sJ}, 2' + chr(10) + f's_cselect_b32 s{A.sREQ}, {0x504 if EXT else 4}, s{A.sREQ}'}
            s_lshl_b32 s64, s{A.sWAVE}, {14 + NU}
            s_add_u32 s{A.sPB}, s64, s{A.sPO}
            s_add_u32 s{A.sPB + 1}, s{A.sPB}, 4096
            s_add_u32 s{A.sPB + 2}, s{A.sPB}, {E(8192)}
            s_add_u32 s{A.sPB + 3}, s{A.sPB}, {E(12288)}
            """)
        w3 = L(f"v_min_u32 v25, 15, v0\nv_lshlrev_b32 v25, {FSH}, v25\nv_{'max' if SW else 'min'}_u32 v13, {(8 if SW else 7) << FSH}, v25")
        w4 = L(f"s_lshl_b32 s{A.sM0}, s{A.sWAVE}, 13") + jumps[:8] + L(F1_LOAD) + jumps[8:]
        w5 = L(f"""
            {f'v_add_u32 v10, s{A.sM0}, v{A.vL16}' + chr(10) + f'v_add_u32 v10, s{A.sM0}, v10' if NU else f'v_add_u32 v10, s{A.sM0}, v{A.vL16}'}
            v_add_u32 v11, 0x1000, v10
            v_cmp_eq_u32 vcc, 0, v24
            s_lshl_b32 s64, s{A.sWAVE}, 10
            s_cbranch_vccnz L_f1s{vt}4
            L_f1r{vt}4:
            """) + dma_flat(3, A.sK, 10) + adv_k() + L(f"""
            v_mov_b32 v{A.vFL}, v25
            v_lshrrev_b32 v24, 4, v0
            v_lshlrev_b32 v24, 2, v24
            v_and_b32 v25, 15, v0
            v_sub_u32 v24, v24, v25
            s_add_u32 s64, s64, s{A.sPO}
            s_add_u32 s{A.sPS}, s64, {E(65536)}
            s_mov_b32 s{A.sLO}, {hex(f2u(float(opt['lo'])))}
            s_and_b32 s65, s{A.sREQ}, {hex(15 << 4 * (JC - 3 - EXT)) if vt and EC else 0}
            s_cmp_eq_u32 s{A.sWAVE}, 0
            s_cselect_b32 s{A.sRT}, s{A.sREQ}, s65
            s_lshr_b32 s64, s{K.sWAVE}, 1
            s_lshl_b32 s64, s64, 17
            s_and_b32 s65, s{K.sWAVE}, 1
            s_lshl_b32 s65, s65, 12
            s_add_u32 s64, s64, s65
            v_add_u32 v14, s64, v7
            v_mov_b32 v{A.vNEG}, 0xff800000
            """) + [I(f"v_cmp_lt_i32 s[{A.sTRI[e]}:{A.sTRI[e]+1}], {-e}, v24") for e in range(4)]
        head6 = L(f"""
            {F2_LOAD}
            v_mov_b32 v{A.vF0}, v15
            v_add_u32 v{A.vRD1}, 0x10000, v{A.vL16}
            v_mov_b32 v{A.vDM0}, v10
            v_mov_b32 v{A.vDM1}, v11
            s_mov_b64 s[60:61], s[76:77]
            s_mov_b32 s62, s78
            s_mov_b32 s63, 0x20000
            """) + side.code_addr(0, 10)
        kvq.X6LOW = True; asmlib.VMX = False
        body, left = kvq.kv_to_q(pt, O(o + "15"), [int(x, 16) for x in opt[o + "st"]], O(o + "f"), [side.flag_store(sFL, 15, 12)], lambda: fst(2, 26),
                                 {0: w0, 1: w1_, 2: yadr if vt == 0 else [], 3: w3, 4: w4, 5: w5}, head6, dma_flat(1, A.sK) + adv_k(),
                                 [] if vt else [[i] for i in yst], 16)
        asmlib.VMX = True
        assert len(left) == (8 if vt else 0), len(left)
        st = kvq.Storer(A.sT1, "KV4")
        park = [I(f"v_accvgpr_write_b32 a{128 + 4*n + e}, v{int(r[2:r.index(':')]) + e}") for n, (r, off) in enumerate(left) for e in range(4)]
        later = [st.st(R("a", 128 + 4 * n, 4), off) for n, (r, off) in enumerate(left)]
        xch = ([WAITV([("T", 3)], lgkm0=True), I("s_barrier")] + stamp(26) + rd_batch(3, 0) + q_from_lds() +
               L(f"""v_cmp_eq_u32 vcc, 0, v24
               v_mov_b32 v{A.vX + 7}, {3 if vt else 4 + EXT}
               v_or_b32 v{A.vRL + 1}, s{A.sNC}, v{A.vL16}
               s_cbranch_vccnz L_f1s{vt}5
               L_f1r{vt}5:
               s_mov_b32 s{A.sT1}, s{K.sOOFF}
               {f's_add_u32 s{A.sT0}, s94, s{sSEL}' if NU else f's_mov_b32 s{A.sT0}, s94'}
               s_cmp_eq_u32 s{A.sWAVE}, 0
               s_cselect_b32 s{A.sPT}, {(4 + EXT) * vt}, 0""") + [I(f"v_mov_b32 v{A.vNM + r}, {NM0}") for r in range(8)] + [NEED(R("a", 0, 96))])
        g, sm = first_qk(False)
        g.sc[46][0].tag = g.sc[46][0].tag + ["KVST", "KVM"]
        g.put(48 + 2, side.flag_store(sFL, A.vF0, A.vX + 7))
        nq = O('nq')
        qst = [([I(f"s_add_u32 s3, s{A.sQ}, {E((n >> 2) * 4096)}")] if n % 4 == 0 or n == nq else []) +
               [I(f"buffer_store_dwordx4 a[{4*n}:{4*n+3}], v{A.vRL + 1}, {WSR}, s3 offen offset:{(n & 3) * 1024} sc1", tag="QST")] for n in range(16)] if vt else []
        place_vm(g, [(dma_flat(2, A.sV), 1, 40)] + ([(flat(qst[:nq]), O('w0l'), 62)] if vt and nq else []))
        vq = VQ(); vq.add([I(f"v_mov_b32 v{r}, 0") for r in (A.vLS, A.vLS + 1)] + park)
        vq.run(g, 0, 0, 14)
        sm.run(g, 8, 64, final=False, upto=8)
        vq.run(g, 0)
        vq.force(g, 63, lambda i: i.op == "v_mov_b32")
        out += body + xch + g.flat() + stamp()
        if vt == 1:
            wo = [[I(f"s_add_u32 s3, s{A.sT0}, {E(n * 32768)}"), I(w[1].text, tag="KV4")] for n, w in enumerate(side.wo2_stores())]
            w_1 = win_qk(0, "L_st8", "L_rt8", groups=qst[nq:], dma=(3, A.sK, adv_k()), sm=sm, lo_check=True, dhi=40, vq=vq)
            dump = [i for at, i in vq.q[:max(0, len(vq.q) - 16)]]; vq.q = vq.q[len(dump):]
            if O('v') > 1: sys.stderr.write(f"; start: dumped {len(dump)}\n")
            if EXT:
                n0 = int(opt['l4'][0]); st.tag = "KV3"; st.cur = None
                l4 = [[st.st(R("a", 128 + 4 * n, 4), off) for n, (r, off) in enumerate(left[:n0])]]; st.cur = None
                l4.append([st.st(R("a", 128 + 4 * n, 4), off) for n, (r, off) in enumerate(left[n0:], n0)])
                wc = [int(x) for x in opt['wn']]; wn = [wo[sum(wc[:n]):sum(wc[:n + 1])] for n in range(4)]; assert sum(wc) == 7
                if SENT:
                    mk = [([I(f"s_add_u32 s3, s{A.sOP}, {10240 + (n >> 2) * 14336}")] if n % 4 == 0 or True else []) +
                          [I(f"buffer_store_dwordx4 a[232:235], v{A.vL16}, {WSR}, s3 offen offset:{(n & 3) * 1024} sc1", tag="KV4")] for n in range(8)]
                    mc = [int(x) for x in opt['mk']]; assert sum(mc) == 8
                    for n in range(3): wn[1 + n] = wn[1 + n] + mk[sum(mc[:n]):sum(mc[:n + 1])]
            def early(g):
                vq.run(g, 0); assert not vq.q
                for q in range(g.n):
                    for i in g.ve[q]:
                        if i.op.startswith("v_accvgpr"): assert not any(set(i.reads) & set(g.m[x].writes) for x in range(q + 1)), (q, i.text)
            c.block("kv1", "L_kv1:", out, w_1, dump, fst(3),
                    win_pv(0, cz=True, pre_dma=(0, A.sV), tags=["QST"], vq_first=early,
                           post=L(f"s_xor_b32 s3, s47, 64\nv_mov_b32 v{A.vRL}, 1") + (L(f"v_min_u32 v{A.vRL + 1}, 1, v{A.vL16}\nv_lshlrev_b32 v{A.vRL + 1}, 29, v{A.vRL + 1}\nv_or_b32 v{A.vRL + 1}, s{A.sNC}, v{A.vRL + 1}") if PW else
                                L(f"v_or_b32 v{A.vRL + 1}, s{A.sNC}, v{A.vF0}")) + [side.flag_store(3, A.vRL + 1, A.vRL)]), fst(3),
                    *([win_qk(1, "L_st9", "L_rt9", groups=later, ghi=60, scal=mask_regs(False, (0, 1))), fst(3),
                       win_pv(1, groups=wo, glo=1, ghi=34, dlo=4, scal=mask_regs(False, (3,)), tail=L("s_branch L_loop_mid"))] if not EXT else
                      [win_qk(1, "L_st9", "L_rt9", groups=l4[0], ghi=60), fst(3), win_pv(1, groups=l4[1], ghi=60), fst(3),
                       win_qk(0, "L_st12", "L_rt12", extra=L(FL_LOAD), groups=wn[0], glo=6, scal=mask_regs(False, (0, 1))),
                       win_pv(0, tags=["KV3"], groups=wn[1], ghi=44, chk=L(f"v_cmp_gt_u32 vcc, 3, v{A.vRL + 1}\ns_cbranch_vccnz L_f4s\nL_f4r:"),
                              post=L(f"v_mov_b32 v{A.vX + 7}, 4") + [side.flag_store(sFL, A.vF0, A.vX + 7)]), fst(3),
                       win_qk(1, "L_st13", "L_rt13", groups=wn[2], scal=mask_regs(False, (2, 3))),
                       win_pv(1, groups=wn[3], glo=1, ghi=20 if len(wn[3]) < 4 else 32, dlo=1 if len(wn[3]) < 4 else 4, tail=L("s_branch L_loop_mid"))]))
            b_ = c.blocks["kv1"]
            if not EXT: b_[-1:-1] = mask_regs(False, (2,))
            assert max(n for n, i in enumerate(b_) if i.tag == "KV4") < max(n for n, i in enumerate(b_) if i.kind == "dma")
        else:
            assert not vq.q
            c.block("kv0", "L_kv0:", out, f"s_cmp_eq_u32 s{sJ}, 0\ns_cbranch_scc1 L_j0")
            c.block("k1", win_qk(0, "L_st10", "L_rt10", dma=(3, A.sK, adv_k()), sm=sm, lo_check=True, dhi=40, scal=mask_regs(False)), fst(3),
                    win_pv(0, cz=True, pre_dma=(0, A.sV), tail=L(f"s_cmp_lg_u32 s{A.sIT}, 0\ns_cbranch_scc1 L_loop_top")), "s_branch L_p1")
            c.block("j0", "L_j0:", mask_regs(False), ZZ(), f"v_accvgpr_write_b32 a{aOF}, 0\nv_accvgpr_write_b32 a{aOF + 1}, 0", [i for kb in range(4) for i in mask_blk(0, kb, 0, inplace=True)], mask_regs(True),
                    zero_O_mfma(mix(init_softmax(0), dma_flat(3, A.sK) + adv_k() + L(FP_LOAD), 1, 100), A.vP1),
                    [i for kb in range(4) for i in mask_blk(1, kb, 1)], "s_branch L_p2")

def build_att(c):
    fs = lambda: fst(3)
    c.block("loop_top", ".p2align 6\nL_loop_top:", fs(), win_qk(1, "L_st1", "L_rt1", extra=[side.touch(0, 60, 0, nt=False)] if opt['tl'] == '1' else []), win_pv(1))
    c.block("loop_mid", "L_loop_mid:", fs(), win_qk(0, "L_st0", "L_rt0", head=L(f"s_and_b32 s{A.sREQ}, s{A.sRT}, 15\ns_cbranch_scc1 L_fll\nL_fllr:\ns_lshr_b32 s{A.sRT}, s{A.sRT}, 4")),
            win_pv(0, tail=L(f"s_sub_u32 s{A.sIT}, s{A.sIT}, 1\ns_cmp_lg_u32 s{A.sIT}, 0\ns_cbranch_scc1 L_loop_top"),
                   chk=L(f"""v_cmp_gt_u32 vcc, s{A.sREQ}, v{A.vRL + 1}
                   s_cbranch_vccnz L_fls0
                   L_flr0:
                   s_and_b32 s3, s{A.sPT}, 15
                   s_cbranch_scc1 L_pub3
                   L_pub3r:
                   s_lshr_b32 s{A.sPT}, s{A.sPT}, 4""")))
    LAY = O('lay'); assert EC or not LAY
    c.block("ph", "L_p1:", stamp(), f"s_cmp_eq_u32 s{A.sMODE}, 0\ns_cbranch_scc1 L_final_h",
            f"s_cmp_lt_u32 s{sJ}, {JC}\ns_cbranch_scc1 L_p1n" if LAY else f"s_cmp_ge_u32 s{sJ}, {JC}\ns_cbranch_scc1 L_p1c" if EC else "")
    c.block("p1", "L_p1n:", win_qk(1, "L_st5", "L_rt5", masked=True), fs(),
            win_pv(1, scal=mask_regs(True), valu=[i for kb in range(4) for i in mask_blk(1, kb, 1)], vlo=34, post=L(FP_LOAD)), fs())
    g = Gaps(qkB_mfmas())
    half_reads(g, 1, 2, [("T", 2)])
    half_dma(g, dma_flat(0, A.sV))
    ck = check(0, "L_st6")
    spread_any(g, softmax_half(0, 1) + ck[:2], 0, 28); g.put(31, ck[2])
    c.block("p2", "L_p2:", g.flat(), "L_rt6:", fs(), f"s_cmp_gt_u32 s{sJ}, {15 - JC}\ns_cbranch_scc1 L_p3o" if LAY else f"s_cmp_le_u32 s{sJ}, {15 - JC}\ns_cbranch_scc1 L_p3k",
            f"s_cmp_ge_u32 s{sJ}, {JC}\ns_cbranch_scc1 L_p3c" if not EC else "")
    smB = lambda: SM(groups_B(), add_l(0))
    pchk = lambda n: L(f"v_cmp_ne_u32 vcc, 1, v{A.vRL}\ns_cbranch_vccnz L_fps{n}\nL_fpr{n}:")
    lfin = lambda: add_l(1, (1,)) + zip2(xlane("v_add_f32", A.vLS, A.vX), xlane("v_add_f32", A.vLS + 1, A.vX + 1)) + L(f"v_rcp_f32 v{A.vRL}, v{A.vLS}\nv_rcp_f32 v{A.vRL+1}, v{A.vLS+1}")
    w2a = lambda: L(f"s_add_u32 s{A.sVn}, s{A.sVn}, {E(32768)}")
    c.block("p3o", "L_p3o:", win_pv(0, sm=smB(), nslot=0, end=check(1, "L_st2", only=1)), "L_rt2:", stamp())
    g = Gaps(pvB_mfmas())
    half_reads(g, 0, 3, [("T", 3)])
    half_dma(g, dma_flat(2, A.sVn) + w2a())
    spread_any(g, of_rd(A.vX + 4) + [i for ks in range(8) for i in cvt_ctx(ks, 0)], 1, 32)
    c.block("pBo", "L_pBo:", g.flat(), stamp(), "s_branch L_op1" if not LAY else "")
    pl = [I(f"buffer_load_dwordx4 v[{A.vX+4}:{A.vX+7}], v{A.vL16}, {WSR}, s{A.sPS} offen sc1")] + [
        I(f"buffer_load_dwordx4 a[{A.aX + 4*j}:{A.aX + 4*j + 3}], v{A.vL16}, {WSR}, s{A.sPB + j // 4} offen offset:{(j & 3) * 1024} sc1 {opt['pfl']}") for j in range(16)]
    cm = lambda qb, ks, hf: mfma(R("v", Oreg(2 * ks + hf, qb), 4), R("a", 246 - 2 * hf, 4), R("a", A.aX + (qb * 8 + ks) * 4, 4), R("v", Oreg(2 * ks + hf, qb), 4))
    if EC:
        n1 = O('n1')
        g = Gaps(qkB_mfmas(Freg5) + [cm(qb, ks, hf) for qb in range(2) for ks in range(8) for hf in range(2)])
        half_reads(g, 1, 2, [("T", 2)], bar=47, Freg4=Freg5)
        g.put_s(31, NEED(R("a", A.aX, 32))); g.put_s(45, NEED(R("a", A.aX + 32, 32)))
        place_vm(g, [(dma_flat(0, A.sV), 5, 44)])
        put_check(g, check(0, "L_st14"), SM(half_groups(0, 1)).run(g, 0, 56))
        c.block("p1c", "L_p1c:", win_qk(1, "L_st3", "L_rt3", masked=True, groups=[[i] for i in pl[:n1]], glo=1, ghi=60,
                                           scal_at=[(16 * kb + (4 if kb < 3 else 0), mask_regs(True, (kb,))) for kb in range(4)]), fs(),
                win_pv(1, valu=[i for kb in range(4) for i in mask_blk(1, kb, 1)], vlo=4, groups=[[i] for i in pl[n1:]], glo=2, ghi=46), fs(), f"""
                v_cmp_neq_f32 vcc, v{A.vNM}, v{A.vX+4}
                v_cmp_neq_f32 s[64:65], v{A.vNM+4}, v{A.vX+5}
                s_nop 0
                s_or_b64 vcc, vcc, s[64:65]
                s_cbranch_vccnz L_comb
                """)
        c.block("p2c", f"v_add_f32 v{A.vLS}, v{A.vX+6}, v{A.vLS}\nv_add_f32 v{A.vLS+1}, v{A.vX+7}, v{A.vLS+1}", g.flat(), "L_rt14:", fs(), "s_branch L_p3o" if not LAY else "")
    if not EC: c.block("p3c", "L_p3c:", pchk(0), win_pv(0, sm=smB(), nslot=0, end=check(1, "L_st3", only=1), groups=[[i] for i in pl], glo=0, ghi=60, nodma=True), "L_rt3:", stamp(),
            NEED(R("v", A.vX + 4, 4)), f"""
            v_cmp_neq_f32 vcc, v{A.vNM}, v{A.vX+4}
            v_cmp_neq_f32 s[64:65], v{A.vNM+4}, v{A.vX+5}
            v_add_f32 v{A.vX+6}, v{A.vX+6}, v{A.vLS}
            v_add_f32 v{A.vX+7}, v{A.vX+7}, v{A.vLS+1}
            s_or_b64 vcc, vcc, s[64:65]
            s_cbranch_vccnz L_comb
            """)
    F3 = lambda b, f: 192 + 4 * f if b == 2 else Freg(b, f)
    g = Gaps([pvB_mfma(db, kp, F3) for db in range(16) for kp in ((0, 1) if db % 2 == 0 else (1, 0))] + [cm(qb, ks, hf) for qb in range(2) for ks in range(8) for hf in range(2)])
    for b_, pos in ((1, [0, 0, 2, 2, 4, 4, 5, 6]), (2, [6, 8, 8, 10, 10, 12, 12, 14]), (3, [16, 16, 17, 18, 18, 19, 20, 20])):
        for f, k in enumerate(pos): g.put(k, rd_frag(0, b_, f, F3(b_, f)))
    g.put_s(7, NEED(R("a", Freg(1, 0), 16))); g.put_s(11, NEED(R("a", Freg(1, 4), 16))); g.put_s(15, NEED(R("a", 192, 16))); g.put_s(19, NEED(R("a", 208, 16)))
    g.put_s(23, NEED(R("a", Freg(1, 0), 32))); g.put_s(31, NEED(R("a", A.aX, 32))); g.put_s(47, NEED(R("a", A.aX + 32, 16))); g.put_s(55, NEED(R("a", A.aX + 48, 16)))
    g.put_s(34, WAITV([("T", 3)], lgkm0=True)); g.put_s(35, I("s_barrier"))
    for f, r in enumerate(rd_batch(3, 0)): g.put(44 + RPAT[0][f], r)
    g.put_s(62, NEED(R("a", Freg(0, 0), 32)))
    place_vm(g, [(dma_flat(1, A.sK) + dma_flat(2, A.sVn) + w2a(), 1, 61)])
    vq = VQ(); vq.add(L(f"v_mov_b32 v{A.vLS}, v{A.vX+6}\nv_mov_b32 v{A.vLS+1}, v{A.vX+7}") + of_rd(A.vX + 4))
    cv = [cvt_ctx(ks, 0) for ks in range(8)]
    for ks in range(8): vq.add(cv[ks][:-4], 4)
    nsub = len(vq.q)
    vq.run(g, 0, 0, 30); vq.force_level(g, lambda i: True, 0, 30)
    for ks in range(8): vq.add(cv[ks][-4:], 32 + 2 * ks + 5)
    vq.run(g, 0, 30); vq.force(g, 63, lambda i: True)
    if not EC: c.block("pBc", g.flat(), stamp())
    comb = [I("L_comb:")] + [I(pl[0].text), I("s_waitcnt vmcnt(0)")] + (dma_flat(1, A.sK) if not EC else []) + L(f"""
    s_nop 7
    v_sub_f32 v{A.vX}, v{A.vNM}, v{A.vX+4}
    v_sub_f32 v{A.vX+1}, v{A.vNM+4}, v{A.vX+5}
    v_max_f32 v{A.vX}, 0, v{A.vX}
    v_max_f32 v{A.vX+1}, 0, v{A.vX+1}
    """) + sub_S(1, (1,)) + (sub_S(0) if EC else []) + rescale_state() + (softmax_half(0, 0) if EC else sm_flat(groups_B())) + L(f"""
    v_sub_f32 v{A.vX}, v{A.vNM}, v{A.vX+4}
    v_sub_f32 v{A.vX+1}, v{A.vNM+4}, v{A.vX+5}
    v_cvt_i32_f32 v{A.vX}, v{A.vX}
    v_cvt_i32_f32 v{A.vX+1}, v{A.vX+1}
    v_ldexp_f32 v{A.vX}, 1.0, v{A.vX}
    v_ldexp_f32 v{A.vX+1}, 1.0, v{A.vX+1}
    v_and_b32 v{A.vX}, 0xffff0000, v{A.vX}
    v_and_b32 v{A.vX+1}, 0xffff0000, v{A.vX+1}
    v_fmac_f32 v{A.vLS}, v{A.vX}, v{A.vX+6}
    v_fmac_f32 v{A.vLS+1}, v{A.vX+1}, v{A.vX+7}
    v_lshrrev_b32 v{A.vX+2}, 16, v{A.vX}
    v_lshrrev_b32 v{A.vX+3}, 16, v{A.vX+1}
    """)
    n = 0
    for qb in range(2):
        for ks in range(8):
            for w in range(4):
                t = A.vT + (n % 8); n += 1
                o = Oreg(2 * ks + (w >> 1), qb) + 2 * (w & 1)
                comb += L(f"""v_accvgpr_read_b32 v{t}, a{A.aX + (qb * 8 + ks) * 4 + w}
                v_dot2c_f32_bf16 v{o}, v{t}, v{A.vX + 2 + qb}
                v_dot2c_f32_bf16 v{o+1}, v{t}, v{A.vX + qb}""")
    comb += L(f"s_nop 3\ns_branch {'L_p2' if EC else 'L_pBo'}")
    SP = O('sp')
    S5 = O('s5')
    slots = [3, 1, 2, 0, 4, 3, 1] if S5 else [3, 1, 2, 0, 3, 1, 2]
    def op_out(j, split=False):
        b = j & 1
        jo = j
        ins = L(f"s_add_u32 s{A.sT0}, s{A.sOP}, {E(2 * jo * 1024)}\ns_add_u32 s{A.sT1}, s{93 if NU else A.sOP}, {(0 if NU else 14336) + E(2 * jo * 1024)}")
        for pp in range(2):
            if split and pp == 1: ins.append(64)
            for qb in range(2):
                a, d = Sreg(b, 2 * pp, qb), Sreg(b, 2 * pp + 1, qb)
                if BOP == 2 and j == 0 and pp == 0: ins += L(f"v_mul_f32 v{A.vSUM + 2 + qb}, -v{A.vNM + 4 * qb}, v{A.vRL + qb}")
                if BOP == 1 and j == 0 and pp == 0:
                    nm = A.vNM + 4 * qb
                    ins += L(f"""v_max3_f32 v{nm}, |v{a}|, |v{a+1}|, |v{a+2}|
                    v_max3_f32 v{nm}, |v{a+3}|, |v{d}|, v{nm}
                    v_max3_f32 v{nm}, |v{d+1}|, |v{d+2}|, v{nm}
                    v_mul_f32 v{nm}, {opt['bopk']}, v{nm}""") + [I(f"v_mov_b32 v{nm + e}, v{nm}") for e in (1, 2, 3)] + L(f"v_mul_f32 v{A.vSUM + 2 + qb}, -v{nm}, v{A.vRL + qb}")
                if BOP and j >= 3 - BOP: ins += [I(f"v_fma_f32 v{r + e}, v{r + e}, v{A.vRL + qb}, v{A.vSUM + 2 + qb}") for r in (a, d) for e in range(4)]
                else: ins += [I(f"v_mul_f32 v{r + e}, v{A.vRL + qb}, v{r + e}") for r in (a, d) for e in range(4)]
                ins += L(f"""v_cvt_pk_bf16_f32 v{a}, v{a}, v{a+1}
                v_cvt_pk_bf16_f32 v{a+1}, v{a+2}, v{a+3}
                v_cvt_pk_bf16_f32 v{a+2}, v{d}, v{d+1}
                v_cvt_pk_bf16_f32 v{a+3}, v{d+2}, v{d+3}""")
                ins.append(I(f"buffer_store_dwordx4 v[{a}:{a+3}], v{A.vL16}, {WSR}, s{A.sT0 + qb} offen offset:{pp * 1024} {opt['ofl'].replace('+', ' ')}", tag=("OP", j)))
        return ins
    fop0 = lambda: L(f"""
    s_sub_u32 s64, 15, s{sJ}
    s_min_u32 s64, s64, s{sJ}
    s_mul_i32 s{sFL}, s64, {2 * FSTR}
    s_and_b32 s64, s{sJ}, 8
    s_lshl_b32 s64, s64, 1
    s_add_u32 s64, s64, s{sH}
    s_lshl_b32 s64, s64, 2
    s_add_u32 s{sFL}, s{sFL}, s64
    s_add_u32 s{sFL}, s{sFL}, {WS_FOP}
    s_lshl_b32 s64, s{A.sWAVE}, 8
    s_add_u32 s{sFL}, s{sFL}, s64
    s_add_u32 s3, s{sFL}, {FSTR}
    v_lshrrev_b32 v{A.vX + 7}, 5, v{A.vL16}
    v_min_u32 v{A.vX + 7}, 1, v{A.vX + 7}
    v_lshlrev_b32 v{A.vX + 6}, 3, v{A.vL16}
    v_lshl_or_b32 v{A.vX + 6}, v{A.vX + 7}, 29, v{A.vX + 6}
    v_mov_b32 v{A.vX + 5}, 1
    """)
    R3 = opt['r3'] == '1'
    fop = (lambda: red3.fop(A.vL16, 40, sFL, 3)) if R3 else fop0
    vFV = 40 if R3 else A.vX + 5; EH = R3 and opt['eh'] == '1'
    def dbgst():
        if opt['dbgst'] == '0': return []
        o = f"""
        s_load_dwordx2 s[72:73], s[0:1], {A_DBG}
        v_accvgpr_read_b32 v11, a{aST+1}
        v_accvgpr_read_b32 v15, a{aST}
        v_lshrrev_b32 v12, 4, v{A.vL16}
        v_mov_b32 v13, {side.OOB}
        s_waitcnt lgkmcnt(0)
        {srd(68, 72, 256)}
        s_lshl_b32 s64, s2, 2
        s_add_u32 s64, s64, s{A.sWAVE}
        s_cmp_eq_u32 s64, {O('dbgst')}
        s_cselect_b32 s64, 0, {side.OOB}
        s_and_b32 s65, s{sJ}, 8
        s_or_b32 s65, s65, s{A.sWAVE}
        s_cmp_eq_u32 s65, 0
        s_cselect_b32 s65, 0, {side.OOB}
        """
        for n, ln in enumerate([int(x) for x in opt['dbgl'].split(',')]):
            o += f"s_add_u32 s66, s64, {4 * (2 + n)}\nv_cmp_eq_u32 vcc, {ln}, v12\nv_mov_b32 v14, s66\ns_nop 1\nv_cndmask_b32 v13, v13, v14, vcc\n"
        o += f"""buffer_store_dword v11, v13, s[68:71], 0 offen
        buffer_store_dword v15, v13, s[68:71], 0 offen offset:28
        s_sub_u32 s66, s{sSTK}, 1
        v_mov_b32 v13, {side.OOB}
        v_cmp_eq_u32 vcc, s66, v12
        v_mov_b32 v14, 4
        s_nop 1
        v_cndmask_b32 v13, v13, v14, vcc
        v_or_b32 v13, s65, v13
        buffer_atomic_umax v11, v13, s[68:71], 0 offen
        v_not_b32 v11, v11
        v_min_u32 v13, 1, v12
        v_lshlrev_b32 v13, 29, v13
        v_or_b32 v13, s65, v13
        s_nop 1
        buffer_atomic_umax v11, v13, s[68:71], 0 offen
        s_waitcnt vmcnt(0)
        """
        return L(o)
    fin = lambda: (L("s_mov_b64 exec, -1\ns_waitcnt vmcnt(0)") + stamp(30) + L(f"""
        s_lshl_b32 s{A.sT0}, s2, 2
        s_add_u32 s{A.sT0}, s{A.sT0}, s{A.sWAVE}
        s_lshl_b32 s{A.sT0}, s{A.sT0}, 9
        s_add_u32 s{A.sT0}, s{A.sT0}, {WS_STAMP}
        v_lshrrev_b32 v10, 1, v{A.vL16}
        buffer_store_dwordx2 a[{aST}:{aST+1}], v10, {WSR}, s{A.sT0} offen
        """) + dbgst()) if STAMP else []
    def last_reads(g, slot):
        for b in range(1, 4):
            for f, r in enumerate(rd_batch(slot, b)): g.put((b - 1) * 16 + RPAT[0][f], r)
            g.put_s(b * 16 - 1, NEED(R("a", Freg(b, 0), 32)))
    ctx_v = lambda qb, ks: R("v", Oreg(2 * ks, qb), 4)
    ctx_a = lambda qb, ks: R("a", A.aX + (qb * 8 + ks) * 4, 4)
    pub = lambda: [WAITV([("OP", 6)])] + L(f"buffer_store_dword v{vFV}, v{vFV + 1}, {WSR}, s3 offen sc1") + stamp(30)
    def outproj(tag, ctx, first=(), tags0=(), post0=()):
        ow = []
        for j in range(7):
            k = 2
            if j == 0 and tag:
                g = Gaps(qk_mfmas(0, "zero", breg=ctx, order=[(kb, qb) for qb in range(2) for kb in range(4)], fr=Freg4))
                half_reads(g, slots[0], slots[1], [("T", slots[1])], bar=47)
                def cv0():
                    vq = VQ()
                    for ks in range(8): vq.add(cvt_ctx(ks, 1), 3 if ks > 5 else 0)
                    k = vq.run(g, 0, 0, 31); vq.force_level(g, lambda i: True, 0, 31); return min(k, 31)
                if not S5: k = cv0()
            else:
                g = Gaps(qk_mfmas(j & 1, "nm" if BOP and j >= 3 - BOP else "zero", breg=ctx, snk=j < 6))
                if j < 6: weave_reads(g, slots[j], slots[j + 1], [("T", slots[j + 1])] + (list(tags0) if j == 0 else []))
                else: last_reads(g, slots[j])
            if j == 0:
                kk = 48 if not PW else O('pfg') - 4
                for i in post0: kk = g.fit(kk, i) if i.slots()[0] else g.fit_s(kk + (i.op == "WAITV"), i) + 1
            if S5 and j == 0: place_vm(g, [(dma_flat(0, A.sVn) + w2a() + dma_flat(4, A.sVn) + w2a(), 1 if not tag else 5, 61)])
            elif S5:
                if j < 3: weave_dma(g, slots[j + 4], A.sVn, w2a(), 1, O('odh5'))
                if j == 2: g.fit(30, I(f"v_add_u32 v43, 0x20000, v{A.vL16}"))
            elif j + 3 < 7: weave_dma(g, slots[j + 3], A.sVn, w2a(), k if j == 0 else 1, 60 if j == 0 else O('odh'))
            if j == 0 and tag and S5: k = cv0()
            if j == 0: assert not seq_fit(g, list(first) + (fop() if not (tag or S5) else []), k)[1]
            if j == 0 and NU: scal_fit(g, L(NU_OPD), 30)
            if j == 0 and BOP == 2:
                est = []
                for qb in range(2):
                    a, nm = Sreg(0, 0, qb), A.vNM + 4 * qb; d = Sreg(0, 1, qb)
                    est += L(f"""v_max3_f32 v{nm}, |v{a}|, |v{a+1}|, |v{a+2}|
                    v_max3_f32 v{nm}, |v{a+3}|, |v{d}|, v{nm}
                    v_max3_f32 v{nm}, |v{d+1}|, |v{d+2}|, v{nm}
                    v_mul_f32 v{nm}, {opt['bopk']}, v{nm}""") + [I(f"v_mov_b32 v{nm + e}, v{nm}") for e in (1, 2, 3)]
                if tag: spread_any(g, est[:7], 40, 52); spread_any(g, est[7:], 52, 62)
                else: spread_any(g, est, 36, 62)
            if j == 3 and (tag or S5): assert not seq_fit(g, fop(), 1)[1]
            if j == 2: assert not seq_fit(g, side.sel_a(A.vL16), 1)[1]
            if j in (4, 5): assert not seq_fit(g, {4: side.sel_b(tag), 5: side.sel_c()}[j], 40 if j == 5 else 2)[1]
            if j == O('efw'):
                assert not seq_fit(g, [WAITV([("OP", (side.NE - 1) // 2)]), I(f"buffer_store_dword v{vFV}, v{vFV + 1}, {WSR}, s{sFL} offen sc1")], O('efg'))[1]
            if j == 6 and tag and SENT:
                assert EH and not seq_fit(g, L(f"s_sub_u32 s64, s{sJ}, 8\ns_and_b32 s64, s64, {side.OOB}\ns_or_b32 s64, s64, s3") +
                                          [WAITV([("OP", 4)]), I(f"buffer_store_dword v{vFV}, v{vFV + 1}, {WSR}, s64 offen sc1")], O('sg'))[1]
            if SP and tag and j == 4: scal_fit(g, L("s_mov_b32 s92, 0"))
            if SP and not tag:
                if j == 3: assert not seq_fit(g, L(f"s_add_u32 s92, s{sFL}, 2048") + [WAITV([("OP", 1)]), I(f"buffer_store_dword v{vFV}, v{vFV + 1}, {WSR}, s92 offen sc1")], O('spa'))[1]
                if j == 4:
                    pre_, ld_ = red3.pf_poll(); link(pre_ + [ld_]); k0 = scal_fit(g, pre_, 12); g.fit(max(k0 + 1, O('spp')), ld_)
                if j == 5:
                    pfl = red3.pf_loads(A.vL16); k0 = scal_fit(g, red3.pf_test(), O('spt'))
                    place_vm(g, [([i for x in pfl[:8] for i in x], k0 + 1, 62)], relax=True)
                if j == 6: place_vm(g, [([i for x in pfl[8:] for i in x], 1, 40)], relax=True)
            if j > 0: k = fill_valu(g, op_out(j - 1), 3, 58 if j < 6 else 36)
            if j == 6: k, last = seq_fit(g, op_out(6, True), max(k, 38))
            if tag and j in (0, 3, 5):
                n = {0: 1, 3: 2, 5: 3}[j]
                g.put_s(62, I(f"s_cmp_eq_u32 s{sJ}, {O('jy')}")); g.put_s(63, I(f"s_cbranch_scc1 L_y{n}"))
            ow += g.flat() + (L(f"L_y{n}r:") if tag and j in (0, 3, 5) else []) + fst(4, 30)
        return ow + stamp(30) + [i for i in last if not isinstance(i, int)] + ([] if EH else pub())
    c.block("op1", "L_op1:", outproj(1, ctx_v, lfin()), f"s_cmp_lt_u32 s{sJ}, 8\ns_cbranch_scc1 L_red")
    if R3:
        mv, farv = red3.main_v(A.vL16, lambda: stamp(30), O('lagv'), SENT)
        pubv = lambda: stamp(30) if SENT else pub() if EH else []
        c.block("end1", f"s_cmp_eq_u32 s{A.sWAVE}, 3\ns_cbranch_scc1 L_vend3", red3.head(True), pubv(), mv, "L_vend:", fin(), "s_endpgm")
        c.block("end3", "L_vend3:", pubv(), "s_branch L_vend", "s_waitcnt vmcnt(0)", farv)
    else: c.block("end1", fin(), "s_endpgm")
    qld = [[I(f"buffer_load_dwordx4 a[{4*n}:{4*n+3}], v{A.vL16}, {WSR}, s{72 + n // 4} offen offset:{(n & 3) * 1024} sc1 {opt['qfl']}")] for n in range(16)]
    c.block("p3k", "L_p3k:", f"""
            s_mov_b32 s72, s{A.sQ}
            s_add_u32 s73, s72, 4096
            s_add_u32 s74, s72, {E(8192)}
            s_add_u32 s75, s72, {E(12288)}
            """, pchk(1), win_pv(0, sm=smB(), nslot=0, end=check(1, "L_st7", only=1), groups=qld, glo=0, ghi=60, nodma=True), "L_rt7:", stamp())
    g = Gaps(pvB_mfmas())
    half_reads(g, 0, 3, [("T", 3)])
    half_dma(g, dma_flat(1, A.sK) + adv_k())
    scal_fit(g, L(f"s_sub_u32 s{A.sIT}, {15 - JC}, s{sJ}\ns_mov_b32 s{A.sMODE}, 0"))
    vq = VQ()
    vq.add(lfin() + L(f"""v_accvgpr_write_b32 a192, v{A.vRL}
        v_accvgpr_write_b32 a193, v{A.vRL + 1}
        v_mov_b32 v{A.vLS}, 0
        v_mov_b32 v{A.vLS + 1}, 0""") + [I(f"v_mov_b32 v{A.vNM + r}, {NM0}") for r in range(8)])
    vq.add(of_rd(A.vX + 4))
    for ks in range(8):
        for qb in range(2):
            vq.add(cvt_ctx(ks, qb), 4 * ks + 7 if qb else 0)
            vq.add([I(f"v_accvgpr_write_b32 a{A.aX + (qb * 8 + ks) * 4 + e}, v{Oreg(2 * ks, qb) + e}") for e in range(4)], 32)
    vq.run(g, 0)
    vq.force(g, 31, lambda i: f"v{A.vNM + 7}" in i.writes)
    w_b = g.flat()
    g, sm = first_qk(False)
    g.pre = [NEED(R("a", 0, 64))]
    g.put(40, I(f"v_cmp_gt_u32 vcc, 3, v{A.vRL + 1}")); g.put_s(43, I("s_cbranch_vccnz L_f2s")); g.put_s(43, I("L_f2r:"))
    place_vm(g, [(dma_flat(2, A.sV), 3, 44), ([I(FL_LOAD)], 0, 1)])
    sm.run(g, 8, 64, final=False, upto=8)
    vq.run(g, 32)
    vq.q = [(0, i) for at, i in vq.q]
    w_1 = win_qk(0, "L_st11", "L_rt11", dma=(3, A.sK, adv_k()), sm=sm, lo_check=True, vq=vq, dhi=40)
    npk = O('npk') if not BPV['on'] else 8; dump = [i for at, i in vq.q[:max(0, len(vq.q) - npk)]]; vq.q = vq.q[len(dump):]
    if O('v') > 1: sys.stderr.write(f"; switch: dumped {len(dump)}\n")
    def early(g):
        vq.run(g, 0); assert not vq.q
        for q in range(g.n):
            for i in g.ve[q]:
                if i.op.startswith(("v_cvt", "v_accvgpr")): assert not any(set(i.reads) & set(g.m[x].writes) for x in range(q + 1)), (q, i.text)
    c.block("sw", w_b, stamp(), g.flat(), fs(), w_1, dump, fs(),
            win_pv(0, cz=True, vq_first=early, pre_dma=(0, A.sV), tail=L(f"s_cmp_lg_u32 s{A.sIT}, 0\ns_cbranch_scc1 L_loop_top")), stamp())
    pst = lambda ks, qb: [I(f"buffer_store_dwordx4 v[{Oreg(2*ks, qb)}:{Oreg(2*ks, qb)+3}], v{A.vL16}, {WSR}, s{A.sPB + (qb*8+ks) // 4} offen offset:{(ks & 3) * 1024} sc1", tag="PST")]
    g = Gaps(pv_mfmas(1))
    weave_reads(g, 0, 3, [("T", 3)])
    k = 0; rest = []
    for ks in range(8):
        for qb in range(2):
            ins = cvt_ctx(ks, qb, A.vX + 6) + pst(ks, qb)
            if rest: rest += ins; continue
            k, rest = seq_fit(g, ins, max(k, 8 * ks + (7 if att3.SNK else 5 + 2 * qb) + 4))
    c.block("final_h", "L_final_h:", WAITV([("T", 0)], lgkm0=True), "s_barrier", rd_batch(0, 0), mix(softmax_half(1, 1), dma_flat(2, A.sVn) + w2a(), 1), check(1, "L_st4"), "L_rt4:", add_l(1), f"""
    v_mov_b32 v{A.vX+2}, v{A.vNM}
    v_mov_b32 v{A.vX+3}, v{A.vNM+4}
    v_mov_b32 v{A.vX+4}, v{A.vLS}
    v_mov_b32 v{A.vX+5}, v{A.vLS+1}
    buffer_store_dwordx4 v[{A.vX+2}:{A.vX+5}], v{A.vL16}, {WSR}, s{A.sPS} offen sc1
    """, of_rd(A.vX + 6), NEED(R("a", Freg(0, 0), 32)), stamp(), g.flat(), rest, stamp())
    c.block("op0", outproj(0, ctx_a, L(f"v_accvgpr_read_b32 v{A.vRL}, a192\nv_accvgpr_read_b32 v{A.vRL + 1}, a193"), ["PST"] if not PW else [],
                           L(f"s_xor_b32 s47, s47, 64\nv_mov_b32 v{A.vT}, 1") + ([side.flag_store(47, A.vF0, A.vT)] if not PW else
                           L(f"v_min_u32 v{A.vT + 1}, 1, v{A.vL16}\nv_lshlrev_b32 v{A.vT + 1}, 29, v{A.vT + 1}") + [WAITV(["PST"]), side.flag_store(47, A.vT + 1, A.vT)])))
    rm, far = red3.main_k(A.vL16, lambda: stamp(30), O('lag'), SP) if R3 else side.red_main(A.vL16, lambda: stamp(30), O('lag'), True, False)
    c.block("red", "L_red:", red3.head(False) if R3 else side.red_a(A.vL16), pub() if EH else [], rm, fin(), "s_endpgm")
    c.block("redfar", far)
    c.block("rpoll", red3.poll2(O('p2')) if O('p2') else side.red_poll())
    c.block("comb", comb)
    stubs = ""
    for n, b in ((0, "0"), (1, "1"), (2, "B"), (3, "1" if EC else "B"), (4, "1n"), (5, "1"), (6, "0B"), (7, "B"), (8, "f"), (9, "1"), (10, "f"), (11, "f")) + (((14, "0B"),) if EC else ()) + (((12, "0"), (13, "1")) if EXT else ()):
        stubs += f"L_st{n}:\ns_call_b64 s[{A.sRET}:{A.sRET+1}], L_slow{b}\ns_branch L_rt{n}\n"
    c.block("stubs", stubs)
    for nm, b, oth in (("0", 0, (0, 1)), ("1", 1, (0, 1)), ("1n", 1, ()), ("0B", 0, (1,)), ("B", 1, ()), ("f", 0, (0, 1))): c.block("slow" + nm, slow_sub(nm, b, oth))
    c.block("moe", red3.moe() if R3 else side.red_moe(), side.y_reduce2(lambda n: Oreg(2 * (n >> 1) + 1, n & 1)))
    c.block("spins", f"""
    L_fll:
    s_cmp_lg_u32 s{A.sREQ}, 15
    s_cbranch_scc1 L_fll1
    v_mov_b32 v{A.vFL}, 0
    s_mov_b32 s46, s47
    s_mov_b32 s{A.sREQ}, 1
    L_fll1:
    {FL_LOAD}
    s_branch L_fllr
    L_pub3:
    v_mov_b32 v{A.vX + 7}, s3
    """, side.flag_store(sFL, A.vF0, A.vX + 7), "s_branch L_pub3r",
            *[side.spin_stub(f"L_fhs{n}", f"L_fhr{n}", side.FH0_LOAD, 24, 91, "v_cmp_gt_u32 vcc, 1, v{vt}") for n in range(2)],
            *[side.spin_stub(f"L_fps{n}", f"L_fpr{n}", FP_LOAD, A.vRL, A.sSPIN) for n in range(EC, 2)],
            side.spin_stub("L_f4s", "L_f4r", FL_LOAD, A.vRL + 1, A.sSPIN, "v_cmp_gt_u32 vcc, 3, v{vt}") if EXT else [],
            side.spin_stub("L_f2s", "L_f2r", FL_LOAD, A.vRL + 1, A.sSPIN, "v_cmp_gt_u32 vcc, 3, v{vt}"),
            side.spin_stub("L_fls0", "L_flr0", FL_LOAD, A.vRL + 1, A.sSPIN, f"v_cmp_gt_u32 vcc, s{A.sREQ}, v{{vt}}"))

def layout(c):
    if opt['lay'] == '0': return
    seq = ["ph", "p1c", "p2c", "p3o", "pBo", "op1", "end1", "end3", "p1", "p2", "p3k"]
    o = [b for b in c.order if b not in seq]; k = o.index("loop_mid") + 1
    c.order = o[:k] + seq + o[k:]; assert c.order[c.order.index("p3k") + 1] == "sw"

def early_stubs(c):
    c.block("spins0", side.z_stub(0), side.z_stub(1), hw.key_stub(),
            *[side.spin_stub(f"L_f1s{n}{w}", f"L_f1r{n}{w}", F1_LOAD if w == 4 else F2_LOAD, 24, 91, "v_cmp_eq_u32 vcc, 0, v{vt}") for n in range(2) for w in (4, 5)])

def paths(c):
    lp = ["loop_top", "loop_mid"]
    for end in ((["ph", "p1", "p2", "p3c", "pBc"], ["ph", "p1", "p2", "p3o", "pBo"], ["ph", "p1", "p2", "p3c", "comb", "pBo"]) if not EC else
                (["ph", "p1c", "p2c", "p3o", "pBo"], ["ph", "p1", "p2", "p3o", "pBo"], ["ph", "p1c", "comb", "p2", "p3o", "pBo"])):
        c.path("entry", "kv1", "loop_mid", *lp, *lp, *end, "op1", "end1")
    if opt['r3'] == '1': c.path("entry", "kv1", "loop_mid", *lp, *lp, "ph", "p1", "p2", "p3o", "pBo", "op1", "end3")
    c.path("entry", "kv0", "k1", *lp, *lp, "ph", "p1", "p2", "p3o", "pBo", "op1", "red")
    for own in (["j0"], ["k1", "ph", "p1"], ["k1", *lp, "ph", "p1"], ["k1", *lp, *lp, "ph", "p1"]):
        for nh in (0, 1, 2):
            c.path("entry", "kv0", *own, "p2", "p3k", "sw", *(lp * nh + ["ph"] * (nh > 0)), "final_h", "op0", "red")
    for b in ("redfar", "rpoll", "stubs", "slow0", "slow1", "slow1n", "slow0B", "slowB", "slowf", "moe", "spins", "spins0"): c.path(b)

if __name__ == "__main__":
    c = CFG(verbose=O("v"))
    build_front(c); early_stubs(c); build_att(c); layout(c); paths(c)
    body = c.finalize()
    kn = NAME + "_kernel"
    print("; @launch grid=(256,1,1) block=(256,1,1) lds=163840")
    print('.amdgcn_target "amdgcn-amd-amdhsa--gfx950"\n.text')
    print(".macro M d, a, b, c\nv_mfma_f32_16x16x32_bf16 \\d, \\a, \\b, \\c\n.endm")
    print(kernel_header(kn))
    print(body.replace("  v_mfma_f32_16x16x32_bf16 ", "M ").replace("\n  ", "\n "))
    print("L_code_end:")
    print('.section .rodata,"a"\n.p2align 6')
    print(kernel_desc(kn, sgpr=102))
```

```python
import sys
from att3 import *
import kvq, side, hw, asmlib, att3, q2, red3
from kvq import K, seq_fit
from q2 import VQ, place_vm, place_reads
opt = dict(stamp="0", v="1", thr=str(2.0 ** 40), lo=str(2.0 ** -60), m0="16", fine="0", dbgst="0", dbgl="0,3,6,7,14,18,21",
           cw="1", w1="0", q0="1", ramp="00", eo="0", pc="0", sw="1", r3="1", lagv="16", lag="8",
           pcq="4", tQ="9", tW="5", tH="7", tc="6,13", tg="113", xs_="20", odh="45", ne="8", jy="6", tl="1",
           k15="8", kst="2224a56", kf="0", v15="4", vst="2204444", vf="2", nq="8", w0l="24", ext="1", nu="1", nukv="1", nupg="0", nuf="1", pl="0", nud="0", sp="0", spa="56", spp="50", spt="12", lay="1", qfl="", rfl="", pfl="", ofl="sc1", rsnk="1", snk="2", wis="0", p2="0", pw="1", pfg="24", ec="1", n1="9", rsl="1", wso="0", hnt="nt", nomoe="0", sent="0", sg="30", mk="044", s5="1", odh5="26", efw="5", efg="52", wi="0", sw_="0", sc_="0", swf="nt", hi0="44", hi1="108", rv="0", eh="1", bpv="0", bpvd="4", bpvk="20", bop="2", bopk="2.0", bkk="8.0", bkv="1", bq="0", tB="13", bsp="5", l4="44", wn="2221",
           ntw="nt", ntt="", osf="sc1", stf="sc1", dfl="sc1", hot="00", npk="16")
for a in sys.argv[1:]:
    k, v = a.split("="); assert k in opt, k; opt[k] = v
O = lambda k: int(opt[k])
STAMP = opt["stamp"] == "1"
kvq.HOT = opt["hot"]; kvq.NTW = opt["ntw"]; side.NTT = opt["ntt"]; kvq.STF = opt["stf"].replace("+", " "); att3.DFL = opt["dfl"]; side.OSF = opt["osf"]
side.EPAR = 2; side.NE = O("ne"); side.SELLV = 1; side.YLV = 4; hw.MAP = "0"
side.ROWMAP = "s_lshr_b32 s73, s72, 1\ns_sub_u32 s65, 7, s73\ns_bitcmp1_b32 s72, 0\ns_cselect_b32 s73, s65, s73\ns_lshl_b32 s73, s73, 4"
sH, sJ, sSTK, sKV, sFL = 41, 42, 44, 45, 45
XS = O('xs_'); assert XS in (18, 20)
JC = XS // 2
FSH = 7
aST = 250
NM0 = hex(f2u(-float(opt['m0'])))
BOP = O('bop')
BPV.update(on=O('bpv'), db=O('bpvd'), k=float(opt['bpvk']))
red3.WI = O('wi')
hw.HNT = opt['hnt']
side.RSL = O('rsl')
EC = O('ec')
PW = O('pw')
kvq.WIS = O('wis')
att3.SNK = O('snk')
kvq.RSNK = O('rsnk')
red3.RFL = opt['rfl']
NU = NUMA.on = O('nu'); assert not (NU and (O('sp') or O('sent') or opt['r3'] == '0'))
NUMA.pl = O('pl')
NUMA.fl = NU and O('nuf')
NUMA.kv = O('nukv'); NUMA.pg = O('nupg')
NEVER = 0x7fff
SENT = O('sent')
EXT = O('ext')
SW = O('sw')
def stamp(t=10):
    if not STAMP: return []
    return L(f"""s_memrealtime s[36:37]
    s_memtime s[98:99]
    v_accvgpr_read_b32 v{t}, a{aST}
    v_accvgpr_read_b32 v{t+1}, a{aST+1}
    s_mov_b32 s100, m0
    s_mov_b32 m0, s{sSTK}
    s_waitcnt lgkmcnt(0)
    v_writelane_b32 v{t}, s98, m0
    v_writelane_b32 v{t+1}, s36, m0
    s_add_u32 s{sSTK}, s{sSTK}, 1
    s_mov_b32 m0, s100
    v_accvgpr_write_b32 a{aST}, v{t}
    v_accvgpr_write_b32 a{aST+1}, v{t+1}""")
fst = lambda n, t=10: stamp(t) if opt['fine'] == str(n) else []

F1_LOAD = f"buffer_load_dword v24, v13, {WSR}, s46 offen sc1"
F2_LOAD = f"buffer_load_dword v24, v{A.vFL}, {WSR}, s46 offen sc1"
FL_LOAD = f"buffer_load_dword v{A.vRL + 1}, v{A.vFL}, {WSR}, s46 offen sc1"
FP_LOAD = f"buffer_load_dword v{A.vRL}, off, {WSR}, s47 sc1"
ZZ = lambda: [I(f"v_mov_b32 v{A.vP1 + e}, 0") for e in range(4)]
SELM = lambda: L(f"""
    v_mov_b32 v16, 0x3f80
    v_lshrrev_b32 v17, 8, v{A.vL16}
    v_bfe_u32 v18, v{A.vL16}, 6, 2
    v_and_b32 v19, 16, v{A.vL16}
    v_lshlrev_b32 v19, v19, v16
    v_cmp_eq_u32 vcc, v17, v18
    v_and_b32 v16, 32, v{A.vL16}
    v_accvgpr_write_b32 a244, 0
    v_accvgpr_write_b32 a245, 0
    v_cndmask_b32 v19, 0, v19, vcc
    v_cmp_eq_u32 vcc, 0, v16
    v_accvgpr_write_b32 a248, 0
    v_accvgpr_write_b32 a249, 0
    v_cndmask_b32 v17, 0, v19, vcc
    v_sub_u32 v18, v19, v17
    v_accvgpr_write_b32 a246, v17
    v_accvgpr_write_b32 a247, v18
    """)

def first_qk(cv_late):
    if not cv_late:
        g = Gaps(qk_mfmas(0, "nm", snk=False)); weave_reads(g, 3, 1, [("T", 1)])
        blocks = [(0, 0), (0, 1), (1, 0), (1, 1)]; rdy = [11, 19, 27, 35]
    else:
        m = lambda kb, qb, ks, c=None: mfma(R("v", Sreg(0, kb, qb), 4), R("a", Freg(kb, ks), 4), R("a", Qreg(qb, ks), 4), c or R("v", Sreg(0, kb, qb), 4))
        ms = [m(kb, qb, ks, R("v", A.vNM + 4 * qb, 4) if n == 0 else None) for kb in range(2) for qb in range(2) for n, ks in enumerate(range(6) if qb == 0 else range(5, -1, -1))]
        ms += [m(0, 0, 6), m(0, 1, 6), m(1, 1, 6), m(1, 0, 6), m(0, 0, 7), m(1, 0, 7), m(0, 1, 7), m(1, 1, 7)]
        g = Gaps(ms + qk_mfmas(0, "nm")[32:])
        for f, k in enumerate([0, 1, 2, 4, 5, 6, 8, 9]): g.put(k, rd_frag(3, 1, f, Freg(1, f)))
        g.put_s(11, NEED(R("a", Freg(1, 0), 24))); g.put_s(22, NEED(R("a", Freg(1, 6), 8)))
        for f, k in enumerate([13, 14, 16, 17, 19, 20, 27, 31]): g.put(k, rd_frag(3, 2, f, Freg(2, f)))
        for f, k in enumerate([25, 28, 29, 33, 34, 36, 37, 39]): g.put(k, rd_frag(3, 3, f, Freg(3, f)))
        g.put_s(31, NEED(R("a", Freg(2, 0), 24))); g.put_s(37, NEED(R("a", Freg(2, 6), 8)))
        g.put_s(46, WAITV([("T", 1)], lgkm0=True)); g.put_s(47, I("s_barrier"))
        for f, r in enumerate(rd_batch(1, 0)): g.put(48 + RPAT[0][f], r)
        g.put_s(62, NEED(R("a", Freg(0, 0), 32)))
        blocks = [(0, 0), (1, 0), (0, 1), (1, 1)]; rdy = [32, 33, 34, 35]
    sm = SM(sm_groups(0, blocks + blocks_of(1), (0, 1)), ready={n: rdy[n >> 1] for n in range(8)})
    return g, sm

NU_SEL = f"""
    s_and_b32 s64, s{sH}, 7
    s_lshr_b32 s64, s{sBM}, s64
    s_lshr_b32 s65, s{sH}, 3
    s_xor_b32 s64, s64, s65
    s_and_b32 s64, s64, 1
    s_lshl_b32 s{sSEL}, s64, 13
    {f's_add_u32 s{K.sOOFF}, s{K.sOOFF}, s{sSEL}' if NUMA.kv else ''}
    s_add_u32 s{A.sPO}, s{A.sPO}, s{sSEL}
    s_add_u32 s{A.sQ}, s{A.sQ}, s{sSEL}
    """ + (f"s_add_u32 s{A.sOP}, s{A.sOP}, s{sSEL}" if NUMA.pl else f"""
    s_lshl_b32 s64, s{A.sWAVE}, 1
    s_lshr_b32 s64, s{sBM}, s64
    s_xor_b32 s64, s64, s65
    s_and_b32 s64, s64, 1
    s_lshl_b32 s64, s64, 13
    s_add_u32 s{A.sOP}, s{A.sOP}, s64""") + ("" if NUMA.kv else f"\ns_mov_b32 s{sSEL}, 0")
NU_OPD = f"""
    s_lshl_b32 s64, s{A.sWAVE}, 1
    s_lshr_b32 s64, s{sBM}, s64
    s_lshr_b32 s93, s64, 1
    s_xor_b32 s64, s64, s93
    s_and_b32 s64, s64, {0 if NUMA.pl else 1}
    s_lshl_b32 s64, s64, 13
    s_xor_b32 s93, s{A.sOP}, s64
    s_add_u32 s93, s93, 32768"""

def ramp():
    nw, nc = int(opt['ramp'][0]), int(opt['ramp'][1])
    if not nw: return [], []
    pre = L(f"""
    v_lshrrev_b32 v28, 2, v0
    v_add_u32 v28, 1, v28
    v_lshrrev_b32 v29, 1, v28
    v_and_b32 v28, 1, v28
    v_lshlrev_b32 v28, 7, v28
    v_lshl_or_b32 v28, v29, 19, v28
    v_and_b32 v29, 1, v0
    v_lshl_or_b32 v28, v29, 8, v28
    v_bfe_u32 v29, v0, 1, 1
    v_lshl_or_b32 v28, v29, 13, v28
    s_lshl_b32 s64, s{K.sWAVE}, 14
    s_add_u32 s64, s64, s75
    v_cmp_gt_u32 vcc, {4 * nw}, v0
    v_add_u32 v28, s64, v28
    v_mov_b32 v31, {side.OOB}
    v_cndmask_b32 v16, v31, v28, vcc
    """) + (L(f"""
    v_lshrrev_b32 v28, 3, v0
    v_add_u32 v28, 1, v28
    v_lshrrev_b32 v29, 1, v28
    v_and_b32 v28, 1, v28
    v_lshlrev_b32 v28, 21, v28
    v_lshl_or_b32 v28, v29, 7, v28
    v_and_b32 v29, 7, v0
    v_lshl_or_b32 v28, v29, 11, v28
    s_lshr_b32 s64, s{sH}, 3
    s_lshl1_add_u32 s64, s{sKV}, s64
    s_lshl_b32 s64, s64, 5
    s_add_u32 s64, s64, s{K.sWAVE}
    s_lshl_b32 s64, s64, 14
    v_cmp_gt_u32 vcc, {8 * nc}, v0
    v_add_u32 v28, s64, v28
    v_cndmask_b32 v17, v31, v28, vcc
    """) if opt['rv'] == '0' else L(f"""
    v_lshrrev_b32 v28, 4, v0
    v_add_u32 v28, 1, v28
    v_lshrrev_b32 v29, 1, v28
    v_and_b32 v28, 1, v28
    v_lshlrev_b32 v28, 21, v28
    v_lshl_or_b32 v28, v29, 7, v28
    v_and_b32 v29, 15, v0
    v_lshl_or_b32 v28, v29, 11, v28
    s_lshr_b32 s64, s{sH}, 3
    s_lshr_b32 s67, s{K.sWAVE}, 1
    s_lshl1_add_u32 s64, s64, s67
    s_lshl_b32 s64, s64, 4
    s_and_b32 s67, s{K.sWAVE}, 1
    s_add_u32 s64, s64, s67
    s_lshl_b32 s64, s64, 15
    v_cmp_gt_u32 vcc, {16 * nc}, v0
    v_add_u32 v28, s64, v28
    v_cndmask_b32 v17, v31, v28, vcc
    s_sub_u32 s64, s{sJ}, 8
    s_and_b32 s64, s64, {side.OOB}
    v_or_b32 v16, s64, v16
    v_or_b32 v17, s64, v17
    """))
    return pre, [I(f"buffer_load_dword a240, v16, s[{K.S_W}:{K.S_W + 3}], 0 offen {opt['ntw']}", tag="TOUCH"), side.touch(17, K.S_C, 0, nt=False)]

def build_front(c):
    c.block("entry", f"""
    s_cmp_lt_u32 s2, 256
    s_cbranch_scc1 L_go
    s_endpgm
    L_go:
    {'s_memrealtime s[36:37]' + chr(10) + 's_memtime s[98:99]' if STAMP else ''}
    s_load_dwordx8 s[80:87], s[0:1], {A_X}
    s_load_dwordx4 s[88:91], s[0:1], {A_WUV}
    s_load_dwordx2 s[92:93], s[0:1], {A_WR}
    s_load_dwordx2 s[30:31], s[0:1], {A_GW}
    s_load_dwordx4 s[4:7], s[0:1], {A_DBG}
    v_lshrrev_b32 v24, 6, v0
    v_and_b32 v0, 63, v0
    v_readfirstlane_b32 s{K.sWAVE}, v24
    """, side.code_touch() if opt['pc'] == '0' else side.code_touch()[:-1], f"""
    s_and_b32 s{sH}, s2, 7
    s_lshr_b32 s{sJ}, s2, 3
    s_lshr_b32 s64, s{sJ}, 4
    s_lshl_b32 s64, s64, 3
    s_add_u32 s{sH}, s{sH}, s64
    s_and_b32 s{sJ}, s{sJ}, 15
    s_lshr_b32 s{sKV}, s{sJ}, 3
    s_xor_b32 s{sKV}, s{sKV}, {SW}
    s_mov_b32 s{sSTK}, 0
    v_accvgpr_write_b32 a{aST}, 0
    v_accvgpr_write_b32 a{aST+1}, 0
    v_and_b32 v24, 15, v0
    v_lshrrev_b32 v25, 4, v0
    v_lshlrev_b32 v{K.vST}, 4, v0
    s_and_b32 s65, s{K.sWAVE}, 1
    s_lshr_b32 s66, s{K.sWAVE}, 1
    {kvq.addr_wd()}
    {kvq.addr_cd()}
    s_mov_b32 s{K.sWOFF}, 0
    s_mov_b32 s{K.sCOFF}, 0
    s_lshl_b32 s{K.sM0W}, s{K.sWAVE}, 12
    s_add_u32 s{K.sM0C}, s{K.sM0W}, 65536
    s_lshl_b32 s74, s{sH}, 9
    s_sub_u32 s{K.S_W + 2}, {1024*8192}, s74
    s_mov_b32 s{K.S_W + 3}, 0x20000
    s_and_b32 s75, s{sJ}, 7
    s_lshl_b32 s75, s75, 16
    s_sub_u32 s{K.S_C + 2}, {2048*2048}, s75
    s_mov_b32 s{K.S_C + 3}, 0x20000
    """, ramp()[0], L(kvq.addr_rd()) + side.c_touch_setup() if opt['eo'] == '1' else [], f"""
    s_mov_b32 m0, s{K.sM0W}
    s_cmp_eq_u32 s{sKV}, 0
    s_cselect_b64 s[72:73], s[86:87], s[88:89]
    s_add_u32 s{K.S_W}, s72, s74
    s_addc_u32 s{K.S_W + 1}, s73, 0
    s_and_b32 s{K.S_W + 1}, s{K.S_W + 1}, 0xffff
    """, kvq.unit_w(0)[1:], f"""
    s_add_u32 s{K.S_C}, s82, s75
    s_addc_u32 s{K.S_C + 1}, s83, 0
    s_and_b32 s{K.S_C + 1}, s{K.S_C + 1}, 0xffff
    """, kvq.unit_c(0), ramp()[1], kvq.unit_w(1) if opt['w1'] == '0' else [], stamp(26)[2:], side.nu_issue() if NU else [], L(kvq.addr_rd()) + side.c_touch_setup() if opt['eo'] == '0' else [],
        side.code_addr(28, 29) + side.code_touch()[-1:] if opt['pc'] == '1' else [], f"""
    {srd(32, 82, 2048*2048)}
    {srd(K.S_X, 80, 2048*896)}
    {srd(60, 92, 896)}
    {srd(68, 30, 896)}
    {f's_add_u32 s6, s6, {O("wso") << 20}' + chr(10) + 's_addc_u32 s7, s7, 0' if O('wso') else ''}
    {srd(K.S_WS, 6, (256 - O('wso')) << 20)}
    {srd(K.S_DBG, 4, 256)}
    s_add_u32 s72, s84, s74
    s_addc_u32 s73, s85, 0
    s_sub_u32 s75, {448*8192}, s74
    {srd(K.S_WQ, 72, "s75")}
    s_mov_b32 s{K.sSC}, {hex(f2u(LOG2E_16))}
    s_mov_b32 s{K.sWQOFF}, 0
    s_mul_i32 s{K.sXOFF}, s{sJ}, {128*896}
    s_lshl_b32 s72, s{sKV}, {24 + NU}
    {f's_and_b32 s{sHP}, s{sH}, 7' + chr(10) + f's_lshr_b32 s73, s{sH}, 3' + chr(10) + f's_lshl1_add_u32 s{sHP}, s{sHP}, s73' if NU else ''}
    s_lshl_b32 s73, s{sHP if NU else sH}, {20 + NU}
    s_add_u32 s72, s72, s73
    s_bfe_u32 s64, s{sJ}, 0x20001
    s_lshl_b32 s64, s64, {15 + NU}
    s_add_u32 s72, s72, s64
    s_lshl_b32 s64, s66, {17 + NU}
    s_add_u32 s72, s72, s64
    s_and_b32 s67, s{sJ}, 1
    s_cmp_eq_u32 s{sKV}, 0
    s_cselect_b32 s64, 12, {14 + NU}
    s_cselect_b32 s75, {14 + NU}, 10
    s_lshl_b32 s67, s67, s75
    s_add_u32 s72, s72, s67
    s_lshl_b32 s64, s65, s64
    s_add_u32 s{K.sOOFF}, s72, s64
    """, side.h_touch_srd(), f"s_load_dwordx2 s[96:97], s[0:1], {A_OUT}", f"s_cmp_lt_u32 s{sJ}, 8\ns_cbranch_scc0 L_kv1")
    pcq, tQ, tH, tW = O("pcq"), O("tQ"), O("tH"), O("tW")
    for vt in (0, 1):
        o = "v" if vt else "k"; pt = vt ^ SW
        frags = [kvq.rd_c(0, 0, 0, 0), kvq.rd_c(0, 0, 0, 1)] + kvq.rd_w_unit(0, 0, 0) + kvq.rd_w_unit(0, 1, 1)
        kvq.BIAS.update(kv="v[20:23]" if O('bkv') else None, q="v[28:31]" if O('bq') else None, rows=None)
        Q0 = opt['q0'] == '1'; NZ = 7 if NUMA.fl else 3
        out = side.z_store()[:-NZ] + side.r4_loads() + side.z_store()[-NZ:] if vt == 0 else L(srd(60, 90, 4096*896)) + (side.nu_time() if NU else [])
        if Q0:
            frags, g0 = q2.tile0(pt)
            cw = kvq.unit_c(1) + kvq.unit_w(2); w1 = kvq.unit_w(1) if opt['w1'] == '1' else []
            if opt['cw'] == '0': out = cw + out; cw = []
            out = out + w1 + [WAITV([("C", 0), ("W", 0)], lgkm0=True), I("s_barrier")] + stamp(26) + frags + cw
            if vt == 0: out += side.r4_compute()
        else:
            out += kvq.unit_w(2) + kvq.unit_c(1) + [WAITV([("W", 1), ("C", 0), ("W", 0)], lgkm0=True), I("s_barrier")] + stamp(26) + frags
            if vt == 0: out += side.r4_compute()
            out += [NEED(R("a", kvq.wfrag(0, 0, 0), 8), R("a", 160, 8))]
        for t in range(15):
            dma = kvq.kv_dma(t)
            if vt == 1 and t == tW:
                pre, uns = side.wo2_dma(); dma[1] = dma[1] + [uns[0]]
            if vt == 1 and t == tW + 1: dma[1] = dma[1] + [uns[1]]
            if vt == 0 and t == tH - 5:
                pre, uns = hw.s1_weights()
            if vt == 0 and tH - 5 <= t <= tH + 1 and not O('nomoe'): dma[1] = dma[1] + [uns[t - tH + 5]]
            if vt == 0 and t == tH + 4:
                pre, un = hw.s6_down_dma(); dma[1] = dma[1] + ([un] if not O('nomoe') else [])
            g = g0 if (Q0 and t == 0) else kvq.kv_tile(t, pt, dma, first=(t == 0), hi1=O('hi1') if len(dma[1]) < 3 else 108, hi0=O('hi0'))
            def fit(ins, k, pace=0):
                k, left = seq_fit(g, ins, k, pace); assert not left, (t, len(left)); return k
            def mm(ms, k):
                k |= 1
                for m in ms: g.put(k, m)
                return k
            tch = []
            if pcq and (t + pcq) % 4 == 0 and t + pcq < 16: tch += side.c_touch(32, (t + pcq) // 4)
            if O('sw_') or O('sc_'):
                if t == 0: fit(side.share_setup(sKV), 50)
                if O('sw_') and 3 < t + O('sw_') < 16: tch += side.share_w(K.S_W, t + O('sw_'), opt['swf'])
                if O('sc_') and 2 < t + O('sc_') < 16: tch += side.share_c(K.S_C, t + O('sc_'))
            if t == 1 and vt == 0: fit(side.z_signal(), 112)
            if t == 2 and vt == 0: assert fit(side.rg4_store(), 4, 1) < 42
            if t == 3: fit(side.z_load(), 50)
            if NU and t == 1 and vt: fit(side.nu_publish(), 50)
            if NU and t == 5: assert fit(side.nu_decide() + (L(f"s_lshl_b32 s92, s2, 2\ns_add_u32 s92, s92, {(232 << 20)}\nv_mov_b32 v16, s{sBM}\nbuffer_store_dword v16, off, {WSR}, s92 sc1") if opt['nud'] == '1' else []), 2) < 40
            if t == 4:
                k = fit(side.z_check(vt), 112)
                if vt == 0: fit(side.key4_store(), k + 1)
            if vt == 1:
                pre_, tl = side.q_touch3(K.S_WQ)
                if t == tQ: fit(pre_, 60)
                if 0 <= t - tQ < len(tl): tch += tl[t - tQ]
                if t == tW: assert fit(pre, 42) < 80
                if t == tW + 2: g.sc[110][0].tag = g.sc[110][0].tag + ["WO"]
                if t == tW + 3: assert fit(side.wo2_reads(), 2, 2) < 108
                if t == 2: fit(SELM() + [I(f"v_accvgpr_write_b32 a{232 + e}, -1") for e in range(4) if SENT], 10, 1)
            if vt == 0 and O('nomoe'):
                if t == tH - 5: assert fit(pre, 42) < 90
                if t == tH + 1: fit(L("v_cmp_eq_u32 vcc, -1, v0\ns_nop 1\ns_cbranch_vccnz L_hs\nL_hr:"), 10)
                if t == tH + 6: pre, ms, yadr, yst = hw.s8_down(); link(yadr + yst)
            elif vt == 0:
                if t == tH - 5: assert fit(pre, 42) < 90
                if t == tH: fit(hw.s2_keys(), 4)
                if t == tH + 1: assert fit(hw.s3_top2(), 10, 1) < 108
                if t == tH + 2: fit(hw.s4_sel(), 4, 1)
                if t == tH + 3:
                    (r0, m0), (r1, m1) = hw.s5_gemm()
                    k = fit([WAITV("HW")] + r0, 50); k = mm(m0, max(k + 6, 78)); k = fit(r1, k + 1); mm(m1, max(k + 6, 110))
                if t == tH + 4: assert fit(pre, 4) < 44
                if t == tH + 5:
                    s7 = hw.s7_act(); fit(s7, 2, 1)
                    assert all(i.kind != "dsr" or i not in s7 for q in range(100, 128) for i in g.ve[q])
                if t == tH + 6:
                    pre, ms, yadr, yst = hw.s8_down(); link(yadr + yst)
                    k = fit(pre, 2); k = mm(ms, max(k + 2, 46))
            if t == 14: assert fit(kvq.addr_q(), 2) < 46
            if t == 14: fit(L(f"""
                s_mul_i32 s72, s{sH}, {FSTR}
                s_add_u32 s46, s72, {WS_FL}
                {side.nu_bit(46, 64) if NUMA.fl else ''}
                s_lshl_b32 s{sFL}, s{sJ}, {FSH}
                s_add_u32 s{sFL}, s{sFL}, s46
                s_sub_u32 s66, 15, s{sJ}
                s_min_u32 s66, s66, s{sJ}
                s_lshl_b32 s47, s66, {FSH}
                s_add_u32 s47, s47, s46
                s_add_u32 s47, s47, {2048 + (0 if vt else 64)}
                {f's_lshl2_add_u32 s47, s{A.sWAVE}, s47' if PW else ''}
                s_lshl_b32 s65, s{sHP if NU else sH}, 3
                s_add_u32 s65, s65, s66
                s_mul_i32 s{A.sPO}, s65, {262144 if NU else PO_STRIDE}
                s_add_u32 s{A.sPO}, s{A.sPO}, {NUMA.PO if NU else WS_PO}
                s_lshl_b32 s65, s{sJ}, 4
                s_add_u32 s65, s65, s{sH}
                s_mul_i32 s{A.sOP}, s65, {red3.OPH()}
                s_mul_i32 s65, s{A.sWAVE}, {red3.OPH() // 4}
                s_add_u32 s{A.sOP}, s{A.sOP}, s65
                s_add_u32 s{A.sOP}, s{A.sOP}, {NUMA.OP if NU else WS_OP}
                s_sub_u32 s65, 15, s66
                s_lshl_b32 s65, s65, {16 + NU}
                s_lshl_b32 s64, s{sHP if NU else sH}, {20 + NU}
                s_add_u32 s{A.sQ}, s64, s65
                s_lshl_b32 s65, s{A.sWAVE}, {14 + NU}
                s_add_u32 s{A.sQ}, s{A.sQ}, s65
                s_add_u32 s{A.sQ}, s{A.sQ}, {NUMA.Q if NU else WS_Q}
                {NU_SEL if NU else ''}
                s_mov_b32 s{A.sTHR}, {hex(f2u(float(opt['thr'])))}
                s_mov_b32 s{A.sMODE}, 1
                s_sub_u32 s64, s{sJ}, {JC}
                s_and_b32 s{A.sNC}, s64, {side.OOB}
                """), 50)
            tv = 26 if t < O('tB') - 1 else 24
            if str(t) in opt['tc'].split(','): tch += side.code_addr(26, 26) + [side.touch(26, 76, 0, nt=False)]
            fit(tch, O('tg'))
            if O('bkv'):
                if t == 0:
                    vb = VQ()
                    smp = lambda y: [kvq.kacc(y, x)[1] + e for x in range(2) for e in range(4)]
                    est = []
                    for y, r in ((1, 20), (2, 21)):
                        v = smp(y)
                        est.append(L(f"v_max3_f32 v{r}, |v{v[0]}|, |v{v[1]}|, |v{v[2]}|\nv_max3_f32 v{r}, |v{v[3]}|, |v{v[4]}|, v{r}\nv_max3_f32 v{r}, |v{v[5]}|, |v{v[6]}|, v{r}"))
                    k = fit(est[0], 16)
                    k = fit(est[1] + L(f"v_min_f32 v20, v20, v21\nv_mul_f32 v20, {hex(f2u(float(opt['bkk'])))}, v20") + [I(f"v_mov_b32 v{20 + e}, v20") for e in (1, 2, 3)] +
                            L("v_accvgpr_write_b32 a241, v20"), max(k, 24))
                    assert k < 38, k
                if t == O('tB') - 1: fit(L("v_accvgpr_read_b32 v27, a241"), 1)
                for y in range(1, 8):
                    if t == O('tB') - (y < O('bsp')):
                        vb.add([I(f"v_sub_f32 v{kvq.kacc(y, x)[1] + e}, v{kvq.kacc(y, x)[1] + e}, v27") for x in range(8) for e in range(4) if kvq.kv_c0(y, x) != "0"], 128 * t + 16 * y + 20)
                vb.run(g, 128 * t)
                for at, i in vb.placed:
                    q = min(q for q in range(128) if any(i is x for x in g.ve[q]))
                    assert 128 * t + q < at + 128 - 22, (t, at, q)
                assert t < 14 or not vb.q
            out += g.flat()
            if t in (0, 1, 11, 14) or opt['fine'] == '1': out += stamp(tv)
        flat = lambda gs: [i for x in gs for i in x]
        base = (f"s_lshl_b32 s{A.sK}, s{sH}, 20\ns_mov_b32 s{A.sCNT}, 0\ns_lshl_b32 s{A.sJ[2][1]}, s{sH}, 18\ns_add_u32 s{A.sJ[2][1]}, s{A.sJ[2][1]}, {WS_WO}\n" if not NU else
                f"s_lshl_b32 s{A.sK}, s{sHP}, 21\ns_mov_b32 s{A.sCNT}, 0\ns_add_u32 s{A.sK}, s{A.sK}, s{sSEL}\ns_add_u32 s{A.sJ[2][1]}, s{A.sK}, {NUMA.WO}\n") + f"s_add_u32 s{A.sVn}, s{A.sJ[2][1]}, {E(65536)}\n"
        (c1, a1), (c2, a2), (c3, a3) = A.sJ
        jumps = L(base + (f"""
            s_add_u32 s64, s{sJ}, 1
            s_min_u32 s64, s64, {JC}
            s_sub_u32 s{A.sIT}, s64, {2 + EXT}
            s_lshl_b32 s{c3}, s64, 1
            s_sub_u32 s{c2}, s{c3}, 2
            s_lshl_b32 s64, s{sJ}, {16 + NU}
            s_add_u32 s{a2}, s{A.sK}, s64
            s_sub_u32 s{a1}, {E(34 * 32768)}, s64
            s_add_u32 s{a1}, s{a1}, s{A.sK}
            s_lshl_b32 s64, s{sJ}, 1
            s_sub_u32 s64, 32, s64
            s_cmp_ge_u32 s{sJ}, {JC}
            s_cselect_b32 s{c1}, s64, {NEVER}
            """ if vt else f"""
            s_sub_u32 s{A.sIT}, s{sJ}, 1
            s_mov_b32 s{c2}, {NEVER}
            s_mov_b32 s{a2}, 0
            s_add_u32 s{a1}, s{A.sK}, {E(XS * 32768)}
            s_lshl_b32 s64, s{sJ}, 1
            s_add_u32 s65, s64, 4
            s_add_u32 s64, s64, 2
            s_cmp_le_u32 s{sJ}, {15 - JC}
            s_cselect_b32 s{c1}, s65, {NEVER}
            s_cselect_b32 s{c3}, {34 - XS}, s64
            """) + f"s_mov_b32 s{A.sKP}, 0")
        w0 = L("v_mov_b32 v12, 1") + side.lane0_wave0(15)
        w1_ = L(f"""
            s_mov_b32 s{A.sREQ}, {(0x500 if vt else 0x543) if EXT else (0x4003 if vt else 0x43)}
            {f's_cmp_ge_u32 s{sJ}, {JC}' + chr(10) + f's_cselect_b32 s64, {hex(15 << 4 * (JC - 3 - EXT))}, 0' + chr(10) + f's_or_b32 s{A.sREQ}, s{A.sREQ}, s64' if vt and EC else ''}
            {'' if vt else f's_cmp_lt_u32 s{sJ}, 2' + chr(10) + f's_cselect_b32 s{A.sREQ}, {0x504 if EXT else 4}, s{A.sREQ}'}
            s_lshl_b32 s64, s{A.sWAVE}, {14 + NU}
            s_add_u32 s{A.sPB}, s64, s{A.sPO}
            s_add_u32 s{A.sPB + 1}, s{A.sPB}, 4096
            s_add_u32 s{A.sPB + 2}, s{A.sPB}, {E(8192)}
            s_add_u32 s{A.sPB + 3}, s{A.sPB}, {E(12288)}
            """)
        w3 = L(f"v_min_u32 v25, 15, v0\nv_lshlrev_b32 v25, {FSH}, v25\nv_{'max' if SW else 'min'}_u32 v13, {(8 if SW else 7) << FSH}, v25")
        w4 = L(f"s_lshl_b32 s{A.sM0}, s{A.sWAVE}, 13") + jumps[:8] + L(F1_LOAD) + jumps[8:]
        w5 = L(f"""
            {f'v_add_u32 v10, s{A.sM0}, v{A.vL16}' + chr(10) + f'v_add_u32 v10, s{A.sM0}, v10' + ('' if NUMA.kv else chr(10) + f's_and_b32 s64, s{A.sM0}, 8192' + chr(10) + 'v_add_u32 v10, s64, v10') if NU else f'v_add_u32 v10, s{A.sM0}, v{A.vL16}'}
            v_add_u32 v11, 0x1000, v10
            v_cmp_eq_u32 vcc, 0, v24
            s_lshl_b32 s64, s{A.sWAVE}, 10
            s_cbranch_vccnz L_f1s{vt}4
            L_f1r{vt}4:
            """) + dma_flat(3, A.sK, 10) + adv_k() + L(f"""
            v_mov_b32 v{A.vFL}, v25
            v_lshrrev_b32 v24, 4, v0
            v_lshlrev_b32 v24, 2, v24
            v_and_b32 v25, 15, v0
            v_sub_u32 v24, v24, v25
            s_add_u32 s64, s64, s{A.sPO}
            s_add_u32 s{A.sPS}, s64, {E(65536)}
            s_mov_b32 s{A.sLO}, {hex(f2u(float(opt['lo'])))}
            s_and_b32 s65, s{A.sREQ}, {hex(15 << 4 * (JC - 3 - EXT)) if vt and EC else 0}
            s_cmp_eq_u32 s{A.sWAVE}, 0
            s_cselect_b32 s{A.sRT}, s{A.sREQ}, s65
            s_lshr_b32 s64, s{K.sWAVE}, 1
            s_lshl_b32 s64, s64, 17
            s_and_b32 s65, s{K.sWAVE}, 1
            s_lshl_b32 s65, s65, 12
            s_add_u32 s64, s64, s65
            v_add_u32 v14, s64, v7
            v_mov_b32 v{A.vNEG}, 0xff800000
            """) + [I(f"v_cmp_lt_i32 s[{A.sTRI[e]}:{A.sTRI[e]+1}], {-e}, v24") for e in range(4)]
        head6 = L(f"""
            {F2_LOAD}
            v_mov_b32 v{A.vF0}, v15
            v_add_u32 v{A.vRD1}, 0x10000, v{A.vL16}
            v_mov_b32 v{A.vDM0}, v10
            v_mov_b32 v{A.vDM1}, v11
            s_mov_b64 s[60:61], s[76:77]
            s_mov_b32 s62, s78
            s_mov_b32 s63, 0x20000
            """) + side.code_addr(0, 10)
        kvq.X6LOW = True; asmlib.VMX = False
        body, left = kvq.kv_to_q(pt, O(o + "15"), [int(x, 16) for x in opt[o + "st"]], O(o + "f"), [side.flag_store(sFL, 15, 12)], lambda: fst(2, 26),
                                 {0: w0, 1: w1_, 2: yadr if vt == 0 else [], 3: w3, 4: w4, 5: w5}, head6, dma_flat(1, A.sK) + adv_k(),
                                 [] if vt else [[i] for i in yst], 16)
        asmlib.VMX = True
        assert len(left) == (8 if vt else 0), len(left)
        st = kvq.Storer(A.sT1, "KV4")
        park = [I(f"v_accvgpr_write_b32 a{128 + 4*n + e}, v{int(r[2:r.index(':')]) + e}") for n, (r, off) in enumerate(left) for e in range(4)]
        later = [st.st(R("a", 128 + 4 * n, 4), off) for n, (r, off) in enumerate(left)]
        xch = ([WAITV([("T", 3)], lgkm0=True), I("s_barrier")] + stamp(26) + rd_batch(3, 0) + q_from_lds() +
               L(f"""v_cmp_eq_u32 vcc, 0, v24
               v_mov_b32 v{A.vX + 7}, {3 if vt else 4 + EXT}
               v_or_b32 v{A.vRL + 1}, s{A.sNC}, v{A.vL16}
               s_cbranch_vccnz L_f1s{vt}5
               L_f1r{vt}5:
               s_mov_b32 s{A.sT1}, s{K.sOOFF}
               {f's_add_u32 s{A.sT0}, s94, s{sSEL}' if NU else f's_mov_b32 s{A.sT0}, s94'}
               s_cmp_eq_u32 s{A.sWAVE}, 0
               s_cselect_b32 s{A.sPT}, {(4 + EXT) * vt}, 0""") + [I(f"v_mov_b32 v{A.vNM + r}, {NM0}") for r in range(8)] + [NEED(R("a", 0, 96))])
        g, sm = first_qk(False)
        g.sc[46][0].tag = g.sc[46][0].tag + ["KVST", "KVM"]
        g.put(48 + 2, side.flag_store(sFL, A.vF0, A.vX + 7))
        nq = O('nq')
        qst = [([I(f"s_add_u32 s3, s{A.sQ}, {E((n >> 2) * 4096)}")] if n % 4 == 0 or n == nq else []) +
               [I(f"buffer_store_dwordx4 a[{4*n}:{4*n+3}], v{A.vRL + 1}, {WSR}, s3 offen offset:{(n & 3) * 1024} sc1", tag="QST")] for n in range(16)] if vt else []
        place_vm(g, [(dma_flat(2, A.sV), 1, 40)] + ([(flat(qst[:nq]), O('w0l'), 62)] if vt and nq else []))
        vq = VQ(); vq.add([I(f"v_mov_b32 v{r}, 0") for r in (A.vLS, A.vLS + 1)] + park)
        vq.run(g, 0, 0, 14)
        sm.run(g, 8, 64, final=False, upto=8)
        vq.run(g, 0)
        vq.force(g, 63, lambda i: i.op == "v_mov_b32")
        out += body + xch + g.flat() + stamp()
        if vt == 1:
            wo = [[I(f"s_add_u32 s3, s{A.sT0}, {E(n * 32768)}"), I(w[1].text, tag="KV4")] for n, w in enumerate(side.wo2_stores())]
            w_1 = win_qk(0, "L_st8", "L_rt8", groups=qst[nq:], dma=(3, A.sK, adv_k()), sm=sm, lo_check=True, dhi=40, vq=vq)
            dump = [i for at, i in vq.q[:max(0, len(vq.q) - 16)]]; vq.q = vq.q[len(dump):]
            if O('v') > 1: sys.stderr.write(f"; start: dumped {len(dump)}\n")
            if EXT:
                n0 = int(opt['l4'][0]); st.tag = "KV3"; st.cur = None
                l4 = [[st.st(R("a", 128 + 4 * n, 4), off) for n, (r, off) in enumerate(left[:n0])]]; st.cur = None
                l4.append([st.st(R("a", 128 + 4 * n, 4), off) for n, (r, off) in enumerate(left[n0:], n0)])
                wc = [int(x) for x in opt['wn']]; wn = [wo[sum(wc[:n]):sum(wc[:n + 1])] for n in range(4)]; assert sum(wc) == 7
                if SENT:
                    mk = [([I(f"s_add_u32 s3, s{A.sOP}, {10240 + (n >> 2) * 14336}")] if n % 4 == 0 or True else []) +
                          [I(f"buffer_store_dwordx4 a[232:235], v{A.vL16}, {WSR}, s3 offen offset:{(n & 3) * 1024} sc1", tag="KV4")] for n in range(8)]
                    mc = [int(x) for x in opt['mk']]; assert sum(mc) == 8
                    for n in range(3): wn[1 + n] = wn[1 + n] + mk[sum(mc[:n]):sum(mc[:n + 1])]
            def early(g):
                vq.run(g, 0); assert not vq.q
                for q in range(g.n):
                    for i in g.ve[q]:
                        if i.op.startswith("v_accvgpr"): assert not any(set(i.reads) & set(g.m[x].writes) for x in range(q + 1)), (q, i.text)
            c.block("kv1", "L_kv1:", out, w_1, dump, fst(3),
                    win_pv(0, cz=True, pre_dma=(0, A.sV), tags=["QST"], vq_first=early,
                           post=L(f"s_xor_b32 s3, s47, 64\nv_mov_b32 v{A.vRL}, 1") + (L(f"v_min_u32 v{A.vRL + 1}, 1, v{A.vL16}\nv_lshlrev_b32 v{A.vRL + 1}, 29, v{A.vRL + 1}\nv_or_b32 v{A.vRL + 1}, s{A.sNC}, v{A.vRL + 1}") if PW else
                                L(f"v_or_b32 v{A.vRL + 1}, s{A.sNC}, v{A.vF0}")) + [side.flag_store(3, A.vRL + 1, A.vRL)]), fst(3),
                    *([win_qk(1, "L_st9", "L_rt9", groups=later, ghi=60, scal=mask_regs(False, (0, 1))), fst(3),
                       win_pv(1, groups=wo, glo=1, ghi=34, dlo=4, scal=mask_regs(False, (3,)), tail=L("s_branch L_loop_mid"))] if not EXT else
                      [win_qk(1, "L_st9", "L_rt9", groups=l4[0], ghi=60), fst(3), win_pv(1, groups=l4[1], ghi=60), fst(3),
                       win_qk(0, "L_st12", "L_rt12", extra=L(FL_LOAD), groups=wn[0], glo=6, scal=mask_regs(False, (0, 1))),
                       win_pv(0, tags=["KV3"], groups=wn[1], ghi=44, chk=L(f"v_cmp_gt_u32 vcc, 3, v{A.vRL + 1}\ns_cbranch_vccnz L_f4s\nL_f4r:"),
                              post=L(f"v_mov_b32 v{A.vX + 7}, 4") + [side.flag_store(sFL, A.vF0, A.vX + 7)]), fst(3),
                       win_qk(1, "L_st13", "L_rt13", groups=wn[2], scal=mask_regs(False, (2, 3))),
                       win_pv(1, groups=wn[3], glo=1, ghi=20 if len(wn[3]) < 4 else 32, dlo=1 if len(wn[3]) < 4 else 4, tail=L("s_branch L_loop_mid"))]))
            b_ = c.blocks["kv1"]
            if not EXT: b_[-1:-1] = mask_regs(False, (2,))
            assert max(n for n, i in enumerate(b_) if i.tag == "KV4") < max(n for n, i in enumerate(b_) if i.kind == "dma")
        else:
            assert not vq.q
            c.block("kv0", "L_kv0:", out, f"s_cmp_eq_u32 s{sJ}, 0\ns_cbranch_scc1 L_j0")
            c.block("k1", win_qk(0, "L_st10", "L_rt10", dma=(3, A.sK, adv_k()), sm=sm, lo_check=True, dhi=40, scal=mask_regs(False)), fst(3),
                    win_pv(0, cz=True, pre_dma=(0, A.sV), tail=L(f"s_cmp_lg_u32 s{A.sIT}, 0\ns_cbranch_scc1 L_loop_top")), "s_branch L_p1")
            c.block("j0", "L_j0:", mask_regs(False), ZZ(), f"v_accvgpr_write_b32 a{aOF}, 0\nv_accvgpr_write_b32 a{aOF + 1}, 0", [i for kb in range(4) for i in mask_blk(0, kb, 0, inplace=True)], mask_regs(True),
                    zero_O_mfma(mix(init_softmax(0), dma_flat(3, A.sK) + adv_k() + L(FP_LOAD), 1, 100), A.vP1),
                    [i for kb in range(4) for i in mask_blk(1, kb, 1)], "s_branch L_p2")

def build_att(c):
    fs = lambda: fst(3)
    c.block("loop_top", ".p2align 6\nL_loop_top:", fs(), win_qk(1, "L_st1", "L_rt1", extra=[side.touch(0, 60, 0, nt=False)] if opt['tl'] == '1' else []), win_pv(1))
    c.block("loop_mid", "L_loop_mid:", fs(), win_qk(0, "L_st0", "L_rt0", head=L(f"s_and_b32 s{A.sREQ}, s{A.sRT}, 15\ns_cbranch_scc1 L_fll\nL_fllr:\ns_lshr_b32 s{A.sRT}, s{A.sRT}, 4")),
            win_pv(0, tail=L(f"s_sub_u32 s{A.sIT}, s{A.sIT}, 1\ns_cmp_lg_u32 s{A.sIT}, 0\ns_cbranch_scc1 L_loop_top"),
                   chk=L(f"""v_cmp_gt_u32 vcc, s{A.sREQ}, v{A.vRL + 1}
                   s_cbranch_vccnz L_fls0
                   L_flr0:
                   s_and_b32 s3, s{A.sPT}, 15
                   s_cbranch_scc1 L_pub3
                   L_pub3r:
                   s_lshr_b32 s{A.sPT}, s{A.sPT}, 4""")))
    LAY = O('lay'); assert EC or not LAY
    c.block("ph", "L_p1:", stamp(), f"s_cmp_eq_u32 s{A.sMODE}, 0\ns_cbranch_scc1 L_final_h",
            f"s_cmp_lt_u32 s{sJ}, {JC}\ns_cbranch_scc1 L_p1n" if LAY else f"s_cmp_ge_u32 s{sJ}, {JC}\ns_cbranch_scc1 L_p1c" if EC else "")
    c.block("p1", "L_p1n:", win_qk(1, "L_st5", "L_rt5", masked=True), fs(),
            win_pv(1, scal=mask_regs(True), valu=[i for kb in range(4) for i in mask_blk(1, kb, 1)], vlo=34, post=L(FP_LOAD)), fs())
    g = Gaps(qkB_mfmas())
    half_reads(g, 1, 2, [("T", 2)])
    half_dma(g, dma_flat(0, A.sV))
    ck = check(0, "L_st6")
    spread_any(g, softmax_half(0, 1) + ck[:2], 0, 28); g.put(31, ck[2])
    c.block("p2", "L_p2:", g.flat(), "L_rt6:", fs(), f"s_cmp_gt_u32 s{sJ}, {15 - JC}\ns_cbranch_scc1 L_p3o" if LAY else f"s_cmp_le_u32 s{sJ}, {15 - JC}\ns_cbranch_scc1 L_p3k",
            f"s_cmp_ge_u32 s{sJ}, {JC}\ns_cbranch_scc1 L_p3c" if not EC else "")
    smB = lambda: SM(groups_B(), add_l(0))
    pchk = lambda n: L(f"v_cmp_ne_u32 vcc, 1, v{A.vRL}\ns_cbranch_vccnz L_fps{n}\nL_fpr{n}:")
    lfin = lambda: add_l(1, (1,)) + zip2(xlane("v_add_f32", A.vLS, A.vX), xlane("v_add_f32", A.vLS + 1, A.vX + 1)) + L(f"v_rcp_f32 v{A.vRL}, v{A.vLS}\nv_rcp_f32 v{A.vRL+1}, v{A.vLS+1}")
    w2a = lambda: L(f"s_add_u32 s{A.sVn}, s{A.sVn}, {E(32768)}")
    c.block("p3o", "L_p3o:", win_pv(0, sm=smB(), nslot=0, end=check(1, "L_st2", only=1)), "L_rt2:", stamp())
    g = Gaps(pvB_mfmas())
    half_reads(g, 0, 3, [("T", 3)])
    half_dma(g, dma_flat(2, A.sVn) + w2a())
    spread_any(g, of_rd(A.vX + 4) + [i for ks in range(8) for i in cvt_ctx(ks, 0)], 1, 32)
    c.block("pBo", "L_pBo:", g.flat(), stamp(), "s_branch L_op1" if not LAY else "")
    pl = [I(f"buffer_load_dwordx4 v[{A.vX+4}:{A.vX+7}], v{A.vL16}, {WSR}, s{A.sPS} offen sc1")] + [
        I(f"buffer_load_dwordx4 a[{A.aX + 4*j}:{A.aX + 4*j + 3}], v{A.vL16}, {WSR}, s{A.sPB + j // 4} offen offset:{(j & 3) * 1024} sc1 {opt['pfl']}") for j in range(16)]
    cm = lambda qb, ks, hf: mfma(R("v", Oreg(2 * ks + hf, qb), 4), R("a", 246 - 2 * hf, 4), R("a", A.aX + (qb * 8 + ks) * 4, 4), R("v", Oreg(2 * ks + hf, qb), 4))
    if EC:
        n1 = O('n1')
        g = Gaps(qkB_mfmas(Freg5) + [cm(qb, ks, hf) for qb in range(2) for ks in range(8) for hf in range(2)])
        half_reads(g, 1, 2, [("T", 2)], bar=47, Freg4=Freg5)
        g.put_s(31, NEED(R("a", A.aX, 32))); g.put_s(45, NEED(R("a", A.aX + 32, 32)))
        place_vm(g, [(dma_flat(0, A.sV), 5, 44)])
        put_check(g, check(0, "L_st14"), SM(half_groups(0, 1)).run(g, 0, 56))
        c.block("p1c", "L_p1c:", win_qk(1, "L_st3", "L_rt3", masked=True, groups=[[i] for i in pl[:n1]], glo=1, ghi=60,
                                           scal_at=[(16 * kb + (4 if kb < 3 else 0), mask_regs(True, (kb,))) for kb in range(4)]), fs(),
                win_pv(1, valu=[i for kb in range(4) for i in mask_blk(1, kb, 1)], vlo=4, groups=[[i] for i in pl[n1:]], glo=2, ghi=46), fs(), f"""
                v_cmp_neq_f32 vcc, v{A.vNM}, v{A.vX+4}
                v_cmp_neq_f32 s[64:65], v{A.vNM+4}, v{A.vX+5}
                s_nop 0
                s_or_b64 vcc, vcc, s[64:65]
                s_cbranch_vccnz L_comb
                """)
        c.block("p2c", f"v_add_f32 v{A.vLS}, v{A.vX+6}, v{A.vLS}\nv_add_f32 v{A.vLS+1}, v{A.vX+7}, v{A.vLS+1}", g.flat(), "L_rt14:", fs(), "s_branch L_p3o" if not LAY else "")
    if not EC: c.block("p3c", "L_p3c:", pchk(0), win_pv(0, sm=smB(), nslot=0, end=check(1, "L_st3", only=1), groups=[[i] for i in pl], glo=0, ghi=60, nodma=True), "L_rt3:", stamp(),
            NEED(R("v", A.vX + 4, 4)), f"""
            v_cmp_neq_f32 vcc, v{A.vNM}, v{A.vX+4}
            v_cmp_neq_f32 s[64:65], v{A.vNM+4}, v{A.vX+5}
            v_add_f32 v{A.vX+6}, v{A.vX+6}, v{A.vLS}
            v_add_f32 v{A.vX+7}, v{A.vX+7}, v{A.vLS+1}
            s_or_b64 vcc, vcc, s[64:65]
            s_cbranch_vccnz L_comb
            """)
    F3 = lambda b, f: 192 + 4 * f if b == 2 else Freg(b, f)
    g = Gaps([pvB_mfma(db, kp, F3) for db in range(16) for kp in ((0, 1) if db % 2 == 0 else (1, 0))] + [cm(qb, ks, hf) for qb in range(2) for ks in range(8) for hf in range(2)])
    for b_, pos in ((1, [0, 0, 2, 2, 4, 4, 5, 6]), (2, [6, 8, 8, 10, 10, 12, 12, 14]), (3, [16, 16, 17, 18, 18, 19, 20, 20])):
        for f, k in enumerate(pos): g.put(k, rd_frag(0, b_, f, F3(b_, f)))
    g.put_s(7, NEED(R("a", Freg(1, 0), 16))); g.put_s(11, NEED(R("a", Freg(1, 4), 16))); g.put_s(15, NEED(R("a", 192, 16))); g.put_s(19, NEED(R("a", 208, 16)))
    g.put_s(23, NEED(R("a", Freg(1, 0), 32))); g.put_s(31, NEED(R("a", A.aX, 32))); g.put_s(47, NEED(R("a", A.aX + 32, 16))); g.put_s(55, NEED(R("a", A.aX + 48, 16)))
    g.put_s(34, WAITV([("T", 3)], lgkm0=True)); g.put_s(35, I("s_barrier"))
    for f, r in enumerate(rd_batch(3, 0)): g.put(44 + RPAT[0][f], r)
    g.put_s(62, NEED(R("a", Freg(0, 0), 32)))
    place_vm(g, [(dma_flat(1, A.sK) + dma_flat(2, A.sVn) + w2a(), 1, 61)])
    vq = VQ(); vq.add(L(f"v_mov_b32 v{A.vLS}, v{A.vX+6}\nv_mov_b32 v{A.vLS+1}, v{A.vX+7}") + of_rd(A.vX + 4))
    cv = [cvt_ctx(ks, 0) for ks in range(8)]
    for ks in range(8): vq.add(cv[ks][:-4], 4)
    nsub = len(vq.q)
    vq.run(g, 0, 0, 30); vq.force_level(g, lambda i: True, 0, 30)
    for ks in range(8): vq.add(cv[ks][-4:], 32 + 2 * ks + 5)
    vq.run(g, 0, 30); vq.force(g, 63, lambda i: True)
    if not EC: c.block("pBc", g.flat(), stamp())
    comb = [I("L_comb:")] + [I(pl[0].text), I("s_waitcnt vmcnt(0)")] + (dma_flat(1, A.sK) if not EC else []) + L(f"""
    s_nop 7
    v_sub_f32 v{A.vX}, v{A.vNM}, v{A.vX+4}
    v_sub_f32 v{A.vX+1}, v{A.vNM+4}, v{A.vX+5}
    v_max_f32 v{A.vX}, 0, v{A.vX}
    v_max_f32 v{A.vX+1}, 0, v{A.vX+1}
    """) + sub_S(1, (1,)) + (sub_S(0) if EC else []) + rescale_state() + (softmax_half(0, 0) if EC else sm_flat(groups_B())) + L(f"""
    v_sub_f32 v{A.vX}, v{A.vNM}, v{A.vX+4}
    v_sub_f32 v{A.vX+1}, v{A.vNM+4}, v{A.vX+5}
    v_cvt_i32_f32 v{A.vX}, v{A.vX}
    v_cvt_i32_f32 v{A.vX+1}, v{A.vX+1}
    v_ldexp_f32 v{A.vX}, 1.0, v{A.vX}
    v_ldexp_f32 v{A.vX+1}, 1.0, v{A.vX+1}
    v_and_b32 v{A.vX}, 0xffff0000, v{A.vX}
    v_and_b32 v{A.vX+1}, 0xffff0000, v{A.vX+1}
    v_fmac_f32 v{A.vLS}, v{A.vX}, v{A.vX+6}
    v_fmac_f32 v{A.vLS+1}, v{A.vX+1}, v{A.vX+7}
    v_lshrrev_b32 v{A.vX+2}, 16, v{A.vX}
    v_lshrrev_b32 v{A.vX+3}, 16, v{A.vX+1}
    """)
    n = 0
    for qb in range(2):
        for ks in range(8):
            for w in range(4):
                t = A.vT + (n % 8); n += 1
                o = Oreg(2 * ks + (w >> 1), qb) + 2 * (w & 1)
                comb += L(f"""v_accvgpr_read_b32 v{t}, a{A.aX + (qb * 8 + ks) * 4 + w}
                v_dot2c_f32_bf16 v{o}, v{t}, v{A.vX + 2 + qb}
                v_dot2c_f32_bf16 v{o+1}, v{t}, v{A.vX + qb}""")
    comb += L(f"s_nop 3\ns_branch {'L_p2' if EC else 'L_pBo'}")
    SP = O('sp')
    S5 = O('s5')
    slots = [3, 1, 2, 0, 4, 3, 1] if S5 else [3, 1, 2, 0, 3, 1, 2]
    def op_out(j, split=False):
        b = j & 1
        jo = j
        ins = L(f"s_add_u32 s{A.sT0}, s{A.sOP}, {E(2 * jo * 1024)}\ns_add_u32 s{A.sT1}, s{93 if NU else A.sOP}, {(0 if NU else 14336) + E(2 * jo * 1024)}")
        for pp in range(2):
            if split and pp == 1: ins.append(64)
            for qb in range(2):
                a, d = Sreg(b, 2 * pp, qb), Sreg(b, 2 * pp + 1, qb)
                if BOP == 2 and j == 0 and pp == 0: ins += L(f"v_mul_f32 v{A.vSUM + 2 + qb}, -v{A.vNM + 4 * qb}, v{A.vRL + qb}")
                if BOP == 1 and j == 0 and pp == 0:
                    nm = A.vNM + 4 * qb
                    ins += L(f"""v_max3_f32 v{nm}, |v{a}|, |v{a+1}|, |v{a+2}|
                    v_max3_f32 v{nm}, |v{a+3}|, |v{d}|, v{nm}
                    v_max3_f32 v{nm}, |v{d+1}|, |v{d+2}|, v{nm}
                    v_mul_f32 v{nm}, {opt['bopk']}, v{nm}""") + [I(f"v_mov_b32 v{nm + e}, v{nm}") for e in (1, 2, 3)] + L(f"v_mul_f32 v{A.vSUM + 2 + qb}, -v{nm}, v{A.vRL + qb}")
                if BOP and j >= 3 - BOP: ins += [I(f"v_fma_f32 v{r + e}, v{r + e}, v{A.vRL + qb}, v{A.vSUM + 2 + qb}") for r in (a, d) for e in range(4)]
                else: ins += [I(f"v_mul_f32 v{r + e}, v{A.vRL + qb}, v{r + e}") for r in (a, d) for e in range(4)]
                ins += L(f"""v_cvt_pk_bf16_f32 v{a}, v{a}, v{a+1}
                v_cvt_pk_bf16_f32 v{a+1}, v{a+2}, v{a+3}
                v_cvt_pk_bf16_f32 v{a+2}, v{d}, v{d+1}
                v_cvt_pk_bf16_f32 v{a+3}, v{d+2}, v{d+3}""")
                ins.append(I(f"buffer_store_dwordx4 v[{a}:{a+3}], v{A.vL16}, {WSR}, s{A.sT0 + qb} offen offset:{pp * 1024} {opt['ofl'].replace('+', ' ')}", tag=("OP", j)))
        return ins
    fop0 = lambda: L(f"""
    s_sub_u32 s64, 15, s{sJ}
    s_min_u32 s64, s64, s{sJ}
    s_mul_i32 s{sFL}, s64, {2 * FSTR}
    s_and_b32 s64, s{sJ}, 8
    s_lshl_b32 s64, s64, 1
    s_add_u32 s64, s64, s{sH}
    s_lshl_b32 s64, s64, 2
    s_add_u32 s{sFL}, s{sFL}, s64
    s_add_u32 s{sFL}, s{sFL}, {WS_FOP}
    s_lshl_b32 s64, s{A.sWAVE}, 8
    s_add_u32 s{sFL}, s{sFL}, s64
    s_add_u32 s3, s{sFL}, {FSTR}
    v_lshrrev_b32 v{A.vX + 7}, 5, v{A.vL16}
    v_min_u32 v{A.vX + 7}, 1, v{A.vX + 7}
    v_lshlrev_b32 v{A.vX + 6}, 3, v{A.vL16}
    v_lshl_or_b32 v{A.vX + 6}, v{A.vX + 7}, 29, v{A.vX + 6}
    v_mov_b32 v{A.vX + 5}, 1
    """)
    R3 = opt['r3'] == '1'
    fop = (lambda: red3.fop(A.vL16, 40, sFL, 3)) if R3 else fop0
    vFV = 40 if R3 else A.vX + 5; EH = R3 and opt['eh'] == '1'
    def dbgst():
        if opt['dbgst'] == '0': return []
        o = f"""
        s_load_dwordx2 s[72:73], s[0:1], {A_DBG}
        v_accvgpr_read_b32 v11, a{aST+1}
        v_accvgpr_read_b32 v15, a{aST}
        v_lshrrev_b32 v12, 4, v{A.vL16}
        v_mov_b32 v13, {side.OOB}
        s_waitcnt lgkmcnt(0)
        {srd(68, 72, 256)}
        s_lshl_b32 s64, s2, 2
        s_add_u32 s64, s64, s{A.sWAVE}
        s_cmp_eq_u32 s64, {O('dbgst')}
        s_cselect_b32 s64, 0, {side.OOB}
        s_and_b32 s65, s{sJ}, 8
        s_or_b32 s65, s65, s{A.sWAVE}
        s_cmp_eq_u32 s65, 0
        s_cselect_b32 s65, 0, {side.OOB}
        """
        for n, ln in enumerate([int(x) for x in opt['dbgl'].split(',')]):
            o += f"s_add_u32 s66, s64, {4 * (2 + n)}\nv_cmp_eq_u32 vcc, {ln}, v12\nv_mov_b32 v14, s66\ns_nop 1\nv_cndmask_b32 v13, v13, v14, vcc\n"
        o += f"""buffer_store_dword v11, v13, s[68:71], 0 offen
        buffer_store_dword v15, v13, s[68:71], 0 offen offset:28
        s_sub_u32 s66, s{sSTK}, 1
        v_mov_b32 v13, {side.OOB}
        v_cmp_eq_u32 vcc, s66, v12
        v_mov_b32 v14, 4
        s_nop 1
        v_cndmask_b32 v13, v13, v14, vcc
        v_or_b32 v13, s65, v13
        buffer_atomic_umax v11, v13, s[68:71], 0 offen
        v_not_b32 v11, v11
        v_min_u32 v13, 1, v12
        v_lshlrev_b32 v13, 29, v13
        v_or_b32 v13, s65, v13
        s_nop 1
        buffer_atomic_umax v11, v13, s[68:71], 0 offen
        s_waitcnt vmcnt(0)
        """
        return L(o)
    fin = lambda: (L("s_mov_b64 exec, -1\ns_waitcnt vmcnt(0)") + stamp(30) + L(f"""
        s_lshl_b32 s{A.sT0}, s2, 2
        s_add_u32 s{A.sT0}, s{A.sT0}, s{A.sWAVE}
        s_lshl_b32 s{A.sT0}, s{A.sT0}, 9
        s_add_u32 s{A.sT0}, s{A.sT0}, {WS_STAMP}
        v_lshrrev_b32 v10, 1, v{A.vL16}
        buffer_store_dwordx2 a[{aST}:{aST+1}], v10, {WSR}, s{A.sT0} offen
        """) + dbgst()) if STAMP else []
    def last_reads(g, slot):
        for b in range(1, 4):
            for f, r in enumerate(rd_batch(slot, b)): g.put((b - 1) * 16 + RPAT[0][f], r)
            g.put_s(b * 16 - 1, NEED(R("a", Freg(b, 0), 32)))
    ctx_v = lambda qb, ks: R("v", Oreg(2 * ks, qb), 4)
    ctx_a = lambda qb, ks: R("a", A.aX + (qb * 8 + ks) * 4, 4)
    pub = lambda: [WAITV([("OP", 6)])] + L(f"buffer_store_dword v{vFV}, v{vFV + 1}, {WSR}, s3 offen sc1") + stamp(30)
    def outproj(tag, ctx, first=(), tags0=(), post0=()):
        ow = []
        for j in range(7):
            k = 2
            if j == 0 and tag:
                g = Gaps(qk_mfmas(0, "zero", breg=ctx, order=[(kb, qb) for qb in range(2) for kb in range(4)], fr=Freg4))
                half_reads(g, slots[0], slots[1], [("T", slots[1])], bar=47)
                def cv0():
                    vq = VQ()
                    for ks in range(8): vq.add(cvt_ctx(ks, 1), 3 if ks > 5 else 0)
                    k = vq.run(g, 0, 0, 31); vq.force_level(g, lambda i: True, 0, 31); return min(k, 31)
                if not S5: k = cv0()
            else:
                g = Gaps(qk_mfmas(j & 1, "nm" if BOP and j >= 3 - BOP else "zero", breg=ctx, snk=j < 6))
                if j < 6: weave_reads(g, slots[j], slots[j + 1], [("T", slots[j + 1])] + (list(tags0) if j == 0 else []))
                else: last_reads(g, slots[j])
            if j == 0:
                kk = 48 if not PW else O('pfg') - 4
                for i in post0: kk = g.fit(kk, i) if i.slots()[0] else g.fit_s(kk + (i.op == "WAITV"), i) + 1
            if S5 and j == 0: place_vm(g, [(dma_flat(0, A.sVn) + w2a() + dma_flat(4, A.sVn) + w2a(), 1 if not tag else 5, 61)])
            elif S5:
                if j < 3: weave_dma(g, slots[j + 4], A.sVn, w2a(), 1, O('odh5'))
                if j == 2: g.fit(30, I(f"v_add_u32 v43, 0x20000, v{A.vL16}"))
            elif j + 3 < 7: weave_dma(g, slots[j + 3], A.sVn, w2a(), k if j == 0 else 1, 60 if j == 0 else O('odh'))
            if j == 0 and tag and S5: k = cv0()
            if j == 0: assert not seq_fit(g, list(first) + (fop() if not (tag or S5) else []), k)[1]
            if j == 0 and NU: scal_fit(g, L(NU_OPD), 30)
            if j == 0 and BOP == 2:
                est = []
                for qb in range(2):
                    a, nm = Sreg(0, 0, qb), A.vNM + 4 * qb; d = Sreg(0, 1, qb)
                    est += L(f"""v_max3_f32 v{nm}, |v{a}|, |v{a+1}|, |v{a+2}|
                    v_max3_f32 v{nm}, |v{a+3}|, |v{d}|, v{nm}
                    v_max3_f32 v{nm}, |v{d+1}|, |v{d+2}|, v{nm}
                    v_mul_f32 v{nm}, {opt['bopk']}, v{nm}""") + [I(f"v_mov_b32 v{nm + e}, v{nm}") for e in (1, 2, 3)]
                if tag: spread_any(g, est[:7], 40, 52); spread_any(g, est[7:], 52, 62)
                else: spread_any(g, est, 36, 62)
            if j == 3 and (tag or S5): assert not seq_fit(g, fop(), 1)[1]
            if j == 2: assert not seq_fit(g, side.sel_a(A.vL16), 1)[1]
            if j in (4, 5): assert not seq_fit(g, {4: side.sel_b(tag), 5: side.sel_c()}[j], 40 if j == 5 else 2)[1]
            if j == O('efw'):
                assert not seq_fit(g, [WAITV([("OP", (side.NE - 1) // 2)]), I(f"buffer_store_dword v{vFV}, v{vFV + 1}, {WSR}, s{sFL} offen sc1")], O('efg'))[1]
            if j == 6 and tag and SENT:
                assert EH and not seq_fit(g, L(f"s_sub_u32 s64, s{sJ}, 8\ns_and_b32 s64, s64, {side.OOB}\ns_or_b32 s64, s64, s3") +
                                          [WAITV([("OP", 4)]), I(f"buffer_store_dword v{vFV}, v{vFV + 1}, {WSR}, s64 offen sc1")], O('sg'))[1]
            if SP and tag and j == 4: scal_fit(g, L("s_mov_b32 s92, 0"))
            if SP and not tag:
                if j == 3: assert not seq_fit(g, L(f"s_add_u32 s92, s{sFL}, 2048") + [WAITV([("OP", 1)]), I(f"buffer_store_dword v{vFV}, v{vFV + 1}, {WSR}, s92 offen sc1")], O('spa'))[1]
                if j == 4:
                    pre_, ld_ = red3.pf_poll(); link(pre_ + [ld_]); k0 = scal_fit(g, pre_, 12); g.fit(max(k0 + 1, O('spp')), ld_)
                if j == 5:
                    pfl = red3.pf_loads(A.vL16); k0 = scal_fit(g, red3.pf_test(), O('spt'))
                    place_vm(g, [([i for x in pfl[:8] for i in x], k0 + 1, 62)], relax=True)
                if j == 6: place_vm(g, [([i for x in pfl[8:] for i in x], 1, 40)], relax=True)
            if j > 0: k = fill_valu(g, op_out(j - 1), 3, 58 if j < 6 else 36)
            if j == 6: k, last = seq_fit(g, op_out(6, True), max(k, 38))
            if tag and j in (0, 3, 5):
                n = {0: 1, 3: 2, 5: 3}[j]
                g.put_s(62, I(f"s_cmp_eq_u32 s{sJ}, {O('jy')}")); g.put_s(63, I(f"s_cbranch_scc1 L_y{n}"))
            ow += g.flat() + (L(f"L_y{n}r:") if tag and j in (0, 3, 5) else []) + fst(4, 30)
        return ow + stamp(30) + [i for i in last if not isinstance(i, int)] + ([] if EH else pub())
    c.block("op1", "L_op1:", outproj(1, ctx_v, lfin()), f"s_cmp_lt_u32 s{sJ}, 8\ns_cbranch_scc1 L_red")
    if R3:
        mv, farv = red3.main_v(A.vL16, lambda: stamp(30), O('lagv'), SENT)
        pubv = lambda: stamp(30) if SENT else pub() if EH else []
        c.block("end1", f"s_cmp_eq_u32 s{A.sWAVE}, 3\ns_cbranch_scc1 L_vend3", red3.head(True), pubv(), mv, "L_vend:", fin(), "s_endpgm")
        c.block("end3", "L_vend3:", pubv(), "s_branch L_vend", "s_waitcnt vmcnt(0)", farv)
    else: c.block("end1", fin(), "s_endpgm")
    qld = [[I(f"buffer_load_dwordx4 a[{4*n}:{4*n+3}], v{A.vL16}, {WSR}, s{72 + n // 4} offen offset:{(n & 3) * 1024} sc1 {opt['qfl']}")] for n in range(16)]
    c.block("p3k", "L_p3k:", f"""
            s_mov_b32 s72, s{A.sQ}
            s_add_u32 s73, s72, 4096
            s_add_u32 s74, s72, {E(8192)}
            s_add_u32 s75, s72, {E(12288)}
            """, pchk(1), win_pv(0, sm=smB(), nslot=0, end=check(1, "L_st7", only=1), groups=qld, glo=0, ghi=60, nodma=True), "L_rt7:", stamp())
    g = Gaps(pvB_mfmas())
    half_reads(g, 0, 3, [("T", 3)])
    half_dma(g, dma_flat(1, A.sK) + adv_k())
    scal_fit(g, L(f"s_sub_u32 s{A.sIT}, {15 - JC}, s{sJ}\ns_mov_b32 s{A.sMODE}, 0"))
    vq = VQ()
    vq.add(lfin() + L(f"""v_accvgpr_write_b32 a192, v{A.vRL}
        v_accvgpr_write_b32 a193, v{A.vRL + 1}
        v_mov_b32 v{A.vLS}, 0
        v_mov_b32 v{A.vLS + 1}, 0""") + [I(f"v_mov_b32 v{A.vNM + r}, {NM0}") for r in range(8)])
    vq.add(of_rd(A.vX + 4))
    for ks in range(8):
        for qb in range(2):
            vq.add(cvt_ctx(ks, qb), 4 * ks + 7 if qb else 0)
            vq.add([I(f"v_accvgpr_write_b32 a{A.aX + (qb * 8 + ks) * 4 + e}, v{Oreg(2 * ks, qb) + e}") for e in range(4)], 32)
    vq.run(g, 0)
    vq.force(g, 31, lambda i: f"v{A.vNM + 7}" in i.writes)
    w_b = g.flat()
    g, sm = first_qk(False)
    g.pre = [NEED(R("a", 0, 64))]
    g.put(40, I(f"v_cmp_gt_u32 vcc, 3, v{A.vRL + 1}")); g.put_s(43, I("s_cbranch_vccnz L_f2s")); g.put_s(43, I("L_f2r:"))
    place_vm(g, [(dma_flat(2, A.sV), 3, 44), ([I(FL_LOAD)], 0, 1)])
    sm.run(g, 8, 64, final=False, upto=8)
    vq.run(g, 32)
    vq.q = [(0, i) for at, i in vq.q]
    w_1 = win_qk(0, "L_st11", "L_rt11", dma=(3, A.sK, adv_k()), sm=sm, lo_check=True, vq=vq, dhi=40)
    npk = O('npk') if not BPV['on'] else 8; dump = [i for at, i in vq.q[:max(0, len(vq.q) - npk)]]; vq.q = vq.q[len(dump):]
    if O('v') > 1: sys.stderr.write(f"; switch: dumped {len(dump)}\n")
    def early(g):
        vq.run(g, 0); assert not vq.q
        for q in range(g.n):
            for i in g.ve[q]:
                if i.op.startswith(("v_cvt", "v_accvgpr")): assert not any(set(i.reads) & set(g.m[x].writes) for x in range(q + 1)), (q, i.text)
    c.block("sw", w_b, stamp(), g.flat(), fs(), w_1, dump, fs(),
            win_pv(0, cz=True, vq_first=early, pre_dma=(0, A.sV), tail=L(f"s_cmp_lg_u32 s{A.sIT}, 0\ns_cbranch_scc1 L_loop_top")), stamp())
    pst = lambda ks, qb: [I(f"buffer_store_dwordx4 v[{Oreg(2*ks, qb)}:{Oreg(2*ks, qb)+3}], v{A.vL16}, {WSR}, s{A.sPB + (qb*8+ks) // 4} offen offset:{(ks & 3) * 1024} sc1", tag="PST")]
    g = Gaps(pv_mfmas(1))
    weave_reads(g, 0, 3, [("T", 3)])
    k = 0; rest = []
    for ks in range(8):
        for qb in range(2):
            ins = cvt_ctx(ks, qb, A.vX + 6) + pst(ks, qb)
            if rest: rest += ins; continue
            k, rest = seq_fit(g, ins, max(k, 8 * ks + (7 if att3.SNK else 5 + 2 * qb) + 4))
    c.block("final_h", "L_final_h:", WAITV([("T", 0)], lgkm0=True), "s_barrier", rd_batch(0, 0), mix(softmax_half(1, 1), dma_flat(2, A.sVn) + w2a(), 1), check(1, "L_st4"), "L_rt4:", add_l(1), f"""
    v_mov_b32 v{A.vX+2}, v{A.vNM}
    v_mov_b32 v{A.vX+3}, v{A.vNM+4}
    v_mov_b32 v{A.vX+4}, v{A.vLS}
    v_mov_b32 v{A.vX+5}, v{A.vLS+1}
    buffer_store_dwordx4 v[{A.vX+2}:{A.vX+5}], v{A.vL16}, {WSR}, s{A.sPS} offen sc1
    """, of_rd(A.vX + 6), NEED(R("a", Freg(0, 0), 32)), stamp(), g.flat(), rest, stamp())
    c.block("op0", outproj(0, ctx_a, L(f"v_accvgpr_read_b32 v{A.vRL}, a192\nv_accvgpr_read_b32 v{A.vRL + 1}, a193"), ["PST"] if not PW else [],
                           L(f"s_xor_b32 s47, s47, 64\nv_mov_b32 v{A.vT}, 1") + ([side.flag_store(47, A.vF0, A.vT)] if not PW else
                           L(f"v_min_u32 v{A.vT + 1}, 1, v{A.vL16}\nv_lshlrev_b32 v{A.vT + 1}, 29, v{A.vT + 1}") + [WAITV(["PST"]), side.flag_store(47, A.vT + 1, A.vT)])))
    rm, far = red3.main_k(A.vL16, lambda: stamp(30), O('lag'), SP) if R3 else side.red_main(A.vL16, lambda: stamp(30), O('lag'), True, False)
    c.block("red", "L_red:", red3.head(False) if R3 else side.red_a(A.vL16), pub() if EH else [], rm, fin(), "s_endpgm")
    c.block("redfar", far)
    c.block("rpoll", red3.poll2(O('p2')) if O('p2') else side.red_poll())
    c.block("comb", comb)
    stubs = ""
    for n, b in ((0, "0"), (1, "1"), (2, "B"), (3, "1" if EC else "B"), (4, "1n"), (5, "1"), (6, "0B"), (7, "B"), (8, "f"), (9, "1"), (10, "f"), (11, "f")) + (((14, "0B"),) if EC else ()) + (((12, "0"), (13, "1")) if EXT else ()):
        stubs += f"L_st{n}:\ns_call_b64 s[{A.sRET}:{A.sRET+1}], L_slow{b}\ns_branch L_rt{n}\n"
    c.block("stubs", stubs)
    for nm, b, oth in (("0", 0, (0, 1)), ("1", 1, (0, 1)), ("1n", 1, ()), ("0B", 0, (1,)), ("B", 1, ()), ("f", 0, (0, 1))): c.block("slow" + nm, slow_sub(nm, b, oth))
    c.block("moe", red3.moe() if R3 else side.red_moe(), side.y_reduce2(lambda n: Oreg(2 * (n >> 1) + 1, n & 1)))
    c.block("spins", f"""
    L_fll:
    s_cmp_lg_u32 s{A.sREQ}, 15
    s_cbranch_scc1 L_fll1
    v_mov_b32 v{A.vFL}, 0
    s_mov_b32 s46, s47
    s_mov_b32 s{A.sREQ}, 1
    L_fll1:
    {FL_LOAD}
    s_branch L_fllr
    L_pub3:
    v_mov_b32 v{A.vX + 7}, s3
    """, side.flag_store(sFL, A.vF0, A.vX + 7), "s_branch L_pub3r",
            *[side.spin_stub(f"L_fhs{n}", f"L_fhr{n}", side.FH0_LOAD, 24, 91, "v_cmp_gt_u32 vcc, 1, v{vt}") for n in range(2)],
            *[side.spin_stub(f"L_fps{n}", f"L_fpr{n}", FP_LOAD, A.vRL, A.sSPIN) for n in range(EC, 2)],
            side.spin_stub("L_f4s", "L_f4r", FL_LOAD, A.vRL + 1, A.sSPIN, "v_cmp_gt_u32 vcc, 3, v{vt}") if EXT else [],
            side.spin_stub("L_f2s", "L_f2r", FL_LOAD, A.vRL + 1, A.sSPIN, "v_cmp_gt_u32 vcc, 3, v{vt}"),
            side.spin_stub("L_fls0", "L_flr0", FL_LOAD, A.vRL + 1, A.sSPIN, f"v_cmp_gt_u32 vcc, s{A.sREQ}, v{{vt}}"))

def layout(c):
    if opt['lay'] == '0': return
    seq = ["ph", "p1c", "p2c", "p3o", "pBo", "op1", "end1", "end3", "p1", "p2", "p3k"]
    o = [b for b in c.order if b not in seq]; k = o.index("loop_mid") + 1
    c.order = o[:k] + seq + o[k:]; assert c.order[c.order.index("p3k") + 1] == "sw"

def early_stubs(c):
    c.block("spins0", side.z_stub(0), side.z_stub(1), hw.key_stub(),
            *[side.spin_stub(f"L_f1s{n}{w}", f"L_f1r{n}{w}", F1_LOAD if w == 4 else F2_LOAD, 24, 91, "v_cmp_eq_u32 vcc, 0, v{vt}") for n in range(2) for w in (4, 5)])

def paths(c):
    lp = ["loop_top", "loop_mid"]
    for end in ((["ph", "p1", "p2", "p3c", "pBc"], ["ph", "p1", "p2", "p3o", "pBo"], ["ph", "p1", "p2", "p3c", "comb", "pBo"]) if not EC else
                (["ph", "p1c", "p2c", "p3o", "pBo"], ["ph", "p1", "p2", "p3o", "pBo"], ["ph", "p1c", "comb", "p2", "p3o", "pBo"])):
        c.path("entry", "kv1", "loop_mid", *lp, *lp, *end, "op1", "end1")
    if opt['r3'] == '1': c.path("entry", "kv1", "loop_mid", *lp, *lp, "ph", "p1", "p2", "p3o", "pBo", "op1", "end3")
    c.path("entry", "kv0", "k1", *lp, *lp, "ph", "p1", "p2", "p3o", "pBo", "op1", "red")
    for own in (["j0"], ["k1", "ph", "p1"], ["k1", *lp, "ph", "p1"], ["k1", *lp, *lp, "ph", "p1"]):
        for nh in (0, 1, 2):
            c.path("entry", "kv0", *own, "p2", "p3k", "sw", *(lp * nh + ["ph"] * (nh > 0)), "final_h", "op0", "red")
    for b in ("redfar", "rpoll", "stubs", "slow0", "slow1", "slow1n", "slow0B", "slowB", "slowf", "moe", "spins", "spins0"): c.path(b)

if __name__ == "__main__":
    c = CFG(verbose=O("v"))
    build_front(c); early_stubs(c); build_att(c); layout(c); paths(c)
    body = c.finalize()
    kn = NAME + "_kernel"
    print("; @launch grid=(256,1,1) block=(256,1,1) lds=163840")
    print('.amdgcn_target "amdgcn-amd-amdhsa--gfx950"\n.text')
    print(".macro M d, a, b, c\nv_mfma_f32_16x16x32_bf16 \\d, \\a, \\b, \\c\n.endm")
    print(kernel_header(kn))
    print(body.replace("  v_mfma_f32_16x16x32_bf16 ", "M ").replace("\n  ", "\n "))
    print("L_code_end:")
    print('.section .rodata,"a"\n.p2align 6')
    print(kernel_desc(kn, sgpr=102))
```

```python
from common import *
S_WS, S_DBG = 8, 12
sWAVE, sH, sJ = 20, 41, 42
WS = f"s[{S_WS}:{S_WS+3}]"
OOB = 0x20000000

def wave_sum(regs, tmps):
    out = []
    for sh in ("row_ror:8", "row_ror:4", "row_ror:2", "row_ror:1"):
        for r in regs: out.append(I(f"v_add_f32 v{r}, v{r}, v{r} {sh} row_mask:0xf bank_mask:0xf"))
    for sw in ("v_permlane16_swap_b32", "v_permlane32_swap_b32"):
        for r, t in zip(regs, tmps): out.append(I(f"v_mov_b32 v{t}, v{r}"))
        for r, t in zip(regs, tmps): out.append(I(f"{sw} v{t}, v{r}"))
        for r, t in zip(regs, tmps): out.append(I(f"v_add_f32 v{r}, v{t}, v{r}"))
    return out

def sigmoid(r, t):
    return L(f"""v_mul_f32 v{t}, 0xbfb8aa3b, v{r}
    v_exp_f32 v{t}, v{t}
    v_add_f32 v{t}, 1.0, v{t}
    v_rcp_f32 v{r}, v{t}""")

RNT = 'nt'
def r_loads(zero=True):
    return L(f"""
    s_lshl_b32 s64, s2, 2
    s_add_u32 s64, s64, s{sWAVE}
    s_mul_i32 s72, s64, 1792
    """) + [I(f"v_mov_b32 v{40+r}, 0") for r in range(16 if zero else 0)] + L(f"""
    s_mov_b32 exec_hi, 0x00ffffff
    buffer_load_dwordx4 v[40:43], v7, s[56:59], s72 offen {RNT}
    buffer_load_dwordx4 v[44:47], v7, s[56:59], s72 offen offset:896 {RNT}
    buffer_load_dwordx4 v[48:51], v7, s[60:63], 0 offen
    buffer_load_dwordx4 v[52:55], v7, s[68:71], 0 offen
    s_mov_b64 exec, -1
    """)
def r_compute():
    out = [I(f"v_mov_b32 v{56+r}, 0") for r in range(4)]
    for w in range(4):
        for n, (xr, wr) in enumerate(((40, 48), (44, 48), (40, 52), (44, 52))):
            out.append(I(f"v_dot2c_f32_bf16 v{56+n}, v{xr+w}, v{wr+w}"))
    out += wave_sum([56, 57, 58, 59], [60, 61, 62, 63])
    out += L(f"""
    v_cmp_eq_u32 vcc, 0, v0
    v_cndmask_b32 v56, v57, v56, vcc
    v_cndmask_b32 v58, v59, v58, vcc
    s_lshl_b32 s64, s2, 3
    s_lshl_b32 s72, s{sWAVE}, 1
    s_add_u32 s64, s64, s72
    v_add_u32 v60, s64, v0
    v_ashrrev_i32 v61, 31, v56
    v_or_b32 v61, 0x80000000, v61
    v_xor_b32 v61, v61, v56
    v_and_b32 v61, 0xfffff800, v61
    v_sub_u32 v62, 2047, v60
    v_or_b32 v61, v61, v62
    v_max_u32 v61, 1, v61
    """) + sigmoid(58, 59) + L(f"""
    s_lshl_b32 s72, s{sWAVE}, 3
    s_add_u32 s72, s72, {LDS_R}
    v_lshl_add_u32 v60, v0, 2, s72
    s_mov_b64 exec, 3
    ds_write_b32 v60, v61
    ds_write_b32 v60, v56 offset:32
    ds_write_b32 v60, v58 offset:64
    s_mov_b64 exec, -1
    """)
    return out
def r_store(skip):
    return L(f"""
    s_cmp_lg_u32 s{sWAVE}, 0
    s_cbranch_scc1 {skip}
    v_lshlrev_b32 v28, 2, v0
    v_add_u32 v29, {LDS_R}, v28
    s_mov_b32 exec_hi, 0
    ds_read_b32 v29, v29 ; ignore
    s_lshl_b32 s72, s2, 7
    s_add_u32 s72, s72, {WS_R}
    s_waitcnt lgkmcnt(0) ; ignore
    buffer_store_dword v29, v28, {WS}, s72 offen sc1 ; nocount
    s_mov_b64 exec, -1
    s_cmp_ge_u32 s2, 13
    s_cbranch_scc1 {skip}
    v_mov_b32 v32, 0
    v_mov_b32 v33, 0
    v_mov_b32 v34, 0
    v_mov_b32 v35, 0
    s_lshl_b32 s72, s2, 10
    s_add_u32 s72, s72, {WS_FKV}
    buffer_store_dwordx4 v[32:35], v7, {WS}, s72 offen sc1 ; nocount
    {skip}:
    """)
def r_signal(skip):
    return L(f"""
    s_cmp_lg_u32 s{sWAVE}, 0
    s_cbranch_scc1 {skip}
    v_mov_b32 v28, 1
    s_mov_b64 exec, 1
    buffer_atomic_add v28, off, s[{S_DBG}:{S_DBG+3}], 0 sc1 ; nocount
    s_mov_b64 exec, -1
    {skip}:
    """)

def wo_dma():
    out = L(f"""
    v_lshrrev_b32 v28, 5, v0
    v_mul_u32_u24 v28, 896, v28
    v_and_b32 v29, 31, v0
    v_lshl_add_u32 v28, v29, 4, v28
    s_lshr_b32 s64, s{sJ}, 1
    s_lshl_b32 s64, s64, 5
    s_lshl_b32 s72, s{sH}, 8
    s_add_u32 s64, s64, s72
    s_lshl_b32 s72, s{sWAVE}, 3
    s_add_u32 s64, s64, s72
    s_mul_i32 s64, s64, 896
    s_and_b32 s72, s{sJ}, 1
    s_mul_i32 s72, s72, 448
    s_add_u32 s64, s64, s72
    s_lshl_b32 s72, s{sWAVE}, 12
    s_add_u32 m0, s72, 131072
    s_mov_b32 exec_lo, 0x0fffffff
    s_mov_b32 exec_hi, 0x0fffffff
    """)
    for j in range(4):
        out.append(I(f"buffer_load_dwordx4 v28, s[60:63], s64 offen offset:{1024*j} lds", tag="WO"))
        if j < 3: out.append(I(f"s_add_u32 s64, s64, {2*896 - 1024}"))
    out.append(I("s_mov_b64 exec, -1"))
    return out
def wo_setup():
    out = L(f"""
    v_and_b32 v28, 15, v0
    v_lshrrev_b32 v29, 4, v0
    v_lshrrev_b32 v30, 2, v28
    v_lshl_add_u32 v29, v29, 2, v30
    v_lshlrev_b32 v29, 9, v29
    v_and_b32 v28, 3, v28
    v_lshl_add_u32 v29, v28, 4, v29
    s_lshr_b32 s64, s{sWAVE}, 1
    s_lshl_b32 s64, s64, 6
    s_and_b32 s72, s{sWAVE}, 1
    s_lshl_b32 s72, s72, 3
    s_add_u32 s64, s64, s72
    s_add_u32 s64, s64, 131072
    v_add_u32 v31, s64, v29
    s_lshl_b32 s73, s{sH}, 18
    s_lshr_b32 s64, s{sJ}, 1
    s_lshl_b32 s64, s64, 10
    s_add_u32 s73, s73, s64
    s_add_u32 s73, s73, {WS_WO}
    s_and_b32 s74, s{sJ}, 1
    s_mul_i32 s74, s74, 14
    s_add_u32 s74, s74, s{sWAVE}
    """)
    for n in range(4):
        out += L(f"""
        s_add_u32 s64, s74, {4*n}
        s_lshr_b32 s72, s64, 2
        s_lshl_b32 s72, s72, 15
        s_and_b32 s64, s64, 3
        s_lshl_b32 s64, s64, 13
        s_add_u32 s72, s73, s72
        s_add_u32 s{76+n}, s72, s64
        """)
    out += L(f"""
    s_cmp_lt_u32 s{sWAVE}, 2
    s_cselect_b64 s[74:75], -1, 0
    """)
    return out
def wo_reads():
    return [I(f"ds_read_b64_tr_b16 a[{192+4*n+2*j}:{193+4*n+2*j}], v31 offset:{n*128 + j*8192}") for n in range(4) for j in range(2)]
def wo_stores():
    st = [[I(f"buffer_store_dwordx4 a[{176+4*n}:{179+4*n}], v7, {WS}, s{76+n} offen sc1" + (" ; nocount" if n == 3 else ""))] for n in range(4)]
    st[3] = [I("s_mov_b64 exec, s[74:75]")] + st[3] + [I("s_mov_b64 exec, -1")]
    return st

def set_flag(addr_sreg, skip, vt):
    return L(f"""
    s_cmp_lg_u32 s{sWAVE}, 0
    s_cbranch_scc1 {skip}
    v_mov_b32 v{vt}, 1
    s_mov_b64 exec, 1
    buffer_store_dword v{vt}, off, {WS}, s{addr_sreg} sc1 ; nocount
    s_mov_b64 exec, -1
    {skip}:
    """)
def poll_flags(addr_sreg, nl, label, vt, va, sc):
    return L(f"""
    s_mov_b32 s{sc}, {SPIN_MAX}
    s_mov_b32 exec_lo, {hex(((1 << nl) - 1) & 0xffffffff)}
    s_mov_b32 exec_hi, {hex(((1 << nl) - 1) >> 32)}
    {label}:
    buffer_load_dword v{vt}, v{va}, {WS}, s{addr_sreg} offen sc1
    s_sub_u32 s{sc}, s{sc}, 1
    s_cbranch_scc1 {label}_x
    s_waitcnt vmcnt(0)
    v_cmp_ne_u32 vcc, 1, v{vt}
    s_cbranch_vccz {label}_x
    s_sleep 2
    s_branch {label}
    {label}_x:
    s_waitcnt vmcnt(0)
    s_mov_b64 exec, -1
    """)
def poll_count(label, vt, sc, n):
    return L(f"""
    s_mov_b32 s{sc}, {SPIN_MAX}
    {label}:
    buffer_load_dword v{vt}, off, s[{S_DBG}:{S_DBG+3}], 0 sc1
    s_sub_u32 s{sc}, s{sc}, 1
    s_cbranch_scc1 {label}_x
    s_waitcnt vmcnt(0)
    v_cmp_gt_u32 vcc, {n}, v{vt}
    s_cbranch_vccnz {label}
    {label}_x:
    s_waitcnt vmcnt(0)
    """)

def h_keys(vl16):
    return [I(f"buffer_load_dwordx4 v[{64+4*n}:{67+4*n}], v{vl16}, {WS}, s{90 + n // 4} offen offset:{(n & 3) * 1024} sc1") for n in range(8)]
def h_keymin():
    out = L("v_min3_u32 v14, v64, v65, v66")
    for n in range(3, 31, 2): out += L(f"v_min3_u32 v14, v14, v{64+n}, v{65+n}")
    return out + L("v_min_u32 v14, v14, v95\nv_cmp_eq_u32 vcc, 0, v14")
def h_stub(vl16):
    return (L(f"L_hs:\ns_mov_b32 s64, {SPIN_MAX}\nL_hs_l:") + h_keys(vl16) + L("s_waitcnt vmcnt(0)\ns_sub_u32 s64, s64, 1\ns_cbranch_scc1 L_hr") +
            h_keymin() + L("s_cbranch_vccnz L_hs_l\ns_branch L_hr"))
def h_block(vl16, lds=65536, after=()):
    out = L(f"""
    s_load_dwordx4 s[64:67], s[0:1], {A_WG}
    s_load_dwordx2 s[72:73], s[0:1], {A_WD}
    s_load_dwordx2 s[74:75], s[0:1], {A_X}
    s_and_b32 s76, s{sH}, 7
    s_mul_i32 s76, s76, 14
    s_lshr_b32 s77, s{sH}, 3
    s_mul_i32 s77, s77, 7
    s_add_u32 s76, s76, s77
    s_add_u32 s76, s76, s{sJ}
    s_mov_b32 s90, {WS_KEY}
    s_mov_b32 s91, {WS_KEY + 4096}
    """)
    out += h_keys(vl16)
    out += L(f"""
    {srd(52, 64, 448*3584)}
    {srd(56, 66, 448*3584)}
    {srd(60, 72, 1792*896)}
    {srd(68, 74, 2048*896)}
    v_lshrrev_b32 v10, 1, v0
    v_mul_u32_u24 v10, 3584, v10
    v_and_b32 v11, 1, v0
    v_lshl_add_u32 v10, v11, 4, v10
    s_lshl_b32 s77, s76, 5
    s_and_b32 s78, s{sWAVE}, 1
    s_mul_i32 s79, s78, {7 * 32 * 3584}
    s_add_u32 s77, s77, s79
    s_mul_i32 s79, s{sWAVE}, 7168
    s_add_u32 s79, s79, {lds}
    s_cmp_lt_u32 s{sWAVE}, 2
    s_cselect_b32 s52, s52, s56
    s_cselect_b32 s53, s53, s57
    """)
    for n in range(7):
        out += L(f"""s_add_u32 m0, s79, {n * 1024}
        s_nop 0""") + [I(f"buffer_load_dwordx4 v10, s[52:55], s77 offen lds", tag="HW")] + L(f"s_add_u32 s77, s77, {32 * 3584}")
    out += L(f"""
    v_lshlrev_b32 v11, 2, v0
    s_mul_i32 s77, s76, {16 * 896}
    s_mul_i32 s78, s{sWAVE}, 224
    s_add_u32 s77, s77, s78
    s_mov_b32 exec_hi, 0x00ffffff
    """)
    for f in range(16):
        if f and f % 4 == 0: out.append(I(f"s_add_u32 s77, s77, {4 * 896}"))
        out.append(I(f"buffer_load_dword v{100+f}, v11, s[60:63], s77 offen offset:{(f & 3) * 896}"))
    out.append(I("s_mov_b64 exec, -1"))
    out += h_keymin() + L("s_cbranch_vccnz L_hs\nL_hr:")
    out += L("v_max_u32 v12, v64, v65\nv_min_u32 v13, v64, v65")
    for n in range(2, 32):
        out += L(f"v_med3_u32 v13, v12, v13, v{64+n}\nv_max_u32 v12, v12, v{64+n}")
    def merge():
        return L("""v_min_u32 v16, v12, v14
        v_max_u32 v12, v12, v14
        v_max3_u32 v13, v13, v15, v16""")
    for sh in ("row_ror:8", "row_ror:4", "row_ror:2", "row_ror:1"):
        out += L(f"""v_mov_b32 v14, v12 {sh} row_mask:0xf bank_mask:0xf
        v_mov_b32 v15, v13 {sh} row_mask:0xf bank_mask:0xf""") + merge()
    for sw in ("v_permlane16_swap_b32", "v_permlane32_swap_b32"):
        out += L(f"""v_mov_b32 v14, v12
        v_mov_b32 v15, v13
        {sw} v14, v12
        {sw} v15, v13""") + merge()
    out += L(f"""
    v_and_b32 v12, 0x7ff, v12
    v_and_b32 v13, 0x7ff, v13
    v_sub_u32 v12, 2047, v12
    v_sub_u32 v13, 2047, v13
    v_and_b32 v14, 1, v0
    v_cmp_eq_u32 vcc, 0, v14
    v_cndmask_b32 v14, v13, v12, vcc
    v_lshrrev_b32 v17, 3, v14
    v_lshlrev_b32 v17, 4, v17
    v_and_b32 v15, 7, v14
    v_add_lshl_u32 v17, v17, v15, 2
    s_mov_b32 s77, {WS_RG}
    buffer_load_dword v18, v17, {WS}, s77 offen sc1
    v_mul_u32_u24 v15, 896, v14
    v_lshrrev_b32 v16, 4, v0
    v_lshl_add_u32 v15, v16, 4, v15
    """)
    for ks in range(14):
        out.append(I(f"buffer_load_dwordx4 v[{128+4*ks}:{131+4*ks}], v15, s[68:71], 0 offen offset:{64*ks}"))
    out += L(f"""
    v_and_b32 v19, 15, v0
    v_lshrrev_b32 v19, 2, v19
    v_lshl_add_u32 v19, v16, 3, v19
    v_lshlrev_b32 v19, 5, v19
    v_and_b32 v20, 3, v0
    v_lshl_add_u32 v19, v20, 3, v19
    v_add_u32 v19, {lds}, v19
    """) + [WAITV(["HW", "KVST"]), I("s_barrier")] + list(after)
    for mt in range(2):
        for ks in range(14):
            for j in range(2):
                r = mt * 56 + ks * 4 + 2 * j
                out.append(I(f"ds_read_b64_tr_b16 a[{r}:{r+1}], v19 offset:{mt * 14336 + ks * 1024 + j * 128}"))
    for mt in range(2):
        for ks in range(14):
            d = R("v", 24 + 4 * mt, 4)
            out.append(mfma(d, R("v", 128 + 4 * ks, 4), R("a", mt * 56 + ks * 4, 4), d if ks else "0"))
    out += L("""
    v_cvt_pk_bf16_f32 v24, v24, v25
    v_cvt_pk_bf16_f32 v28, v28, v29
    v_lshlrev_b32 v20, 16, v24
    v_and_b32 v21, 0xffff0000, v24
    v_mov_b32 v22, v20
    v_mov_b32 v23, v21
    """) + sigmoid(22, 26) + sigmoid(23, 27) + L("""
    v_mul_f32 v20, v20, v22
    v_mul_f32 v21, v21, v23
    v_cvt_pk_bf16_f32 v24, v20, v21
    v_lshlrev_b32 v20, 16, v24
    v_and_b32 v21, 0xffff0000, v24
    v_lshlrev_b32 v22, 16, v28
    v_and_b32 v23, 0xffff0000, v28
    v_mul_f32 v20, v20, v22
    v_mul_f32 v21, v21, v23
    v_cvt_pk_bf16_f32 v24, v20, v21
    v_lshlrev_b32 v20, 16, v24
    v_and_b32 v21, 0xffff0000, v24
    """)
    out += [I(f"v_mov_b32 v{32+n}, 0") for n in range(4)]
    for f in range(16):
        out += L(f"""v_readlane_b32 s80, v20, {f}
        v_readlane_b32 s81, v21, {f}
        v_lshlrev_b32 v22, 16, v{100+f}
        v_and_b32 v23, 0xffff0000, v{100+f}
        v_fmac_f32 v32, s80, v22
        v_fmac_f32 v33, s80, v23
        v_fmac_f32 v34, s81, v22
        v_fmac_f32 v35, s81, v23""")
    out += L(f"""
    s_mul_i32 s77, s{sWAVE}, 448
    s_mul_i32 s78, s76, 3584
    s_add_u32 s77, s77, s78
    s_add_u32 s77, s77, {WS_Y}
    v_lshlrev_b32 v22, 3, v0
    s_mov_b32 exec_hi, 0x00ffffff
    buffer_store_dwordx2 v[32:33], v22, {WS}, s77 offen sc1
    buffer_store_dwordx2 v[34:35], v22, {WS}, s77 offen offset:1792 sc1
    s_mov_b64 exec, -1
    v_cvt_pk_bf16_f32 v18, v18, v18
    v_and_b32 v18, 0xffff0000, v18
    """) + sigmoid(18, 22) + L(f"""
    v_cvt_pk_bf16_f32 v18, v18, v18
    v_and_b32 v18, 0xffff0000, v18
    s_mov_b32 s77, {WS_SEL}
    s_or_b32 s78, s76, s{sWAVE}
    s_cmp_eq_u32 s78, 0
    s_cselect_b64 exec, 3, 0
    buffer_store_dword v14, v11, {WS}, s77 offen sc1 ; nocount
    buffer_store_dword v18, v11, {WS}, s77 offen offset:8 sc1 ; nocount
    s_mov_b64 exec, -1
    s_lshl_b32 s39, s76, 2
    s_add_u32 s39, s39, {WS_FH}
    """)
    return out

FH0_LOAD = f"buffer_load_dword v24, off, {WS}, s79 sc1"
FOP_LOAD = f"buffer_load_dword v9, v14, {WS}, s46 offen sc1"
EPAR, NE = 0, 7
def sel_a(vl16):
    return L(f"""
    {f's_and_b32 s79, s{sBM}, 1' + chr(10) + 's_lshl_b32 s79, s79, 13' + chr(10) + f's_add_u32 s79, s79, {WS_FL}' if NUMA.fl else f's_mov_b32 s79, {WS_FL}'}
    {FH0_LOAD}
    v_lshrrev_b32 v0, 4, v{vl16}
    v_and_b32 v14, 15, v0
    v_lshlrev_b32 v14, 2, v14
    v_lshrrev_b32 v11, 4, v0
    {GPERM}
    {srd(52, 96, 2048*896)}
    {f's_and_b32 s74, s{sH}, 1' if EPAR < 2 else f's_lshr_b32 s74, s{sH}, 3'}
    s_xor_b32 s74, s74, {EPAR & 1}
    s_mul_i32 s67, s74, {14 - 2 * NE}
    s_mul_i32 s74, s74, {NE}
    s_add_u32 s74, s74, s{sWAVE}
    s_lshl_b32 s75, s74, 6
    s_add_u32 s76, s75, 256
    s_add_u32 s67, s67, {NE - 5}
    s_sub_u32 s67, s67, s{sWAVE}
    s_and_b32 s67, s67, {OOB}
    s_or_b32 s76, s76, s67
    v_or_b32 v27, s67, v{vl16}
    v_add_u32 v27, 4096, v27
    """)
def sel_b(tag):
    return L(f"""
    v_cmp_gt_u32 vcc, {SELLV}, v24
    s_mov_b32 s65, {WS_SEL}
    s_cbranch_vccnz L_fhs{tag}
    L_fhr{tag}:
    buffer_load_dword v25, v14, {WS}, s65 offen sc1
    """)
def sel_c():
    return L("""
    v_readlane_b32 s84, v25, 0
    v_readlane_b32 s85, v25, 1
    v_mov_b32 v24, 0x3f80
    v_mov_b32 v25, 0x3f800000
    """)
RS = [dict(row=10, off=12, g=15, x=16, b=32, acc=48), dict(row=29, off=28, g=26, x=96, b=80, acc=64)]
OSF = ''
GPERM = ''
SWAP = False
WI = False
ROWMAP = 's_lshl_b32 s73, s72, 4'
SELLV = 4
def red_a(vl16):
    out = L(f"""
    s_lshl_b32 s64, s{sJ}, 1
    s_lshr_b32 s65, s{sH}, 3
    s_add_u32 s46, s64, s65
    s_mul_i32 s46, s46, {FSTR}
    s_and_b32 s65, s{sH}, 7
    s_lshl_b32 s65, s65, 7
    s_add_u32 s46, s46, s65
    s_add_u32 s46, s46, {WS_FOP}
    v_and_b32 v14, 31, v0
    v_lshlrev_b32 v14, 2, v14
    {FOP_LOAD}
    s_sub_u32 s64, 15, s64
    {f's_lshr_b32 s72, s{sH}, 1' if EPAR < 2 else f's_and_b32 s72, s{sH}, 7'}
    s_mul_i32 s77, s{sJ}, {16 * OP_HEAD}
    s_mul_i32 s78, s72, 14336
    s_add_u32 s77, s77, s78
    s_lshl_b32 s78, s74, 10
    s_add_u32 s77, s77, s78
    s_add_u32 s77, s77, {WS_OP}
    s_sub_u32 s78, s64, 1
    s_mul_i32 s78, s78, {16 * OP_HEAD}
    s_add_u32 s78, s78, s77
    {ROWMAP}
    s_lshl_b32 s65, s{sJ}, 7
    s_add_u32 s73, s73, s65
    s_lshl_b32 s64, s64, 7
    v_and_b32 v10, 15, v0
    v_add_u32 v10, s73, v10
    v_add_u32 v29, s64, v10
    s_mov_b32 s64, {WS_RG + 64}
    """)
    for r in RS:
        out += L(f"""
        v_mul_u32_u24 v{r['off']}, 896, v{r['row']}
        v_lshl_add_u32 v{r['off']}, v11, 4, v{r['off']}
        v_lshrrev_b32 v13, 4, v{r['row']}
        v_lshlrev_b32 v13, 5, v13
        v_and_b32 v104, 15, v{r['row']}
        v_add_lshl_u32 v13, v13, v104, 2
        buffer_load_dword v{r['g']}, v13, {WS}, s64 offen sc1
        buffer_load_dwordx4 v[{r['x']}:{r['x']+3}], v{r['off']}, s[56:59], s75 offen
        buffer_load_dwordx4 v[{r['x']+4}:{r['x']+7}], v{r['off']}, s[56:59], s76 offen
        """)
    return out + [I(f"v_mov_b32 v{48+n}, 0") for n in range(32)]
def red_b(t):
    r = RS[t]
    return [i for w in range(8) for i in L(f"v_lshlrev_b32 v{r['b']+2*w}, 16, v{r['x']+w}\nv_and_b32 v{r['b']+1+2*w}, 0xffff0000, v{r['x']+w}")] + L(f"""
    v_sub_f32 v13, 1.0, v{r['g']}
    v_cmp_eq_u32 s[80:81], s84, v{r['row']}
    v_cmp_eq_u32 s[82:83], s85, v{r['row']}
    s_or_b64 vcc, s[80:81], s[82:83]
    s_cbranch_vccnz L_moe{t}
    L_moe_ret{t}:
    """) + [I(f"v_mul_f32 v{r['b']+e}, v13, v{r['b']+e}") for e in range(16)]
def red_main(vl16, st=lambda: [], lag=6, early=True, sent=True):
    out = L(f"""
    v_cmp_eq_u32 vcc, 1, v9
    s_mov_b32 s91, {SPIN_MAX}
    s_mov_b32 s69, 0
    s_mov_b32 s70, vcc_lo
    s_mov_b32 s68, vcc_lo
    """)
    ring = [16, 17, 18, 19, 48, 49, 50, 51]; assert lag < 8
    def acc(k):
        d = lambda t: [i for w in range(8) for i in L(f"v_dot2c_f32_bf16 v{RS[t]['acc']+2*w}, v{128+8*(k%16)+w}, v24\nv_dot2c_f32_bf16 v{RS[t]['acc']+1+2*w}, v{128+8*(k%16)+w}, v25")]
        if sent:
            r = 128 + 8 * (k % 16); d0 = d
            tst = f"v_max3_u32 v13, v{r}, v{r+1}, v{r+2}\nv_max3_u32 v104, v{r+3}, v{r+4}, v{r+5}\nv_max3_u32 v13, v13, v{r+6}, v{r+7}\nv_max_u32 v13, v13, v104\nv_cmp_eq_u32 vcc, -1, v13"
            d = lambda t: d0(0) if t == 0 else L(tst + f"\ns_cbranch_vccnz L_rz{k}\nL_rw{k}:") + d0(1)
            far.extend(L(f"""L_rz{k}:
            buffer_load_dwordx4 v[{r}:{r+3}], v{vl16}, {WS}, s{ring[k % 8]} offen sc1
            buffer_load_dwordx4 v[{r+4}:{r+7}], v27, {WS}, s{ring[k % 8]} offen sc1
            s_waitcnt vmcnt(0)
            {tst}
            s_sub_u32 s91, s91, 1
            s_cbranch_scc1 L_rw{k}
            s_cbranch_vccnz L_rz{k}
            s_branch L_rw{k}"""))
        f = 0 if k < 16 else 1
        return ([NEED(R("v", 128 + 8 * (k % 16), 8))] + L(f"s_bitcmp{1 - f}_b32 s69, {k}\ns_cbranch_scc1 L_rx{k}") + d(f) + L(f"L_ry{k}:"),
                L(f"L_rx{k}:") + d(1 - f) + L(f"s_branch L_ry{k}"))
    def fin(t, note=""):
        r = RS[t]; o = []
        for u in range(2):
            if SWAP: o += [I("s_nop 2")] + [I(f"v_permlane16_swap_b32 v{r['acc']+8*u+e}, v{r['acc']+8*u+4+e}") for e in range(4)]
            o += [I(f"v_fmac_f32 v{r['b']+8*u+e}, v{r['g']}, v{r['acc']+8*u+e}") for e in range(8)]
            o += [I(f"v_cvt_pk_bf16_f32 v{r['x']+4*u+w}, v{r['b']+8*u+2*w}, v{r['b']+1+8*u+2*w}") for w in range(4)]
            o.append(I(f"buffer_store_dwordx4 v[{r['x']+4*u}:{r['x']+3+4*u}], v{r['off']}, s[52:55], s{75+u} offen {OSF}{note}"))
        return o
    far = []
    for k in range(32 + lag):
        if k < 32:
            out += L(f"""s_cmp_lg_u32 s70, 0
            s_cbranch_scc1 L_rk{k}
            s_call_b64 s[36:37], L_rpoll
            L_rk{k}:
            s_ff1_i32_b32 s71, s70
            s_bitset0_b32 s70, s71
            s_cmp_ge_u32 s71, 16
            s_cselect_b32 s72, s78, s77
            s_cselect_b32 s73, {hex(1 << k)}, 0
            {'s_bitcmp1_b32 s71, 3' + chr(10) + f's_cselect_b32 s72, {OOB}, s72' if WI else ''}
            s_mul_i32 s71, s71, {OP_HEAD}
            s_add_u32 s{ring[k % 8]}, s71, s72
            buffer_load_dwordx4 v[{128+8*(k%16)}:{131+8*(k%16)}], v{vl16}, {WS}, s{ring[k % 8]} offen sc1
            s_or_b32 s69, s69, s73
            buffer_load_dwordx4 v[{132+8*(k%16)}:{135+8*(k%16)}], v27, {WS}, s{ring[k % 8]} offen sc1""")
        if k in (1, 2): out += red_b(k - 1)
        if k == 31: out += st()
        if k >= lag:
            a_, f_ = acc(k - lag); out += a_; far += f_
        if early and k == 27:
            out += L(f"""s_and_b32 s71, s69, {hex((1 << (k - lag + 1)) - 1)}
            s_bcnt1_i32_b32 s71, s71
            s_cmp_eq_u32 s71, {k - lag + 1 - 16}
            s_cselect_b32 s66, 1, 0
            s_cbranch_scc0 L_rne""") + fin(0, " ; nocount") + L("L_rne:")
    out += st() + L("s_nop 1") + fin(1)
    if early: out += L("s_cmp_eq_u32 s66, 1\ns_cbranch_scc1 L_rdone")
    out += fin(0) + L("L_rdone:")
    return out, far
RSL = 1
def red_poll():
    return L(f"""
    L_rpoll0:
    s_sleep {RSL}
    L_rpoll:
    {FOP_LOAD}
    s_waitcnt vmcnt(0)
    v_cmp_eq_u32 vcc, 1, v9
    s_sub_u32 s91, s91, 1
    s_cselect_b32 s70, -1, 0
    s_or_b32 s70, s70, vcc_lo
    s_andn2_b32 s70, s70, s68
    s_cbranch_scc0 L_rpoll0
    s_or_b32 s68, s68, s70
    s_setpc_b64 s[36:37]
    """)
def red_moe():
    out = []
    for t in range(2):
        out += L(f"L_moe{t}:\ns_call_b64 s[36:37], L_moe") + [I(f"v_add_f32 v{RS[t]['b']+e}, v{108+e}, v{RS[t]['b']+e}") for e in range(16)] + L(f"s_mov_b64 exec, -1\ns_branch L_moe_ret{t}")
    out += L(f"""
    L_moe:
    v_min_u32 v104, 27, v0
    v_lshlrev_b32 v104, 2, v104
    s_mov_b32 s64, {WS_FH + 512}
    """) + poll_flags(64, 64, "L_pfy", 105, 104, 65) + L(f"""
    s_or_b64 exec, s[80:81], s[82:83]
    v_mov_b32 v104, 1792
    v_cndmask_b32 v104, v104, 0, s[80:81]
    v_lshl_add_u32 v104, v11, 5, v104
    s_lshl_b32 s88, s75, 1
    s_add_u32 s88, s88, {WS_YF}
    buffer_load_dwordx4 v[108:111], v104, {WS}, s88 offen sc1
    buffer_load_dwordx4 v[112:115], v104, {WS}, s88 offen offset:16 sc1
    buffer_load_dwordx4 v[116:119], v104, {WS}, s88 offen offset:512 sc1
    buffer_load_dwordx4 v[120:123], v104, {WS}, s88 offen offset:528 sc1
    s_waitcnt vmcnt(0)
    s_setpc_b64 s[36:37]
    """)
    return out
def y_reduce():
    out = L(f"""
    L_yred:
    s_lshl_b32 s89, s{sH}, 1
    s_add_u32 s89, s89, s{sWAVE}
    s_cmp_ge_u32 s89, 28
    s_cbranch_scc1 L_yred_ret
    v_lshrrev_b32 v20, 4, v7
    v_lshrrev_b32 v21, 3, v20
    v_mul_u32_u24 v21, {FSTR}, v21
    v_and_b32 v22, 7, v20
    v_lshl_add_u32 v21, v22, 7, v21
    s_mov_b32 s64, {WS_FL}
    s_mov_b32 s88, {WS_FL + 8 * FSTR}
    s_mov_b32 s91, {SPIN_MAX}
    L_yp:
    buffer_load_dword v22, v21, {WS}, s64 offen sc1
    buffer_load_dword v23, v21, {WS}, s88 offen sc1
    s_waitcnt vmcnt(0)
    v_min_u32 v22, v22, v23
    v_cmp_gt_u32 vcc, 4, v22
    s_sub_u32 s91, s91, 1
    s_cbranch_scc1 L_ypx
    s_cbranch_vccnz L_yp
    L_ypx:
    s_cmp_lt_u32 s89, 14
    s_cselect_b32 s64, 8, 12
    s_add_u32 s64, s64, {WS_SEL}
    buffer_load_dword v23, off, {WS}, s64 sc1
    v_lshrrev_b32 v21, 3, v20
    v_mul_u32_u24 v21, 3584, v21
    v_and_b32 v22, 7, v20
    v_lshl_add_u32 v21, v22, 4, v21
    s_lshl_b32 s88, s89, 7
    s_add_u32 s90, s88, {WS_YF}
    s_add_u32 s88, s88, {WS_Y}
    """)
    for n in range(14):
        out += L(f"buffer_load_dwordx4 v[{64+4*n}:{67+4*n}], v21, {WS}, s88 offen sc1\ns_add_u32 s88, s88, {8 * 3584}")
    out += L("s_branch L_yred_ret\nL_yred2:\ns_cmp_ge_u32 s89, 28\ns_cbranch_scc1 L_yred2_ret\nv_mov_b32 v22, 1\ns_waitcnt vmcnt(0)")
    acc = [64 + e for e in range(4)]
    for n in range(1, 14): out += [I(f"v_add_f32 v{a}, v{a + 4 * n}, v{a}") for a in acc]
    out += [I(f"v_add_f32 v{a}, v{a}, v{a} row_ror:8 row_mask:0xf bank_mask:0xf") for a in acc]
    for sw in ("v_permlane16_swap_b32", "v_permlane32_swap_b32"):
        out += [I(f"v_mov_b32 v{a + 4}, v{a}") for a in acc]
        out += [I(f"{sw} v{a + 4}, v{a}") for a in acc]
        out += [I(f"v_add_f32 v{a}, v{a + 4}, v{a}") for a in acc]
    for rep in range(2):
        for p in (64, 66):
            out += L(f"v_cvt_pk_bf16_f32 v21, v{p}, v{p+1}\nv_lshlrev_b32 v{p}, 16, v21\nv_and_b32 v{p+1}, 0xffff0000, v21")
        if rep == 0: out += [I(f"v_mul_f32 v{a}, v23, v{a}") for a in acc]
    out += L(f"""
    s_mov_b64 exec, 0xff
    buffer_store_dwordx4 v[64:67], v7, {WS}, s90 offen sc1
    s_lshl_b32 s89, s89, 2
    s_add_u32 s89, s89, {WS_FH + 512}
    s_mov_b64 exec, 1
    s_waitcnt vmcnt(0)
    buffer_store_dword v22, off, {WS}, s89 sc1
    s_mov_b64 exec, -1
    s_branch L_yred2_ret
    """)
    return out


JUNK = 240
NTT = "nt"
def touch(vaddr, srdreg, soff, imm=0, nt=True):
    return I(f"buffer_load_dword a{JUNK}, v{vaddr}, s[{srdreg}:{srdreg+3}], {soff} offen offset:{imm} {NTT if nt else ('sc1' if srdreg == S_WS else '')}", tag="TOUCH")
def code_addr(v, t):
    if v == t: return L(f"v_and_b32 v{v}, 48, v0\nv_lshlrev_b32 v{v}, 17, v{v}\nv_or_b32 v{v}, v{v}, v0\nv_lshl_add_u32 v{v}, v{v}, 7, s95")
    return L(f"""
    v_lshl_add_u32 v{t}, v0, 7, s95
    v_and_b32 v{v}, 48, v0
    v_lshl_add_u32 v{v}, v{v}, 24, v{t}
    """)
def code_touch():
    return L(f"""
    s_getpc_b64 s[76:77]
    L_pc0:
    s_and_b32 s77, s77, 0xffff
    s_mov_b32 s78, L_code_end-L_pc0
    s_mov_b32 s79, 0x20000
    s_lshr_b32 s64, s2, 3
    s_lshl_b32 s64, s64, 2
    s_add_u32 s64, s64, s{sWAVE}
    s_lshl_b32 s95, s64, 11
    """) + code_addr(28, 29) + [touch(28, 76, 0, nt=False)]
def kv_touch_setup(sKV):
    return L(f"""
    s_lshr_b32 s64, s{sH}, 3
    s_lshl_b32 s64, s64, 1
    s_add_u32 s64, s64, s{sKV}
    s_lshl_b32 s64, s64, 2
    s_add_u32 s64, s64, s{sWAVE}
    s_lshl_b32 s64, s64, 15
    v_lshrrev_b32 v28, 1, v0
    v_and_b32 v29, 1, v0
    v_lshlrev_b32 v29, 7, v29
    v_lshl_add_u32 v28, v28, 11, v29
    v_add_u32 v24, s64, v28
    v_and_b32 v28, 32, v0
    v_lshl_add_u32 v24, v28, 24, v24
    s_lshr_b32 s64, s{sJ}, 1
    s_lshl_b32 s64, s64, 2
    s_add_u32 s64, s64, s{sWAVE}
    s_lshl_b32 s64, s64, 15
    v_lshrrev_b32 v28, 2, v0
    v_and_b32 v29, 3, v0
    v_lshlrev_b32 v29, 7, v29
    v_lshl_add_u32 v28, v28, 13, v29
    v_add_u32 v25, s64, v28
    v_and_b32 v28, 48, v0
    v_lshl_add_u32 v25, v28, 24, v25
    """)
def kv_touch(sc, sw):
    return [touch(24, sc, 0), touch(25, sw, 0), I("v_add_u32 v24, 256, v24"), I(f"v_add_u32 v25, {128 * 8192}, v25")]
def q_touch(swq, sx, px):
    pre = L(f"""
    s_lshl_b32 s64, s{sJ}, 2
    s_add_u32 s64, s64, s{sWAVE}
    s_mul_i32 s64, s64, {7 * 8192}
    v_lshrrev_b32 v28, 2, v0
    v_and_b32 v29, 3, v0
    v_lshlrev_b32 v29, 7, v29
    v_lshl_add_u32 v28, v28, 13, v29
    v_add_u32 v16, s64, v28
    v_mov_b32 v29, 0x20000000
    v_cmp_gt_u32 vcc, 28, v0
    s_lshl_b32 s64, s{sJ}, 1
    s_lshr_b32 s72, s{sH}, 3
    v_cndmask_b32 v16, v29, v16, vcc
    s_add_u32 s64, s64, s72
    s_lshl_b32 s64, s64, 2
    s_add_u32 s64, s64, s{sWAVE}
    s_mul_i32 s64, s64, 14336
    v_lshl_add_u32 v17, v0, 7, s64
    v_cmp_gt_u32 vcc, 56, v0
    s_nop 1
    v_cndmask_b32 v17, v29, v17, vcc
    s_mov_b32 s67, 7168
    """)
    return pre, [touch(16, swq, 0)] + ([touch(17, sx, 0), touch(17, sx, "s67")] if px else [])
def h_touch_srd():
    return L(f"""
    s_load_dwordx4 s[80:83], s[0:1], {A_WG}
    s_load_dwordx2 s[84:85], s[0:1], {A_WD}
    """)
def h_touch():
    return L(f"""
    s_lshr_b32 s64, s2, 3
    s_lshl_b32 s64, s64, 2
    s_add_u32 s64, s64, s{sWAVE}
    s_cmp_lt_u32 s64, 64
    s_cselect_b32 s72, s80, s82
    s_cselect_b32 s73, s81, s83
    {srd(60, 72, 448*3584)}
    {srd(68, 84, 1792*896)}
    s_and_b32 s72, s64, 63
    s_mul_i32 s72, s72, {7 * 3584}
    s_and_b32 s73, s{sH}, 7
    s_mul_i32 s74, s73, 448
    s_add_u32 s72, s72, s74
    s_and_b32 s72, s72, 0xffffff80
    v_lshrrev_b32 v28, 2, v0
    v_mul_u32_u24 v28, 3584, v28
    v_and_b32 v29, 3, v0
    v_lshl_add_u32 v28, v29, 7, v28
    v_add_u32 v28, s72, v28
    v_mov_b32 v29, 0x20000000
    v_cmp_gt_u32 vcc, 28, v0
    s_mul_i32 s73, s73, {224 * 896}
    s_mul_i32 s64, s64, 1664
    v_cndmask_b32 v30, v29, v28, vcc
    s_add_u32 s64, s64, s73
    v_lshl_add_u32 v28, v0, 7, s64
    v_cmp_gt_u32 vcc, 13, v0
    s_nop 1
    v_cndmask_b32 v31, v29, v28, vcc
    """), [touch(30, 60, 0), touch(31, 68, 0)]


def bg_r_loads():
    return L(f"""
    s_lshl_b32 s64, s2, 2
    s_add_u32 s64, s64, s{sWAVE}
    s_mul_i32 s72, s64, 1792
    v_mov_b32 v28, {OOB}
    v_cmp_gt_u32 vcc, 56, v0
    s_nop 0
    v_cndmask_b32 v28, v28, v7, vcc
    buffer_load_dwordx4 v[16:19], v28, s[56:59], s72 offen
    buffer_load_dwordx4 v[20:23], v28, s[56:59], s72 offen offset:896
    buffer_load_dwordx4 a[176:179], v28, s[60:63], 0 offen
    buffer_load_dwordx4 a[180:183], v28, s[68:71], 0 offen
    """)
def bg_r_compute():
    out = [I(f"v_mov_b32 v{28+r}, 0") for r in range(4)]
    for w in range(4):
        out += L(f"""v_accvgpr_read_b32 v26, a{176+w}
        v_accvgpr_read_b32 v27, a{180+w}
        v_dot2c_f32_bf16 v28, v{16+w}, v26
        v_dot2c_f32_bf16 v29, v{20+w}, v26
        v_dot2c_f32_bf16 v30, v{16+w}, v27
        v_dot2c_f32_bf16 v31, v{20+w}, v27""")
    out += wave_sum([28, 29, 30, 31], [16, 17, 18, 19])
    out += L(f"""
    v_cmp_eq_u32 vcc, 0, v0
    s_lshl_b32 s64, s2, 3
    s_lshl_b32 s72, s{sWAVE}, 1
    v_cndmask_b32 v28, v29, v28, vcc
    v_cndmask_b32 v30, v31, v30, vcc
    s_add_u32 s64, s64, s72
    v_add_u32 v16, s64, v0
    v_ashrrev_i32 v17, 31, v28
    v_or_b32 v17, 0x80000000, v17
    v_xor_b32 v17, v17, v28
    v_and_b32 v17, 0xfffff800, v17
    v_sub_u32 v18, 2047, v16
    v_or_b32 v17, v17, v18
    """) + sigmoid(30, 31) + L(f"""
    s_lshl_b32 s72, s{sWAVE}, 3
    s_add_u32 s72, s72, {LDS_R}
    v_lshl_add_u32 v16, v0, 2, s72
    v_mov_b32 v18, {LDS_R + 128}
    v_cmp_gt_u32 vcc, 2, v0
    s_nop 0
    v_cndmask_b32 v16, v18, v16, vcc
    ds_write_b32 v16, v17
    ds_write_b32 v16, v28 offset:32
    ds_write_b32 v16, v30 offset:64
    """)
    return out
def bg_r_store():
    return L(f"""
    v_and_b32 v16, 31, v0
    v_lshlrev_b32 v16, 2, v16
    v_add_u32 v17, {LDS_R}, v16
    ds_read_b32 v17, v17
    s_cmp_eq_u32 s{sWAVE}, 0
    s_cselect_b32 s64, 0, {OOB}
    v_and_b32 v18, 32, v0
    v_lshl_add_u32 v16, v18, 24, v16
    v_or_b32 v16, s64, v16
    s_lshl_b32 s72, s2, 7
    s_add_u32 s72, s72, {WS_R}
    s_cmp_lt_u32 s2, 14
    s_cselect_b32 s64, s64, {OOB}
    v_or_b32 v18, s64, v7
    v_mov_b32 v20, 0
    v_mov_b32 v21, 0
    v_mov_b32 v22, 0
    v_mov_b32 v23, 0
    s_and_b32 s73, s2, 15
    s_lshl_b32 s73, s73, 10
    s_add_u32 s73, s73, {WS_FKV}
    buffer_store_dword v17, v16, {WS}, s72 offen sc1
    """) + [I(f"buffer_store_dwordx4 v[20:23], v18, {WS}, s73 offen sc1", tag="RST")]
def lane0_wave0(v):
    return L(f"""
    v_or_b32 v{v}, s{sWAVE}, v0
    v_min_u32 v{v}, 1, v{v}
    v_lshlrev_b32 v{v}, 29, v{v}
    """)
def bg_r_signal():
    return lane0_wave0(16) + L("v_mov_b32 v17, 1") + [WAITV("RST"), I(f"buffer_atomic_add v17, v16, s[{S_DBG}:{S_DBG+3}], 0 offen sc1")]
def bg_wo_dma():
    pre = L(f"""
    v_lshrrev_b32 v28, 5, v0
    v_mul_u32_u24 v28, 896, v28
    v_and_b32 v29, 31, v0
    v_lshl_add_u32 v28, v29, 4, v28
    v_mov_b32 v30, {OOB}
    v_cmp_gt_u32 vcc, 28, v29
    s_lshr_b32 s64, s{sJ}, 1
    s_lshl_b32 s64, s64, 5
    v_cndmask_b32 v28, v30, v28, vcc
    s_lshl_b32 s72, s{sH}, 8
    s_add_u32 s64, s64, s72
    s_lshl_b32 s72, s{sWAVE}, 3
    s_add_u32 s64, s64, s72
    s_mul_i32 s64, s64, 896
    s_and_b32 s72, s{sJ}, 1
    s_mul_i32 s72, s72, 448
    s_add_u32 s67, s64, s72
    v_add_u32 v29, {2*896 - 1024}, v28
    v_add_u32 v30, {2*(2*896 - 1024)}, v28
    v_add_u32 v31, {3*(2*896 - 1024)}, v28
    """)
    un = [I("s_add_u32 m0, s23, 131072")] + [I(f"buffer_load_dwordx4 v{28+j}, s[60:63], s67 offen offset:{1024*j} nt lds", tag="WO") for j in range(4)] + [I("s_nop 0")]
    return pre, un
def bg_wo_finish():
    out = wo_setup()[:-2] + L(f"""
    s_cmp_lt_u32 s{sWAVE}, 2
    s_cselect_b32 s75, 0, {OOB}
    """) + wo_reads()
    st = [I(f"buffer_store_dwordx4 a[{192+4*n}:{195+4*n}], v{24 if n == 3 else 7}, {WS}, s{76+n} offen sc1", tag="KVST") for n in range(4)]
    return out, [I('v_or_b32 v24, s75, v7')] + st
def c_touch_setup():
    return L(f"""
    s_lshl_b32 s64, s2, 2
    s_add_u32 s64, s64, s{sWAVE}
    s_lshl_b32 s64, s64, 12
    v_lshrrev_b32 v28, 2, v0
    v_and_b32 v29, 3, v0
    v_lshlrev_b32 v29, 7, v29
    v_lshl_add_u32 v28, v28, 11, v29
    v_add_u32 v24, s64, v28
    v_and_b32 v28, 56, v0
    v_lshl_add_u32 v24, v28, 24, v24
    """)
def w_touch_setup(t0, t1):
    return L(f"""
    s_and_b32 s64, s{sJ}, 7
    s_lshl_b32 s64, s64, 2
    s_add_u32 s64, s64, s{sWAVE}
    s_lshl_b32 s64, s64, 14
    v_lshrrev_b32 v{t0}, 2, v0
    v_and_b32 v{t1}, 3, v0
    v_lshlrev_b32 v{t1}, 7, v{t1}
    v_lshl_add_u32 v{t0}, v{t0}, 13, v{t1}
    v_add_u32 v{t1}, s64, v{t0}
    v_and_b32 v{t0}, 56, v0
    v_lshl_add_u32 v{t0}, v{t0}, 24, v{t1}
    v_accvgpr_write_b32 a241, v{t0}
    """)
def w_touch(sw, t):
    return [I(f"s_mov_b32 s65, {t * 64 * 8192}"), I("v_accvgpr_read_b32 v26, a241"), touch(26, sw, "s65")]
def c_touch(sc, quarter):
    return [touch(24, sc, 0, quarter * 512, nt=False)]


def z_store():
    return L(f"""
    s_lshl_b32 s64, s{sJ}, 4
    s_add_u32 s64, s64, s{sH}
    s_lshl_b32 s64, s64, 2
    s_add_u32 s64, s64, s{sWAVE}
    s_cmp_lt_u32 s64, {NZERO}
    s_cselect_b32 s39, 0, {OOB}
    s_min_u32 s64, s64, {NZERO}
    s_lshl_b32 s38, s64, 2
    s_max_u32 s67, s64, 8
    s_sub_u32 s67, s67, 8
    s_mul_i32 s67, s67, {FSTR - 1024}
    s_lshl_b32 s64, s64, 10
    s_add_u32 s64, s64, s67
    s_add_u32 s73, s64, {WS_KEY}
    v_or_b32 v64, s39, v7
    v_mov_b32 v68, 0
    v_mov_b32 v69, 0
    v_mov_b32 v70, 0
    v_mov_b32 v71, 0
    """) + [I(f"buffer_store_dwordx4 v[68:71], v64, {WS}, s73 offen offset:{1024 * n} sc1", tag="ZST") for n in range(3)] + (
        [I("s_add_u32 s73, s73, 8192")] + [I(f"buffer_store_dwordx4 v[68:71], v64, {WS}, s73 offen offset:{1024 * n} sc1", tag="ZST") for n in range(3)] if NUMA.fl else [])
def z_signal():
    return L(f"""
    v_min_u32 v16, 1, v0
    v_lshlrev_b32 v16, 29, v16
    v_or_b32 v16, s39, v16
    v_mov_b32 v17, 1
    """) + [WAITV("ZST"), I(f"buffer_store_dword v17, v16, s[{S_DBG}:{S_DBG+3}], s38 offen offset:64 sc1")]
def z_load():
    return L(f"""
    v_min_u32 v16, {NZERO - 1 + 16 * NUMA.on}, v0
    v_lshlrev_b32 v16, 2, v16
    buffer_load_dword v17, v16, s[{S_DBG}:{S_DBG+3}], 0 offen offset:{0 if NUMA.on else 64} sc1
    """)
def z_check(tag):
    return L(f"""
    v_cmp_eq_u32 vcc, 0, v17
    s_nop 0
    s_cbranch_vccnz L_zs{tag}
    L_zr{tag}:
    """)
def spin_stub(label, ret, load, vt, sc=64, cmp_="v_cmp_ne_u32 vcc, 1, v{vt}"):
    return L(f"""
    {label}:
    s_mov_b32 s{sc}, {SPIN_MAX}
    {label}_l:
    s_sleep 2
    {load}
    s_sub_u32 s{sc}, s{sc}, 1
    s_cbranch_scc1 {label}_x
    s_waitcnt vmcnt(0)
    {cmp_.format(vt=vt)}
    s_cbranch_vccnz {label}_l
    {label}_x:
    s_waitcnt vmcnt(0)
    s_branch {ret}
    """)
def z_stub(tag):
    return spin_stub(f"L_zs{tag}", f"L_zr{tag}", f"buffer_load_dword v17, v16, s[{S_DBG}:{S_DBG+3}], 0 offen offset:{0 if NUMA.on else 64} sc1", 17, 64, "v_cmp_eq_u32 vcc, 0, v{vt}")
def rg_store():
    return L(f"""
    v_and_b32 v20, 31, v0
    v_lshlrev_b32 v20, 2, v20
    v_add_u32 v21, {LDS_R}, v20
    ds_read_b32 v19, v21
    ds_read_b32 v21, v21 offset:32
    s_cmp_eq_u32 s{sWAVE}, 0
    s_cselect_b32 s64, 0, {OOB}
    v_mov_b32 v22, {OOB}
    v_or_b32 v20, s64, v20
    v_cmp_gt_u32 vcc, 8, v0
    s_lshl_b32 s72, s2, 6
    s_add_u32 s72, s72, {WS_RG}
    v_cndmask_b32 v18, v22, v20, vcc
    v_cmp_gt_u32 vcc, 16, v0
    s_nop 0
    s_nop 0
    v_cndmask_b32 v20, v22, v20, vcc
    """) + [I(f"buffer_store_dword v21, v20, {WS}, s72 offen sc1", tag="RST")]
def key_store():
    return L(f"""
    s_lshl_b32 s72, s2, 5
    s_add_u32 s72, s72, {WS_KEY}
    """) + [WAITV("RST"), I(f"buffer_store_dword v19, v18, {WS}, s72 offen sc1")]
def lanes8(v):
    return f"v_and_b32 v28, 56, v0\nv_lshl_add_u32 v{v}, v28, 24, v{v}"
def wo_touch():
    pre = L(f"""
    s_lshr_b32 s64, s{sJ}, 1
    s_lshl_b32 s64, s64, 5
    s_lshl_b32 s72, s{sH}, 8
    s_add_u32 s64, s64, s72
    s_lshl_b32 s72, s{sWAVE}, 3
    s_add_u32 s64, s64, s72
    s_mul_i32 s64, s64, 896
    s_and_b32 s72, s{sJ}, 1
    s_mul_i32 s72, s72, 384
    s_add_u32 s64, s64, s72
    v_bfe_u32 v28, v0, 2, 2
    v_mul_u32_u24 v28, 896, v28
    v_and_b32 v29, 3, v0
    v_lshl_add_u32 v28, v29, 7, v28
    v_add_u32 v23, s64, v28
    v_and_b32 v28, 48, v0
    v_lshl_add_u32 v23, v28, 24, v23
    """)
    return pre, [[touch(23, 60, 0, n * 3584)] for n in range(2)]
def q_touch2(swq):
    pre = L(f"""
    s_lshl_b32 s64, s{sJ}, 2
    s_add_u32 s64, s64, s{sWAVE}
    s_mul_i32 s64, s64, {7 * 8192}
    v_bfe_u32 v28, v0, 2, 2
    v_and_b32 v29, 3, v0
    v_lshlrev_b32 v29, 7, v29
    v_lshl_add_u32 v28, v28, 13, v29
    v_add_u32 v23, s64, v28
    v_and_b32 v28, 48, v0
    v_lshl_add_u32 v23, v28, 24, v23
    """)
    return pre, [[touch(23, swq, 0), I(f"v_add_u32 v23, {4 * 8192}, v23")], [touch(23, swq, 0)]]
def h_touch2():
    pre = L(f"""
    s_lshr_b32 s64, s2, 3
    s_lshl_b32 s64, s64, 2
    s_add_u32 s64, s64, s{sWAVE}
    s_cmp_lt_u32 s64, 64
    s_cselect_b32 s72, s80, s82
    s_cselect_b32 s73, s81, s83
    {srd(60, 72, 448*3584)}
    {srd(68, 84, 1792*896)}
    s_and_b32 s72, s64, 63
    s_mul_i32 s72, s72, {7 * 3584}
    s_and_b32 s73, s{sH}, 7
    s_mul_i32 s74, s73, 448
    s_add_u32 s72, s72, s74
    s_and_b32 s72, s72, 0xffffff80
    v_bfe_u32 v28, v0, 2, 2
    v_mul_u32_u24 v28, 3584, v28
    v_and_b32 v29, 3, v0
    v_lshl_add_u32 v28, v29, 7, v28
    v_add_u32 v21, s72, v28
    v_and_b32 v28, 48, v0
    v_lshl_add_u32 v21, v28, 24, v21
    s_mul_i32 s73, s73, {224 * 896}
    s_mul_i32 s64, s64, 1664
    s_add_u32 s64, s64, s73
    v_lshl_add_u32 v22, v0, 7, s64
    v_lshl_add_u32 v22, v28, 24, v22
    """)
    return pre, [[touch(21, 60, 0), I(f"v_add_u32 v21, {4 * 3584}, v21")], [touch(21, 60, 0)], [touch(22, 68, 0)]]

def x_touch():
    pre = L(f"""
    s_xor_b32 s64, s2, 1
    s_lshl_b32 s64, s64, 2
    s_add_u32 s64, s64, s{sWAVE}
    s_mul_i32 s64, s64, 1792
    v_lshl_add_u32 v23, v0, 7, s64
    v_mov_b32 v28, {OOB}
    v_cmp_gt_u32 vcc, 14, v0
    s_nop 0
    s_nop 0
    v_cndmask_b32 v23, v28, v23, vcc
    """)
    return pre, [[touch(23, 56, 0, nt=False)]]

def x_touch2():
    pre = L(f"""
    s_lshl_b32 s64, s{sJ}, 1
    s_lshr_b32 s72, s{sH}, 3
    s_add_u32 s64, s64, s72
    s_lshl_b32 s64, s64, 2
    s_add_u32 s64, s64, s{sWAVE}
    s_mul_i32 s64, s64, 14336
    v_lshl_add_u32 v25, v0, 7, s64
    v_mov_b32 v28, {OOB}
    v_cmp_gt_u32 vcc, 28, v0
    s_nop 0
    s_nop 0
    v_cndmask_b32 v25, v28, v25, vcc
    """)
    return pre, [[touch(25, 56, 0, nt=False), I("v_add_u32 v25, 3584, v25")] for n in range(4)]
def flag_store(addr_sreg, va, vt, tag=None):
    return I(f"buffer_store_dword v{vt}, v{va}, {WS}, s{addr_sreg} offen sc1", tag=tag)

def q_touch3(swq):
    pre = L(f"""
    s_and_b32 s64, s{sJ}, 7
    s_lshl_b32 s64, s64, 2
    s_add_u32 s64, s64, s{sWAVE}
    s_mul_i32 s64, s64, {14 * 8192}
    v_bfe_u32 v28, v0, 2, 2
    v_and_b32 v29, 3, v0
    v_lshlrev_b32 v29, 7, v29
    v_lshl_add_u32 v28, v28, 13, v29
    v_add_u32 v23, s64, v28
    v_and_b32 v28, 48, v0
    v_lshl_add_u32 v23, v28, 24, v23
    """)
    return pre, [[touch(23, swq, 0, nt=False), I(f"v_add_u32 v23, {(4 if n < 2 else 2) * 8192}, v23")] for n in range(4)]


def wo2_dma():
    pre = L(f"""
    s_and_b32 s64, s{sJ}, 7
    s_lshl_b32 s72, s{sH}, 3
    s_add_u32 s64, s64, s72
    s_lshl_b32 s64, s64, 2
    s_add_u32 s64, s64, s{sWAVE}
    s_mul_i32 s67, s64, 7168
    s_mul_i32 s86, s{sWAVE}, 7168
    s_add_u32 s86, s86, 131072
    """)
    un = lambda o, n: [I(f"s_add_u32 m0, s86, {o}")] + [I(f"buffer_load_dwordx4 v7, s[60:63], s67 offen offset:{1024*j} nt lds", tag="WO") for j in range(n)] + [I("s_add_u32 s67, s67, 4096")]
    return pre, [un(0, 4), un(4096, 3)]
def wo2_reads():
    return L(f"""
    v_lshrrev_b32 v28, 2, v0
    v_mul_u32_u24 v28, 896, v28
    v_and_b32 v29, 3, v0
    v_lshl_add_u32 v28, v29, 4, v28
    s_lshr_b32 s64, s{sWAVE}, 1
    s_lshl_b32 s64, s64, 6
    s_and_b32 s72, s{sWAVE}, 1
    s_lshl_b32 s72, s72, 3
    s_add_u32 s64, s64, s72
    s_add_u32 s64, s64, 131072
    v_add_u32 v28, s64, v28
    s_lshl_b32 s94, s{sHP if NUMA.on else sH}, {21 if NUMA.on else 18}
    s_and_b32 s64, s{sJ}, 7
    s_lshl_b32 s64, s64, 10
    s_add_u32 s94, s94, s64
    s_lshl_b32 s64, s{sWAVE}, {13 + NUMA.on}
    s_add_u32 s94, s94, s64
    {f's_and_b32 s64, s{sWAVE}, 1' + chr(10) + 's_lshl_b32 s64, s64, 13' + chr(10) + 's_add_u32 s94, s94, s64' if NUMA.on and not NUMA.kv else ''}
    s_add_u32 s94, s94, {NUMA.WO if NUMA.on else WS_WO}
    """) + [I(f"ds_read_b64_tr_b16 a[{192+4*n+2*j}:{193+4*n+2*j}], v28 offset:{n*128 + j*14336}") for n in range(7) for j in range(2)]
WSF = 'sc1'
def wo2_stores():
    return [[I(f"s_add_u32 s3, s94, {n * 32768}"), I(f"buffer_store_dwordx4 a[{192+4*n}:{195+4*n}], v7, {WS}, s3 offen {WSF}", tag="KVST")] for n in range(7)]

def tlb_touch(srds, sel):
    out = L(f"""
    s_lshr_b32 s64, s2, 3
    s_lshl_b32 s64, s64, 2
    s_add_u32 s64, s64, s{sWAVE}
    s_and_b32 s64, s64, {sel}
    s_min_u32 s64, s64, 1
    s_lshl_b32 s64, s64, 29
    v_lshlrev_b32 v28, 21, v0
    v_or_b32 v28, s64, v28
    """)
    return out + [touch(28, r, 0, nt=False) for r in srds]


def r4_loads():
    return L(f"""
    s_lshl_b32 s30, s{sH}, 3
    s_add_u32 s30, s30, s{sJ}
    s_lshl_b32 s64, s30, 2
    s_add_u32 s64, s64, s{sWAVE}
    s_mul_i32 s72, s64, 3584
    v_mov_b32 v32, {OOB}
    v_cmp_gt_u32 vcc, 56, v0
    s_lshl_b32 s67, s64, 2
    s_nop 0
    v_cndmask_b32 v32, v32, v7, vcc
    """) + [I(f"buffer_load_dwordx4 v[{40+4*r}:{43+4*r}], v32, s[56:59], s72 offen offset:{896*r}") for r in range(4)] + L("""
    buffer_load_dwordx4 v[56:59], v32, s[60:63], 0 offen
    buffer_load_dwordx4 v[60:63], v32, s[68:71], 0 offen
    """)
def r4_compute():
    out = [I(f"v_mov_b32 v{72+r}, 0") for r in range(8)]
    for w in range(4):
        for m in range(2):
            for r in range(4): out.append(I(f"v_dot2c_f32_bf16 v{72+4*m+r}, v{40+4*r+w}, v{56+4*m+w}"))
    prs = [(72, 74), (73, 75), (76, 78), (77, 79)]
    out += [I(f"v_permlane32_swap_b32 v{a}, v{b}") for a, b in prs] + [I(f"v_add_f32 v{a}, v{a}, v{b}") for a, b in prs]
    out += L("v_lshrrev_b32 v80, 4, v0\nv_permlane16_swap_b32 v72, v73\nv_permlane16_swap_b32 v76, v77\nv_add_f32 v72, v72, v73\nv_add_f32 v76, v76, v77\nv_add_u32 v81, s67, v80")
    for sh in ("row_ror:8", "row_ror:4", "row_ror:2", "row_ror:1"):
        out += L(f"v_add_f32 v72, v72, v72 {sh} row_mask:0xf bank_mask:0xf\nv_add_f32 v76, v76, v76 {sh} row_mask:0xf bank_mask:0xf")
    out += L(f"""
    v_ashrrev_i32 v82, 31, v72
    v_or_b32 v82, 0x80000000, v82
    v_xor_b32 v82, v82, v72
    v_and_b32 v82, 0xfffff800, v82
    v_sub_u32 v81, 2047, v81
    v_or_b32 v82, v82, v81
    v_max_u32 v82, 1, v82
    """) + sigmoid(76, 77) + L(f"""
    s_lshl_b32 s72, s{sWAVE}, 4
    s_add_u32 s72, s72, {LDS_R}
    v_lshl_add_u32 v80, v80, 2, s72
    ds_write_b32 v80, v82
    ds_write_b32 v80, v72 offset:64
    ds_write_b32 v80, v76 offset:128
    """)
    return out
def rg4_store():
    return L(f"""
    v_and_b32 v20, 31, v0
    v_lshlrev_b32 v20, 2, v20
    v_add_u32 v21, {LDS_R}, v20
    ds_read_b32 v19, v21
    ds_read_b32 v21, v21 offset:64
    s_min_u32 s64, s{sWAVE}, 1
    s_lshl_b32 s64, s64, 29
    v_and_b32 v22, 32, v0
    v_lshl_or_b32 v20, v22, 24, v20
    v_or_b32 v20, s64, v20
    v_and_b32 v22, 16, v0
    v_lshl_or_b32 v18, v22, 25, v20
    s_lshl_b32 s72, s30, 7
    s_add_u32 s72, s72, {WS_RG}
    """) + [6, I(f"buffer_store_dword v21, v20, {WS}, s72 offen sc1", tag="RST")]
def key4_store():
    return L(f"""
    s_lshl_b32 s72, s30, 6
    s_add_u32 s72, s72, {WS_KEY}
    """) + [WAITV("RST"), I(f"buffer_store_dword v19, v18, {WS}, s72 offen sc1")]


def x_touch3(nl):
    pre = L(f"""
    s_lshl_b32 s64, s{sJ}, 1
    s_lshr_b32 s72, s{sH}, 3
    s_add_u32 s64, s64, s72
    s_lshl_b32 s64, s64, 2
    s_add_u32 s64, s64, s{sWAVE}
    s_mul_i32 s64, s64, 14336
    v_lshl_add_u32 v26, v0, 7, s64
    v_mov_b32 v27, {OOB}
    v_cmp_gt_u32 vcc, {nl}, v0
    s_nop 0
    s_nop 0
    v_cndmask_b32 v26, v27, v26, vcc
    v_accvgpr_write_b32 a242, v26
    """)
    return pre, [[I(f"s_mov_b32 s65, {n * nl * 128}"), I("v_accvgpr_read_b32 v26, a242"), touch(26, 56, "s65", nt=False)] for n in range(112 // nl)]
YLV = 1
def y_reduce2(hole):
    out = L(f"""
    L_y1:
    s_lshl_b32 s89, s{sH}, 1
    s_add_u32 s89, s89, s{sWAVE}
    s_cmp_ge_u32 s{sWAVE}, 2
    s_cselect_b32 s89, 28, s89
    s_cmp_ge_u32 s89, 28
    s_cbranch_scc1 L_y1r
    v_lshrrev_b32 v50, 4, v7
    v_lshrrev_b32 v51, 3, v50
    {f'v_lshrrev_b32 v52, v51, s{sBM}' + chr(10) + 'v_and_b32 v53, 1, v52' if NUMA.fl else ''}
    v_mul_u32_u24 v51, {FSTR}, v51
    v_and_b32 v52, 7, v50
    v_lshl_add_u32 v51, v52, 7, v51
    {'v_lshl_add_u32 v51, v53, 13, v51' if NUMA.fl else ''}
    s_mov_b32 s90, {WS_FL}
    s_mov_b32 s88, {WS_FL + 8 * FSTR}
    s_mov_b32 s91, {SPIN_MAX}
    L_yp:
    buffer_load_dword v52, v51, {WS}, s90 offen sc1
    buffer_load_dword v53, v51, {WS}, s88 offen sc1
    s_waitcnt vmcnt(0)
    v_min_u32 v52, v52, v53
    v_cmp_gt_u32 vcc, {YLV}, v52
    s_sub_u32 s91, s91, 1
    s_cbranch_scc1 L_ypx
    s_cbranch_vccnz L_yp
    L_ypx:
    s_cmp_lt_u32 s89, 14
    s_cselect_b32 s90, 8, 12
    s_add_u32 s90, s90, {WS_SEL}
    buffer_load_dword v53, off, {WS}, s90 sc1
    v_lshrrev_b32 v51, 3, v50
    v_mul_u32_u24 v51, 3584, v51
    v_and_b32 v52, 7, v50
    v_lshl_add_u32 v51, v52, 4, v51
    s_lshl_b32 s88, s89, 7
    s_add_u32 s90, s88, {WS_YF}
    s_add_u32 s88, s88, {WS_Y}
    """)
    for n in range(14):
        out += L(f"buffer_load_dwordx4 v[{hole(n)}:{hole(n)+3}], v51, {WS}, s88 offen sc1\ns_add_u32 s88, s88, {8 * 3584}")
    out += L("s_branch L_y1r\nL_y2:\ns_cmp_ge_u32 s89, 28\ns_cbranch_scc1 L_y2r\ns_waitcnt vmcnt(24)")
    acc = [hole(0) + e for e in range(4)]; t = [hole(1) + e for e in range(4)]
    for n in range(1, 14): out += [I(f"v_add_f32 v{a}, v{hole(n) + e}, v{a}") for e, a in enumerate(acc)]
    out += [I(f"v_add_f32 v{a}, v{a}, v{a} row_ror:8 row_mask:0xf bank_mask:0xf") for a in acc]
    for sw in ("v_permlane16_swap_b32", "v_permlane32_swap_b32"):
        out += [I(f"v_mov_b32 v{x}, v{a}") for a, x in zip(acc, t)]
        out += [I(f"{sw} v{x}, v{a}") for a, x in zip(acc, t)]
        out += [I(f"v_add_f32 v{a}, v{x}, v{a}") for a, x in zip(acc, t)]
    for rep in range(2):
        for p in (acc[0], acc[2]):
            out += L(f"v_cvt_pk_bf16_f32 v51, v{p}, v{p+1}\nv_lshlrev_b32 v{p}, 16, v51\nv_and_b32 v{p+1}, 0xffff0000, v51")
        if rep == 0: out += [I(f"v_mul_f32 v{a}, v53, v{a}") for a in acc]
    out += L(f"""
    s_mov_b64 exec, 0xff
    buffer_store_dwordx4 v[{acc[0]}:{acc[3]}], v7, {WS}, s90 offen sc1
    s_mov_b64 exec, -1
    s_branch L_y2r
    L_y3:
    s_cmp_ge_u32 s89, 28
    s_cbranch_scc1 L_y3r
    v_mov_b32 v52, 1
    s_lshl_b32 s89, s89, 2
    s_add_u32 s89, s89, {WS_FH + 512}
    s_mov_b64 exec, 1
    s_waitcnt vmcnt(5)
    buffer_store_dword v52, off, {WS}, s89 sc1
    s_mov_b64 exec, -1
    s_branch L_y3r
    """)
    return out

def wo_touch3():
    return L(f"""
    s_load_dwordx2 s[68:69], s[0:1], {A_WO}
    s_lshl_b32 s72, s{sH}, 3
    s_add_u32 s72, s72, s{sJ}
    s_lshl_b32 s72, s72, 2
    s_add_u32 s72, s72, s{sWAVE}
    s_mul_i32 s72, s72, 7168
    v_min_u32 v28, 55, v0
    v_lshlrev_b32 v28, 7, v28
    s_mov_b32 s70, {4096 * 896}
    """) + [24, I("s_and_b32 s69, s69, 0xffff"), touch(28, 68, "s72", nt=False)]
def wo_events(sEV, srdreg, nt):
    out = L(f"""
    L_ev:
    s_sub_u32 s{sEV}, s{sEV}, 1
    s_cmp_eq_u32 s{sEV}, 0
    s_cbranch_scc1 L_ev1
    s_lshl_b32 s3, s{sH}, 3
    s_add_u32 s3, s3, s{sJ}
    s_lshl_b32 s3, s3, 2
    s_add_u32 s3, s3, s{sWAVE}
    s_mul_i32 s3, s3, 7168
    s_mul_i32 s30, s{sWAVE}, 7168
    s_add_u32 m0, s30, 131072
    s_nop 0
    """)
    d = lambda j: I(f"buffer_load_dwordx4 v7, s[{srdreg}:{srdreg+3}], s3 offen offset:{1024*j} {nt} lds")
    out += [d(j) for j in range(4)] + L("s_add_u32 m0, s30, 135168\ns_add_u32 s3, s3, 4096") + [d(j) for j in range(3)] + L(f"""
    s_branch L_evr
    L_ev1:
    v_lshrrev_b32 v10, 6, v7
    v_mul_u32_u24 v10, 896, v10
    v_and_b32 v11, 48, v7
    s_lshr_b32 s3, s{sWAVE}, 1
    s_lshl_b32 s3, s3, 6
    s_and_b32 s30, s{sWAVE}, 1
    s_lshl_b32 s30, s30, 3
    s_add_u32 s3, s3, s30
    s_add_u32 s3, s3, 131072
    v_add3_u32 v10, v10, v11, s3
    """) + [I(f"ds_read_b64_tr_b16 a[{196+4*n+2*j}:{197+4*n+2*j}], v10 offset:{n*128 + j*14336}") for n in range(7) for j in range(2)] + L(f"""
    s_lshl_b32 s3, s{sH}, 18
    s_lshl_b32 s30, s{sJ}, 10
    s_add_u32 s3, s3, s30
    s_lshl_b32 s30, s{sWAVE}, 13
    s_add_u32 s3, s3, s30
    s_add_u32 s3, s3, {WS_WO}
    s_waitcnt lgkmcnt(0)
    """)
    for n in range(7): out += L(f"buffer_store_dwordx4 a[{196+4*n}:{199+4*n}], v7, {WS}, s3 offen sc1\ns_add_u32 s3, s3, 32768")
    return out + L("s_branch L_evr")

def wo4(srdreg, nt):
    pre = L(f"""
    s_and_b32 s29, s{sJ}, 7
    s_lshl_b32 s34, s29, 10
    s_lshl3_add_u32 s30, s{sH}, s29
    s_lshl2_add_u32 s30, s30, s{sWAVE}
    s_mul_i32 s30, s30, 7168
    s_lshl_b32 s29, s{sH}, 18
    s_add_u32 s34, s34, s29
    s_lshl_b32 s29, s{sWAVE}, 13
    s_add_u32 s34, s34, s29
    s_add_u32 s34, s34, {WS_WO}
    s_mul_i32 s29, s{sWAVE}, 7168
    """)
    d = lambda j: I(f"buffer_load_dwordx4 v7, s[{srdreg}:{srdreg+3}], s30 offen offset:{1024*j} {nt} lds", tag="WO")
    dma = [I("s_add_u32 m0, s29, 131072")] + [d(j) for j in range(4)] + L("s_add_u32 m0, s29, 135168\ns_add_u32 s30, s30, 4096") + [d(j) for j in range(3)]
    adr = L(f"""
    v_lshrrev_b32 v6, 6, v7
    v_mul_u32_u24 v6, 896, v6
    v_and_b32 v5, 48, v7
    s_lshr_b32 s29, s{sWAVE}, 1
    s_lshl_b32 s29, s29, 6
    s_and_b32 s30, s{sWAVE}, 1
    s_lshl3_add_u32 s29, s30, s29
    s_add_u32 s29, s29, 131072
    v_add3_u32 v5, v6, v5, s29
    """)
    rd = [I(f"ds_read_b64_tr_b16 a[{196+4*n+2*j}:{197+4*n+2*j}], v5 offset:{n*128 + j*14336}") for n in range(7) for j in range(2)]
    st = [[I(f"s_add_u32 s3, s34, {n * 32768}"), I(f"buffer_store_dwordx4 a[{196+4*n}:{199+4*n}], v7, {WS}, s3 offen sc1", tag="WST")] for n in range(7)]
    return pre, dma, adr, rd, st

def wo_touch4(nl):
    pre = L(f"""
    s_and_b32 s64, s{sJ}, 7
    s_lshl3_add_u32 s64, s{sH}, s64
    s_lshl2_add_u32 s64, s64, s{sWAVE}
    s_mul_i32 s64, s64, 7168
    v_lshl_add_u32 v22, v0, 7, s64
    v_mov_b32 v21, {OOB}
    v_cmp_gt_u32 vcc, {nl}, v0
    s_nop 0
    s_nop 0
    v_cndmask_b32 v22, v21, v22, vcc
    """)
    return pre, [[touch(22, 60, 0, nt=False), I(f"v_add_u32 v22, {nl * 128}, v22")] for n in range(56 // nl)]

def wo_consts(aWD, aOB):
    return L(f"""
    v_lshrrev_b32 v26, 4, v0
    v_bfe_u32 v27, v0, 1, 2
    v_xor_b32 v26, v26, v27
    v_lshlrev_b32 v26, 1, v26
    v_and_or_b32 v26, v0, 1, v26
    v_lshlrev_b32 v26, 4, v26
    v_lshrrev_b32 v27, 3, v0
    v_mul_u32_u24 v27, 896, v27
    s_mul_i32 s64, s{sWAVE}, {64 * 896}
    v_add3_u32 v26, v26, v27, s64
    v_accvgpr_write_b32 a{aWD}, v26
    v_bfe_u32 v26, v0, 3, 2
    v_lshlrev_b32 v26, 2, v26
    v_and_or_b32 v26, v0, 3, v26
    v_lshlrev_b32 v26, 3, v26
    v_lshrrev_b32 v27, 2, v0
    v_lshl_or_b32 v26, v27, 7, v26
    v_accvgpr_write_b32 a{aOB}, v26
    """)

def share_setup(sKV):
    return L(f"""
    s_and_b32 s64, s{sJ}, 7
    s_lshl2_add_u32 s64, s64, s{sWAVE}
    s_lshl_b32 s64, s64, 14
    v_lshrrev_b32 v26, 2, v0
    v_and_b32 v27, 3, v0
    v_lshlrev_b32 v27, 7, v27
    v_lshl_add_u32 v26, v26, 13, v27
    v_add_u32 v26, s64, v26
    v_and_b32 v27, 56, v0
    v_lshl_add_u32 v26, v27, 24, v26
    v_accvgpr_write_b32 a236, v26
    s_lshr_b32 s64, s{sH}, 3
    s_lshl1_add_u32 s64, s{sKV}, s64
    s_lshl_b32 s64, s64, 5
    s_add_u32 s64, s64, s{sWAVE}
    s_lshl_b32 s64, s64, 14
    v_and_b32 v26, 7, v0
    v_lshlrev_b32 v26, 11, v26
    v_and_b32 v27, 8, v0
    v_lshl_add_u32 v26, v27, 18, v26
    v_add_u32 v26, s64, v26
    v_and_b32 v27, 48, v0
    v_lshl_add_u32 v26, v27, 24, v26
    v_accvgpr_write_b32 a237, v26
    """)
def share_w(sw, t, fl): return [I(f"s_mov_b32 s65, {t * 64 * 8192}"), I("v_accvgpr_read_b32 v26, a236"), I(f"buffer_load_dword a{JUNK}, v26, s[{sw}:{sw+3}], s65 offen {fl}", tag="TOUCH")]
def share_c(sc, t): return [I("v_accvgpr_read_b32 v26, a237"), I(f"buffer_load_dword a{JUNK}, v26, s[{sc}:{sc+3}], 0 offen offset:{t * 128}", tag="TOUCH")]

WS_PROBE = 228 << 20
LDS_P = 163840 - 32
def nu_issue():
    return L(f"""
    s_and_b32 s40, s{sJ}, 7
    s_min_u32 s40, s40, 5
    s_add_u32 s47, s40, 1
    s_lshr_b32 s47, s47, 2
    s_xor_b32 s47, s47, s{sWAVE}
    s_and_b32 s47, s47, 1
    s_lshl4_add_u32 s46, s40, s{sH}
    s_xor_b32 s46, s46, 1
    s_lshl1_add_u32 s46, s46, s47
    s_lshl4_add_u32 s46, s46, s{sWAVE}
    s_lshl_b32 s46, s46, 9
    s_add_u32 s46, s46, {WS_PROBE}
    s_add_u32 s46, s46, s6
    s_addc_u32 s47, s7, 0
    s_load_dword s43, s[46:47], 0
    """)
_L3 = """s_memtime s[72:73]
    s_waitcnt lgkmcnt(0)
    s_load_dword s43, s[46:47], 0
    s_load_dword s40, s[46:47], 0x40000
    s_load_dword s26, s[46:47], 0x80000
    s_waitcnt lgkmcnt(2)
    s_memtime s[64:65]
    s_waitcnt lgkmcnt(0)
    s_sub_u32 s64, s64, s72"""
def nu_time():
    return L(f"""
    L_nut:
    s_and_b32 s64, s{sWAVE}, 1
    s_lshl1_add_u32 s46, s{sH}, s64
    s_lshl4_add_u32 s46, s46, s{sWAVE}
    s_lshl_b32 s46, s46, 9
    s_add_u32 s46, s46, {WS_PROBE}
    s_add_u32 s46, s46, s6
    s_addc_u32 s47, s7, 0
    s_lshl_b32 s67, s{sWAVE}, 2
    s_add_u32 s67, s67, {LDS_P}
    v_mov_b32 v17, s67
    s_waitcnt lgkmcnt(0)
    {_L3}
    s_mov_b32 s66, s64
    s_xor_b32 s46, s46, 8192
    s_add_u32 s46, s46, 0xc0000
    s_addc_u32 s47, s47, 0
    {_L3}
    s_sub_u32 s64, s66, s64
    s_ashr_i32 s64, s64, 1
    s_add_u32 s64, s64, 4096
    v_mov_b32 v16, s64
    ds_write_b32 v17, v16
    s_waitcnt lgkmcnt(0)
    s_branch L_nutr
    """)
def nu_publish():
    return L(f"""
    v_mov_b32 v26, {LDS_P}
    ds_read_b128 v[28:31], v26
    s_getreg_b32 s92, hwreg(20, 2, 1)
    s_lshl_b32 s101, s{sH}, 2
    s_and_b32 s100, s{sJ}, 7
    s_min_u32 s100, s100, 1
    s_lshl_b32 s100, s100, 29
    s_or_b32 s101, s101, s100
    s_lshl_b32 s100, s92, 30
    s_add_u32 s100, s100, 0x4000
    s_lshl_b32 s92, s92, 1
    s_sub_u32 s92, 1, s92
    """) + lane0_wave0(26) + L(f"""
    v_sub_u32 v28, v28, v29
    v_sub_u32 v30, v30, v31
    v_max_i32 v28, -400, v28
    v_max_i32 v30, -400, v30
    v_min_i32 v28, 400, v28
    v_min_i32 v30, 400, v30
    v_add_u32 v28, v28, v30
    v_mul_i32_i24 v28, s92, v28
    v_add_u32 v28, s100, v28
    buffer_store_dword v28, v26, s[{S_DBG}:{S_DBG+3}], s101 offen sc1
    """)
def nu_decide():
    out = L(f"v_cmp_le_u32 vcc, 0x40000000, v17\nv_and_b32 v17, 0xffff, v17\ns_nop 0\ns_and_b32 s{sBM}, vcc_lo, 0xff")
    out += [I(f"v_add_u32 v17, v17, v17 {sh} row_mask:0xf bank_mask:0xf") for sh in ("row_ror:8", "row_ror:4", "row_ror:2", "row_ror:1")]
    return out + L(f"""
    v_cmp_lt_u32 vcc, {16 * 0x4000}, v17
    s_nop 0
    s_nop 0
    s_and_b32 s92, vcc_lo, 1
    s_mul_i32 s92, s92, 0xff
    s_xor_b32 s{sBM}, s{sBM}, s92
    """)
def nu_bit(r, t): return f"s_and_b32 s{t}, s{sH}, 7\ns_lshr_b32 s{t}, s{sBM}, s{t}\ns_and_b32 s{t}, s{t}, 1\ns_lshl_b32 s{t}, s{t}, 13\ns_add_u32 s{r}, s{r}, s{t}"
```

```python
import sys
from att3 import *
import kvq, side, hw, asmlib, att3, q2, red3
from kvq import K, seq_fit
from q2 import VQ, place_vm, place_reads
opt = dict(stamp="0", v="1", thr=str(2.0 ** 40), lo=str(2.0 ** -60), m0="16", fine="0", dbgst="0", dbgl="0,3,6,7,14,18,21",
           cw="1", w1="0", q0="1", ramp="00", eo="0", pc="0", sw="1", r3="1", lagv="16", lag="8",
           pcq="4", tQ="9", tW="5", tH="7", tc="6,13", tg="113", xs_="20", odh="45", ne="8", jy="6", tl="1",
           k15="8", kst="2224a56", kf="0", v15="4", vst="2204444", vf="2", nq="8", w0l="24", ext="1", nu="1", zg="90", num="46", nukv="1", nupg="0", nuf="1", pl="0", nud="0", sp="0", spa="56", spp="50", spt="12", lay="1", qfl="", rfl="", pfl="", ofl="sc1", rsnk="1", snk="2", wis="0", p2="0", pw="1", pfg="24", ec="1", n1="9", rsl="1", wso="0", hnt="nt", nomoe="0", sent="0", sg="30", mk="044", s5="1", odh5="26", efw="5", efg="52", wi="0", sw_="0", sc_="0", swf="nt", hi0="44", hi1="108", rv="0", eh="1", bpv="0", bpvd="4", bpvk="20", bop="2", bopk="2.0", bkk="8.0", bkv="1", bq="0", tB="13", bsp="5", l4="44", wn="2221",
           ntw="nt", ntt="", osf="sc1", stf="sc1", dfl="sc1", hot="00", npk="16")
for a in sys.argv[1:]:
    k, v = a.split("="); assert k in opt, k; opt[k] = v
O = lambda k: int(opt[k])
STAMP = opt["stamp"] == "1"
kvq.HOT = opt["hot"]; kvq.NTW = opt["ntw"]; side.NTT = opt["ntt"]; kvq.STF = opt["stf"].replace("+", " "); att3.DFL = opt["dfl"]; side.OSF = opt["osf"]
side.EPAR = 2; side.NE = O("ne"); side.SELLV = 1; side.YLV = 4; hw.MAP = "0"
side.ROWMAP = "s_lshr_b32 s73, s72, 1\ns_sub_u32 s65, 7, s73\ns_bitcmp1_b32 s72, 0\ns_cselect_b32 s73, s65, s73\ns_lshl_b32 s73, s73, 4"
sH, sJ, sSTK, sKV, sFL = 41, 42, 44, 45, 45
XS = O('xs_'); assert XS in (18, 20)
JC = XS // 2
FSH = 7
aST = 250
NM0 = hex(f2u(-float(opt['m0'])))
BOP = O('bop')
BPV.update(on=O('bpv'), db=O('bpvd'), k=float(opt['bpvk']))
red3.WI = O('wi')
hw.HNT = opt['hnt']
side.RSL = O('rsl')
EC = O('ec')
PW = O('pw')
kvq.WIS = O('wis')
att3.SNK = O('snk')
kvq.RSNK = O('rsnk')
red3.RFL = opt['rfl']
NU = NUMA.on = O('nu'); assert not (NU and (O('sp') or O('sent') or opt['r3'] == '0'))
NUMA.pl = O('pl')
NUMA.fl = NU and O('nuf')
NUMA.kv = O('nukv'); NUMA.pg = O('nupg')
NEVER = 0x7fff
SENT = O('sent')
EXT = O('ext')
SW = O('sw')
def stamp(t=10):
    if not STAMP: return []
    return L(f"""s_memrealtime s[36:37]
    s_memtime s[98:99]
    v_accvgpr_read_b32 v{t}, a{aST}
    v_accvgpr_read_b32 v{t+1}, a{aST+1}
    s_mov_b32 s100, m0
    s_mov_b32 m0, s{sSTK}
    s_waitcnt lgkmcnt(0)
    v_writelane_b32 v{t}, s98, m0
    v_writelane_b32 v{t+1}, s36, m0
    s_add_u32 s{sSTK}, s{sSTK}, 1
    s_mov_b32 m0, s100
    v_accvgpr_write_b32 a{aST}, v{t}
    v_accvgpr_write_b32 a{aST+1}, v{t+1}""")
fst = lambda n, t=10: stamp(t) if opt['fine'] == str(n) else []

F1_LOAD = f"buffer_load_dword v24, v13, {WSR}, s46 offen sc1"
F2_LOAD = f"buffer_load_dword v24, v{A.vFL}, {WSR}, s46 offen sc1"
FL_LOAD = f"buffer_load_dword v{A.vRL + 1}, v{A.vFL}, {WSR}, s46 offen sc1"
FP_LOAD = f"buffer_load_dword v{A.vRL}, off, {WSR}, s47 sc1"
ZZ = lambda: [I(f"v_mov_b32 v{A.vP1 + e}, 0") for e in range(4)]
SELM = lambda: L(f"""
    v_mov_b32 v16, 0x3f80
    v_lshrrev_b32 v17, 8, v{A.vL16}
    v_bfe_u32 v18, v{A.vL16}, 6, 2
    v_and_b32 v19, 16, v{A.vL16}
    v_lshlrev_b32 v19, v19, v16
    v_cmp_eq_u32 vcc, v17, v18
    v_and_b32 v16, 32, v{A.vL16}
    v_accvgpr_write_b32 a244, 0
    v_accvgpr_write_b32 a245, 0
    v_cndmask_b32 v19, 0, v19, vcc
    v_cmp_eq_u32 vcc, 0, v16
    v_accvgpr_write_b32 a248, 0
    v_accvgpr_write_b32 a249, 0
    v_cndmask_b32 v17, 0, v19, vcc
    v_sub_u32 v18, v19, v17
    v_accvgpr_write_b32 a246, v17
    v_accvgpr_write_b32 a247, v18
    """)

def first_qk(cv_late):
    if not cv_late:
        g = Gaps(qk_mfmas(0, "nm", snk=False)); weave_reads(g, 3, 1, [("T", 1)])
        blocks = [(0, 0), (0, 1), (1, 0), (1, 1)]; rdy = [11, 19, 27, 35]
    else:
        m = lambda kb, qb, ks, c=None: mfma(R("v", Sreg(0, kb, qb), 4), R("a", Freg(kb, ks), 4), R("a", Qreg(qb, ks), 4), c or R("v", Sreg(0, kb, qb), 4))
        ms = [m(kb, qb, ks, R("v", A.vNM + 4 * qb, 4) if n == 0 else None) for kb in range(2) for qb in range(2) for n, ks in enumerate(range(6) if qb == 0 else range(5, -1, -1))]
        ms += [m(0, 0, 6), m(0, 1, 6), m(1, 1, 6), m(1, 0, 6), m(0, 0, 7), m(1, 0, 7), m(0, 1, 7), m(1, 1, 7)]
        g = Gaps(ms + qk_mfmas(0, "nm")[32:])
        for f, k in enumerate([0, 1, 2, 4, 5, 6, 8, 9]): g.put(k, rd_frag(3, 1, f, Freg(1, f)))
        g.put_s(11, NEED(R("a", Freg(1, 0), 24))); g.put_s(22, NEED(R("a", Freg(1, 6), 8)))
        for f, k in enumerate([13, 14, 16, 17, 19, 20, 27, 31]): g.put(k, rd_frag(3, 2, f, Freg(2, f)))
        for f, k in enumerate([25, 28, 29, 33, 34, 36, 37, 39]): g.put(k, rd_frag(3, 3, f, Freg(3, f)))
        g.put_s(31, NEED(R("a", Freg(2, 0), 24))); g.put_s(37, NEED(R("a", Freg(2, 6), 8)))
        g.put_s(46, WAITV([("T", 1)], lgkm0=True)); g.put_s(47, I("s_barrier"))
        for f, r in enumerate(rd_batch(1, 0)): g.put(48 + RPAT[0][f], r)
        g.put_s(62, NEED(R("a", Freg(0, 0), 32)))
        blocks = [(0, 0), (1, 0), (0, 1), (1, 1)]; rdy = [32, 33, 34, 35]
    sm = SM(sm_groups(0, blocks + blocks_of(1), (0, 1)), ready={n: rdy[n >> 1] for n in range(8)})
    return g, sm

NU_SEL = f"""
    s_and_b32 s64, s{sH}, 7
    s_lshr_b32 s64, s{sBM}, s64
    s_lshr_b32 s65, s{sH}, 3
    s_xor_b32 s64, s64, s65
    s_and_b32 s64, s64, 1
    s_lshl_b32 s{sSEL}, s64, 13
    {f's_add_u32 s{K.sOOFF}, s{K.sOOFF}, s{sSEL}' if NUMA.kv else ''}
    s_add_u32 s{A.sPO}, s{A.sPO}, s{sSEL}
    s_add_u32 s{A.sQ}, s{A.sQ}, s{sSEL}
    """ + (f"s_add_u32 s{A.sOP}, s{A.sOP}, s{sSEL}" if NUMA.pl else f"""
    s_lshl_b32 s64, s{A.sWAVE}, 1
    s_lshr_b32 s64, s{sBM}, s64
    s_xor_b32 s64, s64, s65
    s_and_b32 s64, s64, 1
    s_lshl_b32 s64, s64, 13
    s_add_u32 s{A.sOP}, s{A.sOP}, s64""") + ("" if NUMA.kv else f"\ns_mov_b32 s{sSEL}, 0")
NU_OPD = f"""
    s_lshl_b32 s64, s{A.sWAVE}, 1
    s_lshr_b32 s64, s{sBM}, s64
    s_lshr_b32 s93, s64, 1
    s_xor_b32 s64, s64, s93
    s_and_b32 s64, s64, {0 if NUMA.pl else 1}
    s_lshl_b32 s64, s64, 13
    s_xor_b32 s93, s{A.sOP}, s64
    s_add_u32 s93, s93, 32768"""

def ramp():
    nw, nc = int(opt['ramp'][0]), int(opt['ramp'][1])
    if not nw: return [], []
    pre = L(f"""
    v_lshrrev_b32 v28, 2, v0
    v_add_u32 v28, 1, v28
    v_lshrrev_b32 v29, 1, v28
    v_and_b32 v28, 1, v28
    v_lshlrev_b32 v28, 7, v28
    v_lshl_or_b32 v28, v29, 19, v28
    v_and_b32 v29, 1, v0
    v_lshl_or_b32 v28, v29, 8, v28
    v_bfe_u32 v29, v0, 1, 1
    v_lshl_or_b32 v28, v29, 13, v28
    s_lshl_b32 s64, s{K.sWAVE}, 14
    s_add_u32 s64, s64, s75
    v_cmp_gt_u32 vcc, {4 * nw}, v0
    v_add_u32 v28, s64, v28
    v_mov_b32 v31, {side.OOB}
    v_cndmask_b32 v16, v31, v28, vcc
    """) + (L(f"""
    v_lshrrev_b32 v28, 3, v0
    v_add_u32 v28, 1, v28
    v_lshrrev_b32 v29, 1, v28
    v_and_b32 v28, 1, v28
    v_lshlrev_b32 v28, 21, v28
    v_lshl_or_b32 v28, v29, 7, v28
    v_and_b32 v29, 7, v0
    v_lshl_or_b32 v28, v29, 11, v28
    s_lshr_b32 s64, s{sH}, 3
    s_lshl1_add_u32 s64, s{sKV}, s64
    s_lshl_b32 s64, s64, 5
    s_add_u32 s64, s64, s{K.sWAVE}
    s_lshl_b32 s64, s64, 14
    v_cmp_gt_u32 vcc, {8 * nc}, v0
    v_add_u32 v28, s64, v28
    v_cndmask_b32 v17, v31, v28, vcc
    """) if opt['rv'] == '0' else L(f"""
    v_lshrrev_b32 v28, 4, v0
    v_add_u32 v28, 1, v28
    v_lshrrev_b32 v29, 1, v28
    v_and_b32 v28, 1, v28
    v_lshlrev_b32 v28, 21, v28
    v_lshl_or_b32 v28, v29, 7, v28
    v_and_b32 v29, 15, v0
    v_lshl_or_b32 v28, v29, 11, v28
    s_lshr_b32 s64, s{sH}, 3
    s_lshr_b32 s67, s{K.sWAVE}, 1
    s_lshl1_add_u32 s64, s64, s67
    s_lshl_b32 s64, s64, 4
    s_and_b32 s67, s{K.sWAVE}, 1
    s_add_u32 s64, s64, s67
    s_lshl_b32 s64, s64, 15
    v_cmp_gt_u32 vcc, {16 * nc}, v0
    v_add_u32 v28, s64, v28
    v_cndmask_b32 v17, v31, v28, vcc
    s_sub_u32 s64, s{sJ}, 8
    s_and_b32 s64, s64, {side.OOB}
    v_or_b32 v16, s64, v16
    v_or_b32 v17, s64, v17
    """))
    return pre, [I(f"buffer_load_dword a240, v16, s[{K.S_W}:{K.S_W + 3}], 0 offen {opt['ntw']}", tag="TOUCH"), side.touch(17, K.S_C, 0, nt=False)]

def build_front(c):
    c.block("entry", f"""
    s_cmp_lt_u32 s2, 256
    s_cbranch_scc1 L_go
    s_endpgm
    L_go:
    {'s_memrealtime s[36:37]' + chr(10) + 's_memtime s[98:99]' if STAMP else ''}
    s_load_dwordx8 s[80:87], s[0:1], {A_X}
    s_load_dwordx4 s[88:91], s[0:1], {A_WUV}
    s_load_dwordx2 s[92:93], s[0:1], {A_WR}
    s_load_dwordx2 s[30:31], s[0:1], {A_GW}
    s_load_dwordx4 s[4:7], s[0:1], {A_DBG}
    v_lshrrev_b32 v24, 6, v0
    v_and_b32 v0, 63, v0
    v_readfirstlane_b32 s{K.sWAVE}, v24
    """, side.code_touch() if opt['pc'] == '0' else side.code_touch()[:-1], f"""
    s_and_b32 s{sH}, s2, 7
    s_lshr_b32 s{sJ}, s2, 3
    s_lshr_b32 s64, s{sJ}, 4
    s_lshl_b32 s64, s64, 3
    s_add_u32 s{sH}, s{sH}, s64
    s_and_b32 s{sJ}, s{sJ}, 15
    s_lshr_b32 s{sKV}, s{sJ}, 3
    s_xor_b32 s{sKV}, s{sKV}, {SW}
    s_mov_b32 s{sSTK}, 0
    v_accvgpr_write_b32 a{aST}, 0
    v_accvgpr_write_b32 a{aST+1}, 0
    v_and_b32 v24, 15, v0
    v_lshrrev_b32 v25, 4, v0
    v_lshlrev_b32 v{K.vST}, 4, v0
    s_and_b32 s65, s{K.sWAVE}, 1
    s_lshr_b32 s66, s{K.sWAVE}, 1
    {kvq.addr_wd()}
    {kvq.addr_cd()}
    s_mov_b32 s{K.sWOFF}, 0
    s_mov_b32 s{K.sCOFF}, 0
    s_lshl_b32 s{K.sM0W}, s{K.sWAVE}, 12
    s_add_u32 s{K.sM0C}, s{K.sM0W}, 65536
    s_lshl_b32 s74, s{sH}, 9
    s_sub_u32 s{K.S_W + 2}, {1024*8192}, s74
    s_mov_b32 s{K.S_W + 3}, 0x20000
    s_and_b32 s75, s{sJ}, 7
    s_lshl_b32 s75, s75, 16
    s_sub_u32 s{K.S_C + 2}, {2048*2048}, s75
    s_mov_b32 s{K.S_C + 3}, 0x20000
    """, ramp()[0], L(kvq.addr_rd()) + side.c_touch_setup() if opt['eo'] == '1' else [], f"""
    s_mov_b32 m0, s{K.sM0W}
    s_cmp_eq_u32 s{sKV}, 0
    s_cselect_b64 s[72:73], s[86:87], s[88:89]
    s_add_u32 s{K.S_W}, s72, s74
    s_addc_u32 s{K.S_W + 1}, s73, 0
    s_and_b32 s{K.S_W + 1}, s{K.S_W + 1}, 0xffff
    """, kvq.unit_w(0)[1:], f"""
    s_add_u32 s{K.S_C}, s82, s75
    s_addc_u32 s{K.S_C + 1}, s83, 0
    s_and_b32 s{K.S_C + 1}, s{K.S_C + 1}, 0xffff
    """, kvq.unit_c(0), ramp()[1], kvq.unit_w(1) if opt['w1'] == '0' else [], stamp(26)[2:], side.nu_issue() if NU else [], L(kvq.addr_rd()) + side.c_touch_setup() if opt['eo'] == '0' else [],
        side.code_addr(28, 29) + side.code_touch()[-1:] if opt['pc'] == '1' else [], f"""
    {srd(32, 82, 2048*2048)}
    {srd(K.S_X, 80, 2048*896)}
    {srd(60, 92, 896)}
    {srd(68, 30, 896)}
    {f's_add_u32 s6, s6, {O("wso") << 20}' + chr(10) + 's_addc_u32 s7, s7, 0' if O('wso') else ''}
    {srd(K.S_WS, 6, (256 - O('wso')) << 20)}
    {srd(K.S_DBG, 4, 256)}
    s_add_u32 s72, s84, s74
    s_addc_u32 s73, s85, 0
    s_sub_u32 s75, {448*8192}, s74
    {srd(K.S_WQ, 72, "s75")}
    s_mov_b32 s{K.sSC}, {hex(f2u(LOG2E_16))}
    s_mov_b32 s{K.sWQOFF}, 0
    s_mul_i32 s{K.sXOFF}, s{sJ}, {128*896}
    s_lshl_b32 s72, s{sKV}, {24 + NU}
    {f's_and_b32 s{sHP}, s{sH}, 7' + chr(10) + f's_lshr_b32 s73, s{sH}, 3' + chr(10) + f's_lshl1_add_u32 s{sHP}, s{sHP}, s73' if NU else ''}
    s_lshl_b32 s73, s{sHP if NU else sH}, {20 + NU}
    s_add_u32 s72, s72, s73
    s_bfe_u32 s64, s{sJ}, 0x20001
    s_lshl_b32 s64, s64, {15 + NU}
    s_add_u32 s72, s72, s64
    s_lshl_b32 s64, s66, {17 + NU}
    s_add_u32 s72, s72, s64
    s_and_b32 s67, s{sJ}, 1
    s_cmp_eq_u32 s{sKV}, 0
    s_cselect_b32 s64, 12, {14 + NU}
    s_cselect_b32 s75, {14 + NU}, 10
    s_lshl_b32 s67, s67, s75
    s_add_u32 s72, s72, s67
    s_lshl_b32 s64, s65, s64
    s_add_u32 s{K.sOOFF}, s72, s64
    """, side.h_touch_srd(), f"s_load_dwordx2 s[96:97], s[0:1], {A_OUT}", f"s_cmp_lt_u32 s{sJ}, 8\ns_cbranch_scc0 L_kv1")
    pcq, tQ, tH, tW = O("pcq"), O("tQ"), O("tH"), O("tW")
    for vt in (0, 1):
        o = "v" if vt else "k"; pt = vt ^ SW
        frags = [kvq.rd_c(0, 0, 0, 0), kvq.rd_c(0, 0, 0, 1)] + kvq.rd_w_unit(0, 0, 0) + kvq.rd_w_unit(0, 1, 1)
        kvq.BIAS.update(kv="v[20:23]" if O('bkv') else None, q="v[28:31]" if O('bq') else None, rows=None)
        Q0 = opt['q0'] == '1'; NZ = 7 if NUMA.fl else 3
        out = side.z_store()[:-NZ] + side.r4_loads() + side.z_store()[-NZ:] if vt == 0 else L(srd(60, 90, 4096*896))
        if Q0:
            frags, g0 = q2.tile0(pt)
            cw = kvq.unit_c(1) + kvq.unit_w(2); w1 = kvq.unit_w(1) if opt['w1'] == '1' else []
            if opt['cw'] == '0': out = cw + out; cw = []
            out = out + w1 + [WAITV([("C", 0), ("W", 0)], lgkm0=True), I("s_barrier")] + stamp(26) + frags + cw
            if vt == 0: out += side.r4_compute()
        else:
            out += kvq.unit_w(2) + kvq.unit_c(1) + [WAITV([("W", 1), ("C", 0), ("W", 0)], lgkm0=True), I("s_barrier")] + stamp(26) + frags
            if vt == 0: out += side.r4_compute()
            out += [NEED(R("a", kvq.wfrag(0, 0, 0), 8), R("a", 160, 8))]
        for t in range(15):
            dma = kvq.kv_dma(t)
            if vt == 1 and t == tW:
                pre, uns = side.wo2_dma(); dma[1] = dma[1] + [uns[0]]
            if vt == 1 and t == tW + 1: dma[1] = dma[1] + [uns[1]]
            if vt == 0 and t == tH - 5:
                pre, uns = hw.s1_weights()
            if vt == 0 and tH - 5 <= t <= tH + 1 and not O('nomoe'): dma[1] = dma[1] + [uns[t - tH + 5]]
            if vt == 0 and t == tH + 4:
                pre, un = hw.s6_down_dma(); dma[1] = dma[1] + ([un] if not O('nomoe') else [])
            g = g0 if (Q0 and t == 0) else kvq.kv_tile(t, pt, dma, first=(t == 0), hi1=O('hi1') if len(dma[1]) < 3 else 108, hi0=O('hi0'))
            def fit(ins, k, pace=0):
                k, left = seq_fit(g, ins, k, pace); assert not left, (t, len(left)); return k
            def mm(ms, k):
                k |= 1
                for m in ms: g.put(k, m)
                return k
            tch = []
            if pcq and (t + pcq) % 4 == 0 and t + pcq < 16: tch += side.c_touch(32, (t + pcq) // 4)
            if O('sw_') or O('sc_'):
                if t == 0: fit(side.share_setup(sKV), 50)
                if O('sw_') and 3 < t + O('sw_') < 16: tch += side.share_w(K.S_W, t + O('sw_'), opt['swf'])
                if O('sc_') and 2 < t + O('sc_') < 16: tch += side.share_c(K.S_C, t + O('sc_'))
            if t == 1 and vt == 0: fit(side.z_signal(), 112)
            if t == 2 and vt == 0: assert fit(side.rg4_store(), 4, 1) < 42
            if t == 3: fit(side.z_load(), O("zg"))
            if NU and vt and t == O('num') // 128:
                q = O('num') % 128; g.sc[q][0:0] = L(f"s_cmp_eq_u32 s{sJ}, 8\ns_cbranch_scc1 L_nut\nL_nutr:"); g.__dict__.setdefault("lock", set()).add(q)
            if NU and t == 2 and vt: fit(side.nu_publish(), 50)
            if NU and t == 5: assert fit(side.nu_decide() + (L(f"s_lshl_b32 s92, s2, 2\ns_add_u32 s92, s92, {(232 << 20)}\nv_mov_b32 v16, s{sBM}\nbuffer_store_dword v16, off, {WSR}, s92 sc1") if opt['nud'] == '1' else []), 2) < 40
            if t == 4:
                k = fit(side.z_check(vt), 112)
                if vt == 0: fit(side.key4_store(), k + 1)
            if vt == 1:
                pre_, tl = side.q_touch3(K.S_WQ)
                if t == tQ: fit(pre_, 60)
                if 0 <= t - tQ < len(tl): tch += tl[t - tQ]
                if t == tW: assert fit(pre, 42) < 80
                if t == tW + 2: g.sc[110][0].tag = g.sc[110][0].tag + ["WO"]
                if t == tW + 3: assert fit(side.wo2_reads(), 2, 2) < 108
                if t == 6: fit(SELM() + [I(f"v_accvgpr_write_b32 a{232 + e}, -1") for e in range(4) if SENT], 10, 1)
            if vt == 0 and O('nomoe'):
                if t == tH - 5: assert fit(pre, 42) < 90
                if t == tH + 1: fit(L("v_cmp_eq_u32 vcc, -1, v0\ns_nop 1\ns_cbranch_vccnz L_hs\nL_hr:"), 10)
                if t == tH + 6: pre, ms, yadr, yst = hw.s8_down(); link(yadr + yst)
            elif vt == 0:
                if t == tH - 5: assert fit(pre, 42) < 90
                if t == tH: fit(hw.s2_keys(), 4)
                if t == tH + 1: assert fit(hw.s3_top2(), 10, 1) < 108
                if t == tH + 2: fit(hw.s4_sel(), 4, 1)
                if t == tH + 3:
                    (r0, m0), (r1, m1) = hw.s5_gemm()
                    k = fit([WAITV("HW")] + r0, 50); k = mm(m0, max(k + 6, 78)); k = fit(r1, k + 1); mm(m1, max(k + 6, 110))
                if t == tH + 4: assert fit(pre, 4) < 44
                if t == tH + 5:
                    s7 = hw.s7_act(); fit(s7, 2, 1)
                    assert all(i.kind != "dsr" or i not in s7 for q in range(100, 128) for i in g.ve[q])
                if t == tH + 6:
                    pre, ms, yadr, yst = hw.s8_down(); link(yadr + yst)
                    k = fit(pre, 2); k = mm(ms, max(k + 2, 46))
            if t == 14: assert fit(kvq.addr_q(), 2) < 46
            if t == 14: fit(L(f"""
                s_mul_i32 s72, s{sH}, {FSTR}
                s_add_u32 s46, s72, {WS_FL}
                {side.nu_bit(46, 64) if NUMA.fl else ''}
                s_lshl_b32 s{sFL}, s{sJ}, {FSH}
                s_add_u32 s{sFL}, s{sFL}, s46
                s_sub_u32 s66, 15, s{sJ}
                s_min_u32 s66, s66, s{sJ}
                s_lshl_b32 s47, s66, {FSH}
                s_add_u32 s47, s47, s46
                s_add_u32 s47, s47, {2048 + (0 if vt else 64)}
                {f's_lshl2_add_u32 s47, s{A.sWAVE}, s47' if PW else ''}
                s_lshl_b32 s65, s{sHP if NU else sH}, 3
                s_add_u32 s65, s65, s66
                s_mul_i32 s{A.sPO}, s65, {262144 if NU else PO_STRIDE}
                s_add_u32 s{A.sPO}, s{A.sPO}, {NUMA.PO if NU else WS_PO}
                s_lshl_b32 s65, s{sJ}, 4
                s_add_u32 s65, s65, s{sH}
                s_mul_i32 s{A.sOP}, s65, {red3.OPH()}
                s_mul_i32 s65, s{A.sWAVE}, {red3.OPH() // 4}
                s_add_u32 s{A.sOP}, s{A.sOP}, s65
                s_add_u32 s{A.sOP}, s{A.sOP}, {NUMA.OP if NU else WS_OP}
                s_sub_u32 s65, 15, s66
                s_lshl_b32 s65, s65, {16 + NU}
                s_lshl_b32 s64, s{sHP if NU else sH}, {20 + NU}
                s_add_u32 s{A.sQ}, s64, s65
                s_lshl_b32 s65, s{A.sWAVE}, {14 + NU}
                s_add_u32 s{A.sQ}, s{A.sQ}, s65
                s_add_u32 s{A.sQ}, s{A.sQ}, {NUMA.Q if NU else WS_Q}
                {NU_SEL if NU else ''}
                s_mov_b32 s{A.sTHR}, {hex(f2u(float(opt['thr'])))}
                s_mov_b32 s{A.sMODE}, 1
                s_sub_u32 s64, s{sJ}, {JC}
                s_and_b32 s{A.sNC}, s64, {side.OOB}
                """), 50)
            tv = 26 if t < O('tB') - 1 else 24
            if str(t) in opt['tc'].split(','): tch += side.code_addr(26, 26) + [side.touch(26, 76, 0, nt=False)]
            fit(tch, O('tg'))
            if O('bkv'):
                if t == 0:
                    vb = VQ()
                    smp = lambda y: [kvq.kacc(y, x)[1] + e for x in range(2) for e in range(4)]
                    est = []
                    for y, r in ((1, 20), (2, 21)):
                        v = smp(y)
                        est.append(L(f"v_max3_f32 v{r}, |v{v[0]}|, |v{v[1]}|, |v{v[2]}|\nv_max3_f32 v{r}, |v{v[3]}|, |v{v[4]}|, v{r}\nv_max3_f32 v{r}, |v{v[5]}|, |v{v[6]}|, v{r}"))
                    k = fit(est[0], 16)
                    k = fit(est[1] + L(f"v_min_f32 v20, v20, v21\nv_mul_f32 v20, {hex(f2u(float(opt['bkk'])))}, v20") + [I(f"v_mov_b32 v{20 + e}, v20") for e in (1, 2, 3)] +
                            L("v_accvgpr_write_b32 a241, v20"), max(k, 24))
                    assert k < 38, k
                if t == O('tB') - 1: fit(L("v_accvgpr_read_b32 v27, a241"), 1)
                for y in range(1, 8):
                    if t == O('tB') - (y < O('bsp')):
                        vb.add([I(f"v_sub_f32 v{kvq.kacc(y, x)[1] + e}, v{kvq.kacc(y, x)[1] + e}, v27") for x in range(8) for e in range(4) if kvq.kv_c0(y, x) != "0"], 128 * t + 16 * y + 20)
                vb.run(g, 128 * t)
                for at, i in vb.placed:
                    q = min(q for q in range(128) if any(i is x for x in g.ve[q]))
                    assert 128 * t + q < at + 128 - 22, (t, at, q)
                assert t < 14 or not vb.q
            out += g.flat()
            if t in (0, 1, 11, 14) or opt['fine'] == '1': out += stamp(tv)
        flat = lambda gs: [i for x in gs for i in x]
        base = (f"s_lshl_b32 s{A.sK}, s{sH}, 20\ns_mov_b32 s{A.sCNT}, 0\ns_lshl_b32 s{A.sJ[2][1]}, s{sH}, 18\ns_add_u32 s{A.sJ[2][1]}, s{A.sJ[2][1]}, {WS_WO}\n" if not NU else
                f"s_lshl_b32 s{A.sK}, s{sHP}, 21\ns_mov_b32 s{A.sCNT}, 0\ns_add_u32 s{A.sK}, s{A.sK}, s{sSEL}\ns_add_u32 s{A.sJ[2][1]}, s{A.sK}, {NUMA.WO}\n") + f"s_add_u32 s{A.sVn}, s{A.sJ[2][1]}, {E(65536)}\n"
        (c1, a1), (c2, a2), (c3, a3) = A.sJ
        jumps = L(base + (f"""
            s_add_u32 s64, s{sJ}, 1
            s_min_u32 s64, s64, {JC}
            s_sub_u32 s{A.sIT}, s64, {2 + EXT}
            s_lshl_b32 s{c3}, s64, 1
            s_sub_u32 s{c2}, s{c3}, 2
            s_lshl_b32 s64, s{sJ}, {16 + NU}
            s_add_u32 s{a2}, s{A.sK}, s64
            s_sub_u32 s{a1}, {E(34 * 32768)}, s64
            s_add_u32 s{a1}, s{a1}, s{A.sK}
            s_lshl_b32 s64, s{sJ}, 1
            s_sub_u32 s64, 32, s64
            s_cmp_ge_u32 s{sJ}, {JC}
            s_cselect_b32 s{c1}, s64, {NEVER}
            """ if vt else f"""
            s_sub_u32 s{A.sIT}, s{sJ}, 1
            s_mov_b32 s{c2}, {NEVER}
            s_mov_b32 s{a2}, 0
            s_add_u32 s{a1}, s{A.sK}, {E(XS * 32768)}
            s_lshl_b32 s64, s{sJ}, 1
            s_add_u32 s65, s64, 4
            s_add_u32 s64, s64, 2
            s_cmp_le_u32 s{sJ}, {15 - JC}
            s_cselect_b32 s{c1}, s65, {NEVER}
            s_cselect_b32 s{c3}, {34 - XS}, s64
            """) + f"s_mov_b32 s{A.sKP}, 0")
        w0 = L("v_mov_b32 v12, 1") + side.lane0_wave0(15)
        w1_ = L(f"""
            s_mov_b32 s{A.sREQ}, {(0x500 if vt else 0x543) if EXT else (0x4003 if vt else 0x43)}
            {f's_cmp_ge_u32 s{sJ}, {JC}' + chr(10) + f's_cselect_b32 s64, {hex(15 << 4 * (JC - 3 - EXT))}, 0' + chr(10) + f's_or_b32 s{A.sREQ}, s{A.sREQ}, s64' if vt and EC else ''}
            {'' if vt else f's_cmp_lt_u32 s{sJ}, 2' + chr(10) + f's_cselect_b32 s{A.sREQ}, {0x504 if EXT else 4}, s{A.sREQ}'}
            s_lshl_b32 s64, s{A.sWAVE}, {14 + NU}
            s_add_u32 s{A.sPB}, s64, s{A.sPO}
            s_add_u32 s{A.sPB + 1}, s{A.sPB}, 4096
            s_add_u32 s{A.sPB + 2}, s{A.sPB}, {E(8192)}
            s_add_u32 s{A.sPB + 3}, s{A.sPB}, {E(12288)}
            """)
        w3 = L(f"v_min_u32 v25, 15, v0\nv_lshlrev_b32 v25, {FSH}, v25\nv_{'max' if SW else 'min'}_u32 v13, {(8 if SW else 7) << FSH}, v25")
        w4 = L(f"s_lshl_b32 s{A.sM0}, s{A.sWAVE}, 13") + jumps[:8] + L(F1_LOAD) + jumps[8:]
        w5 = L(f"""
            {f'v_add_u32 v10, s{A.sM0}, v{A.vL16}' + chr(10) + f'v_add_u32 v10, s{A.sM0}, v10' + ('' if NUMA.kv else chr(10) + f's_and_b32 s64, s{A.sM0}, 8192' + chr(10) + 'v_add_u32 v10, s64, v10') if NU else f'v_add_u32 v10, s{A.sM0}, v{A.vL16}'}
            v_add_u32 v11, 0x1000, v10
            v_cmp_eq_u32 vcc, 0, v24
            s_lshl_b32 s64, s{A.sWAVE}, 10
            s_cbranch_vccnz L_f1s{vt}4
            L_f1r{vt}4:
            """) + dma_flat(3, A.sK, 10) + adv_k() + L(f"""
            v_mov_b32 v{A.vFL}, v25
            v_lshrrev_b32 v24, 4, v0
            v_lshlrev_b32 v24, 2, v24
            v_and_b32 v25, 15, v0
            v_sub_u32 v24, v24, v25
            s_add_u32 s64, s64, s{A.sPO}
            s_add_u32 s{A.sPS}, s64, {E(65536)}
            s_mov_b32 s{A.sLO}, {hex(f2u(float(opt['lo'])))}
            s_and_b32 s65, s{A.sREQ}, {hex(15 << 4 * (JC - 3 - EXT)) if vt and EC else 0}
            s_cmp_eq_u32 s{A.sWAVE}, 0
            s_cselect_b32 s{A.sRT}, s{A.sREQ}, s65
            s_lshr_b32 s64, s{K.sWAVE}, 1
            s_lshl_b32 s64, s64, 17
            s_and_b32 s65, s{K.sWAVE}, 1
            s_lshl_b32 s65, s65, 12
            s_add_u32 s64, s64, s65
            v_add_u32 v14, s64, v7
            v_mov_b32 v{A.vNEG}, 0xff800000
            """) + [I(f"v_cmp_lt_i32 s[{A.sTRI[e]}:{A.sTRI[e]+1}], {-e}, v24") for e in range(4)]
        head6 = L(f"""
            {F2_LOAD}
            v_mov_b32 v{A.vF0}, v15
            v_add_u32 v{A.vRD1}, 0x10000, v{A.vL16}
            v_mov_b32 v{A.vDM0}, v10
            v_mov_b32 v{A.vDM1}, v11
            s_mov_b64 s[60:61], s[76:77]
            s_mov_b32 s62, s78
            s_mov_b32 s63, 0x20000
            """) + side.code_addr(0, 10)
        kvq.X6LOW = True; asmlib.VMX = False
        body, left = kvq.kv_to_q(pt, O(o + "15"), [int(x, 16) for x in opt[o + "st"]], O(o + "f"), [side.flag_store(sFL, 15, 12)], lambda: fst(2, 26),
                                 {0: w0, 1: w1_, 2: yadr if vt == 0 else [], 3: w3, 4: w4, 5: w5}, head6, dma_flat(1, A.sK) + adv_k(),
                                 [] if vt else [[i] for i in yst], 16)
        asmlib.VMX = True
        assert len(left) == (8 if vt else 0), len(left)
        st = kvq.Storer(A.sT1, "KV4")
        park = [I(f"v_accvgpr_write_b32 a{128 + 4*n + e}, v{int(r[2:r.index(':')]) + e}") for n, (r, off) in enumerate(left) for e in range(4)]
        later = [st.st(R("a", 128 + 4 * n, 4), off) for n, (r, off) in enumerate(left)]
        xch = ([WAITV([("T", 3)], lgkm0=True), I("s_barrier")] + stamp(26) + rd_batch(3, 0) + q_from_lds() +
               L(f"""v_cmp_eq_u32 vcc, 0, v24
               v_mov_b32 v{A.vX + 7}, {3 if vt else 4 + EXT}
               v_or_b32 v{A.vRL + 1}, s{A.sNC}, v{A.vL16}
               s_cbranch_vccnz L_f1s{vt}5
               L_f1r{vt}5:
               s_mov_b32 s{A.sT1}, s{K.sOOFF}
               {f's_add_u32 s{A.sT0}, s94, s{sSEL}' if NU else f's_mov_b32 s{A.sT0}, s94'}
               s_cmp_eq_u32 s{A.sWAVE}, 0
               s_cselect_b32 s{A.sPT}, {(4 + EXT) * vt}, 0""") + [I(f"v_mov_b32 v{A.vNM + r}, {NM0}") for r in range(8)] + [NEED(R("a", 0, 96))])
        g, sm = first_qk(False)
        g.sc[46][0].tag = g.sc[46][0].tag + ["KVST", "KVM"]
        g.put(48 + 2, side.flag_store(sFL, A.vF0, A.vX + 7))
        nq = O('nq')
        qst = [([I(f"s_add_u32 s3, s{A.sQ}, {E((n >> 2) * 4096)}")] if n % 4 == 0 or n == nq else []) +
               [I(f"buffer_store_dwordx4 a[{4*n}:{4*n+3}], v{A.vRL + 1}, {WSR}, s3 offen offset:{(n & 3) * 1024} sc1", tag="QST")] for n in range(16)] if vt else []
        place_vm(g, [(dma_flat(2, A.sV), 1, 40)] + ([(flat(qst[:nq]), O('w0l'), 62)] if vt and nq else []))
        vq = VQ(); vq.add([I(f"v_mov_b32 v{r}, 0") for r in (A.vLS, A.vLS + 1)] + park)
        vq.run(g, 0, 0, 14)
        sm.run(g, 8, 64, final=False, upto=8)
        vq.run(g, 0)
        vq.force(g, 63, lambda i: i.op == "v_mov_b32")
        out += body + xch + g.flat() + stamp()
        if vt == 1:
            wo = [[I(f"s_add_u32 s3, s{A.sT0}, {E(n * 32768)}"), I(w[1].text, tag="KV4")] for n, w in enumerate(side.wo2_stores())]
            w_1 = win_qk(0, "L_st8", "L_rt8", groups=qst[nq:], dma=(3, A.sK, adv_k()), sm=sm, lo_check=True, dhi=40, vq=vq)
            dump = [i for at, i in vq.q[:max(0, len(vq.q) - 16)]]; vq.q = vq.q[len(dump):]
            if O('v') > 1: sys.stderr.write(f"; start: dumped {len(dump)}\n")
            if EXT:
                n0 = int(opt['l4'][0]); st.tag = "KV3"; st.cur = None
                l4 = [[st.st(R("a", 128 + 4 * n, 4), off) for n, (r, off) in enumerate(left[:n0])]]; st.cur = None
                l4.append([st.st(R("a", 128 + 4 * n, 4), off) for n, (r, off) in enumerate(left[n0:], n0)])
                wc = [int(x) for x in opt['wn']]; wn = [wo[sum(wc[:n]):sum(wc[:n + 1])] for n in range(4)]; assert sum(wc) == 7
                if SENT:
                    mk = [([I(f"s_add_u32 s3, s{A.sOP}, {10240 + (n >> 2) * 14336}")] if n % 4 == 0 or True else []) +
                          [I(f"buffer_store_dwordx4 a[232:235], v{A.vL16}, {WSR}, s3 offen offset:{(n & 3) * 1024} sc1", tag="KV4")] for n in range(8)]
                    mc = [int(x) for x in opt['mk']]; assert sum(mc) == 8
                    for n in range(3): wn[1 + n] = wn[1 + n] + mk[sum(mc[:n]):sum(mc[:n + 1])]
            def early(g):
                vq.run(g, 0); assert not vq.q
                for q in range(g.n):
                    for i in g.ve[q]:
                        if i.op.startswith("v_accvgpr"): assert not any(set(i.reads) & set(g.m[x].writes) for x in range(q + 1)), (q, i.text)
            c.block("kv1", "L_kv1:", out, w_1, dump, fst(3),
                    win_pv(0, cz=True, pre_dma=(0, A.sV), tags=["QST"], vq_first=early,
                           post=L(f"s_xor_b32 s3, s47, 64\nv_mov_b32 v{A.vRL}, 1") + (L(f"v_min_u32 v{A.vRL + 1}, 1, v{A.vL16}\nv_lshlrev_b32 v{A.vRL + 1}, 29, v{A.vRL + 1}\nv_or_b32 v{A.vRL + 1}, s{A.sNC}, v{A.vRL + 1}") if PW else
                                L(f"v_or_b32 v{A.vRL + 1}, s{A.sNC}, v{A.vF0}")) + [side.flag_store(3, A.vRL + 1, A.vRL)]), fst(3),
                    *([win_qk(1, "L_st9", "L_rt9", groups=later, ghi=60, scal=mask_regs(False, (0, 1))), fst(3),
                       win_pv(1, groups=wo, glo=1, ghi=34, dlo=4, scal=mask_regs(False, (3,)), tail=L("s_branch L_loop_mid"))] if not EXT else
                      [win_qk(1, "L_st9", "L_rt9", groups=l4[0], ghi=60), fst(3), win_pv(1, groups=l4[1], ghi=60), fst(3),
                       win_qk(0, "L_st12", "L_rt12", extra=L(FL_LOAD), groups=wn[0], glo=6, scal=mask_regs(False, (0, 1))),
                       win_pv(0, tags=["KV3"], groups=wn[1], ghi=44, chk=L(f"v_cmp_gt_u32 vcc, 3, v{A.vRL + 1}\ns_cbranch_vccnz L_f4s\nL_f4r:"),
                              post=L(f"v_mov_b32 v{A.vX + 7}, 4") + [side.flag_store(sFL, A.vF0, A.vX + 7)]), fst(3),
                       win_qk(1, "L_st13", "L_rt13", groups=wn[2], scal=mask_regs(False, (2, 3))),
                       win_pv(1, groups=wn[3], glo=1, ghi=20 if len(wn[3]) < 4 else 32, dlo=1 if len(wn[3]) < 4 else 4, tail=L("s_branch L_loop_mid"))]))
            b_ = c.blocks["kv1"]
            if not EXT: b_[-1:-1] = mask_regs(False, (2,))
            assert max(n for n, i in enumerate(b_) if i.tag == "KV4") < max(n for n, i in enumerate(b_) if i.kind == "dma")
        else:
            assert not vq.q
            c.block("kv0", "L_kv0:", out, f"s_cmp_eq_u32 s{sJ}, 0\ns_cbranch_scc1 L_j0")
            c.block("k1", win_qk(0, "L_st10", "L_rt10", dma=(3, A.sK, adv_k()), sm=sm, lo_check=True, dhi=40, scal=mask_regs(False)), fst(3),
                    win_pv(0, cz=True, pre_dma=(0, A.sV), tail=L(f"s_cmp_lg_u32 s{A.sIT}, 0\ns_cbranch_scc1 L_loop_top")), "s_branch L_p1")
            c.block("j0", "L_j0:", mask_regs(False), ZZ(), f"v_accvgpr_write_b32 a{aOF}, 0\nv_accvgpr_write_b32 a{aOF + 1}, 0", [i for kb in range(4) for i in mask_blk(0, kb, 0, inplace=True)], mask_regs(True),
                    zero_O_mfma(mix(init_softmax(0), dma_flat(3, A.sK) + adv_k() + L(FP_LOAD), 1, 100), A.vP1),
                    [i for kb in range(4) for i in mask_blk(1, kb, 1)], "s_branch L_p2")

def build_att(c):
    fs = lambda: fst(3)
    c.block("loop_top", ".p2align 6\nL_loop_top:", fs(), win_qk(1, "L_st1", "L_rt1", extra=[side.touch(0, 60, 0, nt=False)] if opt['tl'] == '1' else []), win_pv(1))
    c.block("loop_mid", "L_loop_mid:", fs(), win_qk(0, "L_st0", "L_rt0", head=L(f"s_and_b32 s{A.sREQ}, s{A.sRT}, 15\ns_cbranch_scc1 L_fll\nL_fllr:\ns_lshr_b32 s{A.sRT}, s{A.sRT}, 4")),
            win_pv(0, tail=L(f"s_sub_u32 s{A.sIT}, s{A.sIT}, 1\ns_cmp_lg_u32 s{A.sIT}, 0\ns_cbranch_scc1 L_loop_top"),
                   chk=L(f"""v_cmp_gt_u32 vcc, s{A.sREQ}, v{A.vRL + 1}
                   s_cbranch_vccnz L_fls0
                   L_flr0:
                   s_and_b32 s3, s{A.sPT}, 15
                   s_cbranch_scc1 L_pub3
                   L_pub3r:
                   s_lshr_b32 s{A.sPT}, s{A.sPT}, 4""")))
    LAY = O('lay'); assert EC or not LAY
    c.block("ph", "L_p1:", stamp(), f"s_cmp_eq_u32 s{A.sMODE}, 0\ns_cbranch_scc1 L_final_h",
            f"s_cmp_lt_u32 s{sJ}, {JC}\ns_cbranch_scc1 L_p1n" if LAY else f"s_cmp_ge_u32 s{sJ}, {JC}\ns_cbranch_scc1 L_p1c" if EC else "")
    c.block("p1", "L_p1n:", win_qk(1, "L_st5", "L_rt5", masked=True), fs(),
            win_pv(1, scal=mask_regs(True), valu=[i for kb in range(4) for i in mask_blk(1, kb, 1)], vlo=34, post=L(FP_LOAD)), fs())
    g = Gaps(qkB_mfmas())
    half_reads(g, 1, 2, [("T", 2)])
    half_dma(g, dma_flat(0, A.sV))
    ck = check(0, "L_st6")
    spread_any(g, softmax_half(0, 1) + ck[:2], 0, 28); g.put(31, ck[2])
    c.block("p2", "L_p2:", g.flat(), "L_rt6:", fs(), f"s_cmp_gt_u32 s{sJ}, {15 - JC}\ns_cbranch_scc1 L_p3o" if LAY else f"s_cmp_le_u32 s{sJ}, {15 - JC}\ns_cbranch_scc1 L_p3k",
            f"s_cmp_ge_u32 s{sJ}, {JC}\ns_cbranch_scc1 L_p3c" if not EC else "")
    smB = lambda: SM(groups_B(), add_l(0))
    pchk = lambda n: L(f"v_cmp_ne_u32 vcc, 1, v{A.vRL}\ns_cbranch_vccnz L_fps{n}\nL_fpr{n}:")
    lfin = lambda: add_l(1, (1,)) + zip2(xlane("v_add_f32", A.vLS, A.vX), xlane("v_add_f32", A.vLS + 1, A.vX + 1)) + L(f"v_rcp_f32 v{A.vRL}, v{A.vLS}\nv_rcp_f32 v{A.vRL+1}, v{A.vLS+1}")
    w2a = lambda: L(f"s_add_u32 s{A.sVn}, s{A.sVn}, {E(32768)}")
    c.block("p3o", "L_p3o:", win_pv(0, sm=smB(), nslot=0, end=check(1, "L_st2", only=1)), "L_rt2:", stamp())
    g = Gaps(pvB_mfmas())
    half_reads(g, 0, 3, [("T", 3)])
    half_dma(g, dma_flat(2, A.sVn) + w2a())
    spread_any(g, of_rd(A.vX + 4) + [i for ks in range(8) for i in cvt_ctx(ks, 0)], 1, 32)
    c.block("pBo", "L_pBo:", g.flat(), stamp(), "s_branch L_op1" if not LAY else "")
    pl = [I(f"buffer_load_dwordx4 v[{A.vX+4}:{A.vX+7}], v{A.vL16}, {WSR}, s{A.sPS} offen sc1")] + [
        I(f"buffer_load_dwordx4 a[{A.aX + 4*j}:{A.aX + 4*j + 3}], v{A.vL16}, {WSR}, s{A.sPB + j // 4} offen offset:{(j & 3) * 1024} sc1 {opt['pfl']}") for j in range(16)]
    cm = lambda qb, ks, hf: mfma(R("v", Oreg(2 * ks + hf, qb), 4), R("a", 246 - 2 * hf, 4), R("a", A.aX + (qb * 8 + ks) * 4, 4), R("v", Oreg(2 * ks + hf, qb), 4))
    if EC:
        n1 = O('n1')
        g = Gaps(qkB_mfmas(Freg5) + [cm(qb, ks, hf) for qb in range(2) for ks in range(8) for hf in range(2)])
        half_reads(g, 1, 2, [("T", 2)], bar=47, Freg4=Freg5)
        g.put_s(31, NEED(R("a", A.aX, 32))); g.put_s(45, NEED(R("a", A.aX + 32, 32)))
        place_vm(g, [(dma_flat(0, A.sV), 5, 44)])
        put_check(g, check(0, "L_st14"), SM(half_groups(0, 1)).run(g, 0, 56))
        c.block("p1c", "L_p1c:", win_qk(1, "L_st3", "L_rt3", masked=True, groups=[[i] for i in pl[:n1]], glo=1, ghi=60,
                                           scal_at=[(16 * kb + (4 if kb < 3 else 0), mask_regs(True, (kb,))) for kb in range(4)]), fs(),
                win_pv(1, valu=[i for kb in range(4) for i in mask_blk(1, kb, 1)], vlo=4, groups=[[i] for i in pl[n1:]], glo=2, ghi=46), fs(), f"""
                v_cmp_neq_f32 vcc, v{A.vNM}, v{A.vX+4}
                v_cmp_neq_f32 s[64:65], v{A.vNM+4}, v{A.vX+5}
                s_nop 0
                s_or_b64 vcc, vcc, s[64:65]
                s_cbranch_vccnz L_comb
                """)
        c.block("p2c", f"v_add_f32 v{A.vLS}, v{A.vX+6}, v{A.vLS}\nv_add_f32 v{A.vLS+1}, v{A.vX+7}, v{A.vLS+1}", g.flat(), "L_rt14:", fs(), "s_branch L_p3o" if not LAY else "")
    if not EC: c.block("p3c", "L_p3c:", pchk(0), win_pv(0, sm=smB(), nslot=0, end=check(1, "L_st3", only=1), groups=[[i] for i in pl], glo=0, ghi=60, nodma=True), "L_rt3:", stamp(),
            NEED(R("v", A.vX + 4, 4)), f"""
            v_cmp_neq_f32 vcc, v{A.vNM}, v{A.vX+4}
            v_cmp_neq_f32 s[64:65], v{A.vNM+4}, v{A.vX+5}
            v_add_f32 v{A.vX+6}, v{A.vX+6}, v{A.vLS}
            v_add_f32 v{A.vX+7}, v{A.vX+7}, v{A.vLS+1}
            s_or_b64 vcc, vcc, s[64:65]
            s_cbranch_vccnz L_comb
            """)
    F3 = lambda b, f: 192 + 4 * f if b == 2 else Freg(b, f)
    g = Gaps([pvB_mfma(db, kp, F3) for db in range(16) for kp in ((0, 1) if db % 2 == 0 else (1, 0))] + [cm(qb, ks, hf) for qb in range(2) for ks in range(8) for hf in range(2)])
    for b_, pos in ((1, [0, 0, 2, 2, 4, 4, 5, 6]), (2, [6, 8, 8, 10, 10, 12, 12, 14]), (3, [16, 16, 17, 18, 18, 19, 20, 20])):
        for f, k in enumerate(pos): g.put(k, rd_frag(0, b_, f, F3(b_, f)))
    g.put_s(7, NEED(R("a", Freg(1, 0), 16))); g.put_s(11, NEED(R("a", Freg(1, 4), 16))); g.put_s(15, NEED(R("a", 192, 16))); g.put_s(19, NEED(R("a", 208, 16)))
    g.put_s(23, NEED(R("a", Freg(1, 0), 32))); g.put_s(31, NEED(R("a", A.aX, 32))); g.put_s(47, NEED(R("a", A.aX + 32, 16))); g.put_s(55, NEED(R("a", A.aX + 48, 16)))
    g.put_s(34, WAITV([("T", 3)], lgkm0=True)); g.put_s(35, I("s_barrier"))
    for f, r in enumerate(rd_batch(3, 0)): g.put(44 + RPAT[0][f], r)
    g.put_s(62, NEED(R("a", Freg(0, 0), 32)))
    place_vm(g, [(dma_flat(1, A.sK) + dma_flat(2, A.sVn) + w2a(), 1, 61)])
    vq = VQ(); vq.add(L(f"v_mov_b32 v{A.vLS}, v{A.vX+6}\nv_mov_b32 v{A.vLS+1}, v{A.vX+7}") + of_rd(A.vX + 4))
    cv = [cvt_ctx(ks, 0) for ks in range(8)]
    for ks in range(8): vq.add(cv[ks][:-4], 4)
    nsub = len(vq.q)
    vq.run(g, 0, 0, 30); vq.force_level(g, lambda i: True, 0, 30)
    for ks in range(8): vq.add(cv[ks][-4:], 32 + 2 * ks + 5)
    vq.run(g, 0, 30); vq.force(g, 63, lambda i: True)
    if not EC: c.block("pBc", g.flat(), stamp())
    comb = [I("L_comb:")] + [I(pl[0].text), I("s_waitcnt vmcnt(0)")] + (dma_flat(1, A.sK) if not EC else []) + L(f"""
    s_nop 7
    v_sub_f32 v{A.vX}, v{A.vNM}, v{A.vX+4}
    v_sub_f32 v{A.vX+1}, v{A.vNM+4}, v{A.vX+5}
    v_max_f32 v{A.vX}, 0, v{A.vX}
    v_max_f32 v{A.vX+1}, 0, v{A.vX+1}
    """) + sub_S(1, (1,)) + (sub_S(0) if EC else []) + rescale_state() + (softmax_half(0, 0) if EC else sm_flat(groups_B())) + L(f"""
    v_sub_f32 v{A.vX}, v{A.vNM}, v{A.vX+4}
    v_sub_f32 v{A.vX+1}, v{A.vNM+4}, v{A.vX+5}
    v_cvt_i32_f32 v{A.vX}, v{A.vX}
    v_cvt_i32_f32 v{A.vX+1}, v{A.vX+1}
    v_ldexp_f32 v{A.vX}, 1.0, v{A.vX}
    v_ldexp_f32 v{A.vX+1}, 1.0, v{A.vX+1}
    v_and_b32 v{A.vX}, 0xffff0000, v{A.vX}
    v_and_b32 v{A.vX+1}, 0xffff0000, v{A.vX+1}
    v_fmac_f32 v{A.vLS}, v{A.vX}, v{A.vX+6}
    v_fmac_f32 v{A.vLS+1}, v{A.vX+1}, v{A.vX+7}
    v_lshrrev_b32 v{A.vX+2}, 16, v{A.vX}
    v_lshrrev_b32 v{A.vX+3}, 16, v{A.vX+1}
    """)
    n = 0
    for qb in range(2):
        for ks in range(8):
            for w in range(4):
                t = A.vT + (n % 8); n += 1
                o = Oreg(2 * ks + (w >> 1), qb) + 2 * (w & 1)
                comb += L(f"""v_accvgpr_read_b32 v{t}, a{A.aX + (qb * 8 + ks) * 4 + w}
                v_dot2c_f32_bf16 v{o}, v{t}, v{A.vX + 2 + qb}
                v_dot2c_f32_bf16 v{o+1}, v{t}, v{A.vX + qb}""")
    comb += L(f"s_nop 3\ns_branch {'L_p2' if EC else 'L_pBo'}")
    SP = O('sp')
    S5 = O('s5')
    slots = [3, 1, 2, 0, 4, 3, 1] if S5 else [3, 1, 2, 0, 3, 1, 2]
    def op_out(j, split=False):
        b = j & 1
        jo = j
        ins = L(f"s_add_u32 s{A.sT0}, s{A.sOP}, {E(2 * jo * 1024)}\ns_add_u32 s{A.sT1}, s{93 if NU else A.sOP}, {(0 if NU else 14336) + E(2 * jo * 1024)}")
        for pp in range(2):
            if split and pp == 1: ins.append(64)
            for qb in range(2):
                a, d = Sreg(b, 2 * pp, qb), Sreg(b, 2 * pp + 1, qb)
                if BOP == 2 and j == 0 and pp == 0: ins += L(f"v_mul_f32 v{A.vSUM + 2 + qb}, -v{A.vNM + 4 * qb}, v{A.vRL + qb}")
                if BOP == 1 and j == 0 and pp == 0:
                    nm = A.vNM + 4 * qb
                    ins += L(f"""v_max3_f32 v{nm}, |v{a}|, |v{a+1}|, |v{a+2}|
                    v_max3_f32 v{nm}, |v{a+3}|, |v{d}|, v{nm}
                    v_max3_f32 v{nm}, |v{d+1}|, |v{d+2}|, v{nm}
                    v_mul_f32 v{nm}, {opt['bopk']}, v{nm}""") + [I(f"v_mov_b32 v{nm + e}, v{nm}") for e in (1, 2, 3)] + L(f"v_mul_f32 v{A.vSUM + 2 + qb}, -v{nm}, v{A.vRL + qb}")
                if BOP and j >= 3 - BOP: ins += [I(f"v_fma_f32 v{r + e}, v{r + e}, v{A.vRL + qb}, v{A.vSUM + 2 + qb}") for r in (a, d) for e in range(4)]
                else: ins += [I(f"v_mul_f32 v{r + e}, v{A.vRL + qb}, v{r + e}") for r in (a, d) for e in range(4)]
                ins += L(f"""v_cvt_pk_bf16_f32 v{a}, v{a}, v{a+1}
                v_cvt_pk_bf16_f32 v{a+1}, v{a+2}, v{a+3}
                v_cvt_pk_bf16_f32 v{a+2}, v{d}, v{d+1}
                v_cvt_pk_bf16_f32 v{a+3}, v{d+2}, v{d+3}""")
                ins.append(I(f"buffer_store_dwordx4 v[{a}:{a+3}], v{A.vL16}, {WSR}, s{A.sT0 + qb} offen offset:{pp * 1024} {opt['ofl'].replace('+', ' ')}", tag=("OP", j)))
        return ins
    fop0 = lambda: L(f"""
    s_sub_u32 s64, 15, s{sJ}
    s_min_u32 s64, s64, s{sJ}
    s_mul_i32 s{sFL}, s64, {2 * FSTR}
    s_and_b32 s64, s{sJ}, 8
    s_lshl_b32 s64, s64, 1
    s_add_u32 s64, s64, s{sH}
    s_lshl_b32 s64, s64, 2
    s_add_u32 s{sFL}, s{sFL}, s64
    s_add_u32 s{sFL}, s{sFL}, {WS_FOP}
    s_lshl_b32 s64, s{A.sWAVE}, 8
    s_add_u32 s{sFL}, s{sFL}, s64
    s_add_u32 s3, s{sFL}, {FSTR}
    v_lshrrev_b32 v{A.vX + 7}, 5, v{A.vL16}
    v_min_u32 v{A.vX + 7}, 1, v{A.vX + 7}
    v_lshlrev_b32 v{A.vX + 6}, 3, v{A.vL16}
    v_lshl_or_b32 v{A.vX + 6}, v{A.vX + 7}, 29, v{A.vX + 6}
    v_mov_b32 v{A.vX + 5}, 1
    """)
    R3 = opt['r3'] == '1'
    fop = (lambda: red3.fop(A.vL16, 40, sFL, 3)) if R3 else fop0
    vFV = 40 if R3 else A.vX + 5; EH = R3 and opt['eh'] == '1'
    def dbgst():
        if opt['dbgst'] == '0': return []
        o = f"""
        s_load_dwordx2 s[72:73], s[0:1], {A_DBG}
        v_accvgpr_read_b32 v11, a{aST+1}
        v_accvgpr_read_b32 v15, a{aST}
        v_lshrrev_b32 v12, 4, v{A.vL16}
        v_mov_b32 v13, {side.OOB}
        s_waitcnt lgkmcnt(0)
        {srd(68, 72, 256)}
        s_lshl_b32 s64, s2, 2
        s_add_u32 s64, s64, s{A.sWAVE}
        s_cmp_eq_u32 s64, {O('dbgst')}
        s_cselect_b32 s64, 0, {side.OOB}
        s_and_b32 s65, s{sJ}, 8
        s_or_b32 s65, s65, s{A.sWAVE}
        s_cmp_eq_u32 s65, 0
        s_cselect_b32 s65, 0, {side.OOB}
        """
        for n, ln in enumerate([int(x) for x in opt['dbgl'].split(',')]):
            o += f"s_add_u32 s66, s64, {4 * (2 + n)}\nv_cmp_eq_u32 vcc, {ln}, v12\nv_mov_b32 v14, s66\ns_nop 1\nv_cndmask_b32 v13, v13, v14, vcc\n"
        o += f"""buffer_store_dword v11, v13, s[68:71], 0 offen
        buffer_store_dword v15, v13, s[68:71], 0 offen offset:28
        s_sub_u32 s66, s{sSTK}, 1
        v_mov_b32 v13, {side.OOB}
        v_cmp_eq_u32 vcc, s66, v12
        v_mov_b32 v14, 4
        s_nop 1
        v_cndmask_b32 v13, v13, v14, vcc
        v_or_b32 v13, s65, v13
        buffer_atomic_umax v11, v13, s[68:71], 0 offen
        v_not_b32 v11, v11
        v_min_u32 v13, 1, v12
        v_lshlrev_b32 v13, 29, v13
        v_or_b32 v13, s65, v13
        s_nop 1
        buffer_atomic_umax v11, v13, s[68:71], 0 offen
        s_waitcnt vmcnt(0)
        """
        return L(o)
    fin = lambda: (L("s_mov_b64 exec, -1\ns_waitcnt vmcnt(0)") + stamp(30) + L(f"""
        s_lshl_b32 s{A.sT0}, s2, 2
        s_add_u32 s{A.sT0}, s{A.sT0}, s{A.sWAVE}
        s_lshl_b32 s{A.sT0}, s{A.sT0}, 9
        s_add_u32 s{A.sT0}, s{A.sT0}, {WS_STAMP}
        v_lshrrev_b32 v10, 1, v{A.vL16}
        buffer_store_dwordx2 a[{aST}:{aST+1}], v10, {WSR}, s{A.sT0} offen
        """) + dbgst()) if STAMP else []
    def last_reads(g, slot):
        for b in range(1, 4):
            for f, r in enumerate(rd_batch(slot, b)): g.put((b - 1) * 16 + RPAT[0][f], r)
            g.put_s(b * 16 - 1, NEED(R("a", Freg(b, 0), 32)))
    ctx_v = lambda qb, ks: R("v", Oreg(2 * ks, qb), 4)
    ctx_a = lambda qb, ks: R("a", A.aX + (qb * 8 + ks) * 4, 4)
    pub = lambda: [WAITV([("OP", 6)])] + L(f"buffer_store_dword v{vFV}, v{vFV + 1}, {WSR}, s3 offen sc1") + stamp(30)
    def outproj(tag, ctx, first=(), tags0=(), post0=()):
        ow = []
        for j in range(7):
            k = 2
            if j == 0 and tag:
                g = Gaps(qk_mfmas(0, "zero", breg=ctx, order=[(kb, qb) for qb in range(2) for kb in range(4)], fr=Freg4))
                half_reads(g, slots[0], slots[1], [("T", slots[1])], bar=47)
                def cv0():
                    vq = VQ()
                    for ks in range(8): vq.add(cvt_ctx(ks, 1), 3 if ks > 5 else 0)
                    k = vq.run(g, 0, 0, 31); vq.force_level(g, lambda i: True, 0, 31); return min(k, 31)
                if not S5: k = cv0()
            else:
                g = Gaps(qk_mfmas(j & 1, "nm" if BOP and j >= 3 - BOP else "zero", breg=ctx, snk=j < 6))
                if j < 6: weave_reads(g, slots[j], slots[j + 1], [("T", slots[j + 1])] + (list(tags0) if j == 0 else []))
                else: last_reads(g, slots[j])
            if j == 0:
                kk = 48 if not PW else O('pfg') - 4
                for i in post0: kk = g.fit(kk, i) if i.slots()[0] else g.fit_s(kk + (i.op == "WAITV"), i) + 1
            if S5 and j == 0: place_vm(g, [(dma_flat(0, A.sVn) + w2a() + dma_flat(4, A.sVn) + w2a(), 1 if not tag else 5, 61)])
            elif S5:
                if j < 3: weave_dma(g, slots[j + 4], A.sVn, w2a(), 1, O('odh5'))
                if j == 2: g.fit(30, I(f"v_add_u32 v43, 0x20000, v{A.vL16}"))
            elif j + 3 < 7: weave_dma(g, slots[j + 3], A.sVn, w2a(), k if j == 0 else 1, 60 if j == 0 else O('odh'))
            if j == 0 and tag and S5: k = cv0()
            if j == 0: assert not seq_fit(g, list(first) + (fop() if not (tag or S5) else []), k)[1]
            if j == 0 and NU: scal_fit(g, L(NU_OPD), 30)
            if j == 0 and BOP == 2:
                est = []
                for qb in range(2):
                    a, nm = Sreg(0, 0, qb), A.vNM + 4 * qb; d = Sreg(0, 1, qb)
                    est += L(f"""v_max3_f32 v{nm}, |v{a}|, |v{a+1}|, |v{a+2}|
                    v_max3_f32 v{nm}, |v{a+3}|, |v{d}|, v{nm}
                    v_max3_f32 v{nm}, |v{d+1}|, |v{d+2}|, v{nm}
                    v_mul_f32 v{nm}, {opt['bopk']}, v{nm}""") + [I(f"v_mov_b32 v{nm + e}, v{nm}") for e in (1, 2, 3)]
                if tag: spread_any(g, est[:7], 40, 52); spread_any(g, est[7:], 52, 62)
                else: spread_any(g, est, 36, 62)
            if j == 3 and (tag or S5): assert not seq_fit(g, fop(), 1)[1]
            if j == 2: assert not seq_fit(g, side.sel_a(A.vL16), 1)[1]
            if j in (4, 5): assert not seq_fit(g, {4: side.sel_b(tag), 5: side.sel_c()}[j], 40 if j == 5 else 2)[1]
            if j == O('efw'):
                assert not seq_fit(g, [WAITV([("OP", (side.NE - 1) // 2)]), I(f"buffer_store_dword v{vFV}, v{vFV + 1}, {WSR}, s{sFL} offen sc1")], O('efg'))[1]
            if j == 6 and tag and SENT:
                assert EH and not seq_fit(g, L(f"s_sub_u32 s64, s{sJ}, 8\ns_and_b32 s64, s64, {side.OOB}\ns_or_b32 s64, s64, s3") +
                                          [WAITV([("OP", 4)]), I(f"buffer_store_dword v{vFV}, v{vFV + 1}, {WSR}, s64 offen sc1")], O('sg'))[1]
            if SP and tag and j == 4: scal_fit(g, L("s_mov_b32 s92, 0"))
            if SP and not tag:
                if j == 3: assert not seq_fit(g, L(f"s_add_u32 s92, s{sFL}, 2048") + [WAITV([("OP", 1)]), I(f"buffer_store_dword v{vFV}, v{vFV + 1}, {WSR}, s92 offen sc1")], O('spa'))[1]
                if j == 4:
                    pre_, ld_ = red3.pf_poll(); link(pre_ + [ld_]); k0 = scal_fit(g, pre_, 12); g.fit(max(k0 + 1, O('spp')), ld_)
                if j == 5:
                    pfl = red3.pf_loads(A.vL16); k0 = scal_fit(g, red3.pf_test(), O('spt'))
                    place_vm(g, [([i for x in pfl[:8] for i in x], k0 + 1, 62)], relax=True)
                if j == 6: place_vm(g, [([i for x in pfl[8:] for i in x], 1, 40)], relax=True)
            if j > 0: k = fill_valu(g, op_out(j - 1), 3, 58 if j < 6 else 36)
            if j == 6: k, last = seq_fit(g, op_out(6, True), max(k, 38))
            if tag and j in (0, 3, 5):
                n = {0: 1, 3: 2, 5: 3}[j]
                g.put_s(62, I(f"s_cmp_eq_u32 s{sJ}, {O('jy')}")); g.put_s(63, I(f"s_cbranch_scc1 L_y{n}"))
            ow += g.flat() + (L(f"L_y{n}r:") if tag and j in (0, 3, 5) else []) + fst(4, 30)
        return ow + stamp(30) + [i for i in last if not isinstance(i, int)] + ([] if EH else pub())
    c.block("op1", "L_op1:", outproj(1, ctx_v, lfin()), f"s_cmp_lt_u32 s{sJ}, 8\ns_cbranch_scc1 L_red")
    if R3:
        mv, farv = red3.main_v(A.vL16, lambda: stamp(30), O('lagv'), SENT)
        pubv = lambda: stamp(30) if SENT else pub() if EH else []
        c.block("end1", f"s_cmp_eq_u32 s{A.sWAVE}, 3\ns_cbranch_scc1 L_vend3", red3.head(True), pubv(), mv, "L_vend:", fin(), "s_endpgm")
        c.block("end3", "L_vend3:", pubv(), "s_branch L_vend", "s_waitcnt vmcnt(0)", farv)
    else: c.block("end1", fin(), "s_endpgm")
    qld = [[I(f"buffer_load_dwordx4 a[{4*n}:{4*n+3}], v{A.vL16}, {WSR}, s{72 + n // 4} offen offset:{(n & 3) * 1024} sc1 {opt['qfl']}")] for n in range(16)]
    c.block("p3k", "L_p3k:", f"""
            s_mov_b32 s72, s{A.sQ}
            s_add_u32 s73, s72, 4096
            s_add_u32 s74, s72, {E(8192)}
            s_add_u32 s75, s72, {E(12288)}
            """, pchk(1), win_pv(0, sm=smB(), nslot=0, end=check(1, "L_st7", only=1), groups=qld, glo=0, ghi=60, nodma=True), "L_rt7:", stamp())
    g = Gaps(pvB_mfmas())
    half_reads(g, 0, 3, [("T", 3)])
    half_dma(g, dma_flat(1, A.sK) + adv_k())
    scal_fit(g, L(f"s_sub_u32 s{A.sIT}, {15 - JC}, s{sJ}\ns_mov_b32 s{A.sMODE}, 0"))
    vq = VQ()
    vq.add(lfin() + L(f"""v_accvgpr_write_b32 a192, v{A.vRL}
        v_accvgpr_write_b32 a193, v{A.vRL + 1}
        v_mov_b32 v{A.vLS}, 0
        v_mov_b32 v{A.vLS + 1}, 0""") + [I(f"v_mov_b32 v{A.vNM + r}, {NM0}") for r in range(8)])
    vq.add(of_rd(A.vX + 4))
    for ks in range(8):
        for qb in range(2):
            vq.add(cvt_ctx(ks, qb), 4 * ks + 7 if qb else 0)
            vq.add([I(f"v_accvgpr_write_b32 a{A.aX + (qb * 8 + ks) * 4 + e}, v{Oreg(2 * ks, qb) + e}") for e in range(4)], 32)
    vq.run(g, 0)
    vq.force(g, 31, lambda i: f"v{A.vNM + 7}" in i.writes)
    w_b = g.flat()
    g, sm = first_qk(False)
    g.pre = [NEED(R("a", 0, 64))]
    g.put(40, I(f"v_cmp_gt_u32 vcc, 3, v{A.vRL + 1}")); g.put_s(43, I("s_cbranch_vccnz L_f2s")); g.put_s(43, I("L_f2r:"))
    place_vm(g, [(dma_flat(2, A.sV), 3, 44), ([I(FL_LOAD)], 0, 1)])
    sm.run(g, 8, 64, final=False, upto=8)
    vq.run(g, 32)
    vq.q = [(0, i) for at, i in vq.q]
    w_1 = win_qk(0, "L_st11", "L_rt11", dma=(3, A.sK, adv_k()), sm=sm, lo_check=True, vq=vq, dhi=40)
    npk = O('npk') if not BPV['on'] else 8; dump = [i for at, i in vq.q[:max(0, len(vq.q) - npk)]]; vq.q = vq.q[len(dump):]
    if O('v') > 1: sys.stderr.write(f"; switch: dumped {len(dump)}\n")
    def early(g):
        vq.run(g, 0); assert not vq.q
        for q in range(g.n):
            for i in g.ve[q]:
                if i.op.startswith(("v_cvt", "v_accvgpr")): assert not any(set(i.reads) & set(g.m[x].writes) for x in range(q + 1)), (q, i.text)
    c.block("sw", w_b, stamp(), g.flat(), fs(), w_1, dump, fs(),
            win_pv(0, cz=True, vq_first=early, pre_dma=(0, A.sV), tail=L(f"s_cmp_lg_u32 s{A.sIT}, 0\ns_cbranch_scc1 L_loop_top")), stamp())
    pst = lambda ks, qb: [I(f"buffer_store_dwordx4 v[{Oreg(2*ks, qb)}:{Oreg(2*ks, qb)+3}], v{A.vL16}, {WSR}, s{A.sPB + (qb*8+ks) // 4} offen offset:{(ks & 3) * 1024} sc1", tag="PST")]
    g = Gaps(pv_mfmas(1))
    weave_reads(g, 0, 3, [("T", 3)])
    k = 0; rest = []
    for ks in range(8):
        for qb in range(2):
            ins = cvt_ctx(ks, qb, A.vX + 6) + pst(ks, qb)
            if rest: rest += ins; continue
            k, rest = seq_fit(g, ins, max(k, 8 * ks + (7 if att3.SNK else 5 + 2 * qb) + 4))
    c.block("final_h", "L_final_h:", WAITV([("T", 0)], lgkm0=True), "s_barrier", rd_batch(0, 0), mix(softmax_half(1, 1), dma_flat(2, A.sVn) + w2a(), 1), check(1, "L_st4"), "L_rt4:", add_l(1), f"""
    v_mov_b32 v{A.vX+2}, v{A.vNM}
    v_mov_b32 v{A.vX+3}, v{A.vNM+4}
    v_mov_b32 v{A.vX+4}, v{A.vLS}
    v_mov_b32 v{A.vX+5}, v{A.vLS+1}
    buffer_store_dwordx4 v[{A.vX+2}:{A.vX+5}], v{A.vL16}, {WSR}, s{A.sPS} offen sc1
    """, of_rd(A.vX + 6), NEED(R("a", Freg(0, 0), 32)), stamp(), g.flat(), rest, stamp())
    c.block("op0", outproj(0, ctx_a, L(f"v_accvgpr_read_b32 v{A.vRL}, a192\nv_accvgpr_read_b32 v{A.vRL + 1}, a193"), ["PST"] if not PW else [],
                           L(f"s_xor_b32 s47, s47, 64\nv_mov_b32 v{A.vT}, 1") + ([side.flag_store(47, A.vF0, A.vT)] if not PW else
                           L(f"v_min_u32 v{A.vT + 1}, 1, v{A.vL16}\nv_lshlrev_b32 v{A.vT + 1}, 29, v{A.vT + 1}") + [WAITV(["PST"]), side.flag_store(47, A.vT + 1, A.vT)])))
    rm, far = red3.main_k(A.vL16, lambda: stamp(30), O('lag'), SP) if R3 else side.red_main(A.vL16, lambda: stamp(30), O('lag'), True, False)
    c.block("red", "L_red:", red3.head(False) if R3 else side.red_a(A.vL16), pub() if EH else [], rm, fin(), "s_endpgm")
    c.block("redfar", far)
    c.block("rpoll", red3.poll2(O('p2')) if O('p2') else side.red_poll())
    c.block("comb", comb)
    stubs = ""
    for n, b in ((0, "0"), (1, "1"), (2, "B"), (3, "1" if EC else "B"), (4, "1n"), (5, "1"), (6, "0B"), (7, "B"), (8, "f"), (9, "1"), (10, "f"), (11, "f")) + (((14, "0B"),) if EC else ()) + (((12, "0"), (13, "1")) if EXT else ()):
        stubs += f"L_st{n}:\ns_call_b64 s[{A.sRET}:{A.sRET+1}], L_slow{b}\ns_branch L_rt{n}\n"
    c.block("stubs", stubs)
    for nm, b, oth in (("0", 0, (0, 1)), ("1", 1, (0, 1)), ("1n", 1, ()), ("0B", 0, (1,)), ("B", 1, ()), ("f", 0, (0, 1))): c.block("slow" + nm, slow_sub(nm, b, oth))
    c.block("moe", red3.moe() if R3 else side.red_moe(), side.y_reduce2(lambda n: Oreg(2 * (n >> 1) + 1, n & 1)))
    c.block("spins", f"""
    L_fll:
    s_cmp_lg_u32 s{A.sREQ}, 15
    s_cbranch_scc1 L_fll1
    v_mov_b32 v{A.vFL}, 0
    s_mov_b32 s46, s47
    s_mov_b32 s{A.sREQ}, 1
    L_fll1:
    {FL_LOAD}
    s_branch L_fllr
    L_pub3:
    v_mov_b32 v{A.vX + 7}, s3
    """, side.flag_store(sFL, A.vF0, A.vX + 7), "s_branch L_pub3r",
            *[side.spin_stub(f"L_fhs{n}", f"L_fhr{n}", side.FH0_LOAD, 24, 91, "v_cmp_gt_u32 vcc, 1, v{vt}") for n in range(2)],
            *[side.spin_stub(f"L_fps{n}", f"L_fpr{n}", FP_LOAD, A.vRL, A.sSPIN) for n in range(EC, 2)],
            side.spin_stub("L_f4s", "L_f4r", FL_LOAD, A.vRL + 1, A.sSPIN, "v_cmp_gt_u32 vcc, 3, v{vt}") if EXT else [],
            side.spin_stub("L_f2s", "L_f2r", FL_LOAD, A.vRL + 1, A.sSPIN, "v_cmp_gt_u32 vcc, 3, v{vt}"),
            side.spin_stub("L_fls0", "L_flr0", FL_LOAD, A.vRL + 1, A.sSPIN, f"v_cmp_gt_u32 vcc, s{A.sREQ}, v{{vt}}"))

def layout(c):
    if opt['lay'] == '0': return
    seq = ["ph", "p1c", "p2c", "p3o", "pBo", "op1", "end1", "end3", "p1", "p2", "p3k"]
    o = [b for b in c.order if b not in seq]; k = o.index("loop_mid") + 1
    c.order = o[:k] + seq + o[k:]; assert c.order[c.order.index("p3k") + 1] == "sw"

def early_stubs(c):
    c.block("spins0", side.z_stub(0), side.z_stub(1), hw.key_stub(), side.nu_time() if NU else [],
            *[side.spin_stub(f"L_f1s{n}{w}", f"L_f1r{n}{w}", F1_LOAD if w == 4 else F2_LOAD, 24, 91, "v_cmp_eq_u32 vcc, 0, v{vt}") for n in range(2) for w in (4, 5)])

def paths(c):
    lp = ["loop_top", "loop_mid"]
    for end in ((["ph", "p1", "p2", "p3c", "pBc"], ["ph", "p1", "p2", "p3o", "pBo"], ["ph", "p1", "p2", "p3c", "comb", "pBo"]) if not EC else
                (["ph", "p1c", "p2c", "p3o", "pBo"], ["ph", "p1", "p2", "p3o", "pBo"], ["ph", "p1c", "comb", "p2", "p3o", "pBo"])):
        c.path("entry", "kv1", "loop_mid", *lp, *lp, *end, "op1", "end1")
    if opt['r3'] == '1': c.path("entry", "kv1", "loop_mid", *lp, *lp, "ph", "p1", "p2", "p3o", "pBo", "op1", "end3")
    c.path("entry", "kv0", "k1", *lp, *lp, "ph", "p1", "p2", "p3o", "pBo", "op1", "red")
    for own in (["j0"], ["k1", "ph", "p1"], ["k1", *lp, "ph", "p1"], ["k1", *lp, *lp, "ph", "p1"]):
        for nh in (0, 1, 2):
            c.path("entry", "kv0", *own, "p2", "p3k", "sw", *(lp * nh + ["ph"] * (nh > 0)), "final_h", "op0", "red")
    for b in ("redfar", "rpoll", "stubs", "slow0", "slow1", "slow1n", "slow0B", "slowB", "slowf", "moe", "spins", "spins0"): c.path(b)

if __name__ == "__main__":
    c = CFG(verbose=O("v"))
    build_front(c); early_stubs(c); build_att(c); layout(c); paths(c)
    body = c.finalize()
    kn = NAME + "_kernel"
    print("; @launch grid=(256,1,1) block=(256,1,1) lds=163840")
    print('.amdgcn_target "amdgcn-amd-amdhsa--gfx950"\n.text')
    print(".macro M d, a, b, c\nv_mfma_f32_16x16x32_bf16 \\d, \\a, \\b, \\c\n.endm")
    print(kernel_header(kn))
    print(body.replace("  v_mfma_f32_16x16x32_bf16 ", "M ").replace("\n  ", "\n "))
    print("L_code_end:")
    print('.section .rodata,"a"\n.p2align 6')
    print(kernel_desc(kn, sgpr=102))
```
